```python
import torch

def _softmax(x, axis=-1):
    return torch.softmax(x, dim=axis)

def _gelu(x):
    return torch.nn.functional.gelu(x, approximate='tanh')

def _silu(x):
    return torch.nn.functional.silu(x)

def _sigmoid(x):
    return torch.sigmoid(x)

def _layernorm(x, axis=-1, eps=1e-05):
    m = x.mean(dim=axis, keepdim=True)
    v = x.var(dim=axis, keepdim=True, unbiased=False)
    return (x - m) / torch.sqrt(v + eps)

def _scatter_add(tgt, idx, src, axis=0):
    return tgt.clone().index_add_(axis, idx, src)

def _segment_sum(src, seg, n):
    out = torch.zeros((n,) + src.shape[1:], dtype=src.dtype)
    return out.index_add_(0, seg, src)

def _pad(x, pw):
    flat = tuple((v for pair in reversed(pw) for v in pair))
    return torch.nn.functional.pad(x, flat)
kernel_name = 'standalone__autoregressive_conv_wavenet__speech'

def setup_inputs():

    _w = lambda a: (lambda t: t.to(torch.bfloat16) if t.is_floating_point() else t)(torch.as_tensor(a))
    B, T, D, K = (2, 16000, 144, 31)
    return {'x': _w((lambda *s: torch.randn(*s, dtype=torch.bfloat16) * 0.1)(B, T, D)), 'w': _w((lambda *s: torch.randn(*s, dtype=torch.bfloat16) * 0.1)(K, D, 2 * D)), 'w_o': _w((lambda *s: torch.randn(*s, dtype=torch.bfloat16) * 0.05)(D, D))}

def reference(x, w, w_o):
    B, T, D = x.shape
    K = w.shape[0]
    dil = 2
    pad = (K - 1) * dil
    xp = _pad(x, ((0, 0), (pad, 0), (0, 0)))
    h = torch.einsum('btc,cd->btd', xp[:, pad:pad + T, :], w[0])
    for i in range(1, K):
        off = pad - i * dil
        h = h + torch.einsum('btc,cd->btd', xp[:, off:off + T, :], w[i])
    f = h[..., :D].clone()
    g = h[..., D:].clone()
    z = torch.tanh(f) * _sigmoid(g)
    return z @ w_o
```

```python
import sys
NAME = 'standalone__autoregressive_conv_wavenet__speech'
opt = dict(stamps=0, noload=0, nolds=0, nomfma=0, wbuf=2)
for a in sys.argv[2:]:
    k, v = a.split('='); opt[k] = int(v)
out = []
def e(s): out.append('    ' + s)
def lab(s): out.append(s + ':')
def c(s): out.append('    ; ' + s)

WF_BYTES = 140*18*1024
WOF_OFF = WF_BYTES + 2*18*1024*2
WOF_BYTES = 2*45*1024
WS_USED = WOF_OFF + WOF_BYTES
STAMP_OFF = 268435456 - (1 << 20)
NWG_W = 315
NWG_WO = 23
REG = 28224
LDS_BYTES = 4*36864

hdr = f"""; Kernarg layout for this problem (48 bytes, ptrs only, base s[0:1]):
; @launch kernel=prep_kernel grid=({NWG_W+NWG_WO},1,1) block=(256,1,1) lds=0
; @launch kernel={NAME}_kernel grid=(250,1,1) block=(256,1,1) lds={LDS_BYTES}
.amdgcn_target "amdgcn-amd-amdhsa--gfx950"
.text
"""

def srd(d, lo, hi, nbytes):
    e(f's_mov_b32 s{d}, s{lo}')
    e(f's_and_b32 s{d+1}, s{hi}, 0xffff')
    e(f's_mov_b32 s{d+2}, {nbytes}')
    e(f's_mov_b32 s{d+3}, 0x00020000')

out.append('.globl prep_kernel'); out.append('.p2align 8'); out.append('.type prep_kernel,@function')
lab('prep_kernel')
e(f's_cmp_ge_u32 s2, {NWG_W+NWG_WO}')
e('s_cbranch_scc1 Lp_end')
e('s_load_dwordx4 s[4:7], s[0:1], 8')
e('s_load_dwordx2 s[8:9], s[0:1], 40')
e('s_waitcnt lgkmcnt(0)')
srd(12, 4, 5, 31*144*288*2)
srd(16, 6, 7, 144*144*2)
srd(20, 8, 9, WS_USED)
e(f's_cmp_ge_u32 s2, {NWG_W}')
e('s_cbranch_scc1 Lp_wo')
c('g = wg*256+tid ; oct = g/144 ; np = g%144')
e('s_lshl_b32 s3, s2, 8')
e('v_add_u32 v1, s3, v0')
e('s_mov_b32 s24, 29826162')
e('v_mul_hi_u32 v2, v1, s24')
e('v_mul_u32_u24 v3, 144, v2')
e('v_sub_u32 v3, v1, v3')
c("o2 = oct-2 ; ti = o2/18 ; row = 4320 + 8*o2 - 288*ti")
e('v_subrev_u32 v4, 2, v2')
e('v_max_i32 v5, 0, v4')
e('v_mul_u32_u24 v6, 3641, v5')
e('v_lshrrev_b32 v6, 16, v6')
e('v_mul_u32_u24 v6, 288, v6')
e('v_lshlrev_b32 v7, 3, v5')
e('v_add_u32 v7, 4320, v7')
e('v_sub_u32 v7, v7, v6')
e('v_mul_u32_u24 v7, 576, v7')
e('v_lshl_add_u32 v7, v3, 2, v7')
e('v_cmp_gt_i32 vcc, 0, v4')
e('v_mov_b32 v8, 0x7f000000')
e('s_nop 1')
e('v_cndmask_b32 v7, v7, v8, vcc')
for k in range(8):
    if k*576 < 4096:
        e(f'buffer_load_dword v{16+k}, v7, s[12:15], 0 offen offset:{k*576}')
c('dest: s=oct>>2, q=oct&3, isg = np>=72, np2 = np-72*isg, J=np2>>2, q2=np2&3, rho=4*q2+2*isg')
e('v_cmp_le_u32 vcc, 72, v3')
e('v_subrev_u32 v9, 72, v3')
e('v_mov_b32 v10, 32')
e('v_cndmask_b32 v9, v3, v9, vcc')
e('v_cndmask_b32 v10, 0, v10, vcc')
e('v_lshrrev_b32 v11, 2, v2')
e('v_mul_u32_u24 v11, 18, v11')
e('v_lshrrev_b32 v12, 2, v9')
e('v_add_u32 v11, v11, v12')
e('v_lshlrev_b32 v11, 10, v11')
e('v_and_b32 v12, 3, v2')
e('v_lshl_add_u32 v11, v12, 8, v11')
e('v_and_b32 v12, 3, v9')
e('v_lshl_add_u32 v11, v12, 6, v11')
e('v_add_u32 v11, v11, v10')
e('s_mov_b32 s25, 0x05040100')
e('s_mov_b32 s26, 0x07060302')
e('s_waitcnt vmcnt(0)')
for m in range(4):
    e(f'v_perm_b32 v{24+m}, v{17+2*m}, v{16+2*m}, s25')
    e(f'v_perm_b32 v{28+m}, v{17+2*m}, v{16+2*m}, s26')
e('buffer_store_dwordx4 v[24:27], v11, s[20:23], 0 offen')
e('buffer_store_dwordx4 v[28:31], v11, s[20:23], 0 offen offset:16')
e('s_endpgm')
lab('Lp_wo')
c('g2 = (wg-NWG_W)*256+tid ; frag = g2>>6 (0..89(+)) ; nh = frag/45 ; f2 = frag%45 ; J2 = f2/5 ; ks = f2%5')
e(f's_sub_u32 s3, s2, {NWG_W}')
e('s_lshl_b32 s3, s3, 8')
e('v_add_u32 v1, s3, v0')
e('v_cmp_gt_u32 vcc, 5760, v1')
e('s_and_saveexec_b64 s[28:29], vcc')
e('s_cbranch_execz Lp_end')
e('v_lshrrev_b32 v2, 6, v1')
e('v_cmp_le_u32 vcc, 45, v2')
e('v_subrev_u32 v3, 45, v2')
e('v_mov_b32 v4, 1')
e('v_cndmask_b32 v3, v2, v3, vcc')
e('v_cndmask_b32 v4, 0, v4, vcc')
e('v_mul_u32_u24 v5, 13108, v3')
e('v_lshrrev_b32 v5, 16, v5')
e('v_mul_u32_u24 v6, 5, v5')
e('v_sub_u32 v6, v3, v6')
e('v_and_b32 v7, 15, v0')
e('v_bfe_u32 v8, v0, 4, 2')
c("n' = J2<8 ? 32*(J2>>1) + 8*(rho>>2) + 4*(J2&1) + (rho&3) : 128+rho")
e('v_lshrrev_b32 v9, 1, v5')
e('v_lshlrev_b32 v9, 5, v9')
e('v_lshrrev_b32 v10, 2, v7')
e('v_lshl_add_u32 v9, v10, 3, v9')
e('v_and_b32 v10, 1, v5')
e('v_lshl_add_u32 v9, v10, 2, v9')
e('v_and_b32 v10, 3, v7')
e('v_add_u32 v9, v9, v10')
e('v_add_u32 v10, 128, v7')
e('v_cmp_eq_u32 vcc, 8, v5')
e('s_nop 1')
e('v_cndmask_b32 v9, v9, v10, vcc')
e('v_mul_u32_u24 v11, 9, v4')
e('v_sub_u32 v12, 9, v11')
for d in range(4):
    c(f'slot sigma = 4*ks+{d} -> J')
    e(f'v_lshl_add_u32 v13, v6, 2, {d}')
    e('v_add_u32 v14, v11, v13')
    e('v_add_u32 v15, v12, v13')
    e('v_subrev_u32 v15, 8, v15')
    e('v_cmp_le_u32 vcc, 8, v13')
    e('s_nop 1')
    e('v_cndmask_b32 v14, v14, v15, vcc')
    e('v_add_u32 v15, 8, v11')
    e('v_cmp_eq_u32 vcc, 16, v13')
    e('s_nop 1')
    e('v_cndmask_b32 v14, v14, v15, vcc')
    e('v_add_u32 v15, 8, v12')
    e('v_cmp_eq_u32 vcc, 17, v13')
    e('s_nop 1')
    e('v_cndmask_b32 v14, v14, v15, vcc')
    e('v_mov_b32 v15, 100')
    e('v_cmp_le_u32 vcc, 18, v13')
    e('s_nop 1')
    e('v_cndmask_b32 v14, v14, v15, vcc')
    c('c = 8*J + 2*q ; byte = c*288 + n*2')
    e('v_lshlrev_b32 v14, 3, v14')
    e('v_lshl_add_u32 v14, v8, 1, v14')
    e('v_mul_u32_u24 v14, 288, v14')
    e('v_lshl_add_u32 v14, v9, 1, v14')
    e(f'buffer_load_ushort v{16+2*d}, v14, s[16:19], 0 offen')
    e(f'buffer_load_ushort v{17+2*d}, v14, s[16:19], 0 offen offset:288')
e('v_lshlrev_b32 v1, 4, v1')
e(f'v_add_u32 v1, {WOF_OFF}, v1')
e('s_waitcnt vmcnt(0)')
for d in range(4):
    e(f'v_lshl_or_b32 v{24+d}, v{17+2*d}, 16, v{16+2*d}')
e('buffer_store_dwordx4 v[24:27], v1, s[20:23], 0 offen')
lab('Lp_end')
e('s_endpgm')

out.append(f'.globl {NAME}_kernel'); out.append('.p2align 8'); out.append(f'.type {NAME}_kernel,@function')
lab(f'{NAME}_kernel')
nstamp = [0]
def stamp():
    if not opt['stamps']: return
    i = nstamp[0]; nstamp[0] += 1
    e(f's_memtime s[{40+4*i}:{41+4*i}]')
    e(f's_memrealtime s[{42+4*i}:{43+4*i}]')
def KEEP(i, j): r = 112 + 4*(j*4+i); return f'v[{r}:{r+3}]'
def KEEPr(i, j): return 112 + 4*(j*4+i)
def SENT(i, j): r = 4*(j*4+i); return f'a[{r}:{r+3}]'
def ACC(i, j): return KEEP(i, j) if i < 4 else SENT(i-4, j)
NB = opt['wbuf']
def W(u, j): r = 144 + 4*(u*9+j); return f'a[{r}:{r+3}]'
def X(u, i): r = 48 + 4*(u*8+i); return f'v[{r}:{r+3}]'
e('s_cmp_ge_u32 s2, 250')
e('s_cbranch_scc1 L_end')
stamp()
e('s_load_dwordx2 s[4:5], s[0:1], 0')
e('s_load_dwordx2 s[6:7], s[0:1], 24')
e('s_load_dwordx2 s[8:9], s[0:1], 40')
e('v_lshrrev_b32 v1, 6, v0')
e('v_and_b32 v2, 63, v0')
e('v_readfirstlane_b32 s24, v1')
e('s_cmp_ge_u32 s2, 125')
e('s_cselect_b32 s30, 4608000, 0')
e('s_cselect_b32 s31, 125, 0')
e('s_sub_u32 s31, s2, s31')
e('s_lshr_b32 s25, s24, 1')
e('s_and_b32 s26, s24, 1')
e('s_waitcnt lgkmcnt(0)')
e('s_add_u32 s4, s4, s30'); e('s_addc_u32 s5, s5, 0')
e('s_add_u32 s6, s6, s30'); e('s_addc_u32 s7, s7, 0')
srd(12, 4, 5, 4608000)
srd(16, 8, 9, WS_USED)
srd(20, 6, 7, 4608000)
c('x tile loads: 252 threads, 14 rows per iteration')
e('v_mul_u32_u24 v3, 3641, v0')
e('v_lshrrev_b32 v3, 16, v3')
e('v_mul_u32_u24 v4, 18, v3')
e('v_sub_u32 v4, v0, v4')
e('s_mul_i32 s32, s31, 36864')
e('s_sub_u32 s32, s32, 17856')
e('v_lshlrev_b32 v5, 4, v0')
e('v_add_u32 v5, s32, v5')
e('v_and_b32 v6, 1, v3')
e(f'v_mul_u32_u24 v6, {REG}, v6')
e('v_lshrrev_b32 v7, 1, v3')
e('v_mul_u32_u24 v7, 288, v7')
e('v_add_u32 v6, v6, v7')
e('v_lshl_add_u32 v6, v4, 4, v6')
e('v_cmp_gt_u32 vcc, 252, v0')
e('s_and_saveexec_b64 s[28:29], vcc')
for it in range(14):
    e(f'buffer_load_dwordx4 v[{48+4*it}:{51+4*it}], v5, s[12:15], 0 offen')
    if it < 13: e('v_add_u32 v5, 4032, v5')
e('s_mov_b64 exec, s[28:29]')
c('weight prefetch (steps 0,1)')
e('v_lshlrev_b32 v8, 4, v2')
e('v_add_u32 v9, 4096, v8')
e('v_add_u32 v10, 8192, v8')
e(f's_mul_i32 s27, s25, {70*18432}')
e('s_mul_i32 s33, s26, 9216')
e('s_add_u32 s27, s27, s33')
def wload(u, j):
    e(f'buffer_load_dwordx4 {W(u,j)}, v{8+j//4}, s[16:19], s27 offen offset:{(j%4)*1024}')
for u in range(NB):
    for j in range(9): wload(u, j)
    e('s_add_u32 s27, s27, 18432')
c('zero accumulators')
for r in range(144): e(f'v_mov_b32 v{112+r}, 0')
for r in range(144): e(f'v_accvgpr_write_b32 a{r}, 0')
c('LDS read bases v12..v15')
e('v_and_b32 v11, 15, v2')
e('v_mul_u32_u24 v11, 288, v11')
e('v_lshrrev_b32 v16, 4, v2')
e('v_lshl_add_u32 v11, v16, 4, v11')
e('s_mul_i32 s33, s25, 4480')
e('s_add_u32 s33, s33, 256')
e(f's_mul_i32 s34, s25, {REG}')
e(f's_sub_u32 s35, {REG}, s34')
e('s_mul_i32 s36, s26, 9216')
e('s_sub_u32 s37, 9216, s36')
for g in range(4):
    e(f's_add_u32 s38, s33, s{34 if g < 2 else 35}')
    e(f's_add_u32 s38, s38, s{36 if (g&1)==0 else 37}')
    e(f'v_add_u32 v{12+g}, s38, v11')
e('v_cmp_gt_u32 vcc, 252, v0')
e('s_and_saveexec_b64 s[28:29], vcc')
for it in range(14):
    e(f's_waitcnt vmcnt({9*NB + 13-it})')
    e(f'ds_write_b128 v6, v[{48+4*it}:{51+4*it}] offset:{it*2016}')
e('s_mov_b64 exec, s[28:29]')
e('s_waitcnt lgkmcnt(0)')
e('s_barrier')
stamp()
def xread(u, i, stepoff):
    e(f'ds_read_b128 {X(u,i)}, v{12+i//2} offset:{(i&1)*4608 + 64*stepoff}')
for i in range(8): xread(0, i, 0)
import math
UN = 2*NB // math.gcd(2, NB)
assert 70 % UN == 0 or NB == 3
NIT = 70 // UN
REM = 70 - NIT*UN
def step_body(st, last=False):
    u = st % 2; ub = st % NB
    e('s_waitcnt lgkmcnt(0)')
    for j in range(9):
        if not opt['noload']:
            e(f's_waitcnt vmcnt({9*NB-1})')
        for i in range(8):
            if not opt['nomfma']:
                e(f'v_mfma_f32_16x16x32_bf16 {ACC(i,j)}, {W(ub,j)}, {X(u,i)}, {ACC(i,j)}')
            if j < 4 and i in (1, 5) and not opt['nolds']:
                xread(1-u, 2*j + (i == 5), st+1)
        if not opt['noload']:
            wload(ub, j)
    e('s_add_u32 s27, s27, 18432')
e(f's_mov_b32 s39, {NIT}')
e('s_nop 0')
out.append('.p2align 6')
lab('L_loop')
for st in range(UN): step_body(st)
for g in range(4): e(f'v_add_u32 v{12+g}, {64*UN}, v{12+g}')
e('s_sub_u32 s39, s39, 1')
e('s_cmp_lg_u32 s39, 0')
e('s_cbranch_scc1 L_loop')
for st in range(REM): step_body(st)
stamp()
c('---- K reduction through LDS')
e('s_waitcnt vmcnt(0) lgkmcnt(0)')
e('s_barrier')
e('s_mul_i32 s33, s24, 36864')
e('v_add_u32 v16, s33, v8')
e('s_xor_b32 s34, s24, 2')
e('s_mul_i32 s34, s34, 36864')
e('v_add_u32 v17, s34, v8')
e('s_nop 7')
for t in range(36):
    e(f'ds_write_b128 v16, a[{4*t}:{4*t+3}] offset:{t*1024}')
e('s_waitcnt lgkmcnt(0)')
e('s_barrier')
c('w_o fragment loads into a[0:179]')
e('s_mul_i32 s27, s26, 46080')
e(f's_add_u32 s27, s27, {WOF_OFF}')
for f in range(45):
    if f and f % 12 == 0: e('s_add_u32 s27, s27, 12288')
    ff = f % 12
    e(f'buffer_load_dwordx4 a[{4*f}:{4*f+3}], v{8+ff//4}, s[16:19], s27 offen offset:{(ff%4)*1024}')
Zb = [48, 68]; Sb = [88, 98]
def zdst(i, j):
    if i < 2: return Zb[i] + (j if j < 8 else 16)
    return Sb[i-2] + j
e('s_mov_b32 s33, 0xc038aa3b')
e('s_mov_b32 s34, 0xbfb8aa3b')
e('v_mov_b32 v44, 0x41f00000')
tiles = [(i, j) for j in range(9) for i in range(4)]
CH = 3
RB = [20, 32]
def rd(ch):
    for k in range(CH):
        t = ch*CH + k
        r = RB[ch % 2] + 4*k
        e(f'ds_read_b128 v[{r}:{r+3}], v17 offset:{t*1024}')
rd(0)
for ch in range(12):
    if ch+1 < 12:
        rd(ch+1)
        e(f's_waitcnt lgkmcnt({CH})')
    else:
        e('s_waitcnt lgkmcnt(0)')
    for k in range(CH):
        t = ch*CH + k; i, j = tiles[t]
        a = KEEPr(i, j); r = RB[ch % 2] + 4*k
        for m in range(4): e(f'v_add_f32 v{a+m}, v{a+m}, v{r+m}')
        e(f'v_mul_f32 v{r}, s33, v{a}')
        e(f'v_mul_f32 v{r+1}, s33, v{a+1}')
        e(f'v_mul_f32 v{r+2}, s34, v{a+2}')
        e(f'v_mul_f32 v{r+3}, s34, v{a+3}')
        e(f'v_min_f32 v{r}, v{r}, v44')
        e(f'v_min_f32 v{r+1}, v{r+1}, v44')
        for m in range(4): e(f'v_exp_f32 v{r+m}, v{r+m}')
        e(f'v_add_f32 v{a+2}, 1.0, v{r}')
        e(f'v_add_f32 v{a+3}, 1.0, v{r+1}')
        e(f'v_fma_f32 v{r+2}, v{a+2}, v{r+2}, v{a+2}')
        e(f'v_fma_f32 v{r+3}, v{a+3}, v{r+3}, v{a+3}')
        e(f'v_rcp_f32 v{r+2}, v{r+2}')
        e(f'v_rcp_f32 v{r+3}, v{r+3}')
        e(f'v_sub_f32 v{r}, 1.0, v{r}')
        e(f'v_sub_f32 v{r+1}, 1.0, v{r+1}')
        e(f'v_mul_f32 v{r}, v{r}, v{r+2}')
        e(f'v_mul_f32 v{r+1}, v{r+1}, v{r+3}')
        e(f'v_cvt_pk_bf16_f32 v{zdst(i,j)}, v{r}, v{r+1}')
stamp()
c('---- z exchange with wave^1 : reuse own write area (partner reads done? need barrier)')
e('s_barrier')
for tt in range(2):
    b = Sb[tt]
    e(f'ds_write_b128 v16, v[{b}:{b+3}] offset:{(tt*3)*1024}')
    e(f'ds_write_b128 v16, v[{b+4}:{b+7}] offset:{(tt*3+1)*1024}')
    e(f'ds_write_b32 v16, v{b+8} offset:{(tt*3+2)*1024}')
    e(f'v_mov_b32 v{Zb[tt]+18}, 0')
    e(f'v_mov_b32 v{Zb[tt]+19}, 0')
e('s_xor_b32 s34, s24, 1')
e('s_mul_i32 s34, s34, 36864')
e('v_add_u32 v17, s34, v8')
e('s_waitcnt lgkmcnt(0)')
e('s_barrier')
for tt in range(2):
    b = Zb[tt]
    e(f'ds_read_b128 v[{b+8}:{b+11}], v17 offset:{(tt*3)*1024}')
    e(f'ds_read_b128 v[{b+12}:{b+15}], v17 offset:{(tt*3+1)*1024}')
    e(f'ds_read_b32 v{b+17}, v17 offset:{(tt*3+2)*1024}')
c('output row offset: t = t0 + 2*(16*(2nh+tt)+jj) + kh')
e('v_and_b32 v18, 15, v2')
e('v_mul_u32_u24 v18, 576, v18')
e('v_lshrrev_b32 v19, 4, v2')
e('s_mul_i32 s33, s31, 36864')
e('s_mul_i32 s34, s26, 18432')
e('s_add_u32 s33, s33, s34')
e('s_mul_i32 s34, s25, 288')
e('s_add_u32 s33, s33, s34')
e('v_add_u32 v18, s33, v18')
e('v_lshl_add_u32 v20, v19, 4, v18')
e('v_lshl_add_u32 v21, v19, 3, v18')
e('v_add_u32 v22, 9216, v20')
e('v_add_u32 v23, 9216, v21')
e('s_waitcnt vmcnt(0) lgkmcnt(0)')
def A2(tt, J2): r = 112 + 4*(tt*9+J2); return r
for J2 in range(9):
    for ks in range(5):
        for tt in range(2):
            r = A2(tt, J2); f = J2*5+ks
            cin = '0' if ks == 0 else f'v[{r}:{r+3}]'
            e(f'v_mfma_f32_16x16x32_bf16 v[{r}:{r+3}], a[{4*f}:{4*f+3}], v[{Zb[tt]+4*ks}:{Zb[tt]+4*ks+3}], {cin}')
e('s_nop 7')
e('s_nop 1')
for tt in range(2):
    for P in range(4):
        r0 = A2(tt, 2*P); r1 = A2(tt, 2*P+1); d = 192 + 4*(tt*5+P)
        e(f'v_cvt_pk_bf16_f32 v{d}, v{r0}, v{r0+1}')
        e(f'v_cvt_pk_bf16_f32 v{d+1}, v{r0+2}, v{r0+3}')
        e(f'v_cvt_pk_bf16_f32 v{d+2}, v{r1}, v{r1+1}')
        e(f'v_cvt_pk_bf16_f32 v{d+3}, v{r1+2}, v{r1+3}')
        e(f'buffer_store_dwordx4 v[{d}:{d+3}], v{20+2*tt}, s[20:23], 0 offen offset:{64*P}')
    r0 = A2(tt, 8); d = 192 + 4*(tt*5+4)
    e(f'v_cvt_pk_bf16_f32 v{d}, v{r0}, v{r0+1}')
    e(f'v_cvt_pk_bf16_f32 v{d+1}, v{r0+2}, v{r0+3}')
    e(f'buffer_store_dwordx2 v[{d}:{d+1}], v{21+2*tt}, s[20:23], 0 offen offset:256')
if opt['stamps']:
    e('s_waitcnt vmcnt(0)')
    stamp()
    e('s_waitcnt lgkmcnt(0)')
    e('s_cmp_lg_u32 s24, 0')
    e('s_cbranch_scc1 L_end')
    e('s_mov_b32 s18, 0x10000000')
    e('s_lshl_b32 s33, s2, 7')
    e(f's_add_u32 s33, s33, {STAMP_OFF}')
    e('v_mov_b32 v1, s33')
    for i in range(8):
        for k in range(4):
            e(f'v_mov_b32 v{4+k}, ' + (f's{40+4*i+k}' if i < nstamp[0] else '0'))
        e(f'buffer_store_dwordx4 v[4:7], v1, s[16:19], 0 offen offset:{16*i}')
        e('s_nop 1')
lab('L_end')
e('s_endpgm')

tail = f"""
.section .rodata,"a"
.p2align 6
.amdhsa_kernel prep_kernel
  .amdhsa_next_free_vgpr 32
  .amdhsa_next_free_sgpr 40
  .amdhsa_accum_offset 32
  .amdhsa_group_segment_fixed_size 0
  .amdhsa_kernarg_size 48
  .amdhsa_user_sgpr_count 2
  .amdhsa_user_sgpr_kernarg_segment_ptr 1
  .amdhsa_system_sgpr_workgroup_id_x 1
.end_amdhsa_kernel
.p2align 6
.amdhsa_kernel {NAME}_kernel
  .amdhsa_next_free_vgpr 512
  .amdhsa_next_free_sgpr 96
  .amdhsa_accum_offset 256
  .amdhsa_group_segment_fixed_size 0
  .amdhsa_kernarg_size 48
  .amdhsa_user_sgpr_count 2
  .amdhsa_user_sgpr_kernarg_segment_ptr 1
  .amdhsa_system_sgpr_workgroup_id_x 1
.end_amdhsa_kernel
"""
open(sys.argv[1], 'w').write(hdr + '\n'.join(out) + '\n' + tail)
```

```python
import numpy as np
PTS = [0.28125, -0.28125, 0.84375, -0.84375, 1.78125, -1.78125]
def matrices(pts=PTS):
    a = np.array(pts, dtype=np.float64); n = 7
    AT = np.zeros((4, 7)); G = np.zeros((7, 4)); BT = np.zeros((7, 7))
    for m in range(6):
        N = np.prod([a[m]-a[j] for j in range(6) if j != m])
        for i in range(4): AT[i, m] = a[m]**i; G[m, i] = a[m]**i / N
        p = np.poly([a[j] for j in range(6) if j != m])[::-1]
        BT[m, :6] = p
    AT[3, 6] = 1; G[6, 3] = 1; BT[6, :] = np.poly(a)[::-1]
    return AT, G, BT
if __name__ == '__main__':
    AT, G, BT = matrices()
    np.set_printoptions(precision=5, suppress=True, linewidth=150)
    print(AT); print(G); print(BT)
    T = np.einsum('im,mr,ms->irs', AT, G, BT)
    E = np.zeros_like(T)
    for i in range(4):
        for r in range(4): E[i, r, i+r] = 1
    print('identity err', np.abs(T-E).max())
```

```python
import sys, struct
import numpy as np
from f44 import matrices, PTS
NAME = 'standalone__autoregressive_conv_wavenet__speech'
opt = dict(stamps=0, LA=24, only=0, smallfix=1)
for a in sys.argv[2:]:
    k, v = a.split('='); opt[k] = int(v)
out = []
def e(s): out.append('    ' + s)
def lab(s): out.append(s + ':')
def c(s): out.append('    ; ' + s)
def fh(x): return '0x%08x' % struct.unpack('<I', struct.pack('<f', float(x)))[0]
AT, G, BT = matrices()

XROWS = 2032
XS = XROWS*96
U_OFF = 0
U_BYTES = 4*21*XS
WT_OFF = U_BYTES
WT_BYTES = 9*21*24576
WO_OFF = WT_OFF + WT_BYTES
WO_BYTES = 45*1024
Z_OFF = WO_OFF + 48*1024
Z_BYTES = 28*2*9*2*18*512
WS_USED = Z_OFF + Z_BYTES
STAMP_OFF = 268435456 - (1 << 20)
assert U_BYTES % 128 == 0 and WT_OFF % 128 == 0
NWG_PW = 54
NWG_PO = 8
NWG_PX = 2*189
NWG_P = NWG_PW + NWG_PO + NWG_PX
SLOT = 53248
LDS_MAIN = 3*SLOT
LDS_POST = 45*1024

launches = [f'; @launch kernel=prep_kernel grid=({NWG_P},1,1) block=(384,1,1) lds=0',
            f'; @launch kernel={NAME}_kernel grid=(252,1,1) block=(256,1,1) lds={LDS_MAIN}',
            f'; @launch kernel=post_kernel grid=(252,1,1) block=(256,1,1) lds={LDS_POST}']
if opt['only']: launches = launches[:opt['only']]
hdr = """; Kernarg layout for this problem (48 bytes, ptrs only, base s[0:1]):
;   offset   0: d_in[0] x  shape=(2, 16000, 144) dtype=bfloat16
;   offset   8: d_in[1] w  shape=(31, 144, 288) dtype=bfloat16
;   offset  16: d_in[2] w_o  shape=(144, 144) dtype=bfloat16
;   offset  24: d_out     shape=(2, 16000, 144) dtype=bfloat16
;   offset  32: d_debug   256 bytes
;   offset  40: d_ws      268435456 bytes workspace
""" + '\n'.join(launches) + """
.amdgcn_target "amdgcn-amd-amdhsa--gfx950"
.text
"""
def srd(d, lo, hi, nbytes):
    e(f's_mov_b32 s{d}, s{lo}')
    e(f's_and_b32 s{d+1}, s{hi}, 0xffff')
    e(f's_mov_b32 s{d+2}, {nbytes}')
    e(f's_mov_b32 s{d+3}, 0x00020000')
def kernel_begin(n):
    out.append(f'.globl {n}'); out.append('.p2align 8'); out.append(f'.type {n},@function'); lab(n)
def pkfma(d, sc, a, b, nega=False):
    neg = ' neg_lo:[0,1,0] neg_hi:[0,1,0]' if nega else ''
    e(f'v_pk_fma_f32 v[{d}:{d+1}], s[{sc}:{sc+1}], v[{a}:{a+1}], v[{b}:{b+1}]{neg}')
def pkmul(d, sc, a):
    e(f'v_pk_mul_f32 v[{d}:{d+1}], s[{sc}:{sc+1}], v[{a}:{a+1}]')
def pkadd(d, a, b, negb=False):
    neg = ' neg_lo:[0,1] neg_hi:[0,1]' if negb else ''
    e(f'v_pk_add_f32 v[{d}:{d+1}], v[{a}:{a+1}], v[{b}:{b+1}]{neg}')
def sconst2(s, x):
    e(f's_mov_b32 s{s}, {fh(x)}'); e(f's_mov_b32 s{s+1}, {fh(x)}')

kernel_begin('prep_kernel')
e(f's_cmp_ge_u32 s2, {NWG_P}')
e('s_cbranch_scc1 Lp_end')
e('s_load_dwordx4 s[4:7], s[0:1], 0')
e('s_load_dwordx2 s[8:9], s[0:1], 16')
e('s_load_dwordx2 s[10:11], s[0:1], 40')
e('s_waitcnt lgkmcnt(0)')
srd(20, 10, 11, WS_USED)
e(f's_cmp_lt_u32 s2, {NWG_PW}')
e('s_cbranch_scc1 Lp_w')
e(f's_cmp_lt_u32 s2, {NWG_PW+NWG_PO}')
e('s_cbranch_scc1 Lp_wo')
c('x part: wgx = s2 - base ; b = wgx>=189 ; wq = wgx - 189 b ; wave = (p, phi)')
e(f's_sub_u32 s3, s2, {NWG_PW+NWG_PO}')
e('s_cmp_ge_u32 s3, 189')
e('s_cselect_b32 s24, 4608000, 0')
e('s_cselect_b32 s25, 189, 0')
e(f's_cselect_b32 s26, {2*21*XS}, 0')
e('s_sub_u32 s3, s3, s25')
e('s_add_u32 s4, s4, s24'); e('s_addc_u32 s5, s5, 0')
srd(12, 4, 5, 4608000)
e('v_lshrrev_b32 v1, 6, v0')
e('v_and_b32 v2, 63, v0')
e('v_readfirstlane_b32 s27, v1')
e('s_lshl_b32 s28, s3, 6')
e('v_add_u32 v3, s28, v2')
e('s_cmp_ge_u32 s27, 3')
e('s_cselect_b32 s29, 1, 0')
e('s_mul_i32 s30, s29, 3')
e('s_sub_u32 s30, s27, s30')
e('v_mul_u32_u24 v4, 43691, v3')
e('v_lshrrev_b32 v4, 18, v4')
e('v_mul_u32_u24 v5, 6, v4')
e('v_sub_u32 v5, v3, v5')
c('src offset for s=0: t = 8*(kr-7)+6+p -> byte = t*288 + phi*96 + piece*16')
e('v_mul_u32_u24 v6, 2304, v4')
e('v_lshl_add_u32 v6, v5, 4, v6')
e('s_mul_i32 s31, s29, 288')
e('s_mul_i32 s32, s30, 96')
e('s_add_u32 s31, s31, s32')
e(f's_sub_u32 s31, s31, {50*288}')
e('v_add_u32 v6, s31, v6')
for s in range(7):
    e(f'buffer_load_dwordx4 v[{8+4*s}:{11+4*s}], v6, s[12:15], 0 offen')
    if s < 6: e('v_subrev_u32 v6, 576, v6')
c('dst offset: stream=(2b+p): ((stream*7+m)*3+phi)*XS + L*16')
e(f's_mul_i32 s31, s29, {21*XS}')
e('s_add_u32 s31, s31, s26')
e(f's_mul_i32 s32, s30, {XS}')
e('s_add_u32 s31, s31, s32')
e('v_lshlrev_b32 v7, 4, v3')
e('v_add_u32 v7, s31, v7')
sc = 36
cst = {}
for t in range(3):
    a = PTS[2*t]
    q0 = BT[2*t][1]; q1 = BT[2*t][3]
    assert abs(BT[2*t][0] - a*q0) < 1e-12 and abs(BT[2*t][2] - a*q1) < 1e-12 and abs(BT[2*t][4]-a) < 1e-12
    for nm, val in (('q0', q0), ('q1', q1), ('a', a)):
        cst[(t, nm)] = sc; sconst2(sc, val); sc += 2
for nm, idx in (('p0', 0), ('p1', 2), ('p2', 4)):
    cst[nm] = sc; sconst2(sc, BT[6][idx]); sc += 2
e('s_mov_b32 s33, 0xffff0000')
e('s_waitcnt vmcnt(0)')
for dw in range(4):
    for s in range(7):
        e(f'v_lshlrev_b32 v{40+2*s}, 16, v{8+4*s+dw}')
        e(f'v_and_b32 v{41+2*s}, s33, v{8+4*s+dw}')
    D = lambda s: 40+2*s
    for t in range(3):
        pkfma(54, cst[(t,'q1')], D(2), D(4))
        pkfma(56, cst[(t,'q1')], D(3), D(5))
        pkfma(54, cst[(t,'q0')], D(0), 54)
        pkfma(56, cst[(t,'q0')], D(1), 56)
        pkfma(58, cst[(t,'a')], 54, 56)
        pkfma(60, cst[(t,'a')], 54, 56, nega=True)
        e(f'v_cvt_pk_bf16_f32 v{64+4*(2*t)+dw}, v58, v59')
        e(f'v_cvt_pk_bf16_f32 v{64+4*(2*t+1)+dw}, v60, v61')
    pkfma(54, cst['p2'], D(4), D(6))
    pkfma(54, cst['p1'], D(2), 54)
    pkfma(54, cst['p0'], D(0), 54)
    e(f'v_cvt_pk_bf16_f32 v{64+24+dw}, v54, v55')
for m in range(7):
    e(f'buffer_store_dwordx4 v[{64+4*m}:{67+4*m}], v7, s[20:23], 0 offen')
    if m < 6: e(f'v_add_u32 v7, {3*XS}, v7')
e('s_endpgm')
lab('Lp_w')
srd(12, 6, 7, 31*144*288*2)
c('item = wg*384+tid ; ko = item/144 ; np = item%144 ; kk = ko/18 ; o = ko%18')
e('s_mul_i32 s3, s2, 384')
e('v_add_u32 v1, s3, v0')
e('s_mov_b32 s24, 29826162')
e('v_mul_hi_u32 v2, v1, s24')
e('v_mul_u32_u24 v3, 144, v2')
e('v_sub_u32 v3, v1, v3')
e('v_mul_u32_u24 v4, 3641, v2')
e('v_lshrrev_b32 v4, 16, v4')
e('v_mul_u32_u24 v5, 18, v4')
e('v_sub_u32 v5, v2, v5')
c('src = (4kk*144 + 8o)*576 + np*4 ; tap stride 82944')
e(f'v_mul_u32_u24 v6, {4*82944}, v4')
e('v_mul_u32_u24 v7, 4608, v5')
e('v_add_u32 v6, v6, v7')
e('v_lshl_add_u32 v6, v3, 2, v6')
for r in range(4):
    for ch in range(8):
        e(f'buffer_load_dword v{16+8*r+ch}, v6, s[12:15], 0 offen offset:{ch*576}')
    if r < 3: e('v_add_u32 v6, 82944, v6')
c('dst: phi = o/6, o6 = o%6 ; o6<4: f=kk, q=o6 ; else f = 8+(kk>>1), q = 2*(kk&1) + (o6-4)')
e('v_mul_u32_u24 v7, 43, v5')
e('v_lshrrev_b32 v7, 8, v7')
e('v_mul_u32_u24 v8, 6, v7')
e('v_sub_u32 v8, v5, v8')
e('v_lshrrev_b32 v9, 1, v4')
e('v_add_u32 v9, 8, v9')
e('v_and_b32 v10, 1, v4')
e('v_lshl_add_u32 v10, v10, 1, v8')
e('v_subrev_u32 v10, 4, v10')
e('v_cmp_le_u32 vcc, 4, v8')
e('s_nop 1')
e('v_cndmask_b32 v9, v4, v9, vcc')
e('v_cndmask_b32 v10, v8, v10, vcc')
e('v_cmp_le_u32 vcc, 72, v3')
e('v_subrev_u32 v11, 72, v3')
e('v_mov_b32 v12, 32')
e('v_cndmask_b32 v11, v3, v11, vcc')
e('v_cndmask_b32 v12, 0, v12, vcc')
e('v_lshrrev_b32 v13, 3, v11')
e(f'v_mul_u32_u24 v13, {21*24576}, v13')
e('v_mul_u32_u24 v14, 24576, v7')
e('v_add_u32 v13, v13, v14')
e('v_bfe_u32 v14, v11, 2, 1')
e('v_mul_u32_u24 v14, 12288, v14')
e('v_add_u32 v13, v13, v14')
e('v_lshl_add_u32 v13, v9, 10, v13')
e('v_lshl_add_u32 v13, v10, 8, v13')
e('v_and_b32 v14, 3, v11')
e('v_lshl_add_u32 v13, v14, 6, v13')
e('v_add_u32 v13, v13, v12')
e(f'v_add_u32 v13, {WT_OFF}, v13')
sc = 36; cg_ = {}
for t in range(3):
    for r in range(4):
        cg_[(t, r)] = sc; sconst2(sc, G[2*t][r]); sc += 2
    assert abs(G[2*t+1][0]+G[2*t][0]) < 1e-12 and abs(G[2*t+1][1]-G[2*t][1]) < 1e-12
e('s_mov_b32 s33, 0xffff0000')
e('s_mov_b32 s25, 0x05040100')
e('s_mov_b32 s26, 0x07060302')
e('s_waitcnt vmcnt(0)')
for dw in range(4):
    for r in range(4):
        for c2 in range(2):
            src = 16+8*r+2*dw+c2
            e(f'v_lshlrev_b32 v{48+4*r+2*c2}, 16, v{src}')
            e(f'v_and_b32 v{49+4*r+2*c2}, s33, v{src}')
    for t in range(3):
        for c2 in range(2):
            g = lambda r: 48+4*r+2*c2
            E, O = 64+4*c2, 66+4*c2
            pkmul(E, cg_[(t,0)], g(0))
            pkmul(O, cg_[(t,1)], g(1))
            pkfma(E, cg_[(t,2)], g(2), E)
            pkfma(O, cg_[(t,3)], g(3), O)
            pkadd(72+4*c2, O, E)
            pkadd(74+4*c2, O, E, negb=True)
        for sgn in range(2):
            m = 2*t+sgn
            for n in range(2):
                e(f'v_cvt_pk_bf16_f32 v{96+8*m+4*n+dw}, v{72+2*sgn+n}, v{76+2*sgn+n}')
    e(f'v_perm_b32 v{96+48+dw}, v{16+24+2*dw+1}, v{16+24+2*dw}, s25')
    e(f'v_perm_b32 v{96+48+4+dw}, v{16+24+2*dw+1}, v{16+24+2*dw}, s26')
for m in range(7):
    e(f'buffer_store_dwordx4 v[{96+8*m}:{99+8*m}], v13, s[20:23], 0 offen')
    e(f'buffer_store_dwordx4 v[{100+8*m}:{103+8*m}], v13, s[20:23], 0 offen offset:16')
    if m < 6: e(f'v_add_u32 v13, {3*24576}, v13')
e('s_endpgm')
lab('Lp_wo')
srd(16, 8, 9, 144*144*2)
e(f's_sub_u32 s3, s2, {NWG_PW}')
e('s_mul_i32 s3, s3, 384')
e('v_add_u32 v1, s3, v0')
e('v_cmp_gt_u32 vcc, 2880, v1')
e('s_and_saveexec_b64 s[28:29], vcc')
e('s_cbranch_execz Lp_end')
e('v_lshrrev_b32 v3, 6, v1')
e('v_mul_u32_u24 v5, 13108, v3')
e('v_lshrrev_b32 v5, 16, v5')
e('v_mul_u32_u24 v6, 5, v5')
e('v_sub_u32 v6, v3, v6')
e('v_and_b32 v7, 15, v1')
e('v_bfe_u32 v8, v1, 4, 2')
e('v_lshl_add_u32 v9, v7, 3, v5')
e('v_add_u32 v10, 128, v7')
e('v_cmp_eq_u32 vcc, 8, v5')
e('s_nop 1')
e('v_cndmask_b32 v9, v9, v10, vcc')
c('c = 32ks + 8d + 2q + e ; byte = c*288 + n*2 (c>=144 -> out of range -> 0)')
e('v_lshlrev_b32 v14, 5, v6')
e('v_lshl_add_u32 v14, v8, 1, v14')
e('v_mul_u32_u24 v14, 288, v14')
e('v_lshl_add_u32 v14, v9, 1, v14')
for d in range(4):
    e(f'buffer_load_ushort v{16+2*d}, v14, s[16:19], 0 offen')
    e(f'buffer_load_ushort v{17+2*d}, v14, s[16:19], 0 offen offset:288')
    if d < 3: e('v_add_u32 v14, 2304, v14')
e('v_lshlrev_b32 v1, 4, v1')
e(f'v_add_u32 v1, {WO_OFF}, v1')
e('s_waitcnt vmcnt(0)')
for d in range(4):
    e(f'v_lshl_or_b32 v{24+d}, v{17+2*d}, 16, v{16+2*d}')
e('buffer_store_dwordx4 v[24:27], v1, s[20:23], 0 offen')
lab('Lp_end')
e('s_endpgm')

kernel_begin(f'{NAME}_kernel')
nstamp = [0]
def stamp():
    if not opt['stamps']: return
    i = nstamp[0]; nstamp[0] += 1
    e(f's_memtime s[{64+4*i}:{65+4*i}]')
    e(f's_memrealtime s[{66+4*i}:{67+4*i}]')
def Y(i, t): return 40 + 4*(i*9+t)
def M(t): return 184 + 4*t
def MD(t): return 220 + 4*t
def vr(r): return f'v[{r}:{r+3}]'
def FR(k): return f'a[{4*k}:{4*k+3}]'
e('s_cmp_ge_u32 s2, 252')
e('s_cbranch_scc1 L_end')
stamp()
e('s_load_dwordx2 s[8:9], s[0:1], 40')
e('v_lshrrev_b32 v1, 6, v0')
e('v_and_b32 v2, 63, v0')
e('v_readfirstlane_b32 s24, v1')
c('unit = base[xcd] + (id>>3)')
e('s_and_b32 s25, s2, 7')
e('s_lshr_b32 s26, s2, 3')
e('s_mul_i32 s27, s25, 31')
e('s_min_u32 s28, s25, 4')
e('s_add_u32 s27, s27, s28')
e('s_add_u32 s27, s27, s26')
e('s_mul_i32 s28, s27, 7282')
e('s_lshr_b32 s28, s28, 16')
e('s_mul_i32 s29, s28, 9')
e('s_sub_u32 s29, s27, s29')
e('s_mul_i32 s30, s28, 9363')
e('s_lshr_b32 s30, s30, 16')
e('s_mul_i32 s31, s30, 7')
e('s_sub_u32 s31, s28, s31')
e('s_lshr_b32 s32, s24, 1')
e('s_and_b32 s33, s24, 1')
e('s_mul_i32 s34, s24, 7168')
e('s_mul_i32 s35, s24, 6144')
e(f's_mul_i32 s36, s30, {21*XS}')
e('s_mul_i32 s37, s31, 27648')
e('s_add_u32 s36, s36, s37')
e('s_add_u32 s36, s36, s34')
e(f's_mul_i32 s37, s29, {21*24576}')
e('s_add_u32 s37, s37, s35')
e(f's_add_u32 s37, s37, {WT_OFF}')
e('v_lshlrev_b32 v3, 4, v2')
e('v_add_u32 v13, 4096, v3')
e('s_waitcnt lgkmcnt(0)')
srd(16, 8, 9, WS_USED)
srd(20, 8, 9, WS_USED)
def dma_ops(slot):
    ops = []
    for k in range(7):
        pre = []
        if k % 4 == 0: pre = [f's_add_u32 m0, s34, {slot*SLOT + (k//4)*4096}']
        ops.append((pre, f'buffer_load_dwordx4 v{3 if k < 4 else 13}, s[16:19], s36 offen offset:{(k%4)*1024} lds', [f's_add_u32 s36, s36, {XS}'] if k == 6 else []))
    for k in range(6):
        pre = []
        if k % 4 == 0: pre = [f's_add_u32 m0, s35, {slot*SLOT + 28672 + (k//4)*4096}']
        ops.append((pre, f'buffer_load_dwordx4 v{3 if k < 4 else 13}, s[16:19], s37 offen offset:{(k%4)*1024} lds', ['s_add_u32 s37, s37, 24576'] if k == 5 else []))
    return ops
for slot in range(2):
    for pre, op, post in dma_ops(slot):
        for p in pre: e(p); e('s_nop 0')
        e(op)
        for p in post: e(p)
c('LDS read bases')
e('v_and_b32 v14, 15, v2')
e('v_lshrrev_b32 v15, 4, v2')
e('v_mul_u32_u24 v16, 864, v14')
e('s_mul_i32 s38, s32, 13824')
e('v_add_u32 v16, s38, v16')
e('v_lshl_add_u32 v4, v15, 4, v16')
e('v_lshrrev_b32 v17, 1, v15')
e('v_mul_u32_u24 v17, 96, v17')
e('v_sub_u32 v17, v16, v17')
e('v_and_b32 v18, 1, v15')
e('v_lshl_add_u32 v17, v18, 4, v17')
e('v_add_u32 v7, 160, v17')
e('s_mul_i32 s38, s33, 12288')
e('s_add_u32 s38, s38, 28672')
e('v_add_u32 v10, s38, v3')
for s in (1, 2):
    e(f'v_add_u32 v{4+s}, {s*SLOT}, v4')
    e(f'v_add_u32 v{7+s}, {s*SLOT}, v7')
    e(f'v_add_u32 v{10+s}, {s*SLOT}, v10')
for r in range(40, 184): e(f'v_mov_b32 v{r}, 0')
for r in range(220, 256): e(f'v_mov_b32 v{r}, 0')
c('output-transform coefficient table: s[40:43] current (0 for first iter), s44.. = (a,a2,a3) x 6')
for k in range(4): e(f's_mov_b32 s{40+k}, 0')
for m in range(6):
    for i in range(1, 4): e(f's_mov_b32 s{44+3*m+i-1}, {fh(AT[i][m])}')

frags = []
mf = []
for tp in range(-7, 9):
    for kk in range(min(7, 8-tp), max(0, -tp)-1, -1):
        mf.append((tp+kk, ('W', kk), ('X', tp)))
for tp in range(-6, 9):
    for pp in range(3, -1, -1):
        if 0 <= tp+2*pp <= 8: mf.append((tp+2*pp, ('WT', pp), ('XT', tp)))
assert len(mf) == 108
fu = {}
for s, (t, wk, xk) in enumerate(mf):
    for k in (xk, wk):
        if k not in fu: fu[k] = s; frags.append(k)
assert len(frags) == 43
fidx = {k: i for i, k in enumerate(frags)}
LA = opt['LA']; BAR = 108 - LA; ELAST = BAR - 6
iss = [(-LA + (k*(ELAST+LA))//42) for k in range(43)]
for k in range(43): assert iss[k] <= fu[frags[k]] - 8, (k, iss[k], fu[frags[k]])
def rd(k, slot):
    kind, i = frags[k]
    if kind == 'X': return f'ds_read_b128 {FR(k)}, v{4+slot} offset:{(i+7)*96}'
    if kind == 'XT': return f'ds_read_b128 {FR(k)}, v{7+slot} offset:{(i+6)*96}'
    if kind == 'W': return f'ds_read_b128 {FR(k)}, v{10+slot} offset:{i*1024}'
    return f'ds_read_b128 {FR(k)}, v{10+slot} offset:{(8+i)*1024}'
npre = sum(1 for x in iss if x < 0)
first_touch = {}; last_touch = {}
for s, (t, wk, xk) in enumerate(mf):
    first_touch.setdefault(t, s); last_touch[t] = s
e('s_waitcnt vmcnt(13)')
e('s_barrier')
stamp()
for k in range(npre): e(rd(k, 0))
e('s_mov_b32 s39, 7')
out.append('.p2align 6')
lab('L_loop')
fma_list = [(i, t, r) for t in range(9) for i in range(4) for r in range(4)]
for ph in range(3):
    c(f'======== phase {ph}')
    extras = [[] for _ in range(108)]
    rslot = {}
    for k in range(43):
        if iss[k] >= 0: extras[iss[k]].append(('rd', k, ph))
        else: extras[108+iss[k]].append(('rd', k, (ph+1) % 3))
    busy = set(s for s in range(108) if extras[s])
    ops = dma_ops((ph+2) % 3)
    free = [s for s in range(2, BAR-3) if s not in busy]
    for n, (pre, op, post) in enumerate(ops):
        s = free[(n*len(free))//13]
        for p in pre: extras[s-1].append(('txt', p))
        extras[s].append(('txt', op))
        for p in post: extras[s].append(('txt', p))
    issued = npre; covered = 0
    for s, (t, wk, xk) in enumerate(mf):
        if s == BAR:
            e('s_waitcnt vmcnt(13) lgkmcnt(0)')
            e('s_barrier')
            covered = 43
        need = max(fidx[wk], fidx[xk]) + 1
        if need > covered:
            allow = min(issued - need, 4)
            e(f's_waitcnt lgkmcnt({allow})')
            covered = issued - allow
        cin = '0' if (ph == 0 and first_touch[t] == s) else vr(M(t))
        dst = vr(MD(t)) if (ph == 2 and last_touch[t] == s) else vr(M(t))
        e(f'v_mfma_f32_16x16x32_bf16 {dst}, {FR(fidx[wk])}, {FR(fidx[xk])}, {cin}')
        for x in extras[s]:
            if x[0] == 'rd':
                e(rd(x[1], x[2]))
                if x[2] == ph: issued += 1
            else: e(x[1])
        bs = ph*108 + s
        if bs >= 8 and (bs - 8) % 2 == 0 and (bs-8)//2 < 144:
            i, tt, r = fma_list[(bs-8)//2]
            e(f'v_fmac_f32 v{Y(i,tt)+r}, s{40+i}, v{MD(tt)+r}')
        if ph == 0 and s == 100:
            c('last iteration: disable the useless prefetches')
            e('s_cmp_eq_u32 s39, 1')
            e(f's_cselect_b32 s18, 0, {WS_USED}')
        if ph == 2 and s == 85:
            e('s_mov_b32 s40, 1.0')
        if ph == 2 and 86 <= s < 86+9:
            n = s - 86
            e(f's_mov_b32 s{41+2*n}, s{44+2*n}')
            e(f's_mov_b32 s{42+2*n}, s{45+2*n}')
e('s_sub_u32 s39, s39, 1')
e('s_cmp_lg_u32 s39, 0')
e('s_cbranch_scc1 L_loop')
stamp()
c('---- epilogue')
e('s_waitcnt vmcnt(0) lgkmcnt(0)')
e('s_mov_b32 s40, 0xc038aa3b')
e('s_mov_b32 s41, 0xbfb8aa3b')
e('s_mov_b32 s42, 0x39800000')
e('v_mov_b32 v19, 0x41f00000')
c('z address: ((((g*2+rh)*9+tau)*2+ih)*18+J)*512 + lane*8')
e('s_lshl_b32 s43, s28, 1')
e('s_add_u32 s43, s43, s32')
e(f's_mul_i32 s43, s43, {9*2*18*512}')
e('s_lshl_b32 s44, s29, 1')
e('s_add_u32 s44, s44, s33')
e('s_lshl_b32 s44, s44, 9')
e('s_add_u32 s43, s43, s44')
e(f's_add_u32 s43, s43, {Z_OFF}')
e('v_lshlrev_b32 v20, 3, v2')
e('s_nop 4')
for t in range(9):
    for r in range(4): e(f'v_add_f32 v{Y(3,t)+r}, v{Y(3,t)+r}, v{MD(t)+r}')
def gate(a, tmp, dst, sp):
    r = tmp
    e(f'v_mul_f32 v{r}, s40, v{a}')
    e(f'v_mul_f32 v{r+1}, s40, v{a+1}')
    e(f'v_mul_f32 v{r+2}, s41, v{a+2}')
    e(f'v_mul_f32 v{r+3}, s41, v{a+3}')
    e(f'v_min_f32 v{r}, v{r}, v19')
    e(f'v_min_f32 v{r+1}, v{r+1}, v19')
    for m in range(4): e(f'v_exp_f32 v{r+m}, v{r+m}')
    if opt['smallfix']:
        e(f'v_cmp_gt_f32 s[{sp}:{sp+1}], s42, abs(v{a})')
        e(f'v_cmp_gt_f32 s[{sp+2}:{sp+3}], s42, abs(v{a+1})')
    e(f'v_add_f32 v{a+2}, 1.0, v{r}')
    e(f'v_add_f32 v{a+3}, 1.0, v{r+1}')
    e(f'v_fma_f32 v{r+2}, v{a+2}, v{r+2}, v{a+2}')
    e(f'v_fma_f32 v{r+3}, v{a+3}, v{r+3}, v{a+3}')
    e(f'v_rcp_f32 v{r+2}, v{r+2}')
    e(f'v_rcp_f32 v{r+3}, v{r+3}')
    e(f'v_sub_f32 v{r}, 1.0, v{r}')
    e(f'v_sub_f32 v{r+1}, 1.0, v{r+1}')
    if opt['smallfix']:
        e(f'v_add_f32 v{a}, v{a}, v{a}')
        e(f'v_add_f32 v{a+1}, v{a+1}, v{a+1}')
        e(f'v_cndmask_b32 v{r}, v{r}, v{a}, s[{sp}:{sp+1}]')
        e(f'v_cndmask_b32 v{r+1}, v{r+1}, v{a+1}, s[{sp+2}:{sp+3}]')
    e(f'v_mul_f32 v{r}, v{r}, v{r+2}')
    e(f'v_mul_f32 v{r+1}, v{r+1}, v{r+3}')
    e(f'v_cvt_pk_bf16_f32 v{dst}, v{r}, v{r+1}')
for t in range(9):
    for ih in range(2):
        zd = M(t) + 2*ih
        for ii in range(2):
            gate(Y(2*ih+ii, t), 24 + 4*ii, zd+ii, 48)
        e(f'buffer_store_dwordx2 v[{zd}:{zd+1}], v20, s[20:23], s43 offen')
        e('s_add_u32 s43, s43, 9216')
if opt['stamps']:
    stamp()
    e('s_waitcnt vmcnt(0)')
    stamp()
    e('s_waitcnt lgkmcnt(0)')
    e('s_cmp_lg_u32 s24, 0')
    e('s_cbranch_scc1 L_end')
    e('s_mov_b32 s22, 0x10000000')
    e('s_lshl_b32 s33, s2, 7')
    e(f's_add_u32 s33, s33, {STAMP_OFF}')
    e('v_mov_b32 v1, s33')
    for i in range(8):
        for k in range(4):
            e(f'v_mov_b32 v{4+k}, ' + (f's{64+4*i+k}' if i < nstamp[0] else '0'))
        e(f'buffer_store_dwordx4 v[4:7], v1, s[20:23], 0 offen offset:{16*i}')
        e('s_nop 1')
lab('L_end')
e('s_endpgm')

kernel_begin('post_kernel')
e('s_cmp_ge_u32 s2, 252')
e('s_cbranch_scc1 Lq_end')
e('s_load_dwordx2 s[6:7], s[0:1], 24')
e('s_load_dwordx2 s[8:9], s[0:1], 40')
e('v_lshrrev_b32 v1, 6, v0')
e('v_and_b32 v2, 63, v0')
e('v_readfirstlane_b32 s24, v1')
c('same xcd-aware unit map as the main kernel; half-unit hu = unit*4 + wave = ((g*2+rh)*9+tau)*2+ih')
e('s_and_b32 s25, s2, 7')
e('s_lshr_b32 s26, s2, 3')
e('s_mul_i32 s27, s25, 31')
e('s_min_u32 s28, s25, 4')
e('s_add_u32 s27, s27, s28')
e('s_add_u32 s27, s27, s26')
e('s_lshl_b32 s27, s27, 2')
e('s_add_u32 s27, s27, s24')
e('s_and_b32 s28, s27, 1')
e('s_lshr_b32 s29, s27, 1')
e('s_mul_i32 s30, s29, 7282')
e('s_lshr_b32 s30, s30, 16')
e('s_mul_i32 s31, s30, 9')
e('s_sub_u32 s31, s29, s31')
e('s_mul_i32 s32, s30, 4682')
e('s_lshr_b32 s32, s32, 16')
e('s_mul_i32 s33, s32, 14')
e('s_sub_u32 s33, s30, s33')
e('v_lshlrev_b32 v3, 4, v2')
e('v_add_u32 v13, 4096, v3')
e('v_add_u32 v14, 8192, v3')
e('v_lshlrev_b32 v4, 3, v2')
e('v_add_u32 v5, 4096, v4')
e('v_add_u32 v6, 8192, v4')
e('s_waitcnt lgkmcnt(0)')
srd(16, 8, 9, WS_USED)
c('w_o frags -> LDS: wave w copies KB [12w, 12w+12) (clipped at 45 by LDS size / harmless)')
e('s_mul_i32 s34, s24, 12288')
e(f's_add_u32 s35, s34, {WO_OFF}')
e('s_cmp_eq_u32 s24, 3')
e('s_cselect_b32 s40, 1, 0')
for k in range(12):
    if k == 9:
        e('s_cmp_eq_u32 s40, 1')
        e('s_cbranch_scc1 Lq_skip')
    if k % 4 == 0:
        e(f's_add_u32 m0, s34, {(k//4)*4096}')
        e('s_nop 0')
    e(f'buffer_load_dwordx4 v{(3,13,14)[k//4]}, s[16:19], s35 offen offset:{(k%4)*1024} lds')
lab('Lq_skip')
c('z loads: 18 x dwordx2')
e('s_mul_i32 s36, s27, 9216')
e(f's_add_u32 s36, s36, {Z_OFF}')
for J in range(18):
    e(f'buffer_load_dwordx2 v[{16+2*J}:{17+2*J}], v{4+J//8}, s[16:19], s36 offen offset:{(J%8)*512}')
c('out SRD: batch base')
e('s_lshr_b32 s37, s32, 1')
e('s_and_b32 s38, s32, 1')
e('s_mul_i32 s37, s37, 4608000')
e('s_add_u32 s6, s6, s37'); e('s_addc_u32 s7, s7, 0')
srd(20, 6, 7, 4608000)
c("row: k = 144*(gg*2+rh) + 9*jrow + tau ; t = 8k + 2*(3-i'') + p ; D row jrow = 4*(lane>>4)+r")
e('s_mul_i32 s39, s33, 144')
e('s_add_u32 s39, s39, s31')
e('s_lshl_b32 s39, s39, 3')
e('s_add_u32 s39, s39, s38')
e('s_add_u32 s39, s39, 4')
e('s_lshl_b32 s41, s28, 2')
e('s_sub_u32 s39, s39, s41')
e('s_mul_i32 s39, s39, 288')
e('v_lshrrev_b32 v7, 4, v2')
e(f'v_mul_u32_u24 v7, {4*72*288}, v7')
e('v_add_u32 v7, s39, v7')
e('v_and_b32 v8, 15, v2')
e('v_lshl_add_u32 v9, v8, 1, v7')
e('v_lshl_add_u32 v8, v8, 4, v7')
e('s_waitcnt vmcnt(0)')
e('s_barrier')
for ii in range(2):
    for J in range(18): e(f'v_mov_b32 v{56+20*ii+J}, v{16+2*J+ii}')
    e(f'v_mov_b32 v{56+20*ii+18}, 0'); e(f'v_mov_b32 v{56+20*ii+19}, 0')
def bf(f): r = 96 + 4*(f % 10); return f'v[{r}:{r+3}]'
PF = 8
for f in range(PF): e(f'ds_read_b128 {bf(f)}, v3 offset:{f*1024}')
for f in range(45):
    T, ks = divmod(f, 5)
    e(f's_waitcnt lgkmcnt({min(PF-1, 44-f)})')
    for ii in range(2):
        r = 140 + 4*(ii*9+T)
        cin = '0' if ks == 0 else vr(r)
        e(f'v_mfma_f32_16x16x32_bf16 {vr(r)}, v[{56+20*ii+4*ks}:{56+20*ii+4*ks+3}], {bf(f)}, {cin}')
    if f+PF < 45: e(f'ds_read_b128 {bf(f+PF)}, v3 offset:{(f+PF)*1024}')
e('s_nop 7')
e('s_nop 1')
for r in range(4):
    for ii in range(2):
        d = 16 + 6*(r*2+ii)
        A = lambda T: 140 + 4*(ii*9+T) + r
        for h in range(4): e(f'v_cvt_pk_bf16_f32 v{d+h}, v{A(2*h)}, v{A(2*h+1)}')
        e(f'v_cvt_pk_bf16_f32 v{d+4}, v{A(8)}, v{A(8)}')
        off = 576 if ii == 0 else 0
        e(f'buffer_store_dwordx4 v[{d}:{d+3}], v8, s[20:23], 0 offen offset:{off}')
        e(f'buffer_store_short v{d+4}, v9, s[20:23], 0 offen offset:{off+256}')
    if r < 3:
        e(f'v_add_u32 v8, {72*288}, v8')
        e(f'v_add_u32 v9, {72*288}, v9')
lab('Lq_end')
e('s_endpgm')

def kd(n, vg, acc, sg):
    return f"""
.p2align 6
.amdhsa_kernel {n}
  .amdhsa_next_free_vgpr {vg}
  .amdhsa_next_free_sgpr {sg}
  .amdhsa_accum_offset {acc}
  .amdhsa_group_segment_fixed_size 0
  .amdhsa_kernarg_size 48
  .amdhsa_user_sgpr_count 2
  .amdhsa_user_sgpr_kernarg_segment_ptr 1
  .amdhsa_system_sgpr_workgroup_id_x 1
.end_amdhsa_kernel
"""
tail = '\n.section .rodata,"a"' + kd('prep_kernel', 152, 152, 64) + kd(f'{NAME}_kernel', 512, 256, 100) + kd('post_kernel', 216, 216, 48)
open(sys.argv[1], 'w').write(hdr + '\n'.join(out) + '\n' + tail)
```

```python
import sys, struct
import numpy as np
from f44 import matrices, PTS
NAME = 'standalone__autoregressive_conv_wavenet__speech'
opt = dict(stamps=0, LA=24, only=0, smallfix=1, tl=0, nofma=0, nodma=0, nords=0, nobar=0, stf=0, tlpos=0)
for a in sys.argv[2:]:
    k, v = a.split('='); opt[k] = int(v)
out = []
def e(s): out.append('    ' + s)
def lab(s): out.append(s + ':')
def c(s): out.append('    ; ' + s)
def fh(x): return '0x%08x' % struct.unpack('<I', struct.pack('<f', float(x)))[0]
AT, G, BT = matrices()
GS = G; GPAR = 1
STF = {0:'', 1:' nt', 2:' sc1', 3:' sc0 sc1', 4:' sc1 nt'}[opt['stf']]

XROWS = 2032
XS = XROWS*96
U_OFF = 0
U_BYTES = 4*21*XS
WT_OFF = U_BYTES
WT_BYTES = 9*21*24576
WO_OFF = WT_OFF + WT_BYTES
WO_BYTES = 45*1024
Z_OFF = WO_OFF + 48*1024
Z_BYTES = 28*2*9*2*18*512
WS_USED = Z_OFF + Z_BYTES
STAMP_OFF = 268435456 - (1 << 20)
assert U_BYTES % 128 == 0 and WT_OFF % 128 == 0
NWG_PW = 108
NWG_PO = 8
NWG_PX = 2*189
NWG_P = 252
XL = 28672
SLOT = 53248
LDS_MAIN = 3*SLOT
LDS_POST = 45*1024

launches = [f'; @launch kernel=prep_kernel grid=({NWG_P},1,1) block=(704,1,1) lds={XL+38*1024}',
            f'; @launch kernel={NAME}_kernel grid=(252,1,1) block=(256,1,1) lds={LDS_MAIN}',
            f'; @launch kernel=post_kernel grid=(252,1,1) block=(256,1,1) lds={LDS_POST}']
if opt['only']: launches = launches[:opt['only']]
hdr = """; Kernarg layout for this problem (48 bytes, ptrs only, base s[0:1]):
;   offset   0: d_in[0] x  shape=(2, 16000, 144) dtype=bfloat16
;   offset   8: d_in[1] w  shape=(31, 144, 288) dtype=bfloat16
;   offset  16: d_in[2] w_o  shape=(144, 144) dtype=bfloat16
;   offset  24: d_out     shape=(2, 16000, 144) dtype=bfloat16
;   offset  32: d_debug   256 bytes
;   offset  40: d_ws      268435456 bytes workspace
""" + '\n'.join(launches) + """
.amdgcn_target "amdgcn-amd-amdhsa--gfx950"
.text
"""
def srd(d, lo, hi, nbytes):
    e(f's_mov_b32 s{d}, s{lo}')
    e(f's_and_b32 s{d+1}, s{hi}, 0xffff')
    e(f's_mov_b32 s{d+2}, {nbytes}')
    e(f's_mov_b32 s{d+3}, 0x00020000')
def tl_start():
    if opt['tl']: e('s_memrealtime s[96:97]')
def tl_end(kidx, srdn):
    if not opt['tl']: return
    e('s_waitcnt vmcnt(0)')
    if not (opt['tlpos'] and kidx == 0): e('s_memrealtime s[98:99]')
    e('s_mov_b64 exec, -1')
    e(f's_mov_b32 s{srdn+2}, 0x10000000')
    e('v_lshrrev_b32 v1, 6, v0')
    e('s_lshl_b32 s95, s2, 4')
    e('v_add_u32 v1, s95, v1')
    e('v_lshlrev_b32 v1, 4, v1')
    e(f'v_add_u32 v1, {STAMP_OFF + (kidx+1)*(128<<10)}, v1')
    e('s_waitcnt lgkmcnt(0)')
    for k in range(4): e(f'v_mov_b32 v{4+k}, s{96+k}')
    e(f'buffer_store_dwordx4 v[4:7], v1, s[{srdn}:{srdn+3}], 0 offen')
def tl_mid(pos):
    if opt['tl'] and opt['tlpos'] == pos: e('s_memrealtime s[98:99]')
def kernel_begin(n):
    out.append(f'.globl {n}'); out.append('.p2align 8'); out.append(f'.type {n},@function'); lab(n)
def pkfma(d, sc, a, b, nega=False):
    neg = ' neg_lo:[0,1,0] neg_hi:[0,1,0]' if nega else ''
    e(f'v_pk_fma_f32 v[{d}:{d+1}], s[{sc}:{sc+1}], v[{a}:{a+1}], v[{b}:{b+1}]{neg}')
def pkmul(d, sc, a):
    e(f'v_pk_mul_f32 v[{d}:{d+1}], s[{sc}:{sc+1}], v[{a}:{a+1}]')
def pkadd(d, a, b, negb=False):
    neg = ' neg_lo:[0,1] neg_hi:[0,1]' if negb else ''
    e(f'v_pk_add_f32 v[{d}:{d+1}], v[{a}:{a+1}], v[{b}:{b+1}]{neg}')
def sconst2(s, x):
    e(f's_mov_b32 s{s}, {fh(x)}'); e(f's_mov_b32 s{s+1}, {fh(x)}')

kernel_begin('prep_kernel')
e(f's_cmp_ge_u32 s2, {NWG_P}')
e('s_cbranch_scc1 Lp_end')
tl_start()
e('s_load_dwordx4 s[4:7], s[0:1], 0')
e('s_load_dwordx2 s[8:9], s[0:1], 16')
e('s_load_dwordx2 s[10:11], s[0:1], 40')
e('v_lshrrev_b32 v1, 6, v0')
e('v_and_b32 v2, 63, v0')
e('v_readfirstlane_b32 s27, v1')
e('s_mov_b32 s33, 0xffff0000')
e('s_waitcnt lgkmcnt(0)')
srd(20, 10, 11, WS_USED)
e('s_cmp_lt_u32 s27, 2')
e('s_cbranch_scc1 Lp_w')
e('s_sub_u32 s27, s27, 2')
e('s_cmp_ge_u32 s2, 250')
e('s_cbranch_scc1 Lp_zero')
e('s_cmp_ge_u32 s2, 125')
e('s_cselect_b32 s24, 4608000, 0')
e('s_cselect_b32 s25, 125, 0')
e(f's_cselect_b32 s26, {2*21*XS}, 0')
e('s_sub_u32 s3, s2, s25')
e('s_add_u32 s4, s4, s24'); e('s_addc_u32 s5, s5, 0')
srd(12, 4, 5, 4608000)
c('DMA: chunk n = xw + 9*i (i<5, n<38): src = wq*36864 - 1728 + n*1024 + lane*16 ; lds = XL + n*1024')
e('s_mul_i32 s28, s3, 36864')
e('s_sub_u32 s28, s28, 1792')
e('s_lshl_b32 s29, s27, 10')
e('s_add_u32 s28, s28, s29')
e('v_lshlrev_b32 v6, 4, v2')
e('v_add_u32 v6, s28, v6')
for i in range(5):
    if i == 4:
        e('s_cmp_ge_u32 s27, 2')
        e('s_cbranch_scc1 Lp_xl')
    e(f's_add_u32 m0, s29, {XL + i*9216}')
    e('s_nop 0')
    e('buffer_load_dwordx4 v6, s[12:15], 0 offen lds')
    if i < 4: e('v_add_u32 v6, 9216, v6')
lab('Lp_xl')
c('item = xw*64+lane ; pp = item/96 = p*3+phi ; L = item%96 ; kl = L/6 ; piece = L%6')
e('s_lshl_b32 s28, s27, 6')
e('v_add_u32 v3, s28, v2')
e('v_mul_u32_u24 v4, 683, v3')
e('v_lshrrev_b32 v4, 16, v4')
e('v_mul_u32_u24 v5, 96, v4')
e('v_sub_u32 v3, v3, v5')
e('v_mul_u32_u24 v6, 43, v3')
e('v_lshrrev_b32 v6, 8, v6')
e(f'v_mul_u32_u24 v6, {2304-96}, v6')
e('v_lshl_add_u32 v6, v3, 4, v6')
e('v_add_u32 v6, v6, v5')
c('dst: ((stream*7+m)*3+phi)*XS + (wq*16+7)*96 + L*16 ; stream = 2b+p')
e('v_cmp_le_u32 vcc, 3, v4')
e(f'v_mul_u32_u24 v7, {XS}, v4')
e(f'v_mov_b32 v5, {18*XS}')
e('v_lshl_add_u32 v7, v3, 4, v7')
e('v_cndmask_b32 v5, 0, v5, vcc')
e('v_add_u32 v7, v7, v5')
e('s_mul_i32 s31, s3, 1536')
e('s_add_u32 s31, s31, s26')
e('s_add_u32 s31, s31, 768')
sc = 36
cst = {}
for t in range(3):
    a = PTS[2*t]
    q0 = BT[2*t][1]; q1 = BT[2*t][3]
    assert abs(BT[2*t][0] - a*q0) < 1e-12 and abs(BT[2*t][2] - a*q1) < 1e-12 and abs(BT[2*t][4]-a) < 1e-12
    for nm, val in (('q0', q0), ('q1', q1), ('a', a)):
        cst[(t, nm)] = sc; sconst2(sc, val); sc += 2
for nm, idx in (('p0', 0), ('p1', 2), ('p2', 4)):
    cst[nm] = sc; sconst2(sc, BT[6][idx]); sc += 2
tl_mid(3)
e('s_waitcnt vmcnt(0)')
e('s_barrier')
tl_mid(1)
for s in range(7):
    e(f'ds_read_b128 v[{8+4*s}:{11+4*s}], v6 offset:{XL + 64 + (12-2*s)*288}')
e('s_waitcnt lgkmcnt(0)')
for dw in range(4):
    for s in range(7):
        e(f'v_lshlrev_b32 v{40+2*s}, 16, v{8+4*s+dw}')
        e(f'v_and_b32 v{41+2*s}, s33, v{8+4*s+dw}')
    D = lambda s: 40+2*s
    for t in range(3):
        pkfma(54, cst[(t,'q1')], D(2), D(4))
        pkfma(56, cst[(t,'q1')], D(3), D(5))
        pkfma(54, cst[(t,'q0')], D(0), 54)
        pkfma(56, cst[(t,'q0')], D(1), 56)
        pkfma(58, cst[(t,'a')], 54, 56)
        pkfma(60, cst[(t,'a')], 54, 56, nega=True)
        e(f'v_cvt_pk_bf16_f32 v{64+4*(2*t)+dw}, v58, v59')
        e(f'v_cvt_pk_bf16_f32 v{64+4*(2*t+1)+dw}, v60, v61')
    pkfma(54, cst['p2'], D(4), D(6))
    pkfma(54, cst['p1'], D(2), 54)
    pkfma(54, cst['p0'], D(0), 54)
    e(f'v_cvt_pk_bf16_f32 v{64+24+dw}, v54, v55')
tl_mid(2)
for m in range(7):
    e(f'buffer_store_dwordx4 v[{64+4*m}:{67+4*m}], v7, s[20:23], s31 offen{STF}')
    if m < 6: e(f's_add_u32 s31, s31, {3*XS}')
tl_end(0, 20)
e('s_endpgm')
lab('Lp_zero')
c('WGs 250,251: zero the 7 leading rows of the 42 arrays of batch b: item = xw*64+lane (<576) -> arrays a = item/42 + 13*i..')
e('s_sub_u32 s3, s2, 250')
e(f's_mul_i32 s31, s3, {2*21*XS}')
e('s_lshl_b32 s28, s27, 6')
e('v_add_u32 v3, s28, v2')
for k in range(4): e(f'v_mov_b32 v{8+k}, 0')
for i in range(4):
    e('v_mul_u32_u24 v4, 1366, v3')
    e('v_lshrrev_b32 v4, 16, v4')
    e('v_mul_u32_u24 v5, 48, v4')
    e('v_sub_u32 v5, v3, v5')
    e(f'v_mul_u32_u24 v4, {XS}, v4')
    e('v_lshl_add_u32 v4, v5, 4, v4')
    e('v_cmp_gt_u32 vcc, 2016, v3')
    e('v_mov_b32 v5, 0x7f000000')
    e('v_add_u32 v3, 576, v3')
    e('v_cndmask_b32 v4, v5, v4, vcc')
    e('buffer_store_dwordx4 v[8:11], v4, s[20:23], s31 offen')
e('s_barrier')
e('s_endpgm')
lab('Lp_w')
e('s_mul_i32 s3, s27, 252')
e('s_add_u32 s3, s3, s2')
e('s_cmp_ge_u32 s3, 324')
e('s_cbranch_scc1 Lp_wo')
srd(12, 6, 7, 31*144*288*2)
def posdec(P, ko, pos, kk, o, tmp):
    e(f'v_mul_u32_u24 v{ko}, 58255, v{P}')
    e(f'v_lshrrev_b32 v{ko}, 22, v{ko}')
    e(f'v_mul_u32_u24 v{tmp}, 72, v{ko}')
    e(f'v_sub_u32 v{pos}, v{P}, v{tmp}')
    e(f'v_mul_u32_u24 v{kk}, 3641, v{ko}')
    e(f'v_lshrrev_b32 v{kk}, 16, v{kk}')
    e(f'v_mul_u32_u24 v{tmp}, 18, v{kk}')
    e(f'v_sub_u32 v{o}, v{ko}, v{tmp}')
e('s_lshl_b32 s28, s3, 5')
e('v_and_b32 v3, 31, v2')
e('v_add_u32 v4, s28, v3')
posdec(4, 5, 6, 7, 8, 9)
e(f'v_mul_u32_u24 v7, {4*82944}, v7')
e('v_mul_u32_u24 v8, 4608, v8')
e('v_lshrrev_b32 v9, 5, v2')
e('v_mul_u32_u24 v10, 288, v9')
e('v_add3_u32 v7, v7, v8, v10')
e('v_lshl_add_u32 v6, v6, 2, v7')
for r in range(4):
    for ch in range(8):
        e(f'buffer_load_dword v{17+2*(8*r+ch)}, v6, s[12:15], 0 offen offset:{ch*576}')
    if r < 3: e('v_add_u32 v6, 82944, v6')
c('LDS addresses: write v10 = wavebase + i*64 + isg*32 ; read v11 = wavebase + lane*16')
e('s_mul_i32 s29, s27, 14336')
e('v_lshlrev_b32 v10, 6, v3')
e('v_lshl_add_u32 v10, v9, 5, v10')
e('v_add_u32 v10, s29, v10')
e('v_lshlrev_b32 v11, 4, v2')
e('v_add_u32 v11, s29, v11')
for h in range(2):
    c(f'dest address h={h}')
    e('v_lshrrev_b32 v4, 2, v2')
    e(f'v_add3_u32 v4, v4, s28, {16*h}')
    posdec(4, 5, 6, 7, 8, 9)
    e('v_mul_u32_u24 v4, 43, v8')
    e('v_lshrrev_b32 v4, 8, v4')
    e('v_mul_u32_u24 v5, 6, v4')
    e('v_sub_u32 v5, v8, v5')
    e('v_lshrrev_b32 v8, 1, v7')
    e('v_add_u32 v8, 8, v8')
    e('v_and_b32 v9, 1, v7')
    e('v_lshl_add_u32 v9, v9, 1, v5')
    e('v_subrev_u32 v9, 4, v9')
    e('v_cmp_le_u32 vcc, 4, v5')
    e('v_mul_u32_u24 v4, 24576, v4')
    e('v_lshrrev_b32 v14, 3, v6')
    e('v_cndmask_b32 v8, v7, v8, vcc')
    e('v_cndmask_b32 v9, v5, v9, vcc')
    e(f'v_mul_u32_u24 v14, {21*24576}, v14')
    e('v_bfe_u32 v15, v6, 2, 1')
    e('v_mul_u32_u24 v15, 12288, v15')
    e(f'v_add3_u32 v{12+h}, v4, v14, v15')
    e(f'v_lshl_add_u32 v{12+h}, v8, 10, v{12+h}')
    e(f'v_lshl_add_u32 v{12+h}, v9, 8, v{12+h}')
    e('v_and_b32 v4, 3, v6')
    e(f'v_lshl_add_u32 v{12+h}, v4, 6, v{12+h}')
    e('v_and_b32 v4, 3, v2')
    e(f'v_lshl_add_u32 v{12+h}, v4, 4, v{12+h}')
sc = 36; cg_ = {}
for t in range(3):
    for r in range(4):
        assert abs(GS[2*t+1][r] - (1 if r % 2 == GPAR else -1)*GS[2*t][r]) < 1e-12
        cg_[(t, r)] = sc; sconst2(sc, GS[2*t][r]); sc += 2
e('s_mov_b32 s26, 0x07060302')
e(f's_mov_b32 s34, {WT_OFF}')
e('s_barrier')
tl_mid(3)
e('s_waitcnt vmcnt(0)')
tl_mid(1)
for k in range(32):
    e(f'v_lshlrev_b32 v{16+2*k}, 16, v{17+2*k}')
    e(f'v_and_b32 v{17+2*k}, s33, v{17+2*k}')
G_ = lambda r, ch: 16+2*(8*r+ch)
for t in range(3):
    for dw in range(4):
        for c2 in range(2):
            ch = 2*dw+c2
            E, O = 80+4*c2, 82+4*c2
            pkmul(E, cg_[(t,0)], G_(0,ch))
            pkmul(O, cg_[(t,1)], G_(1,ch))
            pkfma(E, cg_[(t,2)], G_(2,ch), E)
            pkfma(O, cg_[(t,3)], G_(3,ch), O)
            pkadd(88+4*c2, O, E)
            if GPAR == 1: pkadd(90+4*c2, O, E, negb=True)
            else: pkadd(90+4*c2, E, O, negb=True)
        for sgn in range(2):
            for n in range(2):
                e(f'v_cvt_pk_bf16_f32 v{96+8*sgn+4*n+dw}, v{88+2*sgn+n}, v{92+2*sgn+n}')
    for sgn in range(2):
        for n in range(2):
            r0 = 96+8*sgn+4*n
            e(f'ds_write_b128 v10, v[{r0}:{r0+3}] offset:{(2*t+sgn)*2048 + n*16}')
    e('s_waitcnt lgkmcnt(0)')
for n in range(2):
    for dw in range(4):
        e(f'v_perm_b32 v{96+4*n+dw}, v{G_(3,2*dw+1)+n}, v{G_(3,2*dw)+n}, s26')
    e(f'ds_write_b128 v10, v[{96+4*n}:{99+4*n}] offset:{6*2048 + n*16}')
tl_mid(2)
e('s_waitcnt lgkmcnt(0)')
for k in range(14):
    e(f'ds_read_b128 v[{16+4*k}:{19+4*k}], v11 offset:{k*1024}')
for k in range(14):
    e(f's_waitcnt lgkmcnt({13-k})')
    e(f'buffer_store_dwordx4 v[{16+4*k}:{19+4*k}], v{12+k%2}, s[20:23], s34 offen{STF}')
    if k % 2 == 1 and k < 13: e(f's_add_u32 s34, s34, {3*24576}')
tl_end(0, 20)
e('s_endpgm')
lab('Lp_wo')
e('s_barrier')
e('s_sub_u32 s3, s3, 324')
e('s_cmp_ge_u32 s3, 45')
e('s_cbranch_scc1 Lp_end')
srd(16, 8, 9, 144*144*2)
e('s_mul_i32 s28, s3, 13108')
e('s_lshr_b32 s28, s28, 16')
e('s_mul_i32 s29, s28, 5')
e('s_sub_u32 s29, s3, s29')
e('v_and_b32 v7, 15, v2')
e('v_lshrrev_b32 v8, 4, v2')
e('s_cmp_eq_u32 s28, 8')
e('s_cselect_b32 s30, 1, 4')
e('s_cselect_b32 s31, 256, 0')
e('s_cselect_b32 s28, 0, s28')
e('s_lshl_b32 s28, s28, 1')
e('s_add_u32 s31, s31, s28')
e(f's_mul_i32 s29, s29, {32*288}')
e('s_add_u32 s31, s31, s29')
e('v_lshlrev_b32 v9, s30, v7')
e('v_mul_u32_u24 v14, 576, v8')
e('v_add3_u32 v14, v14, v9, s31')
for d in range(4):
    e(f'buffer_load_ushort v{16+2*d}, v14, s[16:19], 0 offen')
    e(f'buffer_load_ushort v{17+2*d}, v14, s[16:19], 0 offen offset:288')
    if d < 3: e('v_add_u32 v14, 2304, v14')
e('s_lshl_b32 s3, s3, 10')
e(f's_add_u32 s3, s3, {WO_OFF}')
e('v_lshlrev_b32 v1, 4, v2')
e('s_waitcnt vmcnt(0)')
for d in range(4):
    e(f'v_lshl_or_b32 v{24+d}, v{17+2*d}, 16, v{16+2*d}')
e('buffer_store_dwordx4 v[24:27], v1, s[20:23], s3 offen')
lab('Lp_end')
e('s_endpgm')

kernel_begin(f'{NAME}_kernel')
nstamp = [0]
def stamp():
    if not opt['stamps']: return
    i = nstamp[0]; nstamp[0] += 1
    e(f's_memtime s[{64+4*i}:{65+4*i}]')
    e(f's_memrealtime s[{66+4*i}:{67+4*i}]')
def Y(i, t): return 40 + 4*(i*9+t)
def M(t): return 184 + 4*t
def MD(t): return 220 + 4*t
def vr(r): return f'v[{r}:{r+3}]'
def FR(k): return f'a[{4*k}:{4*k+3}]'
e('s_cmp_ge_u32 s2, 252')
e('s_cbranch_scc1 L_end')
tl_start()
stamp()
e('s_load_dwordx2 s[8:9], s[0:1], 40')
e('v_lshrrev_b32 v1, 6, v0')
e('v_and_b32 v2, 63, v0')
e('v_readfirstlane_b32 s24, v1')
c('unit = base[xcd] + (id>>3)')
e('s_and_b32 s25, s2, 7')
e('s_lshr_b32 s26, s2, 3')
e('s_mul_i32 s27, s25, 31')
e('s_min_u32 s28, s25, 4')
e('s_add_u32 s27, s27, s28')
e('s_add_u32 s27, s27, s26')
e('s_mul_i32 s28, s27, 7282')
e('s_lshr_b32 s28, s28, 16')
e('s_mul_i32 s29, s28, 9')
e('s_sub_u32 s29, s27, s29')
e('s_mul_i32 s30, s28, 9363')
e('s_lshr_b32 s30, s30, 16')
e('s_mul_i32 s31, s30, 7')
e('s_sub_u32 s31, s28, s31')
e('s_lshr_b32 s32, s24, 1')
e('s_and_b32 s33, s24, 1')
e('s_mul_i32 s34, s24, 7168')
e('s_mul_i32 s35, s24, 6144')
e(f's_mul_i32 s36, s30, {21*XS}')
e('s_mul_i32 s37, s31, 27648')
e('s_add_u32 s36, s36, s37')
e('s_add_u32 s36, s36, s34')
e(f's_mul_i32 s37, s29, {21*24576}')
e('s_add_u32 s37, s37, s35')
e(f's_add_u32 s37, s37, {WT_OFF}')
e('v_lshlrev_b32 v3, 4, v2')
e('v_add_u32 v13, 4096, v3')
e('s_waitcnt lgkmcnt(0)')
srd(16, 8, 9, WS_USED)
srd(20, 8, 9, WS_USED)
def dma_ops(slot):
    ops = []
    for k in range(7):
        pre = []
        if k % 4 == 0: pre = [f's_add_u32 m0, s34, {slot*SLOT + (k//4)*4096}']
        ops.append((pre, f'buffer_load_dwordx4 v{3 if k < 4 else 13}, s[16:19], s36 offen offset:{(k%4)*1024} lds', [f's_add_u32 s36, s36, {XS}'] if k == 6 else []))
    for k in range(6):
        pre = []
        if k % 4 == 0: pre = [f's_add_u32 m0, s35, {slot*SLOT + 28672 + (k//4)*4096}']
        ops.append((pre, f'buffer_load_dwordx4 v{3 if k < 4 else 13}, s[16:19], s37 offen offset:{(k%4)*1024} lds', ['s_add_u32 s37, s37, 24576'] if k == 5 else []))
    return ops
for slot in range(3 if opt['nodma'] else 2):
    for pre, op, post in dma_ops(slot):
        for p in pre: e(p); e('s_nop 0')
        e(op)
        for p in post: e(p)
c('LDS read bases')
e('v_and_b32 v14, 15, v2')
e('v_lshrrev_b32 v15, 4, v2')
e('v_mul_u32_u24 v16, 864, v14')
e('s_mul_i32 s38, s32, 13824')
e('v_add_u32 v16, s38, v16')
e('v_lshl_add_u32 v4, v15, 4, v16')
e('v_lshrrev_b32 v17, 1, v15')
e('v_mul_u32_u24 v17, 96, v17')
e('v_sub_u32 v17, v16, v17')
e('v_and_b32 v18, 1, v15')
e('v_lshl_add_u32 v17, v18, 4, v17')
e('v_add_u32 v7, 160, v17')
e('s_mul_i32 s38, s33, 12288')
e('s_add_u32 s38, s38, 28672')
e('v_add_u32 v10, s38, v3')
for s in (1, 2):
    e(f'v_add_u32 v{4+s}, {s*SLOT}, v4')
    e(f'v_add_u32 v{7+s}, {s*SLOT}, v7')
    e(f'v_add_u32 v{10+s}, {s*SLOT}, v10')
for r in range(40, 184): e(f'v_mov_b32 v{r}, 0')
for r in range(220, 256): e(f'v_mov_b32 v{r}, 0')
c('output-transform coefficient table: s[40:43] current (0 for first iter), s44.. = (a,a2,a3) x 6')
for k in range(4): e(f's_mov_b32 s{40+k}, 0')
for m in range(6):
    for i in range(1, 4): e(f's_mov_b32 s{44+3*m+i-1}, {fh(AT[i][m])}')

frags = []
mf = []
for tp in range(-7, 9):
    for kk in range(min(7, 8-tp), max(0, -tp)-1, -1):
        mf.append((tp+kk, ('W', kk), ('X', tp)))
for tp in range(-6, 9):
    for pp in range(3, -1, -1):
        if 0 <= tp+2*pp <= 8: mf.append((tp+2*pp, ('WT', pp), ('XT', tp)))
assert len(mf) == 108
fu = {}
for s, (t, wk, xk) in enumerate(mf):
    for k in (xk, wk):
        if k not in fu: fu[k] = s; frags.append(k)
assert len(frags) == 43
fidx = {k: i for i, k in enumerate(frags)}
LA = opt['LA']; BAR = 108 - LA; ELAST = BAR - 6
iss = [(-LA + (k*(ELAST+LA))//42) for k in range(43)]
for k in range(43): assert iss[k] <= fu[frags[k]] - 8, (k, iss[k], fu[frags[k]])
def rd(k, slot):
    kind, i = frags[k]
    if kind == 'X': return f'ds_read_b128 {FR(k)}, v{4+slot} offset:{(i+8)*96}'
    if kind == 'XT': return f'ds_read_b128 {FR(k)}, v{7+slot} offset:{(i+7)*96}'
    if kind == 'W': return f'ds_read_b128 {FR(k)}, v{10+slot} offset:{i*1024}'
    return f'ds_read_b128 {FR(k)}, v{10+slot} offset:{(8+i)*1024}'
npre = sum(1 for x in iss if x < 0)
first_touch = {}; last_touch = {}
for s, (t, wk, xk) in enumerate(mf):
    first_touch.setdefault(t, s); last_touch[t] = s
e('s_waitcnt vmcnt(13)')
e('s_barrier')
stamp()
for k in range(43 if opt['nords'] else npre):
    e(rd(k, 0))
    if k % 8 == 7: e('s_waitcnt lgkmcnt(0)')
e('s_mov_b32 s39, 7')
out.append('.p2align 6')
lab('L_loop')
fma_list = [(i, t, r) for t in range(9) for i in range(4) for r in range(4)]
for ph in range(3):
    c(f'======== phase {ph}')
    extras = [[] for _ in range(108)]
    rslot = {}
    for k in range(43):
        if iss[k] >= 0: extras[iss[k]].append(('rd', k, ph))
        else: extras[108+iss[k]].append(('rd', k, (ph+1) % 3))
    busy = set(s for s in range(108) if extras[s])
    ops = dma_ops((ph+2) % 3)
    free = [s for s in range(2, BAR-3) if s not in busy]
    for n, (pre, op, post) in enumerate(ops):
        s = free[(n*len(free))//13]
        for p in pre: extras[s-1].append(('txt', p))
        extras[s].append(('txt', op))
        for p in post: extras[s].append(('txt', p))
    issued = npre; covered = 0
    for s, (t, wk, xk) in enumerate(mf):
        if s == BAR:
            e('s_waitcnt vmcnt(13) lgkmcnt(0)')
            if not opt['nobar']: e('s_barrier')
            covered = 43
        need = max(fidx[wk], fidx[xk]) + 1
        if need > covered:
            allow = min(issued - need, 4)
            e(f's_waitcnt lgkmcnt({allow})')
            covered = issued - allow
        cin = '0' if (ph == 0 and first_touch[t] == s) else vr(M(t))
        dst = vr(MD(t)) if (ph == 2 and last_touch[t] == s) else vr(M(t))
        e(f'v_mfma_f32_16x16x32_bf16 {dst}, {FR(fidx[wk])}, {FR(fidx[xk])}, {cin}')
        for x in extras[s]:
            if x[0] == 'rd':
                if not opt['nords']: e(rd(x[1], x[2]))
                if x[2] == ph: issued += 1
            elif not (opt['nodma'] and 'buffer_load' in x[1]): e(x[1])
        bs = ph*108 + s
        if bs >= 8 and (bs - 8) % 2 == 0 and (bs-8)//2 < 144:
            i, tt, r = fma_list[(bs-8)//2]
            if not opt['nofma']: e(f'v_fmac_f32 v{Y(i,tt)+r}, s{40+i}, v{MD(tt)+r}')
        if ph == 0 and s == 100:
            c('last iteration: disable the useless prefetches')
            e('s_cmp_eq_u32 s39, 1')
            e(f's_cselect_b32 s18, 0, {WS_USED}')
        if ph == 2 and s == 85:
            e('s_mov_b32 s40, 1.0')
        if ph == 2 and 86 <= s < 86+9:
            n = s - 86
            e(f's_mov_b32 s{41+2*n}, s{44+2*n}')
            e(f's_mov_b32 s{42+2*n}, s{45+2*n}')
e('s_sub_u32 s39, s39, 1')
e('s_cmp_lg_u32 s39, 0')
e('s_cbranch_scc1 L_loop')
stamp()
c('---- epilogue')
e('s_waitcnt vmcnt(0) lgkmcnt(0)')
e('s_mov_b32 s40, 0xc038aa3b')
e('s_mov_b32 s41, 0xbfb8aa3b')
e('s_mov_b32 s42, 0x39800000')
e('v_mov_b32 v19, 0x41f00000')
c('z address: ((((g*2+rh)*9+tau)*2+ih)*18+J)*512 + lane*8')
e('s_lshl_b32 s43, s28, 1')
e('s_add_u32 s43, s43, s32')
e(f's_mul_i32 s43, s43, {9*2*18*512}')
e('s_lshl_b32 s44, s29, 1')
e('s_add_u32 s44, s44, s33')
e('s_lshl_b32 s44, s44, 9')
e('s_add_u32 s43, s43, s44')
e(f's_add_u32 s43, s43, {Z_OFF}')
e('v_lshlrev_b32 v20, 3, v2')
e('s_nop 4')
for t in range(9):
    for r in range(4): e(f'v_add_f32 v{Y(3,t)+r}, v{Y(3,t)+r}, v{MD(t)+r}')
def gate(a, tmp, dst, sp):
    r = tmp
    e(f'v_mul_f32 v{r}, s40, v{a}')
    e(f'v_mul_f32 v{r+1}, s40, v{a+1}')
    e(f'v_mul_f32 v{r+2}, s41, v{a+2}')
    e(f'v_mul_f32 v{r+3}, s41, v{a+3}')
    e(f'v_min_f32 v{r}, v{r}, v19')
    e(f'v_min_f32 v{r+1}, v{r+1}, v19')
    for m in range(4): e(f'v_exp_f32 v{r+m}, v{r+m}')
    if opt['smallfix']:
        e(f'v_cmp_gt_f32 s[{sp}:{sp+1}], s42, abs(v{a})')
        e(f'v_cmp_gt_f32 s[{sp+2}:{sp+3}], s42, abs(v{a+1})')
    e(f'v_add_f32 v{a+2}, 1.0, v{r}')
    e(f'v_add_f32 v{a+3}, 1.0, v{r+1}')
    e(f'v_fma_f32 v{r+2}, v{a+2}, v{r+2}, v{a+2}')
    e(f'v_fma_f32 v{r+3}, v{a+3}, v{r+3}, v{a+3}')
    e(f'v_rcp_f32 v{r+2}, v{r+2}')
    e(f'v_rcp_f32 v{r+3}, v{r+3}')
    e(f'v_sub_f32 v{r}, 1.0, v{r}')
    e(f'v_sub_f32 v{r+1}, 1.0, v{r+1}')
    if opt['smallfix']:
        e(f'v_add_f32 v{a}, v{a}, v{a}')
        e(f'v_add_f32 v{a+1}, v{a+1}, v{a+1}')
        e(f'v_cndmask_b32 v{r}, v{r}, v{a}, s[{sp}:{sp+1}]')
        e(f'v_cndmask_b32 v{r+1}, v{r+1}, v{a+1}, s[{sp+2}:{sp+3}]')
    e(f'v_mul_f32 v{r}, v{r}, v{r+2}')
    e(f'v_mul_f32 v{r+1}, v{r+1}, v{r+3}')
    e(f'v_cvt_pk_bf16_f32 v{dst}, v{r}, v{r+1}')
for t in range(9):
    for ih in range(2):
        zd = M(t) + 2*ih
        for ii in range(2):
            gate(Y(2*ih+ii, t), 24 + 4*ii, zd+ii, 48)
        e(f'buffer_store_dwordx2 v[{zd}:{zd+1}], v20, s[20:23], s43 offen')
        e('s_add_u32 s43, s43, 9216')
tl_end(1, 20)
if opt['stamps']:
    stamp()
    e('s_waitcnt vmcnt(0)')
    stamp()
    e('s_waitcnt lgkmcnt(0)')
    e('s_cmp_lg_u32 s24, 0')
    e('s_cbranch_scc1 L_end')
    e('s_mov_b32 s22, 0x10000000')
    e('s_lshl_b32 s33, s2, 7')
    e(f's_add_u32 s33, s33, {STAMP_OFF}')
    e('v_mov_b32 v1, s33')
    for i in range(8):
        for k in range(4):
            e(f'v_mov_b32 v{4+k}, ' + (f's{64+4*i+k}' if i < nstamp[0] else '0'))
        e(f'buffer_store_dwordx4 v[4:7], v1, s[20:23], 0 offen offset:{16*i}')
        e('s_nop 1')
lab('L_end')
e('s_endpgm')

kernel_begin('post_kernel')
e('s_cmp_ge_u32 s2, 252')
e('s_cbranch_scc1 Lq_end')
tl_start()
e('s_load_dwordx2 s[6:7], s[0:1], 24')
e('s_load_dwordx2 s[8:9], s[0:1], 40')
e('v_lshrrev_b32 v1, 6, v0')
e('v_and_b32 v2, 63, v0')
e('v_readfirstlane_b32 s24, v1')
c('same xcd-aware unit map as the main kernel; half-unit hu = unit*4 + wave = ((g*2+rh)*9+tau)*2+ih')
e('s_and_b32 s25, s2, 7')
e('s_lshr_b32 s26, s2, 3')
e('s_mul_i32 s27, s25, 31')
e('s_min_u32 s28, s25, 4')
e('s_add_u32 s27, s27, s28')
e('s_add_u32 s27, s27, s26')
e('s_lshl_b32 s27, s27, 2')
e('s_add_u32 s27, s27, s24')
e('s_and_b32 s28, s27, 1')
e('s_lshr_b32 s29, s27, 1')
e('s_mul_i32 s30, s29, 7282')
e('s_lshr_b32 s30, s30, 16')
e('s_mul_i32 s31, s30, 9')
e('s_sub_u32 s31, s29, s31')
e('s_mul_i32 s32, s30, 4682')
e('s_lshr_b32 s32, s32, 16')
e('s_mul_i32 s33, s32, 14')
e('s_sub_u32 s33, s30, s33')
e('v_lshlrev_b32 v3, 4, v2')
e('v_add_u32 v13, 4096, v3')
e('v_add_u32 v14, 8192, v3')
e('v_lshlrev_b32 v4, 3, v2')
e('v_add_u32 v5, 4096, v4')
e('v_add_u32 v6, 8192, v4')
e('s_waitcnt lgkmcnt(0)')
srd(16, 8, 9, WS_USED)
c('w_o frags -> LDS: wave w copies KB [12w, 12w+12) (clipped at 45 by LDS size / harmless)')
e('s_mul_i32 s34, s24, 12288')
e(f's_add_u32 s35, s34, {WO_OFF}')
e('s_cmp_eq_u32 s24, 3')
e('s_cselect_b32 s40, 1, 0')
for k in range(12):
    if k == 9:
        e('s_cmp_eq_u32 s40, 1')
        e('s_cbranch_scc1 Lq_skip')
    if k % 4 == 0:
        e(f's_add_u32 m0, s34, {(k//4)*4096}')
        e('s_nop 0')
    e(f'buffer_load_dwordx4 v{(3,13,14)[k//4]}, s[16:19], s35 offen offset:{(k%4)*1024} lds')
lab('Lq_skip')
c('z loads: 18 x dwordx2')
e('s_mul_i32 s36, s27, 9216')
e(f's_add_u32 s36, s36, {Z_OFF}')
for J in range(18):
    e(f'buffer_load_dwordx2 v[{16+2*J}:{17+2*J}], v{4+J//8}, s[16:19], s36 offen offset:{(J%8)*512}')
c('out SRD: batch base')
e('s_lshr_b32 s37, s32, 1')
e('s_and_b32 s38, s32, 1')
e('s_mul_i32 s37, s37, 4608000')
e('s_add_u32 s6, s6, s37'); e('s_addc_u32 s7, s7, 0')
srd(20, 6, 7, 4608000)
c("row: k = 144*(gg*2+rh) + 9*jrow + tau ; t = 8k + 2*(3-i'') + p ; D row jrow = 4*(lane>>4)+r")
e('s_mul_i32 s39, s33, 144')
e('s_add_u32 s39, s39, s31')
e('s_lshl_b32 s39, s39, 3')
e('s_add_u32 s39, s39, s38')
e('s_add_u32 s39, s39, 4')
e('s_lshl_b32 s41, s28, 2')
e('s_sub_u32 s39, s39, s41')
e('s_mul_i32 s39, s39, 288')
e('v_lshrrev_b32 v7, 4, v2')
e(f'v_mul_u32_u24 v7, {4*72*288}, v7')
e('v_add_u32 v7, s39, v7')
e('v_and_b32 v8, 15, v2')
e('v_lshl_add_u32 v9, v8, 1, v7')
e('v_lshl_add_u32 v8, v8, 4, v7')
e('s_waitcnt vmcnt(0)')
e('s_barrier')
for ii in range(2):
    for J in range(18): e(f'v_mov_b32 v{56+20*ii+J}, v{16+2*J+ii}')
    e(f'v_mov_b32 v{56+20*ii+18}, 0'); e(f'v_mov_b32 v{56+20*ii+19}, 0')
def bf(f): r = 96 + 4*(f % 10); return f'v[{r}:{r+3}]'
PF = 8
for f in range(PF): e(f'ds_read_b128 {bf(f)}, v3 offset:{f*1024}')
for f in range(45):
    T, ks = divmod(f, 5)
    e(f's_waitcnt lgkmcnt({min(PF-1, 44-f)})')
    for ii in range(2):
        r = 140 + 4*(ii*9+T)
        cin = '0' if ks == 0 else vr(r)
        e(f'v_mfma_f32_16x16x32_bf16 {vr(r)}, v[{56+20*ii+4*ks}:{56+20*ii+4*ks+3}], {bf(f)}, {cin}')
    if f+PF < 45: e(f'ds_read_b128 {bf(f+PF)}, v3 offset:{(f+PF)*1024}')
e('s_nop 7')
e('s_nop 1')
for r in range(4):
    for ii in range(2):
        d = 16 + 6*(r*2+ii)
        A = lambda T: 140 + 4*(ii*9+T) + r
        for h in range(4): e(f'v_cvt_pk_bf16_f32 v{d+h}, v{A(2*h)}, v{A(2*h+1)}')
        e(f'v_cvt_pk_bf16_f32 v{d+4}, v{A(8)}, v{A(8)}')
        off = 576 if ii == 0 else 0
        e(f'buffer_store_dwordx4 v[{d}:{d+3}], v8, s[20:23], 0 offen offset:{off}')
        e(f'buffer_store_short v{d+4}, v9, s[20:23], 0 offen offset:{off+256}')
    if r < 3:
        e(f'v_add_u32 v8, {72*288}, v8')
        e(f'v_add_u32 v9, {72*288}, v9')
tl_end(2, 16)
lab('Lq_end')
e('s_endpgm')

def kd(n, vg, acc, sg):
    return f"""
.p2align 6
.amdhsa_kernel {n}
  .amdhsa_next_free_vgpr {vg}
  .amdhsa_next_free_sgpr {sg}
  .amdhsa_accum_offset {acc}
  .amdhsa_group_segment_fixed_size 0
  .amdhsa_kernarg_size 48
  .amdhsa_user_sgpr_count 2
  .amdhsa_user_sgpr_kernarg_segment_ptr 1
  .amdhsa_system_sgpr_workgroup_id_x 1
.end_amdhsa_kernel
"""
tail = '\n.section .rodata,"a"' + kd('prep_kernel', 112, 112, 100 if opt['tl'] else 64) + kd(f'{NAME}_kernel', 512, 256, 100) + kd('post_kernel', 216, 216, 100 if opt['tl'] else 48)
open(sys.argv[1], 'w').write(hdr + '\n'.join(out) + '\n' + tail)
```

```python
import sys, struct
import numpy as np
from f44 import matrices, PTS
NAME = 'standalone__autoregressive_conv_wavenet__speech'
opt = dict(stamps=0, LA=24, only=0, smallfix=1, tl=0, nofma=0, nodma=0, nords=0, nobar=0, stf=0, tlpos=0, ldf=1, QS=34, prio=1, g0=0, g1=5, g2=7, bst=0, nd0=7, wsp=5, f0=30)
for a in sys.argv[2:]:
    k, v = a.split('='); opt[k] = int(v)
out = []
def e(s): out.append('    ' + s)
def lab(s): out.append(s + ':')
def c(s): out.append('    ; ' + s)
def fh(x): return '0x%08x' % struct.unpack('<I', struct.pack('<f', float(x)))[0]
AT, G, BT = matrices()
GS = G.copy(); GPAR = 0
for m in range(6): GS[m] *= PTS[m]**3
CH = np.zeros((3, 7))
for i in range(3):
    for m in range(6): CH[i][m] = PTS[m]**(i-3)
DCH = CH[:, :6] - CH[:, 1:7]
LOG2E = 1.4426950408889634
LDF = {0:'', 1:' nt', 2:' sc1', 3:' sc0 sc1', 4:' sc1 nt', 5:' sc0 sc1 nt'}[opt['ldf']]
ZF = ' sc1'
STF = {0:'', 1:' nt', 2:' sc1', 3:' sc0 sc1', 4:' sc1 nt'}[opt['stf']]

XROWS = 2032
XS = XROWS*96
U_OFF = 0
U_BYTES = 4*21*XS
WT_OFF = U_BYTES
WT_BYTES = 9*21*24576
WO_OFF = WT_OFF + WT_BYTES
WO_BYTES = 45*1024
Z_OFF = WO_OFF + 48*1024
Z_BYTES = 28*2*9*2*18*512
FLAG_OFF = Z_OFF + Z_BYTES
WS_USED = FLAG_OFF + 4096
STAMP_OFF = 268435456 - (1 << 20)
assert U_BYTES % 128 == 0 and WT_OFF % 128 == 0
NWG_PW = 108
NWG_PO = 8
NWG_PX = 2*189
NWG_P = 252
XL = 28672
SLOT = 53248
LDS_MAIN = 3*SLOT
LDS_POST = 45*1024

launches = [f'; @launch kernel=prep_kernel grid=({NWG_P},1,1) block=(704,1,1) lds={XL+38*1024}',
            f'; @launch kernel={NAME}_kernel grid=(252,1,1) block=(512,1,1) lds={LDS_MAIN}']
if opt['only']: launches = launches[:opt['only']]
hdr = """; Kernarg layout for this problem (48 bytes, ptrs only, base s[0:1]):
;   offset   0: d_in[0] x  shape=(2, 16000, 144) dtype=bfloat16
;   offset   8: d_in[1] w  shape=(31, 144, 288) dtype=bfloat16
;   offset  16: d_in[2] w_o  shape=(144, 144) dtype=bfloat16
;   offset  24: d_out     shape=(2, 16000, 144) dtype=bfloat16
;   offset  32: d_debug   256 bytes
;   offset  40: d_ws      268435456 bytes workspace
""" + '\n'.join(launches) + """
.amdgcn_target "amdgcn-amd-amdhsa--gfx950"
.text
"""
def srd(d, lo, hi, nbytes):
    e(f's_mov_b32 s{d}, s{lo}')
    e(f's_and_b32 s{d+1}, s{hi}, 0xffff')
    e(f's_mov_b32 s{d+2}, {nbytes}')
    e(f's_mov_b32 s{d+3}, 0x00020000')
def tl_start():
    if opt['tl']: e('s_memrealtime s[96:97]')
def tl_end(kidx, srdn):
    if not opt['tl']: return
    e('s_waitcnt vmcnt(0)')
    if not (opt['tlpos'] and kidx == 0): e('s_memrealtime s[98:99]')
    e('s_mov_b64 exec, -1')
    e(f's_mov_b32 s{srdn+2}, 0x10000000')
    e('v_lshrrev_b32 v1, 6, v0')
    e('s_lshl_b32 s95, s2, 4')
    e('v_add_u32 v1, s95, v1')
    e('v_lshlrev_b32 v1, 4, v1')
    e(f'v_add_u32 v1, {STAMP_OFF + (kidx+1)*(128<<10)}, v1')
    e('s_waitcnt lgkmcnt(0)')
    for k in range(4): e(f'v_mov_b32 v{4+k}, s{96+k}')
    e(f'buffer_store_dwordx4 v[4:7], v1, s[{srdn}:{srdn+3}], 0 offen')
def tl_mid(pos):
    if opt['tl'] and opt['tlpos'] == pos: e('s_memrealtime s[98:99]')
def kernel_begin(n):
    out.append(f'.globl {n}'); out.append('.p2align 8'); out.append(f'.type {n},@function'); lab(n)
def pkfma(d, sc, a, b, nega=False):
    neg = ' neg_lo:[0,1,0] neg_hi:[0,1,0]' if nega else ''
    e(f'v_pk_fma_f32 v[{d}:{d+1}], s[{sc}:{sc+1}], v[{a}:{a+1}], v[{b}:{b+1}]{neg}')
def pkmul(d, sc, a):
    e(f'v_pk_mul_f32 v[{d}:{d+1}], s[{sc}:{sc+1}], v[{a}:{a+1}]')
def pkadd(d, a, b, negb=False):
    neg = ' neg_lo:[0,1] neg_hi:[0,1]' if negb else ''
    e(f'v_pk_add_f32 v[{d}:{d+1}], v[{a}:{a+1}], v[{b}:{b+1}]{neg}')
def sconst2(s, x):
    e(f's_mov_b32 s{s}, {fh(x)}'); e(f's_mov_b32 s{s+1}, {fh(x)}')

kernel_begin('prep_kernel')
e(f's_cmp_ge_u32 s2, {NWG_P}')
e('s_cbranch_scc1 Lp_end')
tl_start()
e('s_load_dwordx4 s[4:7], s[0:1], 0')
e('s_load_dwordx2 s[8:9], s[0:1], 16')
e('s_load_dwordx2 s[10:11], s[0:1], 40')
e('v_lshrrev_b32 v1, 6, v0')
e('v_and_b32 v2, 63, v0')
e('v_readfirstlane_b32 s27, v1')
e('s_mov_b32 s33, 0xffff0000')
e('s_waitcnt lgkmcnt(0)')
srd(20, 10, 11, WS_USED)
e('s_cmp_lt_u32 s27, 2')
e('s_cbranch_scc1 Lp_w')
e('s_sub_u32 s27, s27, 2')
e('s_cmp_ge_u32 s2, 250')
e('s_cbranch_scc1 Lp_zero')
e('s_cmp_ge_u32 s2, 125')
e('s_cselect_b32 s24, 4608000, 0')
e('s_cselect_b32 s25, 125, 0')
e(f's_cselect_b32 s26, {2*21*XS}, 0')
e('s_sub_u32 s3, s2, s25')
e('s_add_u32 s4, s4, s24'); e('s_addc_u32 s5, s5, 0')
srd(12, 4, 5, 4608000)
c('DMA: chunk n = xw + 9*i (i<5, n<38): src = wq*36864 - 1728 + n*1024 + lane*16 ; lds = XL + n*1024')
e('s_mul_i32 s28, s3, 36864')
e('s_sub_u32 s28, s28, 1792')
e('s_lshl_b32 s29, s27, 10')
e('s_add_u32 s28, s28, s29')
e('v_lshlrev_b32 v6, 4, v2')
e('v_add_u32 v6, s28, v6')
for i in range(5):
    if i == 4:
        e('s_cmp_ge_u32 s27, 2')
        e('s_cbranch_scc1 Lp_xl')
    e(f's_add_u32 m0, s29, {XL + i*9216}')
    e('s_nop 0')
    e(f'buffer_load_dwordx4 v6, s[12:15], 0 offen{LDF} lds')
    if i < 4: e('v_add_u32 v6, 9216, v6')
lab('Lp_xl')
c('item = xw*64+lane ; pp = item/96 = p*3+phi ; L = item%96 ; kl = L/6 ; piece = L%6')
e('s_lshl_b32 s28, s27, 6')
e('v_add_u32 v3, s28, v2')
e('v_mul_u32_u24 v4, 683, v3')
e('v_lshrrev_b32 v4, 16, v4')
e('v_mul_u32_u24 v5, 96, v4')
e('v_sub_u32 v3, v3, v5')
e('v_mul_u32_u24 v6, 43, v3')
e('v_lshrrev_b32 v6, 8, v6')
e(f'v_mul_u32_u24 v6, {2304-96}, v6')
e('v_lshl_add_u32 v6, v3, 4, v6')
e('v_add_u32 v6, v6, v5')
c('dst: ((stream*7+m)*3+phi)*XS + (wq*16+7)*96 + L*16 ; stream = 2b+p')
e('v_cmp_le_u32 vcc, 3, v4')
e(f'v_mul_u32_u24 v7, {XS}, v4')
e(f'v_mov_b32 v5, {18*XS}')
e('v_lshl_add_u32 v7, v3, 4, v7')
e('v_cndmask_b32 v5, 0, v5, vcc')
e('v_add_u32 v7, v7, v5')
e('s_mul_i32 s31, s3, 1536')
e('s_add_u32 s31, s31, s26')
e('s_add_u32 s31, s31, 768')
sc = 36
cst = {}
for t in range(3):
    a = PTS[2*t]
    q0 = BT[2*t][1]; q1 = BT[2*t][3]
    assert abs(BT[2*t][0] - a*q0) < 1e-12 and abs(BT[2*t][2] - a*q1) < 1e-12 and abs(BT[2*t][4]-a) < 1e-12
    for nm, val in (('q0', q0), ('q1', q1), ('a', a)):
        cst[(t, nm)] = sc; sconst2(sc, val); sc += 2
for nm, idx in (('p0', 0), ('p1', 2), ('p2', 4)):
    cst[nm] = sc; sconst2(sc, BT[6][idx]); sc += 2
tl_mid(3)
e('s_waitcnt vmcnt(0)')
e('s_barrier')
tl_mid(1)
for s in range(7):
    e(f'ds_read_b128 v[{8+4*s}:{11+4*s}], v6 offset:{XL + 64 + (12-2*s)*288}')
e('s_waitcnt lgkmcnt(0)')
for dw in range(4):
    for s in range(7):
        e(f'v_lshlrev_b32 v{40+2*s}, 16, v{8+4*s+dw}')
        e(f'v_and_b32 v{41+2*s}, s33, v{8+4*s+dw}')
    D = lambda s: 40+2*s
    for t in range(3):
        pkfma(54, cst[(t,'q1')], D(2), D(4))
        pkfma(56, cst[(t,'q1')], D(3), D(5))
        pkfma(54, cst[(t,'q0')], D(0), 54)
        pkfma(56, cst[(t,'q0')], D(1), 56)
        pkfma(58, cst[(t,'a')], 54, 56)
        pkfma(60, cst[(t,'a')], 54, 56, nega=True)
        e(f'v_cvt_pk_bf16_f32 v{64+4*(2*t)+dw}, v58, v59')
        e(f'v_cvt_pk_bf16_f32 v{64+4*(2*t+1)+dw}, v60, v61')
    pkfma(54, cst['p2'], D(4), D(6))
    pkfma(54, cst['p1'], D(2), 54)
    pkfma(54, cst['p0'], D(0), 54)
    e(f'v_cvt_pk_bf16_f32 v{64+24+dw}, v54, v55')
tl_mid(2)
for m in range(7):
    e(f'buffer_store_dwordx4 v[{64+4*m}:{67+4*m}], v7, s[20:23], s31 offen{STF}')
    if m < 6: e(f's_add_u32 s31, s31, {3*XS}')
tl_end(0, 20)
e('s_endpgm')
lab('Lp_zero')
c('WGs 250,251: zero the 7 leading rows of the 42 arrays of batch b: item = xw*64+lane (<576) -> arrays a = item/42 + 13*i..')
e('s_sub_u32 s3, s2, 250')
e(f's_mul_i32 s31, s3, {2*21*XS}')
e('s_lshl_b32 s28, s27, 6')
e('v_add_u32 v3, s28, v2')
for k in range(4): e(f'v_mov_b32 v{8+k}, 0')
for i in range(4):
    e('v_mul_u32_u24 v4, 1366, v3')
    e('v_lshrrev_b32 v4, 16, v4')
    e('v_mul_u32_u24 v5, 48, v4')
    e('v_sub_u32 v5, v3, v5')
    e(f'v_mul_u32_u24 v4, {XS}, v4')
    e('v_lshl_add_u32 v4, v5, 4, v4')
    e('v_cmp_gt_u32 vcc, 2016, v3')
    e('v_mov_b32 v5, 0x7f000000')
    e('v_add_u32 v3, 576, v3')
    e('v_cndmask_b32 v4, v5, v4, vcc')
    e('buffer_store_dwordx4 v[8:11], v4, s[20:23], s31 offen')
e('s_lshl_b32 s28, s27, 10')
e(f's_add_u32 s28, s28, {FLAG_OFF}')
e('v_lshlrev_b32 v4, 4, v2')
e('v_add_u32 v4, s28, v4')
e('buffer_store_dwordx4 v[8:11], v4, s[20:23], 0 offen')
e('s_barrier')
e('s_endpgm')
lab('Lp_w')
e('s_mul_i32 s3, s27, 252')
e('s_add_u32 s3, s3, s2')
e('s_cmp_ge_u32 s3, 324')
e('s_cbranch_scc1 Lp_wo')
srd(12, 6, 7, 31*144*288*2)
def posdec(P, ko, pos, kk, o, tmp):
    e(f'v_mul_u32_u24 v{ko}, 58255, v{P}')
    e(f'v_lshrrev_b32 v{ko}, 22, v{ko}')
    e(f'v_mul_u32_u24 v{tmp}, 72, v{ko}')
    e(f'v_sub_u32 v{pos}, v{P}, v{tmp}')
    e(f'v_mul_u32_u24 v{kk}, 3641, v{ko}')
    e(f'v_lshrrev_b32 v{kk}, 16, v{kk}')
    e(f'v_mul_u32_u24 v{tmp}, 18, v{kk}')
    e(f'v_sub_u32 v{o}, v{ko}, v{tmp}')
e('s_lshl_b32 s28, s3, 5')
e('v_and_b32 v3, 31, v2')
e('v_add_u32 v4, s28, v3')
posdec(4, 5, 6, 7, 8, 9)
e(f'v_mul_u32_u24 v7, {4*82944}, v7')
e('v_mul_u32_u24 v8, 4608, v8')
e('v_lshrrev_b32 v9, 5, v2')
e('v_mul_u32_u24 v10, 288, v9')
e('v_add3_u32 v7, v7, v8, v10')
e('v_lshl_add_u32 v6, v6, 2, v7')
for r in range(4):
    for ch in range(8):
        e(f'buffer_load_dword v{17+2*(8*r+ch)}, v6, s[12:15], 0 offen offset:{ch*576}{LDF}')
    if r < 3: e('v_add_u32 v6, 82944, v6')
c('LDS addresses: write v10 = wavebase + i*64 + isg*32 ; read v11 = wavebase + lane*16')
e('s_mul_i32 s29, s27, 14336')
e('v_lshlrev_b32 v10, 6, v3')
e('v_lshl_add_u32 v10, v9, 5, v10')
e('v_add_u32 v10, s29, v10')
e('v_lshlrev_b32 v11, 4, v2')
e('v_add_u32 v11, s29, v11')
for h in range(2):
    c(f'dest address h={h}')
    e('v_lshrrev_b32 v4, 2, v2')
    e(f'v_add3_u32 v4, v4, s28, {16*h}')
    posdec(4, 5, 6, 7, 8, 9)
    e('v_mul_u32_u24 v4, 43, v8')
    e('v_lshrrev_b32 v4, 8, v4')
    e('v_mul_u32_u24 v5, 6, v4')
    e('v_sub_u32 v5, v8, v5')
    e('v_lshrrev_b32 v8, 1, v7')
    e('v_add_u32 v8, 8, v8')
    e('v_and_b32 v9, 1, v7')
    e('v_lshl_add_u32 v9, v9, 1, v5')
    e('v_subrev_u32 v9, 4, v9')
    e('v_cmp_le_u32 vcc, 4, v5')
    e('v_mul_u32_u24 v4, 24576, v4')
    e('v_lshrrev_b32 v14, 3, v6')
    e('v_cndmask_b32 v8, v7, v8, vcc')
    e('v_cndmask_b32 v9, v5, v9, vcc')
    e(f'v_mul_u32_u24 v14, {21*24576}, v14')
    e('v_bfe_u32 v15, v6, 2, 1')
    e('v_mul_u32_u24 v15, 12288, v15')
    e(f'v_add3_u32 v{12+h}, v4, v14, v15')
    e(f'v_lshl_add_u32 v{12+h}, v8, 10, v{12+h}')
    e(f'v_lshl_add_u32 v{12+h}, v9, 8, v{12+h}')
    e('v_and_b32 v4, 3, v6')
    e(f'v_lshl_add_u32 v{12+h}, v4, 6, v{12+h}')
    e('v_and_b32 v4, 3, v2')
    e(f'v_lshl_add_u32 v{12+h}, v4, 4, v{12+h}')
sc = 36; cg_ = {}
for t in range(3):
    for r in range(4):
        assert abs(GS[2*t+1][r] - (1 if r % 2 == GPAR else -1)*GS[2*t][r]) < 1e-12
        cg_[(t, r)] = sc; sconst2(sc, GS[2*t][r]); sc += 2
e(f's_mov_b32 s34, {WT_OFF}')
e('v_cmp_le_u32 vcc, 32, v2')
e(f'v_mov_b32 v14, {fh(-2*LOG2E)}')
e(f'v_mov_b32 v15, {fh(-LOG2E)}')
e('v_cndmask_b32 v14, v14, v15, vcc')
e('v_mov_b32 v15, v14')
e('s_barrier')
tl_mid(3)
e('s_waitcnt vmcnt(0)')
tl_mid(1)
for k in range(32):
    e(f'v_lshlrev_b32 v{16+2*k}, 16, v{17+2*k}')
    e(f'v_and_b32 v{17+2*k}, s33, v{17+2*k}')
for k in range(32):
    e(f'v_pk_mul_f32 v[{16+2*k}:{17+2*k}], v[{16+2*k}:{17+2*k}], v[14:15]')
G_ = lambda r, ch: 16+2*(8*r+ch)
for t in range(3):
    for dw in range(4):
        for c2 in range(2):
            ch = 2*dw+c2
            E, O = 80+4*c2, 82+4*c2
            pkmul(E, cg_[(t,0)], G_(0,ch))
            pkmul(O, cg_[(t,1)], G_(1,ch))
            pkfma(E, cg_[(t,2)], G_(2,ch), E)
            pkfma(O, cg_[(t,3)], G_(3,ch), O)
            pkadd(88+4*c2, O, E)
            if GPAR == 1: pkadd(90+4*c2, O, E, negb=True)
            else: pkadd(90+4*c2, E, O, negb=True)
        for sgn in range(2):
            for n in range(2):
                e(f'v_cvt_pk_bf16_f32 v{96+8*sgn+4*n+dw}, v{88+2*sgn+n}, v{92+2*sgn+n}')
    for sgn in range(2):
        for n in range(2):
            r0 = 96+8*sgn+4*n
            e(f'ds_write_b128 v10, v[{r0}:{r0+3}] offset:{(2*t+sgn)*2048 + n*16}')
    e('s_waitcnt lgkmcnt(0)')
for n in range(2):
    for dw in range(4):
        e(f'v_cvt_pk_bf16_f32 v{96+4*n+dw}, v{G_(3,2*dw)+n}, v{G_(3,2*dw+1)+n}')
    e(f'ds_write_b128 v10, v[{96+4*n}:{99+4*n}] offset:{6*2048 + n*16}')
tl_mid(2)
e('s_waitcnt lgkmcnt(0)')
for k in range(14):
    e(f'ds_read_b128 v[{16+4*k}:{19+4*k}], v11 offset:{k*1024}')
for k in range(14):
    e(f's_waitcnt lgkmcnt({13-k})')
    e(f'buffer_store_dwordx4 v[{16+4*k}:{19+4*k}], v{12+k%2}, s[20:23], s34 offen{STF}')
    if k % 2 == 1 and k < 13: e(f's_add_u32 s34, s34, {3*24576}')
tl_end(0, 20)
e('s_endpgm')
lab('Lp_wo')
e('s_barrier')
e('s_sub_u32 s3, s3, 324')
e('s_cmp_ge_u32 s3, 45')
e('s_cbranch_scc1 Lp_end')
srd(16, 8, 9, 144*144*2)
e('s_mul_i32 s28, s3, 13108')
e('s_lshr_b32 s28, s28, 16')
e('s_mul_i32 s29, s28, 5')
e('s_sub_u32 s29, s3, s29')
e('v_and_b32 v7, 15, v2')
e('v_lshrrev_b32 v8, 4, v2')
e('s_cmp_eq_u32 s28, 8')
e('s_cselect_b32 s30, 1, 4')
e('s_cselect_b32 s31, 256, 0')
e('s_cselect_b32 s28, 0, s28')
e('s_lshl_b32 s28, s28, 1')
e('s_add_u32 s31, s31, s28')
e(f's_mul_i32 s29, s29, {32*288}')
e('s_add_u32 s31, s31, s29')
e('v_lshlrev_b32 v9, s30, v7')
e('v_mul_u32_u24 v14, 576, v8')
e('v_add3_u32 v14, v14, v9, s31')
for d in range(4):
    e(f'buffer_load_ushort v{16+2*d}, v14, s[16:19], 0 offen')
    e(f'buffer_load_ushort v{17+2*d}, v14, s[16:19], 0 offen offset:288')
    if d < 3: e('v_add_u32 v14, 2304, v14')
e('s_lshl_b32 s3, s3, 10')
e(f's_add_u32 s3, s3, {WO_OFF}')
e('v_lshlrev_b32 v1, 4, v2')
e('s_waitcnt vmcnt(0)')
for d in range(4):
    e(f'v_lshl_or_b32 v{24+d}, v{17+2*d}, 16, v{16+2*d}')
e('buffer_store_dwordx4 v[24:27], v1, s[20:23], s3 offen')
lab('Lp_end')
e('s_endpgm')

kernel_begin(f'{NAME}_kernel')
nstamp = [0]
def stamp():
    if not opt['stamps']: return
    i = nstamp[0]; nstamp[0] += 1
    e(f's_memtime s[{64+4*i}:{65+4*i}]')
    e(f's_memrealtime s[{66+4*i}:{67+4*i}]')
def vr(r): return f'v[{r}:{r+3}]'
def M(t): return 12 + 4*t
def MD(t): return 48 + 4*t
def FR(k): return vr(84 + 4*k)
e('s_cmp_ge_u32 s2, 252')
e('s_cbranch_scc1 L_end')
tl_start()
stamp()
e('s_load_dwordx2 s[8:9], s[0:1], 40')
e('s_load_dwordx2 s[6:7], s[0:1], 24')
e('v_lshrrev_b32 v1, 6, v0')
e('v_and_b32 v100, 63, v0')
e('v_readfirstlane_b32 s23, v1')
c('unit = base[xcd] + (id>>3)')
e('s_and_b32 s25, s2, 7')
e('s_lshr_b32 s26, s2, 3')
e('s_mul_i32 s27, s25, 31')
e('s_min_u32 s28, s25, 4')
e('s_add_u32 s27, s27, s28')
e('s_add_u32 s27, s27, s26')
e('s_mul_i32 s28, s27, 7282')
e('s_lshr_b32 s28, s28, 16')
e('s_mul_i32 s29, s28, 9')
e('s_sub_u32 s29, s27, s29')
e('s_and_b32 s24, s23, 3')
e('s_lshr_b32 s32, s24, 1')
e('s_and_b32 s33, s24, 1')
e('s_mul_i32 s34, s24, 7168')
e('s_mul_i32 s35, s24, 6144')
e('v_lshlrev_b32 v101, 4, v100')
c('z soffset s62: (((g*2+rh)*9+gs)*18+J)*1024')
e('s_lshl_b32 s62, s28, 1')
e('s_add_u32 s62, s62, s32')
e(f's_mul_i32 s62, s62, {9*18*1024}')
e('s_lshl_b32 s63, s29, 1')
e('s_add_u32 s63, s63, s33')
e('s_lshl_b32 s63, s63, 10')
e('s_add_u32 s62, s62, s63')
e(f's_add_u32 s62, s62, {Z_OFF}')
e('s_cmp_ge_u32 s23, 4')
e('s_mov_b32 s26, s23')
e('s_cbranch_scc1 L_helper')
if opt['prio']: e(f's_setprio {opt["prio"]}')
e('v_and_b32 v114, 15, v100')
e('v_lshrrev_b32 v115, 4, v100')
e('v_mul_u32_u24 v116, 864, v114')
e('s_mul_i32 s38, s32, 13824')
e('v_add_u32 v116, s38, v116')
e('v_lshl_add_u32 v2, v115, 4, v116')
e('v_lshrrev_b32 v117, 1, v115')
e('v_mul_u32_u24 v117, 96, v117')
e('v_sub_u32 v117, v116, v117')
e('v_and_b32 v118, 1, v115')
e('v_lshl_add_u32 v117, v118, 4, v117')
e('v_add_u32 v5, 160, v117')
e('s_mul_i32 s38, s33, 12288')
e('s_add_u32 s38, s38, 28672')
e('v_add_u32 v8, s38, v101')
for s in (1, 2):
    e(f'v_add_u32 v{2+s}, {s*SLOT}, v2')
    e(f'v_add_u32 v{5+s}, {s*SLOT}, v5')
    e(f'v_add_u32 v{8+s}, {s*SLOT}, v8')
e(f's_add_u32 s38, s34, {2*SLOT}')
e('v_add_u32 v1, s38, v101')
e(f's_add_u32 s38, s35, {2*SLOT+28672}')
e('v_add_u32 v11, s38, v101')
for r in range(48, 84): e(f'v_mov_b32 v{r}, 0')
e('s_waitcnt lgkmcnt(0)')
srd(20, 8, 9, WS_USED)

frags = []; mf = []
for tp in range(-7, 9):
    for kk in range(min(7, 8-tp), max(0, -tp)-1, -1):
        mf.append((tp+kk, ('W', kk), ('X', tp)))
for tp in range(-6, 9):
    for pp in range(3, -1, -1):
        if 0 <= tp+2*pp <= 8: mf.append((tp+2*pp, ('WT', pp), ('XT', tp)))
assert len(mf) == 108
fu = {}
for s, (t, wk, xk) in enumerate(mf):
    for k in (xk, wk):
        if k not in fu: fu[k] = s; frags.append(k)
assert len(frags) == 43
fidx = {k: i for i, k in enumerate(frags)}
LA = opt['LA']; BAR = 108 - LA; ELAST = BAR - 6
iss = [(-LA + (k*(ELAST+LA))//42) for k in range(43)]
for k in range(43): assert iss[k] <= fu[frags[k]] - 8, (k, iss[k], fu[frags[k]])
def rd(k, slot):
    kind, i = frags[k]
    if kind == 'X': return f'ds_read_b128 {FR(k)}, v{2+slot} offset:{(i+8)*96}'
    if kind == 'XT': return f'ds_read_b128 {FR(k)}, v{5+slot} offset:{(i+7)*96}'
    if kind == 'W': return f'ds_read_b128 {FR(k)}, v{8+slot} offset:{i*1024}'
    return f'ds_read_b128 {FR(k)}, v{8+slot} offset:{(8+i)*1024}'
npre = sum(1 for x in iss if x < 0)
first_touch = {}; last_touch = {}
for s, (t, wk, xk) in enumerate(mf):
    first_touch.setdefault(t, s); last_touch[t] = s
def snapw(t):
    return f'ds_write_b128 v1, {vr(MD(t))} offset:{t*1024}' if t < 7 else f'ds_write_b128 v11, {vr(MD(t))} offset:{(t-7)*1024}'
QS = opt['QS']
ext = [[] for _ in range(324)]
for ph in range(3):
    for k in range(43):
        ext[(ph*108 + iss[k]) % 324].append(('rd', k, ph))
used = [len(x) for x in ext]
lastw = 0
for t in range(9):
    pos = max(216 + last_touch[t] + 8, lastw + opt['wsp'])
    while used[pos % 324]: pos += 1
    lastw = pos
    used[pos % 324] += 1
    assert pos >= 216 + BAR and pos < 324 + QS - 2
    ext[pos % 324].append(('wr', t, 0))
e('s_barrier')
stamp()
for k in range(npre): e(rd(k, 0))
e('s_mov_b32 s39, 7')
e('s_waitcnt lgkmcnt(0)')
out.append('.p2align 6')
lab('L_loop')
seq = 0; rseq = {}; covered = -1; wseq = -1
for it in range(2):
    emit = e if it == 1 else (lambda s: None)
    for ph in range(3):
        if it == 1: c(f'======== phase {ph}')
        for s, (t, wk, xk) in enumerate(mf):
            if s == BAR:
                emit('s_waitcnt lgkmcnt(0)')
                emit('s_barrier')
                covered = seq - 1
            if ph == 0 and s == QS:
                if wseq > covered:
                    emit(f's_waitcnt lgkmcnt({min(15, seq-1-wseq)})')
                    covered = max(covered, seq - 1 - min(15, seq-1-wseq))
                emit('s_barrier')
            need = max(rseq.get((ph, fidx[wk]), -1), rseq.get((ph, fidx[xk]), -1))
            if need > covered:
                allow = min(seq - 1 - need, 4)
                emit(f's_waitcnt lgkmcnt({allow})')
                covered = seq - 1 - allow
            cin = vr(MD(t)) if (ph == 0 and first_touch[t] == s) else vr(M(t))
            dst = vr(MD(t)) if (ph == 2 and last_touch[t] == s) else vr(M(t))
            emit(f'v_mfma_f32_16x16x32_bf16 {dst}, {FR(fidx[wk])}, {FR(fidx[xk])}, {cin}')
            for x in ext[ph*108+s]:
                if x[0] == 'rd':
                    emit(rd(x[1], x[2])); rseq[(x[2], x[1])] = seq; seq += 1
                else:
                    emit(snapw(x[1])); wseq = seq; seq += 1
            if ph == 2 and s == 104: emit('s_sub_u32 s39, s39, 1')
            if ph == 2 and s == 105: emit('s_cmp_lg_u32 s39, 0')
e('s_cbranch_scc1 L_loop')
stamp()
c('---- compute-wave epilogue: gate y3 = MD')
e('s_waitcnt lgkmcnt(0)')
def gate_consts():
    sconst2(40, 1.0)
    sconst2(46, -0.6931471805599453)
    e(f's_mov_b32 s42, {fh(2*LOG2E*2**-12)}')
    e('s_mov_b32 s43, 0x41f00000')
def gate(a, r, dst, sp):
    L = []
    L.append(f'v_min_f32 v{r}, s43, v{a}')
    L.append(f'v_min_f32 v{r+1}, s43, v{a+1}')
    L.append(f'v_exp_f32 v{a+2}, v{a+2}')
    L.append(f'v_exp_f32 v{a+3}, v{a+3}')
    L.append(f'v_exp_f32 v{r}, v{r}')
    L.append(f'v_exp_f32 v{r+1}, v{r+1}')
    if opt['smallfix']:
        L.append(f'v_cmp_gt_f32 s[{sp}:{sp+1}], s42, abs(v{a})')
        L.append(f'v_cmp_gt_f32 s[{sp+2}:{sp+3}], s42, abs(v{a+1})')
    L.append(f'v_add_f32 v{r+2}, 1.0, v{r}')
    L.append(f'v_add_f32 v{r+3}, 1.0, v{r+1}')
    if opt['smallfix']:
        L.append(f'v_mul_f32 v{a}, s46, v{a}')
        L.append(f'v_mul_f32 v{a+1}, s46, v{a+1}')
    L.append(f'v_fmac_f32 v{r+2}, v{r+2}, v{a+2}')
    L.append(f'v_fmac_f32 v{r+3}, v{r+3}, v{a+3}')
    L.append(f'v_sub_f32 v{r}, 1.0, v{r}')
    L.append(f'v_sub_f32 v{r+1}, 1.0, v{r+1}')
    L.append(f'v_rcp_f32 v{r+2}, v{r+2}')
    L.append(f'v_rcp_f32 v{r+3}, v{r+3}')
    if opt['smallfix']:
        L.append(f'v_cndmask_b32 v{r}, v{r}, v{a}, s[{sp}:{sp+1}]')
        L.append(f'v_cndmask_b32 v{r+1}, v{r+1}, v{a+1}, s[{sp+2}:{sp+3}]')
    L.append(f'v_mul_f32 v{r}, v{r}, v{r+2}')
    L.append(f'v_mul_f32 v{r+1}, v{r+1}, v{r+3}')
    L.append(f'v_cvt_pk_bf16_f32 v{dst}, v{r}, v{r+1}')
    return L
gate_consts()
e('v_and_b32 v100, 63, v0')
e('v_lshlrev_b32 v101, 4, v100')
e(f's_add_u32 s63, s62, {7*18432}')
for t in range(9):
    for x in gate(MD(t), 104 + 4*(t % 2), 112 + t, 48): e(x)
    if t in (3, 7):
        e(f'buffer_store_dwordx4 v[{112+t-3}:{112+t}], v101, s[20:23], s63 offen{ZF}')
        e('s_add_u32 s63, s63, 18432')
e(f's_add_u32 s63, s62, {6*18432}')
e(f'buffer_store_dword v120, v101, s[20:23], s63 offen offset:12{ZF}')
e('s_branch L_fin')
def hbar():
    if opt['bst']:
        e('s_memtime s[84:85]')
        e('s_barrier')
        e('s_memtime s[86:87]')
        e('s_waitcnt lgkmcnt(0)')
        e('s_mov_b32 m0, s88'); e('s_nop 0'); e('v_writelane_b32 v240, s84, m0')
        e('v_writelane_b32 v241, s86, m0')
        e('s_mov_b32 s89, scc' if False else 's_cselect_b32 s89, 1, 0')
        e('s_add_u32 s88, s88, 1')
        e('s_cmp_lg_u32 s89, 0')
    else: e('s_barrier')
lab('L_helper')
if opt['bst']: e('s_mov_b32 s88, 0')
def Y(i, t): return 40 + 4*(i*9+t)
def SN(t): return 148 + 4*t
e('s_mul_i32 s30, s28, 9363')
e('s_lshr_b32 s30, s30, 16')
e('s_mul_i32 s31, s30, 7')
e('s_sub_u32 s31, s28, s31')
e(f's_mul_i32 s36, s30, {21*XS}')
e('s_mul_i32 s37, s31, 27648')
e('s_add_u32 s36, s36, s37')
e('s_add_u32 s36, s36, s34')
e(f's_mul_i32 s37, s29, {21*24576}')
e('s_add_u32 s37, s37, s35')
e(f's_add_u32 s37, s37, {WT_OFF}')
e('v_mov_b32 v3, v101')
e('v_add_u32 v13, 4096, v101')
e(f's_add_u32 s38, s34, {2*SLOT}')
e('v_add_u32 v4, s38, v101')
e(f's_add_u32 s38, s35, {2*SLOT+28672}')
e('v_add_u32 v5, s38, v101')
e('s_waitcnt lgkmcnt(0)')
srd(16, 8, 9, WS_USED)
srd(20, 8, 9, WS_USED)
def dma_list(slot):
    L = []
    for k in range(7):
        pre = [f's_add_u32 m0, s34, {slot*SLOT + (k//4)*4096}', 's_nop 0']
        L.append(pre + [f'buffer_load_dwordx4 v{3 if k < 4 else 13}, s[16:19], s36 offen offset:{(k%4)*1024} lds'] + ([f's_add_u32 s36, s36, {XS}'] if k == 6 else []))
    for k in range(6):
        pre = [f's_add_u32 m0, s35, {slot*SLOT + 28672 + (k//4)*4096}', 's_nop 0']
        L.append(pre + [f'buffer_load_dwordx4 v{3 if k < 4 else 13}, s[16:19], s37 offen offset:{(k%4)*1024} lds'] + (['s_add_u32 s37, s37, 24576'] if k == 5 else []))
    return L
def mix(dl, vl):
    n = len(dl)
    for i, d in enumerate(dl):
        for x in d: e(x)
        for x in vl[(i*len(vl))//n:((i+1)*len(vl))//n]: e(x)
    if n == 0:
        for x in vl: e(x)
def dma(slot): mix(dma_list(slot), [])
def snapr():
    for t in range(9):
        e(f'ds_read_b128 {vr(SN(t))}, v4 offset:{t*1024}' if t < 7 else f'ds_read_b128 {vr(SN(t))}, v5 offset:{(t-7)*1024}')
    e('s_waitcnt lgkmcnt(0)')
FM = [f'v_fmac_f32 v{Y(i,t)+r}, s{40+i}, v{SN(t)+r}' for t in range(9) for i in range(3) for r in range(4)]
dma(0); dma(1)
for r in range(40, 148): e(f'v_mov_b32 v{r}, 0')
c('coefficient table: s[40:42] current (0 for first iter), s43.. = 3 x 6')
for k in range(3): e(f's_mov_b32 s{40+k}, 0')
for m in range(6):
    for i in range(3): e(f's_mov_b32 s{43+3*m+i}, {fh(DCH[i][m])}')
e('s_mov_b32 s39, 6')
e('s_waitcnt vmcnt(13)')
hbar()
ND0 = opt['nd0']
c('first iteration has no snapshot: zero SN instead of reading it')
for r in range(36): e(f'v_mov_b32 v{148+r}, 0')
hbar()
e('s_branch L_hent')
lab('L_hloop')
hbar()
snapr()
lab('L_hent')
D2 = dma_list(2)
mix(D2[:ND0], [])
e(f's_waitcnt vmcnt({ND0})')
hbar()
mix(D2[ND0:] + dma_list(0), FM[:40])
e('s_waitcnt vmcnt(13)')
hbar()
mix(dma_list(1), FM[40:])
for k in range(18): e(f's_mov_b32 s{40+k}, s{43+k}')
e('s_sub_u32 s39, s39, 1')
e('s_cmp_lg_u32 s39, 0')
e('s_waitcnt vmcnt(13)')
hbar()
e('s_cbranch_scc1 L_hloop')
c('---- last product')
hbar()
snapr()
F0 = opt['f0']
mix(D2[:ND0], FM[:F0])
e(f's_waitcnt vmcnt({ND0})')
hbar()
WD = []
for k in range(12):
    WD.append([f's_add_u32 m0, s61, {(k//4)*4096}', 's_nop 0', f'buffer_load_dwordx4 v3, s[16:19], s60 offen offset:{(k%4)*1024} lds'] + (['s_add_u32 s60, s60, 4096'] if k % 4 == 3 else []))
e('s_mul_i32 s61, s24, 12288')
e(f's_add_u32 s60, s61, {WO_OFF}')
mix(D2[ND0:] + WD, FM[F0:])
gate_consts()
e('s_mov_b32 s63, s62')
nst = [0]
def hgate(n0, n1):
    for n in range(n0, n1):
        t, i = divmod(n, 3)
        for x in gate(Y(i, t), 184 + 4*(n % 2), 200 + n, 48): e(x)
        if n % 4 == 3:
            e(f'buffer_store_dwordx4 v[{200+n-3}:{200+n}], v3, s[20:23], s63 offen{ZF}')
            e('s_add_u32 s63, s63, 18432'); nst[0] += 1
        if n == 26:
            e(f'buffer_store_dwordx3 v[224:226], v3, s[20:23], s63 offen{ZF}'); nst[0] += 1
g1 = opt['g1']; g2 = min(27, g1 + opt['g2'])
hgate(0, g1)
e(f's_waitcnt vmcnt({nst[0]+12})')
hbar()
hgate(g1, g2)
hbar()
hgate(g2, 27)
if opt['bst']:
    e('s_memtime s[84:85]')
    e('s_waitcnt lgkmcnt(0)')
    e('s_mov_b32 m0, s88'); e('s_nop 0'); e('v_writelane_b32 v240, s84, m0')
    e('v_writelane_b32 v241, s84, m0')
    e('s_cmp_lg_u32 s26, 4')
    e('s_cbranch_scc1 L_fin')
    e('s_mov_b32 s22, 0x10000000')
    e('s_lshl_b32 s33, s2, 9')
    e(f's_add_u32 s33, s33, {STAMP_OFF + (128<<10)*4}')
    e('v_lshrrev_b32 v1, 1, v3')
    e('buffer_store_dwordx2 v[240:241], v1, s[20:23], s33 offen')
lab('L_fin')
e('s_setprio 0')
stamp()
e('v_and_b32 v2, 63, v0')
e('v_lshlrev_b32 v3, 4, v2')
c('tile decode (scalar) while stores drain')
e('s_lshl_b32 s40, s27, 1')
e('s_lshr_b32 s41, s26, 2')
e('s_add_u32 s40, s40, s41')
e('s_mul_i32 s30, s40, 7282')
e('s_lshr_b32 s30, s30, 16')
e('s_mul_i32 s31, s30, 9')
e('s_sub_u32 s31, s40, s31')
e('s_mul_i32 s32, s30, 4682')
e('s_lshr_b32 s32, s32, 16')
e('s_mul_i32 s33, s32, 14')
e('s_sub_u32 s33, s30, s33')
e('s_lshr_b32 s37, s32, 1')
e('s_and_b32 s38, s32, 1')
e('s_mul_i32 s37, s37, 4608000')
e('s_add_u32 s6, s6, s37'); e('s_addc_u32 s7, s7, 0')
srd(16, 6, 7, 4608000)
e('s_mul_i32 s39, s33, 1152')
e('s_add_u32 s39, s39, s38')
e('s_add_u32 s39, s39, 6')
e('s_lshl_b32 s45, s31, 2')
e('s_add_u32 s45, s45, s24')
e('s_mul_i32 s42, s45, 171')
e('s_lshr_b32 s42, s42, 9')
e('s_mul_i32 s43, s42, 3')
e('s_sub_u32 s43, s45, s43')
e('s_sub_u32 s44, s45, 28')
e('s_cmp_ge_u32 s45, 27')
e('s_cselect_b32 s42, s44, s42')
e('s_cselect_b32 s43, 3, s43')
e('s_cmp_eq_u32 s45, 27')
e('s_cselect_b32 s42, 8, s42')
e('s_lshl_b32 s42, s42, 3')
e('s_lshl_b32 s43, s43, 1')
e('s_add_u32 s42, s42, s39')
e('s_sub_u32 s42, s42, s43')
e('s_mul_i32 s45, s42, 288')
e('v_lshrrev_b32 v7, 4, v2')
e(f'v_mul_u32_u24 v7, {4*72*288}, v7')
e('v_add_u32 v7, s45, v7')
e('v_and_b32 v8, 15, v2')
e('v_lshl_add_u32 v11, v8, 1, v7')
e('v_lshl_add_u32 v10, v8, 4, v7')
c('z source soffset s46 = Z_OFF + unit*36864 + wave*1024 ; LDS A address v4')
e('s_mul_i32 s46, s27, 36864')
e('s_lshl_b32 s47, s26, 10')
e('s_add_u32 s46, s46, s47')
e(f's_add_u32 s46, s46, {Z_OFF}')
e('s_mul_i32 s48, s41, 18432')
e('s_lshl_b32 s49, s24, 2')
e('s_add_u32 s48, s48, s49')
e(f's_add_u32 s48, s48, {SLOT}')
e('v_add_u32 v4, s48, v3')
e('v_mov_b32 v34, 0')
e('v_mov_b32 v35, 0')
e('s_waitcnt vmcnt(0)')
e('s_barrier')
e('s_cmp_lg_u32 s26, 4')
e('s_cbranch_scc1 L_e2')
e('s_lshl_b32 s50, s28, 7')
e(f's_add_u32 s50, s50, {FLAG_OFF}')
e('s_lshl_b32 s51, s29, 2')
e('v_mov_b32 v5, s51')
e('v_mov_b32 v6, 1')
e('s_mov_b64 exec, 1')
e('buffer_store_dword v6, v5, s[20:23], s50 offen sc1')
e('s_mov_b64 exec, -1')
e('v_min_u32 v5, 8, v2')
e('v_lshlrev_b32 v5, 2, v5')
e('s_mov_b32 s51, 0')
lab('L_zpoll')
e('buffer_load_dword v6, v5, s[20:23], s50 offen sc1')
e('s_add_u32 s51, s51, 1')
e('s_cmp_gt_u32 s51, 20000')
e('s_cbranch_scc1 L_e2')
e('s_waitcnt vmcnt(0)')
e('v_cmp_ne_u32 vcc, 1, v6')
e('s_cbranch_vccz L_e2')
e('s_sleep 1')
e('s_branch L_zpoll')
lab('L_e2')
e('s_barrier')
stamp()
for i in range(5):
    if i == 4:
        e('s_cmp_ge_u32 s26, 4')
        e('s_cbranch_scc1 L_e3')
    e(f's_add_u32 m0, s47, {SLOT + i*8192}')
    e('s_nop 0')
    e('buffer_load_dwordx4 v3, s[20:23], s46 offen sc1 lds')
    if i < 4: e('s_add_u32 s46, s46, 8192')
lab('L_e3')
def bf(f): r = 40 + 4*(f % 14); return f'v[{r}:{r+3}]'
PF = 12
for f in range(PF): e(f'ds_read_b128 {bf(f)}, v3 offset:{f*1024}')
e('s_waitcnt vmcnt(0)')
e('s_barrier')
stamp()
e('s_waitcnt lgkmcnt(0)')
for J in range(18):
    e(f'ds_read_b32 v{16+J}, v4 offset:{J*1024}')
    if J == 11: e('s_waitcnt lgkmcnt(4)')
e('s_waitcnt lgkmcnt(0)')
for f in range(45):
    T, ks = divmod(f, 5)
    if f >= PF: e(f's_waitcnt lgkmcnt({min(PF-1, 44-f)})')
    r = 100 + 4*T
    cin = '0' if ks == 0 else vr(r)
    e(f'v_mfma_f32_16x16x32_bf16 {vr(r)}, v[{16+4*ks}:{16+4*ks+3}], {bf(f)}, {cin}')
    if f+PF < 45: e(f'ds_read_b128 {bf(f+PF)}, v3 offset:{(f+PF)*1024}')
e('s_nop 7')
e('s_nop 1')
for r in range(4):
    d = 140 + 6*r
    A = lambda T: 100 + 4*T + r
    for h in range(4): e(f'v_cvt_pk_bf16_f32 v{d+h}, v{A(2*h)}, v{A(2*h+1)}')
    e(f'v_cvt_pk_bf16_f32 v{d+4}, v{A(8)}, v{A(8)}')
    e(f'buffer_store_dwordx4 v[{d}:{d+3}], v10, s[16:19], 0 offen')
    e(f'buffer_store_short v{d+4}, v11, s[16:19], 0 offen offset:256')
    if r < 3:
        e(f'v_add_u32 v10, {72*288}, v10')
        e(f'v_add_u32 v11, {72*288}, v11')
tl_end(1, 20)
if opt['stamps']:
    stamp()
    e('s_waitcnt vmcnt(0)')
    stamp()
    e('s_waitcnt lgkmcnt(0)')
    e('s_cmp_lg_u32 s26, 0')
    e('s_cbranch_scc1 L_end')
    e('s_mov_b32 s22, 0x10000000')
    e('s_lshl_b32 s33, s2, 7')
    e(f's_add_u32 s33, s33, {STAMP_OFF}')
    e('v_mov_b32 v1, s33')
    for i in range(8):
        for k in range(4):
            e(f'v_mov_b32 v{4+k}, ' + (f's{64+4*i+k}' if i < nstamp[0] else '0'))
        e(f'buffer_store_dwordx4 v[4:7], v1, s[20:23], 0 offen offset:{16*i}')
        e('s_nop 1')
lab('L_end')
e('s_endpgm')

def kd(n, vg, acc, sg):
    return f"""
.p2align 6
.amdhsa_kernel {n}
  .amdhsa_next_free_vgpr {vg}
  .amdhsa_next_free_sgpr {sg}
  .amdhsa_accum_offset {acc}
  .amdhsa_group_segment_fixed_size 0
  .amdhsa_kernarg_size 48
  .amdhsa_user_sgpr_count 2
  .amdhsa_user_sgpr_kernarg_segment_ptr 1
  .amdhsa_system_sgpr_workgroup_id_x 1
.end_amdhsa_kernel
"""
tail = '\n.section .rodata,"a"' + kd('prep_kernel', 112, 112, 100 if opt['tl'] else 64) + kd(f'{NAME}_kernel', 256, 256, 100)
open(sys.argv[1], 'w').write(hdr + '\n'.join(out) + '\n' + tail)
```

```python
import sys, struct
import numpy as np
from f44 import matrices, PTS
NAME = 'standalone__autoregressive_conv_wavenet__speech'
opt = dict(stamps=0, LA=24, smallfix=1, ldf=0, QS=34, prio=1, g1=5, g2=7, bst=0, nd0=7, wsp=5, f0=30, slp=2, cpf=1, sw=4, dly=0, pf=0, early=1)
for a in sys.argv[2:]:
    k, v = a.split('='); assert k in opt, k; opt[k] = int(v)
out = []
def e(s): out.append('    ' + s)
def lab(s): out.append(s + ':')
def c(s): out.append('    ; ' + s)
def fh(x): return '0x%08x' % struct.unpack('<I', struct.pack('<f', float(x)))[0]
AT, G, BT = matrices()
GS = G.copy()
for m in range(6): GS[m] *= PTS[m]**3
CH = np.zeros((3, 7))
for i in range(3):
    for m in range(6): CH[i][m] = PTS[m]**(i-3)
DCH = CH[:, :6] - CH[:, 1:7]
LOG2E = 1.4426950408889634
LDF = {0: '', 1: ' nt'}[opt['ldf']]
PF_ = {0: ' sc1', 1: ' sc0 sc1', 2: ' sc1 nt', 3: ' sc0 sc1 nt'}[opt['pf']]
XROWS = 2032
XS = XROWS*96
U_BYTES = 4*21*XS
WT_OFF = U_BYTES
WT_BYTES = 9*21*24576
WO_OFF = WT_OFF + WT_BYTES
Z_OFF = WO_OFF + 48*1024
Z_BYTES = 28*2*9*18*1024
FLAG_OFF = Z_OFF + Z_BYTES
WS_USED = FLAG_OFF + 14336
STAMP_OFF = 268435456 - (1 << 20)
SLOT = 53248
XL = 2*SLOT + 8192
WL = SLOT
LDS_MAIN = 3*SLOT
OOB = 0x7f000000
hdr = f"""; Kernarg layout for this problem (48 bytes, ptrs only, base s[0:1]):
; @launch grid=(252,1,1) block=(512,1,1) lds={LDS_MAIN}
.amdgcn_target "amdgcn-amd-amdhsa--gfx950"
.text
.globl {NAME}_kernel
.p2align 8
.type {NAME}_kernel,@function
{NAME}_kernel:
"""
def srd(d, lo, hi, nbytes):
    e(f's_mov_b32 s{d}, s{lo}')
    e(f's_and_b32 s{d+1}, s{hi}, 0xffff')
    e(f's_mov_b32 s{d+2}, {nbytes}')
    e(f's_mov_b32 s{d+3}, 0x00020000')
def vp(r): return f'v[{r}:{r+1}]'
def vr(r): return f'v[{r}:{r+3}]'
def pkfma(d, sc, a, b, nega=False):
    neg = ' neg_lo:[0,1,0] neg_hi:[0,1,0]' if nega else ''
    e(f'v_pk_fma_f32 {vp(d)}, s[{sc}:{sc+1}], {vp(a)}, {vp(b)}{neg}')
def pkadd(d, a, b, negb=False):
    neg = ' neg_lo:[0,1] neg_hi:[0,1]' if negb else ''
    e(f'v_pk_add_f32 {vp(d)}, {vp(a)}, {vp(b)}{neg}')
def sconst2(s, x):
    e(f's_mov_b32 s{s}, {fh(x)}'); e(f's_mov_b32 s{s+1}, {fh(x)}')
def stamp(i):
    if opt['stamps']: e(f's_memrealtime s[{64+2*i}:{65+2*i}]')
def PK(b, pm):
    n = pm*4 + b
    return 184 + 4*n if n < 18 else 16 + 4*(n-18)
PA = lambda b: 32 + b
PT = 24

def gettag(name):
    lab(f'L_tag{name}')
    e('buffer_load_dwordx2 v[24:25], v37, s[16:19], 0 offen sc1')
    e('s_add_u32 s31, s31, 1')
    e('s_cmp_gt_u32 s31, 30000')
    e(f's_cbranch_scc1 L_tagd{name}')
    e('s_waitcnt vmcnt(0)')
    e('v_readfirstlane_b32 s92, v24')
    e('v_readfirstlane_b32 s93, v25')
    e('s_nop 3')
    e('s_cmp_eq_u32 s92, 0')
    e(f's_cbranch_scc1 L_tag{name}')
    lab(f'L_tagd{name}')
def setflag(pre):
    for x in pre: e(x)
    e('v_mov_b32 v38, s92')
    e('v_mov_b32 v39, s93')
    e('s_mov_b64 exec, 1')
    e('buffer_store_dwordx2 v[38:39], v37, s[20:23], s30 offen sc1')
    e('s_mov_b64 exec, -1')
def poll_issue(off):
    e(f's_mov_b32 s30, {FLAG_OFF+off}')
    e(f'buffer_load_dwordx4 {vr(PT)}, v36, s[20:23], s30 offen{PF_}')
    e(f'buffer_load_dwordx4 {vr(PT+4)}, v36, s[20:23], s30 offen offset:16{PF_}')
def poll_check():
    e(f'v_cmp_ne_u64 vcc, s[92:93], {vp(PT)}')
    for k in range(1, 4):
        e(f'v_cmp_ne_u64 s[88:89], s[92:93], {vp(PT+2*k)}')
        e('s_or_b64 vcc, vcc, s[88:89]')
def poll(off, name):
    e('s_mov_b32 s31, 0')
    lab(f'L_poll{name}')
    poll_issue(off)
    e('s_add_u32 s31, s31, 1')
    e('s_cmp_gt_u32 s31, 20000')
    e(f's_cbranch_scc1 L_pdone{name}')
    e('s_waitcnt vmcnt(0)')
    poll_check()
    e(f's_cbranch_scc0 L_pdone{name}')
    e(f's_sleep {opt["slp"]}')
    e(f's_branch L_poll{name}')
    lab(f'L_pdone{name}')

e('s_cmp_ge_u32 s2, 252')
e('s_cbranch_scc1 L_end')
if opt['stamps']:
    for i in range(24): e(f's_mov_b32 s{64+i}, 0')
stamp(0)
e('s_load_dwordx4 s[4:7], s[0:1], 0')
e('s_load_dwordx2 s[8:9], s[0:1], 16')
e('s_load_dwordx4 s[56:59], s[0:1], 32')
e('v_lshrrev_b32 v1, 6, v0')
e('v_and_b32 v2, 63, v0')
e('v_readfirstlane_b32 s26, v1')
e('s_mov_b32 s33, 0xffff0000')
e('v_mov_b32 v37, 0')
for b in range(4): e(f'v_mov_b32 v{PA(b)}, {OOB}')
for b in range(4): e(f's_mov_b32 s{96+b}, {3*XS}')
e('s_mov_b32 s31, 0')
e('s_mov_b32 s92, 0')
e('s_mov_b32 s93, 0')
c('x-side scalars (all waves): s50 = U soffset of product 0 for this WG, s35 = LDS staging base')
e('s_cmp_ge_u32 s2, 125')
e('s_cselect_b32 s24, 4608000, 0')
e('s_cselect_b32 s25, 125, 0')
e(f's_cselect_b32 s50, {2*21*XS}, 0')
e('s_sub_u32 s3, s2, s25')
e('s_mul_i32 s28, s3, 1536')
e('s_add_u32 s50, s50, s28')
e('s_add_u32 s50, s50, 768')
e(f's_add_u32 s51, s50, {3*XS}')
e(f's_mov_b32 s35, {XL+64}')
if opt['cpf']:
    c('wave 1: pull 4 KB of the kernel code into L2 (part chosen by id>>3)')
    e('s_cmp_lg_u32 s26, 1')
    e('s_cbranch_scc1 L_nopf')
    e('s_getpc_b64 s[40:41]')
    lab('L_pc')
    e('s_lshr_b32 s42, s2, 3')
    e('s_and_b32 s42, s42, 7')
    e('s_lshl_b32 s42, s42, 12')
    e('v_lshlrev_b32 v102, 4, v2')
    e('v_add_u32 v102, s42, v102')
    e('s_mov_b32 s44, s40')
    e('s_and_b32 s45, s41, 0xffff')
    e('s_mov_b32 s46, L_end-L_pc')
    e('s_mov_b32 s47, 0x00020000')
    for k in range(4): e(f'buffer_load_dwordx4 {vr(104+4*k)}, v102, s[44:47], 0 offen offset:{k*1024}')
    lab('L_nopf')
e('s_waitcnt lgkmcnt(0)')
srd(20, 58, 59, WS_USED)
srd(16, 56, 57, 256)
e('s_lshr_b32 s28, s26, 1')
e('s_cmp_eq_u32 s28, 2')
e('s_cbranch_scc1 Lp_w')
def xaddr(su, va, vd):
    e(f's_lshl_b32 s28, s{su}, 6')
    e('v_add_u32 v3, s28, v2')
    e('v_mul_u32_u24 v4, 683, v3')
    e('v_lshrrev_b32 v4, 16, v4')
    e('v_mul_u32_u24 v5, 96, v4')
    e('v_sub_u32 v3, v3, v5')
    e(f'v_mul_u32_u24 v{va}, 43, v3')
    e(f'v_lshrrev_b32 v{va}, 8, v{va}')
    e(f'v_mul_u32_u24 v{va}, {2304-96}, v{va}')
    e(f'v_lshl_add_u32 v{va}, v3, 4, v{va}')
    e(f'v_add3_u32 v{va}, v{va}, v5, s35')
    e('v_cmp_le_u32 vcc, 3, v4')
    e(f'v_mul_u32_u24 v{vd}, {XS}, v4')
    e(f'v_mov_b32 v5, {18*XS}')
    e(f'v_lshl_add_u32 v{vd}, v3, 4, v{vd}')
    e('v_cndmask_b32 v5, 0, v5, vcc')
    e(f'v_add_u32 v{vd}, v{vd}, v5')
def xpair(va, vd):
    for s in range(6): e(f'ds_read_b128 {vr(120+4*s)}, v{va} offset:{(12-2*s)*288}')
    for dw in range(4):
        for s in range(6):
            if dw == 0: e(f's_waitcnt lgkmcnt({5-s})')
            e(f'v_lshlrev_b32 v{148+2*s}, 16, v{120+4*s+dw}')
            e(f'v_and_b32 v{149+2*s}, s33, v{120+4*s+dw}')
        D = lambda s: 148+2*s
        pkfma(162, 46, D(2), D(4))
        pkfma(164, 46, D(3), D(5))
        pkfma(162, 44, D(0), 162)
        pkfma(164, 44, D(1), 164)
        pkfma(166, 48, 162, 164)
        pkfma(168, 48, 162, 164, nega=True)
        e(f'v_cvt_pk_bf16_f32 v{172+dw}, v166, v167')
        e(f'v_cvt_pk_bf16_f32 v{176+dw}, v168, v169')
    e(f'buffer_store_dwordx4 v[172:175], v{vd}, s[20:23], s50 offen sc1')
    e(f'buffer_store_dwordx4 v[176:179], v{vd}, s[20:23], s51 offen sc1')
def xrest(va, b):
    for s in range(7): e(f'ds_read_b128 {vr(120+4*s)}, v{va} offset:{(12-2*s)*288}')
    for dw in range(4):
        for s in range(7):
            if dw == 0: e(f's_waitcnt lgkmcnt({6-s})')
            e(f'v_lshlrev_b32 v{148+2*s}, 16, v{120+4*s+dw}')
            e(f'v_and_b32 v{149+2*s}, s33, v{120+4*s+dw}')
        D = lambda s: 148+2*s
        for t in range(2):
            q0, q1, aa = 36+6*t, 38+6*t, 40+6*t
            pkfma(162, q1, D(2), D(4))
            pkfma(164, q1, D(3), D(5))
            pkfma(162, q0, D(0), 162)
            pkfma(164, q0, D(1), 164)
            pkfma(166, aa, 162, 164)
            pkfma(168, aa, 162, 164, nega=True)
            e(f'v_cvt_pk_bf16_f32 v{PK(b,2*t)+dw}, v166, v167')
            e(f'v_cvt_pk_bf16_f32 v{PK(b,2*t+1)+dw}, v168, v169')
        pkfma(162, 54, D(4), D(6))
        pkfma(162, 52, D(2), 162)
        pkfma(162, 48, D(0), 162)
        e(f'v_cvt_pk_bf16_f32 v{PK(b,4)+dw}, v162, v163')
for t in range(3):
    a = PTS[2*t]; q0 = BT[2*t][1]; q1 = BT[2*t][3]
    assert abs(BT[2*t][0] - a*q0) < 1e-12 and abs(BT[2*t][2] - a*q1) < 1e-12 and abs(BT[2*t][4]-a) < 1e-12
e('s_add_u32 s28, s2, s26')
e('s_cmp_lg_u32 s28, 0')
e('s_cbranch_scc1 Lp_x0')
c('WG 0 wave 0 publishes the launch tag in d_debug')
e('s_memrealtime s[92:93]')
e('s_waitcnt lgkmcnt(0)')
e('s_or_b32 s92, s92, 1')
e('v_mov_b32 v38, s92')
e('v_mov_b32 v39, s93')
e('s_mov_b64 exec, 1')
e('buffer_store_dwordx2 v[38:39], v37, s[16:19], 0 offen sc1')
e('s_mov_b64 exec, -1')
lab('Lp_x0')
e('s_sub_u32 s27, s26, 2')
e('s_cmp_lt_u32 s26, 4')
e('s_cselect_b32 s27, s26, s27')
e('s_cmp_ge_u32 s2, 250')
e('s_cbranch_scc1 Lp_zero')
e('s_add_u32 s4, s4, s24'); e('s_addc_u32 s5, s5, 0')
srd(12, 4, 5, 4608000)
e('s_mul_i32 s28, s3, 36864')
e('s_sub_u32 s28, s28, 1792')
e('s_lshl_b32 s29, s27, 10')
e('s_add_u32 s28, s28, s29')
e('v_lshlrev_b32 v6, 4, v2')
e('v_add_u32 v6, s28, v6')
for i in range(7):
    if i == 6:
        e('s_cmp_ge_u32 s27, 2')
        e('s_cbranch_scc1 Lp_xl')
    e(f's_add_u32 m0, s29, {XL + i*6144}')
    e('s_nop 0')
    e(f'buffer_load_dwordx4 v6, s[12:15], 0 offen{LDF} lds')
    if i < 6: e('v_add_u32 v6, 6144, v6')
lab('Lp_xl')
c('pass-1 units: wave0:8 wave1:4,5 wave2:0,1 wave3:2,3 wave6:6 wave7:7')
e('s_lshl_b32 s28, s26, 2')
e('s_lshr_b32 s30, 0x76002048, s28')
e('s_and_b32 s30, s30, 15')
xaddr(30, 6, 7)
e('s_add_u32 s30, s30, 1')
xaddr(30, 14, 15)
sconst2(44, BT[0][1]); sconst2(46, BT[0][3]); sconst2(48, PTS[0])
e('s_cmp_lg_u32 s26, 0')
e('s_cbranch_scc1 Lp_x1')
gettag('a')
lab('Lp_x1')
e('s_waitcnt vmcnt(0)')
e('s_barrier')
stamp(1)
xpair(6, 7)
e('s_bitcmp1_b32 0x0e, s26')
e('s_cbranch_scc0 Lp_x2')
xpair(14, 15)
lab('Lp_x2')
e('s_cmp_ge_u32 s26, 4')
e('s_cbranch_scc1 Lp_h67')
lab('Lp_s2')
e('s_lshl_b32 s30, s2, 3')
e(f's_add_u32 s30, s30, {FLAG_OFF}')
e('v_mov_b32 v38, s92')
e('v_mov_b32 v39, s93')
e('s_waitcnt vmcnt(0)')
e('s_barrier')
e('s_cmp_lg_u32 s26, 0')
e('s_cbranch_scc1 L_pdone')
e('s_mov_b64 exec, 1')
e('buffer_store_dwordx2 v[38:39], v37, s[20:23], s30 offen sc1')
e('s_mov_b64 exec, -1')
stamp(2)
e('s_branch L_pdone')
def xcoef2():
    for t in (1, 2):
        sconst2(36+6*(t-1), BT[2*t][1]); sconst2(38+6*(t-1), BT[2*t][3]); sconst2(40+6*(t-1), PTS[2*t])
    sconst2(48, BT[6][0]); sconst2(52, BT[6][2]); sconst2(54, BT[6][4])
    e(f's_add_u32 s34, s50, {6*XS}')
lab('Lp_h67')
c('waves 6,7 pass 2: own unit (block 1), then units 2(w-6), 2(w-6)+1 (blocks 2,3)')
xcoef2()
e(f'v_add_u32 v{PA(1)}, s34, v7')
if opt['early']: xrest(6, 1)
e('s_waitcnt vmcnt(0)')
e('s_barrier')
if not opt['early']: xrest(6, 1)
e('s_sub_u32 s30, s26, 6')
e('s_lshl_b32 s30, s30, 1')
lab('Lp_x23')
xaddr(30, 6, 7)
e(f'v_add_u32 v{PA(2)}, s34, v7')
xrest(6, 2)
e('s_add_u32 s30, s30, 1')
lab('Lp_x3')
xaddr(30, 6, 7)
e(f'v_add_u32 v{PA(3)}, s34, v7')
xrest(6, 3)
e('s_branch L_pdone')
lab('Lp_zero')
c('WGs 250,251: zero the 8 leading rows of the 42 arrays of batch b')
e('s_sub_u32 s3, s2, 250')
e(f's_mul_i32 s30, s3, {2*21*XS}')
e('s_lshl_b32 s28, s27, 6')
e('v_add_u32 v3, s28, v2')
for k in range(4): e(f'v_mov_b32 v{16+k}, 0')
for i in range(6):
    e('v_mul_u32_u24 v4, 1366, v3')
    e('v_lshrrev_b32 v4, 16, v4')
    e('v_mul_u32_u24 v5, 48, v4')
    e('v_sub_u32 v5, v3, v5')
    e(f'v_mul_u32_u24 v4, {XS}, v4')
    e('v_lshl_add_u32 v4, v5, 4, v4')
    e('v_cmp_gt_u32 vcc, 2016, v3')
    e(f'v_mov_b32 v5, {OOB}')
    e('v_add_u32 v3, 384, v3')
    e('v_cndmask_b32 v4, v5, v4, vcc')
    e('buffer_store_dwordx4 v[16:19], v4, s[20:23], s30 offen sc1')
e('s_cmp_lg_u32 s26, 0')
e('s_cbranch_scc1 Lp_z1')
gettag('z')
lab('Lp_z1')
e('s_barrier')
e('s_branch Lp_s2')
lab('Lp_w')
e('s_and_b32 s27, s26, 1')
e('s_mul_i32 s3, s27, 252')
e('s_add_u32 s3, s3, s2')
e('s_cmp_ge_u32 s3, 324')
e('s_cbranch_scc1 Lp_wo')
srd(12, 6, 7, 31*144*288*2)
def posdec(P, ko, pos, kk, o, tmp):
    e(f'v_mul_u32_u24 v{ko}, 58255, v{P}')
    e(f'v_lshrrev_b32 v{ko}, 22, v{ko}')
    e(f'v_mul_u32_u24 v{tmp}, 72, v{ko}')
    e(f'v_sub_u32 v{pos}, v{P}, v{tmp}')
    e(f'v_mul_u32_u24 v{kk}, 3641, v{ko}')
    e(f'v_lshrrev_b32 v{kk}, 16, v{kk}')
    e(f'v_mul_u32_u24 v{tmp}, 18, v{kk}')
    e(f'v_sub_u32 v{o}, v{ko}, v{tmp}')
G_ = lambda r, ch: 40+2*(8*r+ch)
e('s_lshl_b32 s28, s3, 5')
e('v_and_b32 v3, 31, v2')
e('v_add_u32 v4, s28, v3')
posdec(4, 5, 6, 7, 8, 9)
e(f'v_mul_u32_u24 v7, {4*82944}, v7')
e('v_mul_u32_u24 v8, 4608, v8')
e('v_lshrrev_b32 v9, 5, v2')
e('v_mul_u32_u24 v10, 288, v9')
e('v_add3_u32 v7, v7, v8, v10')
e('v_lshl_add_u32 v6, v6, 2, v7')
for r in range(4):
    for ch in range(8):
        e(f'buffer_load_dword v{G_(r,ch)+1}, v6, s[12:15], 0 offen offset:{ch*576}{LDF}')
    if r < 3: e('v_add_u32 v6, 82944, v6')
e('s_lshl_b32 s29, s27, 14')
e(f's_add_u32 s29, s29, {WL}')
e('v_lshlrev_b32 v10, 6, v3')
e('v_lshl_add_u32 v10, v9, 5, v10')
e('v_add_u32 v10, s29, v10')
e('v_lshlrev_b32 v11, 4, v2')
e('v_add_u32 v11, s29, v11')
for h in range(2):
    e('v_lshrrev_b32 v4, 2, v2')
    e(f'v_add3_u32 v4, v4, s28, {16*h}')
    posdec(4, 5, 6, 7, 8, 9)
    e('v_mul_u32_u24 v4, 43, v8')
    e('v_lshrrev_b32 v4, 8, v4')
    e('v_mul_u32_u24 v5, 6, v4')
    e('v_sub_u32 v5, v8, v5')
    e('v_lshrrev_b32 v8, 1, v7')
    e('v_add_u32 v8, 8, v8')
    e('v_and_b32 v9, 1, v7')
    e('v_lshl_add_u32 v9, v9, 1, v5')
    e('v_subrev_u32 v9, 4, v9')
    e('v_cmp_le_u32 vcc, 4, v5')
    e('v_mul_u32_u24 v4, 24576, v4')
    e('v_lshrrev_b32 v14, 3, v6')
    e('v_cndmask_b32 v8, v7, v8, vcc')
    e('v_cndmask_b32 v9, v5, v9, vcc')
    e(f'v_mul_u32_u24 v14, {21*24576}, v14')
    e('v_bfe_u32 v15, v6, 2, 1')
    e('v_mul_u32_u24 v15, 12288, v15')
    e(f'v_add3_u32 v{12+h}, v4, v14, v15')
    e(f'v_lshl_add_u32 v{12+h}, v8, 10, v{12+h}')
    e(f'v_lshl_add_u32 v{12+h}, v9, 8, v{12+h}')
    e('v_and_b32 v4, 3, v6')
    e(f'v_lshl_add_u32 v{12+h}, v4, 6, v{12+h}')
    e('v_and_b32 v4, 3, v2')
    e(f'v_lshl_add_u32 v{12+h}, v4, 4, v{12+h}')
def wcoef(t):
    for r in range(4):
        assert abs(GS[2*t+1][r] - (1 if r % 2 == 0 else -1)*GS[2*t][r]) < 1e-12
        e(f'v_mul_f32 v{160+2*r}, {fh(GS[2*t][r])}, v14')
        e(f'v_mov_b32 v{161+2*r}, v{160+2*r}')
e(f's_mov_b32 s34, {WT_OFF}')
e('v_cmp_le_u32 vcc, 32, v2')
e(f'v_mov_b32 v14, {fh(-2*LOG2E)}')
e(f'v_mov_b32 v15, {fh(-LOG2E)}')
e('v_cndmask_b32 v14, v14, v15, vcc')
e('v_mov_b32 v15, v14')
wcoef(0)
e('s_barrier')
e('s_waitcnt vmcnt(0)')
for k in range(32):
    e(f'v_lshlrev_b32 v{40+2*k}, 16, v{41+2*k}')
    e(f'v_and_b32 v{41+2*k}, s33, v{41+2*k}')
e('s_mov_b32 s53, 0')
lab('Lp_wloop')
for dw in range(4):
    for c2 in range(2):
        ch = 2*dw+c2
        E, O = 104+4*c2, 106+4*c2
        e(f'v_pk_mul_f32 {vp(E)}, {vp(160)}, {vp(G_(0,ch))}')
        e(f'v_pk_mul_f32 {vp(O)}, {vp(162)}, {vp(G_(1,ch))}')
        e(f'v_pk_fma_f32 {vp(E)}, {vp(164)}, {vp(G_(2,ch))}, {vp(E)}')
        e(f'v_pk_fma_f32 {vp(O)}, {vp(166)}, {vp(G_(3,ch))}, {vp(O)}')
        pkadd(112+4*c2, O, E)
        pkadd(114+4*c2, E, O, negb=True)
    for sgn in range(2):
        for n in range(2):
            e(f'v_cvt_pk_bf16_f32 v{120+8*sgn+4*n+dw}, v{112+2*sgn+n}, v{116+2*sgn+n}')
for sgn in range(2):
    for n in range(2):
        e(f'ds_write_b128 v10, {vr(120+8*sgn+4*n)} offset:{sgn*2048 + n*16}')
e('s_add_u32 s53, s53, 1')
e('s_waitcnt lgkmcnt(0)')
e('v_add_u32 v10, 4096, v10')
e('s_cmp_eq_u32 s53, 3')
e('s_cbranch_scc1 Lp_w3')
e('s_cmp_eq_u32 s53, 1')
e('s_cbranch_scc1 Lp_w1')
wcoef(2)
if opt['early']:
    e('s_waitcnt vmcnt(0)')
    e('s_barrier')
e('s_branch Lp_wloop')
lab('Lp_w1')
for k in range(4): e(f'ds_read_b128 {vr(136+4*k)}, v11 offset:{k*1024}')
for k in range(4):
    e(f's_waitcnt lgkmcnt({3-k})')
    e(f'buffer_store_dwordx4 {vr(136+4*k)}, v{12+k%2}, s[20:23], s34 offen sc1')
    if k % 2 == 1: e(f's_add_u32 s34, s34, {3*24576}')
wcoef(1)
if not opt['early']:
    e('s_waitcnt vmcnt(0)')
    e('s_barrier')
e('s_branch Lp_wloop')
lab('Lp_w3')
for ch in range(8): e(f'v_pk_mul_f32 {vp(G_(3,ch))}, {vp(G_(3,ch))}, v[14:15]')
for n in range(2):
    for dw in range(4):
        e(f'v_cvt_pk_bf16_f32 v{120+4*n+dw}, v{G_(3,2*dw)+n}, v{G_(3,2*dw+1)+n}')
    e(f'ds_write_b128 v10, {vr(120+4*n)} offset:{n*16}')
e('s_waitcnt lgkmcnt(0)')
for k in range(10):
    e(f'ds_read_b128 {vr(PK(k % 2, k//2))}, v11 offset:{4096 + k*1024}')
e(f'v_add_u32 v{PA(0)}, s34, v12')
e(f'v_add_u32 v{PA(1)}, s34, v13')
e(f's_mov_b32 s96, {3*24576}')
e(f's_mov_b32 s97, {3*24576}')
e('s_waitcnt lgkmcnt(0)')
lab('Lp_wx')
c('then x pass 2: wave 4: unit 8 (block 3) ; wave 5: units 4,5 (blocks 2,3)')
e('s_cmp_ge_u32 s2, 250')
e('s_cbranch_scc1 L_pdone')
xcoef2()
e('s_mov_b32 s30, 8')
e('s_cmp_eq_u32 s26, 4')
e('s_cbranch_scc1 Lp_x3')
e('s_mov_b32 s30, 4')
e('s_branch Lp_x23')
lab('Lp_wo')
e('s_sub_u32 s3, s3, 324')
e('s_cmp_ge_u32 s3, 45')
e('s_cbranch_scc1 Lp_wo2')
srd(12, 8, 9, 144*144*2)
e('s_mul_i32 s28, s3, 13108')
e('s_lshr_b32 s28, s28, 16')
e('s_mul_i32 s29, s28, 5')
e('s_sub_u32 s29, s3, s29')
e('v_and_b32 v7, 15, v2')
e('v_lshrrev_b32 v8, 4, v2')
e('s_cmp_eq_u32 s28, 8')
e('s_cselect_b32 s30, 1, 4')
e('s_cselect_b32 s34, 256, 0')
e('s_cselect_b32 s28, 0, s28')
e('s_lshl_b32 s28, s28, 1')
e('s_add_u32 s34, s34, s28')
e(f's_mul_i32 s29, s29, {32*288}')
e('s_add_u32 s34, s34, s29')
e('v_lshlrev_b32 v9, s30, v7')
e('v_mul_u32_u24 v14, 576, v8')
e('v_add3_u32 v14, v14, v9, s34')
for d in range(4):
    e(f'buffer_load_ushort v{40+2*d}, v14, s[12:15], 0 offen')
    e(f'buffer_load_ushort v{41+2*d}, v14, s[12:15], 0 offen offset:288')
    if d < 3: e('v_add_u32 v14, 2304, v14')
e('s_lshl_b32 s3, s3, 10')
e(f's_add_u32 s3, s3, {WO_OFF}')
e('v_lshlrev_b32 v1, 4, v2')
e('s_barrier')
e('s_waitcnt vmcnt(0)')
for d in range(4):
    e(f'v_lshl_or_b32 v{48+d}, v{41+2*d}, 16, v{40+2*d}')
e('buffer_store_dwordx4 v[48:51], v1, s[20:23], s3 offen sc1')
e('s_waitcnt vmcnt(0)')
e('s_barrier')
e('s_branch Lp_wx')
lab('Lp_wo2')
e('s_barrier')
e('s_barrier')
e('s_branch Lp_wx')

def M(t): return 12 + 4*t
def MD(t): return 48 + 4*t
def FR(k): return vr(84 + 4*k)
lab('L_pdone')
e('v_lshlrev_b32 v101, 4, v2')
e('v_min_u32 v36, 62, v2')
e('v_lshlrev_b32 v36, 5, v36')
c('unit = base[xcd] + (id>>3)')
e('s_and_b32 s25, s2, 7')
e('s_lshr_b32 s24, s2, 3')
e('s_mul_i32 s27, s25, 31')
e('s_min_u32 s28, s25, 4')
e('s_add_u32 s27, s27, s28')
e('s_add_u32 s27, s27, s24')
e('s_mul_i32 s28, s27, 7282')
e('s_lshr_b32 s28, s28, 16')
e('s_mul_i32 s29, s28, 9')
e('s_sub_u32 s29, s27, s29')
e('s_and_b32 s24, s26, 3')
e('s_lshr_b32 s32, s24, 1')
e('s_and_b32 s33, s24, 1')
e('s_mul_i32 s34, s24, 7168')
e('s_mul_i32 s35, s24, 6144')
c('z soffset s62: (((g*2+rh)*9+gs)*18+J)*1024')
e('s_lshl_b32 s62, s28, 1')
e('s_add_u32 s62, s62, s32')
e(f's_mul_i32 s62, s62, {9*18*1024}')
e('s_lshl_b32 s63, s29, 1')
e('s_add_u32 s63, s63, s33')
e('s_lshl_b32 s63, s63, 10')
e('s_add_u32 s62, s62, s63')
e(f's_add_u32 s62, s62, {Z_OFF}')
e('s_mul_i32 s30, s28, 9363')
e('s_lshr_b32 s30, s30, 16')
e('s_mul_i32 s38, s30, 7')
e('s_sub_u32 s38, s28, s38')
e(f's_mul_i32 s36, s30, {21*XS}')
e('s_mul_i32 s37, s38, 27648')
e('s_add_u32 s36, s36, s37')
e('s_add_u32 s36, s36, s34')
e(f's_mul_i32 s37, s29, {21*24576}')
e('s_add_u32 s37, s37, s35')
e(f's_add_u32 s37, s37, {WT_OFF}')
e('s_cmp_ge_u32 s26, 4')
e('s_cbranch_scc1 L_helper')
e('s_cmp_lg_u32 s26, 0')
e('s_cbranch_scc1 L_c13')
c('wave 0: wait for all A flags, then load the whole phase 0 tile')
if opt['dly']: e(f's_sleep {opt["dly"]}')
poll(0, 'A')
stamp(3)
for k in range(52):
    if k % 4 == 0:
        e(f's_mov_b32 m0, {k*1024}')
        e(f's_add_u32 s30, s36, {k*1024}' if k < 28 else f's_add_u32 s30, s37, {(k-28)*1024}')
    e(f'buffer_load_dwordx4 v101, s[20:23], s30 offen offset:{(k%4)*1024} sc1 lds')
lab('L_c13')
e('s_barrier')
if opt['prio']: e(f's_setprio {opt["prio"]}')
e('v_and_b32 v124, 15, v2')
e('v_lshrrev_b32 v125, 4, v2')
e('v_mul_u32_u24 v126, 864, v124')
e('s_mul_i32 s38, s32, 13824')
e('v_add_u32 v126, s38, v126')
e('v_lshl_add_u32 v2, v125, 4, v126')
e('v_lshrrev_b32 v127, 1, v125')
e('v_mul_u32_u24 v127, 96, v127')
e('v_sub_u32 v127, v126, v127')
e('v_and_b32 v128, 1, v125')
e('v_lshl_add_u32 v127, v128, 4, v127')
e('v_add_u32 v5, 160, v127')
e('s_mul_i32 s38, s33, 12288')
e('s_add_u32 s38, s38, 28672')
e('v_add_u32 v8, s38, v101')
for s in (1, 2):
    e(f'v_add_u32 v{2+s}, {s*SLOT}, v2')
    e(f'v_add_u32 v{5+s}, {s*SLOT}, v5')
    e(f'v_add_u32 v{8+s}, {s*SLOT}, v8')
e(f's_add_u32 s38, s34, {2*SLOT}')
e('v_add_u32 v1, s38, v101')
e(f's_add_u32 s38, s35, {2*SLOT+28672}')
e('v_add_u32 v11, s38, v101')
for r in range(48, 84): e(f'v_mov_b32 v{r}, 0')

frags = []; mf = []
for tp in range(-7, 9):
    for kk in range(min(7, 8-tp), max(0, -tp)-1, -1):
        mf.append((tp+kk, ('W', kk), ('X', tp)))
for tp in range(-6, 9):
    for pp in range(3, -1, -1):
        if 0 <= tp+2*pp <= 8: mf.append((tp+2*pp, ('WT', pp), ('XT', tp)))
assert len(mf) == 108
fu = {}
for s, (t, wk, xk) in enumerate(mf):
    for k in (xk, wk):
        if k not in fu: fu[k] = s; frags.append(k)
assert len(frags) == 43
fidx = {k: i for i, k in enumerate(frags)}
LA = opt['LA']; BAR = 108 - LA; ELAST = BAR - 6
iss = [(-LA + (k*(ELAST+LA))//42) for k in range(43)]
for k in range(43): assert iss[k] <= fu[frags[k]] - 8, (k, iss[k], fu[frags[k]])
def rd(k, slot):
    kind, i = frags[k]
    if kind == 'X': return f'ds_read_b128 {FR(k)}, v{2+slot} offset:{(i+8)*96}'
    if kind == 'XT': return f'ds_read_b128 {FR(k)}, v{5+slot} offset:{(i+7)*96}'
    if kind == 'W': return f'ds_read_b128 {FR(k)}, v{8+slot} offset:{i*1024}'
    return f'ds_read_b128 {FR(k)}, v{8+slot} offset:{(8+i)*1024}'
npre = sum(1 for x in iss if x < 0)
first_touch = {}; last_touch = {}
for s, (t, wk, xk) in enumerate(mf):
    first_touch.setdefault(t, s); last_touch[t] = s
def snapw(t):
    return f'ds_write_b128 v1, {vr(MD(t))} offset:{t*1024}' if t < 7 else f'ds_write_b128 v11, {vr(MD(t))} offset:{(t-7)*1024}'
QS = opt['QS']
ext = [[] for _ in range(324)]
for ph in range(3):
    for k in range(43):
        ext[(ph*108 + iss[k]) % 324].append(('rd', k, ph))
used = [len(x) for x in ext]
lastw = 0
for t in range(9):
    pos = max(216 + last_touch[t] + 8, lastw + opt['wsp'])
    while used[pos % 324]: pos += 1
    lastw = pos
    used[pos % 324] += 1
    assert pos >= 216 + BAR and pos < 324 + QS - 2
    ext[pos % 324].append(('wr', t, 0))
e('s_waitcnt vmcnt(0)')
stamp(4)
e('s_barrier')
stamp(5)
for k in range(npre): e(rd(k, 0))
e('s_mov_b32 s39, 7')
e('s_waitcnt lgkmcnt(0)')
out.append('.p2align 6')
lab('L_loop')
seq = 0; rseq = {}; covered = -1; wseq = -1
for it in range(2):
    emit = e if it == 1 else (lambda s: None)
    for ph in range(3):
        if it == 1: c(f'======== phase {ph}')
        for s, (t, wk, xk) in enumerate(mf):
            if s == BAR:
                emit('s_waitcnt lgkmcnt(0)')
                emit('s_barrier')
                covered = seq - 1
            if ph == 0 and s == QS:
                if wseq > covered:
                    emit(f's_waitcnt lgkmcnt({min(15, seq-1-wseq)})')
                    covered = max(covered, seq - 1 - min(15, seq-1-wseq))
                emit('s_barrier')
            need = max(rseq.get((ph, fidx[wk]), -1), rseq.get((ph, fidx[xk]), -1))
            if need > covered:
                allow = min(seq - 1 - need, 4)
                emit(f's_waitcnt lgkmcnt({allow})')
                covered = seq - 1 - allow
            cin = vr(MD(t)) if (ph == 0 and first_touch[t] == s) else vr(M(t))
            dst = vr(MD(t)) if (ph == 2 and last_touch[t] == s) else vr(M(t))
            emit(f'v_mfma_f32_16x16x32_bf16 {dst}, {FR(fidx[wk])}, {FR(fidx[xk])}, {cin}')
            for x in ext[ph*108+s]:
                if x[0] == 'rd':
                    emit(rd(x[1], x[2])); rseq[(x[2], x[1])] = seq; seq += 1
                else:
                    emit(snapw(x[1])); wseq = seq; seq += 1
            if ph == 2 and s == 104: emit('s_sub_u32 s39, s39, 1')
            if ph == 2 and s == 105: emit('s_cmp_lg_u32 s39, 0')
e('s_cbranch_scc1 L_loop')
stamp(6)
c('---- compute-wave epilogue: gate y3 = MD')
e('s_waitcnt lgkmcnt(0)')
def gate_consts():
    e(f's_mov_b32 s46, {fh(-0.6931471805599453)}')
    e(f's_mov_b32 s42, {fh(2*LOG2E*2**-12)}')
    e('s_mov_b32 s43, 0x41f00000')
def gate(a, r, dst, sp):
    L = []
    L.append(f'v_min_f32 v{r}, s43, v{a}')
    L.append(f'v_min_f32 v{r+1}, s43, v{a+1}')
    L.append(f'v_exp_f32 v{a+2}, v{a+2}')
    L.append(f'v_exp_f32 v{a+3}, v{a+3}')
    L.append(f'v_exp_f32 v{r}, v{r}')
    L.append(f'v_exp_f32 v{r+1}, v{r+1}')
    if opt['smallfix']:
        L.append(f'v_cmp_gt_f32 s[{sp}:{sp+1}], s42, abs(v{a})')
        L.append(f'v_cmp_gt_f32 s[{sp+2}:{sp+3}], s42, abs(v{a+1})')
    L.append(f'v_add_f32 v{r+2}, 1.0, v{r}')
    L.append(f'v_add_f32 v{r+3}, 1.0, v{r+1}')
    if opt['smallfix']:
        L.append(f'v_mul_f32 v{a}, s46, v{a}')
        L.append(f'v_mul_f32 v{a+1}, s46, v{a+1}')
    L.append(f'v_fmac_f32 v{r+2}, v{r+2}, v{a+2}')
    L.append(f'v_fmac_f32 v{r+3}, v{r+3}, v{a+3}')
    L.append(f'v_sub_f32 v{r}, 1.0, v{r}')
    L.append(f'v_sub_f32 v{r+1}, 1.0, v{r+1}')
    L.append(f'v_rcp_f32 v{r+2}, v{r+2}')
    L.append(f'v_rcp_f32 v{r+3}, v{r+3}')
    if opt['smallfix']:
        L.append(f'v_cndmask_b32 v{r}, v{r}, v{a}, s[{sp}:{sp+1}]')
        L.append(f'v_cndmask_b32 v{r+1}, v{r+1}, v{a+1}, s[{sp+2}:{sp+3}]')
    L.append(f'v_mul_f32 v{r}, v{r}, v{r+2}')
    L.append(f'v_mul_f32 v{r+1}, v{r+1}, v{r+3}')
    L.append(f'v_cvt_pk_bf16_f32 v{dst}, v{r}, v{r+1}')
    return L
gate_consts()
e('v_and_b32 v100, 63, v0')
e('v_lshlrev_b32 v101, 4, v100')
e(f's_add_u32 s63, s62, {7*18432}')
for t in range(9):
    for x in gate(MD(t), 104 + 4*(t % 2), 112 + t, 48): e(x)
    if t in (3, 7):
        e(f'buffer_store_dwordx4 v[{112+t-3}:{112+t}], v101, s[20:23], s63 offen sc1')
        e('s_add_u32 s63, s63, 18432')
e(f's_add_u32 s63, s62, {6*18432}')
e('buffer_store_dword v120, v101, s[20:23], s63 offen offset:12 sc1')
e('s_branch L_fin')
def hbar():
    if opt['bst']:
        e('s_memtime s[64:65]')
        e('s_barrier')
        e('s_memtime s[66:67]')
        e('s_waitcnt lgkmcnt(0)')
        e('s_mov_b32 m0, s68'); e('s_nop 0')
        e('v_writelane_b32 v14, s64, m0')
        e('v_writelane_b32 v15, s66, m0')
        e('s_add_u32 s68, s68, 1')
    else: e('s_barrier')
lab('L_helper')
if opt['bst']: e('s_mov_b32 s68, 0')
def Y(i, t): return 40 + 4*(i*9+t)
def SN(t): return 148 + 4*t
e('v_mov_b32 v3, v101')
e('v_add_u32 v13, 4096, v101')
e(f's_add_u32 s38, s34, {2*SLOT}')
e('v_add_u32 v4, s38, v101')
e(f's_add_u32 s38, s35, {2*SLOT+28672}')
e('v_add_u32 v5, s38, v101')
e('s_cmp_eq_u32 s26, 4')
e('s_cbranch_scc1 L_h4')
e(f'v_mov_b32 v36, {OOB}')
e('s_branch L_h5')
lab('L_h4')
e('s_mov_b32 s31, 0')
gettag('h')
lab('L_h5')
e('v_mov_b32 v38, s92')
e('v_mov_b32 v39, s93')
def dma_list(slot):
    L = []
    for k in range(7):
        pre = [f's_add_u32 m0, s34, {slot*SLOT + (k//4)*4096}', 's_nop 0']
        L.append(pre + [f'buffer_load_dwordx4 v{3 if k < 4 else 13}, s[20:23], s36 offen offset:{(k%4)*1024} sc1 lds'] + ([f's_add_u32 s36, s36, {XS}'] if k == 6 else []))
    for k in range(6):
        pre = [f's_add_u32 m0, s35, {slot*SLOT + 28672 + (k//4)*4096}', 's_nop 0']
        L.append(pre + [f'buffer_load_dwordx4 v{3 if k < 4 else 13}, s[20:23], s37 offen offset:{(k%4)*1024} sc1 lds'] + (['s_add_u32 s37, s37, 24576'] if k == 5 else []))
    return L
def pst(b, pm):
    return [f'buffer_store_dwordx4 {vr(PK(b,pm))}, v{PA(b)}, s[20:23], 0 offen sc1', f'v_add_u32 v{PA(b)}, s{96+b}, v{PA(b)}']
def weave(dl, sl):
    res = []; n = len(sl); m = len(dl)
    for i in range(m):
        res.append(dl[i])
        for k in range((i*n)//m, ((i+1)*n)//m): res.append(sl[k])
    return res
def mix(dl, vl):
    n = len(dl)
    for i, d in enumerate(dl):
        for x in d: e(x)
        for x in vl[(i*len(vl))//n:((i+1)*len(vl))//n]: e(x)
    if n == 0:
        for x in vl: e(x)
def nvm(dl, after):
    return len(dl) - 1 - after
def snapr():
    for t in range(9):
        e(f'ds_read_b128 {vr(SN(t))}, v4 offset:{t*1024}' if t < 7 else f'ds_read_b128 {vr(SN(t))}, v5 offset:{(t-7)*1024}')
    e('s_waitcnt lgkmcnt(0)')
FM = [f'v_fmac_f32 v{Y(i,t)+r}, s{40+i}, v{SN(t)+r}' for t in range(9) for i in range(3) for r in range(4)]
FM1 = [f'v_mul_f32 v{Y(i,t)+r}, s{40+i}, v{SN(t)+r}' for t in range(9) for i in range(3) for r in range(4)]
e(f's_add_u32 s36, s36, {XS}')
e('s_add_u32 s37, s37, 24576')
e('s_barrier')
mix(dma_list(1), [])
c('coefficient table: s40.. = 3 x 6, consumed from the front')
for m in range(6):
    for i in range(3): e(f's_mov_b32 s{40+3*m+i}, {fh(DCH[i][m])}')
hbar()
ND0 = opt['nd0']
def only4(name, fn):
    e('s_cmp_lg_u32 s26, 4')
    e(f's_cbranch_scc1 L_o4{name}')
    fn()
    lab(f'L_o4{name}')
def hflag(off):
    e('s_lshl_b32 s30, s2, 3')
    e(f's_add_u32 s30, s30, {FLAG_OFF+off}')
    e('s_mov_b64 exec, 1')
    e('buffer_store_dwordx2 v[38:39], v36, s[20:23], s30 offen sc1')
    e('s_mov_b64 exec, -1')
def hiter(name, fm, sa=(), sc_=(), flag0=None, flag1=None, chk=None):
    if chk is not None: poll_issue(chk)
    for g_ in sa:
        for x in g_: e(x)
    hbar()
    if fm: snapr()
    D2 = dma_list(2)
    mix(D2[:ND0], [])
    e(f's_waitcnt vmcnt({ND0 + len(sa)})')
    if chk is not None:
        def f():
            poll_check()
            e(f's_cbranch_scc0 L_o4c{name}')
            poll(chk, name)
        only4('c'+name, f)
    hbar()
    if flag0 is not None: hflag(flag0)
    mix(D2[ND0:] + dma_list(0), fm[:40])
    e('s_waitcnt vmcnt(13)')
    hbar()
    if flag1 is not None: hflag(flag1)
    mix(list(sc_) + dma_list(1), fm[40:])
    if fm:
        for k in range(15): e(f's_mov_b32 s{40+k}, s{43+k}')
    e(f's_waitcnt vmcnt({13 + len(sc_) + (1 if flag1 is not None else 0)})')
    hbar()
ST = [pst(b, pm) for pm in range(5) for b in range(4)]
hiter('0', [], sa=ST[0:4], sc_=ST[4:8], flag1=2048)
hiter('1', FM1, sa=ST[8:12], sc_=ST[12:16], flag0=4096, chk=2048)
hiter('2', FM, sa=ST[16:20], flag0=6144, chk=4096)
hiter('3', FM, flag0=8192, chk=6144)
hiter('4', FM)
hiter('5', FM, chk=8192)
c('---- last product')
if opt['sw'] == 4: stamp(6)
hbar()
snapr()
F0 = opt['f0']
D2 = dma_list(2)
mix(D2[:ND0], FM[:F0])
e(f's_waitcnt vmcnt({ND0})')
hbar()
WD = []
for k in range(12):
    WD.append([f's_add_u32 m0, s61, {(k//4)*4096}', 's_nop 0', f'buffer_load_dwordx4 v3, s[20:23], s60 offen offset:{(k%4)*1024} sc1 lds'] + (['s_add_u32 s60, s60, 4096'] if k % 4 == 3 else []))
e('s_mul_i32 s61, s24, 12288')
e(f's_add_u32 s60, s61, {WO_OFF}')
mix(D2[ND0:] + WD, FM[F0:])
gate_consts()
e('s_mov_b32 s63, s62')
nst = [0]
def hgate(n0, n1):
    for n in range(n0, n1):
        t, i = divmod(n, 3)
        for x in gate(Y(i, t), 184 + 4*(n % 2), 200 + n, 48): e(x)
        if n % 4 == 3:
            e(f'buffer_store_dwordx4 v[{200+n-3}:{200+n}], v3, s[20:23], s63 offen sc1')
            e('s_add_u32 s63, s63, 18432'); nst[0] += 1
        if n == 26:
            e('buffer_store_dwordx3 v[224:226], v3, s[20:23], s63 offen sc1'); nst[0] += 1
g1 = opt['g1']; g2 = min(27, g1 + opt['g2'])
hgate(0, g1)
e(f's_waitcnt vmcnt({nst[0]+12})')
hbar()
hgate(g1, g2)
hbar()
hgate(g2, 27)
if opt['bst']:
    e('s_memtime s[64:65]')
    e('s_waitcnt lgkmcnt(0)')
    e('s_mov_b32 m0, s68'); e('s_nop 0')
    e('v_writelane_b32 v14, s64, m0')
    e('v_writelane_b32 v15, s64, m0')
    e('s_cmp_lg_u32 s26, 4')
    e('s_cbranch_scc1 L_fin')
    e('s_mov_b32 s22, 0x10000000')
    e('s_lshl_b32 s33, s2, 9')
    e(f's_add_u32 s33, s33, {STAMP_OFF + (128<<10)*4}')
    e('v_lshrrev_b32 v1, 1, v3')
    e('buffer_store_dwordx2 v[14:15], v1, s[20:23], s33 offen')
lab('L_fin')
e('s_setprio 0')
e('s_load_dwordx2 s[6:7], s[0:1], 24')
stamp(7)
e('v_and_b32 v2, 63, v0')
e('v_lshlrev_b32 v3, 4, v2')
e('v_mov_b32 v37, 0')
e('s_lshl_b32 s40, s27, 1')
e('s_lshr_b32 s41, s26, 2')
e('s_add_u32 s40, s40, s41')
e('s_mul_i32 s30, s40, 7282')
e('s_lshr_b32 s30, s30, 16')
e('s_mul_i32 s31, s30, 9')
e('s_sub_u32 s31, s40, s31')
e('s_mul_i32 s32, s30, 4682')
e('s_lshr_b32 s32, s32, 16')
e('s_mul_i32 s33, s32, 14')
e('s_sub_u32 s33, s30, s33')
e('s_lshr_b32 s37, s32, 1')
e('s_and_b32 s38, s32, 1')
e('s_mul_i32 s37, s37, 4608000')
e('s_waitcnt lgkmcnt(0)')
e('s_add_u32 s6, s6, s37'); e('s_addc_u32 s7, s7, 0')
srd(16, 6, 7, 4608000)
e('s_mul_i32 s39, s33, 1152')
e('s_add_u32 s39, s39, s38')
e('s_add_u32 s39, s39, 6')
e('s_lshl_b32 s45, s31, 2')
e('s_add_u32 s45, s45, s24')
e('s_mul_i32 s42, s45, 171')
e('s_lshr_b32 s42, s42, 9')
e('s_mul_i32 s43, s42, 3')
e('s_sub_u32 s43, s45, s43')
e('s_sub_u32 s44, s45, 28')
e('s_cmp_ge_u32 s45, 27')
e('s_cselect_b32 s42, s44, s42')
e('s_cselect_b32 s43, 3, s43')
e('s_cmp_eq_u32 s45, 27')
e('s_cselect_b32 s42, 8, s42')
e('s_lshl_b32 s42, s42, 3')
e('s_lshl_b32 s43, s43, 1')
e('s_add_u32 s42, s42, s39')
e('s_sub_u32 s42, s42, s43')
e('s_mul_i32 s45, s42, 288')
e('v_lshrrev_b32 v7, 4, v2')
e(f'v_mul_u32_u24 v7, {4*72*288}, v7')
e('v_add_u32 v7, s45, v7')
e('v_and_b32 v8, 15, v2')
e('v_lshl_add_u32 v11, v8, 1, v7')
e('v_lshl_add_u32 v10, v8, 4, v7')
e('s_mul_i32 s46, s27, 36864')
e('s_lshl_b32 s47, s26, 10')
e('s_add_u32 s46, s46, s47')
e(f's_add_u32 s46, s46, {Z_OFF}')
e('s_mul_i32 s48, s41, 18432')
e('s_lshl_b32 s49, s24, 2')
e('s_add_u32 s48, s48, s49')
e(f's_add_u32 s48, s48, {SLOT}')
e('v_add_u32 v4, s48, v3')
e('v_mov_b32 v34, 0')
e('v_mov_b32 v35, 0')
e('s_waitcnt vmcnt(0)')
e('s_barrier')
stamp(8)
e('s_cmp_lg_u32 s26, 4')
e('s_cbranch_scc1 L_e2')
e('s_lshl_b32 s50, s28, 7')
e(f's_add_u32 s50, s50, {FLAG_OFF+10240}')
setflag(['s_lshl_b32 s30, s29, 3', 's_add_u32 s30, s30, s50'])
e('v_min_u32 v5, 8, v2')
e('v_lshlrev_b32 v5, 3, v5')
e('s_mov_b32 s51, 0')
lab('L_zpoll')
e('buffer_load_dwordx2 v[230:231], v5, s[20:23], s50 offen sc1')
e('s_add_u32 s51, s51, 1')
e('s_cmp_gt_u32 s51, 20000')
e('s_cbranch_scc1 L_e2')
e('s_waitcnt vmcnt(0)')
e('v_cmp_ne_u64 vcc, s[92:93], v[230:231]')
e('s_cbranch_vccz L_e2')
e('s_sleep 1')
e('s_branch L_zpoll')
lab('L_e2')
e('s_barrier')
stamp(9)
for i in range(5):
    if i == 4:
        e('s_cmp_ge_u32 s26, 4')
        e('s_cbranch_scc1 L_e3')
    e(f's_add_u32 m0, s47, {SLOT + i*8192}')
    e('s_nop 0')
    e('buffer_load_dwordx4 v3, s[20:23], s46 offen sc1 lds')
    if i < 4: e('s_add_u32 s46, s46, 8192')
lab('L_e3')
def bf(f): return vr(40 + 4*(f % 14))
PF = 12
for f in range(PF): e(f'ds_read_b128 {bf(f)}, v3 offset:{f*1024}')
e('s_waitcnt vmcnt(0)')
e('s_barrier')
stamp(10)
e('s_waitcnt lgkmcnt(0)')
for J in range(18):
    e(f'ds_read_b32 v{16+J}, v4 offset:{J*1024}')
    if J == 11: e('s_waitcnt lgkmcnt(4)')
e('s_waitcnt lgkmcnt(0)')
for f in range(45):
    T, ks = divmod(f, 5)
    if f >= PF: e(f's_waitcnt lgkmcnt({min(PF-1, 44-f)})')
    r = 100 + 4*T
    cin = '0' if ks == 0 else vr(r)
    e(f'v_mfma_f32_16x16x32_bf16 {vr(r)}, v[{16+4*ks}:{16+4*ks+3}], {bf(f)}, {cin}')
    if f+PF < 45: e(f'ds_read_b128 {bf(f+PF)}, v3 offset:{(f+PF)*1024}')
e('s_nop 7')
e('s_nop 1')
for r in range(4):
    d = 140 + 6*r
    A = lambda T: 100 + 4*T + r
    for h in range(4): e(f'v_cvt_pk_bf16_f32 v{d+h}, v{A(2*h)}, v{A(2*h+1)}')
    e(f'v_cvt_pk_bf16_f32 v{d+4}, v{A(8)}, v{A(8)}')
    e(f'buffer_store_dwordx4 v[{d}:{d+3}], v10, s[16:19], 0 offen')
    e(f'buffer_store_short v{d+4}, v11, s[16:19], 0 offen offset:256')
    if r < 3:
        e(f'v_add_u32 v10, {72*288}, v10')
        e(f'v_add_u32 v11, {72*288}, v11')
if opt['stamps']:
    e('s_waitcnt vmcnt(0)')
    stamp(11)
    e('s_waitcnt lgkmcnt(0)')
    e(f's_cmp_lg_u32 s26, {opt["sw"]}')
    e('s_cbranch_scc1 L_end')
    e('s_mov_b32 s22, 0x10000000')
    e('s_lshl_b32 s33, s2, 7')
    e(f's_add_u32 s33, s33, {STAMP_OFF}')
    e('v_mov_b32 v1, s33')
    for i in range(6):
        for k in range(4): e(f'v_mov_b32 v{4+k}, s{64+4*i+k}')
        e(f'buffer_store_dwordx4 v[4:7], v1, s[20:23], 0 offen offset:{16*i}')
        e('s_nop 1')
lab('L_end')
e('s_endpgm')
tail = f"""
.section .rodata,"a"
.p2align 6
.amdhsa_kernel {NAME}_kernel
  .amdhsa_next_free_vgpr 256
  .amdhsa_next_free_sgpr 100
  .amdhsa_accum_offset 256
  .amdhsa_group_segment_fixed_size 0
  .amdhsa_kernarg_size 48
  .amdhsa_user_sgpr_count 2
  .amdhsa_user_sgpr_kernarg_segment_ptr 1
  .amdhsa_system_sgpr_workgroup_id_x 1
.end_amdhsa_kernel
"""
open(sys.argv[1], 'w').write(hdr + '\n'.join(out) + '\n' + tail)
```

```python
import sys, struct
import numpy as np
from f44 import matrices, PTS
NAME = 'standalone__autoregressive_conv_wavenet__speech'
opt = dict(stamps=0, LA=24, smallfix=1, ldf=0, QS=34, prio=1, g1=5, g2=7, bst=0, nd0=7, wsp=5, f0=30, slp=2, cpf=1, sw=4, dly=0, pf=0, early=1, dbgst=0)
for a in sys.argv[2:]:
    k, v = a.split('='); assert k in opt, k; opt[k] = int(v)
out = []
def e(s): out.append('    ' + s)
def lab(s): out.append(s + ':')
def c(s): out.append('    ; ' + s)
def fh(x): return '0x%08x' % struct.unpack('<I', struct.pack('<f', float(x)))[0]
AT, G, BT = matrices()
GS = G.copy()
for m in range(6): GS[m] *= PTS[m]**3
CH = np.zeros((3, 7))
for i in range(3):
    for m in range(6): CH[i][m] = PTS[m]**(i-3)
DCH = CH[:, :6] - CH[:, 1:7]
LOG2E = 1.4426950408889634
LDF = {0: '', 1: ' nt'}[opt['ldf']]
PF_ = {0: ' sc1', 1: ' sc0 sc1', 2: ' sc1 nt', 3: ' sc0 sc1 nt'}[opt['pf']]
XROWS = 2032
XS = XROWS*96
U_BYTES = 4*21*XS
WT_OFF = U_BYTES
WT_BYTES = 9*21*24576
WO_OFF = WT_OFF + WT_BYTES
Z_OFF = WO_OFF + 48*1024
Z_BYTES = 28*2*9*18*1024
FLAG_OFF = Z_OFF + Z_BYTES
WS_USED = FLAG_OFF + 14336
STAMP_OFF = 268435456 - (1 << 20)
SLOT = 53248
XL = 2*SLOT + 8192
WL = SLOT
LDS_MAIN = 3*SLOT
OOB = 0x7f000000
hdr = f"""; Kernarg layout for this problem (48 bytes, ptrs only, base s[0:1]):
; @launch grid=(252,1,1) block=(512,1,1) lds={LDS_MAIN}
.amdgcn_target "amdgcn-amd-amdhsa--gfx950"
.text
.globl {NAME}_kernel
.p2align 8
.type {NAME}_kernel,@function
{NAME}_kernel:
"""
def srd(d, lo, hi, nbytes):
    e(f's_mov_b32 s{d}, s{lo}')
    e(f's_and_b32 s{d+1}, s{hi}, 0xffff')
    e(f's_mov_b32 s{d+2}, {nbytes}')
    e(f's_mov_b32 s{d+3}, 0x00020000')
def vp(r): return f'v[{r}:{r+1}]'
def vr(r): return f'v[{r}:{r+3}]'
def pkfma(d, sc, a, b, nega=False):
    neg = ' neg_lo:[0,1,0] neg_hi:[0,1,0]' if nega else ''
    e(f'v_pk_fma_f32 {vp(d)}, s[{sc}:{sc+1}], {vp(a)}, {vp(b)}{neg}')
def pkadd(d, a, b, negb=False):
    neg = ' neg_lo:[0,1] neg_hi:[0,1]' if negb else ''
    e(f'v_pk_add_f32 {vp(d)}, {vp(a)}, {vp(b)}{neg}')
def sconst2(s, x):
    e(f's_mov_b32 s{s}, {fh(x)}'); e(f's_mov_b32 s{s+1}, {fh(x)}')
def stamp(i):
    if opt['stamps']: e(f's_memrealtime s[{64+2*i}:{65+2*i}]')
def PK(b, pm):
    n = pm*4 + b
    return 184 + 4*n if n < 18 else 16 + 4*(n-18)
PA = lambda b: 32 + b
PT = 24

def gettag(name):
    lab(f'L_tag{name}')
    e('buffer_load_dwordx2 v[24:25], v37, s[16:19], 0 offen sc1')
    e('s_add_u32 s31, s31, 1')
    e('s_cmp_gt_u32 s31, 30000')
    e(f's_cbranch_scc1 L_tagd{name}')
    e('s_waitcnt vmcnt(0)')
    e('v_readfirstlane_b32 s92, v24')
    e('v_readfirstlane_b32 s93, v25')
    e('s_nop 3')
    e('s_cmp_eq_u32 s92, 0')
    e(f's_cbranch_scc1 L_tag{name}')
    lab(f'L_tagd{name}')
def setflag(pre):
    for x in pre: e(x)
    e('v_mov_b32 v38, s92')
    e('v_mov_b32 v39, s93')
    e('s_mov_b64 exec, 1')
    e('buffer_store_dwordx2 v[38:39], v37, s[20:23], s30 offen sc1')
    e('s_mov_b64 exec, -1')
def poll_issue(off):
    e(f's_mov_b32 s30, {FLAG_OFF+off}')
    e(f'buffer_load_dwordx4 {vr(PT)}, v36, s[20:23], s30 offen{PF_}')
    e(f'buffer_load_dwordx4 {vr(PT+4)}, v36, s[20:23], s30 offen offset:16{PF_}')
def poll_check():
    e(f'v_cmp_ne_u64 vcc, s[92:93], {vp(PT)}')
    for k in range(1, 4):
        e(f'v_cmp_ne_u64 s[88:89], s[92:93], {vp(PT+2*k)}')
        e('s_or_b64 vcc, vcc, s[88:89]')
def poll(off, name):
    e('s_mov_b32 s31, 0')
    lab(f'L_poll{name}')
    poll_issue(off)
    e('s_add_u32 s31, s31, 1')
    e('s_cmp_gt_u32 s31, 20000')
    e(f's_cbranch_scc1 L_pdone{name}')
    e('s_waitcnt vmcnt(0)')
    poll_check()
    e(f's_cbranch_scc0 L_pdone{name}')
    e(f's_sleep {opt["slp"]}')
    e(f's_branch L_poll{name}')
    lab(f'L_pdone{name}')

e('s_cmp_ge_u32 s2, 252')
e('s_cbranch_scc1 L_end')
if opt['stamps']:
    for i in range(24): e(f's_mov_b32 s{64+i}, 0')
stamp(0)
e('s_load_dwordx4 s[4:7], s[0:1], 0')
e('s_load_dwordx2 s[8:9], s[0:1], 16')
e('s_load_dwordx4 s[56:59], s[0:1], 32')
e('v_lshrrev_b32 v1, 6, v0')
e('v_and_b32 v2, 63, v0')
e('v_readfirstlane_b32 s26, v1')
e('s_mov_b32 s33, 0xffff0000')
e('v_mov_b32 v37, 0')
for b in range(4): e(f'v_mov_b32 v{PA(b)}, {OOB}')
for b in range(4): e(f's_mov_b32 s{96+b}, {3*XS}')
e('s_mov_b32 s31, 0')
e('s_mov_b32 s92, 0')
e('s_mov_b32 s93, 0')
c('x-side scalars (all waves): s50 = U soffset of product 0 for this WG, s35 = LDS staging base')
e('s_cmp_ge_u32 s2, 125')
e('s_cselect_b32 s24, 4608000, 0')
e('s_cselect_b32 s25, 125, 0')
e(f's_cselect_b32 s50, {2*21*XS}, 0')
e('s_sub_u32 s3, s2, s25')
e('s_mul_i32 s28, s3, 1536')
e('s_add_u32 s50, s50, s28')
e('s_add_u32 s50, s50, 768')
e(f's_add_u32 s51, s50, {3*XS}')
e(f's_mov_b32 s35, {XL+64}')
if opt['cpf']:
    c('wave 1: pull 4 KB of the kernel code into L2 (part chosen by id>>3)')
    e('s_cmp_lg_u32 s26, 1')
    e('s_cbranch_scc1 L_nopf')
    e('s_getpc_b64 s[40:41]')
    lab('L_pc')
    e('s_lshr_b32 s42, s2, 3')
    e('s_and_b32 s42, s42, 7')
    e('s_lshl_b32 s42, s42, 12')
    e('v_lshlrev_b32 v102, 4, v2')
    e('v_add_u32 v102, s42, v102')
    e('s_mov_b32 s44, s40')
    e('s_and_b32 s45, s41, 0xffff')
    e('s_mov_b32 s46, L_end-L_pc')
    e('s_mov_b32 s47, 0x00020000')
    for k in range(4): e(f'buffer_load_dwordx4 {vr(104+4*k)}, v102, s[44:47], 0 offen offset:{k*1024}')
    lab('L_nopf')
e('s_waitcnt lgkmcnt(0)')
srd(20, 58, 59, WS_USED)
srd(16, 56, 57, 256)
e('s_lshr_b32 s28, s26, 1')
e('s_cmp_eq_u32 s28, 2')
e('s_cbranch_scc1 Lp_w')
def xaddr(su, va, vd):
    e(f's_lshl_b32 s28, s{su}, 6')
    e('v_add_u32 v3, s28, v2')
    e('v_mul_u32_u24 v4, 683, v3')
    e('v_lshrrev_b32 v4, 16, v4')
    e('v_mul_u32_u24 v5, 96, v4')
    e('v_sub_u32 v3, v3, v5')
    e(f'v_mul_u32_u24 v{va}, 43, v3')
    e(f'v_lshrrev_b32 v{va}, 8, v{va}')
    e(f'v_mul_u32_u24 v{va}, {2304-96}, v{va}')
    e(f'v_lshl_add_u32 v{va}, v3, 4, v{va}')
    e(f'v_add3_u32 v{va}, v{va}, v5, s35')
    e('v_cmp_le_u32 vcc, 3, v4')
    e(f'v_mul_u32_u24 v{vd}, {XS}, v4')
    e(f'v_mov_b32 v5, {18*XS}')
    e(f'v_lshl_add_u32 v{vd}, v3, 4, v{vd}')
    e('v_cndmask_b32 v5, 0, v5, vcc')
    e(f'v_add_u32 v{vd}, v{vd}, v5')
def xpair(va, vd):
    for s in range(6): e(f'ds_read_b128 {vr(120+4*s)}, v{va} offset:{(12-2*s)*288}')
    for dw in range(4):
        for s in range(6):
            if dw == 0: e(f's_waitcnt lgkmcnt({5-s})')
            e(f'v_lshlrev_b32 v{148+2*s}, 16, v{120+4*s+dw}')
            e(f'v_and_b32 v{149+2*s}, s33, v{120+4*s+dw}')
        D = lambda s: 148+2*s
        pkfma(162, 46, D(2), D(4))
        pkfma(164, 46, D(3), D(5))
        pkfma(162, 44, D(0), 162)
        pkfma(164, 44, D(1), 164)
        pkfma(166, 48, 162, 164)
        pkfma(168, 48, 162, 164, nega=True)
        e(f'v_cvt_pk_bf16_f32 v{172+dw}, v166, v167')
        e(f'v_cvt_pk_bf16_f32 v{176+dw}, v168, v169')
    e(f'buffer_store_dwordx4 v[172:175], v{vd}, s[20:23], s50 offen sc1')
    e(f'buffer_store_dwordx4 v[176:179], v{vd}, s[20:23], s51 offen sc1')
def xrest(va, b):
    for s in range(7): e(f'ds_read_b128 {vr(120+4*s)}, v{va} offset:{(12-2*s)*288}')
    for dw in range(4):
        for s in range(7):
            if dw == 0: e(f's_waitcnt lgkmcnt({6-s})')
            e(f'v_lshlrev_b32 v{148+2*s}, 16, v{120+4*s+dw}')
            e(f'v_and_b32 v{149+2*s}, s33, v{120+4*s+dw}')
        D = lambda s: 148+2*s
        for t in range(2):
            q0, q1, aa = 36+6*t, 38+6*t, 40+6*t
            pkfma(162, q1, D(2), D(4))
            pkfma(164, q1, D(3), D(5))
            pkfma(162, q0, D(0), 162)
            pkfma(164, q0, D(1), 164)
            pkfma(166, aa, 162, 164)
            pkfma(168, aa, 162, 164, nega=True)
            e(f'v_cvt_pk_bf16_f32 v{PK(b,2*t)+dw}, v166, v167')
            e(f'v_cvt_pk_bf16_f32 v{PK(b,2*t+1)+dw}, v168, v169')
        pkfma(162, 54, D(4), D(6))
        pkfma(162, 52, D(2), 162)
        pkfma(162, 48, D(0), 162)
        e(f'v_cvt_pk_bf16_f32 v{PK(b,4)+dw}, v162, v163')
for t in range(3):
    a = PTS[2*t]; q0 = BT[2*t][1]; q1 = BT[2*t][3]
    assert abs(BT[2*t][0] - a*q0) < 1e-12 and abs(BT[2*t][2] - a*q1) < 1e-12 and abs(BT[2*t][4]-a) < 1e-12
e('s_add_u32 s28, s2, s26')
e('s_cmp_lg_u32 s28, 0')
e('s_cbranch_scc1 Lp_x0')
c('WG 0 wave 0 publishes the launch tag in d_debug')
e('s_memrealtime s[92:93]')
e('s_waitcnt lgkmcnt(0)')
e('s_or_b32 s92, s92, 1')
e('v_mov_b32 v38, s92')
e('v_mov_b32 v39, s93')
e('s_mov_b64 exec, 1')
e('buffer_store_dwordx2 v[38:39], v37, s[16:19], 0 offen sc1')
e('s_mov_b64 exec, -1')
lab('Lp_x0')
e('s_sub_u32 s27, s26, 2')
e('s_cmp_lt_u32 s26, 4')
e('s_cselect_b32 s27, s26, s27')
e('s_cmp_ge_u32 s2, 250')
e('s_cbranch_scc1 Lp_zero')
e('s_add_u32 s4, s4, s24'); e('s_addc_u32 s5, s5, 0')
srd(12, 4, 5, 4608000)
e('s_mul_i32 s28, s3, 36864')
e('s_sub_u32 s28, s28, 1792')
e('s_lshl_b32 s29, s27, 10')
e('s_add_u32 s28, s28, s29')
e('v_lshlrev_b32 v6, 4, v2')
e('v_add_u32 v6, s28, v6')
for i in range(7):
    if i == 6:
        e('s_cmp_ge_u32 s27, 2')
        e('s_cbranch_scc1 Lp_xl')
    e(f's_add_u32 m0, s29, {XL + i*6144}')
    e('s_nop 0')
    e(f'buffer_load_dwordx4 v6, s[12:15], 0 offen{LDF} lds')
    if i < 6: e('v_add_u32 v6, 6144, v6')
lab('Lp_xl')
c('pass-1 units: wave0:8 wave1:4,5 wave2:0,1 wave3:2,3 wave6:6 wave7:7')
e('s_lshl_b32 s28, s26, 2')
e('s_lshr_b32 s30, 0x76002048, s28')
e('s_and_b32 s30, s30, 15')
xaddr(30, 6, 7)
e('s_add_u32 s30, s30, 1')
xaddr(30, 14, 15)
sconst2(44, BT[0][1]); sconst2(46, BT[0][3]); sconst2(48, PTS[0])
e('s_cmp_lg_u32 s26, 0')
e('s_cbranch_scc1 Lp_x1')
gettag('a')
lab('Lp_x1')
e('s_waitcnt vmcnt(0)')
e('s_barrier')
stamp(1)
xpair(6, 7)
e('s_bitcmp1_b32 0x0e, s26')
e('s_cbranch_scc0 Lp_x2')
xpair(14, 15)
lab('Lp_x2')
e('s_cmp_ge_u32 s26, 4')
e('s_cbranch_scc1 Lp_h67')
lab('Lp_s2')
e('s_lshl_b32 s30, s2, 3')
e(f's_add_u32 s30, s30, {FLAG_OFF}')
e('v_mov_b32 v38, s92')
e('v_mov_b32 v39, s93')
e('s_waitcnt vmcnt(0)')
e('s_barrier')
e('s_cmp_lg_u32 s26, 0')
e('s_cbranch_scc1 L_pdone')
e('s_mov_b64 exec, 1')
e('buffer_store_dwordx2 v[38:39], v37, s[20:23], s30 offen sc1')
e('s_mov_b64 exec, -1')
stamp(2)
e('s_branch L_pdone')
def xcoef2():
    for t in (1, 2):
        sconst2(36+6*(t-1), BT[2*t][1]); sconst2(38+6*(t-1), BT[2*t][3]); sconst2(40+6*(t-1), PTS[2*t])
    sconst2(48, BT[6][0]); sconst2(52, BT[6][2]); sconst2(54, BT[6][4])
    e(f's_add_u32 s34, s50, {6*XS}')
lab('Lp_h67')
c('waves 6,7 pass 2: own unit (block 1), then units 2(w-6), 2(w-6)+1 (blocks 2,3)')
xcoef2()
e(f'v_add_u32 v{PA(1)}, s34, v7')
if opt['early']: xrest(6, 1)
e('s_waitcnt vmcnt(0)')
e('s_barrier')
if not opt['early']: xrest(6, 1)
e('s_sub_u32 s30, s26, 6')
e('s_lshl_b32 s30, s30, 1')
lab('Lp_x23')
xaddr(30, 6, 7)
e(f'v_add_u32 v{PA(2)}, s34, v7')
xrest(6, 2)
e('s_add_u32 s30, s30, 1')
lab('Lp_x3')
xaddr(30, 6, 7)
e(f'v_add_u32 v{PA(3)}, s34, v7')
xrest(6, 3)
e('s_branch L_pdone')
lab('Lp_zero')
c('WGs 250,251: zero the 8 leading rows of the 42 arrays of batch b')
e('s_sub_u32 s3, s2, 250')
e(f's_mul_i32 s30, s3, {2*21*XS}')
e('s_lshl_b32 s28, s27, 6')
e('v_add_u32 v3, s28, v2')
for k in range(4): e(f'v_mov_b32 v{16+k}, 0')
for i in range(6):
    e('v_mul_u32_u24 v4, 1366, v3')
    e('v_lshrrev_b32 v4, 16, v4')
    e('v_mul_u32_u24 v5, 48, v4')
    e('v_sub_u32 v5, v3, v5')
    e(f'v_mul_u32_u24 v4, {XS}, v4')
    e('v_lshl_add_u32 v4, v5, 4, v4')
    e('v_cmp_gt_u32 vcc, 2016, v3')
    e(f'v_mov_b32 v5, {OOB}')
    e('v_add_u32 v3, 384, v3')
    e('v_cndmask_b32 v4, v5, v4, vcc')
    e('buffer_store_dwordx4 v[16:19], v4, s[20:23], s30 offen sc1')
e('s_cmp_lg_u32 s26, 0')
e('s_cbranch_scc1 Lp_z1')
gettag('z')
lab('Lp_z1')
e('s_barrier')
e('s_branch Lp_s2')
lab('Lp_w')
e('s_and_b32 s27, s26, 1')
e('s_mul_i32 s3, s27, 252')
e('s_add_u32 s3, s3, s2')
e('s_cmp_ge_u32 s3, 324')
e('s_cbranch_scc1 Lp_wo')
srd(12, 6, 7, 31*144*288*2)
def posdec(P, ko, pos, kk, o, tmp):
    e(f'v_mul_u32_u24 v{ko}, 58255, v{P}')
    e(f'v_lshrrev_b32 v{ko}, 22, v{ko}')
    e(f'v_mul_u32_u24 v{tmp}, 72, v{ko}')
    e(f'v_sub_u32 v{pos}, v{P}, v{tmp}')
    e(f'v_mul_u32_u24 v{kk}, 3641, v{ko}')
    e(f'v_lshrrev_b32 v{kk}, 16, v{kk}')
    e(f'v_mul_u32_u24 v{tmp}, 18, v{kk}')
    e(f'v_sub_u32 v{o}, v{ko}, v{tmp}')
G_ = lambda r, ch: 40+2*(8*r+ch)
e('s_lshl_b32 s28, s3, 5')
e('v_and_b32 v3, 31, v2')
e('v_add_u32 v4, s28, v3')
posdec(4, 5, 6, 7, 8, 9)
e(f'v_mul_u32_u24 v7, {4*82944}, v7')
e('v_mul_u32_u24 v8, 4608, v8')
e('v_lshrrev_b32 v9, 5, v2')
e('v_mul_u32_u24 v10, 288, v9')
e('v_add3_u32 v7, v7, v8, v10')
e('v_lshl_add_u32 v6, v6, 2, v7')
for r in range(4):
    for ch in range(8):
        e(f'buffer_load_dword v{G_(r,ch)+1}, v6, s[12:15], 0 offen offset:{ch*576}{LDF}')
    if r < 3: e('v_add_u32 v6, 82944, v6')
e('s_lshl_b32 s29, s27, 14')
e(f's_add_u32 s29, s29, {WL}')
e('v_lshlrev_b32 v10, 6, v3')
e('v_lshl_add_u32 v10, v9, 5, v10')
e('v_add_u32 v10, s29, v10')
e('v_lshlrev_b32 v11, 4, v2')
e('v_add_u32 v11, s29, v11')
for h in range(2):
    e('v_lshrrev_b32 v4, 2, v2')
    e(f'v_add3_u32 v4, v4, s28, {16*h}')
    posdec(4, 5, 6, 7, 8, 9)
    e('v_mul_u32_u24 v4, 43, v8')
    e('v_lshrrev_b32 v4, 8, v4')
    e('v_mul_u32_u24 v5, 6, v4')
    e('v_sub_u32 v5, v8, v5')
    e('v_lshrrev_b32 v8, 1, v7')
    e('v_add_u32 v8, 8, v8')
    e('v_and_b32 v9, 1, v7')
    e('v_lshl_add_u32 v9, v9, 1, v5')
    e('v_subrev_u32 v9, 4, v9')
    e('v_cmp_le_u32 vcc, 4, v5')
    e('v_mul_u32_u24 v4, 24576, v4')
    e('v_lshrrev_b32 v14, 3, v6')
    e('v_cndmask_b32 v8, v7, v8, vcc')
    e('v_cndmask_b32 v9, v5, v9, vcc')
    e(f'v_mul_u32_u24 v14, {21*24576}, v14')
    e('v_bfe_u32 v15, v6, 2, 1')
    e('v_mul_u32_u24 v15, 12288, v15')
    e(f'v_add3_u32 v{12+h}, v4, v14, v15')
    e(f'v_lshl_add_u32 v{12+h}, v8, 10, v{12+h}')
    e(f'v_lshl_add_u32 v{12+h}, v9, 8, v{12+h}')
    e('v_and_b32 v4, 3, v6')
    e(f'v_lshl_add_u32 v{12+h}, v4, 6, v{12+h}')
    e('v_and_b32 v4, 3, v2')
    e(f'v_lshl_add_u32 v{12+h}, v4, 4, v{12+h}')
def wcoef(t):
    for r in range(4):
        assert abs(GS[2*t+1][r] - (1 if r % 2 == 0 else -1)*GS[2*t][r]) < 1e-12
        e(f'v_mul_f32 v{160+2*r}, {fh(GS[2*t][r])}, v14')
        e(f'v_mov_b32 v{161+2*r}, v{160+2*r}')
e(f's_mov_b32 s34, {WT_OFF}')
e('v_cmp_le_u32 vcc, 32, v2')
e(f'v_mov_b32 v14, {fh(-2*LOG2E)}')
e(f'v_mov_b32 v15, {fh(-LOG2E)}')
e('v_cndmask_b32 v14, v14, v15, vcc')
e('v_mov_b32 v15, v14')
wcoef(0)
e('s_barrier')
e('s_waitcnt vmcnt(0)')
for k in range(32):
    e(f'v_lshlrev_b32 v{40+2*k}, 16, v{41+2*k}')
    e(f'v_and_b32 v{41+2*k}, s33, v{41+2*k}')
e('s_mov_b32 s53, 0')
lab('Lp_wloop')
for dw in range(4):
    for c2 in range(2):
        ch = 2*dw+c2
        E, O = 104+4*c2, 106+4*c2
        e(f'v_pk_mul_f32 {vp(E)}, {vp(160)}, {vp(G_(0,ch))}')
        e(f'v_pk_mul_f32 {vp(O)}, {vp(162)}, {vp(G_(1,ch))}')
        e(f'v_pk_fma_f32 {vp(E)}, {vp(164)}, {vp(G_(2,ch))}, {vp(E)}')
        e(f'v_pk_fma_f32 {vp(O)}, {vp(166)}, {vp(G_(3,ch))}, {vp(O)}')
        pkadd(112+4*c2, O, E)
        pkadd(114+4*c2, E, O, negb=True)
    for sgn in range(2):
        for n in range(2):
            e(f'v_cvt_pk_bf16_f32 v{120+8*sgn+4*n+dw}, v{112+2*sgn+n}, v{116+2*sgn+n}')
for sgn in range(2):
    for n in range(2):
        e(f'ds_write_b128 v10, {vr(120+8*sgn+4*n)} offset:{sgn*2048 + n*16}')
e('s_add_u32 s53, s53, 1')
e('s_waitcnt lgkmcnt(0)')
e('v_add_u32 v10, 4096, v10')
e('s_cmp_eq_u32 s53, 3')
e('s_cbranch_scc1 Lp_w3')
e('s_cmp_eq_u32 s53, 1')
e('s_cbranch_scc1 Lp_w1')
wcoef(2)
if opt['early']:
    e('s_waitcnt vmcnt(0)')
    e('s_barrier')
e('s_branch Lp_wloop')
lab('Lp_w1')
for k in range(4): e(f'ds_read_b128 {vr(136+4*k)}, v11 offset:{k*1024}')
for k in range(4):
    e(f's_waitcnt lgkmcnt({3-k})')
    e(f'buffer_store_dwordx4 {vr(136+4*k)}, v{12+k%2}, s[20:23], s34 offen sc1')
    if k % 2 == 1: e(f's_add_u32 s34, s34, {3*24576}')
wcoef(1)
if not opt['early']:
    e('s_waitcnt vmcnt(0)')
    e('s_barrier')
e('s_branch Lp_wloop')
lab('Lp_w3')
for ch in range(8): e(f'v_pk_mul_f32 {vp(G_(3,ch))}, {vp(G_(3,ch))}, v[14:15]')
for n in range(2):
    for dw in range(4):
        e(f'v_cvt_pk_bf16_f32 v{120+4*n+dw}, v{G_(3,2*dw)+n}, v{G_(3,2*dw+1)+n}')
    e(f'ds_write_b128 v10, {vr(120+4*n)} offset:{n*16}')
e('s_waitcnt lgkmcnt(0)')
for k in range(10):
    e(f'ds_read_b128 {vr(PK(k % 2, k//2))}, v11 offset:{4096 + k*1024}')
e(f'v_add_u32 v{PA(0)}, s34, v12')
e(f'v_add_u32 v{PA(1)}, s34, v13')
e(f's_mov_b32 s96, {3*24576}')
e(f's_mov_b32 s97, {3*24576}')
e('s_waitcnt lgkmcnt(0)')
lab('Lp_wx')
c('then x pass 2: wave 4: unit 8 (block 3) ; wave 5: units 4,5 (blocks 2,3)')
e('s_cmp_ge_u32 s2, 250')
e('s_cbranch_scc1 L_pdone')
xcoef2()
e('s_mov_b32 s30, 8')
e('s_cmp_eq_u32 s26, 4')
e('s_cbranch_scc1 Lp_x3')
e('s_mov_b32 s30, 4')
e('s_branch Lp_x23')
lab('Lp_wo')
e('s_sub_u32 s3, s3, 324')
e('s_cmp_ge_u32 s3, 45')
e('s_cbranch_scc1 Lp_wo2')
srd(12, 8, 9, 144*144*2)
e('s_mul_i32 s28, s3, 13108')
e('s_lshr_b32 s28, s28, 16')
e('s_mul_i32 s29, s28, 5')
e('s_sub_u32 s29, s3, s29')
e('v_and_b32 v7, 15, v2')
e('v_lshrrev_b32 v8, 4, v2')
e('s_cmp_eq_u32 s28, 8')
e('s_cselect_b32 s30, 1, 4')
e('s_cselect_b32 s34, 256, 0')
e('s_cselect_b32 s28, 0, s28')
e('s_lshl_b32 s28, s28, 1')
e('s_add_u32 s34, s34, s28')
e(f's_mul_i32 s29, s29, {32*288}')
e('s_add_u32 s34, s34, s29')
e('v_lshlrev_b32 v9, s30, v7')
e('v_mul_u32_u24 v14, 576, v8')
e('v_add3_u32 v14, v14, v9, s34')
for d in range(4):
    e(f'buffer_load_ushort v{40+2*d}, v14, s[12:15], 0 offen')
    e(f'buffer_load_ushort v{41+2*d}, v14, s[12:15], 0 offen offset:288')
    if d < 3: e('v_add_u32 v14, 2304, v14')
e('s_lshl_b32 s3, s3, 10')
e(f's_add_u32 s3, s3, {WO_OFF}')
e('v_lshlrev_b32 v1, 4, v2')
e('s_barrier')
e('s_waitcnt vmcnt(0)')
for d in range(4):
    e(f'v_lshl_or_b32 v{48+d}, v{41+2*d}, 16, v{40+2*d}')
e('buffer_store_dwordx4 v[48:51], v1, s[20:23], s3 offen sc1')
e('s_waitcnt vmcnt(0)')
e('s_barrier')
e('s_branch Lp_wx')
lab('Lp_wo2')
e('s_barrier')
e('s_barrier')
e('s_branch Lp_wx')

def M(t): return 12 + 4*t
def MD(t): return 48 + 4*t
def FR(k): return vr(84 + 4*k)
lab('L_pdone')
e('v_lshlrev_b32 v101, 4, v2')
e('v_min_u32 v36, 62, v2')
e('v_lshlrev_b32 v36, 5, v36')
c('unit = base[xcd] + (id>>3)')
e('s_and_b32 s25, s2, 7')
e('s_lshr_b32 s24, s2, 3')
e('s_mul_i32 s27, s25, 31')
e('s_min_u32 s28, s25, 4')
e('s_add_u32 s27, s27, s28')
e('s_add_u32 s27, s27, s24')
e('s_mul_i32 s28, s27, 7282')
e('s_lshr_b32 s28, s28, 16')
e('s_mul_i32 s29, s28, 9')
e('s_sub_u32 s29, s27, s29')
e('s_and_b32 s24, s26, 3')
e('s_lshr_b32 s32, s24, 1')
e('s_and_b32 s33, s24, 1')
e('s_mul_i32 s34, s24, 7168')
e('s_mul_i32 s35, s24, 6144')
c('z soffset s62: (((g*2+rh)*9+gs)*18+J)*1024')
e('s_lshl_b32 s62, s28, 1')
e('s_add_u32 s62, s62, s32')
e(f's_mul_i32 s62, s62, {9*18*1024}')
e('s_lshl_b32 s63, s29, 1')
e('s_add_u32 s63, s63, s33')
e('s_lshl_b32 s63, s63, 10')
e('s_add_u32 s62, s62, s63')
e(f's_add_u32 s62, s62, {Z_OFF}')
e('s_mul_i32 s30, s28, 9363')
e('s_lshr_b32 s30, s30, 16')
e('s_mul_i32 s38, s30, 7')
e('s_sub_u32 s38, s28, s38')
e(f's_mul_i32 s36, s30, {21*XS}')
e('s_mul_i32 s37, s38, 27648')
e('s_add_u32 s36, s36, s37')
e('s_add_u32 s36, s36, s34')
e(f's_mul_i32 s37, s29, {21*24576}')
e('s_add_u32 s37, s37, s35')
e(f's_add_u32 s37, s37, {WT_OFF}')
e('s_cmp_ge_u32 s26, 4')
e('s_cbranch_scc1 L_helper')
e('s_cmp_lg_u32 s26, 0')
e('s_cbranch_scc1 L_c13')
c('wave 0: wait for all A flags, then load the whole phase 0 tile')
if opt['dly']: e(f's_sleep {opt["dly"]}')
poll(0, 'A')
stamp(3)
for k in range(52):
    if k % 4 == 0:
        e(f's_mov_b32 m0, {k*1024}')
        e(f's_add_u32 s30, s36, {k*1024}' if k < 28 else f's_add_u32 s30, s37, {(k-28)*1024}')
    e(f'buffer_load_dwordx4 v101, s[20:23], s30 offen offset:{(k%4)*1024} sc1 lds')
lab('L_c13')
e('s_barrier')
if opt['prio']: e(f's_setprio {opt["prio"]}')
e('v_and_b32 v124, 15, v2')
e('v_lshrrev_b32 v125, 4, v2')
e('v_mul_u32_u24 v126, 864, v124')
e('s_mul_i32 s38, s32, 13824')
e('v_add_u32 v126, s38, v126')
e('v_lshl_add_u32 v2, v125, 4, v126')
e('v_lshrrev_b32 v127, 1, v125')
e('v_mul_u32_u24 v127, 96, v127')
e('v_sub_u32 v127, v126, v127')
e('v_and_b32 v128, 1, v125')
e('v_lshl_add_u32 v127, v128, 4, v127')
e('v_add_u32 v5, 160, v127')
e('s_mul_i32 s38, s33, 12288')
e('s_add_u32 s38, s38, 28672')
e('v_add_u32 v8, s38, v101')
for s in (1, 2):
    e(f'v_add_u32 v{2+s}, {s*SLOT}, v2')
    e(f'v_add_u32 v{5+s}, {s*SLOT}, v5')
    e(f'v_add_u32 v{8+s}, {s*SLOT}, v8')
e(f's_add_u32 s38, s34, {2*SLOT}')
e('v_add_u32 v1, s38, v101')
e(f's_add_u32 s38, s35, {2*SLOT+28672}')
e('v_add_u32 v11, s38, v101')
for r in range(48, 84): e(f'v_mov_b32 v{r}, 0')

frags = []; mf = []
for tp in range(-7, 9):
    for kk in range(min(7, 8-tp), max(0, -tp)-1, -1):
        mf.append((tp+kk, ('W', kk), ('X', tp)))
for tp in range(-6, 9):
    for pp in range(3, -1, -1):
        if 0 <= tp+2*pp <= 8: mf.append((tp+2*pp, ('WT', pp), ('XT', tp)))
assert len(mf) == 108
fu = {}
for s, (t, wk, xk) in enumerate(mf):
    for k in (xk, wk):
        if k not in fu: fu[k] = s; frags.append(k)
assert len(frags) == 43
fidx = {k: i for i, k in enumerate(frags)}
LA = opt['LA']; BAR = 108 - LA; ELAST = BAR - 6
iss = [(-LA + (k*(ELAST+LA))//42) for k in range(43)]
for k in range(43): assert iss[k] <= fu[frags[k]] - 8, (k, iss[k], fu[frags[k]])
def rd(k, slot):
    kind, i = frags[k]
    if kind == 'X': return f'ds_read_b128 {FR(k)}, v{2+slot} offset:{(i+8)*96}'
    if kind == 'XT': return f'ds_read_b128 {FR(k)}, v{5+slot} offset:{(i+7)*96}'
    if kind == 'W': return f'ds_read_b128 {FR(k)}, v{8+slot} offset:{i*1024}'
    return f'ds_read_b128 {FR(k)}, v{8+slot} offset:{(8+i)*1024}'
npre = sum(1 for x in iss if x < 0)
first_touch = {}; last_touch = {}
for s, (t, wk, xk) in enumerate(mf):
    first_touch.setdefault(t, s); last_touch[t] = s
def snapw(t):
    return f'ds_write_b128 v1, {vr(MD(t))} offset:{t*1024}' if t < 7 else f'ds_write_b128 v11, {vr(MD(t))} offset:{(t-7)*1024}'
QS = opt['QS']
ext = [[] for _ in range(324)]
for ph in range(3):
    for k in range(43):
        ext[(ph*108 + iss[k]) % 324].append(('rd', k, ph))
used = [len(x) for x in ext]
lastw = 0
for t in range(9):
    pos = max(216 + last_touch[t] + 8, lastw + opt['wsp'])
    while used[pos % 324]: pos += 1
    lastw = pos
    used[pos % 324] += 1
    assert pos >= 216 + BAR and pos < 324 + QS - 2
    ext[pos % 324].append(('wr', t, 0))
e('s_waitcnt vmcnt(0)')
stamp(4)
e('s_barrier')
stamp(5)
if opt['dbgst']: e('s_memtime s[90:91]')
for k in range(npre): e(rd(k, 0))
e('s_mov_b32 s39, 7')
e('s_waitcnt lgkmcnt(0)')
out.append('.p2align 6')
lab('L_loop')
seq = 0; rseq = {}; covered = -1; wseq = -1
for it in range(2):
    emit = e if it == 1 else (lambda s: None)
    for ph in range(3):
        if it == 1: c(f'======== phase {ph}')
        for s, (t, wk, xk) in enumerate(mf):
            if s == BAR:
                emit('s_waitcnt lgkmcnt(0)')
                emit('s_barrier')
                covered = seq - 1
            if ph == 0 and s == QS:
                if wseq > covered:
                    emit(f's_waitcnt lgkmcnt({min(15, seq-1-wseq)})')
                    covered = max(covered, seq - 1 - min(15, seq-1-wseq))
                emit('s_barrier')
            need = max(rseq.get((ph, fidx[wk]), -1), rseq.get((ph, fidx[xk]), -1))
            if need > covered:
                allow = min(seq - 1 - need, 4)
                emit(f's_waitcnt lgkmcnt({allow})')
                covered = seq - 1 - allow
            cin = vr(MD(t)) if (ph == 0 and first_touch[t] == s) else vr(M(t))
            dst = vr(MD(t)) if (ph == 2 and last_touch[t] == s) else vr(M(t))
            emit(f'v_mfma_f32_16x16x32_bf16 {dst}, {FR(fidx[wk])}, {FR(fidx[xk])}, {cin}')
            for x in ext[ph*108+s]:
                if x[0] == 'rd':
                    emit(rd(x[1], x[2])); rseq[(x[2], x[1])] = seq; seq += 1
                else:
                    emit(snapw(x[1])); wseq = seq; seq += 1
            if ph == 2 and s == 104: emit('s_sub_u32 s39, s39, 1')
            if ph == 2 and s == 105: emit('s_cmp_lg_u32 s39, 0')
e('s_cbranch_scc1 L_loop')
stamp(6)
if opt['dbgst']: e('s_memtime s[94:95]')
c('---- compute-wave epilogue: gate y3 = MD')
e('s_waitcnt lgkmcnt(0)')
def gate_consts():
    e(f's_mov_b32 s46, {fh(-0.6931471805599453)}')
    e(f's_mov_b32 s42, {fh(2*LOG2E*2**-12)}')
    e('s_mov_b32 s43, 0x41f00000')
def gate(a, r, dst, sp):
    L = []
    L.append(f'v_min_f32 v{r}, s43, v{a}')
    L.append(f'v_min_f32 v{r+1}, s43, v{a+1}')
    L.append(f'v_exp_f32 v{a+2}, v{a+2}')
    L.append(f'v_exp_f32 v{a+3}, v{a+3}')
    L.append(f'v_exp_f32 v{r}, v{r}')
    L.append(f'v_exp_f32 v{r+1}, v{r+1}')
    if opt['smallfix']:
        L.append(f'v_cmp_gt_f32 s[{sp}:{sp+1}], s42, abs(v{a})')
        L.append(f'v_cmp_gt_f32 s[{sp+2}:{sp+3}], s42, abs(v{a+1})')
    L.append(f'v_add_f32 v{r+2}, 1.0, v{r}')
    L.append(f'v_add_f32 v{r+3}, 1.0, v{r+1}')
    if opt['smallfix']:
        L.append(f'v_mul_f32 v{a}, s46, v{a}')
        L.append(f'v_mul_f32 v{a+1}, s46, v{a+1}')
    L.append(f'v_fmac_f32 v{r+2}, v{r+2}, v{a+2}')
    L.append(f'v_fmac_f32 v{r+3}, v{r+3}, v{a+3}')
    L.append(f'v_sub_f32 v{r}, 1.0, v{r}')
    L.append(f'v_sub_f32 v{r+1}, 1.0, v{r+1}')
    L.append(f'v_rcp_f32 v{r+2}, v{r+2}')
    L.append(f'v_rcp_f32 v{r+3}, v{r+3}')
    if opt['smallfix']:
        L.append(f'v_cndmask_b32 v{r}, v{r}, v{a}, s[{sp}:{sp+1}]')
        L.append(f'v_cndmask_b32 v{r+1}, v{r+1}, v{a+1}, s[{sp+2}:{sp+3}]')
    L.append(f'v_mul_f32 v{r}, v{r}, v{r+2}')
    L.append(f'v_mul_f32 v{r+1}, v{r+1}, v{r+3}')
    L.append(f'v_cvt_pk_bf16_f32 v{dst}, v{r}, v{r+1}')
    return L
gate_consts()
e('v_and_b32 v100, 63, v0')
e('v_lshlrev_b32 v101, 4, v100')
e(f's_add_u32 s63, s62, {7*18432}')
for t in range(9):
    for x in gate(MD(t), 104 + 4*(t % 2), 112 + t, 48): e(x)
    if t in (3, 7):
        e(f'buffer_store_dwordx4 v[{112+t-3}:{112+t}], v101, s[20:23], s63 offen sc1')
        e('s_add_u32 s63, s63, 18432')
e(f's_add_u32 s63, s62, {6*18432}')
e('buffer_store_dword v120, v101, s[20:23], s63 offen offset:12 sc1')
e('s_branch L_fin')
def hbar():
    if opt['bst']:
        e('s_memtime s[64:65]')
        e('s_barrier')
        e('s_memtime s[66:67]')
        e('s_waitcnt lgkmcnt(0)')
        e('s_mov_b32 m0, s68'); e('s_nop 0')
        e('v_writelane_b32 v14, s64, m0')
        e('v_writelane_b32 v15, s66, m0')
        e('s_add_u32 s68, s68, 1')
    else: e('s_barrier')
lab('L_helper')
if opt['bst']: e('s_mov_b32 s68, 0')
def Y(i, t): return 40 + 4*(i*9+t)
def SN(t): return 148 + 4*t
e('v_mov_b32 v3, v101')
e('v_add_u32 v13, 4096, v101')
e(f's_add_u32 s38, s34, {2*SLOT}')
e('v_add_u32 v4, s38, v101')
e(f's_add_u32 s38, s35, {2*SLOT+28672}')
e('v_add_u32 v5, s38, v101')
e('s_cmp_eq_u32 s26, 4')
e('s_cbranch_scc1 L_h4')
e(f'v_mov_b32 v36, {OOB}')
e('s_branch L_h5')
lab('L_h4')
e('s_mov_b32 s31, 0')
gettag('h')
lab('L_h5')
e('v_mov_b32 v38, s92')
e('v_mov_b32 v39, s93')
def dma_list(slot):
    L = []
    for k in range(7):
        pre = [f's_add_u32 m0, s34, {slot*SLOT + (k//4)*4096}', 's_nop 0']
        L.append(pre + [f'buffer_load_dwordx4 v{3 if k < 4 else 13}, s[20:23], s36 offen offset:{(k%4)*1024} sc1 lds'] + ([f's_add_u32 s36, s36, {XS}'] if k == 6 else []))
    for k in range(6):
        pre = [f's_add_u32 m0, s35, {slot*SLOT + 28672 + (k//4)*4096}', 's_nop 0']
        L.append(pre + [f'buffer_load_dwordx4 v{3 if k < 4 else 13}, s[20:23], s37 offen offset:{(k%4)*1024} sc1 lds'] + (['s_add_u32 s37, s37, 24576'] if k == 5 else []))
    return L
def pst(b, pm):
    return [f'buffer_store_dwordx4 {vr(PK(b,pm))}, v{PA(b)}, s[20:23], 0 offen sc1', f'v_add_u32 v{PA(b)}, s{96+b}, v{PA(b)}']
def weave(dl, sl):
    res = []; n = len(sl); m = len(dl)
    for i in range(m):
        res.append(dl[i])
        for k in range((i*n)//m, ((i+1)*n)//m): res.append(sl[k])
    return res
def mix(dl, vl):
    n = len(dl)
    for i, d in enumerate(dl):
        for x in d: e(x)
        for x in vl[(i*len(vl))//n:((i+1)*len(vl))//n]: e(x)
    if n == 0:
        for x in vl: e(x)
def nvm(dl, after):
    return len(dl) - 1 - after
def snapr():
    for t in range(9):
        e(f'ds_read_b128 {vr(SN(t))}, v4 offset:{t*1024}' if t < 7 else f'ds_read_b128 {vr(SN(t))}, v5 offset:{(t-7)*1024}')
    e('s_waitcnt lgkmcnt(0)')
FM = [f'v_fmac_f32 v{Y(i,t)+r}, s{40+i}, v{SN(t)+r}' for t in range(9) for i in range(3) for r in range(4)]
FM1 = [f'v_mul_f32 v{Y(i,t)+r}, s{40+i}, v{SN(t)+r}' for t in range(9) for i in range(3) for r in range(4)]
e(f's_add_u32 s36, s36, {XS}')
e('s_add_u32 s37, s37, 24576')
e('s_barrier')
mix(dma_list(1), [])
c('coefficient table: s40.. = 3 x 6, consumed from the front')
for m in range(6):
    for i in range(3): e(f's_mov_b32 s{40+3*m+i}, {fh(DCH[i][m])}')
hbar()
ND0 = opt['nd0']
def only4(name, fn):
    e('s_cmp_lg_u32 s26, 4')
    e(f's_cbranch_scc1 L_o4{name}')
    fn()
    lab(f'L_o4{name}')
def hflag(off):
    e('s_lshl_b32 s30, s2, 3')
    e(f's_add_u32 s30, s30, {FLAG_OFF+off}')
    e('s_mov_b64 exec, 1')
    e('buffer_store_dwordx2 v[38:39], v36, s[20:23], s30 offen sc1')
    e('s_mov_b64 exec, -1')
def hiter(name, fm, sa=(), sc_=(), flag0=None, flag1=None, chk=None):
    if chk is not None: poll_issue(chk)
    for g_ in sa:
        for x in g_: e(x)
    hbar()
    if fm: snapr()
    D2 = dma_list(2)
    mix(D2[:ND0], [])
    e(f's_waitcnt vmcnt({ND0 + len(sa)})')
    if chk is not None:
        def f():
            poll_check()
            e(f's_cbranch_scc0 L_o4c{name}')
            poll(chk, name)
        only4('c'+name, f)
    hbar()
    if flag0 is not None: hflag(flag0)
    mix(D2[ND0:] + dma_list(0), fm[:40])
    e('s_waitcnt vmcnt(13)')
    hbar()
    if flag1 is not None: hflag(flag1)
    mix(list(sc_) + dma_list(1), fm[40:])
    if fm:
        for k in range(15): e(f's_mov_b32 s{40+k}, s{43+k}')
    e(f's_waitcnt vmcnt({13 + len(sc_) + (1 if flag1 is not None else 0)})')
    hbar()
ST = [pst(b, pm) for pm in range(5) for b in range(4)]
hiter('0', [], sa=ST[0:4], sc_=ST[4:8], flag1=2048)
hiter('1', FM1, sa=ST[8:12], sc_=ST[12:16], flag0=4096, chk=2048)
hiter('2', FM, sa=ST[16:20], flag0=6144, chk=4096)
hiter('3', FM, flag0=8192, chk=6144)
hiter('4', FM)
hiter('5', FM, chk=8192)
c('---- last product')
if opt['sw'] == 4: stamp(6)
hbar()
snapr()
F0 = opt['f0']
D2 = dma_list(2)
mix(D2[:ND0], FM[:F0])
e(f's_waitcnt vmcnt({ND0})')
hbar()
WD = []
for k in range(12):
    WD.append([f's_add_u32 m0, s61, {(k//4)*4096}', 's_nop 0', f'buffer_load_dwordx4 v3, s[20:23], s60 offen offset:{(k%4)*1024} sc1 lds'] + (['s_add_u32 s60, s60, 4096'] if k % 4 == 3 else []))
e('s_mul_i32 s61, s24, 12288')
e(f's_add_u32 s60, s61, {WO_OFF}')
mix(D2[ND0:] + WD, FM[F0:])
gate_consts()
e('s_mov_b32 s63, s62')
nst = [0]
def hgate(n0, n1):
    for n in range(n0, n1):
        t, i = divmod(n, 3)
        for x in gate(Y(i, t), 184 + 4*(n % 2), 200 + n, 48): e(x)
        if n % 4 == 3:
            e(f'buffer_store_dwordx4 v[{200+n-3}:{200+n}], v3, s[20:23], s63 offen sc1')
            e('s_add_u32 s63, s63, 18432'); nst[0] += 1
        if n == 26:
            e('buffer_store_dwordx3 v[224:226], v3, s[20:23], s63 offen sc1'); nst[0] += 1
g1 = opt['g1']; g2 = min(27, g1 + opt['g2'])
hgate(0, g1)
e(f's_waitcnt vmcnt({nst[0]+12})')
hbar()
hgate(g1, g2)
hbar()
hgate(g2, 27)
if opt['bst']:
    e('s_memtime s[64:65]')
    e('s_waitcnt lgkmcnt(0)')
    e('s_mov_b32 m0, s68'); e('s_nop 0')
    e('v_writelane_b32 v14, s64, m0')
    e('v_writelane_b32 v15, s64, m0')
    e('s_cmp_lg_u32 s26, 4')
    e('s_cbranch_scc1 L_fin')
    e('s_mov_b32 s22, 0x10000000')
    e('s_lshl_b32 s33, s2, 9')
    e(f's_add_u32 s33, s33, {STAMP_OFF + (128<<10)*4}')
    e('v_lshrrev_b32 v1, 1, v3')
    e('buffer_store_dwordx2 v[14:15], v1, s[20:23], s33 offen')
lab('L_fin')
e('s_setprio 0')
e('s_load_dwordx2 s[6:7], s[0:1], 24')
stamp(7)
e('v_and_b32 v2, 63, v0')
e('v_lshlrev_b32 v3, 4, v2')
e('v_mov_b32 v37, 0')
e('s_lshl_b32 s40, s27, 1')
e('s_lshr_b32 s41, s26, 2')
e('s_add_u32 s40, s40, s41')
e('s_mul_i32 s30, s40, 7282')
e('s_lshr_b32 s30, s30, 16')
e('s_mul_i32 s31, s30, 9')
e('s_sub_u32 s31, s40, s31')
e('s_mul_i32 s32, s30, 4682')
e('s_lshr_b32 s32, s32, 16')
e('s_mul_i32 s33, s32, 14')
e('s_sub_u32 s33, s30, s33')
e('s_lshr_b32 s37, s32, 1')
e('s_and_b32 s38, s32, 1')
e('s_mul_i32 s37, s37, 4608000')
e('s_waitcnt lgkmcnt(0)')
e('s_add_u32 s6, s6, s37'); e('s_addc_u32 s7, s7, 0')
srd(16, 6, 7, 4608000)
e('s_mul_i32 s39, s33, 1152')
e('s_add_u32 s39, s39, s38')
e('s_add_u32 s39, s39, 6')
e('s_lshl_b32 s45, s31, 2')
e('s_add_u32 s45, s45, s24')
e('s_mul_i32 s42, s45, 171')
e('s_lshr_b32 s42, s42, 9')
e('s_mul_i32 s43, s42, 3')
e('s_sub_u32 s43, s45, s43')
e('s_sub_u32 s44, s45, 28')
e('s_cmp_ge_u32 s45, 27')
e('s_cselect_b32 s42, s44, s42')
e('s_cselect_b32 s43, 3, s43')
e('s_cmp_eq_u32 s45, 27')
e('s_cselect_b32 s42, 8, s42')
e('s_lshl_b32 s42, s42, 3')
e('s_lshl_b32 s43, s43, 1')
e('s_add_u32 s42, s42, s39')
e('s_sub_u32 s42, s42, s43')
e('s_mul_i32 s45, s42, 288')
e('v_lshrrev_b32 v7, 4, v2')
e(f'v_mul_u32_u24 v7, {4*72*288}, v7')
e('v_add_u32 v7, s45, v7')
e('v_and_b32 v8, 15, v2')
e('v_lshl_add_u32 v11, v8, 1, v7')
e('v_lshl_add_u32 v10, v8, 4, v7')
e('s_mul_i32 s46, s27, 36864')
e('s_lshl_b32 s47, s26, 10')
e('s_add_u32 s46, s46, s47')
e(f's_add_u32 s46, s46, {Z_OFF}')
e('s_mul_i32 s48, s41, 18432')
e('s_lshl_b32 s49, s24, 2')
e('s_add_u32 s48, s48, s49')
e(f's_add_u32 s48, s48, {SLOT}')
e('v_add_u32 v4, s48, v3')
e('v_mov_b32 v34, 0')
e('v_mov_b32 v35, 0')
e('s_waitcnt vmcnt(0)')
e('s_barrier')
stamp(8)
e('s_cmp_lg_u32 s26, 4')
e('s_cbranch_scc1 L_e2')
e('s_lshl_b32 s50, s28, 7')
e(f's_add_u32 s50, s50, {FLAG_OFF+10240}')
setflag(['s_lshl_b32 s30, s29, 3', 's_add_u32 s30, s30, s50'])
e('v_min_u32 v5, 8, v2')
e('v_lshlrev_b32 v5, 3, v5')
e('s_mov_b32 s51, 0')
lab('L_zpoll')
e('buffer_load_dwordx2 v[230:231], v5, s[20:23], s50 offen sc1')
e('s_add_u32 s51, s51, 1')
e('s_cmp_gt_u32 s51, 20000')
e('s_cbranch_scc1 L_e2')
e('s_waitcnt vmcnt(0)')
e('v_cmp_ne_u64 vcc, s[92:93], v[230:231]')
e('s_cbranch_vccz L_e2')
e('s_sleep 1')
e('s_branch L_zpoll')
lab('L_e2')
e('s_barrier')
stamp(9)
for i in range(5):
    if i == 4:
        e('s_cmp_ge_u32 s26, 4')
        e('s_cbranch_scc1 L_e3')
    e(f's_add_u32 m0, s47, {SLOT + i*8192}')
    e('s_nop 0')
    e('buffer_load_dwordx4 v3, s[20:23], s46 offen sc1 lds')
    if i < 4: e('s_add_u32 s46, s46, 8192')
lab('L_e3')
def bf(f): return vr(40 + 4*(f % 14))
PF = 12
for f in range(PF): e(f'ds_read_b128 {bf(f)}, v3 offset:{f*1024}')
e('s_waitcnt vmcnt(0)')
e('s_barrier')
stamp(10)
e('s_waitcnt lgkmcnt(0)')
for J in range(18):
    e(f'ds_read_b32 v{16+J}, v4 offset:{J*1024}')
    if J == 11: e('s_waitcnt lgkmcnt(4)')
e('s_waitcnt lgkmcnt(0)')
for f in range(45):
    T, ks = divmod(f, 5)
    if f >= PF: e(f's_waitcnt lgkmcnt({min(PF-1, 44-f)})')
    r = 100 + 4*T
    cin = '0' if ks == 0 else vr(r)
    e(f'v_mfma_f32_16x16x32_bf16 {vr(r)}, v[{16+4*ks}:{16+4*ks+3}], {bf(f)}, {cin}')
    if f+PF < 45: e(f'ds_read_b128 {bf(f+PF)}, v3 offset:{(f+PF)*1024}')
e('s_nop 7')
e('s_nop 1')
for r in range(4):
    d = 140 + 6*r
    A = lambda T: 100 + 4*T + r
    for h in range(4): e(f'v_cvt_pk_bf16_f32 v{d+h}, v{A(2*h)}, v{A(2*h+1)}')
    e(f'v_cvt_pk_bf16_f32 v{d+4}, v{A(8)}, v{A(8)}')
    e(f'buffer_store_dwordx4 v[{d}:{d+3}], v10, s[16:19], 0 offen')
    e(f'buffer_store_short v{d+4}, v11, s[16:19], 0 offen offset:256')
    if r < 3:
        e(f'v_add_u32 v10, {72*288}, v10')
        e(f'v_add_u32 v11, {72*288}, v11')
if opt['stamps']:
    e('s_waitcnt vmcnt(0)')
    stamp(11)
    e('s_waitcnt lgkmcnt(0)')
    e(f's_cmp_lg_u32 s26, {opt["sw"]}')
    e('s_cbranch_scc1 L_end')
    if opt['dbgst']:
        e(f's_cmp_lg_u32 s2, {opt["dbgst"]}')
        e('s_cbranch_scc1 L_end')
        e('s_load_dwordx2 s[56:57], s[0:1], 32')
        e('s_waitcnt lgkmcnt(0)')
        srd(16, 56, 57, 256)
        e('v_mov_b32 v1, 0')
        for i in range(1, 12):
            e(f's_sub_u32 s33, s{64+2*i}, s64')
            e('v_mov_b32 v4, s33')
            e(f'buffer_store_dword v4, v1, s[16:19], 0 offen offset:{4+4*i}')
        e('s_sub_u32 s33, s94, s90')
        e('v_mov_b32 v4, s33')
        e('buffer_store_dword v4, v1, s[16:19], 0 offen offset:56')
        e('s_branch L_end')
    e('s_mov_b32 s22, 0x10000000')
    e('s_lshl_b32 s33, s2, 7')
    e(f's_add_u32 s33, s33, {STAMP_OFF}')
    e('v_mov_b32 v1, s33')
    for i in range(6):
        for k in range(4): e(f'v_mov_b32 v{4+k}, s{64+4*i+k}')
        e(f'buffer_store_dwordx4 v[4:7], v1, s[20:23], 0 offen offset:{16*i}')
        e('s_nop 1')
lab('L_end')
e('s_endpgm')
tail = f"""
.section .rodata,"a"
.p2align 6
.amdhsa_kernel {NAME}_kernel
  .amdhsa_next_free_vgpr 256
  .amdhsa_next_free_sgpr 100
  .amdhsa_accum_offset 256
  .amdhsa_group_segment_fixed_size 0
  .amdhsa_kernarg_size 48
  .amdhsa_user_sgpr_count 2
  .amdhsa_user_sgpr_kernarg_segment_ptr 1
  .amdhsa_system_sgpr_workgroup_id_x 1
.end_amdhsa_kernel
"""
open(sys.argv[1], 'w').write(hdr + '\n'.join(out) + '\n' + tail)
```

```python
import sys, struct
import numpy as np
from f44 import matrices, PTS
NAME = 'standalone__autoregressive_conv_wavenet__speech'
opt = dict(stamps=0, LA=24, smallfix=1, ldf=0, QS=34, prio=1, g1=5, g2=7, bst=0, nd0=7, wsp=5, f0=30, slp=1, cpf=1, sw=4, dly=0, pf=0, early=1, dbgst=0, rep=1, rstr=4352, pre=0, shr=1, agg=1, gslp=2, es=0, word=1, skx=0, skw=0)
for a in sys.argv[2:]:
    k, v = a.split('='); assert k in opt, k; opt[k] = int(v)
out = []
def e(s): out.append('    ' + s)
def lab(s): out.append(s + ':')
def c(s): out.append('    ; ' + s)
def fh(x): return '0x%08x' % struct.unpack('<I', struct.pack('<f', float(x)))[0]
AT, G, BT = matrices()
GS = G.copy()
for m in range(6): GS[m] *= PTS[m]**3
CH = np.zeros((3, 7))
for i in range(3):
    for m in range(6): CH[i][m] = PTS[m]**(i-3)
DCH = CH[:, :6] - CH[:, 1:7]
LOG2E = 1.4426950408889634
LDF = {0: '', 1: ' nt'}[opt['ldf']]
PRF = {1: ' sc1', 2: '', 3: ' sc0 sc1'}.get(opt['pre'], '')
PF_ = {0: ' sc1', 1: ' sc0 sc1', 2: ' sc1 nt', 3: ' sc0 sc1 nt'}[opt['pf']]
XROWS = 2032
XS = XROWS*96
U_BYTES = 4*21*XS
WT_OFF = U_BYTES
WT_BYTES = 9*21*24576
WO_OFF = WT_OFF + WT_BYTES
Z_OFF = WO_OFF + 48*1024
Z_BYTES = 28*2*9*18*1024
FLAG_OFF = Z_OFF + Z_BYTES
REP = opt['rep']; RSTR = opt['rstr']; FA = REP*RSTR
ZFL = 5*FA
GOF = ZFL + 4096
WS_USED = FLAG_OFF + GOF + 8*4352
STAMP_OFF = 268435456 - (1 << 20)
SLOT = 53248
XL = 2*SLOT + 8192
WL = SLOT
LDS_MAIN = 3*SLOT
OOB = 0x7f000000
hdr = f"""; Kernarg layout for this problem (48 bytes, ptrs only, base s[0:1]):
; @launch grid=(252,1,1) block=(512,1,1) lds={LDS_MAIN}
.amdgcn_target "amdgcn-amd-amdhsa--gfx950"
.text
.globl {NAME}_kernel
.p2align 8
.type {NAME}_kernel,@function
{NAME}_kernel:
"""
def srd(d, lo, hi, nbytes):
    e(f's_mov_b32 s{d}, s{lo}')
    e(f's_and_b32 s{d+1}, s{hi}, 0xffff')
    e(f's_mov_b32 s{d+2}, {nbytes}')
    e(f's_mov_b32 s{d+3}, 0x00020000')
def vp(r): return f'v[{r}:{r+1}]'
def vr(r): return f'v[{r}:{r+3}]'
def pkfma(d, sc, a, b, nega=False):
    neg = ' neg_lo:[0,1,0] neg_hi:[0,1,0]' if nega else ''
    e(f'v_pk_fma_f32 {vp(d)}, s[{sc}:{sc+1}], {vp(a)}, {vp(b)}{neg}')
def pkadd(d, a, b, negb=False):
    neg = ' neg_lo:[0,1] neg_hi:[0,1]' if negb else ''
    e(f'v_pk_add_f32 {vp(d)}, {vp(a)}, {vp(b)}{neg}')
def sconst2(s, x):
    e(f's_mov_b32 s{s}, {fh(x)}'); e(f's_mov_b32 s{s+1}, {fh(x)}')
def stamp(i):
    if opt['stamps']: e(f's_memrealtime s[{64+2*i}:{65+2*i}]')
def PK(b, pm):
    n = pm*4 + b
    return 184 + 4*n if n < 18 else 16 + 4*(n-18)
PA = lambda b: 32 + b
PT = 24

def gettag(name):
    lab(f'L_tag{name}')
    e('buffer_load_dwordx2 v[24:25], v37, s[16:19], 0 offen sc1')
    e('s_add_u32 s31, s31, 1')
    e('s_cmp_gt_u32 s31, 30000')
    e(f's_cbranch_scc1 L_tagd{name}')
    e('s_waitcnt vmcnt(0)')
    e('v_readfirstlane_b32 s92, v24')
    e('v_readfirstlane_b32 s93, v25')
    e('s_nop 3')
    e('s_cmp_eq_u32 s92, 0')
    e(f's_cbranch_scc1 L_tag{name}')
    lab(f'L_tagd{name}')
def setflag(pre):
    for x in pre: e(x)
    e('v_mov_b32 v38, s92')
    e('v_mov_b32 v39, s93')
    e('s_mov_b64 exec, 1')
    e('buffer_store_dwordx2 v[38:39], v37, s[20:23], s30 offen sc1')
    e('s_mov_b64 exec, -1')
def poll_issue(off):
    e(f's_mov_b32 s30, {FLAG_OFF+off}')
    e(f'buffer_load_dwordx4 {vr(PT)}, v36, s[20:23], s30 offen{PF_}')
    e(f'buffer_load_dwordx4 {vr(PT+4)}, v36, s[20:23], s30 offen offset:16{PF_}')
def poll_check():
    e(f'v_cmp_ne_u64 vcc, s[92:93], {vp(PT)}')
    for k in range(1, 4):
        e(f'v_cmp_ne_u64 s[88:89], s[92:93], {vp(PT+2*k)}')
        e('s_or_b64 vcc, vcc, s[88:89]')
def poll(off, name):
    e('s_mov_b32 s31, 0')
    lab(f'L_poll{name}')
    poll_issue(off)
    e('s_add_u32 s31, s31, 1')
    e('s_cmp_gt_u32 s31, 20000')
    e(f's_cbranch_scc1 L_pdone{name}')
    e('s_waitcnt vmcnt(0)')
    poll_check()
    e(f's_cbranch_scc0 L_pdone{name}')
    if opt['shr']: e('s_mov_b64 exec, vcc')
    e(f's_sleep {opt["slp"]}')
    e(f's_branch L_poll{name}')
    lab(f'L_pdone{name}')
    if opt['shr']: e('s_mov_b64 exec, -1')

e('s_cmp_ge_u32 s2, 252')
e('s_cbranch_scc1 L_end')
if opt['stamps']:
    for i in range(24): e(f's_mov_b32 s{64+i}, 0')
stamp(0)
e('s_load_dwordx4 s[4:7], s[0:1], 0')
e('s_load_dwordx2 s[8:9], s[0:1], 16')
e('s_load_dwordx4 s[56:59], s[0:1], 32')
e('v_lshrrev_b32 v1, 6, v0')
e('v_and_b32 v2, 63, v0')
e('v_readfirstlane_b32 s26, v1')
if opt['cpf']:
    c('pull the kernel code towards L2 first (1 KB per participating wave)')
    e('s_getpc_b64 s[44:45]')
    lab('L_pc')
    if opt['cpf'] == 1:
        e('s_lshl_b32 s42, s2, 10')
        e('s_and_b32 s42, s42, 0x6000')
        e('v_lshlrev_b32 v102, 4, v0')
    elif opt['cpf'] == 2:
        e('s_lshl_b32 s42, s2, 7')
        e('s_and_b32 s42, s42, 0x7c00')
        e('v_lshlrev_b32 v102, 4, v2')
        e('v_lshl_add_u32 v102, v1, 20, v102')
    else:
        e('s_lshl_b32 s42, s2, 8')
        e('s_and_b32 s42, s42, 0x7800')
        e('v_lshlrev_b32 v102, 4, v0')
        e('v_lshrrev_b32 v103, 1, v1')
        e('v_lshl_add_u32 v102, v103, 20, v102')
    e('s_and_b32 s45, s45, 0xffff')
    e('s_mov_b32 s46, L_end-L_pc')
    e('s_mov_b32 s47, 0x00020000')
    e(f'buffer_load_dwordx4 {vr(180)}, v102, s[44:47], s42 offen')
else: e('s_nop 1')
def common():
    srd(20, 58, 59, WS_USED)
    srd(16, 56, 57, 256)
    e('s_mov_b32 s33, 0xffff0000')
    e('v_mov_b32 v37, 0')
    for b in range(4): e(f'v_mov_b32 v{PA(b)}, {OOB}')
    for b in range(4): e(f's_mov_b32 s{96+b}, {3*XS}')
    e('s_mov_b32 s31, 0')
    e('s_mov_b32 s92, 0')
    e('s_mov_b32 s93, 0')
    e('s_cmp_ge_u32 s2, 125')
    e(f's_cselect_b32 s50, {2*21*XS - 125*1536}, 0')
    e('s_mul_i32 s51, s2, 1536')
    e('s_add_u32 s50, s50, 768')
    e('s_add_u32 s50, s50, s51')
    e(f's_add_u32 s51, s50, {3*XS}')
    e(f's_mov_b32 s35, {XL+64}')
e('s_lshr_b32 s28, s26, 1')
e('s_cmp_eq_u32 s28, 2')
e('s_cbranch_scc1 Lp_w')
def xaddr(su, va, vd):
    e(f's_lshl_b32 s28, s{su}, 6')
    e('v_add_u32 v3, s28, v2')
    e('v_mul_u32_u24 v4, 683, v3')
    e('v_lshrrev_b32 v4, 16, v4')
    e('v_mul_u32_u24 v5, 96, v4')
    e('v_sub_u32 v3, v3, v5')
    e(f'v_mul_u32_u24 v{va}, 43, v3')
    e(f'v_lshrrev_b32 v{va}, 8, v{va}')
    e(f'v_mul_u32_u24 v{va}, {2304-96}, v{va}')
    e(f'v_lshl_add_u32 v{va}, v3, 4, v{va}')
    e(f'v_add3_u32 v{va}, v{va}, v5, s35')
    e('v_cmp_le_u32 vcc, 3, v4')
    e(f'v_mul_u32_u24 v{vd}, {XS}, v4')
    e(f'v_mov_b32 v5, {18*XS}')
    e(f'v_lshl_add_u32 v{vd}, v3, 4, v{vd}')
    e('v_cndmask_b32 v5, 0, v5, vcc')
    e(f'v_add_u32 v{vd}, v{vd}, v5')
def xpair(va, vd):
    for s in range(6): e(f'ds_read_b128 {vr(120+4*s)}, v{va} offset:{(12-2*s)*288}')
    for dw in range(4):
        for s in range(6):
            if dw == 0: e(f's_waitcnt lgkmcnt({5-s})')
            e(f'v_lshlrev_b32 v{148+2*s}, 16, v{120+4*s+dw}')
            e(f'v_and_b32 v{149+2*s}, s33, v{120+4*s+dw}')
        D = lambda s: 148+2*s
        pkfma(162, 46, D(2), D(4))
        pkfma(164, 46, D(3), D(5))
        pkfma(162, 44, D(0), 162)
        pkfma(164, 44, D(1), 164)
        pkfma(166, 48, 162, 164)
        pkfma(168, 48, 162, 164, nega=True)
        e(f'v_cvt_pk_bf16_f32 v{172+dw}, v166, v167')
        e(f'v_cvt_pk_bf16_f32 v{176+dw}, v168, v169')
    e(f'buffer_store_dwordx4 v[172:175], v{vd}, s[20:23], s50 offen sc1')
    e(f'buffer_store_dwordx4 v[176:179], v{vd}, s[20:23], s51 offen sc1')
def xrest(va, b):
    for s in range(7): e(f'ds_read_b128 {vr(120+4*s)}, v{va} offset:{(12-2*s)*288}')
    for dw in range(4):
        for s in range(7):
            if dw == 0: e(f's_waitcnt lgkmcnt({6-s})')
            e(f'v_lshlrev_b32 v{148+2*s}, 16, v{120+4*s+dw}')
            e(f'v_and_b32 v{149+2*s}, s33, v{120+4*s+dw}')
        D = lambda s: 148+2*s
        for t in range(2):
            q0, q1, aa = 36+6*t, 38+6*t, 40+6*t
            pkfma(162, q1, D(2), D(4))
            pkfma(164, q1, D(3), D(5))
            pkfma(162, q0, D(0), 162)
            pkfma(164, q0, D(1), 164)
            pkfma(166, aa, 162, 164)
            pkfma(168, aa, 162, 164, nega=True)
            e(f'v_cvt_pk_bf16_f32 v{PK(b,2*t)+dw}, v166, v167')
            e(f'v_cvt_pk_bf16_f32 v{PK(b,2*t+1)+dw}, v168, v169')
        pkfma(162, 54, D(4), D(6))
        pkfma(162, 52, D(2), 162)
        pkfma(162, 48, D(0), 162)
        e(f'v_cvt_pk_bf16_f32 v{PK(b,4)+dw}, v162, v163')
for t in range(3):
    a = PTS[2*t]; q0 = BT[2*t][1]; q1 = BT[2*t][3]
    assert abs(BT[2*t][0] - a*q0) < 1e-12 and abs(BT[2*t][2] - a*q1) < 1e-12 and abs(BT[2*t][4]-a) < 1e-12
e('s_sub_u32 s27, s26, 2')
e('s_cmp_lt_u32 s26, 4')
e('s_cselect_b32 s27, s26, s27')
e('s_cmp_ge_u32 s2, 250')
e('s_cbranch_scc1 Lp_zero')
e('s_cmp_ge_u32 s2, 125')
e('s_cselect_b32 s24, 4608000, 0')
e('s_mul_i32 s28, s2, 36864')
e('s_sub_u32 s28, s28, s24')
e('s_sub_u32 s28, s28, 1792')
e('s_lshl_b32 s29, s27, 10')
e('s_add_u32 s28, s28, s29')
e('v_lshlrev_b32 v6, 4, v2')
e('v_add_u32 v6, s28, v6')
e(f's_mov_b32 s14, {0 if opt["skx"] else 4608000}')
e('s_mov_b32 s15, 0x00020000')
e(f's_add_u32 m0, s29, {XL}')
e('s_waitcnt lgkmcnt(0)')
e('s_add_u32 s12, s4, s24'); e('s_addc_u32 s13, s5, 0')
e('s_and_b32 s13, s13, 0xffff')
for i in range(7):
    if i == 6:
        e('s_cmp_ge_u32 s27, 2')
        e('s_cbranch_scc1 Lp_xl')
    e(f'buffer_load_dwordx4 v6, s[12:15], 0 offen{LDF} lds')
    if i < 6:
        e(f's_add_u32 m0, s29, {XL + (i+1)*6144}')
        e('v_add_u32 v6, 6144, v6')
lab('Lp_xl')
common()
e('s_add_u32 s28, s2, s26')
e('s_cmp_lg_u32 s28, 0')
e('s_cbranch_scc1 Lp_x0')
c('WG 0 wave 0 publishes the launch tag in d_debug')
e('s_memrealtime s[92:93]')
e('s_waitcnt lgkmcnt(0)')
e('s_or_b32 s92, s92, 1')
e('v_mov_b32 v38, s92')
e('v_mov_b32 v39, s93')
e('s_mov_b64 exec, 1')
e('buffer_store_dwordx2 v[38:39], v37, s[16:19], 0 offen sc1')
e('s_mov_b64 exec, -1')
lab('Lp_x0')
c('pass-1 units: wave0:8 wave1:4,5 wave2:0,1 wave3:2,3 wave6:6 wave7:7')
e('s_lshl_b32 s28, s26, 2')
e('s_lshr_b32 s30, 0x76002048, s28')
e('s_and_b32 s30, s30, 15')
xaddr(30, 6, 7)
e('s_add_u32 s30, s30, 1')
xaddr(30, 14, 15)
sconst2(44, BT[0][1]); sconst2(46, BT[0][3]); sconst2(48, PTS[0])
stamp(7)
e('s_waitcnt vmcnt(0)')
stamp(8)
e('s_barrier')
stamp(1)
e('s_cmp_lg_u32 s26, 0')
e('s_cbranch_scc1 Lp_x1')
e('buffer_load_dwordx2 v[24:25], v37, s[16:19], 0 offen sc1')
lab('Lp_x1')
xpair(6, 7)
e('s_bitcmp1_b32 0x0e, s26')
e('s_cbranch_scc0 Lp_x2')
xpair(14, 15)
lab('Lp_x2')
e('s_cmp_ge_u32 s26, 4')
e('s_cbranch_scc1 Lp_h67')
lab('Lp_s2')
e(f'v_mul_u32_u24 v9, {RSTR}, v2')
e('s_lshl_b32 s30, s2, 3')
e(f's_add_u32 s30, s30, {FLAG_OFF}')
e('s_cmp_lg_u32 s26, 0')
e('s_cbranch_scc1 Lp_s2b')
e('s_cmp_ge_u32 s2, 250')
e('s_cbranch_scc1 L_taga')
e('s_waitcnt vmcnt(2)')
e('v_readfirstlane_b32 s92, v24')
e('v_readfirstlane_b32 s93, v25')
e('s_nop 3')
e('s_cmp_lg_u32 s92, 0')
e('s_cbranch_scc1 L_tagda')
gettag('a')
e('v_mov_b32 v38, s92')
e('v_mov_b32 v39, s93')
lab('Lp_s2b')
e('s_waitcnt vmcnt(0)')
e('s_barrier')
e('s_cmp_lg_u32 s26, 0')
e('s_cbranch_scc1 L_pdone')
e(f's_mov_b64 exec, {(1<<REP)-1}')
e('buffer_store_dwordx2 v[38:39], v9, s[20:23], s30 offen sc1')
e('s_mov_b64 exec, -1')
stamp(2)
e('s_branch L_pdone')
def xcoef2():
    for t in (1, 2):
        sconst2(36+6*(t-1), BT[2*t][1]); sconst2(38+6*(t-1), BT[2*t][3]); sconst2(40+6*(t-1), PTS[2*t])
    sconst2(48, BT[6][0]); sconst2(52, BT[6][2]); sconst2(54, BT[6][4])
    e(f's_add_u32 s34, s50, {6*XS}')
lab('Lp_h67')
c('waves 6,7 pass 2: own unit (block 1), then units 2(w-6), 2(w-6)+1 (blocks 2,3)')
xcoef2()
e(f'v_add_u32 v{PA(1)}, s34, v7')
if opt['early']: xrest(6, 1)
e('s_waitcnt vmcnt(0)')
e('s_barrier')
if not opt['early']: xrest(6, 1)
e('s_sub_u32 s30, s26, 6')
e('s_lshl_b32 s30, s30, 1')
lab('Lp_x23')
xaddr(30, 6, 7)
e(f'v_add_u32 v{PA(2)}, s34, v7')
xrest(6, 2)
e('s_add_u32 s30, s30, 1')
lab('Lp_x3')
xaddr(30, 6, 7)
e(f'v_add_u32 v{PA(3)}, s34, v7')
xrest(6, 3)
e('s_branch L_pdone')
lab('Lp_zero')
c('WGs 250,251: zero the 8 leading rows of the 42 arrays of batch b')
e('s_waitcnt lgkmcnt(0)')
common()
e('s_sub_u32 s3, s2, 250')
e(f's_mul_i32 s30, s3, {2*21*XS}')
e('s_lshl_b32 s28, s27, 6')
e('v_add_u32 v3, s28, v2')
for k in range(4): e(f'v_mov_b32 v{16+k}, 0')
for i in range(6):
    e('v_mul_u32_u24 v4, 1366, v3')
    e('v_lshrrev_b32 v4, 16, v4')
    e('v_mul_u32_u24 v5, 48, v4')
    e('v_sub_u32 v5, v3, v5')
    e(f'v_mul_u32_u24 v4, {XS}, v4')
    e('v_lshl_add_u32 v4, v5, 4, v4')
    e('v_cmp_gt_u32 vcc, 2016, v3')
    e(f'v_mov_b32 v5, {OOB}')
    e('v_add_u32 v3, 384, v3')
    e('v_cndmask_b32 v4, v5, v4, vcc')
    e('buffer_store_dwordx4 v[16:19], v4, s[20:23], s30 offen sc1')
e('s_barrier')
e('s_branch Lp_s2')
lab('Lp_w')
e('s_and_b32 s27, s26, 1')
c('w unit: XCD x = id&7 owns a contiguous range of units; local i = id>>3 < 9 takes two')
e('s_and_b32 s28, s2, 7')
e('s_lshr_b32 s29, s2, 3')
e('s_mul_i32 s3, s28, 40')
e('s_min_u32 s30, s28, 4')
e('s_add_u32 s3, s3, s30')
e('s_add_u32 s3, s3, s29')
e('s_min_u32 s30, s29, 9')
e('s_add_u32 s3, s3, s30')
e('s_add_u32 s3, s3, s27')
e('s_mul_i32 s30, s27, s29')
e('s_cmp_ge_u32 s30, 9')
e('s_cbranch_scc1 Lp_wo')
def posdec(P, ko, pos, kk, o, tmp):
    e(f'v_mul_u32_u24 v{ko}, 58255, v{P}')
    e(f'v_lshrrev_b32 v{ko}, 22, v{ko}')
    e(f'v_mul_u32_u24 v{tmp}, 72, v{ko}')
    e(f'v_sub_u32 v{pos}, v{P}, v{tmp}')
    e(f'v_mul_u32_u24 v{kk}, 3641, v{ko}')
    e(f'v_lshrrev_b32 v{kk}, 16, v{kk}')
    e(f'v_mul_u32_u24 v{tmp}, 18, v{kk}')
    e(f'v_sub_u32 v{o}, v{ko}, v{tmp}')
G_ = lambda r, ch: 40+2*(8*r+ch)
e('s_lshl_b32 s28, s3, 5')
e('v_and_b32 v3, 31, v2')
e('v_add_u32 v4, s28, v3')
posdec(4, 5, 6, 7, 8, 9)
e(f'v_mul_u32_u24 v7, {4*82944}, v7')
e('v_mul_u32_u24 v8, 4608, v8')
e('v_lshrrev_b32 v9, 5, v2')
e('v_mul_u32_u24 v10, 288, v9')
e('v_add3_u32 v7, v7, v8, v10')
e('v_lshl_add_u32 v6, v6, 2, v7')
e('s_waitcnt lgkmcnt(0)')
srd(12, 6, 7, 0 if opt['skw'] else 31*144*288*2)
if opt['word']:
    for r in range(1, 4): e(f's_mov_b32 s{36+r}, {82944*r}')
    for ch in range(8):
        for r in range(4):
            e(f'buffer_load_dword v{G_(r,ch)+1}, v6, s[12:15], {"s%d" % (36+r) if r else 0} offen offset:{ch*576}{LDF}')
else:
  for r in range(4):
    for ch in range(8):
        e(f'buffer_load_dword v{G_(r,ch)+1}, v6, s[12:15], 0 offen offset:{ch*576}{LDF}')
    if r < 3: e('v_add_u32 v6, 82944, v6')
stamp(7)
common()
e('s_lshl_b32 s29, s27, 14')
e(f's_add_u32 s29, s29, {WL}')
e('v_lshlrev_b32 v10, 6, v3')
e('v_lshl_add_u32 v10, v9, 5, v10')
e('v_add_u32 v10, s29, v10')
e('v_lshlrev_b32 v11, 4, v2')
e('v_add_u32 v11, s29, v11')
for h in range(2):
    e('v_lshrrev_b32 v4, 2, v2')
    e(f'v_add3_u32 v4, v4, s28, {16*h}')
    posdec(4, 5, 6, 7, 8, 9)
    e('v_mul_u32_u24 v4, 43, v8')
    e('v_lshrrev_b32 v4, 8, v4')
    e('v_mul_u32_u24 v5, 6, v4')
    e('v_sub_u32 v5, v8, v5')
    e('v_lshrrev_b32 v8, 1, v7')
    e('v_add_u32 v8, 8, v8')
    e('v_and_b32 v9, 1, v7')
    e('v_lshl_add_u32 v9, v9, 1, v5')
    e('v_subrev_u32 v9, 4, v9')
    e('v_cmp_le_u32 vcc, 4, v5')
    e('v_mul_u32_u24 v4, 24576, v4')
    e('v_lshrrev_b32 v14, 3, v6')
    e('v_cndmask_b32 v8, v7, v8, vcc')
    e('v_cndmask_b32 v9, v5, v9, vcc')
    e(f'v_mul_u32_u24 v14, {21*24576}, v14')
    e('v_bfe_u32 v15, v6, 2, 1')
    e('v_mul_u32_u24 v15, 12288, v15')
    e(f'v_add3_u32 v{12+h}, v4, v14, v15')
    e(f'v_lshl_add_u32 v{12+h}, v8, 10, v{12+h}')
    e(f'v_lshl_add_u32 v{12+h}, v9, 8, v{12+h}')
    e('v_and_b32 v4, 3, v6')
    e(f'v_lshl_add_u32 v{12+h}, v4, 6, v{12+h}')
    e('v_and_b32 v4, 3, v2')
    e(f'v_lshl_add_u32 v{12+h}, v4, 4, v{12+h}')
def wcoef(t):
    for r in range(4):
        assert abs(GS[2*t+1][r] - (1 if r % 2 == 0 else -1)*GS[2*t][r]) < 1e-12
        e(f'v_mul_f32 v{160+2*r}, {fh(GS[2*t][r])}, v14')
        e(f'v_mov_b32 v{161+2*r}, v{160+2*r}')
e(f's_mov_b32 s34, {WT_OFF}')
e('v_cmp_le_u32 vcc, 32, v2')
e(f'v_mov_b32 v14, {fh(-2*LOG2E)}')
e(f'v_mov_b32 v15, {fh(-LOG2E)}')
e('v_cndmask_b32 v14, v14, v15, vcc')
e('v_mov_b32 v15, v14')
wcoef(0)
stamp(8)
e('s_barrier')
stamp(1)
e('s_waitcnt vmcnt(0)')
stamp(2)
for k in range(32):
    e(f'v_lshlrev_b32 v{40+2*k}, 16, v{41+2*k}')
    e(f'v_and_b32 v{41+2*k}, s33, v{41+2*k}')
e('s_mov_b32 s53, 0')
lab('Lp_wloop')
for dw in range(4):
    for c2 in range(2):
        ch = 2*dw+c2
        E, O = 104+4*c2, 106+4*c2
        e(f'v_pk_mul_f32 {vp(E)}, {vp(160)}, {vp(G_(0,ch))}')
        e(f'v_pk_mul_f32 {vp(O)}, {vp(162)}, {vp(G_(1,ch))}')
        e(f'v_pk_fma_f32 {vp(E)}, {vp(164)}, {vp(G_(2,ch))}, {vp(E)}')
        e(f'v_pk_fma_f32 {vp(O)}, {vp(166)}, {vp(G_(3,ch))}, {vp(O)}')
        pkadd(112+4*c2, O, E)
        pkadd(114+4*c2, E, O, negb=True)
    for sgn in range(2):
        for n in range(2):
            e(f'v_cvt_pk_bf16_f32 v{120+8*sgn+4*n+dw}, v{112+2*sgn+n}, v{116+2*sgn+n}')
for sgn in range(2):
    for n in range(2):
        e(f'ds_write_b128 v10, {vr(120+8*sgn+4*n)} offset:{sgn*2048 + n*16}')
e('s_add_u32 s53, s53, 1')
e('s_waitcnt lgkmcnt(0)')
e('v_add_u32 v10, 4096, v10')
e('s_cmp_eq_u32 s53, 3')
e('s_cbranch_scc1 Lp_w3')
e('s_cmp_eq_u32 s53, 1')
e('s_cbranch_scc1 Lp_w1')
wcoef(2)
if opt['early']:
    e('s_waitcnt vmcnt(0)')
    e('s_barrier')
e('s_branch Lp_wloop')
lab('Lp_w1')
for k in range(4): e(f'ds_read_b128 {vr(136+4*k)}, v11 offset:{k*1024}')
for k in range(4):
    e(f's_waitcnt lgkmcnt({3-k})')
    e(f'buffer_store_dwordx4 {vr(136+4*k)}, v{12+k%2}, s[20:23], s34 offen sc1')
    if k % 2 == 1: e(f's_add_u32 s34, s34, {3*24576}')
wcoef(1)
if not opt['early']:
    e('s_waitcnt vmcnt(0)')
    e('s_barrier')
e('s_branch Lp_wloop')
lab('Lp_w3')
for ch in range(8): e(f'v_pk_mul_f32 {vp(G_(3,ch))}, {vp(G_(3,ch))}, v[14:15]')
for n in range(2):
    for dw in range(4):
        e(f'v_cvt_pk_bf16_f32 v{120+4*n+dw}, v{G_(3,2*dw)+n}, v{G_(3,2*dw+1)+n}')
    e(f'ds_write_b128 v10, {vr(120+4*n)} offset:{n*16}')
e('s_waitcnt lgkmcnt(0)')
for k in range(10):
    e(f'ds_read_b128 {vr(PK(k % 2, k//2))}, v11 offset:{4096 + k*1024}')
e(f'v_add_u32 v{PA(0)}, s34, v12')
e(f'v_add_u32 v{PA(1)}, s34, v13')
e(f's_mov_b32 s96, {3*24576}')
e(f's_mov_b32 s97, {3*24576}')
e('s_waitcnt lgkmcnt(0)')
lab('Lp_wx')
c('then x pass 2: wave 4: unit 8 (block 3) ; wave 5: units 4,5 (blocks 2,3)')
e('s_cmp_ge_u32 s2, 250')
e('s_cbranch_scc1 L_pdone')
xcoef2()
e('s_mov_b32 s30, 8')
e('s_cmp_eq_u32 s26, 4')
e('s_cbranch_scc1 Lp_x3')
e('s_mov_b32 s30, 4')
e('s_branch Lp_x23')
lab('Lp_wo')
e('s_waitcnt lgkmcnt(0)')
common()
e('s_sub_u32 s3, s2, 72')
e('s_cmp_ge_u32 s3, 45')
e('s_cbranch_scc1 Lp_wo2')
srd(12, 8, 9, 144*144*2)
e('s_mul_i32 s28, s3, 13108')
e('s_lshr_b32 s28, s28, 16')
e('s_mul_i32 s29, s28, 5')
e('s_sub_u32 s29, s3, s29')
e('v_and_b32 v7, 15, v2')
e('v_lshrrev_b32 v8, 4, v2')
e('s_cmp_eq_u32 s28, 8')
e('s_cselect_b32 s30, 1, 4')
e('s_cselect_b32 s34, 256, 0')
e('s_cselect_b32 s28, 0, s28')
e('s_lshl_b32 s28, s28, 1')
e('s_add_u32 s34, s34, s28')
e(f's_mul_i32 s29, s29, {32*288}')
e('s_add_u32 s34, s34, s29')
e('v_lshlrev_b32 v9, s30, v7')
e('v_mul_u32_u24 v14, 576, v8')
e('v_add3_u32 v14, v14, v9, s34')
for d in range(4):
    e(f'buffer_load_ushort v{40+2*d}, v14, s[12:15], 0 offen')
    e(f'buffer_load_ushort v{41+2*d}, v14, s[12:15], 0 offen offset:288')
    if d < 3: e('v_add_u32 v14, 2304, v14')
e('s_lshl_b32 s3, s3, 10')
e(f's_add_u32 s3, s3, {WO_OFF}')
e('v_lshlrev_b32 v1, 4, v2')
e('s_barrier')
e('s_waitcnt vmcnt(0)')
for d in range(4):
    e(f'v_lshl_or_b32 v{48+d}, v{41+2*d}, 16, v{40+2*d}')
e('buffer_store_dwordx4 v[48:51], v1, s[20:23], s3 offen sc1')
e('s_waitcnt vmcnt(0)')
e('s_barrier')
e('s_branch Lp_wx')
lab('Lp_wo2')
e('s_barrier')
e('s_barrier')
e('s_branch Lp_wx')

def M(t): return 12 + 4*t
def MD(t): return 48 + 4*t
def FR(k): return vr(84 + 4*k)
lab('L_pdone')
e('v_lshlrev_b32 v101, 4, v2')
e('v_min_u32 v36, 62, v2')
e('v_lshlrev_b32 v36, 5, v36')
e(f's_and_b32 s30, s2, {REP-1}')
e(f's_mul_i32 s30, s30, {RSTR}')
e('v_add_u32 v36, s30, v36')
e(f'v_mul_u32_u24 v12, {RSTR}, v2')
c('unit = base[xcd] + (id>>3)')
e('s_and_b32 s25, s2, 7')
e('s_lshr_b32 s24, s2, 3')
e('s_mul_i32 s27, s25, 31')
e('s_min_u32 s28, s25, 4')
e('s_add_u32 s27, s27, s28')
e('s_add_u32 s27, s27, s24')
e('s_mul_i32 s28, s27, 7282')
e('s_lshr_b32 s28, s28, 16')
e('s_mul_i32 s29, s28, 9')
e('s_sub_u32 s29, s27, s29')
e('s_and_b32 s24, s26, 3')
e('s_lshr_b32 s32, s24, 1')
e('s_and_b32 s33, s24, 1')
e('s_mul_i32 s34, s24, 7168')
e('s_mul_i32 s35, s24, 6144')
c('z soffset s62: (((g*2+rh)*9+gs)*18+J)*1024')
e('s_lshl_b32 s62, s28, 1')
e('s_add_u32 s62, s62, s32')
e(f's_mul_i32 s62, s62, {9*18*1024}')
e('s_lshl_b32 s63, s29, 1')
e('s_add_u32 s63, s63, s33')
e('s_lshl_b32 s63, s63, 10')
e('s_add_u32 s62, s62, s63')
e(f's_add_u32 s62, s62, {Z_OFF}')
e('s_mul_i32 s30, s28, 9363')
e('s_lshr_b32 s30, s30, 16')
e('s_mul_i32 s38, s30, 7')
e('s_sub_u32 s38, s28, s38')
e(f's_mul_i32 s36, s30, {21*XS}')
e('s_mul_i32 s37, s38, 27648')
e('s_add_u32 s36, s36, s37')
e('s_add_u32 s36, s36, s34')
e(f's_mul_i32 s37, s29, {21*24576}')
e('s_add_u32 s37, s37, s35')
e(f's_add_u32 s37, s37, {WT_OFF}')
e('s_cmp_ge_u32 s26, 4')
e('s_cbranch_scc1 L_helper')
e('s_cmp_lg_u32 s26, 0')
e('s_cbranch_scc1 L_c13')
c('wave 0: wait for all A flags, then load the whole phase 0 tile')
if opt['agg']:
    e('s_cmp_lg_u32 s2, 0')
    e('s_cbranch_scc1 L_gow')
if opt['dly']: e(f's_sleep {opt["dly"]}')
poll(0, 'A')
if opt['agg']:
    c('WG 0 saw all A flags: release everybody through 8 go words')
    e('v_mul_u32_u24 v9, 4352, v2')
    e(f's_mov_b32 s30, {FLAG_OFF+GOF}')
    e('s_mov_b64 exec, 0xff')
    e('buffer_store_dwordx2 v[38:39], v9, s[20:23], s30 offen sc1')
    e('s_mov_b64 exec, -1')
    e('s_branch L_god')
    lab('L_gow')
    e('s_mul_i32 s30, s25, 4352')
    e(f's_add_u32 s30, s30, {FLAG_OFF+GOF}')
    e('s_mov_b32 s31, 0')
    e('s_mov_b64 exec, 1')
    lab('L_gol')
    e('buffer_load_dwordx2 v[24:25], v37, s[20:23], s30 offen sc1')
    e('s_add_u32 s31, s31, 1')
    e('s_cmp_gt_u32 s31, 40000')
    e('s_cbranch_scc1 L_gox')
    e('s_waitcnt vmcnt(0)')
    e('v_cmp_ne_u64 vcc, s[92:93], v[24:25]')
    e('s_cbranch_vccz L_gox')
    e(f's_sleep {opt["gslp"]}')
    e('s_branch L_gol')
    lab('L_gox')
    e('s_mov_b64 exec, -1')
    lab('L_god')
stamp(3)
for k in range(52):
    if k % 4 == 0:
        e(f's_mov_b32 m0, {k*1024}')
        e(f's_add_u32 s30, s36, {k*1024}' if k < 28 else f's_add_u32 s30, s37, {(k-28)*1024}')
    e(f'buffer_load_dwordx4 v101, s[20:23], s30 offen offset:{(k%4)*1024} sc1 lds')
lab('L_c13')
e('s_barrier')
if opt['prio']: e(f's_setprio {opt["prio"]}')
e('v_and_b32 v124, 15, v2')
e('v_lshrrev_b32 v125, 4, v2')
e('v_mul_u32_u24 v126, 864, v124')
e('s_mul_i32 s38, s32, 13824')
e('v_add_u32 v126, s38, v126')
e('v_lshl_add_u32 v2, v125, 4, v126')
e('v_lshrrev_b32 v127, 1, v125')
e('v_mul_u32_u24 v127, 96, v127')
e('v_sub_u32 v127, v126, v127')
e('v_and_b32 v128, 1, v125')
e('v_lshl_add_u32 v127, v128, 4, v127')
e('v_add_u32 v5, 160, v127')
e('s_mul_i32 s38, s33, 12288')
e('s_add_u32 s38, s38, 28672')
e('v_add_u32 v8, s38, v101')
for s in (1, 2):
    e(f'v_add_u32 v{2+s}, {s*SLOT}, v2')
    e(f'v_add_u32 v{5+s}, {s*SLOT}, v5')
    e(f'v_add_u32 v{8+s}, {s*SLOT}, v8')
e(f's_add_u32 s38, s34, {2*SLOT}')
e('v_add_u32 v1, s38, v101')
e(f's_add_u32 s38, s35, {2*SLOT+28672}')
e('v_add_u32 v11, s38, v101')
for r in range(48, 84): e(f'v_mov_b32 v{r}, 0')

frags = []; mf = []
for tp in range(-7, 9):
    for kk in range(min(7, 8-tp), max(0, -tp)-1, -1):
        mf.append((tp+kk, ('W', kk), ('X', tp)))
for tp in range(-6, 9):
    for pp in range(3, -1, -1):
        if 0 <= tp+2*pp <= 8: mf.append((tp+2*pp, ('WT', pp), ('XT', tp)))
assert len(mf) == 108
fu = {}
for s, (t, wk, xk) in enumerate(mf):
    for k in (xk, wk):
        if k not in fu: fu[k] = s; frags.append(k)
assert len(frags) == 43
fidx = {k: i for i, k in enumerate(frags)}
LA = opt['LA']; BAR = 108 - LA; ELAST = BAR - 6
iss = [(-LA + (k*(ELAST+LA))//42) for k in range(43)]
for k in range(43): assert iss[k] <= fu[frags[k]] - 8, (k, iss[k], fu[frags[k]])
def rd(k, slot):
    kind, i = frags[k]
    if kind == 'X': return f'ds_read_b128 {FR(k)}, v{2+slot} offset:{(i+8)*96}'
    if kind == 'XT': return f'ds_read_b128 {FR(k)}, v{5+slot} offset:{(i+7)*96}'
    if kind == 'W': return f'ds_read_b128 {FR(k)}, v{8+slot} offset:{i*1024}'
    return f'ds_read_b128 {FR(k)}, v{8+slot} offset:{(8+i)*1024}'
npre = sum(1 for x in iss if x < 0)
first_touch = {}; last_touch = {}
for s, (t, wk, xk) in enumerate(mf):
    first_touch.setdefault(t, s); last_touch[t] = s
def snapw(t):
    return f'ds_write_b128 v1, {vr(MD(t))} offset:{t*1024}' if t < 7 else f'ds_write_b128 v11, {vr(MD(t))} offset:{(t-7)*1024}'
QS = opt['QS']
ext = [[] for _ in range(324)]
for ph in range(3):
    for k in range(43):
        ext[(ph*108 + iss[k]) % 324].append(('rd', k, ph))
used = [len(x) for x in ext]
lastw = 0
for t in range(9):
    pos = max(216 + last_touch[t] + 8, lastw + opt['wsp'])
    while used[pos % 324]: pos += 1
    lastw = pos
    used[pos % 324] += 1
    assert pos >= 216 + BAR and pos < 324 + QS - 2
    ext[pos % 324].append(('wr', t, 0))
e('s_waitcnt vmcnt(0)')
stamp(4)
e('s_barrier')
stamp(5)
if opt['dbgst']: e('s_memtime s[90:91]')
for k in range(npre): e(rd(k, 0))
e('s_mov_b32 s39, 7')
e('s_waitcnt lgkmcnt(0)')
out.append('.p2align 6')
lab('L_loop')
seq = 0; rseq = {}; covered = -1; wseq = -1
for it in range(2):
    emit = e if it == 1 else (lambda s: None)
    for ph in range(3):
        if it == 1: c(f'======== phase {ph}')
        for s, (t, wk, xk) in enumerate(mf):
            if s == BAR:
                emit('s_waitcnt lgkmcnt(0)')
                emit('s_barrier')
                covered = seq - 1
            if ph == 0 and s == QS:
                if wseq > covered:
                    emit(f's_waitcnt lgkmcnt({min(15, seq-1-wseq)})')
                    covered = max(covered, seq - 1 - min(15, seq-1-wseq))
                emit('s_barrier')
            need = max(rseq.get((ph, fidx[wk]), -1), rseq.get((ph, fidx[xk]), -1))
            if need > covered:
                allow = min(seq - 1 - need, 4)
                emit(f's_waitcnt lgkmcnt({allow})')
                covered = seq - 1 - allow
            cin = vr(MD(t)) if (ph == 0 and first_touch[t] == s) else vr(M(t))
            dst = vr(MD(t)) if (ph == 2 and last_touch[t] == s) else vr(M(t))
            emit(f'v_mfma_f32_16x16x32_bf16 {dst}, {FR(fidx[wk])}, {FR(fidx[xk])}, {cin}')
            for x in ext[ph*108+s]:
                if x[0] == 'rd':
                    emit(rd(x[1], x[2])); rseq[(x[2], x[1])] = seq; seq += 1
                else:
                    emit(snapw(x[1])); wseq = seq; seq += 1
            if ph == 2 and s == 104: emit('s_sub_u32 s39, s39, 1')
            if ph == 2 and s == 105: emit('s_cmp_lg_u32 s39, 0')
e('s_cbranch_scc1 L_loop')
stamp(6)
if opt['dbgst']: e('s_memtime s[94:95]')
c('---- compute-wave epilogue: gate y3 = MD')
e('s_waitcnt lgkmcnt(0)')
def gate_consts():
    e(f's_mov_b32 s46, {fh(-0.6931471805599453)}')
    e(f's_mov_b32 s42, {fh(2*LOG2E*2**-12)}')
    e('s_mov_b32 s43, 0x41f00000')
def gate(a, r, dst, sp):
    L = []
    L.append(f'v_min_f32 v{r}, s43, v{a}')
    L.append(f'v_min_f32 v{r+1}, s43, v{a+1}')
    L.append(f'v_exp_f32 v{a+2}, v{a+2}')
    L.append(f'v_exp_f32 v{a+3}, v{a+3}')
    L.append(f'v_exp_f32 v{r}, v{r}')
    L.append(f'v_exp_f32 v{r+1}, v{r+1}')
    if opt['smallfix']:
        L.append(f'v_cmp_gt_f32 s[{sp}:{sp+1}], s42, abs(v{a})')
        L.append(f'v_cmp_gt_f32 s[{sp+2}:{sp+3}], s42, abs(v{a+1})')
    L.append(f'v_add_f32 v{r+2}, 1.0, v{r}')
    L.append(f'v_add_f32 v{r+3}, 1.0, v{r+1}')
    if opt['smallfix']:
        L.append(f'v_mul_f32 v{a}, s46, v{a}')
        L.append(f'v_mul_f32 v{a+1}, s46, v{a+1}')
    L.append(f'v_fmac_f32 v{r+2}, v{r+2}, v{a+2}')
    L.append(f'v_fmac_f32 v{r+3}, v{r+3}, v{a+3}')
    L.append(f'v_sub_f32 v{r}, 1.0, v{r}')
    L.append(f'v_sub_f32 v{r+1}, 1.0, v{r+1}')
    L.append(f'v_rcp_f32 v{r+2}, v{r+2}')
    L.append(f'v_rcp_f32 v{r+3}, v{r+3}')
    if opt['smallfix']:
        L.append(f'v_cndmask_b32 v{r}, v{r}, v{a}, s[{sp}:{sp+1}]')
        L.append(f'v_cndmask_b32 v{r+1}, v{r+1}, v{a+1}, s[{sp+2}:{sp+3}]')
    L.append(f'v_mul_f32 v{r}, v{r}, v{r+2}')
    L.append(f'v_mul_f32 v{r+1}, v{r+1}, v{r+3}')
    L.append(f'v_cvt_pk_bf16_f32 v{dst}, v{r}, v{r+1}')
    return L
gate_consts()
e('v_and_b32 v100, 63, v0')
e('v_lshlrev_b32 v101, 4, v100')
e(f's_add_u32 s63, s62, {7*18432}')
for t in range(9):
    for x in gate(MD(t), 104 + 4*(t % 2), 112 + t, 48): e(x)
    if t in (3, 7):
        e(f'buffer_store_dwordx4 v[{112+t-3}:{112+t}], v101, s[20:23], s63 offen sc1')
        e('s_add_u32 s63, s63, 18432')
e(f's_add_u32 s63, s62, {6*18432}')
e('buffer_store_dword v120, v101, s[20:23], s63 offen offset:12 sc1')
e('s_branch L_fin')
def hbar():
    if opt['bst']:
        e('s_memtime s[64:65]')
        e('s_barrier')
        e('s_memtime s[66:67]')
        e('s_waitcnt lgkmcnt(0)')
        e('s_mov_b32 m0, s68'); e('s_nop 0')
        e('v_writelane_b32 v14, s64, m0')
        e('v_writelane_b32 v15, s66, m0')
        e('s_add_u32 s68, s68, 1')
    else: e('s_barrier')
lab('L_helper')
if opt['bst']: e('s_mov_b32 s68, 0')
def Y(i, t): return 40 + 4*(i*9+t)
def SN(t): return 148 + 4*t
e('v_mov_b32 v3, v101')
e('v_add_u32 v13, 4096, v101')
e(f's_add_u32 s38, s34, {2*SLOT}')
e('v_add_u32 v4, s38, v101')
e(f's_add_u32 s38, s35, {2*SLOT+28672}')
e('v_add_u32 v5, s38, v101')
e('s_cmp_eq_u32 s26, 4')
e('s_cbranch_scc1 L_h4')
e(f'v_mov_b32 v36, {OOB}')
e(f'v_mov_b32 v12, {OOB}')
e('s_branch L_h5')
lab('L_h4')
e('s_mov_b32 s31, 0')
gettag('h')
lab('L_h5')
e('v_mov_b32 v38, s92')
e('v_mov_b32 v39, s93')
def dma_list(slot):
    L = []
    for k in range(7):
        pre = [f's_add_u32 m0, s34, {slot*SLOT + (k//4)*4096}', 's_nop 0']
        L.append(pre + [f'buffer_load_dwordx4 v{3 if k < 4 else 13}, s[20:23], s36 offen offset:{(k%4)*1024} sc1 lds'] + ([f's_add_u32 s36, s36, {XS}'] if k == 6 else []))
    for k in range(6):
        pre = [f's_add_u32 m0, s35, {slot*SLOT + 28672 + (k//4)*4096}', 's_nop 0']
        L.append(pre + [f'buffer_load_dwordx4 v{3 if k < 4 else 13}, s[20:23], s37 offen offset:{(k%4)*1024} sc1 lds'] + (['s_add_u32 s37, s37, 24576'] if k == 5 else []))
    return L
def pst(b, pm):
    return [f'buffer_store_dwordx4 {vr(PK(b,pm))}, v{PA(b)}, s[20:23], 0 offen sc1', f'v_add_u32 v{PA(b)}, s{96+b}, v{PA(b)}']
def weave(dl, sl):
    res = []; n = len(sl); m = len(dl)
    for i in range(m):
        res.append(dl[i])
        for k in range((i*n)//m, ((i+1)*n)//m): res.append(sl[k])
    return res
def mix(dl, vl):
    n = len(dl)
    for i, d in enumerate(dl):
        for x in d: e(x)
        for x in vl[(i*len(vl))//n:((i+1)*len(vl))//n]: e(x)
    if n == 0:
        for x in vl: e(x)
def nvm(dl, after):
    return len(dl) - 1 - after
def snapr():
    for t in range(9):
        e(f'ds_read_b128 {vr(SN(t))}, v4 offset:{t*1024}' if t < 7 else f'ds_read_b128 {vr(SN(t))}, v5 offset:{(t-7)*1024}')
    e('s_waitcnt lgkmcnt(0)')
FM = [f'v_fmac_f32 v{Y(i,t)+r}, s{40+i}, v{SN(t)+r}' for t in range(9) for i in range(3) for r in range(4)]
FM1 = [f'v_mul_f32 v{Y(i,t)+r}, s{40+i}, v{SN(t)+r}' for t in range(9) for i in range(3) for r in range(4)]
e(f's_add_u32 s36, s36, {XS}')
e('s_add_u32 s37, s37, 24576')
e('s_barrier')
mix(dma_list(1), [])
c('coefficient table: s40.. = 3 x 6, consumed from the front')
for m in range(6):
    for i in range(3): e(f's_mov_b32 s{40+3*m+i}, {fh(DCH[i][m])}')
hbar()
ND0 = opt['nd0']
def only4(name, fn):
    e('s_cmp_lg_u32 s26, 4')
    e(f's_cbranch_scc1 L_o4{name}')
    fn()
    lab(f'L_o4{name}')
def hflag(off):
    e('s_lshl_b32 s30, s2, 3')
    e(f's_add_u32 s30, s30, {FLAG_OFF+off}')
    e(f's_mov_b64 exec, {(1<<REP)-1}')
    e('buffer_store_dwordx2 v[38:39], v12, s[20:23], s30 offen sc1')
    e('s_mov_b64 exec, -1')
def hiter(name, fm, sa=(), sc_=(), flag0=None, flag1=None, chk=None):
    if chk is not None: poll_issue(chk)
    for g_ in sa:
        for x in g_: e(x)
    hbar()
    if fm: snapr()
    D2 = dma_list(2)
    mix(D2[:ND0], [])
    e(f's_waitcnt vmcnt({ND0 + len(sa)})')
    if chk is not None:
        def f():
            poll_check()
            e(f's_cbranch_scc0 L_o4c{name}')
            poll(chk, name)
        only4('c'+name, f)
    hbar()
    if flag0 is not None: hflag(flag0)
    mix(D2[ND0:] + dma_list(0), fm[:40])
    e('s_waitcnt vmcnt(13)')
    hbar()
    if flag1 is not None: hflag(flag1)
    mix(list(sc_) + dma_list(1), fm[40:])
    if fm:
        for k in range(15): e(f's_mov_b32 s{40+k}, s{43+k}')
    e(f's_waitcnt vmcnt({13 + len(sc_) + (1 if flag1 is not None else 0)})')
    hbar()
ST = [pst(b, pm) for pm in range(5) for b in range(4)]
hiter('0', [], sa=ST[0:4], sc_=ST[4:8], flag1=1*FA)
hiter('1', FM1, sa=ST[8:12], sc_=ST[12:16], flag0=2*FA, chk=1*FA)
hiter('2', FM, sa=ST[16:20], flag0=3*FA, chk=2*FA)
hiter('3', FM, flag0=4*FA, chk=3*FA)
hiter('4', FM)
hiter('5', FM, chk=4*FA)
c('---- last product')
if opt['sw'] == 4: stamp(6)
hbar()
snapr()
F0 = opt['f0']
D2 = dma_list(2)
mix(D2[:ND0], FM[:F0])
e(f's_waitcnt vmcnt({ND0})')
hbar()
WD = []
for k in range(12):
    WD.append([f's_add_u32 m0, s61, {(k//4)*4096}', 's_nop 0', f'buffer_load_dwordx4 v3, s[20:23], s60 offen offset:{(k%4)*1024} sc1 lds'] + (['s_add_u32 s60, s60, 4096'] if k % 4 == 3 else []))
e('s_mul_i32 s61, s24, 12288')
e(f's_add_u32 s60, s61, {WO_OFF}')
mix(D2[ND0:] + WD, FM[F0:])
gate_consts()
e('s_mov_b32 s63, s62')
nst = [0]
def hgate(n0, n1):
    for n in range(n0, n1):
        t, i = divmod(n, 3)
        for x in gate(Y(i, t), 184 + 4*(n % 2), 200 + n, 48): e(x)
        if n % 4 == 3:
            e(f'buffer_store_dwordx4 v[{200+n-3}:{200+n}], v3, s[20:23], s63 offen sc1')
            e('s_add_u32 s63, s63, 18432'); nst[0] += 1
        if n == 26:
            e('buffer_store_dwordx3 v[224:226], v3, s[20:23], s63 offen sc1'); nst[0] += 1
g1 = opt['g1']; g2 = min(27, g1 + opt['g2'])
hgate(0, g1)
e(f's_waitcnt vmcnt({nst[0]+12})')
hbar()
hgate(g1, g2)
hbar()
hgate(g2, 27)
if opt['bst']:
    e('s_memtime s[64:65]')
    e('s_waitcnt lgkmcnt(0)')
    e('s_mov_b32 m0, s68'); e('s_nop 0')
    e('v_writelane_b32 v14, s64, m0')
    e('v_writelane_b32 v15, s64, m0')
    e('s_cmp_lg_u32 s26, 4')
    e('s_cbranch_scc1 L_fin')
    e('s_mov_b32 s22, 0x10000000')
    e('s_lshl_b32 s33, s2, 9')
    e(f's_add_u32 s33, s33, {STAMP_OFF + (128<<10)*4}')
    e('v_lshrrev_b32 v1, 1, v3')
    e('buffer_store_dwordx2 v[14:15], v1, s[20:23], s33 offen')
lab('L_fin')
e('s_setprio 0')
e('s_load_dwordx2 s[6:7], s[0:1], 24')
if not opt['es']: stamp(7)
e('v_and_b32 v2, 63, v0')
e('v_lshlrev_b32 v3, 4, v2')
e('v_mov_b32 v37, 0')
e('s_lshl_b32 s40, s27, 1')
e('s_lshr_b32 s41, s26, 2')
e('s_add_u32 s40, s40, s41')
e('s_mul_i32 s30, s40, 7282')
e('s_lshr_b32 s30, s30, 16')
e('s_mul_i32 s31, s30, 9')
e('s_sub_u32 s31, s40, s31')
e('s_mul_i32 s32, s30, 4682')
e('s_lshr_b32 s32, s32, 16')
e('s_mul_i32 s33, s32, 14')
e('s_sub_u32 s33, s30, s33')
e('s_lshr_b32 s37, s32, 1')
e('s_and_b32 s38, s32, 1')
e('s_mul_i32 s37, s37, 4608000')
e('s_waitcnt lgkmcnt(0)')
e('s_add_u32 s6, s6, s37'); e('s_addc_u32 s7, s7, 0')
srd(16, 6, 7, 4608000)
e('s_mul_i32 s39, s33, 1152')
e('s_add_u32 s39, s39, s38')
e('s_add_u32 s39, s39, 6')
e('s_lshl_b32 s45, s31, 2')
e('s_add_u32 s45, s45, s24')
e('s_mul_i32 s42, s45, 171')
e('s_lshr_b32 s42, s42, 9')
e('s_mul_i32 s43, s42, 3')
e('s_sub_u32 s43, s45, s43')
e('s_sub_u32 s44, s45, 28')
e('s_cmp_ge_u32 s45, 27')
e('s_cselect_b32 s42, s44, s42')
e('s_cselect_b32 s43, 3, s43')
e('s_cmp_eq_u32 s45, 27')
e('s_cselect_b32 s42, 8, s42')
e('s_lshl_b32 s42, s42, 3')
e('s_lshl_b32 s43, s43, 1')
e('s_add_u32 s42, s42, s39')
e('s_sub_u32 s42, s42, s43')
e('s_mul_i32 s45, s42, 288')
e('v_lshrrev_b32 v7, 4, v2')
e(f'v_mul_u32_u24 v7, {4*72*288}, v7')
e('v_add_u32 v7, s45, v7')
e('v_and_b32 v8, 15, v2')
e('v_lshl_add_u32 v11, v8, 1, v7')
e('v_lshl_add_u32 v10, v8, 4, v7')
e('s_mul_i32 s46, s27, 36864')
e('s_lshl_b32 s47, s26, 10')
e('s_add_u32 s46, s46, s47')
e(f's_add_u32 s46, s46, {Z_OFF}')
e('s_mul_i32 s48, s41, 18432')
e('s_lshl_b32 s49, s24, 2')
e('s_add_u32 s48, s48, s49')
e(f's_add_u32 s48, s48, {SLOT}')
e('v_add_u32 v4, s48, v3')
e('v_mov_b32 v34, 0')
e('v_mov_b32 v35, 0')
e('s_waitcnt vmcnt(0)')
e('s_barrier')
if not opt['es']: stamp(8)
def bf(f): return vr(76 + 4*f)
def preB():
    for f in range(45):
        e(f'ds_read_b128 {bf(f)}, v3 offset:{f*1024}')
        if f % 12 == 11: e('s_waitcnt lgkmcnt(4)')
e('s_cmp_lg_u32 s26, 4')
e('s_cbranch_scc1 L_e1b')
e('s_lshl_b32 s50, s28, 7')
e(f's_add_u32 s50, s50, {FLAG_OFF+ZFL}')
setflag(['s_lshl_b32 s30, s29, 3', 's_add_u32 s30, s30, s50'])
lab('L_e1b')
preB()
e('s_cmp_lg_u32 s26, 4')
e('s_cbranch_scc1 L_e2')
e('v_min_u32 v5, 8, v2')
e('v_lshlrev_b32 v5, 3, v5')
e('s_mov_b32 s51, 0')
lab('L_zpoll')
e('buffer_load_dwordx2 v[38:39], v5, s[20:23], s50 offen sc1')
e('s_add_u32 s51, s51, 1')
e('s_cmp_gt_u32 s51, 20000')
e('s_cbranch_scc1 L_e2')
e('s_waitcnt vmcnt(0)')
e('v_cmp_ne_u64 vcc, s[92:93], v[38:39]')
e('s_cbranch_vccz L_e2')
e('s_sleep 1')
e('s_branch L_zpoll')
lab('L_e2')
e('s_barrier')
stamp(9)
for i in range(5):
    if i == 4:
        e('s_cmp_ge_u32 s26, 4')
        e('s_cbranch_scc1 L_e3')
    e(f's_add_u32 m0, s47, {SLOT + i*8192}')
    e('s_nop 0')
    e('buffer_load_dwordx4 v3, s[20:23], s46 offen sc1 lds')
    if i < 4: e('s_add_u32 s46, s46, 8192')
lab('L_e3')
e('s_waitcnt vmcnt(0) lgkmcnt(0)')
e('s_barrier')
stamp(10)
if opt['stamps']: e('s_waitcnt lgkmcnt(0)')
for J in range(14): e(f'ds_read_b32 v{16+J}, v4 offset:{J*1024}')
for ks in range(5):
    if ks == 0: e('s_waitcnt lgkmcnt(10)')
    if ks == 1: e('s_waitcnt lgkmcnt(10)')
    if ks == 2: e('s_waitcnt lgkmcnt(6)')
    if ks == 3: e('s_waitcnt lgkmcnt(2)')
    if ks == 4: e('s_waitcnt lgkmcnt(0)')
    for T in range(9):
        r = 40 + 4*T
        cin = '0' if ks == 0 else vr(r)
        e(f'v_mfma_f32_16x16x32_bf16 {vr(r)}, v[{16+4*ks}:{16+4*ks+3}], {bf(T*5+ks)}, {cin}')
        if ks == 0 and T < 4: e(f'ds_read_b32 v{30+T}, v4 offset:{(14+T)*1024}')
e('s_nop 7')
e('s_nop 1')
for r in range(4):
    d = 140 + 6*r
    A = lambda T: 40 + 4*T + r
    for h in range(4): e(f'v_cvt_pk_bf16_f32 v{d+h}, v{A(2*h)}, v{A(2*h+1)}')
    e(f'v_cvt_pk_bf16_f32 v{d+4}, v{A(8)}, v{A(8)}')
    e(f'buffer_store_dwordx4 v[{d}:{d+3}], v10, s[16:19], 0 offen')
    e(f'buffer_store_short v{d+4}, v11, s[16:19], 0 offen offset:256')
    if r < 3:
        e(f'v_add_u32 v10, {72*288}, v10')
        e(f'v_add_u32 v11, {72*288}, v11')
if opt['stamps']:
    e('s_waitcnt vmcnt(0)')
    stamp(11)
    e('s_waitcnt lgkmcnt(0)')
    e(f's_cmp_lg_u32 s26, {opt["sw"]}')
    e('s_cbranch_scc1 L_end')
    if opt['dbgst']:
        e(f's_cmp_lg_u32 s2, {opt["dbgst"]}')
        e('s_cbranch_scc1 L_end')
        e('s_load_dwordx2 s[56:57], s[0:1], 32')
        e('s_waitcnt lgkmcnt(0)')
        srd(16, 56, 57, 256)
        e('v_mov_b32 v1, 0')
        for i in range(1, 12):
            e(f's_sub_u32 s33, s{64+2*i}, s64')
            e('v_mov_b32 v4, s33')
            e(f'buffer_store_dword v4, v1, s[16:19], 0 offen offset:{4+4*i}')
        e('s_sub_u32 s33, s94, s90')
        e('v_mov_b32 v4, s33')
        e('buffer_store_dword v4, v1, s[16:19], 0 offen offset:56')
        e('s_branch L_end')
    e('s_mov_b32 s22, 0x10000000')
    e('s_lshl_b32 s33, s2, 7')
    e(f's_add_u32 s33, s33, {STAMP_OFF}')
    e('v_mov_b32 v1, s33')
    for i in range(6):
        for k in range(4): e(f'v_mov_b32 v{4+k}, s{64+4*i+k}')
        e(f'buffer_store_dwordx4 v[4:7], v1, s[20:23], 0 offen offset:{16*i}')
        e('s_nop 1')
lab('L_end')
e('s_endpgm')
tail = f"""
.section .rodata,"a"
.p2align 6
.amdhsa_kernel {NAME}_kernel
  .amdhsa_next_free_vgpr 256
  .amdhsa_next_free_sgpr 100
  .amdhsa_accum_offset 256
  .amdhsa_group_segment_fixed_size 0
  .amdhsa_kernarg_size 48
  .amdhsa_user_sgpr_count 2
  .amdhsa_user_sgpr_kernarg_segment_ptr 1
  .amdhsa_system_sgpr_workgroup_id_x 1
.end_amdhsa_kernel
"""
open(sys.argv[1], 'w').write(hdr + '\n'.join(out) + '\n' + tail)
```

```python
import sys, struct
import numpy as np
from f44 import matrices, PTS
NAME = 'standalone__autoregressive_conv_wavenet__speech'
opt = dict(stamps=0, LA=24, smallfix=1, ldf=0, QS=34, prio=1, g1=5, g2=7, bst=0, nd0=7, wsp=5, f0=30, slp=1, cpf=3, sw=4, dly=0, pf=0, early=1, dbgst=0, rep=1, rstr=4352, pre=0, shr=1, agg=1, gslp=2, es=0, word=1, skx=0, skw=0, of=0, of2=0)
for a in sys.argv[2:]:
    k, v = a.split('='); assert k in opt, k; opt[k] = int(v)
out = []
def e(s): out.append('    ' + s)
def lab(s): out.append(s + ':')
def c(s): out.append('    ; ' + s)
def fh(x): return '0x%08x' % struct.unpack('<I', struct.pack('<f', float(x)))[0]
AT, G, BT = matrices()
GS = G.copy()
for m in range(6): GS[m] *= PTS[m]**3
CH = np.zeros((3, 7))
for i in range(3):
    for m in range(6): CH[i][m] = PTS[m]**(i-3)
DCH = CH[:, :6] - CH[:, 1:7]
LOG2E = 1.4426950408889634
LDF = {0: '', 1: ' nt'}[opt['ldf']]
OF = {0:'', 1:' nt', 2:' sc1', 3:' sc0 sc1'}
PRF = {1: ' sc1', 2: '', 3: ' sc0 sc1'}.get(opt['pre'], '')
PF_ = {0: ' sc1', 1: ' sc0 sc1', 2: ' sc1 nt', 3: ' sc0 sc1 nt'}[opt['pf']]
XROWS = 2032
XS = XROWS*96
U_BYTES = 4*21*XS
WT_OFF = U_BYTES
WT_BYTES = 9*21*24576
WO_OFF = WT_OFF + WT_BYTES
Z_OFF = WO_OFF + 48*1024
Z_BYTES = 28*2*9*18*1024
FLAG_OFF = Z_OFF + Z_BYTES
REP = opt['rep']; RSTR = opt['rstr']; FA = REP*RSTR
ZFL = 5*FA
GOF = ZFL + 4096
WS_USED = FLAG_OFF + GOF + 8*4352
STAMP_OFF = 268435456 - (1 << 20)
SLOT = 53248
XL = 2*SLOT + 8192
WL = SLOT
LDS_MAIN = 3*SLOT
OOB = 0x7f000000
hdr = f"""; Kernarg layout for this problem (48 bytes, ptrs only, base s[0:1]):
; @launch grid=(252,1,1) block=(512,1,1) lds={LDS_MAIN}
.amdgcn_target "amdgcn-amd-amdhsa--gfx950"
.text
.globl {NAME}_kernel
.p2align 8
.type {NAME}_kernel,@function
{NAME}_kernel:
"""
def srd(d, lo, hi, nbytes):
    e(f's_mov_b32 s{d}, s{lo}')
    e(f's_and_b32 s{d+1}, s{hi}, 0xffff')
    e(f's_mov_b32 s{d+2}, {nbytes}')
    e(f's_mov_b32 s{d+3}, 0x00020000')
def vp(r): return f'v[{r}:{r+1}]'
def vr(r): return f'v[{r}:{r+3}]'
def pkfma(d, sc, a, b, nega=False):
    neg = ' neg_lo:[0,1,0] neg_hi:[0,1,0]' if nega else ''
    e(f'v_pk_fma_f32 {vp(d)}, s[{sc}:{sc+1}], {vp(a)}, {vp(b)}{neg}')
def pkadd(d, a, b, negb=False):
    neg = ' neg_lo:[0,1] neg_hi:[0,1]' if negb else ''
    e(f'v_pk_add_f32 {vp(d)}, {vp(a)}, {vp(b)}{neg}')
def sconst2(s, x):
    e(f's_mov_b32 s{s}, {fh(x)}'); e(f's_mov_b32 s{s+1}, {fh(x)}')
def stamp(i):
    if opt['stamps']: e(f's_memrealtime s[{64+2*i}:{65+2*i}]')
def PK(b, pm):
    n = pm*4 + b
    return 184 + 4*n if n < 18 else 16 + 4*(n-18)
PA = lambda b: 32 + b
PT = 24

def gettag(name):
    lab(f'L_tag{name}')
    e('buffer_load_dwordx2 v[24:25], v37, s[16:19], 0 offen sc1')
    e('s_add_u32 s31, s31, 1')
    e('s_cmp_gt_u32 s31, 30000')
    e(f's_cbranch_scc1 L_tagd{name}')
    e('s_waitcnt vmcnt(0)')
    e('v_readfirstlane_b32 s92, v24')
    e('v_readfirstlane_b32 s93, v25')
    e('s_nop 3')
    e('s_cmp_eq_u32 s92, 0')
    e(f's_cbranch_scc1 L_tag{name}')
    lab(f'L_tagd{name}')
def setflag(pre):
    for x in pre: e(x)
    e('v_mov_b32 v38, s92')
    e('v_mov_b32 v39, s93')
    e('s_mov_b64 exec, 1')
    e('buffer_store_dwordx2 v[38:39], v37, s[20:23], s30 offen sc1')
    e('s_mov_b64 exec, -1')
def poll_issue(off):
    e(f's_mov_b32 s30, {FLAG_OFF+off}')
    e(f'buffer_load_dwordx4 {vr(PT)}, v36, s[20:23], s30 offen{PF_}')
    e(f'buffer_load_dwordx4 {vr(PT+4)}, v36, s[20:23], s30 offen offset:16{PF_}')
def poll_check():
    e(f'v_cmp_ne_u64 vcc, s[92:93], {vp(PT)}')
    for k in range(1, 4):
        e(f'v_cmp_ne_u64 s[88:89], s[92:93], {vp(PT+2*k)}')
        e('s_or_b64 vcc, vcc, s[88:89]')
def poll(off, name):
    e('s_mov_b32 s31, 0')
    lab(f'L_poll{name}')
    poll_issue(off)
    e('s_add_u32 s31, s31, 1')
    e('s_cmp_gt_u32 s31, 20000')
    e(f's_cbranch_scc1 L_pdone{name}')
    e('s_waitcnt vmcnt(0)')
    poll_check()
    e(f's_cbranch_scc0 L_pdone{name}')
    if opt['shr']: e('s_mov_b64 exec, vcc')
    e(f's_sleep {opt["slp"]}')
    e(f's_branch L_poll{name}')
    lab(f'L_pdone{name}')
    if opt['shr']: e('s_mov_b64 exec, -1')

e('s_cmp_ge_u32 s2, 252')
e('s_cbranch_scc1 L_end')
if opt['stamps']:
    for i in range(24): e(f's_mov_b32 s{64+i}, 0')
stamp(0)
e('s_load_dwordx4 s[4:7], s[0:1], 0')
e('s_load_dwordx2 s[8:9], s[0:1], 16')
e('s_load_dwordx4 s[56:59], s[0:1], 32')
e('v_lshrrev_b32 v1, 6, v0')
e('v_and_b32 v2, 63, v0')
e('v_readfirstlane_b32 s26, v1')
if opt['cpf']:
    c('pull the kernel code towards L2 first (1 KB per participating wave)')
    e('s_getpc_b64 s[44:45]')
    lab('L_pc')
    if opt['cpf'] == 1:
        e('s_lshl_b32 s42, s2, 10')
        e('s_and_b32 s42, s42, 0x6000')
        e('v_lshlrev_b32 v102, 4, v0')
    elif opt['cpf'] == 2:
        e('s_lshl_b32 s42, s2, 7')
        e('s_and_b32 s42, s42, 0x7c00')
        e('v_lshlrev_b32 v102, 4, v2')
        e('v_lshl_add_u32 v102, v1, 20, v102')
    else:
        e('s_lshl_b32 s42, s2, 8')
        e('s_and_b32 s42, s42, 0x7800')
        e('v_lshlrev_b32 v102, 4, v0')
        e('v_lshrrev_b32 v103, 1, v1')
        e('v_lshl_add_u32 v102, v103, 20, v102')
    e('s_and_b32 s45, s45, 0xffff')
    e('s_mov_b32 s46, L_end-L_pc')
    e('s_mov_b32 s47, 0x00020000')
    e(f'buffer_load_dwordx4 {vr(180)}, v102, s[44:47], s42 offen')
else: e('s_nop 1')
def common():
    srd(20, 58, 59, WS_USED)
    srd(16, 56, 57, 256)
    e('s_mov_b32 s33, 0xffff0000')
    e('v_mov_b32 v37, 0')
    for b in range(4): e(f'v_mov_b32 v{PA(b)}, {OOB}')
    for b in range(4): e(f's_mov_b32 s{96+b}, {3*XS}')
    e('s_mov_b32 s31, 0')
    e('s_mov_b32 s92, 0')
    e('s_mov_b32 s93, 0')
    e('s_cmp_ge_u32 s2, 125')
    e(f's_cselect_b32 s50, {2*21*XS - 125*1536}, 0')
    e('s_mul_i32 s51, s2, 1536')
    e('s_add_u32 s50, s50, 768')
    e('s_add_u32 s50, s50, s51')
    e(f's_add_u32 s51, s50, {3*XS}')
    e(f's_mov_b32 s35, {XL+64}')
e('s_lshr_b32 s28, s26, 1')
e('s_cmp_eq_u32 s28, 2')
e('s_cbranch_scc1 Lp_w')
def xaddr(su, va, vd):
    e(f's_lshl_b32 s28, s{su}, 6')
    e('v_add_u32 v3, s28, v2')
    e('v_mul_u32_u24 v4, 683, v3')
    e('v_lshrrev_b32 v4, 16, v4')
    e('v_mul_u32_u24 v5, 96, v4')
    e('v_sub_u32 v3, v3, v5')
    e(f'v_mul_u32_u24 v{va}, 43, v3')
    e(f'v_lshrrev_b32 v{va}, 8, v{va}')
    e(f'v_mul_u32_u24 v{va}, {2304-96}, v{va}')
    e(f'v_lshl_add_u32 v{va}, v3, 4, v{va}')
    e(f'v_add3_u32 v{va}, v{va}, v5, s35')
    e('v_cmp_le_u32 vcc, 3, v4')
    e(f'v_mul_u32_u24 v{vd}, {XS}, v4')
    e(f'v_mov_b32 v5, {18*XS}')
    e(f'v_lshl_add_u32 v{vd}, v3, 4, v{vd}')
    e('v_cndmask_b32 v5, 0, v5, vcc')
    e(f'v_add_u32 v{vd}, v{vd}, v5')
def xpair(va, vd):
    for s in range(6): e(f'ds_read_b128 {vr(120+4*s)}, v{va} offset:{(12-2*s)*288}')
    for dw in range(4):
        for s in range(6):
            if dw == 0: e(f's_waitcnt lgkmcnt({5-s})')
            e(f'v_lshlrev_b32 v{148+2*s}, 16, v{120+4*s+dw}')
            e(f'v_and_b32 v{149+2*s}, s33, v{120+4*s+dw}')
        D = lambda s: 148+2*s
        pkfma(162, 46, D(2), D(4))
        pkfma(164, 46, D(3), D(5))
        pkfma(162, 44, D(0), 162)
        pkfma(164, 44, D(1), 164)
        pkfma(166, 48, 162, 164)
        pkfma(168, 48, 162, 164, nega=True)
        e(f'v_cvt_pk_bf16_f32 v{172+dw}, v166, v167')
        e(f'v_cvt_pk_bf16_f32 v{176+dw}, v168, v169')
    e(f'buffer_store_dwordx4 v[172:175], v{vd}, s[20:23], s50 offen sc1')
    e(f'buffer_store_dwordx4 v[176:179], v{vd}, s[20:23], s51 offen sc1')
def xrest(va, b):
    for s in range(7): e(f'ds_read_b128 {vr(120+4*s)}, v{va} offset:{(12-2*s)*288}')
    for dw in range(4):
        for s in range(7):
            if dw == 0: e(f's_waitcnt lgkmcnt({6-s})')
            e(f'v_lshlrev_b32 v{148+2*s}, 16, v{120+4*s+dw}')
            e(f'v_and_b32 v{149+2*s}, s33, v{120+4*s+dw}')
        D = lambda s: 148+2*s
        for t in range(2):
            q0, q1, aa = 36+6*t, 38+6*t, 40+6*t
            pkfma(162, q1, D(2), D(4))
            pkfma(164, q1, D(3), D(5))
            pkfma(162, q0, D(0), 162)
            pkfma(164, q0, D(1), 164)
            pkfma(166, aa, 162, 164)
            pkfma(168, aa, 162, 164, nega=True)
            e(f'v_cvt_pk_bf16_f32 v{PK(b,2*t)+dw}, v166, v167')
            e(f'v_cvt_pk_bf16_f32 v{PK(b,2*t+1)+dw}, v168, v169')
        pkfma(162, 54, D(4), D(6))
        pkfma(162, 52, D(2), 162)
        pkfma(162, 48, D(0), 162)
        e(f'v_cvt_pk_bf16_f32 v{PK(b,4)+dw}, v162, v163')
for t in range(3):
    a = PTS[2*t]; q0 = BT[2*t][1]; q1 = BT[2*t][3]
    assert abs(BT[2*t][0] - a*q0) < 1e-12 and abs(BT[2*t][2] - a*q1) < 1e-12 and abs(BT[2*t][4]-a) < 1e-12
e('s_sub_u32 s27, s26, 2')
e('s_cmp_lt_u32 s26, 4')
e('s_cselect_b32 s27, s26, s27')
e('s_cmp_ge_u32 s2, 250')
e('s_cbranch_scc1 Lp_zero')
e('s_cmp_ge_u32 s2, 125')
e('s_cselect_b32 s24, 4608000, 0')
e('s_mul_i32 s28, s2, 36864')
e('s_sub_u32 s28, s28, s24')
e('s_sub_u32 s28, s28, 1792')
e('s_lshl_b32 s29, s27, 10')
e('s_add_u32 s28, s28, s29')
e('v_lshlrev_b32 v6, 4, v2')
e('v_add_u32 v6, s28, v6')
e(f's_mov_b32 s14, {0 if opt["skx"] else 4608000}')
e('s_mov_b32 s15, 0x00020000')
e(f's_add_u32 m0, s29, {XL}')
e('s_waitcnt lgkmcnt(0)')
e('s_add_u32 s12, s4, s24'); e('s_addc_u32 s13, s5, 0')
e('s_and_b32 s13, s13, 0xffff')
for i in range(7):
    if i == 6:
        e('s_cmp_ge_u32 s27, 2')
        e('s_cbranch_scc1 Lp_xl')
    e(f'buffer_load_dwordx4 v6, s[12:15], 0 offen{LDF} lds')
    if i < 6:
        e(f's_add_u32 m0, s29, {XL + (i+1)*6144}')
        e('v_add_u32 v6, 6144, v6')
lab('Lp_xl')
common()
e('s_add_u32 s28, s2, s26')
e('s_cmp_lg_u32 s28, 0')
e('s_cbranch_scc1 Lp_x0')
c('WG 0 wave 0 publishes the launch tag in d_debug')
e('s_memrealtime s[92:93]')
e('s_waitcnt lgkmcnt(0)')
e('s_or_b32 s92, s92, 1')
e('v_mov_b32 v38, s92')
e('v_mov_b32 v39, s93')
e('s_mov_b64 exec, 1')
e('buffer_store_dwordx2 v[38:39], v37, s[16:19], 0 offen sc1')
e('s_mov_b64 exec, -1')
lab('Lp_x0')
c('pass-1 units: wave0:8 wave1:4,5 wave2:0,1 wave3:2,3 wave6:6 wave7:7')
e('s_lshl_b32 s28, s26, 2')
e('s_lshr_b32 s30, 0x76002048, s28')
e('s_and_b32 s30, s30, 15')
xaddr(30, 6, 7)
e('s_add_u32 s30, s30, 1')
xaddr(30, 14, 15)
sconst2(44, BT[0][1]); sconst2(46, BT[0][3]); sconst2(48, PTS[0])
stamp(7)
e('s_waitcnt vmcnt(0)')
stamp(8)
e('s_barrier')
stamp(1)
e('s_cmp_lg_u32 s26, 0')
e('s_cbranch_scc1 Lp_x1')
e('buffer_load_dwordx2 v[24:25], v37, s[16:19], 0 offen sc1')
lab('Lp_x1')
xpair(6, 7)
e('s_bitcmp1_b32 0x0e, s26')
e('s_cbranch_scc0 Lp_x2')
xpair(14, 15)
lab('Lp_x2')
e('s_cmp_ge_u32 s26, 4')
e('s_cbranch_scc1 Lp_h67')
lab('Lp_s2')
e(f'v_mul_u32_u24 v9, {RSTR}, v2')
e('s_lshl_b32 s30, s2, 3')
e(f's_add_u32 s30, s30, {FLAG_OFF}')
e('s_cmp_lg_u32 s26, 0')
e('s_cbranch_scc1 Lp_s2b')
e('s_cmp_ge_u32 s2, 250')
e('s_cbranch_scc1 L_taga')
e('s_waitcnt vmcnt(2)')
e('v_readfirstlane_b32 s92, v24')
e('v_readfirstlane_b32 s93, v25')
e('s_nop 3')
e('s_cmp_lg_u32 s92, 0')
e('s_cbranch_scc1 L_tagda')
gettag('a')
e('v_mov_b32 v38, s92')
e('v_mov_b32 v39, s93')
lab('Lp_s2b')
e('s_waitcnt vmcnt(0)')
e('s_barrier')
e('s_cmp_lg_u32 s26, 0')
e('s_cbranch_scc1 L_pdone')
e(f's_mov_b64 exec, {(1<<REP)-1}')
e('buffer_store_dwordx2 v[38:39], v9, s[20:23], s30 offen sc1')
e('s_mov_b64 exec, -1')
stamp(2)
e('s_branch L_pdone')
def xcoef2():
    for t in (1, 2):
        sconst2(36+6*(t-1), BT[2*t][1]); sconst2(38+6*(t-1), BT[2*t][3]); sconst2(40+6*(t-1), PTS[2*t])
    sconst2(48, BT[6][0]); sconst2(52, BT[6][2]); sconst2(54, BT[6][4])
    e(f's_add_u32 s34, s50, {6*XS}')
lab('Lp_h67')
c('waves 6,7 pass 2: own unit (block 1), then units 2(w-6), 2(w-6)+1 (blocks 2,3)')
xcoef2()
e(f'v_add_u32 v{PA(1)}, s34, v7')
if opt['early']: xrest(6, 1)
e('s_waitcnt vmcnt(0)')
e('s_barrier')
if not opt['early']: xrest(6, 1)
e('s_sub_u32 s30, s26, 6')
e('s_lshl_b32 s30, s30, 1')
lab('Lp_x23')
xaddr(30, 6, 7)
e(f'v_add_u32 v{PA(2)}, s34, v7')
xrest(6, 2)
e('s_add_u32 s30, s30, 1')
lab('Lp_x3')
xaddr(30, 6, 7)
e(f'v_add_u32 v{PA(3)}, s34, v7')
xrest(6, 3)
e('s_branch L_pdone')
lab('Lp_zero')
c('WGs 250,251: zero the 8 leading rows of the 42 arrays of batch b')
e('s_waitcnt lgkmcnt(0)')
common()
e('s_sub_u32 s3, s2, 250')
e(f's_mul_i32 s30, s3, {2*21*XS}')
e('s_lshl_b32 s28, s27, 6')
e('v_add_u32 v3, s28, v2')
for k in range(4): e(f'v_mov_b32 v{16+k}, 0')
for i in range(6):
    e('v_mul_u32_u24 v4, 1366, v3')
    e('v_lshrrev_b32 v4, 16, v4')
    e('v_mul_u32_u24 v5, 48, v4')
    e('v_sub_u32 v5, v3, v5')
    e(f'v_mul_u32_u24 v4, {XS}, v4')
    e('v_lshl_add_u32 v4, v5, 4, v4')
    e('v_cmp_gt_u32 vcc, 2016, v3')
    e(f'v_mov_b32 v5, {OOB}')
    e('v_add_u32 v3, 384, v3')
    e('v_cndmask_b32 v4, v5, v4, vcc')
    e('buffer_store_dwordx4 v[16:19], v4, s[20:23], s30 offen sc1')
e('s_barrier')
e('s_branch Lp_s2')
lab('Lp_w')
e('s_and_b32 s27, s26, 1')
c('w unit: XCD x = id&7 owns a contiguous range of units; local i = id>>3 < 9 takes two')
e('s_and_b32 s28, s2, 7')
e('s_lshr_b32 s29, s2, 3')
e('s_mul_i32 s3, s28, 40')
e('s_min_u32 s30, s28, 4')
e('s_add_u32 s3, s3, s30')
e('s_add_u32 s3, s3, s29')
e('s_min_u32 s30, s29, 9')
e('s_add_u32 s3, s3, s30')
e('s_add_u32 s3, s3, s27')
e('s_mul_i32 s30, s27, s29')
e('s_cmp_ge_u32 s30, 9')
e('s_cbranch_scc1 Lp_wo')
def posdec(P, ko, pos, kk, o, tmp):
    e(f'v_mul_u32_u24 v{ko}, 58255, v{P}')
    e(f'v_lshrrev_b32 v{ko}, 22, v{ko}')
    e(f'v_mul_u32_u24 v{tmp}, 72, v{ko}')
    e(f'v_sub_u32 v{pos}, v{P}, v{tmp}')
    e(f'v_mul_u32_u24 v{kk}, 3641, v{ko}')
    e(f'v_lshrrev_b32 v{kk}, 16, v{kk}')
    e(f'v_mul_u32_u24 v{tmp}, 18, v{kk}')
    e(f'v_sub_u32 v{o}, v{ko}, v{tmp}')
G_ = lambda r, ch: 40+2*(8*r+ch)
e('s_lshl_b32 s28, s3, 5')
e('v_and_b32 v3, 31, v2')
e('v_add_u32 v4, s28, v3')
posdec(4, 5, 6, 7, 8, 9)
e(f'v_mul_u32_u24 v7, {4*82944}, v7')
e('v_mul_u32_u24 v8, 4608, v8')
e('v_lshrrev_b32 v9, 5, v2')
e('v_mul_u32_u24 v10, 288, v9')
e('v_add3_u32 v7, v7, v8, v10')
e('v_lshl_add_u32 v6, v6, 2, v7')
e('s_waitcnt lgkmcnt(0)')
srd(12, 6, 7, 0 if opt['skw'] else 31*144*288*2)
if opt['word']:
    for r in range(1, 4): e(f's_mov_b32 s{36+r}, {82944*r}')
    for ch in range(8):
        for r in range(4):
            e(f'buffer_load_dword v{G_(r,ch)+1}, v6, s[12:15], {"s%d" % (36+r) if r else 0} offen offset:{ch*576}{LDF}')
else:
  for r in range(4):
    for ch in range(8):
        e(f'buffer_load_dword v{G_(r,ch)+1}, v6, s[12:15], 0 offen offset:{ch*576}{LDF}')
    if r < 3: e('v_add_u32 v6, 82944, v6')
stamp(7)
common()
e('s_lshl_b32 s29, s27, 14')
e(f's_add_u32 s29, s29, {WL}')
e('v_lshlrev_b32 v10, 6, v3')
e('v_lshl_add_u32 v10, v9, 5, v10')
e('v_add_u32 v10, s29, v10')
e('v_lshlrev_b32 v11, 4, v2')
e('v_add_u32 v11, s29, v11')
for h in range(2):
    e('v_lshrrev_b32 v4, 2, v2')
    e(f'v_add3_u32 v4, v4, s28, {16*h}')
    posdec(4, 5, 6, 7, 8, 9)
    e('v_mul_u32_u24 v4, 43, v8')
    e('v_lshrrev_b32 v4, 8, v4')
    e('v_mul_u32_u24 v5, 6, v4')
    e('v_sub_u32 v5, v8, v5')
    e('v_lshrrev_b32 v8, 1, v7')
    e('v_add_u32 v8, 8, v8')
    e('v_and_b32 v9, 1, v7')
    e('v_lshl_add_u32 v9, v9, 1, v5')
    e('v_subrev_u32 v9, 4, v9')
    e('v_cmp_le_u32 vcc, 4, v5')
    e('v_mul_u32_u24 v4, 24576, v4')
    e('v_lshrrev_b32 v14, 3, v6')
    e('v_cndmask_b32 v8, v7, v8, vcc')
    e('v_cndmask_b32 v9, v5, v9, vcc')
    e(f'v_mul_u32_u24 v14, {21*24576}, v14')
    e('v_bfe_u32 v15, v6, 2, 1')
    e('v_mul_u32_u24 v15, 12288, v15')
    e(f'v_add3_u32 v{12+h}, v4, v14, v15')
    e(f'v_lshl_add_u32 v{12+h}, v8, 10, v{12+h}')
    e(f'v_lshl_add_u32 v{12+h}, v9, 8, v{12+h}')
    e('v_and_b32 v4, 3, v6')
    e(f'v_lshl_add_u32 v{12+h}, v4, 6, v{12+h}')
    e('v_and_b32 v4, 3, v2')
    e(f'v_lshl_add_u32 v{12+h}, v4, 4, v{12+h}')
def wcoef(t):
    for r in range(4):
        assert abs(GS[2*t+1][r] - (1 if r % 2 == 0 else -1)*GS[2*t][r]) < 1e-12
        e(f'v_mul_f32 v{160+2*r}, {fh(GS[2*t][r])}, v14')
        e(f'v_mov_b32 v{161+2*r}, v{160+2*r}')
e(f's_mov_b32 s34, {WT_OFF}')
e('v_cmp_le_u32 vcc, 32, v2')
e(f'v_mov_b32 v14, {fh(-2*LOG2E)}')
e(f'v_mov_b32 v15, {fh(-LOG2E)}')
e('v_cndmask_b32 v14, v14, v15, vcc')
e('v_mov_b32 v15, v14')
wcoef(0)
stamp(8)
e('s_barrier')
stamp(1)
e('s_waitcnt vmcnt(0)')
stamp(2)
for k in range(32):
    e(f'v_lshlrev_b32 v{40+2*k}, 16, v{41+2*k}')
    e(f'v_and_b32 v{41+2*k}, s33, v{41+2*k}')
e('s_mov_b32 s53, 0')
lab('Lp_wloop')
for dw in range(4):
    for c2 in range(2):
        ch = 2*dw+c2
        E, O = 104+4*c2, 106+4*c2
        e(f'v_pk_mul_f32 {vp(E)}, {vp(160)}, {vp(G_(0,ch))}')
        e(f'v_pk_mul_f32 {vp(O)}, {vp(162)}, {vp(G_(1,ch))}')
        e(f'v_pk_fma_f32 {vp(E)}, {vp(164)}, {vp(G_(2,ch))}, {vp(E)}')
        e(f'v_pk_fma_f32 {vp(O)}, {vp(166)}, {vp(G_(3,ch))}, {vp(O)}')
        pkadd(112+4*c2, O, E)
        pkadd(114+4*c2, E, O, negb=True)
    for sgn in range(2):
        for n in range(2):
            e(f'v_cvt_pk_bf16_f32 v{120+8*sgn+4*n+dw}, v{112+2*sgn+n}, v{116+2*sgn+n}')
for sgn in range(2):
    for n in range(2):
        e(f'ds_write_b128 v10, {vr(120+8*sgn+4*n)} offset:{sgn*2048 + n*16}')
e('s_add_u32 s53, s53, 1')
e('s_waitcnt lgkmcnt(0)')
e('v_add_u32 v10, 4096, v10')
e('s_cmp_eq_u32 s53, 3')
e('s_cbranch_scc1 Lp_w3')
e('s_cmp_eq_u32 s53, 1')
e('s_cbranch_scc1 Lp_w1')
wcoef(2)
if opt['early']:
    e('s_waitcnt vmcnt(0)')
    e('s_barrier')
e('s_branch Lp_wloop')
lab('Lp_w1')
for k in range(4): e(f'ds_read_b128 {vr(136+4*k)}, v11 offset:{k*1024}')
for k in range(4):
    e(f's_waitcnt lgkmcnt({3-k})')
    e(f'buffer_store_dwordx4 {vr(136+4*k)}, v{12+k%2}, s[20:23], s34 offen sc1')
    if k % 2 == 1: e(f's_add_u32 s34, s34, {3*24576}')
wcoef(1)
if not opt['early']:
    e('s_waitcnt vmcnt(0)')
    e('s_barrier')
e('s_branch Lp_wloop')
lab('Lp_w3')
for ch in range(8): e(f'v_pk_mul_f32 {vp(G_(3,ch))}, {vp(G_(3,ch))}, v[14:15]')
for n in range(2):
    for dw in range(4):
        e(f'v_cvt_pk_bf16_f32 v{120+4*n+dw}, v{G_(3,2*dw)+n}, v{G_(3,2*dw+1)+n}')
    e(f'ds_write_b128 v10, {vr(120+4*n)} offset:{n*16}')
e('s_waitcnt lgkmcnt(0)')
for k in range(10):
    e(f'ds_read_b128 {vr(PK(k % 2, k//2))}, v11 offset:{4096 + k*1024}')
e(f'v_add_u32 v{PA(0)}, s34, v12')
e(f'v_add_u32 v{PA(1)}, s34, v13')
e(f's_mov_b32 s96, {3*24576}')
e(f's_mov_b32 s97, {3*24576}')
e('s_waitcnt lgkmcnt(0)')
lab('Lp_wx')
c('then x pass 2: wave 4: unit 8 (block 3) ; wave 5: units 4,5 (blocks 2,3)')
e('s_cmp_ge_u32 s2, 250')
e('s_cbranch_scc1 L_pdone')
xcoef2()
e('s_mov_b32 s30, 8')
e('s_cmp_eq_u32 s26, 4')
e('s_cbranch_scc1 Lp_x3')
e('s_mov_b32 s30, 4')
e('s_branch Lp_x23')
lab('Lp_wo')
e('s_waitcnt lgkmcnt(0)')
common()
e('s_sub_u32 s3, s2, 72')
e('s_cmp_ge_u32 s3, 45')
e('s_cbranch_scc1 Lp_wo2')
srd(12, 8, 9, 144*144*2)
e('s_mul_i32 s28, s3, 13108')
e('s_lshr_b32 s28, s28, 16')
e('s_mul_i32 s29, s28, 5')
e('s_sub_u32 s29, s3, s29')
e('v_and_b32 v7, 15, v2')
e('v_lshrrev_b32 v8, 4, v2')
e('s_cmp_eq_u32 s28, 8')
e('s_cselect_b32 s30, 1, 4')
e('s_cselect_b32 s34, 256, 0')
e('s_cselect_b32 s28, 0, s28')
e('s_lshl_b32 s28, s28, 1')
e('s_add_u32 s34, s34, s28')
e(f's_mul_i32 s29, s29, {32*288}')
e('s_add_u32 s34, s34, s29')
e('v_lshlrev_b32 v9, s30, v7')
e('v_mul_u32_u24 v14, 576, v8')
e('v_add3_u32 v14, v14, v9, s34')
for d in range(4):
    e(f'buffer_load_ushort v{40+2*d}, v14, s[12:15], 0 offen')
    e(f'buffer_load_ushort v{41+2*d}, v14, s[12:15], 0 offen offset:288')
    if d < 3: e('v_add_u32 v14, 2304, v14')
e('s_lshl_b32 s3, s3, 10')
e(f's_add_u32 s3, s3, {WO_OFF}')
e('v_lshlrev_b32 v1, 4, v2')
e('s_barrier')
e('s_waitcnt vmcnt(0)')
for d in range(4):
    e(f'v_lshl_or_b32 v{48+d}, v{41+2*d}, 16, v{40+2*d}')
e('buffer_store_dwordx4 v[48:51], v1, s[20:23], s3 offen sc1')
e('s_waitcnt vmcnt(0)')
e('s_barrier')
e('s_branch Lp_wx')
lab('Lp_wo2')
e('s_barrier')
e('s_barrier')
e('s_branch Lp_wx')

def M(t): return 12 + 4*t
def MD(t): return 48 + 4*t
def FR(k): return vr(84 + 4*k)
lab('L_pdone')
e('v_lshlrev_b32 v101, 4, v2')
e('v_min_u32 v36, 62, v2')
e('v_lshlrev_b32 v36, 5, v36')
e(f's_and_b32 s30, s2, {REP-1}')
e(f's_mul_i32 s30, s30, {RSTR}')
e('v_add_u32 v36, s30, v36')
e(f'v_mul_u32_u24 v12, {RSTR}, v2')
c('unit = base[xcd] + (id>>3)')
e('s_and_b32 s25, s2, 7')
e('s_lshr_b32 s24, s2, 3')
e('s_mul_i32 s27, s25, 31')
e('s_min_u32 s28, s25, 4')
e('s_add_u32 s27, s27, s28')
e('s_add_u32 s27, s27, s24')
e('s_mul_i32 s28, s27, 7282')
e('s_lshr_b32 s28, s28, 16')
e('s_mul_i32 s29, s28, 9')
e('s_sub_u32 s29, s27, s29')
e('s_and_b32 s24, s26, 3')
e('s_lshr_b32 s32, s24, 1')
e('s_and_b32 s33, s24, 1')
e('s_mul_i32 s34, s24, 7168')
e('s_mul_i32 s35, s24, 6144')
c('z soffset s62: (((g*2+rh)*9+gs)*18+J)*1024')
e('s_lshl_b32 s62, s28, 1')
e('s_add_u32 s62, s62, s32')
e(f's_mul_i32 s62, s62, {9*18*1024}')
e('s_lshl_b32 s63, s29, 1')
e('s_add_u32 s63, s63, s33')
e('s_lshl_b32 s63, s63, 10')
e('s_add_u32 s62, s62, s63')
e(f's_add_u32 s62, s62, {Z_OFF}')
e('s_mul_i32 s30, s28, 9363')
e('s_lshr_b32 s30, s30, 16')
e('s_mul_i32 s38, s30, 7')
e('s_sub_u32 s38, s28, s38')
e(f's_mul_i32 s36, s30, {21*XS}')
e('s_mul_i32 s37, s38, 27648')
e('s_add_u32 s36, s36, s37')
e('s_add_u32 s36, s36, s34')
e(f's_mul_i32 s37, s29, {21*24576}')
e('s_add_u32 s37, s37, s35')
e(f's_add_u32 s37, s37, {WT_OFF}')
e('s_cmp_ge_u32 s26, 4')
e('s_cbranch_scc1 L_helper')
e('s_cmp_lg_u32 s26, 0')
e('s_cbranch_scc1 L_c13')
c('wave 0: wait for all A flags, then load the whole phase 0 tile')
if opt['agg']:
    e('s_cmp_lg_u32 s2, 0')
    e('s_cbranch_scc1 L_gow')
if opt['dly']: e(f's_sleep {opt["dly"]}')
poll(0, 'A')
if opt['agg']:
    c('WG 0 saw all A flags: release everybody through 8 go words')
    e('v_mul_u32_u24 v9, 4352, v2')
    e(f's_mov_b32 s30, {FLAG_OFF+GOF}')
    e('s_mov_b64 exec, 0xff')
    e('buffer_store_dwordx2 v[38:39], v9, s[20:23], s30 offen sc1')
    e('s_mov_b64 exec, -1')
    e('s_branch L_god')
    lab('L_gow')
    e('s_mul_i32 s30, s25, 4352')
    e(f's_add_u32 s30, s30, {FLAG_OFF+GOF}')
    e('s_mov_b32 s31, 0')
    e('s_mov_b64 exec, 1')
    lab('L_gol')
    e('buffer_load_dwordx2 v[24:25], v37, s[20:23], s30 offen sc1')
    e('s_add_u32 s31, s31, 1')
    e('s_cmp_gt_u32 s31, 40000')
    e('s_cbranch_scc1 L_gox')
    e('s_waitcnt vmcnt(0)')
    e('v_cmp_ne_u64 vcc, s[92:93], v[24:25]')
    e('s_cbranch_vccz L_gox')
    e(f's_sleep {opt["gslp"]}')
    e('s_branch L_gol')
    lab('L_gox')
    e('s_mov_b64 exec, -1')
    lab('L_god')
stamp(3)
for k in range(52):
    if k % 4 == 0:
        e(f's_mov_b32 m0, {k*1024}')
        e(f's_add_u32 s30, s36, {k*1024}' if k < 28 else f's_add_u32 s30, s37, {(k-28)*1024}')
    e(f'buffer_load_dwordx4 v101, s[20:23], s30 offen offset:{(k%4)*1024} sc1 lds')
lab('L_c13')
e('s_barrier')
if opt['prio']: e(f's_setprio {opt["prio"]}')
e('v_and_b32 v124, 15, v2')
e('v_lshrrev_b32 v125, 4, v2')
e('v_mul_u32_u24 v126, 864, v124')
e('s_mul_i32 s38, s32, 13824')
e('v_add_u32 v126, s38, v126')
e('v_lshl_add_u32 v2, v125, 4, v126')
e('v_lshrrev_b32 v127, 1, v125')
e('v_mul_u32_u24 v127, 96, v127')
e('v_sub_u32 v127, v126, v127')
e('v_and_b32 v128, 1, v125')
e('v_lshl_add_u32 v127, v128, 4, v127')
e('v_add_u32 v5, 160, v127')
e('s_mul_i32 s38, s33, 12288')
e('s_add_u32 s38, s38, 28672')
e('v_add_u32 v8, s38, v101')
for s in (1, 2):
    e(f'v_add_u32 v{2+s}, {s*SLOT}, v2')
    e(f'v_add_u32 v{5+s}, {s*SLOT}, v5')
    e(f'v_add_u32 v{8+s}, {s*SLOT}, v8')
e(f's_add_u32 s38, s34, {2*SLOT}')
e('v_add_u32 v1, s38, v101')
e(f's_add_u32 s38, s35, {2*SLOT+28672}')
e('v_add_u32 v11, s38, v101')
for r in range(48, 84): e(f'v_mov_b32 v{r}, 0')

frags = []; mf = []
for tp in range(-7, 9):
    for kk in range(min(7, 8-tp), max(0, -tp)-1, -1):
        mf.append((tp+kk, ('W', kk), ('X', tp)))
for tp in range(-6, 9):
    for pp in range(3, -1, -1):
        if 0 <= tp+2*pp <= 8: mf.append((tp+2*pp, ('WT', pp), ('XT', tp)))
assert len(mf) == 108
fu = {}
for s, (t, wk, xk) in enumerate(mf):
    for k in (xk, wk):
        if k not in fu: fu[k] = s; frags.append(k)
assert len(frags) == 43
fidx = {k: i for i, k in enumerate(frags)}
LA = opt['LA']; BAR = 108 - LA; ELAST = BAR - 6
iss = [(-LA + (k*(ELAST+LA))//42) for k in range(43)]
for k in range(43): assert iss[k] <= fu[frags[k]] - 8, (k, iss[k], fu[frags[k]])
def rd(k, slot):
    kind, i = frags[k]
    if kind == 'X': return f'ds_read_b128 {FR(k)}, v{2+slot} offset:{(i+8)*96}'
    if kind == 'XT': return f'ds_read_b128 {FR(k)}, v{5+slot} offset:{(i+7)*96}'
    if kind == 'W': return f'ds_read_b128 {FR(k)}, v{8+slot} offset:{i*1024}'
    return f'ds_read_b128 {FR(k)}, v{8+slot} offset:{(8+i)*1024}'
npre = sum(1 for x in iss if x < 0)
first_touch = {}; last_touch = {}
for s, (t, wk, xk) in enumerate(mf):
    first_touch.setdefault(t, s); last_touch[t] = s
def snapw(t):
    return f'ds_write_b128 v1, {vr(MD(t))} offset:{t*1024}' if t < 7 else f'ds_write_b128 v11, {vr(MD(t))} offset:{(t-7)*1024}'
QS = opt['QS']
ext = [[] for _ in range(324)]
for ph in range(3):
    for k in range(43):
        ext[(ph*108 + iss[k]) % 324].append(('rd', k, ph))
used = [len(x) for x in ext]
lastw = 0
for t in range(9):
    pos = max(216 + last_touch[t] + 8, lastw + opt['wsp'])
    while used[pos % 324]: pos += 1
    lastw = pos
    used[pos % 324] += 1
    assert pos >= 216 + BAR and pos < 324 + QS - 2
    ext[pos % 324].append(('wr', t, 0))
e('s_waitcnt vmcnt(0)')
stamp(4)
e('s_barrier')
stamp(5)
if opt['dbgst']: e('s_memtime s[90:91]')
for k in range(npre): e(rd(k, 0))
e('s_mov_b32 s39, 7')
e('s_waitcnt lgkmcnt(0)')
out.append('.p2align 6')
lab('L_loop')
seq = 0; rseq = {}; covered = -1; wseq = -1
for it in range(2):
    emit = e if it == 1 else (lambda s: None)
    for ph in range(3):
        if it == 1: c(f'======== phase {ph}')
        for s, (t, wk, xk) in enumerate(mf):
            if s == BAR:
                emit('s_waitcnt lgkmcnt(0)')
                emit('s_barrier')
                covered = seq - 1
            if ph == 0 and s == QS:
                if wseq > covered:
                    emit(f's_waitcnt lgkmcnt({min(15, seq-1-wseq)})')
                    covered = max(covered, seq - 1 - min(15, seq-1-wseq))
                emit('s_barrier')
            need = max(rseq.get((ph, fidx[wk]), -1), rseq.get((ph, fidx[xk]), -1))
            if need > covered:
                allow = min(seq - 1 - need, 4)
                emit(f's_waitcnt lgkmcnt({allow})')
                covered = seq - 1 - allow
            cin = vr(MD(t)) if (ph == 0 and first_touch[t] == s) else vr(M(t))
            dst = vr(MD(t)) if (ph == 2 and last_touch[t] == s) else vr(M(t))
            emit(f'v_mfma_f32_16x16x32_bf16 {dst}, {FR(fidx[wk])}, {FR(fidx[xk])}, {cin}')
            for x in ext[ph*108+s]:
                if x[0] == 'rd':
                    emit(rd(x[1], x[2])); rseq[(x[2], x[1])] = seq; seq += 1
                else:
                    emit(snapw(x[1])); wseq = seq; seq += 1
            if ph == 2 and s == 104: emit('s_sub_u32 s39, s39, 1')
            if ph == 2 and s == 105: emit('s_cmp_lg_u32 s39, 0')
e('s_cbranch_scc1 L_loop')
stamp(6)
if opt['dbgst']: e('s_memtime s[94:95]')
c('---- compute-wave epilogue: gate y3 = MD')
e('s_waitcnt lgkmcnt(0)')
def gate_consts():
    e(f's_mov_b32 s46, {fh(-0.6931471805599453)}')
    e(f's_mov_b32 s42, {fh(2*LOG2E*2**-12)}')
    e('s_mov_b32 s43, 0x41f00000')
def gate(a, r, dst, sp):
    L = []
    L.append(f'v_min_f32 v{r}, s43, v{a}')
    L.append(f'v_min_f32 v{r+1}, s43, v{a+1}')
    L.append(f'v_exp_f32 v{a+2}, v{a+2}')
    L.append(f'v_exp_f32 v{a+3}, v{a+3}')
    L.append(f'v_exp_f32 v{r}, v{r}')
    L.append(f'v_exp_f32 v{r+1}, v{r+1}')
    if opt['smallfix']:
        L.append(f'v_cmp_gt_f32 s[{sp}:{sp+1}], s42, abs(v{a})')
        L.append(f'v_cmp_gt_f32 s[{sp+2}:{sp+3}], s42, abs(v{a+1})')
    L.append(f'v_add_f32 v{r+2}, 1.0, v{r}')
    L.append(f'v_add_f32 v{r+3}, 1.0, v{r+1}')
    if opt['smallfix']:
        L.append(f'v_mul_f32 v{a}, s46, v{a}')
        L.append(f'v_mul_f32 v{a+1}, s46, v{a+1}')
    L.append(f'v_fmac_f32 v{r+2}, v{r+2}, v{a+2}')
    L.append(f'v_fmac_f32 v{r+3}, v{r+3}, v{a+3}')
    L.append(f'v_sub_f32 v{r}, 1.0, v{r}')
    L.append(f'v_sub_f32 v{r+1}, 1.0, v{r+1}')
    L.append(f'v_rcp_f32 v{r+2}, v{r+2}')
    L.append(f'v_rcp_f32 v{r+3}, v{r+3}')
    if opt['smallfix']:
        L.append(f'v_cndmask_b32 v{r}, v{r}, v{a}, s[{sp}:{sp+1}]')
        L.append(f'v_cndmask_b32 v{r+1}, v{r+1}, v{a+1}, s[{sp+2}:{sp+3}]')
    L.append(f'v_mul_f32 v{r}, v{r}, v{r+2}')
    L.append(f'v_mul_f32 v{r+1}, v{r+1}, v{r+3}')
    L.append(f'v_cvt_pk_bf16_f32 v{dst}, v{r}, v{r+1}')
    return L
gate_consts()
e('v_and_b32 v100, 63, v0')
e('v_lshlrev_b32 v101, 4, v100')
e(f's_add_u32 s63, s62, {7*18432}')
for t in range(9):
    for x in gate(MD(t), 104 + 4*(t % 2), 112 + t, 48): e(x)
    if t in (3, 7):
        e(f'buffer_store_dwordx4 v[{112+t-3}:{112+t}], v101, s[20:23], s63 offen sc1')
        e('s_add_u32 s63, s63, 18432')
e(f's_add_u32 s63, s62, {6*18432}')
e('buffer_store_dword v120, v101, s[20:23], s63 offen offset:12 sc1')
e('s_branch L_fin')
def hbar():
    if opt['bst']:
        e('s_memtime s[64:65]')
        e('s_barrier')
        e('s_memtime s[66:67]')
        e('s_waitcnt lgkmcnt(0)')
        e('s_mov_b32 m0, s68'); e('s_nop 0')
        e('v_writelane_b32 v14, s64, m0')
        e('v_writelane_b32 v15, s66, m0')
        e('s_add_u32 s68, s68, 1')
    else: e('s_barrier')
lab('L_helper')
if opt['bst']: e('s_mov_b32 s68, 0')
def Y(i, t): return 40 + 4*(i*9+t)
def SN(t): return 148 + 4*t
e('v_mov_b32 v3, v101')
e('v_add_u32 v13, 4096, v101')
e(f's_add_u32 s38, s34, {2*SLOT}')
e('v_add_u32 v4, s38, v101')
e(f's_add_u32 s38, s35, {2*SLOT+28672}')
e('v_add_u32 v5, s38, v101')
e('s_cmp_eq_u32 s26, 4')
e('s_cbranch_scc1 L_h4')
e(f'v_mov_b32 v36, {OOB}')
e(f'v_mov_b32 v12, {OOB}')
e('s_branch L_h5')
lab('L_h4')
e('s_mov_b32 s31, 0')
gettag('h')
lab('L_h5')
e('v_mov_b32 v38, s92')
e('v_mov_b32 v39, s93')
def dma_list(slot):
    L = []
    for k in range(7):
        pre = [f's_add_u32 m0, s34, {slot*SLOT + (k//4)*4096}', 's_nop 0']
        L.append(pre + [f'buffer_load_dwordx4 v{3 if k < 4 else 13}, s[20:23], s36 offen offset:{(k%4)*1024} sc1 lds'] + ([f's_add_u32 s36, s36, {XS}'] if k == 6 else []))
    for k in range(6):
        pre = [f's_add_u32 m0, s35, {slot*SLOT + 28672 + (k//4)*4096}', 's_nop 0']
        L.append(pre + [f'buffer_load_dwordx4 v{3 if k < 4 else 13}, s[20:23], s37 offen offset:{(k%4)*1024} sc1 lds'] + (['s_add_u32 s37, s37, 24576'] if k == 5 else []))
    return L
def pst(b, pm):
    return [f'buffer_store_dwordx4 {vr(PK(b,pm))}, v{PA(b)}, s[20:23], 0 offen sc1', f'v_add_u32 v{PA(b)}, s{96+b}, v{PA(b)}']
def weave(dl, sl):
    res = []; n = len(sl); m = len(dl)
    for i in range(m):
        res.append(dl[i])
        for k in range((i*n)//m, ((i+1)*n)//m): res.append(sl[k])
    return res
def mix(dl, vl):
    n = len(dl)
    for i, d in enumerate(dl):
        for x in d: e(x)
        for x in vl[(i*len(vl))//n:((i+1)*len(vl))//n]: e(x)
    if n == 0:
        for x in vl: e(x)
def nvm(dl, after):
    return len(dl) - 1 - after
def snapr():
    for t in range(9):
        e(f'ds_read_b128 {vr(SN(t))}, v4 offset:{t*1024}' if t < 7 else f'ds_read_b128 {vr(SN(t))}, v5 offset:{(t-7)*1024}')
    e('s_waitcnt lgkmcnt(0)')
FM = [f'v_fmac_f32 v{Y(i,t)+r}, s{40+i}, v{SN(t)+r}' for t in range(9) for i in range(3) for r in range(4)]
FM1 = [f'v_mul_f32 v{Y(i,t)+r}, s{40+i}, v{SN(t)+r}' for t in range(9) for i in range(3) for r in range(4)]
e(f's_add_u32 s36, s36, {XS}')
e('s_add_u32 s37, s37, 24576')
e('s_barrier')
mix(dma_list(1), [])
c('coefficient table: s40.. = 3 x 6, consumed from the front')
for m in range(6):
    for i in range(3): e(f's_mov_b32 s{40+3*m+i}, {fh(DCH[i][m])}')
hbar()
ND0 = opt['nd0']
def only4(name, fn):
    e('s_cmp_lg_u32 s26, 4')
    e(f's_cbranch_scc1 L_o4{name}')
    fn()
    lab(f'L_o4{name}')
def hflag(off):
    e('s_lshl_b32 s30, s2, 3')
    e(f's_add_u32 s30, s30, {FLAG_OFF+off}')
    e(f's_mov_b64 exec, {(1<<REP)-1}')
    e('buffer_store_dwordx2 v[38:39], v12, s[20:23], s30 offen sc1')
    e('s_mov_b64 exec, -1')
def hiter(name, fm, sa=(), sc_=(), flag0=None, flag1=None, chk=None):
    if chk is not None: poll_issue(chk)
    for g_ in sa:
        for x in g_: e(x)
    hbar()
    if fm: snapr()
    D2 = dma_list(2)
    mix(D2[:ND0], [])
    e(f's_waitcnt vmcnt({ND0 + len(sa)})')
    if chk is not None:
        def f():
            poll_check()
            e(f's_cbranch_scc0 L_o4c{name}')
            poll(chk, name)
        only4('c'+name, f)
    hbar()
    if flag0 is not None: hflag(flag0)
    mix(D2[ND0:] + dma_list(0), fm[:40])
    e('s_waitcnt vmcnt(13)')
    hbar()
    if flag1 is not None: hflag(flag1)
    mix(list(sc_) + dma_list(1), fm[40:])
    if fm:
        for k in range(15): e(f's_mov_b32 s{40+k}, s{43+k}')
    e(f's_waitcnt vmcnt({13 + len(sc_) + (1 if flag1 is not None else 0)})')
    hbar()
ST = [pst(b, pm) for pm in range(5) for b in range(4)]
hiter('0', [], sa=ST[0:4], sc_=ST[4:8], flag1=1*FA)
hiter('1', FM1, sa=ST[8:12], sc_=ST[12:16], flag0=2*FA, chk=1*FA)
hiter('2', FM, sa=ST[16:20], flag0=3*FA, chk=2*FA)
hiter('3', FM, flag0=4*FA, chk=3*FA)
hiter('4', FM)
hiter('5', FM, chk=4*FA)
c('---- last product')
if opt['sw'] == 4: stamp(6)
hbar()
snapr()
F0 = opt['f0']
D2 = dma_list(2)
mix(D2[:ND0], FM[:F0])
e(f's_waitcnt vmcnt({ND0})')
hbar()
WD = []
for k in range(12):
    WD.append([f's_add_u32 m0, s61, {(k//4)*4096}', 's_nop 0', f'buffer_load_dwordx4 v3, s[20:23], s60 offen offset:{(k%4)*1024} sc1 lds'] + (['s_add_u32 s60, s60, 4096'] if k % 4 == 3 else []))
e('s_mul_i32 s61, s24, 12288')
e(f's_add_u32 s60, s61, {WO_OFF}')
mix(D2[ND0:] + WD, FM[F0:])
gate_consts()
e('s_mov_b32 s63, s62')
nst = [0]
def hgate(n0, n1):
    for n in range(n0, n1):
        t, i = divmod(n, 3)
        for x in gate(Y(i, t), 184 + 4*(n % 2), 200 + n, 48): e(x)
        if n % 4 == 3:
            e(f'buffer_store_dwordx4 v[{200+n-3}:{200+n}], v3, s[20:23], s63 offen sc1')
            e('s_add_u32 s63, s63, 18432'); nst[0] += 1
        if n == 26:
            e('buffer_store_dwordx3 v[224:226], v3, s[20:23], s63 offen sc1'); nst[0] += 1
g1 = opt['g1']; g2 = min(27, g1 + opt['g2'])
hgate(0, g1)
e(f's_waitcnt vmcnt({nst[0]+12})')
hbar()
hgate(g1, g2)
hbar()
hgate(g2, 27)
if opt['bst']:
    e('s_memtime s[64:65]')
    e('s_waitcnt lgkmcnt(0)')
    e('s_mov_b32 m0, s68'); e('s_nop 0')
    e('v_writelane_b32 v14, s64, m0')
    e('v_writelane_b32 v15, s64, m0')
    e('s_cmp_lg_u32 s26, 4')
    e('s_cbranch_scc1 L_fin')
    e('s_mov_b32 s22, 0x10000000')
    e('s_lshl_b32 s33, s2, 9')
    e(f's_add_u32 s33, s33, {STAMP_OFF + (128<<10)*4}')
    e('v_lshrrev_b32 v1, 1, v3')
    e('buffer_store_dwordx2 v[14:15], v1, s[20:23], s33 offen')
lab('L_fin')
e('s_setprio 0')
e('s_load_dwordx2 s[6:7], s[0:1], 24')
if not opt['es']: stamp(7)
e('v_and_b32 v2, 63, v0')
e('v_lshlrev_b32 v3, 4, v2')
e('v_mov_b32 v37, 0')
e('s_lshl_b32 s40, s27, 1')
e('s_lshr_b32 s41, s26, 2')
e('s_add_u32 s40, s40, s41')
e('s_mul_i32 s30, s40, 7282')
e('s_lshr_b32 s30, s30, 16')
e('s_mul_i32 s31, s30, 9')
e('s_sub_u32 s31, s40, s31')
e('s_mul_i32 s32, s30, 4682')
e('s_lshr_b32 s32, s32, 16')
e('s_mul_i32 s33, s32, 14')
e('s_sub_u32 s33, s30, s33')
e('s_lshr_b32 s37, s32, 1')
e('s_and_b32 s38, s32, 1')
e('s_mul_i32 s37, s37, 4608000')
e('s_waitcnt lgkmcnt(0)')
e('s_add_u32 s6, s6, s37'); e('s_addc_u32 s7, s7, 0')
srd(16, 6, 7, 4608000)
e('s_mul_i32 s39, s33, 1152')
e('s_add_u32 s39, s39, s38')
e('s_add_u32 s39, s39, 6')
e('s_lshl_b32 s45, s31, 2')
e('s_add_u32 s45, s45, s24')
e('s_mul_i32 s42, s45, 171')
e('s_lshr_b32 s42, s42, 9')
e('s_mul_i32 s43, s42, 3')
e('s_sub_u32 s43, s45, s43')
e('s_sub_u32 s44, s45, 28')
e('s_cmp_ge_u32 s45, 27')
e('s_cselect_b32 s42, s44, s42')
e('s_cselect_b32 s43, 3, s43')
e('s_cmp_eq_u32 s45, 27')
e('s_cselect_b32 s42, 8, s42')
e('s_lshl_b32 s42, s42, 3')
e('s_lshl_b32 s43, s43, 1')
e('s_add_u32 s42, s42, s39')
e('s_sub_u32 s42, s42, s43')
e('s_mul_i32 s45, s42, 288')
e('v_lshrrev_b32 v7, 4, v2')
e(f'v_mul_u32_u24 v7, {4*72*288}, v7')
e('v_add_u32 v7, s45, v7')
e('v_and_b32 v8, 15, v2')
e('v_lshl_add_u32 v11, v8, 1, v7')
e('v_lshl_add_u32 v10, v8, 4, v7')
e('s_mul_i32 s46, s27, 36864')
e('s_lshl_b32 s47, s26, 10')
e('s_add_u32 s46, s46, s47')
e(f's_add_u32 s46, s46, {Z_OFF}')
e('s_mul_i32 s48, s41, 18432')
e('s_lshl_b32 s49, s24, 2')
e('s_add_u32 s48, s48, s49')
e(f's_add_u32 s48, s48, {SLOT}')
e('v_add_u32 v4, s48, v3')
e('v_mov_b32 v34, 0')
e('v_mov_b32 v35, 0')
e('s_waitcnt vmcnt(0)')
e('s_barrier')
if not opt['es']: stamp(8)
def bf(f): return vr(76 + 4*f)
def preB():
    for f in range(45):
        e(f'ds_read_b128 {bf(f)}, v3 offset:{f*1024}')
        if f % 12 == 11: e('s_waitcnt lgkmcnt(4)')
e('s_cmp_lg_u32 s26, 4')
e('s_cbranch_scc1 L_e1b')
e('s_lshl_b32 s50, s28, 7')
e(f's_add_u32 s50, s50, {FLAG_OFF+ZFL}')
setflag(['s_lshl_b32 s30, s29, 3', 's_add_u32 s30, s30, s50'])
lab('L_e1b')
preB()
e('s_cmp_lg_u32 s26, 4')
e('s_cbranch_scc1 L_e2')
e('v_min_u32 v5, 8, v2')
e('v_lshlrev_b32 v5, 3, v5')
e('s_mov_b32 s51, 0')
lab('L_zpoll')
e('buffer_load_dwordx2 v[38:39], v5, s[20:23], s50 offen sc1')
e('s_add_u32 s51, s51, 1')
e('s_cmp_gt_u32 s51, 20000')
e('s_cbranch_scc1 L_e2')
e('s_waitcnt vmcnt(0)')
e('v_cmp_ne_u64 vcc, s[92:93], v[38:39]')
e('s_cbranch_vccz L_e2')
e('s_sleep 1')
e('s_branch L_zpoll')
lab('L_e2')
e('s_barrier')
stamp(9)
for i in range(5):
    if i == 4:
        e('s_cmp_ge_u32 s26, 4')
        e('s_cbranch_scc1 L_e3')
    e(f's_add_u32 m0, s47, {SLOT + i*8192}')
    e('s_nop 0')
    e('buffer_load_dwordx4 v3, s[20:23], s46 offen sc1 lds')
    if i < 4: e('s_add_u32 s46, s46, 8192')
lab('L_e3')
e('s_waitcnt vmcnt(0) lgkmcnt(0)')
e('s_barrier')
stamp(10)
if opt['stamps']: e('s_waitcnt lgkmcnt(0)')
for J in range(14): e(f'ds_read_b32 v{16+J}, v4 offset:{J*1024}')
for ks in range(5):
    if ks == 0: e('s_waitcnt lgkmcnt(10)')
    if ks == 1: e('s_waitcnt lgkmcnt(10)')
    if ks == 2: e('s_waitcnt lgkmcnt(6)')
    if ks == 3: e('s_waitcnt lgkmcnt(2)')
    if ks == 4: e('s_waitcnt lgkmcnt(0)')
    for T in range(9):
        r = 40 + 4*T
        cin = '0' if ks == 0 else vr(r)
        e(f'v_mfma_f32_16x16x32_bf16 {vr(r)}, v[{16+4*ks}:{16+4*ks+3}], {bf(T*5+ks)}, {cin}')
        if ks == 0 and T < 4: e(f'ds_read_b32 v{30+T}, v4 offset:{(14+T)*1024}')
e('s_nop 7')
e('s_nop 1')
for r in range(4):
    d = 140 + 6*r
    A = lambda T: 40 + 4*T + r
    for h in range(4): e(f'v_cvt_pk_bf16_f32 v{d+h}, v{A(2*h)}, v{A(2*h+1)}')
    e(f'v_cvt_pk_bf16_f32 v{d+4}, v{A(8)}, v{A(8)}')
    e(f'buffer_store_dwordx4 v[{d}:{d+3}], v10, s[16:19], 0 offen{OF[opt["of"]]}')
    e(f'buffer_store_short v{d+4}, v11, s[16:19], 0 offen offset:256{OF[opt["of2"]]}')
    if r < 3:
        e(f'v_add_u32 v10, {72*288}, v10')
        e(f'v_add_u32 v11, {72*288}, v11')
if opt['stamps']:
    e('s_waitcnt vmcnt(0)')
    stamp(11)
    e('s_waitcnt lgkmcnt(0)')
    e(f's_cmp_lg_u32 s26, {opt["sw"]}')
    e('s_cbranch_scc1 L_end')
    if opt['dbgst']:
        e(f's_cmp_lg_u32 s2, {opt["dbgst"]}')
        e('s_cbranch_scc1 L_end')
        e('s_load_dwordx2 s[56:57], s[0:1], 32')
        e('s_waitcnt lgkmcnt(0)')
        srd(16, 56, 57, 256)
        e('v_mov_b32 v1, 0')
        for i in range(1, 12):
            e(f's_sub_u32 s33, s{64+2*i}, s64')
            e('v_mov_b32 v4, s33')
            e(f'buffer_store_dword v4, v1, s[16:19], 0 offen offset:{4+4*i}')
        e('s_sub_u32 s33, s94, s90')
        e('v_mov_b32 v4, s33')
        e('buffer_store_dword v4, v1, s[16:19], 0 offen offset:56')
        e('s_branch L_end')
    e('s_mov_b32 s22, 0x10000000')
    e('s_lshl_b32 s33, s2, 7')
    e(f's_add_u32 s33, s33, {STAMP_OFF}')
    e('v_mov_b32 v1, s33')
    for i in range(6):
        for k in range(4): e(f'v_mov_b32 v{4+k}, s{64+4*i+k}')
        e(f'buffer_store_dwordx4 v[4:7], v1, s[20:23], 0 offen offset:{16*i}')
        e('s_nop 1')
lab('L_end')
e('s_endpgm')
tail = f"""
.section .rodata,"a"
.p2align 6
.amdhsa_kernel {NAME}_kernel
  .amdhsa_next_free_vgpr 256
  .amdhsa_next_free_sgpr 100
  .amdhsa_accum_offset 256
  .amdhsa_group_segment_fixed_size 0
  .amdhsa_kernarg_size 48
  .amdhsa_user_sgpr_count 2
  .amdhsa_user_sgpr_kernarg_segment_ptr 1
  .amdhsa_system_sgpr_workgroup_id_x 1
.end_amdhsa_kernel
"""
open(sys.argv[1], 'w').write(hdr + '\n'.join(out) + '\n' + tail)
```

```python
import sys, struct
import numpy as np
from f44 import matrices, PTS
NAME = 'standalone__autoregressive_conv_wavenet__speech'
opt = dict(stamps=0, LA=24, smallfix=1, ldf=0, QS=34, prio=1, g1=5, g2=7, bst=0, nd0=7, wsp=5, f0=30, slp=1, cpf=3, sw=4, dly=0, pf=0, early=1, dbgst=0, rep=1, rstr=4352, pre=0, shr=1, agg=1, gslp=2, es=0, word=1, skx=0, skw=0, of=0, of2=0, gmap=1)
for a in sys.argv[2:]:
    k, v = a.split('='); assert k in opt, k; opt[k] = int(v)
out = []
def e(s): out.append('    ' + s)
def lab(s): out.append(s + ':')
def c(s): out.append('    ; ' + s)
def fh(x): return '0x%08x' % struct.unpack('<I', struct.pack('<f', float(x)))[0]
AT, G, BT = matrices()
GS = G.copy()
for m in range(6): GS[m] *= PTS[m]**3
CH = np.zeros((3, 7))
for i in range(3):
    for m in range(6): CH[i][m] = PTS[m]**(i-3)
DCH = CH[:, :6] - CH[:, 1:7]
LOG2E = 1.4426950408889634
LDF = {0: '', 1: ' nt'}[opt['ldf']]
OF = {0:'', 1:' nt', 2:' sc1', 3:' sc0 sc1'}
PRF = {1: ' sc1', 2: '', 3: ' sc0 sc1'}.get(opt['pre'], '')
PF_ = {0: ' sc1', 1: ' sc0 sc1', 2: ' sc1 nt', 3: ' sc0 sc1 nt'}[opt['pf']]
XROWS = 2032
XS = XROWS*96
U_BYTES = 4*21*XS
WT_OFF = U_BYTES
WT_BYTES = 9*21*24576
WO_OFF = WT_OFF + WT_BYTES
Z_OFF = WO_OFF + 48*1024
Z_BYTES = 28*2*9*18*1024
FLAG_OFF = Z_OFF + Z_BYTES
REP = opt['rep']; RSTR = opt['rstr']; FA = REP*RSTR
ZFL = 5*FA
GOF = ZFL + 4096
WS_USED = FLAG_OFF + GOF + 8*4352
STAMP_OFF = 268435456 - (1 << 20)
SLOT = 53248
XL = 2*SLOT + 8192
WL = SLOT
LDS_MAIN = 3*SLOT
OOB = 0x7f000000
hdr = f"""; Kernarg layout for this problem (48 bytes, ptrs only, base s[0:1]):
; @launch grid=(252,1,1) block=(512,1,1) lds={LDS_MAIN}
.amdgcn_target "amdgcn-amd-amdhsa--gfx950"
.text
.globl {NAME}_kernel
.p2align 8
.type {NAME}_kernel,@function
{NAME}_kernel:
"""
def srd(d, lo, hi, nbytes):
    e(f's_mov_b32 s{d}, s{lo}')
    e(f's_and_b32 s{d+1}, s{hi}, 0xffff')
    e(f's_mov_b32 s{d+2}, {nbytes}')
    e(f's_mov_b32 s{d+3}, 0x00020000')
def vp(r): return f'v[{r}:{r+1}]'
def vr(r): return f'v[{r}:{r+3}]'
def pkfma(d, sc, a, b, nega=False):
    neg = ' neg_lo:[0,1,0] neg_hi:[0,1,0]' if nega else ''
    e(f'v_pk_fma_f32 {vp(d)}, s[{sc}:{sc+1}], {vp(a)}, {vp(b)}{neg}')
def pkadd(d, a, b, negb=False):
    neg = ' neg_lo:[0,1] neg_hi:[0,1]' if negb else ''
    e(f'v_pk_add_f32 {vp(d)}, {vp(a)}, {vp(b)}{neg}')
def sconst2(s, x):
    e(f's_mov_b32 s{s}, {fh(x)}'); e(f's_mov_b32 s{s+1}, {fh(x)}')
def stamp(i):
    if opt['stamps']: e(f's_memrealtime s[{64+2*i}:{65+2*i}]')
def PK(b, pm):
    n = pm*4 + b
    return 184 + 4*n if n < 18 else 16 + 4*(n-18)
PA = lambda b: 32 + b
PT = 24

def gettag(name):
    lab(f'L_tag{name}')
    e('buffer_load_dwordx2 v[24:25], v37, s[16:19], 0 offen sc1')
    e('s_add_u32 s31, s31, 1')
    e('s_cmp_gt_u32 s31, 30000')
    e(f's_cbranch_scc1 L_tagd{name}')
    e('s_waitcnt vmcnt(0)')
    e('v_readfirstlane_b32 s92, v24')
    e('v_readfirstlane_b32 s93, v25')
    e('s_nop 3')
    e('s_cmp_eq_u32 s92, 0')
    e(f's_cbranch_scc1 L_tag{name}')
    lab(f'L_tagd{name}')
def setflag(pre):
    for x in pre: e(x)
    e('v_mov_b32 v38, s92')
    e('v_mov_b32 v39, s93')
    e('s_mov_b64 exec, 1')
    e('buffer_store_dwordx2 v[38:39], v37, s[20:23], s30 offen sc1')
    e('s_mov_b64 exec, -1')
def poll_issue(off):
    e(f's_mov_b32 s30, {FLAG_OFF+off}')
    e(f'buffer_load_dwordx4 {vr(PT)}, v36, s[20:23], s30 offen{PF_}')
    e(f'buffer_load_dwordx4 {vr(PT+4)}, v36, s[20:23], s30 offen offset:16{PF_}')
def poll_check():
    e(f'v_cmp_ne_u64 vcc, s[92:93], {vp(PT)}')
    for k in range(1, 4):
        e(f'v_cmp_ne_u64 s[88:89], s[92:93], {vp(PT+2*k)}')
        e('s_or_b64 vcc, vcc, s[88:89]')
def poll(off, name):
    e('s_mov_b32 s31, 0')
    lab(f'L_poll{name}')
    poll_issue(off)
    e('s_add_u32 s31, s31, 1')
    e('s_cmp_gt_u32 s31, 20000')
    e(f's_cbranch_scc1 L_pdone{name}')
    e('s_waitcnt vmcnt(0)')
    poll_check()
    e(f's_cbranch_scc0 L_pdone{name}')
    if opt['shr']: e('s_mov_b64 exec, vcc')
    e(f's_sleep {opt["slp"]}')
    e(f's_branch L_poll{name}')
    lab(f'L_pdone{name}')
    if opt['shr']: e('s_mov_b64 exec, -1')

e('s_cmp_ge_u32 s2, 252')
e('s_cbranch_scc1 L_end')
if opt['stamps']:
    for i in range(24): e(f's_mov_b32 s{64+i}, 0')
stamp(0)
e('s_load_dwordx4 s[4:7], s[0:1], 0')
e('s_load_dwordx2 s[8:9], s[0:1], 16')
e('s_load_dwordx4 s[56:59], s[0:1], 32')
e('v_lshrrev_b32 v1, 6, v0')
e('v_and_b32 v2, 63, v0')
e('v_readfirstlane_b32 s26, v1')
if opt['cpf']:
    c('pull the kernel code towards L2 first (1 KB per participating wave)')
    e('s_getpc_b64 s[44:45]')
    lab('L_pc')
    if opt['cpf'] == 1:
        e('s_lshl_b32 s42, s2, 10')
        e('s_and_b32 s42, s42, 0x6000')
        e('v_lshlrev_b32 v102, 4, v0')
    elif opt['cpf'] == 2:
        e('s_lshl_b32 s42, s2, 7')
        e('s_and_b32 s42, s42, 0x7c00')
        e('v_lshlrev_b32 v102, 4, v2')
        e('v_lshl_add_u32 v102, v1, 20, v102')
    else:
        e('s_lshl_b32 s42, s2, 8')
        e('s_and_b32 s42, s42, 0x7800')
        e('v_lshlrev_b32 v102, 4, v0')
        e('v_lshrrev_b32 v103, 1, v1')
        e('v_lshl_add_u32 v102, v103, 20, v102')
    e('s_and_b32 s45, s45, 0xffff')
    e('s_mov_b32 s46, L_end-L_pc')
    e('s_mov_b32 s47, 0x00020000')
    e(f'buffer_load_dwordx4 {vr(180)}, v102, s[44:47], s42 offen')
else: e('s_nop 1')
def common():
    srd(20, 58, 59, WS_USED)
    srd(16, 56, 57, 256)
    e('s_mov_b32 s33, 0xffff0000')
    e('v_mov_b32 v37, 0')
    for b in range(4): e(f'v_mov_b32 v{PA(b)}, {OOB}')
    for b in range(4): e(f's_mov_b32 s{96+b}, {3*XS}')
    e('s_mov_b32 s31, 0')
    e('s_mov_b32 s92, 0')
    e('s_mov_b32 s93, 0')
    e('s_cmp_ge_u32 s2, 125')
    e(f's_cselect_b32 s50, {2*21*XS - 125*1536}, 0')
    e('s_mul_i32 s51, s2, 1536')
    e('s_add_u32 s50, s50, 768')
    e('s_add_u32 s50, s50, s51')
    e(f's_add_u32 s51, s50, {3*XS}')
    e(f's_mov_b32 s35, {XL+64}')
e('s_lshr_b32 s28, s26, 1')
e('s_cmp_eq_u32 s28, 2')
e('s_cbranch_scc1 Lp_w')
def xaddr(su, va, vd):
    e(f's_lshl_b32 s28, s{su}, 6')
    e('v_add_u32 v3, s28, v2')
    e('v_mul_u32_u24 v4, 683, v3')
    e('v_lshrrev_b32 v4, 16, v4')
    e('v_mul_u32_u24 v5, 96, v4')
    e('v_sub_u32 v3, v3, v5')
    e(f'v_mul_u32_u24 v{va}, 43, v3')
    e(f'v_lshrrev_b32 v{va}, 8, v{va}')
    e(f'v_mul_u32_u24 v{va}, {2304-96}, v{va}')
    e(f'v_lshl_add_u32 v{va}, v3, 4, v{va}')
    e(f'v_add3_u32 v{va}, v{va}, v5, s35')
    e('v_cmp_le_u32 vcc, 3, v4')
    e(f'v_mul_u32_u24 v{vd}, {XS}, v4')
    e(f'v_mov_b32 v5, {18*XS}')
    e(f'v_lshl_add_u32 v{vd}, v3, 4, v{vd}')
    e('v_cndmask_b32 v5, 0, v5, vcc')
    e(f'v_add_u32 v{vd}, v{vd}, v5')
def xpair(va, vd):
    for s in range(6): e(f'ds_read_b128 {vr(120+4*s)}, v{va} offset:{(12-2*s)*288}')
    for dw in range(4):
        for s in range(6):
            if dw == 0: e(f's_waitcnt lgkmcnt({5-s})')
            e(f'v_lshlrev_b32 v{148+2*s}, 16, v{120+4*s+dw}')
            e(f'v_and_b32 v{149+2*s}, s33, v{120+4*s+dw}')
        D = lambda s: 148+2*s
        pkfma(162, 46, D(2), D(4))
        pkfma(164, 46, D(3), D(5))
        pkfma(162, 44, D(0), 162)
        pkfma(164, 44, D(1), 164)
        pkfma(166, 48, 162, 164)
        pkfma(168, 48, 162, 164, nega=True)
        e(f'v_cvt_pk_bf16_f32 v{172+dw}, v166, v167')
        e(f'v_cvt_pk_bf16_f32 v{176+dw}, v168, v169')
    e(f'buffer_store_dwordx4 v[172:175], v{vd}, s[20:23], s50 offen sc1')
    e(f'buffer_store_dwordx4 v[176:179], v{vd}, s[20:23], s51 offen sc1')
def xrest(va, b):
    for s in range(7): e(f'ds_read_b128 {vr(120+4*s)}, v{va} offset:{(12-2*s)*288}')
    for dw in range(4):
        for s in range(7):
            if dw == 0: e(f's_waitcnt lgkmcnt({6-s})')
            e(f'v_lshlrev_b32 v{148+2*s}, 16, v{120+4*s+dw}')
            e(f'v_and_b32 v{149+2*s}, s33, v{120+4*s+dw}')
        D = lambda s: 148+2*s
        for t in range(2):
            q0, q1, aa = 36+6*t, 38+6*t, 40+6*t
            pkfma(162, q1, D(2), D(4))
            pkfma(164, q1, D(3), D(5))
            pkfma(162, q0, D(0), 162)
            pkfma(164, q0, D(1), 164)
            pkfma(166, aa, 162, 164)
            pkfma(168, aa, 162, 164, nega=True)
            e(f'v_cvt_pk_bf16_f32 v{PK(b,2*t)+dw}, v166, v167')
            e(f'v_cvt_pk_bf16_f32 v{PK(b,2*t+1)+dw}, v168, v169')
        pkfma(162, 54, D(4), D(6))
        pkfma(162, 52, D(2), 162)
        pkfma(162, 48, D(0), 162)
        e(f'v_cvt_pk_bf16_f32 v{PK(b,4)+dw}, v162, v163')
for t in range(3):
    a = PTS[2*t]; q0 = BT[2*t][1]; q1 = BT[2*t][3]
    assert abs(BT[2*t][0] - a*q0) < 1e-12 and abs(BT[2*t][2] - a*q1) < 1e-12 and abs(BT[2*t][4]-a) < 1e-12
e('s_sub_u32 s27, s26, 2')
e('s_cmp_lt_u32 s26, 4')
e('s_cselect_b32 s27, s26, s27')
e('s_cmp_ge_u32 s2, 250')
e('s_cbranch_scc1 Lp_zero')
e('s_cmp_ge_u32 s2, 125')
e('s_cselect_b32 s24, 4608000, 0')
e('s_mul_i32 s28, s2, 36864')
e('s_sub_u32 s28, s28, s24')
e('s_sub_u32 s28, s28, 1792')
e('s_lshl_b32 s29, s27, 10')
e('s_add_u32 s28, s28, s29')
e('v_lshlrev_b32 v6, 4, v2')
e('v_add_u32 v6, s28, v6')
e(f's_mov_b32 s14, {0 if opt["skx"] else 4608000}')
e('s_mov_b32 s15, 0x00020000')
e(f's_add_u32 m0, s29, {XL}')
e('s_waitcnt lgkmcnt(0)')
e('s_add_u32 s12, s4, s24'); e('s_addc_u32 s13, s5, 0')
e('s_and_b32 s13, s13, 0xffff')
for i in range(7):
    if i == 6:
        e('s_cmp_ge_u32 s27, 2')
        e('s_cbranch_scc1 Lp_xl')
    e(f'buffer_load_dwordx4 v6, s[12:15], 0 offen{LDF} lds')
    if i < 6:
        e(f's_add_u32 m0, s29, {XL + (i+1)*6144}')
        e('v_add_u32 v6, 6144, v6')
lab('Lp_xl')
common()
e('s_add_u32 s28, s2, s26')
e('s_cmp_lg_u32 s28, 0')
e('s_cbranch_scc1 Lp_x0')
c('WG 0 wave 0 publishes the launch tag in d_debug')
e('s_memrealtime s[92:93]')
e('s_waitcnt lgkmcnt(0)')
e('s_or_b32 s92, s92, 1')
e('v_mov_b32 v38, s92')
e('v_mov_b32 v39, s93')
e('s_mov_b64 exec, 1')
e('buffer_store_dwordx2 v[38:39], v37, s[16:19], 0 offen sc1')
e('s_mov_b64 exec, -1')
lab('Lp_x0')
c('pass-1 units: wave0:8 wave1:4,5 wave2:0,1 wave3:2,3 wave6:6 wave7:7')
e('s_lshl_b32 s28, s26, 2')
e('s_lshr_b32 s30, 0x76002048, s28')
e('s_and_b32 s30, s30, 15')
xaddr(30, 6, 7)
e('s_add_u32 s30, s30, 1')
xaddr(30, 14, 15)
sconst2(44, BT[0][1]); sconst2(46, BT[0][3]); sconst2(48, PTS[0])
stamp(7)
e('s_waitcnt vmcnt(0)')
stamp(8)
e('s_barrier')
stamp(1)
e('s_cmp_lg_u32 s26, 0')
e('s_cbranch_scc1 Lp_x1')
e('buffer_load_dwordx2 v[24:25], v37, s[16:19], 0 offen sc1')
lab('Lp_x1')
xpair(6, 7)
e('s_bitcmp1_b32 0x0e, s26')
e('s_cbranch_scc0 Lp_x2')
xpair(14, 15)
lab('Lp_x2')
e('s_cmp_ge_u32 s26, 4')
e('s_cbranch_scc1 Lp_h67')
lab('Lp_s2')
e(f'v_mul_u32_u24 v9, {RSTR}, v2')
e('s_lshl_b32 s30, s2, 3')
e(f's_add_u32 s30, s30, {FLAG_OFF}')
e('s_cmp_lg_u32 s26, 0')
e('s_cbranch_scc1 Lp_s2b')
e('s_cmp_ge_u32 s2, 250')
e('s_cbranch_scc1 L_taga')
e('s_waitcnt vmcnt(2)')
e('v_readfirstlane_b32 s92, v24')
e('v_readfirstlane_b32 s93, v25')
e('s_nop 3')
e('s_cmp_lg_u32 s92, 0')
e('s_cbranch_scc1 L_tagda')
gettag('a')
e('v_mov_b32 v38, s92')
e('v_mov_b32 v39, s93')
lab('Lp_s2b')
e('s_waitcnt vmcnt(0)')
e('s_barrier')
e('s_cmp_lg_u32 s26, 0')
e('s_cbranch_scc1 L_pdone')
e(f's_mov_b64 exec, {(1<<REP)-1}')
e('buffer_store_dwordx2 v[38:39], v9, s[20:23], s30 offen sc1')
e('s_mov_b64 exec, -1')
stamp(2)
e('s_branch L_pdone')
def xcoef2():
    for t in (1, 2):
        sconst2(36+6*(t-1), BT[2*t][1]); sconst2(38+6*(t-1), BT[2*t][3]); sconst2(40+6*(t-1), PTS[2*t])
    sconst2(48, BT[6][0]); sconst2(52, BT[6][2]); sconst2(54, BT[6][4])
    e(f's_add_u32 s34, s50, {6*XS}')
lab('Lp_h67')
c('waves 6,7 pass 2: own unit (block 1), then units 2(w-6), 2(w-6)+1 (blocks 2,3)')
xcoef2()
e(f'v_add_u32 v{PA(1)}, s34, v7')
if opt['early']: xrest(6, 1)
e('s_waitcnt vmcnt(0)')
e('s_barrier')
if not opt['early']: xrest(6, 1)
e('s_sub_u32 s30, s26, 6')
e('s_lshl_b32 s30, s30, 1')
lab('Lp_x23')
xaddr(30, 6, 7)
e(f'v_add_u32 v{PA(2)}, s34, v7')
xrest(6, 2)
e('s_add_u32 s30, s30, 1')
lab('Lp_x3')
xaddr(30, 6, 7)
e(f'v_add_u32 v{PA(3)}, s34, v7')
xrest(6, 3)
e('s_branch L_pdone')
lab('Lp_zero')
c('WGs 250,251: zero the 8 leading rows of the 42 arrays of batch b')
e('s_waitcnt lgkmcnt(0)')
common()
e('s_sub_u32 s3, s2, 250')
e(f's_mul_i32 s30, s3, {2*21*XS}')
e('s_lshl_b32 s28, s27, 6')
e('v_add_u32 v3, s28, v2')
for k in range(4): e(f'v_mov_b32 v{16+k}, 0')
for i in range(6):
    e('v_mul_u32_u24 v4, 1366, v3')
    e('v_lshrrev_b32 v4, 16, v4')
    e('v_mul_u32_u24 v5, 48, v4')
    e('v_sub_u32 v5, v3, v5')
    e(f'v_mul_u32_u24 v4, {XS}, v4')
    e('v_lshl_add_u32 v4, v5, 4, v4')
    e('v_cmp_gt_u32 vcc, 2016, v3')
    e(f'v_mov_b32 v5, {OOB}')
    e('v_add_u32 v3, 384, v3')
    e('v_cndmask_b32 v4, v5, v4, vcc')
    e('buffer_store_dwordx4 v[16:19], v4, s[20:23], s30 offen sc1')
e('s_barrier')
e('s_branch Lp_s2')
lab('Lp_w')
e('s_and_b32 s27, s26, 1')
c('w unit: XCD x = id&7 owns a contiguous range of units; local i = id>>3 < 9 takes two')
e('s_and_b32 s28, s2, 7')
e('s_lshr_b32 s29, s2, 3')
e('s_mul_i32 s3, s28, 40')
e('s_min_u32 s30, s28, 4')
e('s_add_u32 s3, s3, s30')
e('s_add_u32 s3, s3, s29')
e('s_min_u32 s30, s29, 9')
e('s_add_u32 s3, s3, s30')
e('s_add_u32 s3, s3, s27')
e('s_mul_i32 s30, s27, s29')
e('s_cmp_ge_u32 s30, 9')
e('s_cbranch_scc1 Lp_wo')
def posdec(P, ko, pos, kk, o, tmp):
    e(f'v_mul_u32_u24 v{ko}, 58255, v{P}')
    e(f'v_lshrrev_b32 v{ko}, 22, v{ko}')
    e(f'v_mul_u32_u24 v{tmp}, 72, v{ko}')
    e(f'v_sub_u32 v{pos}, v{P}, v{tmp}')
    e(f'v_mul_u32_u24 v{kk}, 3641, v{ko}')
    e(f'v_lshrrev_b32 v{kk}, 16, v{kk}')
    e(f'v_mul_u32_u24 v{tmp}, 18, v{kk}')
    e(f'v_sub_u32 v{o}, v{ko}, v{tmp}')
G_ = lambda r, ch: 40+2*(8*r+ch)
e('s_lshl_b32 s28, s3, 5')
e('v_and_b32 v3, 31, v2')
e('v_add_u32 v4, s28, v3')
posdec(4, 5, 6, 7, 8, 9)
e(f'v_mul_u32_u24 v7, {4*82944}, v7')
e('v_mul_u32_u24 v8, 4608, v8')
e('v_lshrrev_b32 v9, 5, v2')
e('v_mul_u32_u24 v10, 288, v9')
e('v_add3_u32 v7, v7, v8, v10')
e('v_lshl_add_u32 v6, v6, 2, v7')
e('s_waitcnt lgkmcnt(0)')
srd(12, 6, 7, 0 if opt['skw'] else 31*144*288*2)
if opt['word']:
    for r in range(1, 4): e(f's_mov_b32 s{36+r}, {82944*r}')
    for ch in range(8):
        for r in range(4):
            e(f'buffer_load_dword v{G_(r,ch)+1}, v6, s[12:15], {"s%d" % (36+r) if r else 0} offen offset:{ch*576}{LDF}')
else:
  for r in range(4):
    for ch in range(8):
        e(f'buffer_load_dword v{G_(r,ch)+1}, v6, s[12:15], 0 offen offset:{ch*576}{LDF}')
    if r < 3: e('v_add_u32 v6, 82944, v6')
stamp(7)
common()
e('s_lshl_b32 s29, s27, 14')
e(f's_add_u32 s29, s29, {WL}')
e('v_lshlrev_b32 v10, 6, v3')
e('v_lshl_add_u32 v10, v9, 5, v10')
e('v_add_u32 v10, s29, v10')
e('v_lshlrev_b32 v11, 4, v2')
e('v_add_u32 v11, s29, v11')
for h in range(2):
    e('v_lshrrev_b32 v4, 2, v2')
    e(f'v_add3_u32 v4, v4, s28, {16*h}')
    posdec(4, 5, 6, 7, 8, 9)
    e('v_mul_u32_u24 v4, 43, v8')
    e('v_lshrrev_b32 v4, 8, v4')
    e('v_mul_u32_u24 v5, 6, v4')
    e('v_sub_u32 v5, v8, v5')
    e('v_lshrrev_b32 v8, 1, v7')
    e('v_add_u32 v8, 8, v8')
    e('v_and_b32 v9, 1, v7')
    e('v_lshl_add_u32 v9, v9, 1, v5')
    e('v_subrev_u32 v9, 4, v9')
    e('v_cmp_le_u32 vcc, 4, v5')
    e('v_mul_u32_u24 v4, 24576, v4')
    e('v_lshrrev_b32 v14, 3, v6')
    e('v_cndmask_b32 v8, v7, v8, vcc')
    e('v_cndmask_b32 v9, v5, v9, vcc')
    e(f'v_mul_u32_u24 v14, {21*24576}, v14')
    e('v_bfe_u32 v15, v6, 2, 1')
    e('v_mul_u32_u24 v15, 12288, v15')
    e(f'v_add3_u32 v{12+h}, v4, v14, v15')
    e(f'v_lshl_add_u32 v{12+h}, v8, 10, v{12+h}')
    e(f'v_lshl_add_u32 v{12+h}, v9, 8, v{12+h}')
    e('v_and_b32 v4, 3, v6')
    e(f'v_lshl_add_u32 v{12+h}, v4, 6, v{12+h}')
    e('v_and_b32 v4, 3, v2')
    e(f'v_lshl_add_u32 v{12+h}, v4, 4, v{12+h}')
def wcoef(t):
    for r in range(4):
        assert abs(GS[2*t+1][r] - (1 if r % 2 == 0 else -1)*GS[2*t][r]) < 1e-12
        e(f'v_mul_f32 v{160+2*r}, {fh(GS[2*t][r])}, v14')
        e(f'v_mov_b32 v{161+2*r}, v{160+2*r}')
e(f's_mov_b32 s34, {WT_OFF}')
e('v_cmp_le_u32 vcc, 32, v2')
e(f'v_mov_b32 v14, {fh(-2*LOG2E)}')
e(f'v_mov_b32 v15, {fh(-LOG2E)}')
e('v_cndmask_b32 v14, v14, v15, vcc')
e('v_mov_b32 v15, v14')
wcoef(0)
stamp(8)
e('s_barrier')
stamp(1)
e('s_waitcnt vmcnt(0)')
stamp(2)
for k in range(32):
    e(f'v_lshlrev_b32 v{40+2*k}, 16, v{41+2*k}')
    e(f'v_and_b32 v{41+2*k}, s33, v{41+2*k}')
e('s_mov_b32 s53, 0')
lab('Lp_wloop')
for dw in range(4):
    for c2 in range(2):
        ch = 2*dw+c2
        E, O = 104+4*c2, 106+4*c2
        e(f'v_pk_mul_f32 {vp(E)}, {vp(160)}, {vp(G_(0,ch))}')
        e(f'v_pk_mul_f32 {vp(O)}, {vp(162)}, {vp(G_(1,ch))}')
        e(f'v_pk_fma_f32 {vp(E)}, {vp(164)}, {vp(G_(2,ch))}, {vp(E)}')
        e(f'v_pk_fma_f32 {vp(O)}, {vp(166)}, {vp(G_(3,ch))}, {vp(O)}')
        pkadd(112+4*c2, O, E)
        pkadd(114+4*c2, E, O, negb=True)
    for sgn in range(2):
        for n in range(2):
            e(f'v_cvt_pk_bf16_f32 v{120+8*sgn+4*n+dw}, v{112+2*sgn+n}, v{116+2*sgn+n}')
for sgn in range(2):
    for n in range(2):
        e(f'ds_write_b128 v10, {vr(120+8*sgn+4*n)} offset:{sgn*2048 + n*16}')
e('s_add_u32 s53, s53, 1')
e('s_waitcnt lgkmcnt(0)')
e('v_add_u32 v10, 4096, v10')
e('s_cmp_eq_u32 s53, 3')
e('s_cbranch_scc1 Lp_w3')
e('s_cmp_eq_u32 s53, 1')
e('s_cbranch_scc1 Lp_w1')
wcoef(2)
if opt['early']:
    e('s_waitcnt vmcnt(0)')
    e('s_barrier')
e('s_branch Lp_wloop')
lab('Lp_w1')
for k in range(4): e(f'ds_read_b128 {vr(136+4*k)}, v11 offset:{k*1024}')
for k in range(4):
    e(f's_waitcnt lgkmcnt({3-k})')
    e(f'buffer_store_dwordx4 {vr(136+4*k)}, v{12+k%2}, s[20:23], s34 offen sc1')
    if k % 2 == 1: e(f's_add_u32 s34, s34, {3*24576}')
wcoef(1)
if not opt['early']:
    e('s_waitcnt vmcnt(0)')
    e('s_barrier')
e('s_branch Lp_wloop')
lab('Lp_w3')
for ch in range(8): e(f'v_pk_mul_f32 {vp(G_(3,ch))}, {vp(G_(3,ch))}, v[14:15]')
for n in range(2):
    for dw in range(4):
        e(f'v_cvt_pk_bf16_f32 v{120+4*n+dw}, v{G_(3,2*dw)+n}, v{G_(3,2*dw+1)+n}')
    e(f'ds_write_b128 v10, {vr(120+4*n)} offset:{n*16}')
e('s_waitcnt lgkmcnt(0)')
for k in range(10):
    e(f'ds_read_b128 {vr(PK(k % 2, k//2))}, v11 offset:{4096 + k*1024}')
e(f'v_add_u32 v{PA(0)}, s34, v12')
e(f'v_add_u32 v{PA(1)}, s34, v13')
e(f's_mov_b32 s96, {3*24576}')
e(f's_mov_b32 s97, {3*24576}')
e('s_waitcnt lgkmcnt(0)')
lab('Lp_wx')
c('then x pass 2: wave 4: unit 8 (block 3) ; wave 5: units 4,5 (blocks 2,3)')
e('s_cmp_ge_u32 s2, 250')
e('s_cbranch_scc1 L_pdone')
xcoef2()
e('s_mov_b32 s30, 8')
e('s_cmp_eq_u32 s26, 4')
e('s_cbranch_scc1 Lp_x3')
e('s_mov_b32 s30, 4')
e('s_branch Lp_x23')
lab('Lp_wo')
e('s_waitcnt lgkmcnt(0)')
common()
e('s_sub_u32 s3, s2, 72')
e('s_cmp_ge_u32 s3, 45')
e('s_cbranch_scc1 Lp_wo2')
srd(12, 8, 9, 144*144*2)
e('s_mul_i32 s28, s3, 13108')
e('s_lshr_b32 s28, s28, 16')
e('s_mul_i32 s29, s28, 5')
e('s_sub_u32 s29, s3, s29')
e('v_and_b32 v7, 15, v2')
e('v_lshrrev_b32 v8, 4, v2')
e('s_cmp_eq_u32 s28, 8')
e('s_cselect_b32 s30, 1, 4')
e('s_cselect_b32 s34, 256, 0')
e('s_cselect_b32 s28, 0, s28')
e('s_lshl_b32 s28, s28, 1')
e('s_add_u32 s34, s34, s28')
e(f's_mul_i32 s29, s29, {32*288}')
e('s_add_u32 s34, s34, s29')
e('v_lshlrev_b32 v9, s30, v7')
e('v_mul_u32_u24 v14, 576, v8')
e('v_add3_u32 v14, v14, v9, s34')
for d in range(4):
    e(f'buffer_load_ushort v{40+2*d}, v14, s[12:15], 0 offen')
    e(f'buffer_load_ushort v{41+2*d}, v14, s[12:15], 0 offen offset:288')
    if d < 3: e('v_add_u32 v14, 2304, v14')
e('s_lshl_b32 s3, s3, 10')
e(f's_add_u32 s3, s3, {WO_OFF}')
e('v_lshlrev_b32 v1, 4, v2')
e('s_barrier')
e('s_waitcnt vmcnt(0)')
for d in range(4):
    e(f'v_lshl_or_b32 v{48+d}, v{41+2*d}, 16, v{40+2*d}')
e('buffer_store_dwordx4 v[48:51], v1, s[20:23], s3 offen sc1')
e('s_waitcnt vmcnt(0)')
e('s_barrier')
e('s_branch Lp_wx')
lab('Lp_wo2')
e('s_barrier')
e('s_barrier')
e('s_branch Lp_wx')

def M(t): return 12 + 4*t
def MD(t): return 48 + 4*t
def FR(k): return vr(84 + 4*k)
lab('L_pdone')
e('v_lshlrev_b32 v101, 4, v2')
e('v_min_u32 v36, 62, v2')
e('v_lshlrev_b32 v36, 5, v36')
e(f's_and_b32 s30, s2, {REP-1}')
e(f's_mul_i32 s30, s30, {RSTR}')
e('v_add_u32 v36, s30, v36')
e(f'v_mul_u32_u24 v12, {RSTR}, v2')
c('unit = base[xcd] + (id>>3)')
e('s_and_b32 s25, s2, 7')
e('s_lshr_b32 s24, s2, 3')
e('s_mul_i32 s27, s25, 31')
e('s_min_u32 s28, s25, 4')
e('s_add_u32 s27, s27, s28')
e('s_add_u32 s27, s27, s24')
e('s_mul_i32 s28, s27, 7282')
e('s_lshr_b32 s28, s28, 16')
e('s_mul_i32 s29, s28, 9')
e('s_sub_u32 s29, s27, s29')
e('s_and_b32 s24, s26, 3')
e('s_lshr_b32 s32, s24, 1')
e('s_and_b32 s33, s24, 1')
e('s_mul_i32 s34, s24, 7168')
e('s_mul_i32 s35, s24, 6144')
c('z soffset s62: (((g*2+rh)*9+gs)*18+J)*1024')
e('s_lshl_b32 s62, s28, 1')
e('s_add_u32 s62, s62, s32')
e(f's_mul_i32 s62, s62, {9*18*1024}')
e('s_lshl_b32 s63, s29, 1')
e('s_add_u32 s63, s63, s33')
e('s_lshl_b32 s63, s63, 10')
e('s_add_u32 s62, s62, s63')
e(f's_add_u32 s62, s62, {Z_OFF}')
if opt['gmap']:
    c('g = (b*7+gg)*2 + p')
    e('s_lshr_b32 s38, s28, 1')
    e('s_and_b32 s30, s28, 1')
    e('s_cmp_ge_u32 s38, 7')
    e('s_cselect_b32 s36, 7, 0')
    e('s_cselect_b32 s37, 2, 0')
    e('s_sub_u32 s38, s38, s36')
    e('s_add_u32 s30, s30, s37')
else:
    e('s_mul_i32 s30, s28, 9363')
    e('s_lshr_b32 s30, s30, 16')
    e('s_mul_i32 s38, s30, 7')
    e('s_sub_u32 s38, s28, s38')
e(f's_mul_i32 s36, s30, {21*XS}')
e('s_mul_i32 s37, s38, 27648')
e('s_add_u32 s36, s36, s37')
e('s_add_u32 s36, s36, s34')
e(f's_mul_i32 s37, s29, {21*24576}')
e('s_add_u32 s37, s37, s35')
e(f's_add_u32 s37, s37, {WT_OFF}')
e('s_cmp_ge_u32 s26, 4')
e('s_cbranch_scc1 L_helper')
e('s_cmp_lg_u32 s26, 0')
e('s_cbranch_scc1 L_c13')
c('wave 0: wait for all A flags, then load the whole phase 0 tile')
if opt['agg']:
    e('s_cmp_lg_u32 s2, 0')
    e('s_cbranch_scc1 L_gow')
if opt['dly']: e(f's_sleep {opt["dly"]}')
poll(0, 'A')
if opt['agg']:
    c('WG 0 saw all A flags: release everybody through 8 go words')
    e('v_mul_u32_u24 v9, 4352, v2')
    e(f's_mov_b32 s30, {FLAG_OFF+GOF}')
    e('s_mov_b64 exec, 0xff')
    e('buffer_store_dwordx2 v[38:39], v9, s[20:23], s30 offen sc1')
    e('s_mov_b64 exec, -1')
    e('s_branch L_god')
    lab('L_gow')
    e('s_mul_i32 s30, s25, 4352')
    e(f's_add_u32 s30, s30, {FLAG_OFF+GOF}')
    e('s_mov_b32 s31, 0')
    e('s_mov_b64 exec, 1')
    lab('L_gol')
    e('buffer_load_dwordx2 v[24:25], v37, s[20:23], s30 offen sc1')
    e('s_add_u32 s31, s31, 1')
    e('s_cmp_gt_u32 s31, 40000')
    e('s_cbranch_scc1 L_gox')
    e('s_waitcnt vmcnt(0)')
    e('v_cmp_ne_u64 vcc, s[92:93], v[24:25]')
    e('s_cbranch_vccz L_gox')
    e(f's_sleep {opt["gslp"]}')
    e('s_branch L_gol')
    lab('L_gox')
    e('s_mov_b64 exec, -1')
    lab('L_god')
stamp(3)
for k in range(52):
    if k % 4 == 0:
        e(f's_mov_b32 m0, {k*1024}')
        e(f's_add_u32 s30, s36, {k*1024}' if k < 28 else f's_add_u32 s30, s37, {(k-28)*1024}')
    e(f'buffer_load_dwordx4 v101, s[20:23], s30 offen offset:{(k%4)*1024} sc1 lds')
lab('L_c13')
e('s_barrier')
if opt['prio']: e(f's_setprio {opt["prio"]}')
e('v_and_b32 v124, 15, v2')
e('v_lshrrev_b32 v125, 4, v2')
e('v_mul_u32_u24 v126, 864, v124')
e('s_mul_i32 s38, s32, 13824')
e('v_add_u32 v126, s38, v126')
e('v_lshl_add_u32 v2, v125, 4, v126')
e('v_lshrrev_b32 v127, 1, v125')
e('v_mul_u32_u24 v127, 96, v127')
e('v_sub_u32 v127, v126, v127')
e('v_and_b32 v128, 1, v125')
e('v_lshl_add_u32 v127, v128, 4, v127')
e('v_add_u32 v5, 160, v127')
e('s_mul_i32 s38, s33, 12288')
e('s_add_u32 s38, s38, 28672')
e('v_add_u32 v8, s38, v101')
for s in (1, 2):
    e(f'v_add_u32 v{2+s}, {s*SLOT}, v2')
    e(f'v_add_u32 v{5+s}, {s*SLOT}, v5')
    e(f'v_add_u32 v{8+s}, {s*SLOT}, v8')
e(f's_add_u32 s38, s34, {2*SLOT}')
e('v_add_u32 v1, s38, v101')
e(f's_add_u32 s38, s35, {2*SLOT+28672}')
e('v_add_u32 v11, s38, v101')
for r in range(48, 84): e(f'v_mov_b32 v{r}, 0')

frags = []; mf = []
for tp in range(-7, 9):
    for kk in range(min(7, 8-tp), max(0, -tp)-1, -1):
        mf.append((tp+kk, ('W', kk), ('X', tp)))
for tp in range(-6, 9):
    for pp in range(3, -1, -1):
        if 0 <= tp+2*pp <= 8: mf.append((tp+2*pp, ('WT', pp), ('XT', tp)))
assert len(mf) == 108
fu = {}
for s, (t, wk, xk) in enumerate(mf):
    for k in (xk, wk):
        if k not in fu: fu[k] = s; frags.append(k)
assert len(frags) == 43
fidx = {k: i for i, k in enumerate(frags)}
LA = opt['LA']; BAR = 108 - LA; ELAST = BAR - 6
iss = [(-LA + (k*(ELAST+LA))//42) for k in range(43)]
for k in range(43): assert iss[k] <= fu[frags[k]] - 8, (k, iss[k], fu[frags[k]])
def rd(k, slot):
    kind, i = frags[k]
    if kind == 'X': return f'ds_read_b128 {FR(k)}, v{2+slot} offset:{(i+8)*96}'
    if kind == 'XT': return f'ds_read_b128 {FR(k)}, v{5+slot} offset:{(i+7)*96}'
    if kind == 'W': return f'ds_read_b128 {FR(k)}, v{8+slot} offset:{i*1024}'
    return f'ds_read_b128 {FR(k)}, v{8+slot} offset:{(8+i)*1024}'
npre = sum(1 for x in iss if x < 0)
first_touch = {}; last_touch = {}
for s, (t, wk, xk) in enumerate(mf):
    first_touch.setdefault(t, s); last_touch[t] = s
def snapw(t):
    return f'ds_write_b128 v1, {vr(MD(t))} offset:{t*1024}' if t < 7 else f'ds_write_b128 v11, {vr(MD(t))} offset:{(t-7)*1024}'
QS = opt['QS']
ext = [[] for _ in range(324)]
for ph in range(3):
    for k in range(43):
        ext[(ph*108 + iss[k]) % 324].append(('rd', k, ph))
used = [len(x) for x in ext]
lastw = 0
for t in range(9):
    pos = max(216 + last_touch[t] + 8, lastw + opt['wsp'])
    while used[pos % 324]: pos += 1
    lastw = pos
    used[pos % 324] += 1
    assert pos >= 216 + BAR and pos < 324 + QS - 2
    ext[pos % 324].append(('wr', t, 0))
e('s_waitcnt vmcnt(0)')
stamp(4)
e('s_barrier')
stamp(5)
if opt['dbgst']: e('s_memtime s[90:91]')
for k in range(npre): e(rd(k, 0))
e('s_mov_b32 s39, 7')
e('s_waitcnt lgkmcnt(0)')
out.append('.p2align 6')
lab('L_loop')
seq = 0; rseq = {}; covered = -1; wseq = -1
for it in range(2):
    emit = e if it == 1 else (lambda s: None)
    for ph in range(3):
        if it == 1: c(f'======== phase {ph}')
        for s, (t, wk, xk) in enumerate(mf):
            if s == BAR:
                emit('s_waitcnt lgkmcnt(0)')
                emit('s_barrier')
                covered = seq - 1
            if ph == 0 and s == QS:
                if wseq > covered:
                    emit(f's_waitcnt lgkmcnt({min(15, seq-1-wseq)})')
                    covered = max(covered, seq - 1 - min(15, seq-1-wseq))
                emit('s_barrier')
            need = max(rseq.get((ph, fidx[wk]), -1), rseq.get((ph, fidx[xk]), -1))
            if need > covered:
                allow = min(seq - 1 - need, 4)
                emit(f's_waitcnt lgkmcnt({allow})')
                covered = seq - 1 - allow
            cin = vr(MD(t)) if (ph == 0 and first_touch[t] == s) else vr(M(t))
            dst = vr(MD(t)) if (ph == 2 and last_touch[t] == s) else vr(M(t))
            emit(f'v_mfma_f32_16x16x32_bf16 {dst}, {FR(fidx[wk])}, {FR(fidx[xk])}, {cin}')
            for x in ext[ph*108+s]:
                if x[0] == 'rd':
                    emit(rd(x[1], x[2])); rseq[(x[2], x[1])] = seq; seq += 1
                else:
                    emit(snapw(x[1])); wseq = seq; seq += 1
            if ph == 2 and s == 104: emit('s_sub_u32 s39, s39, 1')
            if ph == 2 and s == 105: emit('s_cmp_lg_u32 s39, 0')
e('s_cbranch_scc1 L_loop')
stamp(6)
if opt['dbgst']: e('s_memtime s[94:95]')
c('---- compute-wave epilogue: gate y3 = MD')
e('s_waitcnt lgkmcnt(0)')
def gate_consts():
    e(f's_mov_b32 s46, {fh(-0.6931471805599453)}')
    e(f's_mov_b32 s42, {fh(2*LOG2E*2**-12)}')
    e('s_mov_b32 s43, 0x41f00000')
def gate(a, r, dst, sp):
    L = []
    L.append(f'v_min_f32 v{r}, s43, v{a}')
    L.append(f'v_min_f32 v{r+1}, s43, v{a+1}')
    L.append(f'v_exp_f32 v{a+2}, v{a+2}')
    L.append(f'v_exp_f32 v{a+3}, v{a+3}')
    L.append(f'v_exp_f32 v{r}, v{r}')
    L.append(f'v_exp_f32 v{r+1}, v{r+1}')
    if opt['smallfix']:
        L.append(f'v_cmp_gt_f32 s[{sp}:{sp+1}], s42, abs(v{a})')
        L.append(f'v_cmp_gt_f32 s[{sp+2}:{sp+3}], s42, abs(v{a+1})')
    L.append(f'v_add_f32 v{r+2}, 1.0, v{r}')
    L.append(f'v_add_f32 v{r+3}, 1.0, v{r+1}')
    if opt['smallfix']:
        L.append(f'v_mul_f32 v{a}, s46, v{a}')
        L.append(f'v_mul_f32 v{a+1}, s46, v{a+1}')
    L.append(f'v_fmac_f32 v{r+2}, v{r+2}, v{a+2}')
    L.append(f'v_fmac_f32 v{r+3}, v{r+3}, v{a+3}')
    L.append(f'v_sub_f32 v{r}, 1.0, v{r}')
    L.append(f'v_sub_f32 v{r+1}, 1.0, v{r+1}')
    L.append(f'v_rcp_f32 v{r+2}, v{r+2}')
    L.append(f'v_rcp_f32 v{r+3}, v{r+3}')
    if opt['smallfix']:
        L.append(f'v_cndmask_b32 v{r}, v{r}, v{a}, s[{sp}:{sp+1}]')
        L.append(f'v_cndmask_b32 v{r+1}, v{r+1}, v{a+1}, s[{sp+2}:{sp+3}]')
    L.append(f'v_mul_f32 v{r}, v{r}, v{r+2}')
    L.append(f'v_mul_f32 v{r+1}, v{r+1}, v{r+3}')
    L.append(f'v_cvt_pk_bf16_f32 v{dst}, v{r}, v{r+1}')
    return L
gate_consts()
e('v_and_b32 v100, 63, v0')
e('v_lshlrev_b32 v101, 4, v100')
e(f's_add_u32 s63, s62, {7*18432}')
for t in range(9):
    for x in gate(MD(t), 104 + 4*(t % 2), 112 + t, 48): e(x)
    if t in (3, 7):
        e(f'buffer_store_dwordx4 v[{112+t-3}:{112+t}], v101, s[20:23], s63 offen sc1')
        e('s_add_u32 s63, s63, 18432')
e(f's_add_u32 s63, s62, {6*18432}')
e('buffer_store_dword v120, v101, s[20:23], s63 offen offset:12 sc1')
e('s_branch L_fin')
def hbar():
    if opt['bst']:
        e('s_memtime s[64:65]')
        e('s_barrier')
        e('s_memtime s[66:67]')
        e('s_waitcnt lgkmcnt(0)')
        e('s_mov_b32 m0, s68'); e('s_nop 0')
        e('v_writelane_b32 v14, s64, m0')
        e('v_writelane_b32 v15, s66, m0')
        e('s_add_u32 s68, s68, 1')
    else: e('s_barrier')
lab('L_helper')
if opt['bst']: e('s_mov_b32 s68, 0')
def Y(i, t): return 40 + 4*(i*9+t)
def SN(t): return 148 + 4*t
e('v_mov_b32 v3, v101')
e('v_add_u32 v13, 4096, v101')
e(f's_add_u32 s38, s34, {2*SLOT}')
e('v_add_u32 v4, s38, v101')
e(f's_add_u32 s38, s35, {2*SLOT+28672}')
e('v_add_u32 v5, s38, v101')
e('s_cmp_eq_u32 s26, 4')
e('s_cbranch_scc1 L_h4')
e(f'v_mov_b32 v36, {OOB}')
e(f'v_mov_b32 v12, {OOB}')
e('s_branch L_h5')
lab('L_h4')
e('s_mov_b32 s31, 0')
gettag('h')
lab('L_h5')
e('v_mov_b32 v38, s92')
e('v_mov_b32 v39, s93')
def dma_list(slot):
    L = []
    for k in range(7):
        pre = [f's_add_u32 m0, s34, {slot*SLOT + (k//4)*4096}', 's_nop 0']
        L.append(pre + [f'buffer_load_dwordx4 v{3 if k < 4 else 13}, s[20:23], s36 offen offset:{(k%4)*1024} sc1 lds'] + ([f's_add_u32 s36, s36, {XS}'] if k == 6 else []))
    for k in range(6):
        pre = [f's_add_u32 m0, s35, {slot*SLOT + 28672 + (k//4)*4096}', 's_nop 0']
        L.append(pre + [f'buffer_load_dwordx4 v{3 if k < 4 else 13}, s[20:23], s37 offen offset:{(k%4)*1024} sc1 lds'] + (['s_add_u32 s37, s37, 24576'] if k == 5 else []))
    return L
def pst(b, pm):
    return [f'buffer_store_dwordx4 {vr(PK(b,pm))}, v{PA(b)}, s[20:23], 0 offen sc1', f'v_add_u32 v{PA(b)}, s{96+b}, v{PA(b)}']
def weave(dl, sl):
    res = []; n = len(sl); m = len(dl)
    for i in range(m):
        res.append(dl[i])
        for k in range((i*n)//m, ((i+1)*n)//m): res.append(sl[k])
    return res
def mix(dl, vl):
    n = len(dl)
    for i, d in enumerate(dl):
        for x in d: e(x)
        for x in vl[(i*len(vl))//n:((i+1)*len(vl))//n]: e(x)
    if n == 0:
        for x in vl: e(x)
def nvm(dl, after):
    return len(dl) - 1 - after
def snapr():
    for t in range(9):
        e(f'ds_read_b128 {vr(SN(t))}, v4 offset:{t*1024}' if t < 7 else f'ds_read_b128 {vr(SN(t))}, v5 offset:{(t-7)*1024}')
    e('s_waitcnt lgkmcnt(0)')
FM = [f'v_fmac_f32 v{Y(i,t)+r}, s{40+i}, v{SN(t)+r}' for t in range(9) for i in range(3) for r in range(4)]
FM1 = [f'v_mul_f32 v{Y(i,t)+r}, s{40+i}, v{SN(t)+r}' for t in range(9) for i in range(3) for r in range(4)]
e(f's_add_u32 s36, s36, {XS}')
e('s_add_u32 s37, s37, 24576')
e('s_barrier')
mix(dma_list(1), [])
c('coefficient table: s40.. = 3 x 6, consumed from the front')
for m in range(6):
    for i in range(3): e(f's_mov_b32 s{40+3*m+i}, {fh(DCH[i][m])}')
hbar()
ND0 = opt['nd0']
def only4(name, fn):
    e('s_cmp_lg_u32 s26, 4')
    e(f's_cbranch_scc1 L_o4{name}')
    fn()
    lab(f'L_o4{name}')
def hflag(off):
    e('s_lshl_b32 s30, s2, 3')
    e(f's_add_u32 s30, s30, {FLAG_OFF+off}')
    e(f's_mov_b64 exec, {(1<<REP)-1}')
    e('buffer_store_dwordx2 v[38:39], v12, s[20:23], s30 offen sc1')
    e('s_mov_b64 exec, -1')
def hiter(name, fm, sa=(), sc_=(), flag0=None, flag1=None, chk=None):
    if chk is not None: poll_issue(chk)
    for g_ in sa:
        for x in g_: e(x)
    hbar()
    if fm: snapr()
    D2 = dma_list(2)
    mix(D2[:ND0], [])
    e(f's_waitcnt vmcnt({ND0 + len(sa)})')
    if chk is not None:
        def f():
            poll_check()
            e(f's_cbranch_scc0 L_o4c{name}')
            poll(chk, name)
        only4('c'+name, f)
    hbar()
    if flag0 is not None: hflag(flag0)
    mix(D2[ND0:] + dma_list(0), fm[:40])
    e('s_waitcnt vmcnt(13)')
    hbar()
    if flag1 is not None: hflag(flag1)
    mix(list(sc_) + dma_list(1), fm[40:])
    if fm:
        for k in range(15): e(f's_mov_b32 s{40+k}, s{43+k}')
    e(f's_waitcnt vmcnt({13 + len(sc_) + (1 if flag1 is not None else 0)})')
    hbar()
ST = [pst(b, pm) for pm in range(5) for b in range(4)]
hiter('0', [], sa=ST[0:4], sc_=ST[4:8], flag1=1*FA)
hiter('1', FM1, sa=ST[8:12], sc_=ST[12:16], flag0=2*FA, chk=1*FA)
hiter('2', FM, sa=ST[16:20], flag0=3*FA, chk=2*FA)
hiter('3', FM, flag0=4*FA, chk=3*FA)
hiter('4', FM)
hiter('5', FM, chk=4*FA)
c('---- last product')
if opt['sw'] == 4: stamp(6)
hbar()
snapr()
F0 = opt['f0']
D2 = dma_list(2)
mix(D2[:ND0], FM[:F0])
e(f's_waitcnt vmcnt({ND0})')
hbar()
WD = []
for k in range(12):
    WD.append([f's_add_u32 m0, s61, {(k//4)*4096}', 's_nop 0', f'buffer_load_dwordx4 v3, s[20:23], s60 offen offset:{(k%4)*1024} sc1 lds'] + (['s_add_u32 s60, s60, 4096'] if k % 4 == 3 else []))
e('s_mul_i32 s61, s24, 12288')
e(f's_add_u32 s60, s61, {WO_OFF}')
mix(D2[ND0:] + WD, FM[F0:])
gate_consts()
e('s_mov_b32 s63, s62')
nst = [0]
def hgate(n0, n1):
    for n in range(n0, n1):
        t, i = divmod(n, 3)
        for x in gate(Y(i, t), 184 + 4*(n % 2), 200 + n, 48): e(x)
        if n % 4 == 3:
            e(f'buffer_store_dwordx4 v[{200+n-3}:{200+n}], v3, s[20:23], s63 offen sc1')
            e('s_add_u32 s63, s63, 18432'); nst[0] += 1
        if n == 26:
            e('buffer_store_dwordx3 v[224:226], v3, s[20:23], s63 offen sc1'); nst[0] += 1
g1 = opt['g1']; g2 = min(27, g1 + opt['g2'])
hgate(0, g1)
e(f's_waitcnt vmcnt({nst[0]+12})')
hbar()
hgate(g1, g2)
hbar()
hgate(g2, 27)
if opt['bst']:
    e('s_memtime s[64:65]')
    e('s_waitcnt lgkmcnt(0)')
    e('s_mov_b32 m0, s68'); e('s_nop 0')
    e('v_writelane_b32 v14, s64, m0')
    e('v_writelane_b32 v15, s64, m0')
    e('s_cmp_lg_u32 s26, 4')
    e('s_cbranch_scc1 L_fin')
    e('s_mov_b32 s22, 0x10000000')
    e('s_lshl_b32 s33, s2, 9')
    e(f's_add_u32 s33, s33, {STAMP_OFF + (128<<10)*4}')
    e('v_lshrrev_b32 v1, 1, v3')
    e('buffer_store_dwordx2 v[14:15], v1, s[20:23], s33 offen')
lab('L_fin')
e('s_setprio 0')
e('s_load_dwordx2 s[6:7], s[0:1], 24')
if not opt['es']: stamp(7)
e('v_and_b32 v2, 63, v0')
e('v_lshlrev_b32 v3, 4, v2')
e('v_mov_b32 v37, 0')
e('s_lshl_b32 s40, s27, 1')
e('s_lshr_b32 s41, s26, 2')
e('s_add_u32 s40, s40, s41')
e('s_mul_i32 s30, s40, 7282')
e('s_lshr_b32 s30, s30, 16')
e('s_mul_i32 s31, s30, 9')
e('s_sub_u32 s31, s40, s31')
if opt['gmap']:
    e('s_lshr_b32 s32, s30, 2')
    e('s_bfe_u32 s38, s30, 0x10001')
    e('s_and_b32 s33, s30, 1')
    e('s_cmp_ge_u32 s32, 7')
    e('s_cselect_b32 s37, 4608000, 0')
    e('s_cselect_b32 s36, 7, 0')
    e('s_sub_u32 s32, s32, s36')
    e('s_lshl_b32 s32, s32, 1')
    e('s_add_u32 s33, s33, s32')
else:
    e('s_mul_i32 s32, s30, 4682')
    e('s_lshr_b32 s32, s32, 16')
    e('s_mul_i32 s33, s32, 14')
    e('s_sub_u32 s33, s30, s33')
    e('s_lshr_b32 s37, s32, 1')
    e('s_and_b32 s38, s32, 1')
    e('s_mul_i32 s37, s37, 4608000')
e('s_waitcnt lgkmcnt(0)')
e('s_add_u32 s6, s6, s37'); e('s_addc_u32 s7, s7, 0')
srd(16, 6, 7, 4608000)
e('s_mul_i32 s39, s33, 1152')
e('s_add_u32 s39, s39, s38')
e('s_add_u32 s39, s39, 6')
e('s_lshl_b32 s45, s31, 2')
e('s_add_u32 s45, s45, s24')
e('s_mul_i32 s42, s45, 171')
e('s_lshr_b32 s42, s42, 9')
e('s_mul_i32 s43, s42, 3')
e('s_sub_u32 s43, s45, s43')
e('s_sub_u32 s44, s45, 28')
e('s_cmp_ge_u32 s45, 27')
e('s_cselect_b32 s42, s44, s42')
e('s_cselect_b32 s43, 3, s43')
e('s_cmp_eq_u32 s45, 27')
e('s_cselect_b32 s42, 8, s42')
e('s_lshl_b32 s42, s42, 3')
e('s_lshl_b32 s43, s43, 1')
e('s_add_u32 s42, s42, s39')
e('s_sub_u32 s42, s42, s43')
e('s_mul_i32 s45, s42, 288')
e('v_lshrrev_b32 v7, 4, v2')
e(f'v_mul_u32_u24 v7, {4*72*288}, v7')
e('v_add_u32 v7, s45, v7')
e('v_and_b32 v8, 15, v2')
e('v_lshl_add_u32 v11, v8, 1, v7')
e('v_lshl_add_u32 v10, v8, 4, v7')
e('s_mul_i32 s46, s27, 36864')
e('s_lshl_b32 s47, s26, 10')
e('s_add_u32 s46, s46, s47')
e(f's_add_u32 s46, s46, {Z_OFF}')
e('s_mul_i32 s48, s41, 18432')
e('s_lshl_b32 s49, s24, 2')
e('s_add_u32 s48, s48, s49')
e(f's_add_u32 s48, s48, {SLOT}')
e('v_add_u32 v4, s48, v3')
e('v_mov_b32 v34, 0')
e('v_mov_b32 v35, 0')
e('s_waitcnt vmcnt(0)')
e('s_barrier')
if not opt['es']: stamp(8)
def bf(f): return vr(76 + 4*f)
def preB():
    for f in range(45):
        e(f'ds_read_b128 {bf(f)}, v3 offset:{f*1024}')
        if f % 12 == 11: e('s_waitcnt lgkmcnt(4)')
e('s_cmp_lg_u32 s26, 4')
e('s_cbranch_scc1 L_e1b')
e('s_lshl_b32 s50, s28, 7')
e(f's_add_u32 s50, s50, {FLAG_OFF+ZFL}')
setflag(['s_lshl_b32 s30, s29, 3', 's_add_u32 s30, s30, s50'])
lab('L_e1b')
preB()
e('s_cmp_lg_u32 s26, 4')
e('s_cbranch_scc1 L_e2')
e('v_min_u32 v5, 8, v2')
e('v_lshlrev_b32 v5, 3, v5')
e('s_mov_b32 s51, 0')
lab('L_zpoll')
e('buffer_load_dwordx2 v[38:39], v5, s[20:23], s50 offen sc1')
e('s_add_u32 s51, s51, 1')
e('s_cmp_gt_u32 s51, 20000')
e('s_cbranch_scc1 L_e2')
e('s_waitcnt vmcnt(0)')
e('v_cmp_ne_u64 vcc, s[92:93], v[38:39]')
e('s_cbranch_vccz L_e2')
e('s_sleep 1')
e('s_branch L_zpoll')
lab('L_e2')
e('s_barrier')
stamp(9)
for i in range(5):
    if i == 4:
        e('s_cmp_ge_u32 s26, 4')
        e('s_cbranch_scc1 L_e3')
    e(f's_add_u32 m0, s47, {SLOT + i*8192}')
    e('s_nop 0')
    e('buffer_load_dwordx4 v3, s[20:23], s46 offen sc1 lds')
    if i < 4: e('s_add_u32 s46, s46, 8192')
lab('L_e3')
e('s_waitcnt vmcnt(0) lgkmcnt(0)')
e('s_barrier')
stamp(10)
if opt['stamps']: e('s_waitcnt lgkmcnt(0)')
for J in range(14): e(f'ds_read_b32 v{16+J}, v4 offset:{J*1024}')
for ks in range(5):
    if ks == 0: e('s_waitcnt lgkmcnt(10)')
    if ks == 1: e('s_waitcnt lgkmcnt(10)')
    if ks == 2: e('s_waitcnt lgkmcnt(6)')
    if ks == 3: e('s_waitcnt lgkmcnt(2)')
    if ks == 4: e('s_waitcnt lgkmcnt(0)')
    for T in range(9):
        r = 40 + 4*T
        cin = '0' if ks == 0 else vr(r)
        e(f'v_mfma_f32_16x16x32_bf16 {vr(r)}, v[{16+4*ks}:{16+4*ks+3}], {bf(T*5+ks)}, {cin}')
        if ks == 0 and T < 4: e(f'ds_read_b32 v{30+T}, v4 offset:{(14+T)*1024}')
e('s_nop 7')
e('s_nop 1')
for r in range(4):
    d = 140 + 6*r
    A = lambda T: 40 + 4*T + r
    for h in range(4): e(f'v_cvt_pk_bf16_f32 v{d+h}, v{A(2*h)}, v{A(2*h+1)}')
    e(f'v_cvt_pk_bf16_f32 v{d+4}, v{A(8)}, v{A(8)}')
    e(f'buffer_store_dwordx4 v[{d}:{d+3}], v10, s[16:19], 0 offen{OF[opt["of"]]}')
    e(f'buffer_store_short v{d+4}, v11, s[16:19], 0 offen offset:256{OF[opt["of2"]]}')
    if r < 3:
        e(f'v_add_u32 v10, {72*288}, v10')
        e(f'v_add_u32 v11, {72*288}, v11')
if opt['stamps']:
    e('s_waitcnt vmcnt(0)')
    stamp(11)
    e('s_waitcnt lgkmcnt(0)')
    e(f's_cmp_lg_u32 s26, {opt["sw"]}')
    e('s_cbranch_scc1 L_end')
    if opt['dbgst']:
        e(f's_cmp_lg_u32 s2, {opt["dbgst"]}')
        e('s_cbranch_scc1 L_end')
        e('s_load_dwordx2 s[56:57], s[0:1], 32')
        e('s_waitcnt lgkmcnt(0)')
        srd(16, 56, 57, 256)
        e('v_mov_b32 v1, 0')
        for i in range(1, 12):
            e(f's_sub_u32 s33, s{64+2*i}, s64')
            e('v_mov_b32 v4, s33')
            e(f'buffer_store_dword v4, v1, s[16:19], 0 offen offset:{4+4*i}')
        e('s_sub_u32 s33, s94, s90')
        e('v_mov_b32 v4, s33')
        e('buffer_store_dword v4, v1, s[16:19], 0 offen offset:56')
        e('s_branch L_end')
    e('s_mov_b32 s22, 0x10000000')
    e('s_lshl_b32 s33, s2, 7')
    e(f's_add_u32 s33, s33, {STAMP_OFF}')
    e('v_mov_b32 v1, s33')
    for i in range(6):
        for k in range(4): e(f'v_mov_b32 v{4+k}, s{64+4*i+k}')
        e(f'buffer_store_dwordx4 v[4:7], v1, s[20:23], 0 offen offset:{16*i}')
        e('s_nop 1')
lab('L_end')
e('s_endpgm')
tail = f"""
.section .rodata,"a"
.p2align 6
.amdhsa_kernel {NAME}_kernel
  .amdhsa_next_free_vgpr 256
  .amdhsa_next_free_sgpr 100
  .amdhsa_accum_offset 256
  .amdhsa_group_segment_fixed_size 0
  .amdhsa_kernarg_size 48
  .amdhsa_user_sgpr_count 2
  .amdhsa_user_sgpr_kernarg_segment_ptr 1
  .amdhsa_system_sgpr_workgroup_id_x 1
.end_amdhsa_kernel
"""
open(sys.argv[1], 'w').write(hdr + '\n'.join(out) + '\n' + tail)
```

```python
import sys, struct
import numpy as np
from f44 import matrices, PTS
NAME = 'standalone__autoregressive_conv_wavenet__speech'
opt = dict(stamps=0, LA=24, smallfix=1, ldf=0, QS=34, prio=1, g1=5, g2=7, bst=0, nd0=7, wsp=5, f0=30, slp=1, cpf=3, sw=4, dly=0, pf=0, early=1, dbgst=0, rep=1, rstr=4352, pre=0, shr=1, agg=1, gslp=2, es=0, word=1, skx=0, skw=0, of=0, of2=0, gmap=1, trip=0, tlo=0)
for a in sys.argv[2:]:
    k, v = a.split('='); assert k in opt, k; opt[k] = int(v)
out = []
def e(s): out.append('    ' + s)
def lab(s): out.append(s + ':')
def c(s): out.append('    ; ' + s)
def fh(x): return '0x%08x' % struct.unpack('<I', struct.pack('<f', float(x)))[0]
AT, G, BT = matrices()
GS = G.copy()
for m in range(6): GS[m] *= PTS[m]**3
CH = np.zeros((3, 7))
for i in range(3):
    for m in range(6): CH[i][m] = PTS[m]**(i-3)
DCH = CH[:, :6] - CH[:, 1:7]
LOG2E = 1.4426950408889634
LDF = {0: '', 1: ' nt'}[opt['ldf']]
OF = {0:'', 1:' nt', 2:' sc1', 3:' sc0 sc1'}
PRF = {1: ' sc1', 2: '', 3: ' sc0 sc1'}.get(opt['pre'], '')
PF_ = {0: ' sc1', 1: ' sc0 sc1', 2: ' sc1 nt', 3: ' sc0 sc1 nt'}[opt['pf']]
XROWS = 2032
XS = XROWS*96
U_BYTES = 4*21*XS
WT_OFF = U_BYTES
WT_BYTES = 9*21*24576
WO_OFF = WT_OFF + WT_BYTES
Z_OFF = WO_OFF + 48*1024
Z_BYTES = 28*2*9*18*1024
FLAG_OFF = Z_OFF + Z_BYTES
REP = opt['rep']; RSTR = opt['rstr']; FA = REP*RSTR
ZFL = 5*FA
GOF = ZFL + 4096
WS_USED = FLAG_OFF + GOF + 8*4352
STAMP_OFF = 268435456 - (1 << 20)
SLOT = 53248
XL = 2*SLOT + 8192
WL = SLOT
LDS_MAIN = 3*SLOT
OOB = 0x7f000000
hdr = f"""; Kernarg layout for this problem (48 bytes, ptrs only, base s[0:1]):
; @launch grid=(252,1,1) block=(512,1,1) lds={LDS_MAIN}
.amdgcn_target "amdgcn-amd-amdhsa--gfx950"
.text
.globl {NAME}_kernel
.p2align 8
.type {NAME}_kernel,@function
{NAME}_kernel:
"""
def srd(d, lo, hi, nbytes):
    e(f's_mov_b32 s{d}, s{lo}')
    e(f's_and_b32 s{d+1}, s{hi}, 0xffff')
    e(f's_mov_b32 s{d+2}, {nbytes}')
    e(f's_mov_b32 s{d+3}, 0x00020000')
def vp(r): return f'v[{r}:{r+1}]'
def vr(r): return f'v[{r}:{r+3}]'
def pkfma(d, sc, a, b, nega=False):
    neg = ' neg_lo:[0,1,0] neg_hi:[0,1,0]' if nega else ''
    e(f'v_pk_fma_f32 {vp(d)}, s[{sc}:{sc+1}], {vp(a)}, {vp(b)}{neg}')
def pkadd(d, a, b, negb=False):
    neg = ' neg_lo:[0,1] neg_hi:[0,1]' if negb else ''
    e(f'v_pk_add_f32 {vp(d)}, {vp(a)}, {vp(b)}{neg}')
def sconst2(s, x):
    e(f's_mov_b32 s{s}, {fh(x)}'); e(f's_mov_b32 s{s+1}, {fh(x)}')
def stamp(i):
    if opt['stamps']: e(f's_memrealtime s[{64+2*i}:{65+2*i}]')
def PK(b, pm):
    n = pm*4 + b
    return 184 + 4*n if n < 18 else 16 + 4*(n-18)
PA = lambda b: 32 + b
PT = 24

def gettag(name):
    lab(f'L_tag{name}')
    e('buffer_load_dwordx2 v[24:25], v37, s[16:19], 0 offen sc1')
    e('s_add_u32 s31, s31, 1')
    e('s_cmp_gt_u32 s31, 30000')
    e(f's_cbranch_scc1 L_tagd{name}')
    e('s_waitcnt vmcnt(0)')
    e('v_readfirstlane_b32 s92, v24')
    e('v_readfirstlane_b32 s93, v25')
    e('s_nop 3')
    e('s_cmp_eq_u32 s92, 0')
    e(f's_cbranch_scc1 L_tag{name}')
    lab(f'L_tagd{name}')
def setflag(pre):
    for x in pre: e(x)
    e('v_mov_b32 v38, s92')
    e('v_mov_b32 v39, s93')
    e('s_mov_b64 exec, 1')
    e('buffer_store_dwordx2 v[38:39], v37, s[20:23], s30 offen sc1')
    e('s_mov_b64 exec, -1')
def poll_issue(off):
    e(f's_mov_b32 s30, {FLAG_OFF+off}')
    e(f'buffer_load_dwordx4 {vr(PT)}, v36, s[20:23], s30 offen{PF_}')
    e(f'buffer_load_dwordx4 {vr(PT+4)}, v36, s[20:23], s30 offen offset:16{PF_}')
def poll_check():
    e(f'v_cmp_ne_u64 vcc, s[92:93], {vp(PT)}')
    for k in range(1, 4):
        e(f'v_cmp_ne_u64 s[88:89], s[92:93], {vp(PT+2*k)}')
        e('s_or_b64 vcc, vcc, s[88:89]')
def poll(off, name):
    e('s_mov_b32 s31, 0')
    lab(f'L_poll{name}')
    poll_issue(off)
    e('s_add_u32 s31, s31, 1')
    e('s_cmp_gt_u32 s31, 20000')
    e(f's_cbranch_scc1 L_pdone{name}')
    e('s_waitcnt vmcnt(0)')
    poll_check()
    e(f's_cbranch_scc0 L_pdone{name}')
    if opt['shr']: e('s_mov_b64 exec, vcc')
    e(f's_sleep {opt["slp"]}')
    e(f's_branch L_poll{name}')
    lab(f'L_pdone{name}')
    if opt['shr']: e('s_mov_b64 exec, -1')

e('s_cmp_ge_u32 s2, 252')
e('s_cbranch_scc1 L_end')
if opt['stamps']:
    for i in range(24): e(f's_mov_b32 s{64+i}, 0')
stamp(0)
if opt['trip']: e('s_memrealtime s[64:65]')
e('s_load_dwordx4 s[4:7], s[0:1], 0')
e('s_load_dwordx2 s[8:9], s[0:1], 16')
e('s_load_dwordx4 s[56:59], s[0:1], 32')
e('v_lshrrev_b32 v1, 6, v0')
e('v_and_b32 v2, 63, v0')
e('v_readfirstlane_b32 s26, v1')
if opt['cpf']:
    c('pull the kernel code towards L2 first (1 KB per participating wave)')
    e('s_getpc_b64 s[44:45]')
    lab('L_pc')
    if opt['cpf'] == 1:
        e('s_lshl_b32 s42, s2, 10')
        e('s_and_b32 s42, s42, 0x6000')
        e('v_lshlrev_b32 v102, 4, v0')
    elif opt['cpf'] == 2:
        e('s_lshl_b32 s42, s2, 7')
        e('s_and_b32 s42, s42, 0x7c00')
        e('v_lshlrev_b32 v102, 4, v2')
        e('v_lshl_add_u32 v102, v1, 20, v102')
    else:
        e('s_lshl_b32 s42, s2, 8')
        e('s_and_b32 s42, s42, 0x7800')
        e('v_lshlrev_b32 v102, 4, v0')
        e('v_lshrrev_b32 v103, 1, v1')
        e('v_lshl_add_u32 v102, v103, 20, v102')
    e('s_and_b32 s45, s45, 0xffff')
    e('s_mov_b32 s46, L_end-L_pc')
    e('s_mov_b32 s47, 0x00020000')
    e(f'buffer_load_dwordx4 {vr(180)}, v102, s[44:47], s42 offen')
else: e('s_nop 1')
def common():
    srd(20, 58, 59, WS_USED)
    srd(16, 56, 57, 256)
    e('s_mov_b32 s33, 0xffff0000')
    e('v_mov_b32 v37, 0')
    for b in range(4): e(f'v_mov_b32 v{PA(b)}, {OOB}')
    for b in range(4): e(f's_mov_b32 s{96+b}, {3*XS}')
    e('s_mov_b32 s31, 0')
    e('s_mov_b32 s92, 0')
    e('s_mov_b32 s93, 0')
    e('s_cmp_ge_u32 s2, 125')
    e(f's_cselect_b32 s50, {2*21*XS - 125*1536}, 0')
    e('s_mul_i32 s51, s2, 1536')
    e('s_add_u32 s50, s50, 768')
    e('s_add_u32 s50, s50, s51')
    e(f's_add_u32 s51, s50, {3*XS}')
    e(f's_mov_b32 s35, {XL+64}')
e('s_lshr_b32 s28, s26, 1')
e('s_cmp_eq_u32 s28, 2')
e('s_cbranch_scc1 Lp_w')
def xaddr(su, va, vd):
    e(f's_lshl_b32 s28, s{su}, 6')
    e('v_add_u32 v3, s28, v2')
    e('v_mul_u32_u24 v4, 683, v3')
    e('v_lshrrev_b32 v4, 16, v4')
    e('v_mul_u32_u24 v5, 96, v4')
    e('v_sub_u32 v3, v3, v5')
    e(f'v_mul_u32_u24 v{va}, 43, v3')
    e(f'v_lshrrev_b32 v{va}, 8, v{va}')
    e(f'v_mul_u32_u24 v{va}, {2304-96}, v{va}')
    e(f'v_lshl_add_u32 v{va}, v3, 4, v{va}')
    e(f'v_add3_u32 v{va}, v{va}, v5, s35')
    e('v_cmp_le_u32 vcc, 3, v4')
    e(f'v_mul_u32_u24 v{vd}, {XS}, v4')
    e(f'v_mov_b32 v5, {18*XS}')
    e(f'v_lshl_add_u32 v{vd}, v3, 4, v{vd}')
    e('v_cndmask_b32 v5, 0, v5, vcc')
    e(f'v_add_u32 v{vd}, v{vd}, v5')
def xpair(va, vd):
    for s in range(6): e(f'ds_read_b128 {vr(120+4*s)}, v{va} offset:{(12-2*s)*288}')
    for dw in range(4):
        for s in range(6):
            if dw == 0: e(f's_waitcnt lgkmcnt({5-s})')
            e(f'v_lshlrev_b32 v{148+2*s}, 16, v{120+4*s+dw}')
            e(f'v_and_b32 v{149+2*s}, s33, v{120+4*s+dw}')
        D = lambda s: 148+2*s
        pkfma(162, 46, D(2), D(4))
        pkfma(164, 46, D(3), D(5))
        pkfma(162, 44, D(0), 162)
        pkfma(164, 44, D(1), 164)
        pkfma(166, 48, 162, 164)
        pkfma(168, 48, 162, 164, nega=True)
        e(f'v_cvt_pk_bf16_f32 v{172+dw}, v166, v167')
        e(f'v_cvt_pk_bf16_f32 v{176+dw}, v168, v169')
    e(f'buffer_store_dwordx4 v[172:175], v{vd}, s[20:23], s50 offen sc1')
    e(f'buffer_store_dwordx4 v[176:179], v{vd}, s[20:23], s51 offen sc1')
def xrest(va, b):
    for s in range(7): e(f'ds_read_b128 {vr(120+4*s)}, v{va} offset:{(12-2*s)*288}')
    for dw in range(4):
        for s in range(7):
            if dw == 0: e(f's_waitcnt lgkmcnt({6-s})')
            e(f'v_lshlrev_b32 v{148+2*s}, 16, v{120+4*s+dw}')
            e(f'v_and_b32 v{149+2*s}, s33, v{120+4*s+dw}')
        D = lambda s: 148+2*s
        for t in range(2):
            q0, q1, aa = 36+6*t, 38+6*t, 40+6*t
            pkfma(162, q1, D(2), D(4))
            pkfma(164, q1, D(3), D(5))
            pkfma(162, q0, D(0), 162)
            pkfma(164, q0, D(1), 164)
            pkfma(166, aa, 162, 164)
            pkfma(168, aa, 162, 164, nega=True)
            e(f'v_cvt_pk_bf16_f32 v{PK(b,2*t)+dw}, v166, v167')
            e(f'v_cvt_pk_bf16_f32 v{PK(b,2*t+1)+dw}, v168, v169')
        pkfma(162, 54, D(4), D(6))
        pkfma(162, 52, D(2), 162)
        pkfma(162, 48, D(0), 162)
        e(f'v_cvt_pk_bf16_f32 v{PK(b,4)+dw}, v162, v163')
for t in range(3):
    a = PTS[2*t]; q0 = BT[2*t][1]; q1 = BT[2*t][3]
    assert abs(BT[2*t][0] - a*q0) < 1e-12 and abs(BT[2*t][2] - a*q1) < 1e-12 and abs(BT[2*t][4]-a) < 1e-12
e('s_sub_u32 s27, s26, 2')
e('s_cmp_lt_u32 s26, 4')
e('s_cselect_b32 s27, s26, s27')
e('s_cmp_ge_u32 s2, 250')
e('s_cbranch_scc1 Lp_zero')
e('s_cmp_ge_u32 s2, 125')
e('s_cselect_b32 s24, 4608000, 0')
e('s_mul_i32 s28, s2, 36864')
e('s_sub_u32 s28, s28, s24')
e('s_sub_u32 s28, s28, 1792')
e('s_lshl_b32 s29, s27, 10')
e('s_add_u32 s28, s28, s29')
e('v_lshlrev_b32 v6, 4, v2')
e('v_add_u32 v6, s28, v6')
e(f's_mov_b32 s14, {0 if opt["skx"] else 4608000}')
e('s_mov_b32 s15, 0x00020000')
e(f's_add_u32 m0, s29, {XL}')
e('s_waitcnt lgkmcnt(0)')
e('s_add_u32 s12, s4, s24'); e('s_addc_u32 s13, s5, 0')
e('s_and_b32 s13, s13, 0xffff')
for i in range(7):
    if i == 6:
        e('s_cmp_ge_u32 s27, 2')
        e('s_cbranch_scc1 Lp_xl')
    e(f'buffer_load_dwordx4 v6, s[12:15], 0 offen{LDF} lds')
    if i < 6:
        e(f's_add_u32 m0, s29, {XL + (i+1)*6144}')
        e('v_add_u32 v6, 6144, v6')
lab('Lp_xl')
common()
e('s_add_u32 s28, s2, s26')
e('s_cmp_lg_u32 s28, 0')
e('s_cbranch_scc1 Lp_x0')
c('WG 0 wave 0 publishes the launch tag in d_debug')
e('s_memrealtime s[92:93]')
e('s_waitcnt lgkmcnt(0)')
e('s_or_b32 s92, s92, 1')
e('v_mov_b32 v38, s92')
e('v_mov_b32 v39, s93')
e('s_mov_b64 exec, 1')
e('buffer_store_dwordx2 v[38:39], v37, s[16:19], 0 offen sc1')
e('s_mov_b64 exec, -1')
lab('Lp_x0')
c('pass-1 units: wave0:8 wave1:4,5 wave2:0,1 wave3:2,3 wave6:6 wave7:7')
e('s_lshl_b32 s28, s26, 2')
e('s_lshr_b32 s30, 0x76002048, s28')
e('s_and_b32 s30, s30, 15')
xaddr(30, 6, 7)
e('s_add_u32 s30, s30, 1')
xaddr(30, 14, 15)
sconst2(44, BT[0][1]); sconst2(46, BT[0][3]); sconst2(48, PTS[0])
stamp(7)
e('s_waitcnt vmcnt(0)')
stamp(8)
e('s_barrier')
stamp(1)
e('s_cmp_lg_u32 s26, 0')
e('s_cbranch_scc1 Lp_x1')
e('buffer_load_dwordx2 v[24:25], v37, s[16:19], 0 offen sc1')
lab('Lp_x1')
xpair(6, 7)
e('s_bitcmp1_b32 0x0e, s26')
e('s_cbranch_scc0 Lp_x2')
xpair(14, 15)
lab('Lp_x2')
e('s_cmp_ge_u32 s26, 4')
e('s_cbranch_scc1 Lp_h67')
lab('Lp_s2')
e(f'v_mul_u32_u24 v9, {RSTR}, v2')
e('s_lshl_b32 s30, s2, 3')
e(f's_add_u32 s30, s30, {FLAG_OFF}')
e('s_cmp_lg_u32 s26, 0')
e('s_cbranch_scc1 Lp_s2b')
e('s_cmp_ge_u32 s2, 250')
e('s_cbranch_scc1 L_taga')
e('s_waitcnt vmcnt(2)')
e('v_readfirstlane_b32 s92, v24')
e('v_readfirstlane_b32 s93, v25')
e('s_nop 3')
e('s_cmp_lg_u32 s92, 0')
e('s_cbranch_scc1 L_tagda')
gettag('a')
e('v_mov_b32 v38, s92')
e('v_mov_b32 v39, s93')
lab('Lp_s2b')
e('s_waitcnt vmcnt(0)')
e('s_barrier')
e('s_cmp_lg_u32 s26, 0')
e('s_cbranch_scc1 L_pdone')
e(f's_mov_b64 exec, {(1<<REP)-1}')
e('buffer_store_dwordx2 v[38:39], v9, s[20:23], s30 offen sc1')
e('s_mov_b64 exec, -1')
stamp(2)
e('s_branch L_pdone')
def xcoef2():
    for t in (1, 2):
        sconst2(36+6*(t-1), BT[2*t][1]); sconst2(38+6*(t-1), BT[2*t][3]); sconst2(40+6*(t-1), PTS[2*t])
    sconst2(48, BT[6][0]); sconst2(52, BT[6][2]); sconst2(54, BT[6][4])
    e(f's_add_u32 s34, s50, {6*XS}')
lab('Lp_h67')
c('waves 6,7 pass 2: own unit (block 1), then units 2(w-6), 2(w-6)+1 (blocks 2,3)')
xcoef2()
e(f'v_add_u32 v{PA(1)}, s34, v7')
if opt['early']: xrest(6, 1)
e('s_waitcnt vmcnt(0)')
e('s_barrier')
if not opt['early']: xrest(6, 1)
e('s_sub_u32 s30, s26, 6')
e('s_lshl_b32 s30, s30, 1')
lab('Lp_x23')
xaddr(30, 6, 7)
e(f'v_add_u32 v{PA(2)}, s34, v7')
xrest(6, 2)
e('s_add_u32 s30, s30, 1')
lab('Lp_x3')
xaddr(30, 6, 7)
e(f'v_add_u32 v{PA(3)}, s34, v7')
xrest(6, 3)
e('s_branch L_pdone')
lab('Lp_zero')
c('WGs 250,251: zero the 8 leading rows of the 42 arrays of batch b')
e('s_waitcnt lgkmcnt(0)')
common()
e('s_sub_u32 s3, s2, 250')
e(f's_mul_i32 s30, s3, {2*21*XS}')
e('s_lshl_b32 s28, s27, 6')
e('v_add_u32 v3, s28, v2')
for k in range(4): e(f'v_mov_b32 v{16+k}, 0')
for i in range(6):
    e('v_mul_u32_u24 v4, 1366, v3')
    e('v_lshrrev_b32 v4, 16, v4')
    e('v_mul_u32_u24 v5, 48, v4')
    e('v_sub_u32 v5, v3, v5')
    e(f'v_mul_u32_u24 v4, {XS}, v4')
    e('v_lshl_add_u32 v4, v5, 4, v4')
    e('v_cmp_gt_u32 vcc, 2016, v3')
    e(f'v_mov_b32 v5, {OOB}')
    e('v_add_u32 v3, 384, v3')
    e('v_cndmask_b32 v4, v5, v4, vcc')
    e('buffer_store_dwordx4 v[16:19], v4, s[20:23], s30 offen sc1')
e('s_barrier')
e('s_branch Lp_s2')
lab('Lp_w')
e('s_and_b32 s27, s26, 1')
c('w unit: XCD x = id&7 owns a contiguous range of units; local i = id>>3 < 9 takes two')
e('s_and_b32 s28, s2, 7')
e('s_lshr_b32 s29, s2, 3')
e('s_mul_i32 s3, s28, 40')
e('s_min_u32 s30, s28, 4')
e('s_add_u32 s3, s3, s30')
e('s_add_u32 s3, s3, s29')
e('s_min_u32 s30, s29, 9')
e('s_add_u32 s3, s3, s30')
e('s_add_u32 s3, s3, s27')
e('s_mul_i32 s30, s27, s29')
e('s_cmp_ge_u32 s30, 9')
e('s_cbranch_scc1 Lp_wo')
def posdec(P, ko, pos, kk, o, tmp):
    e(f'v_mul_u32_u24 v{ko}, 58255, v{P}')
    e(f'v_lshrrev_b32 v{ko}, 22, v{ko}')
    e(f'v_mul_u32_u24 v{tmp}, 72, v{ko}')
    e(f'v_sub_u32 v{pos}, v{P}, v{tmp}')
    e(f'v_mul_u32_u24 v{kk}, 3641, v{ko}')
    e(f'v_lshrrev_b32 v{kk}, 16, v{kk}')
    e(f'v_mul_u32_u24 v{tmp}, 18, v{kk}')
    e(f'v_sub_u32 v{o}, v{ko}, v{tmp}')
G_ = lambda r, ch: 40+2*(8*r+ch)
e('s_lshl_b32 s28, s3, 5')
e('v_and_b32 v3, 31, v2')
e('v_add_u32 v4, s28, v3')
posdec(4, 5, 6, 7, 8, 9)
e(f'v_mul_u32_u24 v7, {4*82944}, v7')
e('v_mul_u32_u24 v8, 4608, v8')
e('v_lshrrev_b32 v9, 5, v2')
e('v_mul_u32_u24 v10, 288, v9')
e('v_add3_u32 v7, v7, v8, v10')
e('v_lshl_add_u32 v6, v6, 2, v7')
e('s_waitcnt lgkmcnt(0)')
srd(12, 6, 7, 0 if opt['skw'] else 31*144*288*2)
if opt['word']:
    for r in range(1, 4): e(f's_mov_b32 s{36+r}, {82944*r}')
    for ch in range(8):
        for r in range(4):
            e(f'buffer_load_dword v{G_(r,ch)+1}, v6, s[12:15], {"s%d" % (36+r) if r else 0} offen offset:{ch*576}{LDF}')
else:
  for r in range(4):
    for ch in range(8):
        e(f'buffer_load_dword v{G_(r,ch)+1}, v6, s[12:15], 0 offen offset:{ch*576}{LDF}')
    if r < 3: e('v_add_u32 v6, 82944, v6')
stamp(7)
common()
e('s_lshl_b32 s29, s27, 14')
e(f's_add_u32 s29, s29, {WL}')
e('v_lshlrev_b32 v10, 6, v3')
e('v_lshl_add_u32 v10, v9, 5, v10')
e('v_add_u32 v10, s29, v10')
e('v_lshlrev_b32 v11, 4, v2')
e('v_add_u32 v11, s29, v11')
for h in range(2):
    e('v_lshrrev_b32 v4, 2, v2')
    e(f'v_add3_u32 v4, v4, s28, {16*h}')
    posdec(4, 5, 6, 7, 8, 9)
    e('v_mul_u32_u24 v4, 43, v8')
    e('v_lshrrev_b32 v4, 8, v4')
    e('v_mul_u32_u24 v5, 6, v4')
    e('v_sub_u32 v5, v8, v5')
    e('v_lshrrev_b32 v8, 1, v7')
    e('v_add_u32 v8, 8, v8')
    e('v_and_b32 v9, 1, v7')
    e('v_lshl_add_u32 v9, v9, 1, v5')
    e('v_subrev_u32 v9, 4, v9')
    e('v_cmp_le_u32 vcc, 4, v5')
    e('v_mul_u32_u24 v4, 24576, v4')
    e('v_lshrrev_b32 v14, 3, v6')
    e('v_cndmask_b32 v8, v7, v8, vcc')
    e('v_cndmask_b32 v9, v5, v9, vcc')
    e(f'v_mul_u32_u24 v14, {21*24576}, v14')
    e('v_bfe_u32 v15, v6, 2, 1')
    e('v_mul_u32_u24 v15, 12288, v15')
    e(f'v_add3_u32 v{12+h}, v4, v14, v15')
    e(f'v_lshl_add_u32 v{12+h}, v8, 10, v{12+h}')
    e(f'v_lshl_add_u32 v{12+h}, v9, 8, v{12+h}')
    e('v_and_b32 v4, 3, v6')
    e(f'v_lshl_add_u32 v{12+h}, v4, 6, v{12+h}')
    e('v_and_b32 v4, 3, v2')
    e(f'v_lshl_add_u32 v{12+h}, v4, 4, v{12+h}')
def wcoef(t):
    for r in range(4):
        assert abs(GS[2*t+1][r] - (1 if r % 2 == 0 else -1)*GS[2*t][r]) < 1e-12
        e(f'v_mul_f32 v{160+2*r}, {fh(GS[2*t][r])}, v14')
        e(f'v_mov_b32 v{161+2*r}, v{160+2*r}')
e(f's_mov_b32 s34, {WT_OFF}')
e('v_cmp_le_u32 vcc, 32, v2')
e(f'v_mov_b32 v14, {fh(-2*LOG2E)}')
e(f'v_mov_b32 v15, {fh(-LOG2E)}')
e('v_cndmask_b32 v14, v14, v15, vcc')
e('v_mov_b32 v15, v14')
wcoef(0)
stamp(8)
e('s_barrier')
stamp(1)
e('s_waitcnt vmcnt(0)')
stamp(2)
for k in range(32):
    e(f'v_lshlrev_b32 v{40+2*k}, 16, v{41+2*k}')
    e(f'v_and_b32 v{41+2*k}, s33, v{41+2*k}')
e('s_mov_b32 s53, 0')
lab('Lp_wloop')
for dw in range(4):
    for c2 in range(2):
        ch = 2*dw+c2
        E, O = 104+4*c2, 106+4*c2
        e(f'v_pk_mul_f32 {vp(E)}, {vp(160)}, {vp(G_(0,ch))}')
        e(f'v_pk_mul_f32 {vp(O)}, {vp(162)}, {vp(G_(1,ch))}')
        e(f'v_pk_fma_f32 {vp(E)}, {vp(164)}, {vp(G_(2,ch))}, {vp(E)}')
        e(f'v_pk_fma_f32 {vp(O)}, {vp(166)}, {vp(G_(3,ch))}, {vp(O)}')
        pkadd(112+4*c2, O, E)
        pkadd(114+4*c2, E, O, negb=True)
    for sgn in range(2):
        for n in range(2):
            e(f'v_cvt_pk_bf16_f32 v{120+8*sgn+4*n+dw}, v{112+2*sgn+n}, v{116+2*sgn+n}')
for sgn in range(2):
    for n in range(2):
        e(f'ds_write_b128 v10, {vr(120+8*sgn+4*n)} offset:{sgn*2048 + n*16}')
e('s_add_u32 s53, s53, 1')
e('s_waitcnt lgkmcnt(0)')
e('v_add_u32 v10, 4096, v10')
e('s_cmp_eq_u32 s53, 3')
e('s_cbranch_scc1 Lp_w3')
e('s_cmp_eq_u32 s53, 1')
e('s_cbranch_scc1 Lp_w1')
wcoef(2)
if opt['early']:
    e('s_waitcnt vmcnt(0)')
    e('s_barrier')
e('s_branch Lp_wloop')
lab('Lp_w1')
for k in range(4): e(f'ds_read_b128 {vr(136+4*k)}, v11 offset:{k*1024}')
for k in range(4):
    e(f's_waitcnt lgkmcnt({3-k})')
    e(f'buffer_store_dwordx4 {vr(136+4*k)}, v{12+k%2}, s[20:23], s34 offen sc1')
    if k % 2 == 1: e(f's_add_u32 s34, s34, {3*24576}')
wcoef(1)
if not opt['early']:
    e('s_waitcnt vmcnt(0)')
    e('s_barrier')
e('s_branch Lp_wloop')
lab('Lp_w3')
for ch in range(8): e(f'v_pk_mul_f32 {vp(G_(3,ch))}, {vp(G_(3,ch))}, v[14:15]')
for n in range(2):
    for dw in range(4):
        e(f'v_cvt_pk_bf16_f32 v{120+4*n+dw}, v{G_(3,2*dw)+n}, v{G_(3,2*dw+1)+n}')
    e(f'ds_write_b128 v10, {vr(120+4*n)} offset:{n*16}')
e('s_waitcnt lgkmcnt(0)')
for k in range(10):
    e(f'ds_read_b128 {vr(PK(k % 2, k//2))}, v11 offset:{4096 + k*1024}')
e(f'v_add_u32 v{PA(0)}, s34, v12')
e(f'v_add_u32 v{PA(1)}, s34, v13')
e(f's_mov_b32 s96, {3*24576}')
e(f's_mov_b32 s97, {3*24576}')
e('s_waitcnt lgkmcnt(0)')
lab('Lp_wx')
c('then x pass 2: wave 4: unit 8 (block 3) ; wave 5: units 4,5 (blocks 2,3)')
e('s_cmp_ge_u32 s2, 250')
e('s_cbranch_scc1 L_pdone')
xcoef2()
e('s_mov_b32 s30, 8')
e('s_cmp_eq_u32 s26, 4')
e('s_cbranch_scc1 Lp_x3')
e('s_mov_b32 s30, 4')
e('s_branch Lp_x23')
lab('Lp_wo')
e('s_waitcnt lgkmcnt(0)')
common()
e('s_sub_u32 s3, s2, 72')
e('s_cmp_ge_u32 s3, 45')
e('s_cbranch_scc1 Lp_wo2')
srd(12, 8, 9, 144*144*2)
e('s_mul_i32 s28, s3, 13108')
e('s_lshr_b32 s28, s28, 16')
e('s_mul_i32 s29, s28, 5')
e('s_sub_u32 s29, s3, s29')
e('v_and_b32 v7, 15, v2')
e('v_lshrrev_b32 v8, 4, v2')
e('s_cmp_eq_u32 s28, 8')
e('s_cselect_b32 s30, 1, 4')
e('s_cselect_b32 s34, 256, 0')
e('s_cselect_b32 s28, 0, s28')
e('s_lshl_b32 s28, s28, 1')
e('s_add_u32 s34, s34, s28')
e(f's_mul_i32 s29, s29, {32*288}')
e('s_add_u32 s34, s34, s29')
e('v_lshlrev_b32 v9, s30, v7')
e('v_mul_u32_u24 v14, 576, v8')
e('v_add3_u32 v14, v14, v9, s34')
for d in range(4):
    e(f'buffer_load_ushort v{40+2*d}, v14, s[12:15], 0 offen')
    e(f'buffer_load_ushort v{41+2*d}, v14, s[12:15], 0 offen offset:288')
    if d < 3: e('v_add_u32 v14, 2304, v14')
e('s_lshl_b32 s3, s3, 10')
e(f's_add_u32 s3, s3, {WO_OFF}')
e('v_lshlrev_b32 v1, 4, v2')
e('s_barrier')
e('s_waitcnt vmcnt(0)')
for d in range(4):
    e(f'v_lshl_or_b32 v{48+d}, v{41+2*d}, 16, v{40+2*d}')
e('buffer_store_dwordx4 v[48:51], v1, s[20:23], s3 offen sc1')
e('s_waitcnt vmcnt(0)')
e('s_barrier')
e('s_branch Lp_wx')
lab('Lp_wo2')
e('s_barrier')
e('s_barrier')
e('s_branch Lp_wx')

def M(t): return 12 + 4*t
def MD(t): return 48 + 4*t
def FR(k): return vr(84 + 4*k)
lab('L_pdone')
e('v_lshlrev_b32 v101, 4, v2')
e('v_min_u32 v36, 62, v2')
e('v_lshlrev_b32 v36, 5, v36')
e(f's_and_b32 s30, s2, {REP-1}')
e(f's_mul_i32 s30, s30, {RSTR}')
e('v_add_u32 v36, s30, v36')
e(f'v_mul_u32_u24 v12, {RSTR}, v2')
c('unit = base[xcd] + (id>>3)')
e('s_and_b32 s25, s2, 7')
e('s_lshr_b32 s24, s2, 3')
e('s_mul_i32 s27, s25, 31')
e('s_min_u32 s28, s25, 4')
e('s_add_u32 s27, s27, s28')
e('s_add_u32 s27, s27, s24')
e('s_mul_i32 s28, s27, 7282')
e('s_lshr_b32 s28, s28, 16')
e('s_mul_i32 s29, s28, 9')
e('s_sub_u32 s29, s27, s29')
e('s_and_b32 s24, s26, 3')
e('s_lshr_b32 s32, s24, 1')
e('s_and_b32 s33, s24, 1')
e('s_mul_i32 s34, s24, 7168')
e('s_mul_i32 s35, s24, 6144')
c('z soffset s62: (((g*2+rh)*9+gs)*18+J)*1024')
e('s_lshl_b32 s62, s28, 1')
e('s_add_u32 s62, s62, s32')
e(f's_mul_i32 s62, s62, {9*18*1024}')
e('s_lshl_b32 s63, s29, 1')
e('s_add_u32 s63, s63, s33')
e('s_lshl_b32 s63, s63, 10')
e('s_add_u32 s62, s62, s63')
e(f's_add_u32 s62, s62, {Z_OFF}')
if opt['gmap']:
    c('g = (b*7+gg)*2 + p')
    e('s_lshr_b32 s38, s28, 1')
    e('s_and_b32 s30, s28, 1')
    e('s_cmp_ge_u32 s38, 7')
    e('s_cselect_b32 s36, 7, 0')
    e('s_cselect_b32 s37, 2, 0')
    e('s_sub_u32 s38, s38, s36')
    e('s_add_u32 s30, s30, s37')
else:
    e('s_mul_i32 s30, s28, 9363')
    e('s_lshr_b32 s30, s30, 16')
    e('s_mul_i32 s38, s30, 7')
    e('s_sub_u32 s38, s28, s38')
e(f's_mul_i32 s36, s30, {21*XS}')
e('s_mul_i32 s37, s38, 27648')
e('s_add_u32 s36, s36, s37')
e('s_add_u32 s36, s36, s34')
e(f's_mul_i32 s37, s29, {21*24576}')
e('s_add_u32 s37, s37, s35')
e(f's_add_u32 s37, s37, {WT_OFF}')
e('s_cmp_ge_u32 s26, 4')
e('s_cbranch_scc1 L_helper')
e('s_cmp_lg_u32 s26, 0')
e('s_cbranch_scc1 L_c13')
c('wave 0: wait for all A flags, then load the whole phase 0 tile')
if opt['agg']:
    e('s_cmp_lg_u32 s2, 0')
    e('s_cbranch_scc1 L_gow')
if opt['dly']: e(f's_sleep {opt["dly"]}')
poll(0, 'A')
if opt['agg']:
    c('WG 0 saw all A flags: release everybody through 8 go words')
    e('v_mul_u32_u24 v9, 4352, v2')
    e(f's_mov_b32 s30, {FLAG_OFF+GOF}')
    e('s_mov_b64 exec, 0xff')
    e('buffer_store_dwordx2 v[38:39], v9, s[20:23], s30 offen sc1')
    e('s_mov_b64 exec, -1')
    e('s_branch L_god')
    lab('L_gow')
    e('s_mul_i32 s30, s25, 4352')
    e(f's_add_u32 s30, s30, {FLAG_OFF+GOF}')
    e('s_mov_b32 s31, 0')
    e('s_mov_b64 exec, 1')
    lab('L_gol')
    e('buffer_load_dwordx2 v[24:25], v37, s[20:23], s30 offen sc1')
    e('s_add_u32 s31, s31, 1')
    e('s_cmp_gt_u32 s31, 40000')
    e('s_cbranch_scc1 L_gox')
    e('s_waitcnt vmcnt(0)')
    e('v_cmp_ne_u64 vcc, s[92:93], v[24:25]')
    e('s_cbranch_vccz L_gox')
    e(f's_sleep {opt["gslp"]}')
    e('s_branch L_gol')
    lab('L_gox')
    e('s_mov_b64 exec, -1')
    lab('L_god')
stamp(3)
for k in range(52):
    if k % 4 == 0:
        e(f's_mov_b32 m0, {k*1024}')
        e(f's_add_u32 s30, s36, {k*1024}' if k < 28 else f's_add_u32 s30, s37, {(k-28)*1024}')
    e(f'buffer_load_dwordx4 v101, s[20:23], s30 offen offset:{(k%4)*1024} sc1 lds')
lab('L_c13')
e('s_barrier')
if opt['prio']: e(f's_setprio {opt["prio"]}')
e('v_and_b32 v124, 15, v2')
e('v_lshrrev_b32 v125, 4, v2')
e('v_mul_u32_u24 v126, 864, v124')
e('s_mul_i32 s38, s32, 13824')
e('v_add_u32 v126, s38, v126')
e('v_lshl_add_u32 v2, v125, 4, v126')
e('v_lshrrev_b32 v127, 1, v125')
e('v_mul_u32_u24 v127, 96, v127')
e('v_sub_u32 v127, v126, v127')
e('v_and_b32 v128, 1, v125')
e('v_lshl_add_u32 v127, v128, 4, v127')
e('v_add_u32 v5, 160, v127')
e('s_mul_i32 s38, s33, 12288')
e('s_add_u32 s38, s38, 28672')
e('v_add_u32 v8, s38, v101')
for s in (1, 2):
    e(f'v_add_u32 v{2+s}, {s*SLOT}, v2')
    e(f'v_add_u32 v{5+s}, {s*SLOT}, v5')
    e(f'v_add_u32 v{8+s}, {s*SLOT}, v8')
e(f's_add_u32 s38, s34, {2*SLOT}')
e('v_add_u32 v1, s38, v101')
e(f's_add_u32 s38, s35, {2*SLOT+28672}')
e('v_add_u32 v11, s38, v101')
for r in range(48, 84): e(f'v_mov_b32 v{r}, 0')

frags = []; mf = []
for tp in range(-7, 9):
    for kk in range(min(7, 8-tp), max(0, -tp)-1, -1):
        mf.append((tp+kk, ('W', kk), ('X', tp)))
for tp in range(-6, 9):
    for pp in range(3, -1, -1):
        if 0 <= tp+2*pp <= 8: mf.append((tp+2*pp, ('WT', pp), ('XT', tp)))
assert len(mf) == 108
fu = {}
for s, (t, wk, xk) in enumerate(mf):
    for k in (xk, wk):
        if k not in fu: fu[k] = s; frags.append(k)
assert len(frags) == 43
fidx = {k: i for i, k in enumerate(frags)}
LA = opt['LA']; BAR = 108 - LA; ELAST = BAR - 6
iss = [(-LA + (k*(ELAST+LA))//42) for k in range(43)]
for k in range(43): assert iss[k] <= fu[frags[k]] - 8, (k, iss[k], fu[frags[k]])
def rd(k, slot):
    kind, i = frags[k]
    if kind == 'X': return f'ds_read_b128 {FR(k)}, v{2+slot} offset:{(i+8)*96}'
    if kind == 'XT': return f'ds_read_b128 {FR(k)}, v{5+slot} offset:{(i+7)*96}'
    if kind == 'W': return f'ds_read_b128 {FR(k)}, v{8+slot} offset:{i*1024}'
    return f'ds_read_b128 {FR(k)}, v{8+slot} offset:{(8+i)*1024}'
npre = sum(1 for x in iss if x < 0)
first_touch = {}; last_touch = {}
for s, (t, wk, xk) in enumerate(mf):
    first_touch.setdefault(t, s); last_touch[t] = s
def snapw(t):
    return f'ds_write_b128 v1, {vr(MD(t))} offset:{t*1024}' if t < 7 else f'ds_write_b128 v11, {vr(MD(t))} offset:{(t-7)*1024}'
QS = opt['QS']
ext = [[] for _ in range(324)]
for ph in range(3):
    for k in range(43):
        ext[(ph*108 + iss[k]) % 324].append(('rd', k, ph))
used = [len(x) for x in ext]
lastw = 0
for t in range(9):
    pos = max(216 + last_touch[t] + 8, lastw + opt['wsp'])
    while used[pos % 324]: pos += 1
    lastw = pos
    used[pos % 324] += 1
    assert pos >= 216 + BAR and pos < 324 + QS - 2
    ext[pos % 324].append(('wr', t, 0))
e('s_waitcnt vmcnt(0)')
stamp(4)
e('s_barrier')
stamp(5)
if opt['dbgst']: e('s_memtime s[90:91]')
for k in range(npre): e(rd(k, 0))
e('s_mov_b32 s39, 7')
e('s_waitcnt lgkmcnt(0)')
out.append('.p2align 6')
lab('L_loop')
seq = 0; rseq = {}; covered = -1; wseq = -1
for it in range(2):
    emit = e if it == 1 else (lambda s: None)
    for ph in range(3):
        if it == 1: c(f'======== phase {ph}')
        for s, (t, wk, xk) in enumerate(mf):
            if s == BAR:
                emit('s_waitcnt lgkmcnt(0)')
                emit('s_barrier')
                covered = seq - 1
            if ph == 0 and s == QS:
                if wseq > covered:
                    emit(f's_waitcnt lgkmcnt({min(15, seq-1-wseq)})')
                    covered = max(covered, seq - 1 - min(15, seq-1-wseq))
                emit('s_barrier')
            need = max(rseq.get((ph, fidx[wk]), -1), rseq.get((ph, fidx[xk]), -1))
            if need > covered:
                allow = min(seq - 1 - need, 4)
                emit(f's_waitcnt lgkmcnt({allow})')
                covered = seq - 1 - allow
            cin = vr(MD(t)) if (ph == 0 and first_touch[t] == s) else vr(M(t))
            dst = vr(MD(t)) if (ph == 2 and last_touch[t] == s) else vr(M(t))
            emit(f'v_mfma_f32_16x16x32_bf16 {dst}, {FR(fidx[wk])}, {FR(fidx[xk])}, {cin}')
            for x in ext[ph*108+s]:
                if x[0] == 'rd':
                    emit(rd(x[1], x[2])); rseq[(x[2], x[1])] = seq; seq += 1
                else:
                    emit(snapw(x[1])); wseq = seq; seq += 1
            if ph == 2 and s == 104: emit('s_sub_u32 s39, s39, 1')
            if ph == 2 and s == 105: emit('s_cmp_lg_u32 s39, 0')
e('s_cbranch_scc1 L_loop')
stamp(6)
if opt['dbgst']: e('s_memtime s[94:95]')
c('---- compute-wave epilogue: gate y3 = MD')
e('s_waitcnt lgkmcnt(0)')
def gate_consts():
    e(f's_mov_b32 s46, {fh(-0.6931471805599453)}')
    e(f's_mov_b32 s42, {fh(2*LOG2E*2**-12)}')
    e('s_mov_b32 s43, 0x41f00000')
def gate(a, r, dst, sp):
    L = []
    L.append(f'v_min_f32 v{r}, s43, v{a}')
    L.append(f'v_min_f32 v{r+1}, s43, v{a+1}')
    L.append(f'v_exp_f32 v{a+2}, v{a+2}')
    L.append(f'v_exp_f32 v{a+3}, v{a+3}')
    L.append(f'v_exp_f32 v{r}, v{r}')
    L.append(f'v_exp_f32 v{r+1}, v{r+1}')
    if opt['smallfix']:
        L.append(f'v_cmp_gt_f32 s[{sp}:{sp+1}], s42, abs(v{a})')
        L.append(f'v_cmp_gt_f32 s[{sp+2}:{sp+3}], s42, abs(v{a+1})')
    L.append(f'v_add_f32 v{r+2}, 1.0, v{r}')
    L.append(f'v_add_f32 v{r+3}, 1.0, v{r+1}')
    if opt['smallfix']:
        L.append(f'v_mul_f32 v{a}, s46, v{a}')
        L.append(f'v_mul_f32 v{a+1}, s46, v{a+1}')
    L.append(f'v_fmac_f32 v{r+2}, v{r+2}, v{a+2}')
    L.append(f'v_fmac_f32 v{r+3}, v{r+3}, v{a+3}')
    L.append(f'v_sub_f32 v{r}, 1.0, v{r}')
    L.append(f'v_sub_f32 v{r+1}, 1.0, v{r+1}')
    L.append(f'v_rcp_f32 v{r+2}, v{r+2}')
    L.append(f'v_rcp_f32 v{r+3}, v{r+3}')
    if opt['smallfix']:
        L.append(f'v_cndmask_b32 v{r}, v{r}, v{a}, s[{sp}:{sp+1}]')
        L.append(f'v_cndmask_b32 v{r+1}, v{r+1}, v{a+1}, s[{sp+2}:{sp+3}]')
    L.append(f'v_mul_f32 v{r}, v{r}, v{r+2}')
    L.append(f'v_mul_f32 v{r+1}, v{r+1}, v{r+3}')
    L.append(f'v_cvt_pk_bf16_f32 v{dst}, v{r}, v{r+1}')
    return L
gate_consts()
e('v_and_b32 v100, 63, v0')
e('v_lshlrev_b32 v101, 4, v100')
e(f's_add_u32 s63, s62, {7*18432}')
for t in range(9):
    for x in gate(MD(t), 104 + 4*(t % 2), 112 + t, 48): e(x)
    if t in (3, 7):
        e(f'buffer_store_dwordx4 v[{112+t-3}:{112+t}], v101, s[20:23], s63 offen sc1')
        e('s_add_u32 s63, s63, 18432')
e(f's_add_u32 s63, s62, {6*18432}')
e('buffer_store_dword v120, v101, s[20:23], s63 offen offset:12 sc1')
e('s_branch L_fin')
def hbar():
    if opt['bst']:
        e('s_memtime s[64:65]')
        e('s_barrier')
        e('s_memtime s[66:67]')
        e('s_waitcnt lgkmcnt(0)')
        e('s_mov_b32 m0, s68'); e('s_nop 0')
        e('v_writelane_b32 v14, s64, m0')
        e('v_writelane_b32 v15, s66, m0')
        e('s_add_u32 s68, s68, 1')
    else: e('s_barrier')
lab('L_helper')
if opt['bst']: e('s_mov_b32 s68, 0')
def Y(i, t): return 40 + 4*(i*9+t)
def SN(t): return 148 + 4*t
e('v_mov_b32 v3, v101')
e('v_add_u32 v13, 4096, v101')
e(f's_add_u32 s38, s34, {2*SLOT}')
e('v_add_u32 v4, s38, v101')
e(f's_add_u32 s38, s35, {2*SLOT+28672}')
e('v_add_u32 v5, s38, v101')
e('s_cmp_eq_u32 s26, 4')
e('s_cbranch_scc1 L_h4')
e(f'v_mov_b32 v36, {OOB}')
e(f'v_mov_b32 v12, {OOB}')
e('s_branch L_h5')
lab('L_h4')
e('s_mov_b32 s31, 0')
gettag('h')
lab('L_h5')
e('v_mov_b32 v38, s92')
e('v_mov_b32 v39, s93')
def dma_list(slot):
    L = []
    for k in range(7):
        pre = [f's_add_u32 m0, s34, {slot*SLOT + (k//4)*4096}', 's_nop 0']
        L.append(pre + [f'buffer_load_dwordx4 v{3 if k < 4 else 13}, s[20:23], s36 offen offset:{(k%4)*1024} sc1 lds'] + ([f's_add_u32 s36, s36, {XS}'] if k == 6 else []))
    for k in range(6):
        pre = [f's_add_u32 m0, s35, {slot*SLOT + 28672 + (k//4)*4096}', 's_nop 0']
        L.append(pre + [f'buffer_load_dwordx4 v{3 if k < 4 else 13}, s[20:23], s37 offen offset:{(k%4)*1024} sc1 lds'] + (['s_add_u32 s37, s37, 24576'] if k == 5 else []))
    return L
def pst(b, pm):
    return [f'buffer_store_dwordx4 {vr(PK(b,pm))}, v{PA(b)}, s[20:23], 0 offen sc1', f'v_add_u32 v{PA(b)}, s{96+b}, v{PA(b)}']
def weave(dl, sl):
    res = []; n = len(sl); m = len(dl)
    for i in range(m):
        res.append(dl[i])
        for k in range((i*n)//m, ((i+1)*n)//m): res.append(sl[k])
    return res
def mix(dl, vl):
    n = len(dl)
    for i, d in enumerate(dl):
        for x in d: e(x)
        for x in vl[(i*len(vl))//n:((i+1)*len(vl))//n]: e(x)
    if n == 0:
        for x in vl: e(x)
def nvm(dl, after):
    return len(dl) - 1 - after
def snapr():
    for t in range(9):
        e(f'ds_read_b128 {vr(SN(t))}, v4 offset:{t*1024}' if t < 7 else f'ds_read_b128 {vr(SN(t))}, v5 offset:{(t-7)*1024}')
    e('s_waitcnt lgkmcnt(0)')
FM = [f'v_fmac_f32 v{Y(i,t)+r}, s{40+i}, v{SN(t)+r}' for t in range(9) for i in range(3) for r in range(4)]
FM1 = [f'v_mul_f32 v{Y(i,t)+r}, s{40+i}, v{SN(t)+r}' for t in range(9) for i in range(3) for r in range(4)]
e(f's_add_u32 s36, s36, {XS}')
e('s_add_u32 s37, s37, 24576')
e('s_barrier')
mix(dma_list(1), [])
c('coefficient table: s40.. = 3 x 6, consumed from the front')
for m in range(6):
    for i in range(3): e(f's_mov_b32 s{40+3*m+i}, {fh(DCH[i][m])}')
hbar()
ND0 = opt['nd0']
def only4(name, fn):
    e('s_cmp_lg_u32 s26, 4')
    e(f's_cbranch_scc1 L_o4{name}')
    fn()
    lab(f'L_o4{name}')
def hflag(off):
    e('s_lshl_b32 s30, s2, 3')
    e(f's_add_u32 s30, s30, {FLAG_OFF+off}')
    e(f's_mov_b64 exec, {(1<<REP)-1}')
    e('buffer_store_dwordx2 v[38:39], v12, s[20:23], s30 offen sc1')
    e('s_mov_b64 exec, -1')
def hiter(name, fm, sa=(), sc_=(), flag0=None, flag1=None, chk=None):
    if chk is not None: poll_issue(chk)
    for g_ in sa:
        for x in g_: e(x)
    hbar()
    if fm: snapr()
    D2 = dma_list(2)
    mix(D2[:ND0], [])
    e(f's_waitcnt vmcnt({ND0 + len(sa)})')
    if chk is not None:
        def f():
            poll_check()
            e(f's_cbranch_scc0 L_o4c{name}')
            poll(chk, name)
        only4('c'+name, f)
    hbar()
    if flag0 is not None: hflag(flag0)
    mix(D2[ND0:] + dma_list(0), fm[:40])
    e('s_waitcnt vmcnt(13)')
    hbar()
    if flag1 is not None: hflag(flag1)
    mix(list(sc_) + dma_list(1), fm[40:])
    if fm:
        for k in range(15): e(f's_mov_b32 s{40+k}, s{43+k}')
    e(f's_waitcnt vmcnt({13 + len(sc_) + (1 if flag1 is not None else 0)})')
    hbar()
ST = [pst(b, pm) for pm in range(5) for b in range(4)]
hiter('0', [], sa=ST[0:4], sc_=ST[4:8], flag1=1*FA)
hiter('1', FM1, sa=ST[8:12], sc_=ST[12:16], flag0=2*FA, chk=1*FA)
hiter('2', FM, sa=ST[16:20], flag0=3*FA, chk=2*FA)
hiter('3', FM, flag0=4*FA, chk=3*FA)
hiter('4', FM)
hiter('5', FM, chk=4*FA)
c('---- last product')
if opt['sw'] == 4: stamp(6)
hbar()
snapr()
F0 = opt['f0']
D2 = dma_list(2)
mix(D2[:ND0], FM[:F0])
e(f's_waitcnt vmcnt({ND0})')
hbar()
WD = []
for k in range(12):
    WD.append([f's_add_u32 m0, s61, {(k//4)*4096}', 's_nop 0', f'buffer_load_dwordx4 v3, s[20:23], s60 offen offset:{(k%4)*1024} sc1 lds'] + (['s_add_u32 s60, s60, 4096'] if k % 4 == 3 else []))
e('s_mul_i32 s61, s24, 12288')
e(f's_add_u32 s60, s61, {WO_OFF}')
mix(D2[ND0:] + WD, FM[F0:])
gate_consts()
e('s_mov_b32 s63, s62')
nst = [0]
def hgate(n0, n1):
    for n in range(n0, n1):
        t, i = divmod(n, 3)
        for x in gate(Y(i, t), 184 + 4*(n % 2), 200 + n, 48): e(x)
        if n % 4 == 3:
            e(f'buffer_store_dwordx4 v[{200+n-3}:{200+n}], v3, s[20:23], s63 offen sc1')
            e('s_add_u32 s63, s63, 18432'); nst[0] += 1
        if n == 26:
            e('buffer_store_dwordx3 v[224:226], v3, s[20:23], s63 offen sc1'); nst[0] += 1
g1 = opt['g1']; g2 = min(27, g1 + opt['g2'])
hgate(0, g1)
e(f's_waitcnt vmcnt({nst[0]+12})')
hbar()
hgate(g1, g2)
hbar()
hgate(g2, 27)
if opt['bst']:
    e('s_memtime s[64:65]')
    e('s_waitcnt lgkmcnt(0)')
    e('s_mov_b32 m0, s68'); e('s_nop 0')
    e('v_writelane_b32 v14, s64, m0')
    e('v_writelane_b32 v15, s64, m0')
    e('s_cmp_lg_u32 s26, 4')
    e('s_cbranch_scc1 L_fin')
    e('s_mov_b32 s22, 0x10000000')
    e('s_lshl_b32 s33, s2, 9')
    e(f's_add_u32 s33, s33, {STAMP_OFF + (128<<10)*4}')
    e('v_lshrrev_b32 v1, 1, v3')
    e('buffer_store_dwordx2 v[14:15], v1, s[20:23], s33 offen')
lab('L_fin')
e('s_setprio 0')
e('s_load_dwordx2 s[6:7], s[0:1], 24')
if not opt['es']: stamp(7)
e('v_and_b32 v2, 63, v0')
e('v_lshlrev_b32 v3, 4, v2')
e('v_mov_b32 v37, 0')
e('s_lshl_b32 s40, s27, 1')
e('s_lshr_b32 s41, s26, 2')
e('s_add_u32 s40, s40, s41')
e('s_mul_i32 s30, s40, 7282')
e('s_lshr_b32 s30, s30, 16')
e('s_mul_i32 s31, s30, 9')
e('s_sub_u32 s31, s40, s31')
if opt['gmap']:
    e('s_lshr_b32 s32, s30, 2')
    e('s_bfe_u32 s38, s30, 0x10001')
    e('s_and_b32 s33, s30, 1')
    e('s_cmp_ge_u32 s32, 7')
    e('s_cselect_b32 s37, 4608000, 0')
    e('s_cselect_b32 s36, 7, 0')
    e('s_sub_u32 s32, s32, s36')
    e('s_lshl_b32 s32, s32, 1')
    e('s_add_u32 s33, s33, s32')
else:
    e('s_mul_i32 s32, s30, 4682')
    e('s_lshr_b32 s32, s32, 16')
    e('s_mul_i32 s33, s32, 14')
    e('s_sub_u32 s33, s30, s33')
    e('s_lshr_b32 s37, s32, 1')
    e('s_and_b32 s38, s32, 1')
    e('s_mul_i32 s37, s37, 4608000')
e('s_waitcnt lgkmcnt(0)')
e('s_add_u32 s6, s6, s37'); e('s_addc_u32 s7, s7, 0')
srd(16, 6, 7, 4608000)
e('s_mul_i32 s39, s33, 1152')
e('s_add_u32 s39, s39, s38')
e('s_add_u32 s39, s39, 6')
e('s_lshl_b32 s45, s31, 2')
e('s_add_u32 s45, s45, s24')
e('s_mul_i32 s42, s45, 171')
e('s_lshr_b32 s42, s42, 9')
e('s_mul_i32 s43, s42, 3')
e('s_sub_u32 s43, s45, s43')
e('s_sub_u32 s44, s45, 28')
e('s_cmp_ge_u32 s45, 27')
e('s_cselect_b32 s42, s44, s42')
e('s_cselect_b32 s43, 3, s43')
e('s_cmp_eq_u32 s45, 27')
e('s_cselect_b32 s42, 8, s42')
e('s_lshl_b32 s42, s42, 3')
e('s_lshl_b32 s43, s43, 1')
e('s_add_u32 s42, s42, s39')
e('s_sub_u32 s42, s42, s43')
e('s_mul_i32 s45, s42, 288')
e('v_lshrrev_b32 v7, 4, v2')
e(f'v_mul_u32_u24 v7, {4*72*288}, v7')
e('v_add_u32 v7, s45, v7')
e('v_and_b32 v8, 15, v2')
e('v_lshl_add_u32 v11, v8, 1, v7')
e('v_lshl_add_u32 v10, v8, 4, v7')
e('s_mul_i32 s46, s27, 36864')
e('s_lshl_b32 s47, s26, 10')
e('s_add_u32 s46, s46, s47')
e(f's_add_u32 s46, s46, {Z_OFF}')
e('s_mul_i32 s48, s41, 18432')
e('s_lshl_b32 s49, s24, 2')
e('s_add_u32 s48, s48, s49')
e(f's_add_u32 s48, s48, {SLOT}')
e('v_add_u32 v4, s48, v3')
e('v_mov_b32 v34, 0')
e('v_mov_b32 v35, 0')
e('s_waitcnt vmcnt(0)')
e('s_barrier')
if not opt['es']: stamp(8)
def bf(f): return vr(76 + 4*f)
def preB():
    for f in range(45):
        e(f'ds_read_b128 {bf(f)}, v3 offset:{f*1024}')
        if f % 12 == 11: e('s_waitcnt lgkmcnt(4)')
e('s_cmp_lg_u32 s26, 4')
e('s_cbranch_scc1 L_e1b')
e('s_lshl_b32 s50, s28, 7')
e(f's_add_u32 s50, s50, {FLAG_OFF+ZFL}')
setflag(['s_lshl_b32 s30, s29, 3', 's_add_u32 s30, s30, s50'])
lab('L_e1b')
preB()
e('s_cmp_lg_u32 s26, 4')
e('s_cbranch_scc1 L_e2')
e('v_min_u32 v5, 8, v2')
e('v_lshlrev_b32 v5, 3, v5')
e('s_mov_b32 s51, 0')
lab('L_zpoll')
e('buffer_load_dwordx2 v[38:39], v5, s[20:23], s50 offen sc1')
e('s_add_u32 s51, s51, 1')
e('s_cmp_gt_u32 s51, 20000')
e('s_cbranch_scc1 L_e2')
e('s_waitcnt vmcnt(0)')
e('v_cmp_ne_u64 vcc, s[92:93], v[38:39]')
e('s_cbranch_vccz L_e2')
e('s_sleep 1')
e('s_branch L_zpoll')
lab('L_e2')
e('s_barrier')
stamp(9)
for i in range(5):
    if i == 4:
        e('s_cmp_ge_u32 s26, 4')
        e('s_cbranch_scc1 L_e3')
    e(f's_add_u32 m0, s47, {SLOT + i*8192}')
    e('s_nop 0')
    e('buffer_load_dwordx4 v3, s[20:23], s46 offen sc1 lds')
    if i < 4: e('s_add_u32 s46, s46, 8192')
lab('L_e3')
e('s_waitcnt vmcnt(0) lgkmcnt(0)')
e('s_barrier')
stamp(10)
if opt['stamps']: e('s_waitcnt lgkmcnt(0)')
for J in range(14): e(f'ds_read_b32 v{16+J}, v4 offset:{J*1024}')
for ks in range(5):
    if ks == 0: e('s_waitcnt lgkmcnt(10)')
    if ks == 1: e('s_waitcnt lgkmcnt(10)')
    if ks == 2: e('s_waitcnt lgkmcnt(6)')
    if ks == 3: e('s_waitcnt lgkmcnt(2)')
    if ks == 4: e('s_waitcnt lgkmcnt(0)')
    for T in range(9):
        r = 40 + 4*T
        cin = '0' if ks == 0 else vr(r)
        e(f'v_mfma_f32_16x16x32_bf16 {vr(r)}, v[{16+4*ks}:{16+4*ks+3}], {bf(T*5+ks)}, {cin}')
        if ks == 0 and T < 4: e(f'ds_read_b32 v{30+T}, v4 offset:{(14+T)*1024}')
e('s_nop 7')
e('s_nop 1')
if opt['trip']:
    e('s_memrealtime s[66:67]')
    e('s_waitcnt lgkmcnt(0)')
    e('s_sub_u32 s66, s66, s64')
    e(f's_sub_u32 s66, s66, {opt["trip"]}')
    e(f's_cmp_lt_u32 s66, {opt["tlo"] - opt["trip"]}')
    e('s_cselect_b32 s66, 1.0, 0')
    e('s_cmp_eq_u32 s2, 100')
    e('s_cselect_b32 s66, s66, 0')
    e('v_add_f32 v40, s66, v40')
for r in range(4):
    d = 140 + 6*r
    A = lambda T: 40 + 4*T + r
    for h in range(4): e(f'v_cvt_pk_bf16_f32 v{d+h}, v{A(2*h)}, v{A(2*h+1)}')
    e(f'v_cvt_pk_bf16_f32 v{d+4}, v{A(8)}, v{A(8)}')
    e(f'buffer_store_dwordx4 v[{d}:{d+3}], v10, s[16:19], 0 offen{OF[opt["of"]]}')
    e(f'buffer_store_short v{d+4}, v11, s[16:19], 0 offen offset:256{OF[opt["of2"]]}')
    if r < 3:
        e(f'v_add_u32 v10, {72*288}, v10')
        e(f'v_add_u32 v11, {72*288}, v11')
if opt['stamps']:
    e('s_waitcnt vmcnt(0)')
    stamp(11)
    e('s_waitcnt lgkmcnt(0)')
    e(f's_cmp_lg_u32 s26, {opt["sw"]}')
    e('s_cbranch_scc1 L_end')
    if opt['dbgst']:
        e(f's_cmp_lg_u32 s2, {opt["dbgst"]}')
        e('s_cbranch_scc1 L_end')
        e('s_load_dwordx2 s[56:57], s[0:1], 32')
        e('s_waitcnt lgkmcnt(0)')
        srd(16, 56, 57, 256)
        e('v_mov_b32 v1, 0')
        for i in range(1, 12):
            e(f's_sub_u32 s33, s{64+2*i}, s64')
            e('v_mov_b32 v4, s33')
            e(f'buffer_store_dword v4, v1, s[16:19], 0 offen offset:{4+4*i}')
        e('s_sub_u32 s33, s94, s90')
        e('v_mov_b32 v4, s33')
        e('buffer_store_dword v4, v1, s[16:19], 0 offen offset:56')
        e('s_branch L_end')
    e('s_mov_b32 s22, 0x10000000')
    e('s_lshl_b32 s33, s2, 7')
    e(f's_add_u32 s33, s33, {STAMP_OFF}')
    e('v_mov_b32 v1, s33')
    for i in range(6):
        for k in range(4): e(f'v_mov_b32 v{4+k}, s{64+4*i+k}')
        e(f'buffer_store_dwordx4 v[4:7], v1, s[20:23], 0 offen offset:{16*i}')
        e('s_nop 1')
lab('L_end')
e('s_endpgm')
tail = f"""
.section .rodata,"a"
.p2align 6
.amdhsa_kernel {NAME}_kernel
  .amdhsa_next_free_vgpr 256
  .amdhsa_next_free_sgpr 100
  .amdhsa_accum_offset 256
  .amdhsa_group_segment_fixed_size 0
  .amdhsa_kernarg_size 48
  .amdhsa_user_sgpr_count 2
  .amdhsa_user_sgpr_kernarg_segment_ptr 1
  .amdhsa_system_sgpr_workgroup_id_x 1
.end_amdhsa_kernel
"""
open(sys.argv[1], 'w').write(hdr + '\n'.join(out) + '\n' + tail)
```

```python
import sys, struct
import numpy as np
from f44 import matrices, PTS
NAME = 'standalone__autoregressive_conv_wavenet__speech'
opt = dict(stamps=0, LA=24, smallfix=1, ldf=0, QS=34, prio=1, g1=5, g2=7, bst=0, nd0=7, wsp=5, f0=30, slp=1, cpf=3, sw=4, dly=0, pf=0, early=1, dbgst=0, rep=1, rstr=4352, pre=0, shr=1, agg=1, gslp=2, es=0, word=1, skx=0, skw=0, of=0, of2=0, gmap=1, trip=0, tlo=0, fast=0, sn32=0, lat=9, b1e=2, fslp=6)
for a in sys.argv[2:]:
    k, v = a.split('='); assert k in opt, k; opt[k] = int(v)
out = []
def e(s): out.append('    ' + s)
def lab(s): out.append(s + ':')
def c(s): out.append('    ; ' + s)
def fh(x): return '0x%08x' % struct.unpack('<I', struct.pack('<f', float(x)))[0]
AT, G, BT = matrices()
GS = G.copy()
for m in range(6): GS[m] *= PTS[m]**3
CH = np.zeros((3, 7))
for i in range(3):
    for m in range(6): CH[i][m] = PTS[m]**(i-3)
DCH = CH[:, :6] - CH[:, 1:7]
LOG2E = 1.4426950408889634
LDF = {0: '', 1: ' nt'}[opt['ldf']]
OF = {0:'', 1:' nt', 2:' sc1', 3:' sc0 sc1'}
PRF = {1: ' sc1', 2: '', 3: ' sc0 sc1'}.get(opt['pre'], '')
PF_ = {0: ' sc1', 1: ' sc0 sc1', 2: ' sc1 nt', 3: ' sc0 sc1 nt'}[opt['pf']]
XROWS = 2032
XS = XROWS*96
U_BYTES = 4*21*XS
WT_OFF = U_BYTES
WT_BYTES = 9*21*24576
Z_OFF = WT_OFF + WT_BYTES
Z_BYTES = 28*2*9*18*1024
FLAG_OFF = Z_OFF + Z_BYTES
REP = opt['rep']; RSTR = opt['rstr']; FA = REP*RSTR
ZFL = 5*FA
GOF = ZFL + 4096
WO_OFF = (FLAG_OFF + GOF + 8*4352 + 1023)//1024*1024
WS_USED = WO_OFF + 45*1024
STAMP_OFF = 268435456 - (1 << 20)
SLOT = 53248
XL = 2*SLOT + 8192
WL = SLOT
LDS_MAIN = 3*SLOT
OOB = 0x7f000000
hdr = f"""; Kernarg layout for this problem (48 bytes, ptrs only, base s[0:1]):
; @launch grid=(252,1,1) block=(512,1,1) lds={LDS_MAIN}
.amdgcn_target "amdgcn-amd-amdhsa--gfx950"
.text
.globl {NAME}_kernel
.p2align 8
.type {NAME}_kernel,@function
{NAME}_kernel:
"""
def srd(d, lo, hi, nbytes):
    e(f's_mov_b32 s{d}, s{lo}')
    e(f's_and_b32 s{d+1}, s{hi}, 0xffff')
    e(f's_mov_b32 s{d+2}, {nbytes}')
    e(f's_mov_b32 s{d+3}, 0x00020000')
def vp(r): return f'v[{r}:{r+1}]'
def vr(r): return f'v[{r}:{r+3}]'
def pkfma(d, sc, a, b, nega=False):
    neg = ' neg_lo:[0,1,0] neg_hi:[0,1,0]' if nega else ''
    e(f'v_pk_fma_f32 {vp(d)}, s[{sc}:{sc+1}], {vp(a)}, {vp(b)}{neg}')
def pkadd(d, a, b, negb=False):
    neg = ' neg_lo:[0,1] neg_hi:[0,1]' if negb else ''
    e(f'v_pk_add_f32 {vp(d)}, {vp(a)}, {vp(b)}{neg}')
def sconst2(s, x):
    e(f's_mov_b32 s{s}, {fh(x)}'); e(f's_mov_b32 s{s+1}, {fh(x)}')
def stamp(i):
    if opt['stamps']: e(f's_memrealtime s[{64+2*i}:{65+2*i}]')
def PK(b, pm):
    n = pm*4 + b
    return 184 + 4*n if n < 18 else 16 + 4*(n-18)
PA = lambda b: 32 + b
PT = 24

def gettag(name):
    lab(f'L_tag{name}')
    e('buffer_load_dwordx2 v[24:25], v37, s[16:19], 0 offen sc1')
    e('s_add_u32 s31, s31, 1')
    e('s_cmp_gt_u32 s31, 30000')
    e(f's_cbranch_scc1 L_tagd{name}')
    e('s_waitcnt vmcnt(0)')
    e('v_readfirstlane_b32 s92, v24')
    e('v_readfirstlane_b32 s93, v25')
    e('s_nop 3')
    e('s_cmp_eq_u32 s92, 0')
    e(f's_cbranch_scc1 L_tag{name}')
    lab(f'L_tagd{name}')
def setflag(pre):
    for x in pre: e(x)
    e('v_mov_b32 v38, s92')
    e('v_mov_b32 v39, s93')
    e('s_mov_b64 exec, 1')
    e('buffer_store_dwordx2 v[38:39], v37, s[20:23], s30 offen sc1')
    e('s_mov_b64 exec, -1')
def poll_issue(off):
    e(f's_mov_b32 s30, {FLAG_OFF+off}')
    e(f'buffer_load_dwordx4 {vr(PT)}, v36, s[20:23], s30 offen{PF_}')
    e(f'buffer_load_dwordx4 {vr(PT+4)}, v36, s[20:23], s30 offen offset:16{PF_}')
def poll_check():
    e(f'v_cmp_ne_u64 vcc, s[92:93], {vp(PT)}')
    for k in range(1, 4):
        e(f'v_cmp_ne_u64 s[88:89], s[92:93], {vp(PT+2*k)}')
        e('s_or_b64 vcc, vcc, s[88:89]')
def poll(off, name, slp=None):
    e('s_mov_b32 s31, 0')
    lab(f'L_poll{name}')
    poll_issue(off)
    e('s_add_u32 s31, s31, 1')
    e('s_cmp_gt_u32 s31, 20000')
    e(f's_cbranch_scc1 L_pdone{name}')
    e('s_waitcnt vmcnt(0)')
    poll_check()
    e(f's_cbranch_scc0 L_pdone{name}')
    if opt['shr']: e('s_mov_b64 exec, vcc')
    e(f's_sleep {opt["slp"] if slp is None else slp}')
    e(f's_branch L_poll{name}')
    lab(f'L_pdone{name}')
    if opt['shr']: e('s_mov_b64 exec, -1')

e('s_cmp_ge_u32 s2, 252')
e('s_cbranch_scc1 L_end')
if opt['stamps']:
    for i in range(24): e(f's_mov_b32 s{64+i}, 0')
stamp(0)
if opt['trip']: e('s_memrealtime s[64:65]')
e('s_load_dwordx4 s[4:7], s[0:1], 0')
e('s_load_dwordx2 s[8:9], s[0:1], 16')
e('s_load_dwordx4 s[56:59], s[0:1], 32')
e('v_lshrrev_b32 v1, 6, v0')
e('v_and_b32 v2, 63, v0')
e('v_readfirstlane_b32 s26, v1')
if opt['cpf']:
    c('pull the kernel code towards L2 first (1 KB per participating wave)')
    e('s_getpc_b64 s[44:45]')
    lab('L_pc')
    if opt['cpf'] == 1:
        e('s_lshl_b32 s42, s2, 10')
        e('s_and_b32 s42, s42, 0x6000')
        e('v_lshlrev_b32 v102, 4, v0')
    elif opt['cpf'] == 2:
        e('s_lshl_b32 s42, s2, 7')
        e('s_and_b32 s42, s42, 0x7c00')
        e('v_lshlrev_b32 v102, 4, v2')
        e('v_lshl_add_u32 v102, v1, 20, v102')
    else:
        e('s_lshl_b32 s42, s2, 8')
        e('s_and_b32 s42, s42, 0x7800')
        e('v_lshlrev_b32 v102, 4, v0')
        e('v_lshrrev_b32 v103, 1, v1')
        e('v_lshl_add_u32 v102, v103, 20, v102')
    e('s_and_b32 s45, s45, 0xffff')
    e('s_mov_b32 s46, L_end-L_pc')
    e('s_mov_b32 s47, 0x00020000')
    e(f'buffer_load_dwordx4 {vr(180)}, v102, s[44:47], s42 offen')
else: e('s_nop 1')
def common():
    srd(20, 58, 59, WS_USED)
    srd(16, 56, 57, 256)
    e('s_mov_b32 s33, 0xffff0000')
    e('v_mov_b32 v37, 0')
    for b in range(4): e(f'v_mov_b32 v{PA(b)}, {OOB}')
    for b in range(4): e(f's_mov_b32 s{96+b}, {3*XS}')
    e('s_mov_b32 s31, 0')
    e('s_mov_b32 s92, 0')
    e('s_mov_b32 s93, 0')
    e('s_cmp_ge_u32 s2, 125')
    e(f's_cselect_b32 s50, {2*21*XS - 125*1536}, 0')
    e('s_mul_i32 s51, s2, 1536')
    e('s_add_u32 s50, s50, 768')
    e('s_add_u32 s50, s50, s51')
    e(f's_add_u32 s51, s50, {3*XS}')
    e(f's_mov_b32 s35, {XL+64}')
e('s_lshr_b32 s28, s26, 1')
e('s_cmp_eq_u32 s28, 2')
e('s_cbranch_scc1 Lp_w')
def xaddr(su, va, vd):
    e(f's_lshl_b32 s28, s{su}, 6')
    e('v_add_u32 v3, s28, v2')
    e('v_mul_u32_u24 v4, 683, v3')
    e('v_lshrrev_b32 v4, 16, v4')
    e('v_mul_u32_u24 v5, 96, v4')
    e('v_sub_u32 v3, v3, v5')
    e(f'v_mul_u32_u24 v{va}, 43, v3')
    e(f'v_lshrrev_b32 v{va}, 8, v{va}')
    e(f'v_mul_u32_u24 v{va}, {2304-96}, v{va}')
    e(f'v_lshl_add_u32 v{va}, v3, 4, v{va}')
    e(f'v_add3_u32 v{va}, v{va}, v5, s35')
    e('v_cmp_le_u32 vcc, 3, v4')
    e(f'v_mul_u32_u24 v{vd}, {XS}, v4')
    e(f'v_mov_b32 v5, {18*XS}')
    e(f'v_lshl_add_u32 v{vd}, v3, 4, v{vd}')
    e('v_cndmask_b32 v5, 0, v5, vcc')
    e(f'v_add_u32 v{vd}, v{vd}, v5')
def xpair(va, vd):
    for s in range(6): e(f'ds_read_b128 {vr(120+4*s)}, v{va} offset:{(12-2*s)*288}')
    for dw in range(4):
        for s in range(6):
            if dw == 0: e(f's_waitcnt lgkmcnt({5-s})')
            e(f'v_lshlrev_b32 v{148+2*s}, 16, v{120+4*s+dw}')
            e(f'v_and_b32 v{149+2*s}, s33, v{120+4*s+dw}')
        D = lambda s: 148+2*s
        pkfma(162, 46, D(2), D(4))
        pkfma(164, 46, D(3), D(5))
        pkfma(162, 44, D(0), 162)
        pkfma(164, 44, D(1), 164)
        pkfma(166, 48, 162, 164)
        pkfma(168, 48, 162, 164, nega=True)
        e(f'v_cvt_pk_bf16_f32 v{172+dw}, v166, v167')
        e(f'v_cvt_pk_bf16_f32 v{176+dw}, v168, v169')
    e(f'buffer_store_dwordx4 v[172:175], v{vd}, s[20:23], s50 offen sc1')
    e(f'buffer_store_dwordx4 v[176:179], v{vd}, s[20:23], s51 offen sc1')
def xrest(va, b):
    for s in range(7): e(f'ds_read_b128 {vr(120+4*s)}, v{va} offset:{(12-2*s)*288}')
    for dw in range(4):
        for s in range(7):
            if dw == 0: e(f's_waitcnt lgkmcnt({6-s})')
            e(f'v_lshlrev_b32 v{148+2*s}, 16, v{120+4*s+dw}')
            e(f'v_and_b32 v{149+2*s}, s33, v{120+4*s+dw}')
        D = lambda s: 148+2*s
        for t in range(2):
            q0, q1, aa = 36+6*t, 38+6*t, 40+6*t
            pkfma(162, q1, D(2), D(4))
            pkfma(164, q1, D(3), D(5))
            pkfma(162, q0, D(0), 162)
            pkfma(164, q0, D(1), 164)
            pkfma(166, aa, 162, 164)
            pkfma(168, aa, 162, 164, nega=True)
            e(f'v_cvt_pk_bf16_f32 v{PK(b,2*t)+dw}, v166, v167')
            e(f'v_cvt_pk_bf16_f32 v{PK(b,2*t+1)+dw}, v168, v169')
        pkfma(162, 54, D(4), D(6))
        pkfma(162, 52, D(2), 162)
        pkfma(162, 48, D(0), 162)
        e(f'v_cvt_pk_bf16_f32 v{PK(b,4)+dw}, v162, v163')
for t in range(3):
    a = PTS[2*t]; q0 = BT[2*t][1]; q1 = BT[2*t][3]
    assert abs(BT[2*t][0] - a*q0) < 1e-12 and abs(BT[2*t][2] - a*q1) < 1e-12 and abs(BT[2*t][4]-a) < 1e-12
e('s_sub_u32 s27, s26, 2')
e('s_cmp_lt_u32 s26, 4')
e('s_cselect_b32 s27, s26, s27')
e('s_cmp_ge_u32 s2, 250')
e('s_cbranch_scc1 Lp_zero')
e('s_cmp_ge_u32 s2, 125')
e('s_cselect_b32 s24, 4608000, 0')
e('s_mul_i32 s28, s2, 36864')
e('s_sub_u32 s28, s28, s24')
e('s_sub_u32 s28, s28, 1792')
e('s_lshl_b32 s29, s27, 10')
e('s_add_u32 s28, s28, s29')
e('v_lshlrev_b32 v6, 4, v2')
e('v_add_u32 v6, s28, v6')
e(f's_mov_b32 s14, {0 if opt["skx"] else 4608000}')
e('s_mov_b32 s15, 0x00020000')
e(f's_add_u32 m0, s29, {XL}')
e('s_waitcnt lgkmcnt(0)')
e('s_add_u32 s12, s4, s24'); e('s_addc_u32 s13, s5, 0')
e('s_and_b32 s13, s13, 0xffff')
for i in range(7):
    if i == 6:
        e('s_cmp_ge_u32 s27, 2')
        e('s_cbranch_scc1 Lp_xl')
    e(f'buffer_load_dwordx4 v6, s[12:15], 0 offen{LDF} lds')
    if i < 6:
        e(f's_add_u32 m0, s29, {XL + (i+1)*6144}')
        e('v_add_u32 v6, 6144, v6')
lab('Lp_xl')
common()
e('s_add_u32 s28, s2, s26')
e('s_cmp_lg_u32 s28, 0')
e('s_cbranch_scc1 Lp_x0')
c('WG 0 wave 0 publishes the launch tag in d_debug')
e('s_memrealtime s[92:93]')
e('s_waitcnt lgkmcnt(0)')
e('s_or_b32 s92, s92, 1')
e('v_mov_b32 v38, s92')
e('v_mov_b32 v39, s93')
e('s_mov_b64 exec, 1')
e('buffer_store_dwordx2 v[38:39], v37, s[16:19], 0 offen sc1')
e('s_mov_b64 exec, -1')
lab('Lp_x0')
c('pass-1 units: wave0:8 wave1:4,5 wave2:0,1 wave3:2,3 wave6:6 wave7:7')
e('s_lshl_b32 s28, s26, 2')
e('s_lshr_b32 s30, 0x76002048, s28')
e('s_and_b32 s30, s30, 15')
xaddr(30, 6, 7)
e('s_add_u32 s30, s30, 1')
xaddr(30, 14, 15)
sconst2(44, BT[0][1]); sconst2(46, BT[0][3]); sconst2(48, PTS[0])
stamp(7)
e('s_waitcnt vmcnt(0)')
stamp(8)
e('s_barrier')
stamp(1)
e('s_cmp_lg_u32 s26, 0')
e('s_cbranch_scc1 Lp_x1')
e('buffer_load_dwordx2 v[24:25], v37, s[16:19], 0 offen sc1')
lab('Lp_x1')
xpair(6, 7)
e('s_bitcmp1_b32 0x0e, s26')
e('s_cbranch_scc0 Lp_x2')
xpair(14, 15)
lab('Lp_x2')
e('s_cmp_ge_u32 s26, 4')
e('s_cbranch_scc1 Lp_h67')
lab('Lp_s2')
e(f'v_mul_u32_u24 v9, {RSTR}, v2')
e('s_lshl_b32 s30, s2, 3')
e(f's_add_u32 s30, s30, {FLAG_OFF}')
e('s_cmp_lg_u32 s26, 0')
e('s_cbranch_scc1 Lp_s2b')
e('s_cmp_ge_u32 s2, 250')
e('s_cbranch_scc1 L_taga')
e('s_waitcnt vmcnt(2)')
e('v_readfirstlane_b32 s92, v24')
e('v_readfirstlane_b32 s93, v25')
e('s_nop 3')
e('s_cmp_lg_u32 s92, 0')
e('s_cbranch_scc1 L_tagda')
gettag('a')
e('v_mov_b32 v38, s92')
e('v_mov_b32 v39, s93')
lab('Lp_s2b')
e('s_waitcnt vmcnt(0)')
e('s_barrier')
e('s_cmp_lg_u32 s26, 0')
e('s_cbranch_scc1 L_pdone')
e(f's_mov_b64 exec, {(1<<REP)-1}')
e('buffer_store_dwordx2 v[38:39], v9, s[20:23], s30 offen sc1')
e('s_mov_b64 exec, -1')
stamp(2)
e('s_branch L_pdone')
def xcoef2():
    for t in (1, 2):
        sconst2(36+6*(t-1), BT[2*t][1]); sconst2(38+6*(t-1), BT[2*t][3]); sconst2(40+6*(t-1), PTS[2*t])
    sconst2(48, BT[6][0]); sconst2(52, BT[6][2]); sconst2(54, BT[6][4])
    e(f's_add_u32 s34, s50, {6*XS}')
lab('Lp_h67')
c('waves 6,7 pass 2: own unit (block 1), then units 2(w-6), 2(w-6)+1 (blocks 2,3)')
xcoef2()
e(f'v_add_u32 v{PA(1)}, s34, v7')
if opt['early']: xrest(6, 1)
e('s_waitcnt vmcnt(0)')
e('s_barrier')
if not opt['early']: xrest(6, 1)
e('s_sub_u32 s30, s26, 6')
e('s_lshl_b32 s30, s30, 1')
lab('Lp_x23')
xaddr(30, 6, 7)
e(f'v_add_u32 v{PA(2)}, s34, v7')
xrest(6, 2)
e('s_add_u32 s30, s30, 1')
lab('Lp_x3')
xaddr(30, 6, 7)
e(f'v_add_u32 v{PA(3)}, s34, v7')
xrest(6, 3)
e('s_branch L_pdone')
lab('Lp_zero')
c('WGs 250,251: zero the 8 leading rows of the 42 arrays of batch b')
e('s_waitcnt lgkmcnt(0)')
common()
e('s_sub_u32 s3, s2, 250')
e(f's_mul_i32 s30, s3, {2*21*XS}')
e('s_lshl_b32 s28, s27, 6')
e('v_add_u32 v3, s28, v2')
for k in range(4): e(f'v_mov_b32 v{16+k}, 0')
for i in range(6):
    e('v_mul_u32_u24 v4, 1366, v3')
    e('v_lshrrev_b32 v4, 16, v4')
    e('v_mul_u32_u24 v5, 48, v4')
    e('v_sub_u32 v5, v3, v5')
    e(f'v_mul_u32_u24 v4, {XS}, v4')
    e('v_lshl_add_u32 v4, v5, 4, v4')
    e('v_cmp_gt_u32 vcc, 2016, v3')
    e(f'v_mov_b32 v5, {OOB}')
    e('v_add_u32 v3, 384, v3')
    e('v_cndmask_b32 v4, v5, v4, vcc')
    e('buffer_store_dwordx4 v[16:19], v4, s[20:23], s30 offen sc1')
e('s_barrier')
e('s_branch Lp_s2')
lab('Lp_w')
e('s_and_b32 s27, s26, 1')
c('w unit: XCD x = id&7 owns a contiguous range of units; local i = id>>3 < 9 takes two')
e('s_and_b32 s28, s2, 7')
e('s_lshr_b32 s29, s2, 3')
e('s_mul_i32 s3, s28, 40')
e('s_min_u32 s30, s28, 4')
e('s_add_u32 s3, s3, s30')
e('s_add_u32 s3, s3, s29')
e('s_min_u32 s30, s29, 9')
e('s_add_u32 s3, s3, s30')
e('s_add_u32 s3, s3, s27')
e('s_mul_i32 s30, s27, s29')
e('s_cmp_ge_u32 s30, 9')
e('s_cbranch_scc1 Lp_wo')
def posdec(P, ko, pos, kk, o, tmp):
    e(f'v_mul_u32_u24 v{ko}, 58255, v{P}')
    e(f'v_lshrrev_b32 v{ko}, 22, v{ko}')
    e(f'v_mul_u32_u24 v{tmp}, 72, v{ko}')
    e(f'v_sub_u32 v{pos}, v{P}, v{tmp}')
    e(f'v_mul_u32_u24 v{kk}, 3641, v{ko}')
    e(f'v_lshrrev_b32 v{kk}, 16, v{kk}')
    e(f'v_mul_u32_u24 v{tmp}, 18, v{kk}')
    e(f'v_sub_u32 v{o}, v{ko}, v{tmp}')
G_ = lambda r, ch: 40+2*(8*r+ch)
e('s_lshl_b32 s28, s3, 5')
e('v_and_b32 v3, 31, v2')
e('v_add_u32 v4, s28, v3')
posdec(4, 5, 6, 7, 8, 9)
e(f'v_mul_u32_u24 v7, {4*82944}, v7')
e('v_mul_u32_u24 v8, 4608, v8')
e('v_lshrrev_b32 v9, 5, v2')
e('v_mul_u32_u24 v10, 288, v9')
e('v_add3_u32 v7, v7, v8, v10')
e('v_lshl_add_u32 v6, v6, 2, v7')
e('s_waitcnt lgkmcnt(0)')
srd(12, 6, 7, 0 if opt['skw'] else 31*144*288*2)
if opt['word']:
    for r in range(1, 4): e(f's_mov_b32 s{36+r}, {82944*r}')
    for ch in range(8):
        for r in range(4):
            e(f'buffer_load_dword v{G_(r,ch)+1}, v6, s[12:15], {"s%d" % (36+r) if r else 0} offen offset:{ch*576}{LDF}')
else:
  for r in range(4):
    for ch in range(8):
        e(f'buffer_load_dword v{G_(r,ch)+1}, v6, s[12:15], 0 offen offset:{ch*576}{LDF}')
    if r < 3: e('v_add_u32 v6, 82944, v6')
stamp(7)
common()
e('s_lshl_b32 s29, s27, 14')
e(f's_add_u32 s29, s29, {WL}')
e('v_lshlrev_b32 v10, 6, v3')
e('v_lshl_add_u32 v10, v9, 5, v10')
e('v_add_u32 v10, s29, v10')
e('v_lshlrev_b32 v11, 4, v2')
e('v_add_u32 v11, s29, v11')
for h in range(2):
    e('v_lshrrev_b32 v4, 2, v2')
    e(f'v_add3_u32 v4, v4, s28, {16*h}')
    posdec(4, 5, 6, 7, 8, 9)
    e('v_mul_u32_u24 v4, 43, v8')
    e('v_lshrrev_b32 v4, 8, v4')
    e('v_mul_u32_u24 v5, 6, v4')
    e('v_sub_u32 v5, v8, v5')
    e('v_lshrrev_b32 v8, 1, v7')
    e('v_add_u32 v8, 8, v8')
    e('v_and_b32 v9, 1, v7')
    e('v_lshl_add_u32 v9, v9, 1, v5')
    e('v_subrev_u32 v9, 4, v9')
    e('v_cmp_le_u32 vcc, 4, v5')
    e('v_mul_u32_u24 v4, 24576, v4')
    e('v_lshrrev_b32 v14, 3, v6')
    e('v_cndmask_b32 v8, v7, v8, vcc')
    e('v_cndmask_b32 v9, v5, v9, vcc')
    e(f'v_mul_u32_u24 v14, {21*24576}, v14')
    e('v_bfe_u32 v15, v6, 2, 1')
    e('v_mul_u32_u24 v15, 12288, v15')
    e(f'v_add3_u32 v{12+h}, v4, v14, v15')
    e(f'v_lshl_add_u32 v{12+h}, v8, 10, v{12+h}')
    e(f'v_lshl_add_u32 v{12+h}, v9, 8, v{12+h}')
    e('v_and_b32 v4, 3, v6')
    e(f'v_lshl_add_u32 v{12+h}, v4, 6, v{12+h}')
    e('v_and_b32 v4, 3, v2')
    e(f'v_lshl_add_u32 v{12+h}, v4, 4, v{12+h}')
def wcoef(t):
    for r in range(4):
        assert abs(GS[2*t+1][r] - (1 if r % 2 == 0 else -1)*GS[2*t][r]) < 1e-12
        e(f'v_mul_f32 v{160+2*r}, {fh(GS[2*t][r])}, v14')
        e(f'v_mov_b32 v{161+2*r}, v{160+2*r}')
e(f's_mov_b32 s34, {WT_OFF}')
e('v_cmp_le_u32 vcc, 32, v2')
e(f'v_mov_b32 v14, {fh(-2*LOG2E)}')
e(f'v_mov_b32 v15, {fh(-LOG2E)}')
e('v_cndmask_b32 v14, v14, v15, vcc')
e('v_mov_b32 v15, v14')
wcoef(0)
stamp(8)
e('s_barrier')
stamp(1)
e('s_waitcnt vmcnt(0)')
stamp(2)
for k in range(32):
    e(f'v_lshlrev_b32 v{40+2*k}, 16, v{41+2*k}')
    e(f'v_and_b32 v{41+2*k}, s33, v{41+2*k}')
e('s_mov_b32 s53, 0')
lab('Lp_wloop')
for dw in range(4):
    for c2 in range(2):
        ch = 2*dw+c2
        E, O = 104+4*c2, 106+4*c2
        e(f'v_pk_mul_f32 {vp(E)}, {vp(160)}, {vp(G_(0,ch))}')
        e(f'v_pk_mul_f32 {vp(O)}, {vp(162)}, {vp(G_(1,ch))}')
        e(f'v_pk_fma_f32 {vp(E)}, {vp(164)}, {vp(G_(2,ch))}, {vp(E)}')
        e(f'v_pk_fma_f32 {vp(O)}, {vp(166)}, {vp(G_(3,ch))}, {vp(O)}')
        pkadd(112+4*c2, O, E)
        pkadd(114+4*c2, E, O, negb=True)
    for sgn in range(2):
        for n in range(2):
            e(f'v_cvt_pk_bf16_f32 v{120+8*sgn+4*n+dw}, v{112+2*sgn+n}, v{116+2*sgn+n}')
for sgn in range(2):
    for n in range(2):
        e(f'ds_write_b128 v10, {vr(120+8*sgn+4*n)} offset:{sgn*2048 + n*16}')
e('s_add_u32 s53, s53, 1')
e('s_waitcnt lgkmcnt(0)')
e('v_add_u32 v10, 4096, v10')
e('s_cmp_eq_u32 s53, 3')
e('s_cbranch_scc1 Lp_w3')
e('s_cmp_eq_u32 s53, 1')
e('s_cbranch_scc1 Lp_w1')
wcoef(2)
if opt['early']:
    e('s_waitcnt vmcnt(0)')
    e('s_barrier')
e('s_branch Lp_wloop')
lab('Lp_w1')
for k in range(4): e(f'ds_read_b128 {vr(136+4*k)}, v11 offset:{k*1024}')
for k in range(4):
    e(f's_waitcnt lgkmcnt({3-k})')
    e(f'buffer_store_dwordx4 {vr(136+4*k)}, v{12+k%2}, s[20:23], s34 offen sc1')
    if k % 2 == 1: e(f's_add_u32 s34, s34, {3*24576}')
wcoef(1)
if not opt['early']:
    e('s_waitcnt vmcnt(0)')
    e('s_barrier')
e('s_branch Lp_wloop')
lab('Lp_w3')
for ch in range(8): e(f'v_pk_mul_f32 {vp(G_(3,ch))}, {vp(G_(3,ch))}, v[14:15]')
for n in range(2):
    for dw in range(4):
        e(f'v_cvt_pk_bf16_f32 v{120+4*n+dw}, v{G_(3,2*dw)+n}, v{G_(3,2*dw+1)+n}')
    e(f'ds_write_b128 v10, {vr(120+4*n)} offset:{n*16}')
e('s_waitcnt lgkmcnt(0)')
for k in range(10):
    e(f'ds_read_b128 {vr(PK(k % 2, k//2))}, v11 offset:{4096 + k*1024}')
e(f'v_add_u32 v{PA(0)}, s34, v12')
e(f'v_add_u32 v{PA(1)}, s34, v13')
e(f's_mov_b32 s96, {3*24576}')
e(f's_mov_b32 s97, {3*24576}')
e('s_waitcnt lgkmcnt(0)')
lab('Lp_wx')
c('then x pass 2: wave 4: unit 8 (block 3) ; wave 5: units 4,5 (blocks 2,3)')
e('s_cmp_ge_u32 s2, 250')
e('s_cbranch_scc1 L_pdone')
xcoef2()
e('s_mov_b32 s30, 8')
e('s_cmp_eq_u32 s26, 4')
e('s_cbranch_scc1 Lp_x3')
e('s_mov_b32 s30, 4')
e('s_branch Lp_x23')
lab('Lp_wo')
e('s_waitcnt lgkmcnt(0)')
common()
e('s_sub_u32 s3, s2, 72')
e('s_cmp_ge_u32 s3, 45')
e('s_cbranch_scc1 Lp_wo2')
srd(12, 8, 9, 144*144*2)
e('s_mul_i32 s28, s3, 13108')
e('s_lshr_b32 s28, s28, 16')
e('s_mul_i32 s29, s28, 5')
e('s_sub_u32 s29, s3, s29')
e('v_and_b32 v7, 15, v2')
e('v_lshrrev_b32 v8, 4, v2')
e('s_cmp_eq_u32 s28, 8')
e('s_cselect_b32 s30, 1, 4')
e('s_cselect_b32 s34, 256, 0')
e('s_cselect_b32 s28, 0, s28')
e('s_lshl_b32 s28, s28, 1')
e('s_add_u32 s34, s34, s28')
e(f's_mul_i32 s29, s29, {32*288}')
e('s_add_u32 s34, s34, s29')
e('v_lshlrev_b32 v9, s30, v7')
e('v_mul_u32_u24 v14, 576, v8')
e('v_add3_u32 v14, v14, v9, s34')
for d in range(4):
    e(f'buffer_load_ushort v{40+2*d}, v14, s[12:15], 0 offen')
    e(f'buffer_load_ushort v{41+2*d}, v14, s[12:15], 0 offen offset:288')
    if d < 3: e('v_add_u32 v14, 2304, v14')
e('s_lshl_b32 s3, s3, 10')
e(f's_add_u32 s3, s3, {WO_OFF}')
e('v_lshlrev_b32 v1, 4, v2')
e('s_barrier')
e('s_waitcnt vmcnt(0)')
for d in range(4):
    e(f'v_lshl_or_b32 v{48+d}, v{41+2*d}, 16, v{40+2*d}')
e('buffer_store_dwordx4 v[48:51], v1, s[20:23], s3 offen sc1')
e('s_waitcnt vmcnt(0)')
e('s_barrier')
e('s_branch Lp_wx')
lab('Lp_wo2')
e('s_barrier')
e('s_barrier')
e('s_branch Lp_wx')

def M(t): return 12 + 4*t
def MD(t): return 48 + 4*t
def FR(k): return vr(84 + 4*k)
lab('L_pdone')
e('v_lshlrev_b32 v101, 4, v2')
e('v_min_u32 v36, 62, v2')
e('v_lshlrev_b32 v36, 5, v36')
e(f's_and_b32 s30, s2, {REP-1}')
e(f's_mul_i32 s30, s30, {RSTR}')
e('v_add_u32 v36, s30, v36')
e(f'v_mul_u32_u24 v12, {RSTR}, v2')
c('unit = base[xcd] + (id>>3)')
e('s_and_b32 s25, s2, 7')
e('s_lshr_b32 s24, s2, 3')
e('s_mul_i32 s27, s25, 31')
e('s_min_u32 s28, s25, 4')
e('s_add_u32 s27, s27, s28')
e('s_add_u32 s27, s27, s24')
e('s_mul_i32 s28, s27, 7282')
e('s_lshr_b32 s28, s28, 16')
e('s_mul_i32 s29, s28, 9')
e('s_sub_u32 s29, s27, s29')
e('s_and_b32 s24, s26, 3')
e('s_lshr_b32 s32, s24, 1')
e('s_and_b32 s33, s24, 1')
e('s_mul_i32 s34, s24, 7168')
e('s_mul_i32 s35, s24, 6144')
c('z soffset s62: (((g*2+rh)*9+gs)*18+J)*1024')
e('s_lshl_b32 s62, s28, 1')
e('s_add_u32 s62, s62, s32')
e(f's_mul_i32 s62, s62, {9*18*1024}')
e('s_lshl_b32 s63, s29, 1')
e('s_add_u32 s63, s63, s33')
e('s_lshl_b32 s63, s63, 10')
e('s_add_u32 s62, s62, s63')
e(f's_add_u32 s62, s62, {Z_OFF}')
if opt['gmap']:
    c('g = (b*7+gg)*2 + p')
    e('s_lshr_b32 s38, s28, 1')
    e('s_and_b32 s30, s28, 1')
    e('s_cmp_ge_u32 s38, 7')
    e('s_cselect_b32 s36, 7, 0')
    e('s_cselect_b32 s37, 2, 0')
    e('s_sub_u32 s38, s38, s36')
    e('s_add_u32 s30, s30, s37')
else:
    e('s_mul_i32 s30, s28, 9363')
    e('s_lshr_b32 s30, s30, 16')
    e('s_mul_i32 s38, s30, 7')
    e('s_sub_u32 s38, s28, s38')
e(f's_mul_i32 s36, s30, {21*XS}')
e('s_mul_i32 s37, s38, 27648')
e('s_add_u32 s36, s36, s37')
e('s_add_u32 s36, s36, s34')
e(f's_mul_i32 s37, s29, {21*24576}')
e('s_add_u32 s37, s37, s35')
e(f's_add_u32 s37, s37, {WT_OFF}')
c('last row group of a stream: do not fetch the never-written padding rows (KB 26 lanes >= 16, KB 27): v6, v7 = voffsets for those two chunks')
e('s_cmp_eq_u32 s38, 6')
e('s_cselect_b32 s60, 16, 64')
e('s_cselect_b32 s61, 0, 64')
e(f'v_mov_b32 v8, {OOB}')
e('v_cmp_gt_u32 vcc, s60, v2')
e('v_cmp_gt_u32 s[88:89], s61, v2')
e('s_nop 0')
e('v_cndmask_b32 v6, v8, v101, vcc')
e('v_cndmask_b32 v7, v8, v101, s[88:89]')
e('s_cmp_ge_u32 s26, 4')
e('s_cbranch_scc1 L_helper')
e('s_cmp_lg_u32 s26, 0')
e('s_cbranch_scc1 L_c13')
c('wave 0: wait for all A flags, then load the whole phase 0 tile')
if opt['agg']:
    e('s_cmp_lg_u32 s2, 0')
    e('s_cbranch_scc1 L_gow')
if opt['dly']: e(f's_sleep {opt["dly"]}')
poll(0, 'A')
if opt['agg']:
    c('WG 0 saw all A flags: release everybody through 8 go words')
    e('v_mul_u32_u24 v9, 4352, v2')
    e(f's_mov_b32 s30, {FLAG_OFF+GOF}')
    e('s_mov_b64 exec, 0xff')
    e('buffer_store_dwordx2 v[38:39], v9, s[20:23], s30 offen sc1')
    e('s_mov_b64 exec, -1')
    e('s_branch L_god')
    lab('L_gow')
    e('s_mul_i32 s30, s25, 4352')
    e(f's_add_u32 s30, s30, {FLAG_OFF+GOF}')
    e('s_mov_b32 s31, 0')
    e('s_mov_b64 exec, 1')
    lab('L_gol')
    e('buffer_load_dwordx2 v[24:25], v37, s[20:23], s30 offen sc1')
    e('s_add_u32 s31, s31, 1')
    e('s_cmp_gt_u32 s31, 40000')
    e('s_cbranch_scc1 L_gox')
    e('s_waitcnt vmcnt(0)')
    e('v_cmp_ne_u64 vcc, s[92:93], v[24:25]')
    e('s_cbranch_vccz L_gox')
    e(f's_sleep {opt["gslp"]}')
    e('s_branch L_gol')
    lab('L_gox')
    e('s_mov_b64 exec, -1')
    lab('L_god')
stamp(3)
for k in range(52):
    if k % 4 == 0:
        e(f's_mov_b32 m0, {k*1024}')
        e(f's_add_u32 s30, s36, {k*1024}' if k < 28 else f's_add_u32 s30, s37, {(k-28)*1024}')
    e(f'buffer_load_dwordx4 v{ {26: 6, 27: 7}.get(k, 101) }, s[20:23], s30 offen offset:{(k%4)*1024} sc1 lds')
lab('L_c13')
e('s_barrier')
if opt['prio']: e(f's_setprio {opt["prio"]}')
e('v_and_b32 v124, 15, v2')
e('v_lshrrev_b32 v125, 4, v2')
e('v_mul_u32_u24 v126, 864, v124')
e('s_mul_i32 s38, s32, 13824')
e('v_add_u32 v126, s38, v126')
e('v_lshl_add_u32 v2, v125, 4, v126')
e('v_lshrrev_b32 v127, 1, v125')
e('v_mul_u32_u24 v127, 96, v127')
e('v_sub_u32 v127, v126, v127')
e('v_and_b32 v128, 1, v125')
e('v_lshl_add_u32 v127, v128, 4, v127')
e('v_add_u32 v5, 160, v127')
e('s_mul_i32 s38, s33, 12288')
e('s_add_u32 s38, s38, 28672')
e('v_add_u32 v8, s38, v101')
for s in (1, 2):
    e(f'v_add_u32 v{2+s}, {s*SLOT}, v2')
    e(f'v_add_u32 v{5+s}, {s*SLOT}, v5')
    e(f'v_add_u32 v{8+s}, {s*SLOT}, v8')
if opt['sn32']: e('v_lshrrev_b32 v101, 2, v101')
e(f's_add_u32 s38, s34, {2*SLOT}')
e('v_add_u32 v1, s38, v101')
e(f's_add_u32 s38, s35, {2*SLOT+28672}')
e('v_add_u32 v11, s38, v101')
for r in range(48, 84): e(f'v_mov_b32 v{r}, 0')

frags = []; mf = []
for tp in range(-7, 9):
    for kk in range(min(7, 8-tp), max(0, -tp)-1, -1):
        mf.append((tp+kk, ('W', kk), ('X', tp)))
for tp in range(-6, 9):
    for pp in range(3, -1, -1):
        if 0 <= tp+2*pp <= 8: mf.append((tp+2*pp, ('WT', pp), ('XT', tp)))
assert len(mf) == 108
fu = {}
for s, (t, wk, xk) in enumerate(mf):
    for k in (xk, wk):
        if k not in fu: fu[k] = s; frags.append(k)
assert len(frags) == 43
fidx = {k: i for i, k in enumerate(frags)}
LA = opt['LA']; BAR = 108 - LA; ELAST = BAR - 6
iss = [(-LA + (k*(ELAST+LA))//42) for k in range(43)]
for k in range(43): assert iss[k] <= fu[frags[k]] - 8, (k, iss[k], fu[frags[k]])
def rd(k, slot):
    kind, i = frags[k]
    if kind == 'X': return f'ds_read_b128 {FR(k)}, v{2+slot} offset:{(i+8)*96}'
    if kind == 'XT': return f'ds_read_b128 {FR(k)}, v{5+slot} offset:{(i+7)*96}'
    if kind == 'W': return f'ds_read_b128 {FR(k)}, v{8+slot} offset:{i*1024}'
    return f'ds_read_b128 {FR(k)}, v{8+slot} offset:{(8+i)*1024}'
npre = sum(1 for x in iss if x < 0)
first_touch = {}; last_touch = {}
for s, (t, wk, xk) in enumerate(mf):
    first_touch.setdefault(t, s); last_touch[t] = s
def snapw(t):
    if opt['sn32']:
        t, r = divmod(t, 4)
        return f'ds_write_b32 v1, v{MD(t)+r} offset:{t*1024+r*256}' if t < 7 else f'ds_write_b32 v11, v{MD(t)+r} offset:{(t-7)*1024+r*256}'
    return f'ds_write_b128 v1, {vr(MD(t))} offset:{t*1024}' if t < 7 else f'ds_write_b128 v11, {vr(MD(t))} offset:{(t-7)*1024}'
QS = opt['QS']
ext = [[] for _ in range(324)]
for ph in range(3):
    for k in range(43):
        ext[(ph*108 + iss[k]) % 324].append(('rd', k, ph))
used = [len(x) for x in ext]
lastw = 0
if opt['sn32']:
    for n in range(36):
        pos = max(216 + last_touch[n//4] + 8, lastw + 1)
        lastw = pos
        assert pos >= 216 + BAR and pos < 324 + QS - 2, pos
        ext[pos % 324].append(('wr', n, 0))
else:
  for t in range(9):
    pos = max(216 + last_touch[t] + 8, lastw + opt['wsp'])
    while used[pos % 324]: pos += 1
    lastw = pos
    used[pos % 324] += 1
    assert pos >= 216 + BAR and pos < 324 + QS - 2
    ext[pos % 324].append(('wr', t, 0))
e('s_waitcnt vmcnt(0)')
stamp(4)
e('s_barrier')
stamp(5)
if opt['dbgst']: e('s_memtime s[90:91]')
for k in range(npre): e(rd(k, 0))
e('s_mov_b32 s39, 7')
e('s_waitcnt lgkmcnt(0)')
out.append('.p2align 6')
lab('L_loop')
seq = 0; rseq = {}; covered = -1; wseq = -1; sslot = []
for it in range(2):
    emit = e if it == 1 else (lambda s: None)
    for ph in range(3):
        if it == 1: c(f'======== phase {ph}')
        for s, (t, wk, xk) in enumerate(mf):
            if s == BAR:
                emit('s_waitcnt lgkmcnt(0)')
                emit('s_barrier')
                covered = seq - 1
            if ph == 0 and s == QS:
                if wseq > covered:
                    emit(f's_waitcnt lgkmcnt({min(15, seq-1-wseq)})')
                    covered = max(covered, seq - 1 - min(15, seq-1-wseq))
                emit('s_barrier')
            need = max(rseq.get((ph, fidx[wk]), -1), rseq.get((ph, fidx[xk]), -1))
            if need > covered:
                now = it*324 + ph*108 + s
                recent = sum(1 for x in sslot if x >= now - opt['lat'])
                allow = min(seq - 1 - need, recent, 15)
                emit(f's_waitcnt lgkmcnt({allow})')
                covered = seq - 1 - allow
            cin = vr(MD(t)) if (ph == 0 and first_touch[t] == s) else vr(M(t))
            dst = vr(MD(t)) if (ph == 2 and last_touch[t] == s) else vr(M(t))
            emit(f'v_mfma_f32_16x16x32_bf16 {dst}, {FR(fidx[wk])}, {FR(fidx[xk])}, {cin}')
            for x in ext[ph*108+s]:
                if x[0] == 'rd':
                    emit(rd(x[1], x[2])); rseq[(x[2], x[1])] = seq; seq += 1; sslot.append(it*324 + ph*108 + s)
                else:
                    emit(snapw(x[1])); wseq = seq; seq += 1; sslot.append(it*324 + ph*108 + s)
            if ph == 2 and s == 104: emit('s_sub_u32 s39, s39, 1')
            if ph == 2 and s == 105: emit('s_cmp_lg_u32 s39, 0')
e('s_cbranch_scc1 L_loop')
stamp(6)
if opt['dbgst']: e('s_memtime s[94:95]')
c('---- compute-wave epilogue: gate y3 = MD')
e('s_waitcnt lgkmcnt(0)')
def gate_consts():
    e(f's_mov_b32 s46, {fh(-0.6931471805599453)}')
    e(f's_mov_b32 s42, {fh(2*LOG2E*2**-12)}')
    e('s_mov_b32 s43, 0x41f00000')
def gate(a, r, dst, sp):
    L = []
    L.append(f'v_min_f32 v{r}, s43, v{a}')
    L.append(f'v_min_f32 v{r+1}, s43, v{a+1}')
    L.append(f'v_exp_f32 v{a+2}, v{a+2}')
    L.append(f'v_exp_f32 v{a+3}, v{a+3}')
    L.append(f'v_exp_f32 v{r}, v{r}')
    L.append(f'v_exp_f32 v{r+1}, v{r+1}')
    if opt['smallfix']:
        L.append(f'v_cmp_gt_f32 s[{sp}:{sp+1}], s42, abs(v{a})')
        L.append(f'v_cmp_gt_f32 s[{sp+2}:{sp+3}], s42, abs(v{a+1})')
    L.append(f'v_add_f32 v{r+2}, 1.0, v{r}')
    L.append(f'v_add_f32 v{r+3}, 1.0, v{r+1}')
    if opt['smallfix']:
        L.append(f'v_mul_f32 v{a}, s46, v{a}')
        L.append(f'v_mul_f32 v{a+1}, s46, v{a+1}')
    L.append(f'v_fmac_f32 v{r+2}, v{r+2}, v{a+2}')
    L.append(f'v_fmac_f32 v{r+3}, v{r+3}, v{a+3}')
    L.append(f'v_sub_f32 v{r}, 1.0, v{r}')
    L.append(f'v_sub_f32 v{r+1}, 1.0, v{r+1}')
    L.append(f'v_rcp_f32 v{r+2}, v{r+2}')
    L.append(f'v_rcp_f32 v{r+3}, v{r+3}')
    if opt['smallfix']:
        L.append(f'v_cndmask_b32 v{r}, v{r}, v{a}, s[{sp}:{sp+1}]')
        L.append(f'v_cndmask_b32 v{r+1}, v{r+1}, v{a+1}, s[{sp+2}:{sp+3}]')
    L.append(f'v_mul_f32 v{r}, v{r}, v{r+2}')
    L.append(f'v_mul_f32 v{r+1}, v{r+1}, v{r+3}')
    L.append(f'v_cvt_pk_bf16_f32 v{dst}, v{r}, v{r+1}')
    return L
ool = []
def gate_check(As, tm, name):
    for k, a in enumerate(As):
        if k == 0:
            e(f'v_min_f32 v{tm}, abs(v{a}), abs(v{a+1})')
            e(f'v_max_f32 v{tm+1}, v{a}, v{a+1}')
        else:
            e(f'v_min3_f32 v{tm}, abs(v{a}), abs(v{a+1}), v{tm}')
            e(f'v_max3_f32 v{tm+1}, v{a}, v{a+1}, v{tm+1}')
    e(f'v_cmp_gt_f32 s[44:45], s42, v{tm}')
    e(f'v_cmp_lt_f32 vcc, s43, v{tm+1}')
    e(f's_cbranch_vccnz L_cl{name}')
    lab(f'L_clr{name}')
    L = [f'L_cl{name}:']
    for a in As:
        L += [f'    v_min_f32 v{a}, s43, v{a}', f'    v_min_f32 v{a+1}, s43, v{a+1}']
    L.append(f'    s_branch L_clr{name}')
    ool.extend(L)
def gate_fast(a, r, dst, name):
    e(f'v_exp_f32 v{r}, v{a}')
    e(f'v_exp_f32 v{r+1}, v{a+1}')
    e(f'v_exp_f32 v{a+2}, v{a+2}')
    e(f'v_exp_f32 v{a+3}, v{a+3}')
    e(f'v_add_f32 v{r+2}, 1.0, v{r}')
    e(f'v_add_f32 v{r+3}, 1.0, v{r+1}')
    e('s_cmp_lg_u64 s[44:45], 0')
    e(f'v_fmac_f32 v{r+2}, v{r+2}, v{a+2}')
    e(f'v_fmac_f32 v{r+3}, v{r+3}, v{a+3}')
    e(f'v_sub_f32 v{r}, 1.0, v{r}')
    e(f'v_sub_f32 v{r+1}, 1.0, v{r+1}')
    e(f'v_rcp_f32 v{r+2}, v{r+2}')
    e(f'v_rcp_f32 v{r+3}, v{r+3}')
    e(f's_cbranch_scc1 L_sm{name}')
    lab(f'L_smr{name}')
    e(f'v_mul_f32 v{r}, v{r}, v{r+2}')
    e(f'v_mul_f32 v{r+1}, v{r+1}, v{r+3}')
    e(f'v_cvt_pk_bf16_f32 v{dst}, v{r}, v{r+1}')
    ool.extend([f'L_sm{name}:',
        f'    v_cmp_gt_f32 s[48:49], s42, abs(v{a})',
        f'    v_cmp_gt_f32 s[50:51], s42, abs(v{a+1})',
        f'    v_mul_f32 v{a}, s46, v{a}',
        f'    v_mul_f32 v{a+1}, s46, v{a+1}',
        f'    v_cndmask_b32 v{r}, v{r}, v{a}, s[48:49]',
        f'    v_cndmask_b32 v{r+1}, v{r+1}, v{a+1}, s[50:51]',
        f'    s_branch L_smr{name}'])
gate_consts()
e('v_and_b32 v100, 63, v0')
e('v_lshlrev_b32 v101, 4, v100')
e(f's_add_u32 s63, s62, {7*18432}')
for t in range(9):
    if opt['fast']:
        if t % 3 == 0: gate_check([MD(t), MD(t+1), MD(t+2)], 102, f'c{t}')
        gate_fast(MD(t), 104 + 4*(t % 2), 112 + t, f'c{t}')
    else:
        for x in gate(MD(t), 104 + 4*(t % 2), 112 + t, 48): e(x)
    if t in (3, 7):
        e(f'buffer_store_dwordx4 v[{112+t-3}:{112+t}], v101, s[20:23], s63 offen sc1')
        e('s_add_u32 s63, s63, 18432')
e(f's_add_u32 s63, s62, {6*18432}')
e('buffer_store_dword v120, v101, s[20:23], s63 offen offset:12 sc1')
e('s_branch L_fin')
def hbar():
    if opt['bst']:
        e('s_memtime s[64:65]')
        e('s_barrier')
        e('s_memtime s[66:67]')
        e('s_waitcnt lgkmcnt(0)')
        e('s_mov_b32 m0, s68'); e('s_nop 0')
        e('v_writelane_b32 v14, s64, m0')
        e('v_writelane_b32 v15, s66, m0')
        e('s_add_u32 s68, s68, 1')
    else: e('s_barrier')
lab('L_helper')
if opt['bst']: e('s_mov_b32 s68, 0')
def Y(i, t): return 40 + 4*(i*9+t)
def SN(t): return 148 + 4*t
e('v_mov_b32 v3, v101')
e('v_add_u32 v13, 4096, v101')
e('v_add_u32 v6, 4096, v6')
e('v_add_u32 v7, 4096, v7')
e('s_cmp_eq_u32 s26, 7')
e('s_cselect_b64 vcc, -1, 0')
e('v_cndmask_b32 v6, v13, v6, vcc')
e('v_cndmask_b32 v7, v13, v7, vcc')
if opt['sn32']: e('v_lshrrev_b32 v101, 2, v101')
e(f's_add_u32 s38, s34, {2*SLOT}')
e('v_add_u32 v4, s38, v101')
e(f's_add_u32 s38, s35, {2*SLOT+28672}')
e('v_add_u32 v5, s38, v101')
e('s_cmp_eq_u32 s26, 4')
e('s_cbranch_scc1 L_h4')
e(f'v_mov_b32 v36, {OOB}')
e(f'v_mov_b32 v12, {OOB}')
e('s_branch L_h5')
lab('L_h4')
e('s_mov_b32 s31, 0')
gettag('h')
lab('L_h5')
e('v_mov_b32 v38, s92')
e('v_mov_b32 v39, s93')
def dma_list(slot):
    L = []
    for k in range(7):
        pre = [f's_add_u32 m0, s34, {slot*SLOT + (k//4)*4096}', 's_nop 0']
        L.append(pre + [f'buffer_load_dwordx4 v{(3,3,3,3,13,6,7)[k]}, s[20:23], s36 offen offset:{(k%4)*1024} sc1 lds'] + ([f's_add_u32 s36, s36, {XS}'] if k == 6 else []))
    for k in range(6):
        pre = [f's_add_u32 m0, s35, {slot*SLOT + 28672 + (k//4)*4096}', 's_nop 0']
        L.append(pre + [f'buffer_load_dwordx4 v{3 if k < 4 else 13}, s[20:23], s37 offen offset:{(k%4)*1024} sc1 lds'] + (['s_add_u32 s37, s37, 24576'] if k == 5 else []))
    return L
def pst(b, pm):
    return [f'buffer_store_dwordx4 {vr(PK(b,pm))}, v{PA(b)}, s[20:23], 0 offen sc1', f'v_add_u32 v{PA(b)}, s{96+b}, v{PA(b)}']
def weave(dl, sl):
    res = []; n = len(sl); m = len(dl)
    for i in range(m):
        res.append(dl[i])
        for k in range((i*n)//m, ((i+1)*n)//m): res.append(sl[k])
    return res
def mix(dl, vl):
    n = len(dl)
    for i, d in enumerate(dl):
        for x in d: e(x)
        for x in vl[(i*len(vl))//n:((i+1)*len(vl))//n]: e(x)
    if n == 0:
        for x in vl: e(x)
def nvm(dl, after):
    return len(dl) - 1 - after
def snapr():
    if opt['sn32']:
        for t in range(9):
            for h in range(2):
                o = (t if t < 7 else t-7)*4 + 2*h
                e(f'ds_read2st64_b32 {vp(SN(t)+2*h)}, v{4 if t < 7 else 5} offset0:{o} offset1:{o+1}')
            if t == 6: e('s_waitcnt lgkmcnt(4)')
        e('s_waitcnt lgkmcnt(0)')
        return
    for t in range(9):
        e(f'ds_read_b128 {vr(SN(t))}, v4 offset:{t*1024}' if t < 7 else f'ds_read_b128 {vr(SN(t))}, v5 offset:{(t-7)*1024}')
    e('s_waitcnt lgkmcnt(0)')
FM = [f'v_fmac_f32 v{Y(i,t)+r}, s{40+i}, v{SN(t)+r}' for t in range(9) for i in range(3) for r in range(4)]
FM1 = [f'v_mul_f32 v{Y(i,t)+r}, s{40+i}, v{SN(t)+r}' for t in range(9) for i in range(3) for r in range(4)]
e(f's_add_u32 s36, s36, {XS}')
e('s_add_u32 s37, s37, 24576')
e('s_barrier')
mix(dma_list(1), [])
if opt['b1e'] == 1: mix([pst(b, 0) for b in range(4)], [])
c('coefficient table: s40.. = 3 x 6, consumed from the front')
for m in range(6):
    for i in range(3): e(f's_mov_b32 s{40+3*m+i}, {fh(DCH[i][m])}')
hbar()
if opt['b1e'] == 2: mix([pst(b, 0) for b in range(4)], [])
ND0 = opt['nd0']
def only4(name, fn):
    e('s_cmp_lg_u32 s26, 4')
    e(f's_cbranch_scc1 L_o4{name}')
    fn()
    lab(f'L_o4{name}')
def hflag(off):
    e('s_lshl_b32 s30, s2, 3')
    e(f's_add_u32 s30, s30, {FLAG_OFF+off}')
    e(f's_mov_b64 exec, {(1<<REP)-1}')
    e('buffer_store_dwordx2 v[38:39], v12, s[20:23], s30 offen sc1')
    e('s_mov_b64 exec, -1')
def hiter(name, fm, sa=(), sc_=(), flag0=None, flag1=None, chk=None):
    if chk is not None: poll_issue(chk)
    for g_ in sa:
        for x in g_: e(x)
    hbar()
    if fm: snapr()
    D2 = dma_list(2)
    mix(D2[:ND0], [])
    e(f's_waitcnt vmcnt({ND0 + len(sa)})')
    if chk is not None:
        def f():
            poll_check()
            e(f's_cbranch_scc0 L_o4c{name}')
            poll(chk, name, opt['fslp'])
        only4('c'+name, f)
    hbar()
    if flag0 is not None: hflag(flag0)
    mix(D2[ND0:] + dma_list(0), fm[:40])
    e('s_waitcnt vmcnt(13)')
    hbar()
    if flag1 is not None: hflag(flag1)
    mix(list(sc_) + dma_list(1), fm[40:])
    if fm:
        for k in range(15): e(f's_mov_b32 s{40+k}, s{43+k}')
    e(f's_waitcnt vmcnt({13 + len(sc_) + (1 if flag1 is not None else 0)})')
    hbar()
ST = [pst(b, pm) for pm in range(5) for b in range(4)]
if opt['b1e']: hiter('0', [], sc_=ST[4:8], flag0=1*FA)
else: hiter('0', [], sa=ST[0:4], sc_=ST[4:8], flag1=1*FA)
hiter('1', FM1, sa=ST[8:12], sc_=ST[12:16], flag0=2*FA, flag1=3*FA, chk=1*FA)
hiter('2', FM, sa=ST[16:20], flag1=4*FA, chk=2*FA)
hiter('3', FM, chk=3*FA)
hiter('4', FM, chk=4*FA)
hiter('5', FM)
c('---- last product')
if opt['sw'] == 4: stamp(6)
hbar()
snapr()
F0 = opt['f0']
D2 = dma_list(2)
mix(D2[:ND0], FM[:F0])
e(f's_waitcnt vmcnt({ND0})')
hbar()
WD = []
for k in range(12):
    WD.append([f's_add_u32 m0, s61, {(k//4)*4096}', 's_nop 0', f'buffer_load_dwordx4 v3, s[20:23], s60 offen offset:{(k%4)*1024} sc1 lds'] + (['s_add_u32 s60, s60, 4096'] if k % 4 == 3 else []))
e('s_mul_i32 s61, s24, 12288')
e(f's_add_u32 s60, s61, {WO_OFF}')
mix(D2[ND0:] + WD, FM[F0:])
gate_consts()
e('s_mov_b32 s63, s62')
nst = [0]
def hgate(n0, n1):
    for n in range(n0, n1):
        t, i = divmod(n, 3)
        if opt['fast']:
            if i == 0: gate_check([Y(0,t), Y(1,t), Y(2,t)], 192, f'h{n}')
            gate_fast(Y(i, t), 184 + 4*(n % 2), 200 + n, f'h{n}')
        else:
            for x in gate(Y(i, t), 184 + 4*(n % 2), 200 + n, 48): e(x)
        if n % 4 == 3:
            e(f'buffer_store_dwordx4 v[{200+n-3}:{200+n}], v3, s[20:23], s63 offen sc1')
            e('s_add_u32 s63, s63, 18432'); nst[0] += 1
        if n == 26:
            e('buffer_store_dwordx3 v[224:226], v3, s[20:23], s63 offen sc1'); nst[0] += 1
g1 = opt['g1']; g2 = min(27, g1 + opt['g2'])
hgate(0, g1)
e(f's_waitcnt vmcnt({nst[0]+12})')
hbar()
hgate(g1, g2)
hbar()
hgate(g2, 27)
if opt['bst']:
    e('s_memtime s[64:65]')
    e('s_waitcnt lgkmcnt(0)')
    e('s_mov_b32 m0, s68'); e('s_nop 0')
    e('v_writelane_b32 v14, s64, m0')
    e('v_writelane_b32 v15, s64, m0')
    e('s_cmp_lg_u32 s26, 4')
    e('s_cbranch_scc1 L_fin')
    e('s_mov_b32 s22, 0x10000000')
    e('s_lshl_b32 s33, s2, 9')
    e(f's_add_u32 s33, s33, {STAMP_OFF + (128<<10)*4}')
    e('v_lshrrev_b32 v1, 1, v3')
    e('buffer_store_dwordx2 v[14:15], v1, s[20:23], s33 offen')
lab('L_fin')
e('s_setprio 0')
e('s_load_dwordx2 s[6:7], s[0:1], 24')
if not opt['es']: stamp(7)
e('v_and_b32 v2, 63, v0')
e('v_lshlrev_b32 v3, 4, v2')
e('v_mov_b32 v37, 0')
e('s_lshl_b32 s40, s27, 1')
e('s_lshr_b32 s41, s26, 2')
e('s_add_u32 s40, s40, s41')
e('s_mul_i32 s30, s40, 7282')
e('s_lshr_b32 s30, s30, 16')
e('s_mul_i32 s31, s30, 9')
e('s_sub_u32 s31, s40, s31')
if opt['gmap']:
    e('s_lshr_b32 s32, s30, 2')
    e('s_bfe_u32 s38, s30, 0x10001')
    e('s_and_b32 s33, s30, 1')
    e('s_cmp_ge_u32 s32, 7')
    e('s_cselect_b32 s37, 4608000, 0')
    e('s_cselect_b32 s36, 7, 0')
    e('s_sub_u32 s32, s32, s36')
    e('s_lshl_b32 s32, s32, 1')
    e('s_add_u32 s33, s33, s32')
else:
    e('s_mul_i32 s32, s30, 4682')
    e('s_lshr_b32 s32, s32, 16')
    e('s_mul_i32 s33, s32, 14')
    e('s_sub_u32 s33, s30, s33')
    e('s_lshr_b32 s37, s32, 1')
    e('s_and_b32 s38, s32, 1')
    e('s_mul_i32 s37, s37, 4608000')
e('s_waitcnt lgkmcnt(0)')
e('s_add_u32 s6, s6, s37'); e('s_addc_u32 s7, s7, 0')
srd(16, 6, 7, 4608000)
e('s_mul_i32 s39, s33, 1152')
e('s_add_u32 s39, s39, s38')
e('s_add_u32 s39, s39, 6')
e('s_lshl_b32 s45, s31, 2')
e('s_add_u32 s45, s45, s24')
e('s_mul_i32 s42, s45, 171')
e('s_lshr_b32 s42, s42, 9')
e('s_mul_i32 s43, s42, 3')
e('s_sub_u32 s43, s45, s43')
e('s_sub_u32 s44, s45, 28')
e('s_cmp_ge_u32 s45, 27')
e('s_cselect_b32 s42, s44, s42')
e('s_cselect_b32 s43, 3, s43')
e('s_cmp_eq_u32 s45, 27')
e('s_cselect_b32 s42, 8, s42')
e('s_lshl_b32 s42, s42, 3')
e('s_lshl_b32 s43, s43, 1')
e('s_add_u32 s42, s42, s39')
e('s_sub_u32 s42, s42, s43')
e('s_mul_i32 s45, s42, 288')
e('v_lshrrev_b32 v7, 4, v2')
e(f'v_mul_u32_u24 v7, {4*72*288}, v7')
e('v_add_u32 v7, s45, v7')
e('v_and_b32 v8, 15, v2')
e('v_lshl_add_u32 v11, v8, 1, v7')
e('v_lshl_add_u32 v10, v8, 4, v7')
e('s_mul_i32 s46, s27, 36864')
e('s_lshl_b32 s47, s26, 10')
e('s_add_u32 s46, s46, s47')
e(f's_add_u32 s46, s46, {Z_OFF}')
e('s_mul_i32 s48, s41, 18432')
e('s_lshl_b32 s49, s24, 2')
e('s_add_u32 s48, s48, s49')
e(f's_add_u32 s48, s48, {SLOT}')
e('v_add_u32 v4, s48, v3')
e('v_mov_b32 v34, 0')
e('v_mov_b32 v35, 0')
e('s_waitcnt vmcnt(0)')
e('s_barrier')
if not opt['es']: stamp(8)
def bf(f): return vr(76 + 4*f)
def preB():
    for f in range(45):
        e(f'ds_read_b128 {bf(f)}, v3 offset:{f*1024}')
        if f % 12 == 11: e('s_waitcnt lgkmcnt(4)')
e('s_cmp_lg_u32 s26, 4')
e('s_cbranch_scc1 L_e1b')
e('s_lshl_b32 s50, s28, 7')
e(f's_add_u32 s50, s50, {FLAG_OFF+ZFL}')
setflag(['s_lshl_b32 s30, s29, 3', 's_add_u32 s30, s30, s50'])
lab('L_e1b')
preB()
e('s_cmp_lg_u32 s26, 4')
e('s_cbranch_scc1 L_e2')
e('v_min_u32 v5, 8, v2')
e('v_lshlrev_b32 v5, 3, v5')
e('s_mov_b32 s51, 0')
lab('L_zpoll')
e('buffer_load_dwordx2 v[38:39], v5, s[20:23], s50 offen sc1')
e('s_add_u32 s51, s51, 1')
e('s_cmp_gt_u32 s51, 20000')
e('s_cbranch_scc1 L_e2')
e('s_waitcnt vmcnt(0)')
e('v_cmp_ne_u64 vcc, s[92:93], v[38:39]')
e('s_cbranch_vccz L_e2')
e('s_sleep 1')
e('s_branch L_zpoll')
lab('L_e2')
e('s_barrier')
stamp(9)
for i in range(5):
    if i == 4:
        e('s_cmp_ge_u32 s26, 4')
        e('s_cbranch_scc1 L_e3')
    e(f's_add_u32 m0, s47, {SLOT + i*8192}')
    e('s_nop 0')
    e('buffer_load_dwordx4 v3, s[20:23], s46 offen sc1 lds')
    if i < 4: e('s_add_u32 s46, s46, 8192')
lab('L_e3')
e('s_waitcnt vmcnt(0) lgkmcnt(0)')
e('s_barrier')
stamp(10)
if opt['stamps']: e('s_waitcnt lgkmcnt(0)')
for J in range(14): e(f'ds_read_b32 v{16+J}, v4 offset:{J*1024}')
for ks in range(5):
    if ks == 0: e('s_waitcnt lgkmcnt(10)')
    if ks == 1: e('s_waitcnt lgkmcnt(10)')
    if ks == 2: e('s_waitcnt lgkmcnt(6)')
    if ks == 3: e('s_waitcnt lgkmcnt(2)')
    if ks == 4: e('s_waitcnt lgkmcnt(0)')
    for T in range(9):
        r = 40 + 4*T
        cin = '0' if ks == 0 else vr(r)
        e(f'v_mfma_f32_16x16x32_bf16 {vr(r)}, v[{16+4*ks}:{16+4*ks+3}], {bf(T*5+ks)}, {cin}')
        if ks == 0 and T < 4: e(f'ds_read_b32 v{30+T}, v4 offset:{(14+T)*1024}')
e('s_nop 7')
e('s_nop 1')
if opt['trip']:
    e('s_memrealtime s[66:67]')
    e('s_waitcnt lgkmcnt(0)')
    e('s_sub_u32 s66, s66, s64')
    e(f's_sub_u32 s66, s66, {opt["trip"]}')
    e(f's_cmp_lt_u32 s66, {opt["tlo"] - opt["trip"]}')
    e('s_cselect_b32 s66, 1.0, 0')
    e('s_cmp_eq_u32 s2, 100')
    e('s_cselect_b32 s66, s66, 0')
    e('v_add_f32 v40, s66, v40')
for r in range(4):
    d = 140 + 6*r
    A = lambda T: 40 + 4*T + r
    for h in range(4): e(f'v_cvt_pk_bf16_f32 v{d+h}, v{A(2*h)}, v{A(2*h+1)}')
    e(f'v_cvt_pk_bf16_f32 v{d+4}, v{A(8)}, v{A(8)}')
    e(f'buffer_store_dwordx4 v[{d}:{d+3}], v10, s[16:19], 0 offen{OF[opt["of"]]}')
    e(f'buffer_store_short v{d+4}, v11, s[16:19], 0 offen offset:256{OF[opt["of2"]]}')
    if r < 3:
        e(f'v_add_u32 v10, {72*288}, v10')
        e(f'v_add_u32 v11, {72*288}, v11')
if opt['stamps']:
    e('s_waitcnt vmcnt(0)')
    stamp(11)
    e('s_waitcnt lgkmcnt(0)')
    e(f's_cmp_lg_u32 s26, {opt["sw"]}')
    e('s_cbranch_scc1 L_end')
    if opt['dbgst']:
        e(f's_cmp_lg_u32 s2, {opt["dbgst"]}')
        e('s_cbranch_scc1 L_end')
        e('s_load_dwordx2 s[56:57], s[0:1], 32')
        e('s_waitcnt lgkmcnt(0)')
        srd(16, 56, 57, 256)
        e('v_mov_b32 v1, 0')
        for i in range(1, 12):
            e(f's_sub_u32 s33, s{64+2*i}, s64')
            e('v_mov_b32 v4, s33')
            e(f'buffer_store_dword v4, v1, s[16:19], 0 offen offset:{4+4*i}')
        e('s_sub_u32 s33, s94, s90')
        e('v_mov_b32 v4, s33')
        e('buffer_store_dword v4, v1, s[16:19], 0 offen offset:56')
        e('s_branch L_end')
    e('s_mov_b32 s22, 0x10000000')
    e('s_lshl_b32 s33, s2, 7')
    e(f's_add_u32 s33, s33, {STAMP_OFF}')
    e('v_mov_b32 v1, s33')
    for i in range(6):
        for k in range(4): e(f'v_mov_b32 v{4+k}, s{64+4*i+k}')
        e(f'buffer_store_dwordx4 v[4:7], v1, s[20:23], 0 offen offset:{16*i}')
        e('s_nop 1')
lab('L_end')
e('s_endpgm')
out.extend(ool)
tail = f"""
.section .rodata,"a"
.p2align 6
.amdhsa_kernel {NAME}_kernel
  .amdhsa_next_free_vgpr 256
  .amdhsa_next_free_sgpr 100
  .amdhsa_accum_offset 256
  .amdhsa_group_segment_fixed_size 0
  .amdhsa_kernarg_size 48
  .amdhsa_user_sgpr_count 2
  .amdhsa_user_sgpr_kernarg_segment_ptr 1
  .amdhsa_system_sgpr_workgroup_id_x 1
.end_amdhsa_kernel
"""
open(sys.argv[1], 'w').write(hdr + '\n'.join(out) + '\n' + tail)
```

```python
import sys, struct
import numpy as np
from f44 import matrices, PTS
NAME = 'standalone__autoregressive_conv_wavenet__speech'
opt = dict(stamps=0, LA=26, smallfix=1, ldf=0, QS=28, prio=1, g1=5, g2=7, bst=0, nd0=7, wsp=5, f0=30, slp=1, cpf=3, sw=4, dly=0, pf=0, early=1, dbgst=0, rep=1, rstr=4352, pre=0, shr=1, agg=1, gslp=2, es=0, word=1, skx=0, skw=0, of=0, of2=0, gmap=1, trip=0, tlo=0, fast=0, sn32=0, lat=9, b1e=2, fslp=6, pad=0, mord=1, tdesc=0)
for a in sys.argv[2:]:
    k, v = a.split('='); assert k in opt, k; opt[k] = int(v)
out = []
def e(s): out.append('    ' + s)
def lab(s): out.append(s + ':')
def c(s): out.append('    ; ' + s)
def fh(x): return '0x%08x' % struct.unpack('<I', struct.pack('<f', float(x)))[0]
AT, G, BT = matrices()
GS = G.copy()
for m in range(6): GS[m] *= PTS[m]**3
CH = np.zeros((3, 7))
for i in range(3):
    for m in range(6): CH[i][m] = PTS[m]**(i-3)
DCH = CH[:, :6] - CH[:, 1:7]
LOG2E = 1.4426950408889634
LDF = {0: '', 1: ' nt'}[opt['ldf']]
OF = {0:'', 1:' nt', 2:' sc1', 3:' sc0 sc1'}
PRF = {1: ' sc1', 2: '', 3: ' sc0 sc1'}.get(opt['pre'], '')
PF_ = {0: ' sc1', 1: ' sc0 sc1', 2: ' sc1 nt', 3: ' sc0 sc1 nt'}[opt['pf']]
XROWS = 2032
XS = XROWS*96
U_BYTES = 4*21*XS
WT_OFF = U_BYTES
WT_BYTES = 9*21*24576
Z_OFF = WT_OFF + WT_BYTES
Z_BYTES = 28*2*9*18*1024
FLAG_OFF = Z_OFF + Z_BYTES
REP = opt['rep']; RSTR = opt['rstr']; FA = REP*RSTR
ZFL = 5*FA
GOF = ZFL + 4096
WO_OFF = (FLAG_OFF + GOF + 8*4352 + 1023)//1024*1024
WS_USED = WO_OFF + 45*1024
STAMP_OFF = 268435456 - (1 << 20)
SLOT = 53248
XL = 2*SLOT + 8192
WL = SLOT
LDS_MAIN = 3*SLOT
OOB = 0x7f000000
hdr = f"""; Kernarg layout for this problem (48 bytes, ptrs only, base s[0:1]):
; @launch grid=(252,1,1) block=(512,1,1) lds={LDS_MAIN}
.amdgcn_target "amdgcn-amd-amdhsa--gfx950"
.text
.globl {NAME}_kernel
.p2align 8
.type {NAME}_kernel,@function
{NAME}_kernel:
"""
def srd(d, lo, hi, nbytes):
    e(f's_mov_b32 s{d}, s{lo}')
    e(f's_and_b32 s{d+1}, s{hi}, 0xffff')
    e(f's_mov_b32 s{d+2}, {nbytes}')
    e(f's_mov_b32 s{d+3}, 0x00020000')
def vp(r): return f'v[{r}:{r+1}]'
def vr(r): return f'v[{r}:{r+3}]'
def pkfma(d, sc, a, b, nega=False):
    neg = ' neg_lo:[0,1,0] neg_hi:[0,1,0]' if nega else ''
    e(f'v_pk_fma_f32 {vp(d)}, s[{sc}:{sc+1}], {vp(a)}, {vp(b)}{neg}')
def pkadd(d, a, b, negb=False):
    neg = ' neg_lo:[0,1] neg_hi:[0,1]' if negb else ''
    e(f'v_pk_add_f32 {vp(d)}, {vp(a)}, {vp(b)}{neg}')
def sconst2(s, x):
    e(f's_mov_b32 s{s}, {fh(x)}'); e(f's_mov_b32 s{s+1}, {fh(x)}')
def stamp(i):
    if opt['stamps']: e(f's_memrealtime s[{64+2*i}:{65+2*i}]')
def PK(b, pm):
    n = pm*4 + b
    return 184 + 4*n if n < 18 else 16 + 4*(n-18)
PA = lambda b: 32 + b
PT = 24

def gettag(name):
    lab(f'L_tag{name}')
    e('buffer_load_dwordx2 v[24:25], v37, s[16:19], 0 offen sc1')
    e('s_add_u32 s31, s31, 1')
    e('s_cmp_gt_u32 s31, 400000')
    e(f's_cbranch_scc1 L_tagd{name}')
    e('s_waitcnt vmcnt(0)')
    e('v_readfirstlane_b32 s92, v24')
    e('v_readfirstlane_b32 s93, v25')
    e('s_nop 3')
    e('s_cmp_eq_u32 s92, 0')
    e(f's_cbranch_scc1 L_tag{name}')
    lab(f'L_tagd{name}')
def setflag(pre):
    for x in pre: e(x)
    e('v_mov_b32 v38, s92')
    e('v_mov_b32 v39, s93')
    e('s_mov_b64 exec, 1')
    e('buffer_store_dwordx2 v[38:39], v37, s[20:23], s30 offen sc1')
    e('s_mov_b64 exec, -1')
def poll_issue(off):
    e(f's_mov_b32 s30, {FLAG_OFF+off}')
    e(f'buffer_load_dwordx4 {vr(PT)}, v36, s[20:23], s30 offen{PF_}')
    e(f'buffer_load_dwordx4 {vr(PT+4)}, v36, s[20:23], s30 offen offset:16{PF_}')
def poll_check():
    e(f'v_cmp_ne_u64 vcc, s[92:93], {vp(PT)}')
    for k in range(1, 4):
        e(f'v_cmp_ne_u64 s[88:89], s[92:93], {vp(PT+2*k)}')
        e('s_or_b64 vcc, vcc, s[88:89]')
def poll(off, name, slp=None):
    e('s_mov_b32 s31, 0')
    lab(f'L_poll{name}')
    poll_issue(off)
    e('s_add_u32 s31, s31, 1')
    e('s_cmp_gt_u32 s31, 400000')
    e(f's_cbranch_scc1 L_pdone{name}')
    e('s_waitcnt vmcnt(0)')
    poll_check()
    e(f's_cbranch_scc0 L_pdone{name}')
    if opt['shr']: e('s_mov_b64 exec, vcc')
    e(f's_sleep {opt["slp"] if slp is None else slp}')
    e(f's_branch L_poll{name}')
    lab(f'L_pdone{name}')
    if opt['shr']: e('s_mov_b64 exec, -1')

e('s_cmp_ge_u32 s2, 252')
e('s_cbranch_scc1 L_end')
if opt['stamps']:
    for i in range(24): e(f's_mov_b32 s{64+i}, 0')
stamp(0)
if opt['trip']: e('s_memrealtime s[64:65]')
e('s_load_dwordx4 s[4:7], s[0:1], 0')
e('s_load_dwordx2 s[8:9], s[0:1], 16')
e('s_load_dwordx4 s[56:59], s[0:1], 32')
e('v_lshrrev_b32 v1, 6, v0')
e('v_and_b32 v2, 63, v0')
e('v_readfirstlane_b32 s26, v1')
if opt['cpf']:
    c('pull the kernel code towards L2 first (1 KB per participating wave)')
    e('s_getpc_b64 s[44:45]')
    lab('L_pc')
    if opt['cpf'] == 1:
        e('s_lshl_b32 s42, s2, 10')
        e('s_and_b32 s42, s42, 0x6000')
        e('v_lshlrev_b32 v102, 4, v0')
    elif opt['cpf'] == 2:
        e('s_lshl_b32 s42, s2, 7')
        e('s_and_b32 s42, s42, 0x7c00')
        e('v_lshlrev_b32 v102, 4, v2')
        e('v_lshl_add_u32 v102, v1, 20, v102')
    else:
        e('s_lshl_b32 s42, s2, 8')
        e('s_and_b32 s42, s42, 0x7800')
        e('v_lshlrev_b32 v102, 4, v0')
        e('v_lshrrev_b32 v103, 1, v1')
        e('v_lshl_add_u32 v102, v103, 20, v102')
    e('s_and_b32 s45, s45, 0xffff')
    e('s_mov_b32 s46, L_end-L_pc')
    e('s_mov_b32 s47, 0x00020000')
    e(f'buffer_load_dwordx4 {vr(180)}, v102, s[44:47], s42 offen')
else: e('s_nop 1')
def common():
    srd(20, 58, 59, WS_USED)
    srd(16, 56, 57, 256)
    e('s_mov_b32 s33, 0xffff0000')
    e('v_mov_b32 v37, 0')
    for b in range(4): e(f'v_mov_b32 v{PA(b)}, {OOB}')
    for b in range(4): e(f's_mov_b32 s{96+b}, {3*XS}')
    e('s_mov_b32 s31, 0')
    e('s_mov_b32 s92, 0')
    e('s_mov_b32 s93, 0')
    e('s_cmp_ge_u32 s2, 125')
    e(f's_cselect_b32 s50, {2*21*XS - 125*1536}, 0')
    e('s_mul_i32 s51, s2, 1536')
    e('s_add_u32 s50, s50, 768')
    e('s_add_u32 s50, s50, s51')
    e(f's_add_u32 s51, s50, {3*XS}')
    e(f's_mov_b32 s35, {XL+64}')
e('s_lshr_b32 s28, s26, 1')
e('s_cmp_eq_u32 s28, 2')
e('s_cbranch_scc1 Lp_w')
def xaddr(su, va, vd):
    e(f's_lshl_b32 s28, s{su}, 6')
    e('v_add_u32 v3, s28, v2')
    e('v_mul_u32_u24 v4, 683, v3')
    e('v_lshrrev_b32 v4, 16, v4')
    e('v_mul_u32_u24 v5, 96, v4')
    e('v_sub_u32 v3, v3, v5')
    e(f'v_mul_u32_u24 v{va}, 43, v3')
    e(f'v_lshrrev_b32 v{va}, 8, v{va}')
    e(f'v_mul_u32_u24 v{va}, {2304-96}, v{va}')
    e(f'v_lshl_add_u32 v{va}, v3, 4, v{va}')
    e(f'v_add3_u32 v{va}, v{va}, v5, s35')
    e('v_cmp_le_u32 vcc, 3, v4')
    e(f'v_mul_u32_u24 v{vd}, {XS}, v4')
    e(f'v_mov_b32 v5, {18*XS}')
    e(f'v_lshl_add_u32 v{vd}, v3, 4, v{vd}')
    e('v_cndmask_b32 v5, 0, v5, vcc')
    e(f'v_add_u32 v{vd}, v{vd}, v5')
def xpair(va, vd):
    for s in range(6): e(f'ds_read_b128 {vr(120+4*s)}, v{va} offset:{(12-2*s)*288}')
    for dw in range(4):
        for s in range(6):
            if dw == 0: e(f's_waitcnt lgkmcnt({5-s})')
            e(f'v_lshlrev_b32 v{148+2*s}, 16, v{120+4*s+dw}')
            e(f'v_and_b32 v{149+2*s}, s33, v{120+4*s+dw}')
        D = lambda s: 148+2*s
        pkfma(162, 46, D(2), D(4))
        pkfma(164, 46, D(3), D(5))
        pkfma(162, 44, D(0), 162)
        pkfma(164, 44, D(1), 164)
        pkfma(166, 48, 162, 164)
        pkfma(168, 48, 162, 164, nega=True)
        e(f'v_cvt_pk_bf16_f32 v{172+dw}, v166, v167')
        e(f'v_cvt_pk_bf16_f32 v{176+dw}, v168, v169')
    e(f'buffer_store_dwordx4 v[172:175], v{vd}, s[20:23], s50 offen sc1')
    e(f'buffer_store_dwordx4 v[176:179], v{vd}, s[20:23], s51 offen sc1')
def xrest(va, b):
    for s in range(7): e(f'ds_read_b128 {vr(120+4*s)}, v{va} offset:{(12-2*s)*288}')
    for dw in range(4):
        for s in range(7):
            if dw == 0: e(f's_waitcnt lgkmcnt({6-s})')
            e(f'v_lshlrev_b32 v{148+2*s}, 16, v{120+4*s+dw}')
            e(f'v_and_b32 v{149+2*s}, s33, v{120+4*s+dw}')
        D = lambda s: 148+2*s
        for t in range(2):
            q0, q1, aa = 36+6*t, 38+6*t, 40+6*t
            pkfma(162, q1, D(2), D(4))
            pkfma(164, q1, D(3), D(5))
            pkfma(162, q0, D(0), 162)
            pkfma(164, q0, D(1), 164)
            pkfma(166, aa, 162, 164)
            pkfma(168, aa, 162, 164, nega=True)
            e(f'v_cvt_pk_bf16_f32 v{PK(b,2*t)+dw}, v166, v167')
            e(f'v_cvt_pk_bf16_f32 v{PK(b,2*t+1)+dw}, v168, v169')
        pkfma(162, 54, D(4), D(6))
        pkfma(162, 52, D(2), 162)
        pkfma(162, 48, D(0), 162)
        e(f'v_cvt_pk_bf16_f32 v{PK(b,4)+dw}, v162, v163')
for t in range(3):
    a = PTS[2*t]; q0 = BT[2*t][1]; q1 = BT[2*t][3]
    assert abs(BT[2*t][0] - a*q0) < 1e-12 and abs(BT[2*t][2] - a*q1) < 1e-12 and abs(BT[2*t][4]-a) < 1e-12
e('s_sub_u32 s27, s26, 2')
e('s_cmp_lt_u32 s26, 4')
e('s_cselect_b32 s27, s26, s27')
e('s_cmp_ge_u32 s2, 250')
e('s_cbranch_scc1 Lp_zero')
e('s_cmp_ge_u32 s2, 125')
e('s_cselect_b32 s24, 4608000, 0')
e('s_mul_i32 s28, s2, 36864')
e('s_sub_u32 s28, s28, s24')
e('s_sub_u32 s28, s28, 1792')
e('s_lshl_b32 s29, s27, 10')
e('s_add_u32 s28, s28, s29')
e('v_lshlrev_b32 v6, 4, v2')
e('v_add_u32 v6, s28, v6')
e(f's_mov_b32 s14, {0 if opt["skx"] else 4608000}')
e('s_mov_b32 s15, 0x00020000')
e(f's_add_u32 m0, s29, {XL}')
e('s_waitcnt lgkmcnt(0)')
e('s_add_u32 s12, s4, s24'); e('s_addc_u32 s13, s5, 0')
e('s_and_b32 s13, s13, 0xffff')
for i in range(7):
    if i == 6:
        e('s_cmp_ge_u32 s27, 2')
        e('s_cbranch_scc1 Lp_xl')
    e(f'buffer_load_dwordx4 v6, s[12:15], 0 offen{LDF} lds')
    if i < 6:
        e(f's_add_u32 m0, s29, {XL + (i+1)*6144}')
        e('v_add_u32 v6, 6144, v6')
lab('Lp_xl')
common()
e('s_add_u32 s28, s2, s26')
e('s_cmp_lg_u32 s28, 0')
e('s_cbranch_scc1 Lp_x0')
c('WG 0 wave 0 publishes the launch tag in d_debug')
e('s_memrealtime s[92:93]')
e('s_waitcnt lgkmcnt(0)')
e('s_or_b32 s92, s92, 1')
e('v_mov_b32 v38, s92')
e('v_mov_b32 v39, s93')
e('s_mov_b64 exec, 1')
e('buffer_store_dwordx2 v[38:39], v37, s[16:19], 0 offen sc1')
e('s_mov_b64 exec, -1')
lab('Lp_x0')
c('pass-1 units: wave0:8 wave1:4,5 wave2:0,1 wave3:2,3 wave6:6 wave7:7')
e('s_lshl_b32 s28, s26, 2')
e('s_lshr_b32 s30, 0x76002048, s28')
e('s_and_b32 s30, s30, 15')
xaddr(30, 6, 7)
e('s_add_u32 s30, s30, 1')
xaddr(30, 14, 15)
sconst2(44, BT[0][1]); sconst2(46, BT[0][3]); sconst2(48, PTS[0])
stamp(7)
e('s_waitcnt vmcnt(0)')
stamp(8)
e('s_barrier')
stamp(1)
e('s_cmp_lg_u32 s26, 0')
e('s_cbranch_scc1 Lp_x1')
e('buffer_load_dwordx2 v[24:25], v37, s[16:19], 0 offen sc1')
lab('Lp_x1')
xpair(6, 7)
e('s_bitcmp1_b32 0x0e, s26')
e('s_cbranch_scc0 Lp_x2')
xpair(14, 15)
lab('Lp_x2')
e('s_cmp_ge_u32 s26, 4')
e('s_cbranch_scc1 Lp_h67')
lab('Lp_s2')
e(f'v_mul_u32_u24 v9, {RSTR}, v2')
e('s_lshl_b32 s30, s2, 3')
e(f's_add_u32 s30, s30, {FLAG_OFF}')
e('s_cmp_lg_u32 s26, 0')
e('s_cbranch_scc1 Lp_s2b')
e('s_cmp_ge_u32 s2, 250')
e('s_cbranch_scc1 L_taga')
e('s_waitcnt vmcnt(2)')
e('v_readfirstlane_b32 s92, v24')
e('v_readfirstlane_b32 s93, v25')
e('s_nop 3')
e('s_cmp_lg_u32 s92, 0')
e('s_cbranch_scc1 L_tagda')
gettag('a')
e('v_mov_b32 v38, s92')
e('v_mov_b32 v39, s93')
lab('Lp_s2b')
e('s_waitcnt vmcnt(0)')
e('s_barrier')
e('s_cmp_lg_u32 s26, 0')
e('s_cbranch_scc1 L_pdone')
e(f's_mov_b64 exec, {(1<<REP)-1}')
e('buffer_store_dwordx2 v[38:39], v9, s[20:23], s30 offen sc1')
e('s_mov_b64 exec, -1')
stamp(2)
e('s_branch L_pdone')
def xcoef2():
    for t in (1, 2):
        sconst2(36+6*(t-1), BT[2*t][1]); sconst2(38+6*(t-1), BT[2*t][3]); sconst2(40+6*(t-1), PTS[2*t])
    sconst2(48, BT[6][0]); sconst2(52, BT[6][2]); sconst2(54, BT[6][4])
    e(f's_add_u32 s34, s50, {6*XS}')
lab('Lp_h67')
c('waves 6,7 pass 2: own unit (block 1), then units 2(w-6), 2(w-6)+1 (blocks 2,3)')
xcoef2()
e(f'v_add_u32 v{PA(1)}, s34, v7')
if opt['early']: xrest(6, 1)
e('s_waitcnt vmcnt(0)')
e('s_barrier')
if not opt['early']: xrest(6, 1)
e('s_sub_u32 s30, s26, 6')
e('s_lshl_b32 s30, s30, 1')
lab('Lp_x23')
xaddr(30, 6, 7)
e(f'v_add_u32 v{PA(2)}, s34, v7')
xrest(6, 2)
e('s_add_u32 s30, s30, 1')
lab('Lp_x3')
xaddr(30, 6, 7)
e(f'v_add_u32 v{PA(3)}, s34, v7')
xrest(6, 3)
e('s_branch L_pdone')
lab('Lp_zero')
c('WGs 250,251: zero the 8 leading rows of the 42 arrays of batch b')
e('s_waitcnt lgkmcnt(0)')
common()
e('s_sub_u32 s3, s2, 250')
e(f's_mul_i32 s30, s3, {2*21*XS}')
e('s_lshl_b32 s28, s27, 6')
e('v_add_u32 v3, s28, v2')
for k in range(4): e(f'v_mov_b32 v{16+k}, 0')
for i in range(6):
    e('v_mul_u32_u24 v4, 1366, v3')
    e('v_lshrrev_b32 v4, 16, v4')
    e('v_mul_u32_u24 v5, 48, v4')
    e('v_sub_u32 v5, v3, v5')
    e(f'v_mul_u32_u24 v4, {XS}, v4')
    e('v_lshl_add_u32 v4, v5, 4, v4')
    e('v_cmp_gt_u32 vcc, 2016, v3')
    e(f'v_mov_b32 v5, {OOB}')
    e('v_add_u32 v3, 384, v3')
    e('v_cndmask_b32 v4, v5, v4, vcc')
    e('buffer_store_dwordx4 v[16:19], v4, s[20:23], s30 offen sc1')
e('s_barrier')
e('s_branch Lp_s2')
lab('Lp_w')
e('s_and_b32 s27, s26, 1')
c('w unit: XCD x = id&7 owns a contiguous range of units; local i = id>>3 < 9 takes two')
e('s_and_b32 s28, s2, 7')
e('s_lshr_b32 s29, s2, 3')
e('s_mul_i32 s3, s28, 40')
e('s_min_u32 s30, s28, 4')
e('s_add_u32 s3, s3, s30')
e('s_add_u32 s3, s3, s29')
e('s_min_u32 s30, s29, 9')
e('s_add_u32 s3, s3, s30')
e('s_add_u32 s3, s3, s27')
e('s_mul_i32 s30, s27, s29')
e('s_cmp_ge_u32 s30, 9')
e('s_cbranch_scc1 Lp_wo')
def posdec(P, ko, pos, kk, o, tmp):
    e(f'v_mul_u32_u24 v{ko}, 58255, v{P}')
    e(f'v_lshrrev_b32 v{ko}, 22, v{ko}')
    e(f'v_mul_u32_u24 v{tmp}, 72, v{ko}')
    e(f'v_sub_u32 v{pos}, v{P}, v{tmp}')
    e(f'v_mul_u32_u24 v{kk}, 3641, v{ko}')
    e(f'v_lshrrev_b32 v{kk}, 16, v{kk}')
    e(f'v_mul_u32_u24 v{tmp}, 18, v{kk}')
    e(f'v_sub_u32 v{o}, v{ko}, v{tmp}')
G_ = lambda r, ch: 40+2*(8*r+ch)
e('s_lshl_b32 s28, s3, 5')
e('v_and_b32 v3, 31, v2')
e('v_add_u32 v4, s28, v3')
posdec(4, 5, 6, 7, 8, 9)
e(f'v_mul_u32_u24 v7, {4*82944}, v7')
e('v_mul_u32_u24 v8, 4608, v8')
e('v_lshrrev_b32 v9, 5, v2')
e('v_mul_u32_u24 v10, 288, v9')
e('v_add3_u32 v7, v7, v8, v10')
e('v_lshl_add_u32 v6, v6, 2, v7')
e('s_waitcnt lgkmcnt(0)')
srd(12, 6, 7, 0 if opt['skw'] else 31*144*288*2)
if opt['word']:
    for r in range(1, 4): e(f's_mov_b32 s{36+r}, {82944*r}')
    for ch in range(8):
        for r in range(4):
            e(f'buffer_load_dword v{G_(r,ch)+1}, v6, s[12:15], {"s%d" % (36+r) if r else 0} offen offset:{ch*576}{LDF}')
else:
  for r in range(4):
    for ch in range(8):
        e(f'buffer_load_dword v{G_(r,ch)+1}, v6, s[12:15], 0 offen offset:{ch*576}{LDF}')
    if r < 3: e('v_add_u32 v6, 82944, v6')
stamp(7)
common()
e('s_lshl_b32 s29, s27, 14')
e(f's_add_u32 s29, s29, {WL}')
e('v_lshlrev_b32 v10, 6, v3')
e('v_lshl_add_u32 v10, v9, 5, v10')
e('v_add_u32 v10, s29, v10')
e('v_lshlrev_b32 v11, 4, v2')
e('v_add_u32 v11, s29, v11')
for h in range(2):
    e('v_lshrrev_b32 v4, 2, v2')
    e(f'v_add3_u32 v4, v4, s28, {16*h}')
    posdec(4, 5, 6, 7, 8, 9)
    e('v_mul_u32_u24 v4, 43, v8')
    e('v_lshrrev_b32 v4, 8, v4')
    e('v_mul_u32_u24 v5, 6, v4')
    e('v_sub_u32 v5, v8, v5')
    e('v_lshrrev_b32 v8, 1, v7')
    e('v_add_u32 v8, 8, v8')
    e('v_and_b32 v9, 1, v7')
    e('v_lshl_add_u32 v9, v9, 1, v5')
    e('v_subrev_u32 v9, 4, v9')
    e('v_cmp_le_u32 vcc, 4, v5')
    e('v_mul_u32_u24 v4, 24576, v4')
    e('v_lshrrev_b32 v14, 3, v6')
    e('v_cndmask_b32 v8, v7, v8, vcc')
    e('v_cndmask_b32 v9, v5, v9, vcc')
    e(f'v_mul_u32_u24 v14, {21*24576}, v14')
    e('v_bfe_u32 v15, v6, 2, 1')
    e('v_mul_u32_u24 v15, 12288, v15')
    e(f'v_add3_u32 v{12+h}, v4, v14, v15')
    e(f'v_lshl_add_u32 v{12+h}, v8, 10, v{12+h}')
    e(f'v_lshl_add_u32 v{12+h}, v9, 8, v{12+h}')
    e('v_and_b32 v4, 3, v6')
    e(f'v_lshl_add_u32 v{12+h}, v4, 6, v{12+h}')
    e('v_and_b32 v4, 3, v2')
    e(f'v_lshl_add_u32 v{12+h}, v4, 4, v{12+h}')
def wcoef(t):
    for r in range(4):
        assert abs(GS[2*t+1][r] - (1 if r % 2 == 0 else -1)*GS[2*t][r]) < 1e-12
        e(f'v_mul_f32 v{160+2*r}, {fh(GS[2*t][r])}, v14')
        e(f'v_mov_b32 v{161+2*r}, v{160+2*r}')
e(f's_mov_b32 s34, {WT_OFF}')
e('v_cmp_le_u32 vcc, 32, v2')
e(f'v_mov_b32 v14, {fh(-2*LOG2E)}')
e(f'v_mov_b32 v15, {fh(-LOG2E)}')
e('v_cndmask_b32 v14, v14, v15, vcc')
e('v_mov_b32 v15, v14')
wcoef(0)
stamp(8)
e('s_barrier')
stamp(1)
e('s_waitcnt vmcnt(0)')
stamp(2)
for k in range(32):
    e(f'v_lshlrev_b32 v{40+2*k}, 16, v{41+2*k}')
    e(f'v_and_b32 v{41+2*k}, s33, v{41+2*k}')
e('s_mov_b32 s53, 0')
lab('Lp_wloop')
for dw in range(4):
    for c2 in range(2):
        ch = 2*dw+c2
        E, O = 104+4*c2, 106+4*c2
        e(f'v_pk_mul_f32 {vp(E)}, {vp(160)}, {vp(G_(0,ch))}')
        e(f'v_pk_mul_f32 {vp(O)}, {vp(162)}, {vp(G_(1,ch))}')
        e(f'v_pk_fma_f32 {vp(E)}, {vp(164)}, {vp(G_(2,ch))}, {vp(E)}')
        e(f'v_pk_fma_f32 {vp(O)}, {vp(166)}, {vp(G_(3,ch))}, {vp(O)}')
        pkadd(112+4*c2, O, E)
        pkadd(114+4*c2, E, O, negb=True)
    for sgn in range(2):
        for n in range(2):
            e(f'v_cvt_pk_bf16_f32 v{120+8*sgn+4*n+dw}, v{112+2*sgn+n}, v{116+2*sgn+n}')
for sgn in range(2):
    for n in range(2):
        e(f'ds_write_b128 v10, {vr(120+8*sgn+4*n)} offset:{sgn*2048 + n*16}')
e('s_add_u32 s53, s53, 1')
e('s_waitcnt lgkmcnt(0)')
e('v_add_u32 v10, 4096, v10')
e('s_cmp_eq_u32 s53, 3')
e('s_cbranch_scc1 Lp_w3')
e('s_cmp_eq_u32 s53, 1')
e('s_cbranch_scc1 Lp_w1')
wcoef(2)
if opt['early']:
    e('s_waitcnt vmcnt(0)')
    e('s_barrier')
e('s_branch Lp_wloop')
lab('Lp_w1')
for k in range(4): e(f'ds_read_b128 {vr(136+4*k)}, v11 offset:{k*1024}')
for k in range(4):
    e(f's_waitcnt lgkmcnt({3-k})')
    e(f'buffer_store_dwordx4 {vr(136+4*k)}, v{12+k%2}, s[20:23], s34 offen sc1')
    if k % 2 == 1: e(f's_add_u32 s34, s34, {3*24576}')
wcoef(1)
if not opt['early']:
    e('s_waitcnt vmcnt(0)')
    e('s_barrier')
e('s_branch Lp_wloop')
lab('Lp_w3')
for ch in range(8): e(f'v_pk_mul_f32 {vp(G_(3,ch))}, {vp(G_(3,ch))}, v[14:15]')
for n in range(2):
    for dw in range(4):
        e(f'v_cvt_pk_bf16_f32 v{120+4*n+dw}, v{G_(3,2*dw)+n}, v{G_(3,2*dw+1)+n}')
    e(f'ds_write_b128 v10, {vr(120+4*n)} offset:{n*16}')
e('s_waitcnt lgkmcnt(0)')
for k in range(10):
    e(f'ds_read_b128 {vr(PK(k % 2, k//2))}, v11 offset:{4096 + k*1024}')
e(f'v_add_u32 v{PA(0)}, s34, v12')
e(f'v_add_u32 v{PA(1)}, s34, v13')
e(f's_mov_b32 s96, {3*24576}')
e(f's_mov_b32 s97, {3*24576}')
e('s_waitcnt lgkmcnt(0)')
lab('Lp_wx')
c('then x pass 2: wave 4: unit 8 (block 3) ; wave 5: units 4,5 (blocks 2,3)')
e('s_cmp_ge_u32 s2, 250')
e('s_cbranch_scc1 L_pdone')
xcoef2()
e('s_mov_b32 s30, 8')
e('s_cmp_eq_u32 s26, 4')
e('s_cbranch_scc1 Lp_x3')
e('s_mov_b32 s30, 4')
e('s_branch Lp_x23')
lab('Lp_wo')
e('s_waitcnt lgkmcnt(0)')
common()
e('s_sub_u32 s3, s2, 72')
e('s_cmp_ge_u32 s3, 45')
e('s_cbranch_scc1 Lp_wo2')
srd(12, 8, 9, 144*144*2)
e('s_mul_i32 s28, s3, 13108')
e('s_lshr_b32 s28, s28, 16')
e('s_mul_i32 s29, s28, 5')
e('s_sub_u32 s29, s3, s29')
e('v_and_b32 v7, 15, v2')
e('v_lshrrev_b32 v8, 4, v2')
e('s_cmp_eq_u32 s28, 8')
e('s_cselect_b32 s30, 1, 4')
e('s_cselect_b32 s34, 256, 0')
e('s_cselect_b32 s28, 0, s28')
e('s_lshl_b32 s28, s28, 1')
e('s_add_u32 s34, s34, s28')
e(f's_mul_i32 s29, s29, {32*288}')
e('s_add_u32 s34, s34, s29')
e('v_lshlrev_b32 v9, s30, v7')
e('v_mul_u32_u24 v14, 576, v8')
e('v_add3_u32 v14, v14, v9, s34')
for d in range(4):
    e(f'buffer_load_ushort v{40+2*d}, v14, s[12:15], 0 offen')
    e(f'buffer_load_ushort v{41+2*d}, v14, s[12:15], 0 offen offset:288')
    if d < 3: e('v_add_u32 v14, 2304, v14')
e('s_lshl_b32 s3, s3, 10')
e(f's_add_u32 s3, s3, {WO_OFF}')
e('v_lshlrev_b32 v1, 4, v2')
e('s_barrier')
e('s_waitcnt vmcnt(0)')
for d in range(4):
    e(f'v_lshl_or_b32 v{48+d}, v{41+2*d}, 16, v{40+2*d}')
e('buffer_store_dwordx4 v[48:51], v1, s[20:23], s3 offen sc1')
e('s_waitcnt vmcnt(0)')
e('s_barrier')
e('s_branch Lp_wx')
lab('Lp_wo2')
e('s_barrier')
e('s_barrier')
e('s_branch Lp_wx')

def M(t): return 12 + 4*t
def MD(t): return 48 + 4*t
def FR(k): return vr(84 + 4*k)
lab('L_pdone')
e('v_lshlrev_b32 v101, 4, v2')
e('v_min_u32 v36, 62, v2')
e('v_lshlrev_b32 v36, 5, v36')
e(f's_and_b32 s30, s2, {REP-1}')
e(f's_mul_i32 s30, s30, {RSTR}')
e('v_add_u32 v36, s30, v36')
e(f'v_mul_u32_u24 v12, {RSTR}, v2')
c('unit = base[xcd] + (id>>3)')
e('s_and_b32 s25, s2, 7')
e('s_lshr_b32 s24, s2, 3')
e('s_mul_i32 s27, s25, 31')
e('s_min_u32 s28, s25, 4')
e('s_add_u32 s27, s27, s28')
e('s_add_u32 s27, s27, s24')
e('s_mul_i32 s28, s27, 7282')
e('s_lshr_b32 s28, s28, 16')
e('s_mul_i32 s29, s28, 9')
e('s_sub_u32 s29, s27, s29')
e('s_and_b32 s24, s26, 3')
e('s_lshr_b32 s32, s24, 1')
e('s_and_b32 s33, s24, 1')
e('s_mul_i32 s34, s24, 7168')
e('s_mul_i32 s35, s24, 6144')
c('z soffset s62: (((g*2+rh)*9+gs)*18+J)*1024')
e('s_lshl_b32 s62, s28, 1')
e('s_add_u32 s62, s62, s32')
e(f's_mul_i32 s62, s62, {9*18*1024}')
e('s_lshl_b32 s63, s29, 1')
e('s_add_u32 s63, s63, s33')
e('s_lshl_b32 s63, s63, 10')
e('s_add_u32 s62, s62, s63')
e(f's_add_u32 s62, s62, {Z_OFF}')
if opt['gmap']:
    c('g = (b*7+gg)*2 + p')
    e('s_lshr_b32 s38, s28, 1')
    e('s_and_b32 s30, s28, 1')
    e('s_cmp_ge_u32 s38, 7')
    e('s_cselect_b32 s36, 7, 0')
    e('s_cselect_b32 s37, 2, 0')
    e('s_sub_u32 s38, s38, s36')
    e('s_add_u32 s30, s30, s37')
else:
    e('s_mul_i32 s30, s28, 9363')
    e('s_lshr_b32 s30, s30, 16')
    e('s_mul_i32 s38, s30, 7')
    e('s_sub_u32 s38, s28, s38')
e(f's_mul_i32 s36, s30, {21*XS}')
e('s_mul_i32 s37, s38, 27648')
e('s_add_u32 s36, s36, s37')
e('s_add_u32 s36, s36, s34')
e(f's_mul_i32 s37, s29, {21*24576}')
e('s_add_u32 s37, s37, s35')
e(f's_add_u32 s37, s37, {WT_OFF}')
c('last row group of a stream: do not fetch the never-written padding rows (KB 26 lanes >= 16, KB 27): v6, v7 = voffsets for those two chunks')
e('s_cmp_eq_u32 s38, 6')
e('s_cselect_b32 s60, 16, 64')
e('s_cselect_b32 s61, 0, 64')
e(f'v_mov_b32 v8, {OOB}')
e('v_cmp_gt_u32 vcc, s60, v2')
e('v_cmp_gt_u32 s[88:89], s61, v2')
e('s_nop 0')
e('v_cndmask_b32 v6, v8, v101, vcc')
e('v_cndmask_b32 v7, v8, v101, s[88:89]')
e('s_cmp_ge_u32 s26, 4')
e('s_cbranch_scc1 L_helper')
e('s_cmp_lg_u32 s26, 0')
e('s_cbranch_scc1 L_c13')
c('wave 0: wait for all A flags, then load the whole phase 0 tile')
if opt['agg']:
    e('s_cmp_lg_u32 s2, 0')
    e('s_cbranch_scc1 L_gow')
if opt['dly']: e(f's_sleep {opt["dly"]}')
poll(0, 'A')
if opt['agg']:
    c('WG 0 saw all A flags: release everybody through 8 go words')
    e('v_mul_u32_u24 v9, 4352, v2')
    e(f's_mov_b32 s30, {FLAG_OFF+GOF}')
    e('s_mov_b64 exec, 0xff')
    e('buffer_store_dwordx2 v[38:39], v9, s[20:23], s30 offen sc1')
    e('s_mov_b64 exec, -1')
    e('s_branch L_god')
    lab('L_gow')
    e('s_mul_i32 s30, s25, 4352')
    e(f's_add_u32 s30, s30, {FLAG_OFF+GOF}')
    e('s_mov_b32 s31, 0')
    e('s_mov_b64 exec, 1')
    lab('L_gol')
    e('buffer_load_dwordx2 v[24:25], v37, s[20:23], s30 offen sc1')
    e('s_add_u32 s31, s31, 1')
    e('s_cmp_gt_u32 s31, 800000')
    e('s_cbranch_scc1 L_gox')
    e('s_waitcnt vmcnt(0)')
    e('v_cmp_ne_u64 vcc, s[92:93], v[24:25]')
    e('s_cbranch_vccz L_gox')
    e(f's_sleep {opt["gslp"]}')
    e('s_branch L_gol')
    lab('L_gox')
    e('s_mov_b64 exec, -1')
    lab('L_god')
stamp(3)
for k in range(52):
    if k % 4 == 0:
        e(f's_mov_b32 m0, {k*1024}')
        e(f's_add_u32 s30, s36, {k*1024}' if k < 28 else f's_add_u32 s30, s37, {(k-28)*1024}')
    e(f'buffer_load_dwordx4 v{ {26: 6, 27: 7}.get(k, 101) }, s[20:23], s30 offen offset:{(k%4)*1024} sc1 lds')
lab('L_c13')
e('s_barrier')
if opt['prio']: e(f's_setprio {opt["prio"]}')
e('v_and_b32 v124, 15, v2')
e('v_lshrrev_b32 v125, 4, v2')
e('v_mul_u32_u24 v126, 864, v124')
e('s_mul_i32 s38, s32, 13824')
e('v_add_u32 v126, s38, v126')
e('v_lshl_add_u32 v2, v125, 4, v126')
e('v_lshrrev_b32 v127, 1, v125')
e('v_mul_u32_u24 v127, 96, v127')
e('v_sub_u32 v127, v126, v127')
e('v_and_b32 v128, 1, v125')
e('v_lshl_add_u32 v127, v128, 4, v127')
e('v_add_u32 v5, 160, v127')
e('s_mul_i32 s38, s33, 12288')
e('s_add_u32 s38, s38, 28672')
e('v_add_u32 v8, s38, v101')
for s in (1, 2):
    e(f'v_add_u32 v{2+s}, {s*SLOT}, v2')
    e(f'v_add_u32 v{5+s}, {s*SLOT}, v5')
    e(f'v_add_u32 v{8+s}, {s*SLOT}, v8')
if opt['sn32']: e('v_lshrrev_b32 v101, 2, v101')
e(f's_add_u32 s38, s34, {2*SLOT}')
e('v_add_u32 v1, s38, v101')
e(f's_add_u32 s38, s35, {2*SLOT+28672}')
e('v_add_u32 v11, s38, v101')
for r in range(48, 84): e(f'v_mov_b32 v{r}, 0')

frags = []; mf = []
if opt['mord']:
    for t in range(9):
        for kk in range(7, -1, -1): mf.append((t, ('W', kk), ('X', t-kk)))
    for t in (range(8, -1, -1) if opt['tdesc'] else range(9)):
        for pp in (range(4) if opt['tdesc'] else range(3, -1, -1)): mf.append((t, ('WT', pp), ('XT', t-2*pp)))
else:
  for tp in range(-7, 9):
    for kk in range(min(7, 8-tp), max(0, -tp)-1, -1):
        mf.append((tp+kk, ('W', kk), ('X', tp)))
  for tp in range(-6, 9):
    for pp in range(3, -1, -1):
        if 0 <= tp+2*pp <= 8: mf.append((tp+2*pp, ('WT', pp), ('XT', tp)))
assert len(mf) == 108
fu = {}
for s, (t, wk, xk) in enumerate(mf):
    for k in (xk, wk):
        if k not in fu: fu[k] = s; frags.append(k)
assert len(frags) == 43
fidx = {k: i for i, k in enumerate(frags)}
LA = opt['LA']; BAR = 108 - LA; ELAST = BAR - 6
iss = [(-LA + (k*(ELAST+LA))//42) for k in range(43)]
if opt['mord']:
    iss = [-LA + (k*(LA-2))//16 for k in range(17)] + [1 + (k*(ELAST-1))//25 for k in range(26)]
    lu = {}
    for s, (t, wk, xk) in enumerate(mf): lu[wk] = s; lu[xk] = s
    for k in range(43): assert iss[k] + 108 > lu[frags[k]] + 1, (k, iss[k], lu[frags[k]])
for k in range(43): assert iss[k] <= fu[frags[k]] - 8, (k, iss[k], fu[frags[k]])
def rd(k, slot):
    kind, i = frags[k]
    if kind == 'X': return f'ds_read_b128 {FR(k)}, v{2+slot} offset:{(i+8)*96}'
    if kind == 'XT': return f'ds_read_b128 {FR(k)}, v{5+slot} offset:{(i+7)*96}'
    if kind == 'W': return f'ds_read_b128 {FR(k)}, v{8+slot} offset:{i*1024}'
    return f'ds_read_b128 {FR(k)}, v{8+slot} offset:{(8+i)*1024}'
npre = sum(1 for x in iss if x < 0)
first_touch = {}; last_touch = {}
for s, (t, wk, xk) in enumerate(mf):
    first_touch.setdefault(t, s); last_touch[t] = s
def snapw(t):
    if opt['sn32']:
        t, r = divmod(t, 4)
        return f'ds_write_b32 v1, v{MD(t)+r} offset:{t*1024+r*256}' if t < 7 else f'ds_write_b32 v11, v{MD(t)+r} offset:{(t-7)*1024+r*256}'
    return f'ds_write_b128 v1, {vr(MD(t))} offset:{t*1024}' if t < 7 else f'ds_write_b128 v11, {vr(MD(t))} offset:{(t-7)*1024}'
QS = opt['QS']
ext = [[] for _ in range(324)]
for ph in range(3):
    for k in range(43):
        ext[(ph*108 + iss[k]) % 324].append(('rd', k, ph))
used = [len(x) for x in ext]
lastw = 0
if opt['sn32']:
    for n in range(36):
        pos = max(216 + last_touch[n//4] + 8, lastw + 1)
        lastw = pos
        assert pos >= 216 + BAR and pos < 324 + QS - 2, pos
        ext[pos % 324].append(('wr', n, 0))
else:
  for t in sorted(range(9), key=lambda t: last_touch[t]):
    pos = max(216 + last_touch[t] + 8, lastw + opt['wsp'], 216 + BAR + 1)
    while used[pos % 324]: pos += 1
    lastw = pos
    used[pos % 324] += 1
    assert pos >= 216 + BAR and pos < 324 + QS - 2
    ext[pos % 324].append(('wr', t, 0))
e('s_waitcnt vmcnt(0)')
stamp(4)
e('s_barrier')
stamp(5)
if opt['dbgst']: e('s_memtime s[90:91]')
for k in range(npre): e(rd(k, 0))
e('s_mov_b32 s39, 7')
e('s_waitcnt lgkmcnt(0)')
out.append('.p2align 6')
for _ in range(opt['pad']): e('s_nop 0')
lab('L_loop')
seq = 0; rseq = {}; covered = -1; wseq = -1; sslot = []
for it in range(2):
    emit = e if it == 1 else (lambda s: None)
    for ph in range(3):
        if it == 1: c(f'======== phase {ph}')
        for s, (t, wk, xk) in enumerate(mf):
            if s == BAR:
                emit('s_waitcnt lgkmcnt(0)')
                emit('s_barrier')
                covered = seq - 1
            if ph == 0 and s == QS:
                if wseq > covered:
                    emit(f's_waitcnt lgkmcnt({min(15, seq-1-wseq)})')
                    covered = max(covered, seq - 1 - min(15, seq-1-wseq))
                emit('s_barrier')
            need = max(rseq.get((ph, fidx[wk]), -1), rseq.get((ph, fidx[xk]), -1))
            if need > covered:
                now = it*324 + ph*108 + s
                recent = sum(1 for x in sslot if x >= now - opt['lat'])
                allow = min(seq - 1 - need, recent, 15)
                emit(f's_waitcnt lgkmcnt({allow})')
                covered = seq - 1 - allow
            cin = vr(MD(t)) if (ph == 0 and first_touch[t] == s) else vr(M(t))
            dst = vr(MD(t)) if (ph == 2 and last_touch[t] == s) else vr(M(t))
            emit(f'v_mfma_f32_16x16x32_bf16 {dst}, {FR(fidx[wk])}, {FR(fidx[xk])}, {cin}')
            for x in ext[ph*108+s]:
                if x[0] == 'rd':
                    emit(rd(x[1], x[2])); rseq[(x[2], x[1])] = seq; seq += 1; sslot.append(it*324 + ph*108 + s)
                else:
                    emit(snapw(x[1])); wseq = seq; seq += 1; sslot.append(it*324 + ph*108 + s)
            if ph == 2 and s == 104: emit('s_sub_u32 s39, s39, 1')
            if ph == 2 and s == 105: emit('s_cmp_lg_u32 s39, 0')
e('s_cbranch_scc1 L_loop')
stamp(6)
if opt['dbgst']: e('s_memtime s[94:95]')
c('---- compute-wave epilogue: gate y3 = MD')
e('s_waitcnt lgkmcnt(0)')
def gate_consts():
    e(f's_mov_b32 s46, {fh(-0.6931471805599453)}')
    e(f's_mov_b32 s42, {fh(2*LOG2E*2**-12)}')
    e('s_mov_b32 s43, 0x41f00000')
def gate(a, r, dst, sp):
    L = []
    L.append(f'v_min_f32 v{r}, s43, v{a}')
    L.append(f'v_min_f32 v{r+1}, s43, v{a+1}')
    L.append(f'v_exp_f32 v{a+2}, v{a+2}')
    L.append(f'v_exp_f32 v{a+3}, v{a+3}')
    L.append(f'v_exp_f32 v{r}, v{r}')
    L.append(f'v_exp_f32 v{r+1}, v{r+1}')
    if opt['smallfix']:
        L.append(f'v_cmp_gt_f32 s[{sp}:{sp+1}], s42, abs(v{a})')
        L.append(f'v_cmp_gt_f32 s[{sp+2}:{sp+3}], s42, abs(v{a+1})')
    L.append(f'v_add_f32 v{r+2}, 1.0, v{r}')
    L.append(f'v_add_f32 v{r+3}, 1.0, v{r+1}')
    if opt['smallfix']:
        L.append(f'v_mul_f32 v{a}, s46, v{a}')
        L.append(f'v_mul_f32 v{a+1}, s46, v{a+1}')
    L.append(f'v_fmac_f32 v{r+2}, v{r+2}, v{a+2}')
    L.append(f'v_fmac_f32 v{r+3}, v{r+3}, v{a+3}')
    L.append(f'v_sub_f32 v{r}, 1.0, v{r}')
    L.append(f'v_sub_f32 v{r+1}, 1.0, v{r+1}')
    L.append(f'v_rcp_f32 v{r+2}, v{r+2}')
    L.append(f'v_rcp_f32 v{r+3}, v{r+3}')
    if opt['smallfix']:
        L.append(f'v_cndmask_b32 v{r}, v{r}, v{a}, s[{sp}:{sp+1}]')
        L.append(f'v_cndmask_b32 v{r+1}, v{r+1}, v{a+1}, s[{sp+2}:{sp+3}]')
    L.append(f'v_mul_f32 v{r}, v{r}, v{r+2}')
    L.append(f'v_mul_f32 v{r+1}, v{r+1}, v{r+3}')
    L.append(f'v_cvt_pk_bf16_f32 v{dst}, v{r}, v{r+1}')
    return L
ool = []
def gate_check(As, tm, name):
    for k, a in enumerate(As):
        if k == 0:
            e(f'v_min_f32 v{tm}, abs(v{a}), abs(v{a+1})')
            e(f'v_max_f32 v{tm+1}, v{a}, v{a+1}')
        else:
            e(f'v_min3_f32 v{tm}, abs(v{a}), abs(v{a+1}), v{tm}')
            e(f'v_max3_f32 v{tm+1}, v{a}, v{a+1}, v{tm+1}')
    e(f'v_cmp_gt_f32 s[44:45], s42, v{tm}')
    e(f'v_cmp_lt_f32 vcc, s43, v{tm+1}')
    e(f's_cbranch_vccnz L_cl{name}')
    lab(f'L_clr{name}')
    L = [f'L_cl{name}:']
    for a in As:
        L += [f'    v_min_f32 v{a}, s43, v{a}', f'    v_min_f32 v{a+1}, s43, v{a+1}']
    L.append(f'    s_branch L_clr{name}')
    ool.extend(L)
def gate_fast(a, r, dst, name):
    e(f'v_exp_f32 v{r}, v{a}')
    e(f'v_exp_f32 v{r+1}, v{a+1}')
    e(f'v_exp_f32 v{a+2}, v{a+2}')
    e(f'v_exp_f32 v{a+3}, v{a+3}')
    e(f'v_add_f32 v{r+2}, 1.0, v{r}')
    e(f'v_add_f32 v{r+3}, 1.0, v{r+1}')
    e('s_cmp_lg_u64 s[44:45], 0')
    e(f'v_fmac_f32 v{r+2}, v{r+2}, v{a+2}')
    e(f'v_fmac_f32 v{r+3}, v{r+3}, v{a+3}')
    e(f'v_sub_f32 v{r}, 1.0, v{r}')
    e(f'v_sub_f32 v{r+1}, 1.0, v{r+1}')
    e(f'v_rcp_f32 v{r+2}, v{r+2}')
    e(f'v_rcp_f32 v{r+3}, v{r+3}')
    e(f's_cbranch_scc1 L_sm{name}')
    lab(f'L_smr{name}')
    e(f'v_mul_f32 v{r}, v{r}, v{r+2}')
    e(f'v_mul_f32 v{r+1}, v{r+1}, v{r+3}')
    e(f'v_cvt_pk_bf16_f32 v{dst}, v{r}, v{r+1}')
    ool.extend([f'L_sm{name}:',
        f'    v_cmp_gt_f32 s[48:49], s42, abs(v{a})',
        f'    v_cmp_gt_f32 s[50:51], s42, abs(v{a+1})',
        f'    v_mul_f32 v{a}, s46, v{a}',
        f'    v_mul_f32 v{a+1}, s46, v{a+1}',
        f'    v_cndmask_b32 v{r}, v{r}, v{a}, s[48:49]',
        f'    v_cndmask_b32 v{r+1}, v{r+1}, v{a+1}, s[50:51]',
        f'    s_branch L_smr{name}'])
gate_consts()
e('v_and_b32 v100, 63, v0')
e('v_lshlrev_b32 v101, 4, v100')
e(f's_add_u32 s63, s62, {7*18432}')
for t in range(9):
    if opt['fast']:
        if t % 3 == 0: gate_check([MD(t), MD(t+1), MD(t+2)], 102, f'c{t}')
        gate_fast(MD(t), 104 + 4*(t % 2), 112 + t, f'c{t}')
    else:
        for x in gate(MD(t), 104 + 4*(t % 2), 112 + t, 48): e(x)
    if t in (3, 7):
        e(f'buffer_store_dwordx4 v[{112+t-3}:{112+t}], v101, s[20:23], s63 offen sc1')
        e('s_add_u32 s63, s63, 18432')
e(f's_add_u32 s63, s62, {6*18432}')
e('buffer_store_dword v120, v101, s[20:23], s63 offen offset:12 sc1')
e('s_branch L_fin')
def hbar():
    if opt['bst']:
        e('s_memtime s[64:65]')
        e('s_barrier')
        e('s_memtime s[66:67]')
        e('s_waitcnt lgkmcnt(0)')
        e('s_mov_b32 m0, s68'); e('s_nop 0')
        e('v_writelane_b32 v14, s64, m0')
        e('v_writelane_b32 v15, s66, m0')
        e('s_add_u32 s68, s68, 1')
    else: e('s_barrier')
lab('L_helper')
if opt['bst']: e('s_mov_b32 s68, 0')
def Y(i, t): return 40 + 4*(i*9+t)
def SN(t): return 148 + 4*t
e('v_mov_b32 v3, v101')
e('v_add_u32 v13, 4096, v101')
e('v_add_u32 v6, 4096, v6')
e('v_add_u32 v7, 4096, v7')
e('s_cmp_eq_u32 s26, 7')
e('s_cselect_b64 vcc, -1, 0')
e('v_cndmask_b32 v6, v13, v6, vcc')
e('v_cndmask_b32 v7, v13, v7, vcc')
if opt['sn32']: e('v_lshrrev_b32 v101, 2, v101')
e(f's_add_u32 s38, s34, {2*SLOT}')
e('v_add_u32 v4, s38, v101')
e(f's_add_u32 s38, s35, {2*SLOT+28672}')
e('v_add_u32 v5, s38, v101')
e('s_cmp_eq_u32 s26, 4')
e('s_cbranch_scc1 L_h4')
e(f'v_mov_b32 v36, {OOB}')
e(f'v_mov_b32 v12, {OOB}')
e('s_branch L_h5')
lab('L_h4')
e('s_mov_b32 s31, 0')
gettag('h')
lab('L_h5')
e('v_mov_b32 v38, s92')
e('v_mov_b32 v39, s93')
def dma_list(slot):
    L = []
    for k in range(7):
        pre = [f's_add_u32 m0, s34, {slot*SLOT + (k//4)*4096}', 's_nop 0']
        L.append(pre + [f'buffer_load_dwordx4 v{(3,3,3,3,13,6,7)[k]}, s[20:23], s36 offen offset:{(k%4)*1024} sc1 lds'] + ([f's_add_u32 s36, s36, {XS}'] if k == 6 else []))
    for k in range(6):
        pre = [f's_add_u32 m0, s35, {slot*SLOT + 28672 + (k//4)*4096}', 's_nop 0']
        L.append(pre + [f'buffer_load_dwordx4 v{3 if k < 4 else 13}, s[20:23], s37 offen offset:{(k%4)*1024} sc1 lds'] + (['s_add_u32 s37, s37, 24576'] if k == 5 else []))
    return L
def pst(b, pm):
    return [f'buffer_store_dwordx4 {vr(PK(b,pm))}, v{PA(b)}, s[20:23], 0 offen sc1', f'v_add_u32 v{PA(b)}, s{96+b}, v{PA(b)}']
def weave(dl, sl):
    res = []; n = len(sl); m = len(dl)
    for i in range(m):
        res.append(dl[i])
        for k in range((i*n)//m, ((i+1)*n)//m): res.append(sl[k])
    return res
def mix(dl, vl):
    n = len(dl)
    for i, d in enumerate(dl):
        for x in d: e(x)
        for x in vl[(i*len(vl))//n:((i+1)*len(vl))//n]: e(x)
    if n == 0:
        for x in vl: e(x)
def nvm(dl, after):
    return len(dl) - 1 - after
def snapr():
    if opt['sn32']:
        for t in range(9):
            for h in range(2):
                o = (t if t < 7 else t-7)*4 + 2*h
                e(f'ds_read2st64_b32 {vp(SN(t)+2*h)}, v{4 if t < 7 else 5} offset0:{o} offset1:{o+1}')
            if t == 6: e('s_waitcnt lgkmcnt(4)')
        e('s_waitcnt lgkmcnt(0)')
        return
    for t in range(9):
        e(f'ds_read_b128 {vr(SN(t))}, v4 offset:{t*1024}' if t < 7 else f'ds_read_b128 {vr(SN(t))}, v5 offset:{(t-7)*1024}')
    e('s_waitcnt lgkmcnt(0)')
FM = [f'v_fmac_f32 v{Y(i,t)+r}, s{40+i}, v{SN(t)+r}' for t in range(9) for i in range(3) for r in range(4)]
def FMm(m):
    L = []
    for t in range(9):
        for i in range(3):
            if DCH[i][m] == 0: continue
            first = all(DCH[i][mm] == 0 for mm in range(m))
            for r in range(4): L.append(f'{"v_mul_f32" if first else "v_fmac_f32"} v{Y(i,t)+r}, s{40+i}, v{SN(t)+r}')
    return L
e(f's_add_u32 s36, s36, {XS}')
e('s_add_u32 s37, s37, 24576')
e('s_barrier')
mix(dma_list(1), [])
if opt['b1e'] == 1: mix([pst(b, 0) for b in range(4)], [])
c('coefficient table: s40.. = 3 x 6, consumed from the front')
for m in range(6):
    for i in range(3): e(f's_mov_b32 s{40+3*m+i}, {fh(DCH[i][m])}')
hbar()
if opt['b1e'] == 2: mix([pst(b, 0) for b in range(4)], [])
ND0 = opt['nd0']
def only4(name, fn):
    e('s_cmp_lg_u32 s26, 4')
    e(f's_cbranch_scc1 L_o4{name}')
    fn()
    lab(f'L_o4{name}')
def hflag(off):
    e('s_lshl_b32 s30, s2, 3')
    e(f's_add_u32 s30, s30, {FLAG_OFF+off}')
    e(f's_mov_b64 exec, {(1<<REP)-1}')
    e('buffer_store_dwordx2 v[38:39], v12, s[20:23], s30 offen sc1')
    e('s_mov_b64 exec, -1')
def hiter(name, fm, sa=(), sc_=(), flag0=None, flag1=None, chk=None):
    if chk is not None: poll_issue(chk)
    for g_ in sa:
        for x in g_: e(x)
    hbar()
    if fm: snapr()
    D2 = dma_list(2)
    mix(D2[:ND0], [])
    e(f's_waitcnt vmcnt({ND0 + len(sa)})')
    if chk is not None:
        def f():
            poll_check()
            e(f's_cbranch_scc0 L_o4c{name}')
            poll(chk, name, opt['fslp'])
        only4('c'+name, f)
    hbar()
    if flag0 is not None: hflag(flag0)
    mix(D2[ND0:] + dma_list(0), fm[:40])
    e('s_waitcnt vmcnt(13)')
    hbar()
    if flag1 is not None: hflag(flag1)
    mix(list(sc_) + dma_list(1), fm[40:])
    if fm:
        for k in range(15): e(f's_mov_b32 s{40+k}, s{43+k}')
    e(f's_waitcnt vmcnt({13 + len(sc_) + (1 if flag1 is not None else 0)})')
    hbar()
ST = [pst(b, pm) for pm in range(5) for b in range(4)]
if opt['b1e']: hiter('0', [], sc_=ST[4:8], flag0=1*FA)
else: hiter('0', [], sa=ST[0:4], sc_=ST[4:8], flag1=1*FA)
hiter('1', FMm(0), sa=ST[8:12], sc_=ST[12:16], flag0=2*FA, flag1=3*FA, chk=1*FA)
hiter('2', FMm(1), sa=ST[16:20], flag1=4*FA, chk=2*FA)
hiter('3', FMm(2), chk=3*FA)
hiter('4', FMm(3), chk=4*FA)
hiter('5', FMm(4))
c('---- last product')
if opt['sw'] == 4: stamp(6)
hbar()
snapr()
F0 = opt['f0']
D2 = dma_list(2)
mix(D2[:ND0], FM[:F0])
e(f's_waitcnt vmcnt({ND0})')
hbar()
WD = []
for k in range(12):
    WD.append([f's_add_u32 m0, s61, {(k//4)*4096}', 's_nop 0', f'buffer_load_dwordx4 v3, s[20:23], s60 offen offset:{(k%4)*1024} sc1 lds'] + (['s_add_u32 s60, s60, 4096'] if k % 4 == 3 else []))
e('s_mul_i32 s61, s24, 12288')
e(f's_add_u32 s60, s61, {WO_OFF}')
mix(D2[ND0:] + WD, FM[F0:])
gate_consts()
e('s_mov_b32 s63, s62')
nst = [0]
def hgate(n0, n1):
    for n in range(n0, n1):
        t, i = divmod(n, 3)
        if opt['fast']:
            if i == 0: gate_check([Y(0,t), Y(1,t), Y(2,t)], 192, f'h{n}')
            gate_fast(Y(i, t), 184 + 4*(n % 2), 200 + n, f'h{n}')
        else:
            for x in gate(Y(i, t), 184 + 4*(n % 2), 200 + n, 48): e(x)
        if n % 4 == 3:
            e(f'buffer_store_dwordx4 v[{200+n-3}:{200+n}], v3, s[20:23], s63 offen sc1')
            e('s_add_u32 s63, s63, 18432'); nst[0] += 1
        if n == 26:
            e('buffer_store_dwordx3 v[224:226], v3, s[20:23], s63 offen sc1'); nst[0] += 1
g1 = opt['g1']; g2 = min(27, g1 + opt['g2'])
hgate(0, g1)
e(f's_waitcnt vmcnt({nst[0]+12})')
hbar()
hgate(g1, g2)
hbar()
hgate(g2, 27)
if opt['bst']:
    e('s_memtime s[64:65]')
    e('s_waitcnt lgkmcnt(0)')
    e('s_mov_b32 m0, s68'); e('s_nop 0')
    e('v_writelane_b32 v14, s64, m0')
    e('v_writelane_b32 v15, s64, m0')
    e('s_cmp_lg_u32 s26, 4')
    e('s_cbranch_scc1 L_fin')
    e('s_mov_b32 s22, 0x10000000')
    e('s_lshl_b32 s33, s2, 9')
    e(f's_add_u32 s33, s33, {STAMP_OFF + (128<<10)*4}')
    e('v_lshrrev_b32 v1, 1, v3')
    e('buffer_store_dwordx2 v[14:15], v1, s[20:23], s33 offen')
lab('L_fin')
e('s_setprio 0')
e('s_load_dwordx2 s[6:7], s[0:1], 24')
if not opt['es']: stamp(7)
e('v_and_b32 v2, 63, v0')
e('v_lshlrev_b32 v3, 4, v2')
e('v_mov_b32 v37, 0')
e('s_lshl_b32 s40, s27, 1')
e('s_lshr_b32 s41, s26, 2')
e('s_add_u32 s40, s40, s41')
e('s_mul_i32 s30, s40, 7282')
e('s_lshr_b32 s30, s30, 16')
e('s_mul_i32 s31, s30, 9')
e('s_sub_u32 s31, s40, s31')
if opt['gmap']:
    e('s_lshr_b32 s32, s30, 2')
    e('s_bfe_u32 s38, s30, 0x10001')
    e('s_and_b32 s33, s30, 1')
    e('s_cmp_ge_u32 s32, 7')
    e('s_cselect_b32 s37, 4608000, 0')
    e('s_cselect_b32 s36, 7, 0')
    e('s_sub_u32 s32, s32, s36')
    e('s_lshl_b32 s32, s32, 1')
    e('s_add_u32 s33, s33, s32')
else:
    e('s_mul_i32 s32, s30, 4682')
    e('s_lshr_b32 s32, s32, 16')
    e('s_mul_i32 s33, s32, 14')
    e('s_sub_u32 s33, s30, s33')
    e('s_lshr_b32 s37, s32, 1')
    e('s_and_b32 s38, s32, 1')
    e('s_mul_i32 s37, s37, 4608000')
e('s_waitcnt lgkmcnt(0)')
e('s_add_u32 s6, s6, s37'); e('s_addc_u32 s7, s7, 0')
srd(16, 6, 7, 4608000)
e('s_mul_i32 s39, s33, 1152')
e('s_add_u32 s39, s39, s38')
e('s_add_u32 s39, s39, 6')
e('s_lshl_b32 s45, s31, 2')
e('s_add_u32 s45, s45, s24')
e('s_mul_i32 s42, s45, 171')
e('s_lshr_b32 s42, s42, 9')
e('s_mul_i32 s43, s42, 3')
e('s_sub_u32 s43, s45, s43')
e('s_sub_u32 s44, s45, 28')
e('s_cmp_ge_u32 s45, 27')
e('s_cselect_b32 s42, s44, s42')
e('s_cselect_b32 s43, 3, s43')
e('s_cmp_eq_u32 s45, 27')
e('s_cselect_b32 s42, 8, s42')
e('s_lshl_b32 s42, s42, 3')
e('s_lshl_b32 s43, s43, 1')
e('s_add_u32 s42, s42, s39')
e('s_sub_u32 s42, s42, s43')
e('s_mul_i32 s45, s42, 288')
e('v_lshrrev_b32 v7, 4, v2')
e(f'v_mul_u32_u24 v7, {4*72*288}, v7')
e('v_add_u32 v7, s45, v7')
e('v_and_b32 v8, 15, v2')
e('v_lshl_add_u32 v11, v8, 1, v7')
e('v_lshl_add_u32 v10, v8, 4, v7')
e('s_mul_i32 s46, s27, 36864')
e('s_lshl_b32 s47, s26, 10')
e('s_add_u32 s46, s46, s47')
e(f's_add_u32 s46, s46, {Z_OFF}')
e('s_mul_i32 s48, s41, 18432')
e('s_lshl_b32 s49, s24, 2')
e('s_add_u32 s48, s48, s49')
e(f's_add_u32 s48, s48, {SLOT}')
e('v_add_u32 v4, s48, v3')
e('v_mov_b32 v34, 0')
e('v_mov_b32 v35, 0')
e('s_waitcnt vmcnt(0)')
e('s_barrier')
if not opt['es']: stamp(8)
def bf(f): return vr(76 + 4*f)
def preB():
    for f in range(45):
        e(f'ds_read_b128 {bf(f)}, v3 offset:{f*1024}')
        if f % 12 == 11: e('s_waitcnt lgkmcnt(4)')
e('s_cmp_lg_u32 s26, 4')
e('s_cbranch_scc1 L_e1b')
e('s_lshl_b32 s50, s28, 7')
e(f's_add_u32 s50, s50, {FLAG_OFF+ZFL}')
setflag(['s_lshl_b32 s30, s29, 3', 's_add_u32 s30, s30, s50'])
lab('L_e1b')
preB()
e('s_cmp_lg_u32 s26, 4')
e('s_cbranch_scc1 L_e2')
e('v_min_u32 v5, 8, v2')
e('v_lshlrev_b32 v5, 3, v5')
e('s_mov_b32 s51, 0')
lab('L_zpoll')
e('buffer_load_dwordx2 v[38:39], v5, s[20:23], s50 offen sc1')
e('s_add_u32 s51, s51, 1')
e('s_cmp_gt_u32 s51, 400000')
e('s_cbranch_scc1 L_e2')
e('s_waitcnt vmcnt(0)')
e('v_cmp_ne_u64 vcc, s[92:93], v[38:39]')
e('s_cbranch_vccz L_e2')
e('s_sleep 1')
e('s_branch L_zpoll')
lab('L_e2')
e('s_barrier')
stamp(9)
for i in range(5):
    if i == 4:
        e('s_cmp_ge_u32 s26, 4')
        e('s_cbranch_scc1 L_e3')
    e(f's_add_u32 m0, s47, {SLOT + i*8192}')
    e('s_nop 0')
    e('buffer_load_dwordx4 v3, s[20:23], s46 offen sc1 lds')
    if i < 4: e('s_add_u32 s46, s46, 8192')
lab('L_e3')
e('s_waitcnt vmcnt(0) lgkmcnt(0)')
e('s_barrier')
stamp(10)
if opt['stamps']: e('s_waitcnt lgkmcnt(0)')
for J in range(14): e(f'ds_read_b32 v{16+J}, v4 offset:{J*1024}')
for ks in range(5):
    if ks == 0: e('s_waitcnt lgkmcnt(10)')
    if ks == 1: e('s_waitcnt lgkmcnt(10)')
    if ks == 2: e('s_waitcnt lgkmcnt(6)')
    if ks == 3: e('s_waitcnt lgkmcnt(2)')
    if ks == 4: e('s_waitcnt lgkmcnt(0)')
    for T in range(9):
        r = 40 + 4*T
        cin = '0' if ks == 0 else vr(r)
        e(f'v_mfma_f32_16x16x32_bf16 {vr(r)}, v[{16+4*ks}:{16+4*ks+3}], {bf(T*5+ks)}, {cin}')
        if ks == 0 and T < 4: e(f'ds_read_b32 v{30+T}, v4 offset:{(14+T)*1024}')
e('s_nop 7')
e('s_nop 1')
if opt['trip']:
    e('s_memrealtime s[66:67]')
    e('s_waitcnt lgkmcnt(0)')
    e('s_sub_u32 s66, s66, s64')
    e(f's_sub_u32 s66, s66, {opt["trip"]}')
    e(f's_cmp_lt_u32 s66, {opt["tlo"] - opt["trip"]}')
    e('s_cselect_b32 s66, 1.0, 0')
    e('s_cmp_eq_u32 s2, 100')
    e('s_cselect_b32 s66, s66, 0')
    e('v_add_f32 v40, s66, v40')
for r in range(4):
    d = 140 + 6*r
    A = lambda T: 40 + 4*T + r
    for h in range(4): e(f'v_cvt_pk_bf16_f32 v{d+h}, v{A(2*h)}, v{A(2*h+1)}')
    e(f'v_cvt_pk_bf16_f32 v{d+4}, v{A(8)}, v{A(8)}')
    e(f'buffer_store_dwordx4 v[{d}:{d+3}], v10, s[16:19], 0 offen{OF[opt["of"]]}')
    e(f'buffer_store_short v{d+4}, v11, s[16:19], 0 offen offset:256{OF[opt["of2"]]}')
    if r < 3:
        e(f'v_add_u32 v10, {72*288}, v10')
        e(f'v_add_u32 v11, {72*288}, v11')
if opt['stamps']:
    e('s_waitcnt vmcnt(0)')
    stamp(11)
    e('s_waitcnt lgkmcnt(0)')
    e(f's_cmp_lg_u32 s26, {opt["sw"]}')
    e('s_cbranch_scc1 L_end')
    if opt['dbgst']:
        e(f's_cmp_lg_u32 s2, {opt["dbgst"]}')
        e('s_cbranch_scc1 L_end')
        e('s_load_dwordx2 s[56:57], s[0:1], 32')
        e('s_waitcnt lgkmcnt(0)')
        srd(16, 56, 57, 256)
        e('v_mov_b32 v1, 0')
        for i in range(1, 12):
            e(f's_sub_u32 s33, s{64+2*i}, s64')
            e('v_mov_b32 v4, s33')
            e(f'buffer_store_dword v4, v1, s[16:19], 0 offen offset:{4+4*i}')
        e('s_sub_u32 s33, s94, s90')
        e('v_mov_b32 v4, s33')
        e('buffer_store_dword v4, v1, s[16:19], 0 offen offset:56')
        e('s_branch L_end')
    e('s_mov_b32 s22, 0x10000000')
    e('s_lshl_b32 s33, s2, 7')
    e(f's_add_u32 s33, s33, {STAMP_OFF}')
    e('v_mov_b32 v1, s33')
    for i in range(6):
        for k in range(4): e(f'v_mov_b32 v{4+k}, s{64+4*i+k}')
        e(f'buffer_store_dwordx4 v[4:7], v1, s[20:23], 0 offen offset:{16*i}')
        e('s_nop 1')
lab('L_end')
e('s_endpgm')
out.extend(ool)
tail = f"""
.section .rodata,"a"
.p2align 6
.amdhsa_kernel {NAME}_kernel
  .amdhsa_next_free_vgpr 256
  .amdhsa_next_free_sgpr 100
  .amdhsa_accum_offset 256
  .amdhsa_group_segment_fixed_size 0
  .amdhsa_kernarg_size 48
  .amdhsa_user_sgpr_count 2
  .amdhsa_user_sgpr_kernarg_segment_ptr 1
  .amdhsa_system_sgpr_workgroup_id_x 1
.end_amdhsa_kernel
"""
open(sys.argv[1], 'w').write(hdr + '\n'.join(out) + '\n' + tail)
```

```python
import sys, struct
import numpy as np
from f44 import matrices, PTS
NAME = 'standalone__autoregressive_conv_wavenet__speech'
opt = dict(stamps=0, LA=26, smallfix=1, ldf=0, QS=28, prio=1, g1=5, g2=7, bst=0, nd0=7, wsp=5, f0=30, slp=1, cpf=3, sw=4, dly=0, pf=0, early=1, dbgst=0, rep=1, rstr=4352, pre=0, shr=1, agg=1, gslp=2, es=0, word=1, skx=0, skw=0, of=0, of2=0, gmap=1, trip=0, tlo=0, fast=0, sn32=0, lat=9, b1e=2, fslp=6, pad=0, mord=1, tdesc=0, tr=0, x1=24, full=1, fl=0, wso=0)
for a in sys.argv[2:]:
    k, v = a.split('='); assert k in opt, k; opt[k] = int(v)
out = []
def e(s): out.append('    ' + s)
def lab(s): out.append(s + ':')
def c(s): out.append('    ; ' + s)
def fh(x): return '0x%08x' % struct.unpack('<I', struct.pack('<f', float(x)))[0]
AT, G, BT = matrices()
GS = G.copy()
for m in range(6): GS[m] *= PTS[m]**3
CH = np.zeros((3, 7))
for i in range(3):
    for m in range(6): CH[i][m] = PTS[m]**(i-3)
DCH = CH[:, :6] - CH[:, 1:7]
LOG2E = 1.4426950408889634
LDF = {0: '', 1: ' nt'}[opt['ldf']]
OF = {0:'', 1:' nt', 2:' sc1', 3:' sc0 sc1'}
PRF = {1: ' sc1', 2: '', 3: ' sc0 sc1'}.get(opt['pre'], '')
PF_ = {0: ' sc1', 1: ' sc0 sc1', 2: ' sc1 nt', 3: ' sc0 sc1 nt'}[opt['pf']]
XROWS = 2032
XS = XROWS*96
U_BYTES = 4*21*XS
WT_OFF = U_BYTES
WT_BYTES = 9*21*24576
Z_OFF = WT_OFF + WT_BYTES
Z_BYTES = 28*2*9*18*1024
FLAG_OFF = Z_OFF + Z_BYTES
REP = opt['rep']; RSTR = opt['rstr']; FA = REP*RSTR
ZFL = 5*FA
GOF = ZFL + 8192
AFL = (GOF + 8*4352 + 1023)//1024*1024
ZF2 = AFL + 32768
WO_OFF = FLAG_OFF + ZF2 + 32768
WS_USED = WO_OFF + 45*1024
STAMP_OFF = 268435456 - (1 << 20)
SLOT = 53248
XL = 2*SLOT + 8192
WL = SLOT
LDS_MAIN = 3*SLOT
OOB = 0x7f000000
hdr = f"""; Kernarg layout for this problem (48 bytes, ptrs only, base s[0:1]):
; @launch grid=(252,1,1) block=(512,1,1) lds={LDS_MAIN}
.amdgcn_target "amdgcn-amd-amdhsa--gfx950"
.text
.globl {NAME}_kernel
.p2align 8
.type {NAME}_kernel,@function
{NAME}_kernel:
"""
def srd(d, lo, hi, nbytes):
    e(f's_mov_b32 s{d}, s{lo}')
    e(f's_and_b32 s{d+1}, s{hi}, 0xffff')
    e(f's_mov_b32 s{d+2}, {nbytes}')
    e(f's_mov_b32 s{d+3}, 0x00020000')
def vp(r): return f'v[{r}:{r+1}]'
def vr(r): return f'v[{r}:{r+3}]'
def pkfma(d, sc, a, b, nega=False):
    neg = ' neg_lo:[0,1,0] neg_hi:[0,1,0]' if nega else ''
    e(f'v_pk_fma_f32 {vp(d)}, s[{sc}:{sc+1}], {vp(a)}, {vp(b)}{neg}')
def pkadd(d, a, b, negb=False):
    neg = ' neg_lo:[0,1] neg_hi:[0,1]' if negb else ''
    e(f'v_pk_add_f32 {vp(d)}, {vp(a)}, {vp(b)}{neg}')
def sconst2(s, x):
    e(f's_mov_b32 s{s}, {fh(x)}'); e(f's_mov_b32 s{s+1}, {fh(x)}')
def stamp(i):
    if opt['stamps']: e(f's_memrealtime s[{64+2*i}:{65+2*i}]')
def PK(b, pm):
    n = pm*4 + b
    return 184 + 4*n if n < 18 else 16 + 4*(n-18)
PA = lambda b: 32 + b
PT = 24

def gettag(name):
    lab(f'L_tag{name}')
    e('buffer_load_dwordx2 v[24:25], v37, s[16:19], 0 offen sc1')
    e('s_add_u32 s31, s31, 1')
    e('s_cmp_gt_u32 s31, 400000')
    e(f's_cbranch_scc1 L_tagd{name}')
    e('s_waitcnt vmcnt(0)')
    e('v_readfirstlane_b32 s92, v24')
    e('v_readfirstlane_b32 s93, v25')
    e('s_nop 3')
    e('s_cmp_eq_u32 s92, 0')
    e(f's_cbranch_scc1 L_tag{name}')
    lab(f'L_tagd{name}')
def setflag(pre):
    for x in pre: e(x)
    e('v_mov_b32 v38, s92')
    e('v_mov_b32 v39, s93')
    e('s_mov_b64 exec, 1')
    e('buffer_store_dwordx2 v[38:39], v37, s[20:23], s30 offen sc1')
    e('s_mov_b64 exec, -1')
def poll_issue(off):
    if off == 'A':
        e(f's_mov_b32 s30, {FLAG_OFF+AFL}')
        for k in range(4): e(f'buffer_load_dwordx2 {vp(PT+2*k)}, v{42+k}, s[20:23], s30 offen sc1')
        return
    e(f's_mov_b32 s30, {FLAG_OFF+off}')
    e(f'buffer_load_dwordx4 {vr(PT)}, v36, s[20:23], s30 offen{PF_}')
    e(f'buffer_load_dwordx4 {vr(PT+4)}, v36, s[20:23], s30 offen offset:16{PF_}')
def poll_check():
    e(f'v_cmp_ne_u64 vcc, s[92:93], {vp(PT)}')
    for k in range(1, 4):
        e(f'v_cmp_ne_u64 s[88:89], s[92:93], {vp(PT+2*k)}')
        e('s_or_b64 vcc, vcc, s[88:89]')
def poll(off, name, slp=None):
    e('s_mov_b32 s31, 0')
    lab(f'L_poll{name}')
    poll_issue(off)
    e('s_add_u32 s31, s31, 1')
    e('s_cmp_gt_u32 s31, 400000')
    e(f's_cbranch_scc1 L_pdone{name}')
    e('s_waitcnt vmcnt(0)')
    poll_check()
    e(f's_cbranch_scc0 L_pdone{name}')
    if opt['shr']: e('s_mov_b64 exec, vcc')
    e(f's_sleep {opt["slp"] if slp is None else slp}')
    e(f's_branch L_poll{name}')
    lab(f'L_pdone{name}')
    if opt['shr']: e('s_mov_b64 exec, -1')

e('s_cmp_ge_u32 s2, 252')
e('s_cbranch_scc1 L_end')
if opt['stamps']:
    for i in range(24): e(f's_mov_b32 s{64+i}, 0')
stamp(0)
if opt['trip']: e('s_memrealtime s[64:65]')
e('s_load_dwordx4 s[4:7], s[0:1], 0')
e('s_load_dwordx2 s[8:9], s[0:1], 16')
e('s_load_dwordx4 s[56:59], s[0:1], 32')
e('v_lshrrev_b32 v1, 6, v0')
e('v_and_b32 v2, 63, v0')
e('v_readfirstlane_b32 s26, v1')
if opt['cpf']:
    c('pull the kernel code towards L2 first (1 KB per participating wave)')
    e('s_getpc_b64 s[44:45]')
    lab('L_pc')
    if opt['cpf'] == 1:
        e('s_lshl_b32 s42, s2, 10')
        e('s_and_b32 s42, s42, 0x6000')
        e('v_lshlrev_b32 v102, 4, v0')
    elif opt['cpf'] == 2:
        e('s_lshl_b32 s42, s2, 7')
        e('s_and_b32 s42, s42, 0x7c00')
        e('v_lshlrev_b32 v102, 4, v2')
        e('v_lshl_add_u32 v102, v1, 20, v102')
    else:
        e('s_lshl_b32 s42, s2, 8')
        e('s_and_b32 s42, s42, 0x7800')
        e('v_lshlrev_b32 v102, 4, v0')
        e('v_lshrrev_b32 v103, 1, v1')
        e('v_lshl_add_u32 v102, v103, 20, v102')
    e('s_and_b32 s45, s45, 0xffff')
    e('s_mov_b32 s46, L_end-L_pc')
    e('s_mov_b32 s47, 0x00020000')
    e(f'buffer_load_dwordx4 {vr(180)}, v102, s[44:47], s42 offen')
else: e('s_nop 1')
def common():
    if opt['wso']:
        e(f's_add_u32 s58, s58, {opt["wso"] << 20}')
        e('s_addc_u32 s59, s59, 0')
    srd(20, 58, 59, WS_USED)
    srd(16, 56, 57, 256)
    e('s_mov_b32 s33, 0xffff0000')
    e('v_mov_b32 v37, 0')
    for b in range(4): e(f'v_mov_b32 v{PA(b)}, {OOB}')
    for b in range(4): e(f's_mov_b32 s{96+b}, {3*XS}')
    e('s_mov_b32 s31, 0')
    e('s_mov_b32 s92, 0')
    e('s_mov_b32 s93, 0')
    e('s_cmp_ge_u32 s2, 125')
    e(f's_cselect_b32 s50, {2*21*XS - 125*1536}, 0')
    e('s_mul_i32 s51, s2, 1536')
    e('s_add_u32 s50, s50, 768')
    e('s_add_u32 s50, s50, s51')
    e(f's_add_u32 s51, s50, {3*XS}')
    e(f's_mov_b32 s35, {XL+64}')
e('s_lshr_b32 s28, s26, 1')
e('s_cmp_eq_u32 s28, 2')
e('s_cbranch_scc1 Lp_w')
def xaddr(su, va, vd):
    e(f's_lshl_b32 s28, s{su}, 6')
    e('v_add_u32 v3, s28, v2')
    e('v_mul_u32_u24 v4, 683, v3')
    e('v_lshrrev_b32 v4, 16, v4')
    e('v_mul_u32_u24 v5, 96, v4')
    e('v_sub_u32 v3, v3, v5')
    e(f'v_mul_u32_u24 v{va}, 43, v3')
    e(f'v_lshrrev_b32 v{va}, 8, v{va}')
    e(f'v_mul_u32_u24 v{va}, {2304-96}, v{va}')
    e(f'v_lshl_add_u32 v{va}, v3, 4, v{va}')
    e(f'v_add3_u32 v{va}, v{va}, v5, s35')
    e('v_cmp_le_u32 vcc, 3, v4')
    e(f'v_mul_u32_u24 v{vd}, {XS}, v4')
    e(f'v_mov_b32 v5, {18*XS}')
    e(f'v_lshl_add_u32 v{vd}, v3, 4, v{vd}')
    e('v_cndmask_b32 v5, 0, v5, vcc')
    e(f'v_add_u32 v{vd}, v{vd}, v5')
def xpair(va, vd):
    for s in range(6): e(f'ds_read_b128 {vr(120+4*s)}, v{va} offset:{(12-2*s)*288}')
    for dw in range(4):
        for s in range(6):
            if dw == 0: e(f's_waitcnt lgkmcnt({5-s})')
            e(f'v_lshlrev_b32 v{148+2*s}, 16, v{120+4*s+dw}')
            e(f'v_and_b32 v{149+2*s}, s33, v{120+4*s+dw}')
        D = lambda s: 148+2*s
        pkfma(162, 46, D(2), D(4))
        pkfma(164, 46, D(3), D(5))
        pkfma(162, 44, D(0), 162)
        pkfma(164, 44, D(1), 164)
        pkfma(166, 48, 162, 164)
        pkfma(168, 48, 162, 164, nega=True)
        e(f'v_cvt_pk_bf16_f32 v{172+dw}, v166, v167')
        e(f'v_cvt_pk_bf16_f32 v{176+dw}, v168, v169')
    e(f'buffer_store_dwordx4 v[172:175], v{vd}, s[20:23], s50 offen sc1')
    e(f'buffer_store_dwordx4 v[176:179], v{vd}, s[20:23], s51 offen sc1')
def xrest(va, b):
    for s in range(7): e(f'ds_read_b128 {vr(120+4*s)}, v{va} offset:{(12-2*s)*288}')
    for dw in range(4):
        for s in range(7):
            if dw == 0: e(f's_waitcnt lgkmcnt({6-s})')
            e(f'v_lshlrev_b32 v{148+2*s}, 16, v{120+4*s+dw}')
            e(f'v_and_b32 v{149+2*s}, s33, v{120+4*s+dw}')
        D = lambda s: 148+2*s
        for t in range(2):
            q0, q1, aa = 36+6*t, 38+6*t, 40+6*t
            pkfma(162, q1, D(2), D(4))
            pkfma(164, q1, D(3), D(5))
            pkfma(162, q0, D(0), 162)
            pkfma(164, q0, D(1), 164)
            pkfma(166, aa, 162, 164)
            pkfma(168, aa, 162, 164, nega=True)
            e(f'v_cvt_pk_bf16_f32 v{PK(b,2*t)+dw}, v166, v167')
            e(f'v_cvt_pk_bf16_f32 v{PK(b,2*t+1)+dw}, v168, v169')
        pkfma(162, 54, D(4), D(6))
        pkfma(162, 52, D(2), 162)
        pkfma(162, 48, D(0), 162)
        e(f'v_cvt_pk_bf16_f32 v{PK(b,4)+dw}, v162, v163')
for t in range(3):
    a = PTS[2*t]; q0 = BT[2*t][1]; q1 = BT[2*t][3]
    assert abs(BT[2*t][0] - a*q0) < 1e-12 and abs(BT[2*t][2] - a*q1) < 1e-12 and abs(BT[2*t][4]-a) < 1e-12
e('s_sub_u32 s27, s26, 2')
e('s_cmp_lt_u32 s26, 4')
e('s_cselect_b32 s27, s26, s27')
e('s_cmp_ge_u32 s2, 250')
e('s_cbranch_scc1 Lp_zero')
e('s_cmp_ge_u32 s2, 125')
e('s_cselect_b32 s24, 4608000, 0')
e('s_mul_i32 s28, s2, 36864')
e('s_sub_u32 s28, s28, s24')
e('s_sub_u32 s28, s28, 1792')
e('s_lshl_b32 s29, s27, 10')
e('s_add_u32 s28, s28, s29')
e('v_lshlrev_b32 v6, 4, v2')
e('v_add_u32 v6, s28, v6')
e(f's_mov_b32 s14, {0 if opt["skx"] else 4608000}')
e('s_mov_b32 s15, 0x00020000')
e(f's_add_u32 m0, s29, {XL}')
e('s_waitcnt lgkmcnt(0)')
e('s_add_u32 s12, s4, s24'); e('s_addc_u32 s13, s5, 0')
e('s_and_b32 s13, s13, 0xffff')
for i in range(7):
    if i == 6:
        e('s_cmp_ge_u32 s27, 2')
        e('s_cbranch_scc1 Lp_xl')
    e(f'buffer_load_dwordx4 v6, s[12:15], 0 offen{LDF} lds')
    if i < 6:
        e(f's_add_u32 m0, s29, {XL + (i+1)*6144}')
        e('v_add_u32 v6, 6144, v6')
lab('Lp_xl')
common()
e('s_add_u32 s28, s2, s26')
e('s_cmp_lg_u32 s28, 0')
e('s_cbranch_scc1 Lp_x0')
c('WG 0 wave 0 publishes the launch tag in d_debug')
e('s_memrealtime s[92:93]')
e('s_waitcnt lgkmcnt(0)')
e('s_or_b32 s92, s92, 1')
e('v_mov_b32 v38, s92')
e('v_mov_b32 v39, s93')
e('s_mov_b64 exec, 1')
e('buffer_store_dwordx2 v[38:39], v37, s[16:19], 0 offen sc1')
e('s_mov_b64 exec, -1')
lab('Lp_x0')
c('pass-1 units: wave0:8 wave1:4,5 wave2:0,1 wave3:2,3 wave6:6 wave7:7')
e('s_lshl_b32 s28, s26, 2')
e('s_lshr_b32 s30, 0x76002048, s28')
e('s_and_b32 s30, s30, 15')
xaddr(30, 6, 7)
e('s_add_u32 s30, s30, 1')
xaddr(30, 14, 15)
sconst2(44, BT[0][1]); sconst2(46, BT[0][3]); sconst2(48, PTS[0])
stamp(7)
e('s_waitcnt vmcnt(0)')
stamp(8)
e('s_barrier')
stamp(1)
e('s_cmp_lg_u32 s26, 0')
e('s_cbranch_scc1 Lp_x1')
e('buffer_load_dwordx2 v[24:25], v37, s[16:19], 0 offen sc1')
lab('Lp_x1')
xpair(6, 7)
e('s_bitcmp1_b32 0x0e, s26')
e('s_cbranch_scc0 Lp_x2')
xpair(14, 15)
lab('Lp_x2')
e('s_cmp_ge_u32 s26, 4')
e('s_cbranch_scc1 Lp_h67')
lab('Lp_s2')
if opt['fl']:
    e('v_lshlrev_b32 v9, 4, v2')
    e('s_lshl_b32 s30, s2, 7')
    e(f's_add_u32 s30, s30, {FLAG_OFF+AFL}')
else:
    e(f'v_mul_u32_u24 v9, {RSTR}, v2')
    e('s_lshl_b32 s30, s2, 3')
    e(f's_add_u32 s30, s30, {FLAG_OFF}')
e('s_cmp_lg_u32 s26, 0')
e('s_cbranch_scc1 Lp_s2b')
e('s_cmp_ge_u32 s2, 250')
e('s_cbranch_scc1 L_taga')
e('s_waitcnt vmcnt(2)')
e('v_readfirstlane_b32 s92, v24')
e('v_readfirstlane_b32 s93, v25')
e('s_nop 3')
e('s_cmp_lg_u32 s92, 0')
e('s_cbranch_scc1 L_tagda')
gettag('a')
e('v_mov_b32 v38, s92')
e('v_mov_b32 v39, s93')
e('v_mov_b32 v40, s92')
e('v_mov_b32 v41, s93')
lab('Lp_s2b')
e('s_waitcnt vmcnt(0)')
e('s_barrier')
e('s_cmp_lg_u32 s26, 0')
e('s_cbranch_scc1 L_pdone')
if opt['fl']:
    e('s_mov_b64 exec, 0xff')
    e('buffer_store_dwordx4 v[38:41], v9, s[20:23], s30 offen sc1')
else:
    e(f's_mov_b64 exec, {(1<<REP)-1}')
    e('buffer_store_dwordx2 v[38:39], v9, s[20:23], s30 offen sc1')
e('s_mov_b64 exec, -1')
stamp(2)
e('s_branch L_pdone')
def xcoef2():
    for t in (1, 2):
        sconst2(36+6*(t-1), BT[2*t][1]); sconst2(38+6*(t-1), BT[2*t][3]); sconst2(40+6*(t-1), PTS[2*t])
    sconst2(48, BT[6][0]); sconst2(52, BT[6][2]); sconst2(54, BT[6][4])
    e(f's_add_u32 s34, s50, {6*XS}')
lab('Lp_h67')
c('waves 6,7 pass 2: own unit (block 1), then units 2(w-6), 2(w-6)+1 (blocks 2,3)')
xcoef2()
e(f'v_add_u32 v{PA(1)}, s34, v7')
if opt['early']: xrest(6, 1)
e('s_waitcnt vmcnt(0)')
e('s_barrier')
if not opt['early']: xrest(6, 1)
e('s_sub_u32 s30, s26, 6')
e('s_lshl_b32 s30, s30, 1')
lab('Lp_x23')
xaddr(30, 6, 7)
e(f'v_add_u32 v{PA(2)}, s34, v7')
xrest(6, 2)
e('s_add_u32 s30, s30, 1')
lab('Lp_x3')
xaddr(30, 6, 7)
e(f'v_add_u32 v{PA(3)}, s34, v7')
xrest(6, 3)
e('s_branch L_pdone')
lab('Lp_zero')
c('WGs 250,251: zero the 8 leading rows of the 42 arrays of batch b')
e('s_waitcnt lgkmcnt(0)')
common()
e('s_sub_u32 s3, s2, 250')
e(f's_mul_i32 s30, s3, {2*21*XS}')
e('s_lshl_b32 s28, s27, 6')
e('v_add_u32 v3, s28, v2')
for k in range(4): e(f'v_mov_b32 v{16+k}, 0')
for i in range(6):
    e('v_mul_u32_u24 v4, 1366, v3')
    e('v_lshrrev_b32 v4, 16, v4')
    e('v_mul_u32_u24 v5, 48, v4')
    e('v_sub_u32 v5, v3, v5')
    e(f'v_mul_u32_u24 v4, {XS}, v4')
    e('v_lshl_add_u32 v4, v5, 4, v4')
    e('v_cmp_gt_u32 vcc, 2016, v3')
    e(f'v_mov_b32 v5, {OOB}')
    e('v_add_u32 v3, 384, v3')
    e('v_cndmask_b32 v4, v5, v4, vcc')
    e('buffer_store_dwordx4 v[16:19], v4, s[20:23], s30 offen sc1')
e('s_barrier')
e('s_branch Lp_s2')
lab('Lp_w')
e('s_and_b32 s27, s26, 1')
c('w unit: XCD x = id&7 owns a contiguous range of units; local i = id>>3 < 9 takes two')
e('s_and_b32 s28, s2, 7')
e('s_lshr_b32 s29, s2, 3')
e('s_mul_i32 s3, s28, 40')
e('s_min_u32 s30, s28, 4')
e('s_add_u32 s3, s3, s30')
e('s_add_u32 s3, s3, s29')
e('s_min_u32 s30, s29, 9')
e('s_add_u32 s3, s3, s30')
e('s_add_u32 s3, s3, s27')
e('s_mul_i32 s30, s27, s29')
e('s_cmp_ge_u32 s30, 9')
e('s_cbranch_scc1 Lp_wo')
def posdec(P, ko, pos, kk, o, tmp):
    e(f'v_mul_u32_u24 v{ko}, 58255, v{P}')
    e(f'v_lshrrev_b32 v{ko}, 22, v{ko}')
    e(f'v_mul_u32_u24 v{tmp}, 72, v{ko}')
    e(f'v_sub_u32 v{pos}, v{P}, v{tmp}')
    e(f'v_mul_u32_u24 v{kk}, 3641, v{ko}')
    e(f'v_lshrrev_b32 v{kk}, 16, v{kk}')
    e(f'v_mul_u32_u24 v{tmp}, 18, v{kk}')
    e(f'v_sub_u32 v{o}, v{ko}, v{tmp}')
G_ = lambda r, ch: 40+2*(8*r+ch)
e('s_lshl_b32 s28, s3, 5')
e('v_and_b32 v3, 31, v2')
e('v_add_u32 v4, s28, v3')
posdec(4, 5, 6, 7, 8, 9)
e(f'v_mul_u32_u24 v7, {4*82944}, v7')
e('v_mul_u32_u24 v8, 4608, v8')
e('v_lshrrev_b32 v9, 5, v2')
e('v_mul_u32_u24 v10, 288, v9')
e('v_add3_u32 v7, v7, v8, v10')
e('v_lshl_add_u32 v6, v6, 2, v7')
e('s_waitcnt lgkmcnt(0)')
srd(12, 6, 7, 0 if opt['skw'] else 31*144*288*2)
if opt['word']:
    for r in range(1, 4): e(f's_mov_b32 s{36+r}, {82944*r}')
    for ch in range(8):
        for r in range(4):
            e(f'buffer_load_dword v{G_(r,ch)+1}, v6, s[12:15], {"s%d" % (36+r) if r else 0} offen offset:{ch*576}{LDF}')
else:
  for r in range(4):
    for ch in range(8):
        e(f'buffer_load_dword v{G_(r,ch)+1}, v6, s[12:15], 0 offen offset:{ch*576}{LDF}')
    if r < 3: e('v_add_u32 v6, 82944, v6')
stamp(7)
common()
e('s_lshl_b32 s29, s27, 14')
e(f's_add_u32 s29, s29, {WL}')
e('v_lshlrev_b32 v10, 6, v3')
e('v_lshl_add_u32 v10, v9, 5, v10')
e('v_add_u32 v10, s29, v10')
e('v_lshlrev_b32 v11, 4, v2')
e('v_add_u32 v11, s29, v11')
for h in range(2):
    e('v_lshrrev_b32 v4, 2, v2')
    e(f'v_add3_u32 v4, v4, s28, {16*h}')
    posdec(4, 5, 6, 7, 8, 9)
    e('v_mul_u32_u24 v4, 43, v8')
    e('v_lshrrev_b32 v4, 8, v4')
    e('v_mul_u32_u24 v5, 6, v4')
    e('v_sub_u32 v5, v8, v5')
    e('v_lshrrev_b32 v8, 1, v7')
    e('v_add_u32 v8, 8, v8')
    e('v_and_b32 v9, 1, v7')
    e('v_lshl_add_u32 v9, v9, 1, v5')
    e('v_subrev_u32 v9, 4, v9')
    e('v_cmp_le_u32 vcc, 4, v5')
    e('v_mul_u32_u24 v4, 24576, v4')
    e('v_lshrrev_b32 v14, 3, v6')
    e('v_cndmask_b32 v8, v7, v8, vcc')
    e('v_cndmask_b32 v9, v5, v9, vcc')
    e(f'v_mul_u32_u24 v14, {21*24576}, v14')
    e('v_bfe_u32 v15, v6, 2, 1')
    e('v_mul_u32_u24 v15, 12288, v15')
    e(f'v_add3_u32 v{12+h}, v4, v14, v15')
    e(f'v_lshl_add_u32 v{12+h}, v8, 10, v{12+h}')
    e(f'v_lshl_add_u32 v{12+h}, v9, 8, v{12+h}')
    e('v_and_b32 v4, 3, v6')
    e(f'v_lshl_add_u32 v{12+h}, v4, 6, v{12+h}')
    e('v_and_b32 v4, 3, v2')
    e(f'v_lshl_add_u32 v{12+h}, v4, 4, v{12+h}')
def wcoef(t):
    for r in range(4):
        assert abs(GS[2*t+1][r] - (1 if r % 2 == 0 else -1)*GS[2*t][r]) < 1e-12
        e(f'v_mul_f32 v{160+2*r}, {fh(GS[2*t][r])}, v14')
        e(f'v_mov_b32 v{161+2*r}, v{160+2*r}')
e(f's_mov_b32 s34, {WT_OFF}')
e('v_cmp_le_u32 vcc, 32, v2')
e(f'v_mov_b32 v14, {fh(-2*LOG2E)}')
e(f'v_mov_b32 v15, {fh(-LOG2E)}')
e('v_cndmask_b32 v14, v14, v15, vcc')
e('v_mov_b32 v15, v14')
wcoef(0)
stamp(8)
e('s_barrier')
stamp(1)
e('s_waitcnt vmcnt(0)')
stamp(2)
for k in range(32):
    e(f'v_lshlrev_b32 v{40+2*k}, 16, v{41+2*k}')
    e(f'v_and_b32 v{41+2*k}, s33, v{41+2*k}')
e('s_mov_b32 s53, 0')
lab('Lp_wloop')
for dw in range(4):
    for c2 in range(2):
        ch = 2*dw+c2
        E, O = 104+4*c2, 106+4*c2
        e(f'v_pk_mul_f32 {vp(E)}, {vp(160)}, {vp(G_(0,ch))}')
        e(f'v_pk_mul_f32 {vp(O)}, {vp(162)}, {vp(G_(1,ch))}')
        e(f'v_pk_fma_f32 {vp(E)}, {vp(164)}, {vp(G_(2,ch))}, {vp(E)}')
        e(f'v_pk_fma_f32 {vp(O)}, {vp(166)}, {vp(G_(3,ch))}, {vp(O)}')
        pkadd(112+4*c2, O, E)
        pkadd(114+4*c2, E, O, negb=True)
    for sgn in range(2):
        for n in range(2):
            e(f'v_cvt_pk_bf16_f32 v{120+8*sgn+4*n+dw}, v{112+2*sgn+n}, v{116+2*sgn+n}')
for sgn in range(2):
    for n in range(2):
        e(f'ds_write_b128 v10, {vr(120+8*sgn+4*n)} offset:{sgn*2048 + n*16}')
e('s_add_u32 s53, s53, 1')
e('s_waitcnt lgkmcnt(0)')
e('v_add_u32 v10, 4096, v10')
e('s_cmp_eq_u32 s53, 3')
e('s_cbranch_scc1 Lp_w3')
e('s_cmp_eq_u32 s53, 1')
e('s_cbranch_scc1 Lp_w1')
wcoef(2)
if opt['early']:
    e('s_waitcnt vmcnt(0)')
    e('s_barrier')
e('s_branch Lp_wloop')
lab('Lp_w1')
for k in range(4): e(f'ds_read_b128 {vr(136+4*k)}, v11 offset:{k*1024}')
for k in range(4):
    e(f's_waitcnt lgkmcnt({3-k})')
    e(f'buffer_store_dwordx4 {vr(136+4*k)}, v{12+k%2}, s[20:23], s34 offen sc1')
    if k % 2 == 1: e(f's_add_u32 s34, s34, {3*24576}')
wcoef(1)
if not opt['early']:
    e('s_waitcnt vmcnt(0)')
    e('s_barrier')
e('s_branch Lp_wloop')
lab('Lp_w3')
for ch in range(8): e(f'v_pk_mul_f32 {vp(G_(3,ch))}, {vp(G_(3,ch))}, v[14:15]')
for n in range(2):
    for dw in range(4):
        e(f'v_cvt_pk_bf16_f32 v{120+4*n+dw}, v{G_(3,2*dw)+n}, v{G_(3,2*dw+1)+n}')
    e(f'ds_write_b128 v10, {vr(120+4*n)} offset:{n*16}')
e('s_waitcnt lgkmcnt(0)')
for k in range(10):
    e(f'ds_read_b128 {vr(PK(k % 2, k//2))}, v11 offset:{4096 + k*1024}')
e(f'v_add_u32 v{PA(0)}, s34, v12')
e(f'v_add_u32 v{PA(1)}, s34, v13')
e(f's_mov_b32 s96, {3*24576}')
e(f's_mov_b32 s97, {3*24576}')
e('s_waitcnt lgkmcnt(0)')
lab('Lp_wx')
c('then x pass 2: wave 4: unit 8 (block 3) ; wave 5: units 4,5 (blocks 2,3)')
e('s_cmp_ge_u32 s2, 250')
e('s_cbranch_scc1 L_pdone')
xcoef2()
e('s_mov_b32 s30, 8')
e('s_cmp_eq_u32 s26, 4')
e('s_cbranch_scc1 Lp_x3')
e('s_mov_b32 s30, 4')
e('s_branch Lp_x23')
lab('Lp_wo')
e('s_waitcnt lgkmcnt(0)')
common()
e('s_sub_u32 s3, s2, 72')
e('s_cmp_ge_u32 s3, 45')
e('s_cbranch_scc1 Lp_wo2')
srd(12, 8, 9, 144*144*2)
e('s_mul_i32 s28, s3, 13108')
e('s_lshr_b32 s28, s28, 16')
e('s_mul_i32 s29, s28, 5')
e('s_sub_u32 s29, s3, s29')
e('v_and_b32 v7, 15, v2')
e('v_lshrrev_b32 v8, 4, v2')
e('s_cmp_eq_u32 s28, 8')
e('s_cselect_b32 s30, 1, 4')
e('s_cselect_b32 s34, 256, 0')
e('s_cselect_b32 s28, 0, s28')
e('s_lshl_b32 s28, s28, 1')
e('s_add_u32 s34, s34, s28')
e(f's_mul_i32 s29, s29, {32*288}')
e('s_add_u32 s34, s34, s29')
e('v_lshlrev_b32 v9, s30, v7')
e('v_mul_u32_u24 v14, 576, v8')
e('v_add3_u32 v14, v14, v9, s34')
for d in range(4):
    e(f'buffer_load_ushort v{40+2*d}, v14, s[12:15], 0 offen')
    e(f'buffer_load_ushort v{41+2*d}, v14, s[12:15], 0 offen offset:288')
    if d < 3: e('v_add_u32 v14, 2304, v14')
e('s_lshl_b32 s3, s3, 10')
e(f's_add_u32 s3, s3, {WO_OFF}')
e('v_lshlrev_b32 v1, 4, v2')
e('s_barrier')
e('s_waitcnt vmcnt(0)')
for d in range(4):
    e(f'v_lshl_or_b32 v{48+d}, v{41+2*d}, 16, v{40+2*d}')
e('buffer_store_dwordx4 v[48:51], v1, s[20:23], s3 offen sc1')
e('s_waitcnt vmcnt(0)')
e('s_barrier')
e('s_branch Lp_wx')
lab('Lp_wo2')
e('s_barrier')
e('s_barrier')
e('s_branch Lp_wx')

def M(t): return 12 + 4*t
def MD(t): return 48 + 4*t
def FR(k): return vr(84 + 4*k)
lab('L_pdone')
e('v_lshlrev_b32 v101, 4, v2')
e('v_min_u32 v36, 62, v2')
e('v_lshlrev_b32 v36, 5, v36')
e(f's_and_b32 s30, s2, {REP-1}')
e(f's_mul_i32 s30, s30, {RSTR}')
e('v_add_u32 v36, s30, v36')
e(f'v_mul_u32_u24 v12, {RSTR}, v2')
c('unit = base[xcd] + (id>>3)')
e('s_and_b32 s25, s2, 7')
e('s_lshr_b32 s24, s2, 3')
e('s_mul_i32 s27, s25, 31')
e('s_min_u32 s28, s25, 4')
e('s_add_u32 s27, s27, s28')
e('s_add_u32 s27, s27, s24')
e('s_mul_i32 s28, s27, 7282')
e('s_lshr_b32 s28, s28, 16')
e('s_mul_i32 s29, s28, 9')
e('s_sub_u32 s29, s27, s29')
e('s_and_b32 s24, s26, 3')
e('s_lshr_b32 s32, s24, 1')
e('s_and_b32 s33, s24, 1')
e('s_mul_i32 s34, s24, 7168')
e('s_mul_i32 s35, s24, 6144')
c('z soffset s62: (((g*2+rh)*9+gs)*18+J)*1024')
e('s_lshl_b32 s62, s28, 1')
e('s_add_u32 s62, s62, s32')
e(f's_mul_i32 s62, s62, {9*18*1024}')
e('s_lshl_b32 s63, s29, 1')
e('s_add_u32 s63, s63, s33')
e('s_lshl_b32 s63, s63, 10')
e('s_add_u32 s62, s62, s63')
e(f's_add_u32 s62, s62, {Z_OFF}')
if opt['gmap']:
    c('g = (b*7+gg)*2 + p')
    e('s_lshr_b32 s38, s28, 1')
    e('s_and_b32 s30, s28, 1')
    e('s_cmp_ge_u32 s38, 7')
    e('s_cselect_b32 s36, 7, 0')
    e('s_cselect_b32 s37, 2, 0')
    e('s_sub_u32 s38, s38, s36')
    e('s_add_u32 s30, s30, s37')
else:
    e('s_mul_i32 s30, s28, 9363')
    e('s_lshr_b32 s30, s30, 16')
    e('s_mul_i32 s38, s30, 7')
    e('s_sub_u32 s38, s28, s38')
e(f's_mul_i32 s36, s30, {21*XS}')
e('s_mul_i32 s37, s38, 27648')
e('s_add_u32 s36, s36, s37')
e('s_add_u32 s36, s36, s34')
e(f's_mul_i32 s37, s29, {21*24576}')
e('s_add_u32 s37, s37, s35')
e(f's_add_u32 s37, s37, {WT_OFF}')
c('last row group of a stream: do not fetch the never-written padding rows (KB 26 lanes >= 16, KB 27): v6, v7 = voffsets for those two chunks')
e('s_cmp_eq_u32 s38, 6')
e('s_cselect_b32 s60, 16, 64')
e('s_cselect_b32 s61, 0, 64')
e(f'v_mov_b32 v8, {OOB}')
e('v_cmp_gt_u32 vcc, s60, v2')
e('v_cmp_gt_u32 s[88:89], s61, v2')
e('s_nop 0')
e('v_cndmask_b32 v6, v8, v101, vcc')
e('v_cndmask_b32 v7, v8, v101, s[88:89]')
e('s_cmp_ge_u32 s26, 4')
e('s_cbranch_scc1 L_helper')
e('s_cmp_lg_u32 s26, 0')
e('s_cbranch_scc1 L_c13')
c('wave 0: wait for all A flags, then load the whole phase 0 tile')
if opt['agg']:
    e('s_cmp_lg_u32 s2, 0')
    e('s_cbranch_scc1 L_gow')
if opt['dly']: e(f's_sleep {opt["dly"]}')
if opt['fl']:
    for k in range(4):
        e(f'v_add_u32 v{42+k}, {64*k}, v2')
        e(f'v_min_u32 v{42+k}, 251, v{42+k}')
        e(f'v_lshlrev_b32 v{42+k}, 7, v{42+k}')
    e('v_lshrrev_b32 v46, 3, v2')
    e('v_mul_u32_u24 v46, 4352, v46')
    e('v_and_b32 v47, 7, v2')
    e('v_lshl_add_u32 v46, v47, 4, v46')
poll('A' if opt['fl'] else 0, 'A')
if opt['agg']:
    c('WG 0 saw all A flags: release everybody through 8 go words')
    e(f's_mov_b32 s30, {FLAG_OFF+GOF}')
    if opt['fl']:
        e('buffer_store_dwordx4 v[38:41], v46, s[20:23], s30 offen sc1')
    else:
        e('v_mul_u32_u24 v9, 4352, v2')
        e('s_mov_b64 exec, 0xff')
        e('buffer_store_dwordx2 v[38:39], v9, s[20:23], s30 offen sc1')
        e('s_mov_b64 exec, -1')
    e('s_branch L_god')
    lab('L_gow')
    e('s_mul_i32 s30, s25, 4352')
    e(f's_add_u32 s30, s30, {FLAG_OFF+GOF}')
    e('s_mov_b32 s31, 0')
    e('s_mov_b64 exec, 1')
    lab('L_gol')
    e('buffer_load_dwordx2 v[24:25], v37, s[20:23], s30 offen sc1')
    e('s_add_u32 s31, s31, 1')
    e('s_cmp_gt_u32 s31, 800000')
    e('s_cbranch_scc1 L_gox')
    e('s_waitcnt vmcnt(0)')
    e('v_cmp_ne_u64 vcc, s[92:93], v[24:25]')
    e('s_cbranch_vccz L_gox')
    e(f's_sleep {opt["gslp"]}')
    e('s_branch L_gol')
    lab('L_gox')
    e('s_mov_b64 exec, -1')
    lab('L_god')
stamp(3)
for k in range(52):
    if k % 4 == 0:
        e(f's_mov_b32 m0, {k*1024}')
        e(f's_add_u32 s30, s36, {k*1024}' if k < 28 else f's_add_u32 s30, s37, {(k-28)*1024}')
    e(f'buffer_load_dwordx4 v{ {26: 6, 27: 7}.get(k, 101) }, s[20:23], s30 offen offset:{(k%4)*1024} sc1 lds')
lab('L_c13')
e('s_barrier')
if opt['prio']: e(f's_setprio {opt["prio"]}')
e('v_and_b32 v124, 15, v2')
e('v_lshrrev_b32 v125, 4, v2')
e('v_mul_u32_u24 v126, 864, v124')
e('s_mul_i32 s38, s32, 13824')
e('v_add_u32 v126, s38, v126')
e('v_lshl_add_u32 v2, v125, 4, v126')
e('v_lshrrev_b32 v127, 1, v125')
e('v_mul_u32_u24 v127, 96, v127')
e('v_sub_u32 v127, v126, v127')
e('v_and_b32 v128, 1, v125')
e('v_lshl_add_u32 v127, v128, 4, v127')
e('v_add_u32 v5, 160, v127')
e('s_mul_i32 s38, s33, 12288')
e('s_add_u32 s38, s38, 28672')
e('v_add_u32 v8, s38, v101')
for s in (1, 2):
    e(f'v_add_u32 v{2+s}, {s*SLOT}, v2')
    e(f'v_add_u32 v{5+s}, {s*SLOT}, v5')
    e(f'v_add_u32 v{8+s}, {s*SLOT}, v8')
if opt['sn32']: e('v_lshrrev_b32 v101, 2, v101')
e(f's_add_u32 s38, s34, {2*SLOT}')
e('v_add_u32 v1, s38, v101')
e(f's_add_u32 s38, s35, {2*SLOT+28672}')
e('v_add_u32 v11, s38, v101')
for r in range(48, 84): e(f'v_mov_b32 v{r}, 0')

frags = []; mf = []
if opt['mord']:
    for t in range(9):
        for kk in range(7, -1, -1): mf.append((t, ('W', kk), ('X', t-kk)))
    for t in (range(8, -1, -1) if opt['tdesc'] else range(9)):
        for pp in (range(4) if opt['tdesc'] else range(3, -1, -1)): mf.append((t, ('WT', pp), ('XT', t-2*pp)))
else:
  for tp in range(-7, 9):
    for kk in range(min(7, 8-tp), max(0, -tp)-1, -1):
        mf.append((tp+kk, ('W', kk), ('X', tp)))
  for tp in range(-6, 9):
    for pp in range(3, -1, -1):
        if 0 <= tp+2*pp <= 8: mf.append((tp+2*pp, ('WT', pp), ('XT', tp)))
assert len(mf) == 108
fu = {}
for s, (t, wk, xk) in enumerate(mf):
    for k in (xk, wk):
        if k not in fu: fu[k] = s; frags.append(k)
assert len(frags) == 43
fidx = {k: i for i, k in enumerate(frags)}
LA = opt['LA']; BAR = 108 - LA; ELAST = BAR - 6
iss = [(-LA + (k*(ELAST+LA))//42) for k in range(43)]
if opt['mord']:
    iss = [-LA + (k*(LA-2))//16 for k in range(17)] + [1 + (k*(ELAST-1))//25 for k in range(26)]
    lu = {}
    for s, (t, wk, xk) in enumerate(mf): lu[wk] = s; lu[xk] = s
    for k in range(43): assert iss[k] + 108 > lu[frags[k]] + 1, (k, iss[k], lu[frags[k]])
for k in range(43): assert iss[k] <= fu[frags[k]] - 8, (k, iss[k], fu[frags[k]])
def rd(k, slot):
    kind, i = frags[k]
    if kind == 'X': return f'ds_read_b128 {FR(k)}, v{2+slot} offset:{(i+8)*96}'
    if kind == 'XT': return f'ds_read_b128 {FR(k)}, v{5+slot} offset:{(i+7)*96}'
    if kind == 'W': return f'ds_read_b128 {FR(k)}, v{8+slot} offset:{i*1024}'
    return f'ds_read_b128 {FR(k)}, v{8+slot} offset:{(8+i)*1024}'
npre = sum(1 for x in iss if x < 0)
first_touch = {}; last_touch = {}
for s, (t, wk, xk) in enumerate(mf):
    first_touch.setdefault(t, s); last_touch[t] = s
def snapw(t):
    if opt['sn32']:
        t, r = divmod(t, 4)
        return f'ds_write_b32 v1, v{MD(t)+r} offset:{t*1024+r*256}' if t < 7 else f'ds_write_b32 v11, v{MD(t)+r} offset:{(t-7)*1024+r*256}'
    return f'ds_write_b128 v1, {vr(MD(t))} offset:{t*1024}' if t < 7 else f'ds_write_b128 v11, {vr(MD(t))} offset:{(t-7)*1024}'
QS = opt['QS']
ext = [[] for _ in range(324)]
for ph in range(3):
    for k in range(43):
        ext[(ph*108 + iss[k]) % 324].append(('rd', k, ph))
used = [len(x) for x in ext]
lastw = 0
if opt['sn32']:
    for n in range(36):
        pos = max(216 + last_touch[n//4] + 8, lastw + 1)
        lastw = pos
        assert pos >= 216 + BAR and pos < 324 + QS - 2, pos
        ext[pos % 324].append(('wr', n, 0))
else:
  for t in sorted(range(9), key=lambda t: last_touch[t]):
    pos = max(216 + last_touch[t] + 8, lastw + opt['wsp'], 216 + BAR + 1)
    while used[pos % 324]: pos += 1
    lastw = pos
    used[pos % 324] += 1
    assert pos >= 216 + BAR and pos < 324 + QS - 2
    ext[pos % 324].append(('wr', t, 0))
e('s_waitcnt vmcnt(0)')
stamp(4)
e('s_barrier')
stamp(5)
if opt['dbgst']: e('s_memtime s[90:91]')
for k in range(npre): e(rd(k, 0))
e('s_mov_b32 s39, 7')
e('s_waitcnt lgkmcnt(0)')
out.append('.p2align 6')
for _ in range(opt['pad']): e('s_nop 0')
lab('L_loop')
seq = 0; rseq = {}; covered = -1; wseq = -1; sslot = []
for it in range(2):
    emit = e if it == 1 else (lambda s: None)
    for ph in range(3):
        if it == 1: c(f'======== phase {ph}')
        for s, (t, wk, xk) in enumerate(mf):
            if s == BAR:
                emit('s_waitcnt lgkmcnt(0)')
                emit('s_barrier')
                covered = seq - 1
            if ph == 0 and s == QS:
                if wseq > covered:
                    emit(f's_waitcnt lgkmcnt({min(15, seq-1-wseq)})')
                    covered = max(covered, seq - 1 - min(15, seq-1-wseq))
                emit('s_barrier')
            need = max(rseq.get((ph, fidx[wk]), -1), rseq.get((ph, fidx[xk]), -1))
            if need > covered:
                now = it*324 + ph*108 + s
                recent = sum(1 for x in sslot if x >= now - opt['lat'])
                allow = min(seq - 1 - need, recent, 15)
                emit(f's_waitcnt lgkmcnt({allow})')
                covered = seq - 1 - allow
            cin = vr(MD(t)) if (ph == 0 and first_touch[t] == s) else vr(M(t))
            dst = vr(MD(t)) if (ph == 2 and last_touch[t] == s) else vr(M(t))
            emit(f'v_mfma_f32_16x16x32_bf16 {dst}, {FR(fidx[wk])}, {FR(fidx[xk])}, {cin}')
            for x in ext[ph*108+s]:
                if x[0] == 'rd':
                    emit(rd(x[1], x[2])); rseq[(x[2], x[1])] = seq; seq += 1; sslot.append(it*324 + ph*108 + s)
                else:
                    emit(snapw(x[1])); wseq = seq; seq += 1; sslot.append(it*324 + ph*108 + s)
            if ph == 2 and s == 104: emit('s_sub_u32 s39, s39, 1')
            if ph == 2 and s == 105: emit('s_cmp_lg_u32 s39, 0')
e('s_cbranch_scc1 L_loop')
stamp(6)
if opt['dbgst']: e('s_memtime s[94:95]')
c('---- compute-wave epilogue: gate y3 = MD')
e('s_waitcnt lgkmcnt(0)')
if opt['tr']: e('s_barrier')
def gate_consts():
    e(f's_mov_b32 s46, {fh(-0.6931471805599453)}')
    e(f's_mov_b32 s42, {fh(2*LOG2E*2**-12)}')
    e('s_mov_b32 s43, 0x41f00000')
def gate(a, r, dst, sp):
    L = []
    L.append(f'v_min_f32 v{r}, s43, v{a}')
    L.append(f'v_min_f32 v{r+1}, s43, v{a+1}')
    L.append(f'v_exp_f32 v{a+2}, v{a+2}')
    L.append(f'v_exp_f32 v{a+3}, v{a+3}')
    L.append(f'v_exp_f32 v{r}, v{r}')
    L.append(f'v_exp_f32 v{r+1}, v{r+1}')
    if opt['smallfix']:
        L.append(f'v_cmp_gt_f32 s[{sp}:{sp+1}], s42, abs(v{a})')
        L.append(f'v_cmp_gt_f32 s[{sp+2}:{sp+3}], s42, abs(v{a+1})')
    L.append(f'v_add_f32 v{r+2}, 1.0, v{r}')
    L.append(f'v_add_f32 v{r+3}, 1.0, v{r+1}')
    if opt['smallfix']:
        L.append(f'v_mul_f32 v{a}, s46, v{a}')
        L.append(f'v_mul_f32 v{a+1}, s46, v{a+1}')
    L.append(f'v_fmac_f32 v{r+2}, v{r+2}, v{a+2}')
    L.append(f'v_fmac_f32 v{r+3}, v{r+3}, v{a+3}')
    L.append(f'v_sub_f32 v{r}, 1.0, v{r}')
    L.append(f'v_sub_f32 v{r+1}, 1.0, v{r+1}')
    L.append(f'v_rcp_f32 v{r+2}, v{r+2}')
    L.append(f'v_rcp_f32 v{r+3}, v{r+3}')
    if opt['smallfix']:
        L.append(f'v_cndmask_b32 v{r}, v{r}, v{a}, s[{sp}:{sp+1}]')
        L.append(f'v_cndmask_b32 v{r+1}, v{r+1}, v{a+1}, s[{sp+2}:{sp+3}]')
    L.append(f'v_mul_f32 v{r}, v{r}, v{r+2}')
    L.append(f'v_mul_f32 v{r+1}, v{r+1}, v{r+3}')
    L.append(f'v_cvt_pk_bf16_f32 v{dst}, v{r}, v{r+1}')
    return L
ool = []
def gate_check(As, tm, name):
    for k, a in enumerate(As):
        if k == 0:
            e(f'v_min_f32 v{tm}, abs(v{a}), abs(v{a+1})')
            e(f'v_max_f32 v{tm+1}, v{a}, v{a+1}')
        else:
            e(f'v_min3_f32 v{tm}, abs(v{a}), abs(v{a+1}), v{tm}')
            e(f'v_max3_f32 v{tm+1}, v{a}, v{a+1}, v{tm+1}')
    e(f'v_cmp_gt_f32 s[44:45], s42, v{tm}')
    e(f'v_cmp_lt_f32 vcc, s43, v{tm+1}')
    e(f's_cbranch_vccnz L_cl{name}')
    lab(f'L_clr{name}')
    L = [f'L_cl{name}:']
    for a in As:
        L += [f'    v_min_f32 v{a}, s43, v{a}', f'    v_min_f32 v{a+1}, s43, v{a+1}']
    L.append(f'    s_branch L_clr{name}')
    ool.extend(L)
def gate_fast(a, r, dst, name):
    e(f'v_exp_f32 v{r}, v{a}')
    e(f'v_exp_f32 v{r+1}, v{a+1}')
    e(f'v_exp_f32 v{a+2}, v{a+2}')
    e(f'v_exp_f32 v{a+3}, v{a+3}')
    e(f'v_add_f32 v{r+2}, 1.0, v{r}')
    e(f'v_add_f32 v{r+3}, 1.0, v{r+1}')
    e('s_cmp_lg_u64 s[44:45], 0')
    e(f'v_fmac_f32 v{r+2}, v{r+2}, v{a+2}')
    e(f'v_fmac_f32 v{r+3}, v{r+3}, v{a+3}')
    e(f'v_sub_f32 v{r}, 1.0, v{r}')
    e(f'v_sub_f32 v{r+1}, 1.0, v{r+1}')
    e(f'v_rcp_f32 v{r+2}, v{r+2}')
    e(f'v_rcp_f32 v{r+3}, v{r+3}')
    e(f's_cbranch_scc1 L_sm{name}')
    lab(f'L_smr{name}')
    e(f'v_mul_f32 v{r}, v{r}, v{r+2}')
    e(f'v_mul_f32 v{r+1}, v{r+1}, v{r+3}')
    e(f'v_cvt_pk_bf16_f32 v{dst}, v{r}, v{r+1}')
    ool.extend([f'L_sm{name}:',
        f'    v_cmp_gt_f32 s[48:49], s42, abs(v{a})',
        f'    v_cmp_gt_f32 s[50:51], s42, abs(v{a+1})',
        f'    v_mul_f32 v{a}, s46, v{a}',
        f'    v_mul_f32 v{a+1}, s46, v{a+1}',
        f'    v_cndmask_b32 v{r}, v{r}, v{a}, s[48:49]',
        f'    v_cndmask_b32 v{r+1}, v{r+1}, v{a+1}, s[50:51]',
        f'    s_branch L_smr{name}'])
gate_consts()
e('v_and_b32 v100, 63, v0')
e('v_lshlrev_b32 v101, 4, v100')
e(f's_add_u32 s63, s62, {7*18432}')
if opt['full']:
    e('s_lshl_b32 s40, s24, 10')
    e(f's_add_u32 s40, s40, {SLOT}')
    e('v_add_u32 v102, s40, v101')
    e('ds_read_b128 v[124:127], v102')
for t in range(9):
    if opt['fast']:
        if t % 3 == 0: gate_check([MD(t), MD(t+1), MD(t+2)], 102, f'c{t}')
        gate_fast(MD(t), 104 + 4*(t % 2), 112 + t, f'c{t}')
    else:
        if opt['full'] and t == 8: e('s_waitcnt lgkmcnt(0)')
        for x in gate(MD(t), 104 + 4*(t % 2), (127 if opt['full'] and t == 8 else 112 + t), 48): e(x)
    if t in (3, 7):
        e(f'buffer_store_dwordx4 v[{112+t-3}:{112+t}], v101, s[20:23], s63 offen sc1')
        e('s_add_u32 s63, s63, 18432')
e(f's_add_u32 s63, s62, {6*18432}')
if opt['full']: e('buffer_store_dwordx4 v[124:127], v101, s[20:23], s63 offen sc1')
else: e('buffer_store_dword v120, v101, s[20:23], s63 offen offset:12 sc1')
e('s_branch L_fin')
def hbar():
    if opt['bst']:
        e('s_memtime s[64:65]')
        e('s_barrier')
        e('s_memtime s[66:67]')
        e('s_waitcnt lgkmcnt(0)')
        e('s_mov_b32 m0, s68'); e('s_nop 0')
        e('v_writelane_b32 v14, s64, m0')
        e('v_writelane_b32 v15, s66, m0')
        e('s_add_u32 s68, s68, 1')
    else: e('s_barrier')
lab('L_helper')
if opt['bst']: e('s_mov_b32 s68, 0')
def Y(i, t): return 40 + 4*(i*9+t)
def SN(t): return 148 + 4*t
e('v_mov_b32 v3, v101')
e('v_add_u32 v13, 4096, v101')
e('v_add_u32 v6, 4096, v6')
e('v_add_u32 v7, 4096, v7')
e('s_cmp_eq_u32 s26, 7')
e('s_cselect_b64 vcc, -1, 0')
e('v_cndmask_b32 v6, v13, v6, vcc')
e('v_cndmask_b32 v7, v13, v7, vcc')
if opt['sn32']: e('v_lshrrev_b32 v101, 2, v101')
e(f's_add_u32 s38, s34, {2*SLOT}')
e('v_add_u32 v4, s38, v101')
e(f's_add_u32 s38, s35, {2*SLOT+28672}')
e('v_add_u32 v5, s38, v101')
e('s_cmp_eq_u32 s26, 4')
e('s_cbranch_scc1 L_h4')
e(f'v_mov_b32 v36, {OOB}')
e(f'v_mov_b32 v12, {OOB}')
e('s_branch L_h5')
lab('L_h4')
e('s_mov_b32 s31, 0')
gettag('h')
lab('L_h5')
e('v_mov_b32 v38, s92')
e('v_mov_b32 v39, s93')
def dma_list(slot):
    L = []
    for k in range(7):
        pre = [f's_add_u32 m0, s34, {slot*SLOT + (k//4)*4096}', 's_nop 0']
        L.append(pre + [f'buffer_load_dwordx4 v{(3,3,3,3,13,6,7)[k]}, s[20:23], s36 offen offset:{(k%4)*1024} sc1 lds'] + ([f's_add_u32 s36, s36, {XS}'] if k == 6 else []))
    for k in range(6):
        pre = [f's_add_u32 m0, s35, {slot*SLOT + 28672 + (k//4)*4096}', 's_nop 0']
        L.append(pre + [f'buffer_load_dwordx4 v{3 if k < 4 else 13}, s[20:23], s37 offen offset:{(k%4)*1024} sc1 lds'] + (['s_add_u32 s37, s37, 24576'] if k == 5 else []))
    return L
def pst(b, pm):
    return [f'buffer_store_dwordx4 {vr(PK(b,pm))}, v{PA(b)}, s[20:23], 0 offen sc1', f'v_add_u32 v{PA(b)}, s{96+b}, v{PA(b)}']
def weave(dl, sl):
    res = []; n = len(sl); m = len(dl)
    for i in range(m):
        res.append(dl[i])
        for k in range((i*n)//m, ((i+1)*n)//m): res.append(sl[k])
    return res
def mix(dl, vl):
    n = len(dl)
    for i, d in enumerate(dl):
        for x in d: e(x)
        for x in vl[(i*len(vl))//n:((i+1)*len(vl))//n]: e(x)
    if n == 0:
        for x in vl: e(x)
def nvm(dl, after):
    return len(dl) - 1 - after
def snapr():
    if opt['sn32']:
        for t in range(9):
            for h in range(2):
                o = (t if t < 7 else t-7)*4 + 2*h
                e(f'ds_read2st64_b32 {vp(SN(t)+2*h)}, v{4 if t < 7 else 5} offset0:{o} offset1:{o+1}')
            if t == 6: e('s_waitcnt lgkmcnt(4)')
        e('s_waitcnt lgkmcnt(0)')
        return
    for t in range(9):
        e(f'ds_read_b128 {vr(SN(t))}, v4 offset:{t*1024}' if t < 7 else f'ds_read_b128 {vr(SN(t))}, v5 offset:{(t-7)*1024}')
    e('s_waitcnt lgkmcnt(0)')
FM = [f'v_fmac_f32 v{Y(i,t)+r}, s{40+i}, v{SN(t)+r}' for t in range(9) for i in range(3) for r in range(4)]
def FMm(m):
    L = []
    for t in range(9):
        for i in range(3):
            if DCH[i][m] == 0: continue
            first = all(DCH[i][mm] == 0 for mm in range(m))
            for r in range(4): L.append(f'{"v_mul_f32" if first else "v_fmac_f32"} v{Y(i,t)+r}, s{40+i}, v{SN(t)+r}')
    return L
e(f's_add_u32 s36, s36, {XS}')
e('s_add_u32 s37, s37, 24576')
e('s_barrier')
mix(dma_list(1), [])
if opt['b1e'] == 1: mix([pst(b, 0) for b in range(4)], [])
c('coefficient table: s40.. = 3 x 6, consumed from the front')
for m in range(6):
    for i in range(3): e(f's_mov_b32 s{40+3*m+i}, {fh(DCH[i][m])}')
hbar()
if opt['b1e'] == 2: mix([pst(b, 0) for b in range(4)], [])
ND0 = opt['nd0']
def only4(name, fn):
    e('s_cmp_lg_u32 s26, 4')
    e(f's_cbranch_scc1 L_o4{name}')
    fn()
    lab(f'L_o4{name}')
def hflag(off):
    e('s_lshl_b32 s30, s2, 3')
    e(f's_add_u32 s30, s30, {FLAG_OFF+off}')
    e(f's_mov_b64 exec, {(1<<REP)-1}')
    e('buffer_store_dwordx2 v[38:39], v12, s[20:23], s30 offen sc1')
    e('s_mov_b64 exec, -1')
def hiter(name, fm, sa=(), sc_=(), flag0=None, flag1=None, chk=None):
    if chk is not None: poll_issue(chk)
    for g_ in sa:
        for x in g_: e(x)
    hbar()
    if fm: snapr()
    D2 = dma_list(2)
    mix(D2[:ND0], [])
    e(f's_waitcnt vmcnt({ND0 + len(sa)})')
    if chk is not None:
        def f():
            poll_check()
            e(f's_cbranch_scc0 L_o4c{name}')
            poll(chk, name, opt['fslp'])
        only4('c'+name, f)
    hbar()
    if flag0 is not None: hflag(flag0)
    mix(D2[ND0:] + dma_list(0), fm[:40])
    e('s_waitcnt vmcnt(13)')
    hbar()
    if flag1 is not None: hflag(flag1)
    mix(list(sc_) + dma_list(1), fm[40:])
    if fm:
        for k in range(15): e(f's_mov_b32 s{40+k}, s{43+k}')
    e(f's_waitcnt vmcnt({13 + len(sc_) + (1 if flag1 is not None else 0)})')
    hbar()
ST = [pst(b, pm) for pm in range(5) for b in range(4)]
if opt['b1e']: hiter('0', [], sc_=ST[4:8], flag0=1*FA)
else: hiter('0', [], sa=ST[0:4], sc_=ST[4:8], flag1=1*FA)
hiter('1', FMm(0), sa=ST[8:12], sc_=ST[12:16], flag0=2*FA, flag1=3*FA, chk=1*FA)
hiter('2', FMm(1), sa=ST[16:20], flag1=4*FA, chk=2*FA)
hiter('3', FMm(2), chk=3*FA)
hiter('4', FMm(3), chk=4*FA)
hiter('5', FMm(4))
c('---- last product')
if opt['sw'] == 4: stamp(6)
hbar()
snapr()
F0 = opt['f0']
D2 = dma_list(2)
mix(D2[:ND0], FM[:F0])
e(f's_waitcnt vmcnt({ND0})')
hbar()
WD = []
for k in range(12):
    WD.append([f's_add_u32 m0, s61, {(k//4)*4096}', 's_nop 0', f'buffer_load_dwordx4 v3, s[20:23], s60 offen offset:{(k%4)*1024} sc1 lds'] + (['s_add_u32 s60, s60, 4096'] if k % 4 == 3 else []))
e('s_mul_i32 s61, s24, 12288')
e(f's_add_u32 s60, s61, {WO_OFF}')
mix(D2[ND0:] + WD, FM[F0:])
gate_consts()
e('s_mov_b32 s63, s62')
nst = [0]
HORD = ([24, 25, 26] + list(range(24))) if opt['full'] else list(range(27))
def hgate(n0, n1):
    for n in HORD[n0:n1]:
        t, i = divmod(n, 3)
        if opt['fast']:
            if i == 0: gate_check([Y(0,t), Y(1,t), Y(2,t)], 192, f'h{n}')
            gate_fast(Y(i, t), 184 + 4*(n % 2), 200 + n, f'h{n}')
        else:
            for x in gate(Y(i, t), 184 + 4*(n % 2), 200 + n, 48): e(x)
        if n % 4 == 3:
            e(f'buffer_store_dwordx4 v[{200+n-3}:{200+n}], v3, s[20:23], s63 offen sc1')
            e('s_add_u32 s63, s63, 18432'); nst[0] += 1
        if n == 26 and not opt['full']:
            e('buffer_store_dwordx3 v[224:226], v3, s[20:23], s63 offen sc1'); nst[0] += 1
g1 = opt['g1']; g2 = min(27, g1 + opt['g2'])
hgate(0, g1)
e(f's_waitcnt vmcnt({nst[0]+12})')
hbar()
if opt['full']:
    assert g1 >= 3
    e('s_lshl_b32 s40, s24, 10')
    e(f's_add_u32 s40, s40, {SLOT}')
    e('v_add_u32 v8, s40, v3')
    e('ds_write_b128 v8, v[224:227]')
hgate(g1, g2)
if opt['full']: e('s_waitcnt lgkmcnt(0)')
hbar()
if opt['tr']:
    hgate(g2, opt['x1'])
    e(f's_waitcnt vmcnt({nst[0]-5})')
    e('s_barrier')
    e('s_lshl_b32 s30, s28, 7')
    e('s_lshl_b32 s31, s29, 3')
    e('s_add_u32 s30, s30, s31')
    e(f's_add_u32 s30, s30, {FLAG_OFF+ZFL}')
    e('s_mov_b64 exec, 1')
    e('buffer_store_dwordx2 v[38:39], v12, s[20:23], s30 offen sc1')
    e('s_mov_b64 exec, -1')
    hgate(opt['x1'], 27)
else:
    hgate(g2, 27)
if opt['bst']:
    e('s_memtime s[64:65]')
    e('s_waitcnt lgkmcnt(0)')
    e('s_mov_b32 m0, s68'); e('s_nop 0')
    e('v_writelane_b32 v14, s64, m0')
    e('v_writelane_b32 v15, s64, m0')
    e('s_cmp_lg_u32 s26, 4')
    e('s_cbranch_scc1 L_fin')
    e('s_mov_b32 s22, 0x10000000')
    e('s_lshl_b32 s33, s2, 9')
    e(f's_add_u32 s33, s33, {STAMP_OFF + (128<<10)*4}')
    e('v_lshrrev_b32 v1, 1, v3')
    e('buffer_store_dwordx2 v[14:15], v1, s[20:23], s33 offen')
lab('L_fin')
e('s_setprio 0')
e('s_load_dwordx2 s[6:7], s[0:1], 24')
if not opt['es']: stamp(7)
e('v_and_b32 v2, 63, v0')
e('v_lshlrev_b32 v3, 4, v2')
e('v_mov_b32 v37, 0')
e('s_lshr_b32 s41, s26, 2')
if opt['tr']:
    c('helpers take an early set, compute waves a late one')
    e('s_mul_i32 s40, s28, 18')
    e('s_add_u32 s40, s40, s29')
    e('s_add_u32 s42, s41, 4')
    e('s_cmp_ge_u32 s29, s42')
    e('s_cselect_b32 s42, 4, 0')
    e('s_add_u32 s40, s40, s42')
    e('s_cmp_eq_u32 s41, 0')
    e('s_cselect_b32 s42, 5, 0')
    e('s_add_u32 s40, s40, s42')
else:
    e('s_lshl_b32 s40, s27, 1')
    e('s_add_u32 s40, s40, s41')
e('s_mul_i32 s30, s40, 7282')
e('s_lshr_b32 s30, s30, 16')
e('s_mul_i32 s31, s30, 9')
e('s_sub_u32 s31, s40, s31')
if opt['gmap']:
    e('s_lshr_b32 s32, s30, 2')
    e('s_bfe_u32 s38, s30, 0x10001')
    e('s_and_b32 s33, s30, 1')
    e('s_cmp_ge_u32 s32, 7')
    e('s_cselect_b32 s37, 4608000, 0')
    e('s_cselect_b32 s36, 7, 0')
    e('s_sub_u32 s32, s32, s36')
    e('s_lshl_b32 s32, s32, 1')
    e('s_add_u32 s33, s33, s32')
else:
    e('s_mul_i32 s32, s30, 4682')
    e('s_lshr_b32 s32, s32, 16')
    e('s_mul_i32 s33, s32, 14')
    e('s_sub_u32 s33, s30, s33')
    e('s_lshr_b32 s37, s32, 1')
    e('s_and_b32 s38, s32, 1')
    e('s_mul_i32 s37, s37, 4608000')
e('s_waitcnt lgkmcnt(0)')
e('s_add_u32 s6, s6, s37'); e('s_addc_u32 s7, s7, 0')
srd(16, 6, 7, 4608000)
e('s_mul_i32 s39, s33, 1152')
e('s_add_u32 s39, s39, s38')
e('s_add_u32 s39, s39, 6')
e('s_lshl_b32 s45, s31, 2')
e('s_add_u32 s45, s45, s24')
e('s_mul_i32 s42, s45, 171')
e('s_lshr_b32 s42, s42, 9')
e('s_mul_i32 s43, s42, 3')
e('s_sub_u32 s43, s45, s43')
e('s_sub_u32 s44, s45, 28')
e('s_cmp_ge_u32 s45, 27')
e('s_cselect_b32 s42, s44, s42')
e('s_cselect_b32 s43, 3, s43')
e('s_cmp_eq_u32 s45, 27')
e('s_cselect_b32 s42, 8, s42')
e('s_lshl_b32 s42, s42, 3')
e('s_lshl_b32 s43, s43, 1')
e('s_add_u32 s42, s42, s39')
e('s_sub_u32 s42, s42, s43')
e('s_mul_i32 s45, s42, 288')
e('v_lshrrev_b32 v7, 4, v2')
e(f'v_mul_u32_u24 v7, {4*72*288}, v7')
e('v_add_u32 v7, s45, v7')
e('v_and_b32 v8, 15, v2')
e('v_lshl_add_u32 v11, v8, 1, v7')
e('v_lshl_add_u32 v10, v8, 4, v7')
def bf(f): return vr(76 + 4*f)
def preB():
    for f in range(45):
        e(f'ds_read_b128 {bf(f)}, v3 offset:{f*1024}')
        if f % 12 == 11: e('s_waitcnt lgkmcnt(4)')
def zpoll(name):
    e('v_min_u32 v5, 8, v2')
    e('v_lshlrev_b32 v5, 3, v5')
    e('s_mov_b32 s51, 0')
    lab(f'L_zp{name}')
    e('buffer_load_dwordx2 v[8:9], v5, s[20:23], s50 offen sc1')
    e('s_add_u32 s51, s51, 1')
    e('s_cmp_gt_u32 s51, 400000')
    e(f's_cbranch_scc1 L_zd{name}')
    e('s_waitcnt vmcnt(0)')
    e('v_cmp_ne_u64 vcc, s[92:93], v[8:9]')
    e(f's_cbranch_vccz L_zd{name}')
    e('s_sleep 1')
    e(f's_branch L_zp{name}')
    lab(f'L_zd{name}')
if opt['tr']:
    e('s_mul_i32 s46, s40, 18432')
    e('s_lshl_b32 s47, s24, 10')
    e('s_add_u32 s46, s46, s47')
    e(f's_add_u32 s46, s46, {Z_OFF}')
    e('s_mul_i32 s48, s41, 18432')
    e(f's_add_u32 s48, s48, {SLOT}')
    e('s_add_u32 s47, s47, s48')
    e('s_lshl_b32 s49, s24, 2')
    e('s_add_u32 s48, s48, s49')
    e('v_add_u32 v4, s48, v3')
    e('v_mov_b32 v34, 0')
    e('v_mov_b32 v35, 0')
    e('s_lshl_b32 s50, s28, 7')
    e(f's_add_u32 s50, s50, {FLAG_OFF+ZFL}')
    def zdma(name):
        for i in range(5):
            if i == 4:
                e('s_cmp_ge_u32 s24, 2')
                e(f's_cbranch_scc1 L_zm{name}')
            e(f's_add_u32 m0, s47, {i*4096}')
            e('s_nop 0')
            e('buffer_load_dwordx4 v3, s[20:23], s46 offen sc1 lds')
            if i < 4: e('s_add_u32 s46, s46, 4096')
        lab(f'L_zm{name}')
    e('s_cmp_lt_u32 s26, 4')
    e('s_cbranch_scc1 L_fc')
    c('---- helpers: early set')
    e('s_cmp_lg_u32 s26, 4')
    e('s_cbranch_scc1 L_zdh')
    zpoll('h')
    e('s_waitcnt vmcnt(0)')
    e('s_barrier')
    if not opt['es']: stamp(8)
    zdma('h')
    preB()
    e('s_waitcnt vmcnt(0) lgkmcnt(0)')
    e('s_barrier')
    stamp(9)
    e('s_branch L_gemm')
    lab('L_fc')
    c('---- compute waves: late set')
    e('s_add_u32 s50, s50, 4096')
    e('s_waitcnt vmcnt(0)')
    e('s_barrier')
    if not opt['es']: stamp(8)
    e('s_cmp_lg_u32 s26, 0')
    e('s_cbranch_scc1 L_fc1')
    setflag(['s_lshl_b32 s30, s29, 3', 's_add_u32 s30, s30, s50'])
    lab('L_fc1')
    preB()
    e('s_cmp_lg_u32 s26, 0')
    e('s_cbranch_scc1 L_zdc')
    zpoll('c')
    e('s_barrier')
    stamp(9)
    zdma('c')
    e('s_waitcnt vmcnt(0) lgkmcnt(0)')
    e('s_barrier')
    stamp(10)
    lab('L_gemm')
else:
    e('s_mul_i32 s46, s27, 36864')
    e('s_lshl_b32 s47, s26, 10')
    e('s_add_u32 s46, s46, s47')
    e(f's_add_u32 s46, s46, {Z_OFF}')
    e('s_mul_i32 s48, s41, 18432')
    e('s_lshl_b32 s49, s24, 2')
    e('s_add_u32 s48, s48, s49')
    e(f's_add_u32 s48, s48, {SLOT}')
    e('v_add_u32 v4, s48, v3')
    e('v_mov_b32 v34, 0')
    e('v_mov_b32 v35, 0')
    if opt['fl']:
        for k in range(4): e(f'v_mov_b32 v{36+k}, s{92+k%2}')
        e('s_mul_i32 s50, s28, 1152')
        e(f's_add_u32 s50, s50, {FLAG_OFF+ZF2}')
        e('s_lshl_b32 s30, s27, 7')
        e(f's_add_u32 s30, s30, {FLAG_OFF+ZF2}')
    e('s_waitcnt vmcnt(0)')
    e('s_barrier')
    if not opt['es']: stamp(8)
    def bf(f): return vr(76 + 4*f)
    def preB():
        for f in range(45):
            e(f'ds_read_b128 {bf(f)}, v3 offset:{f*1024}')
            if f % 12 == 11: e('s_waitcnt lgkmcnt(4)')
    e('s_cmp_lg_u32 s26, 4')
    e('s_cbranch_scc1 L_e1b')
    if opt['fl']:
        e('s_mov_b64 exec, 0xff')
        e('buffer_store_dwordx4 v[36:39], v3, s[20:23], s30 offen sc1')
        e('s_mov_b64 exec, -1')
    else:
        e('s_lshl_b32 s50, s28, 7')
        e(f's_add_u32 s50, s50, {FLAG_OFF+ZFL}')
        setflag(['s_lshl_b32 s30, s29, 3', 's_add_u32 s30, s30, s50'])
    lab('L_e1b')
    preB()
    e('s_cmp_lg_u32 s26, 4')
    e('s_cbranch_scc1 L_e2')
    e('v_min_u32 v5, 8, v2')
    e(f'v_lshlrev_b32 v5, {7 if opt["fl"] else 3}, v5')
    e('s_mov_b32 s51, 0')
    lab('L_zpoll')
    e('buffer_load_dwordx2 v[8:9], v5, s[20:23], s50 offen sc1')
    e('s_add_u32 s51, s51, 1')
    e('s_cmp_gt_u32 s51, 400000')
    e('s_cbranch_scc1 L_e2')
    e('s_waitcnt vmcnt(0)')
    e('v_cmp_ne_u64 vcc, s[92:93], v[8:9]')
    e('s_cbranch_vccz L_e2')
    e('s_sleep 1')
    e('s_branch L_zpoll')
    lab('L_e2')
    e('s_barrier')
    stamp(9)
    for i in range(5):
        if i == 4:
            e('s_cmp_ge_u32 s26, 4')
            e('s_cbranch_scc1 L_e3')
        e(f's_add_u32 m0, s47, {SLOT + i*8192}')
        e('s_nop 0')
        e('buffer_load_dwordx4 v3, s[20:23], s46 offen sc1 lds')
        if i < 4: e('s_add_u32 s46, s46, 8192')
    lab('L_e3')
    e('s_waitcnt vmcnt(0) lgkmcnt(0)')
    e('s_barrier')
    stamp(10)
if opt['stamps']: e('s_waitcnt lgkmcnt(0)')
for J in range(14): e(f'ds_read_b32 v{16+J}, v4 offset:{J*1024}')
for ks in range(5):
    if ks == 0: e('s_waitcnt lgkmcnt(10)')
    if ks == 1: e('s_waitcnt lgkmcnt(10)')
    if ks == 2: e('s_waitcnt lgkmcnt(6)')
    if ks == 3: e('s_waitcnt lgkmcnt(2)')
    if ks == 4: e('s_waitcnt lgkmcnt(0)')
    for T in range(9):
        r = 40 + 4*T
        cin = '0' if ks == 0 else vr(r)
        e(f'v_mfma_f32_16x16x32_bf16 {vr(r)}, v[{16+4*ks}:{16+4*ks+3}], {bf(T*5+ks)}, {cin}')
        if ks == 0 and T < 4: e(f'ds_read_b32 v{30+T}, v4 offset:{(14+T)*1024}')
if opt['tr']:
    e('s_cmp_lt_u32 s26, 4')
    e('s_cbranch_scc1 L_ne3')
    e('s_barrier')
    lab('L_ne3')
e('s_nop 7')
e('s_nop 1')
if opt['trip']:
    e('s_memrealtime s[66:67]')
    e('s_waitcnt lgkmcnt(0)')
    e('s_sub_u32 s66, s66, s64')
    e(f's_sub_u32 s66, s66, {opt["trip"]}')
    e(f's_cmp_lt_u32 s66, {opt["tlo"] - opt["trip"]}')
    e('s_cselect_b32 s66, 1.0, 0')
    e('s_cmp_eq_u32 s2, 100')
    e('s_cselect_b32 s66, s66, 0')
    e('v_add_f32 v40, s66, v40')
for r in range(4):
    d = 140 + 6*r
    A = lambda T: 40 + 4*T + r
    for h in range(4): e(f'v_cvt_pk_bf16_f32 v{d+h}, v{A(2*h)}, v{A(2*h+1)}')
    e(f'v_cvt_pk_bf16_f32 v{d+4}, v{A(8)}, v{A(8)}')
    e(f'buffer_store_dwordx4 v[{d}:{d+3}], v10, s[16:19], 0 offen{OF[opt["of"]]}')
    e(f'buffer_store_short v{d+4}, v11, s[16:19], 0 offen offset:256{OF[opt["of2"]]}')
    if r < 3:
        e(f'v_add_u32 v10, {72*288}, v10')
        e(f'v_add_u32 v11, {72*288}, v11')
if opt['stamps']:
    e('s_waitcnt vmcnt(0)')
    stamp(11)
    e('s_waitcnt lgkmcnt(0)')
    e(f's_cmp_lg_u32 s26, {opt["sw"]}')
    e('s_cbranch_scc1 L_end')
    if opt['dbgst']:
        e(f's_cmp_lg_u32 s2, {opt["dbgst"]}')
        e('s_cbranch_scc1 L_end')
        e('s_load_dwordx2 s[56:57], s[0:1], 32')
        e('s_waitcnt lgkmcnt(0)')
        srd(16, 56, 57, 256)
        e('v_mov_b32 v1, 0')
        for i in range(1, 12):
            e(f's_sub_u32 s33, s{64+2*i}, s64')
            e('v_mov_b32 v4, s33')
            e(f'buffer_store_dword v4, v1, s[16:19], 0 offen offset:{4+4*i}')
        e('s_sub_u32 s33, s94, s90')
        e('v_mov_b32 v4, s33')
        e('buffer_store_dword v4, v1, s[16:19], 0 offen offset:56')
        e('s_branch L_end')
    e('s_mov_b32 s22, 0x10000000')
    e('s_lshl_b32 s33, s2, 7')
    e(f's_add_u32 s33, s33, {STAMP_OFF}')
    e('v_mov_b32 v1, s33')
    for i in range(6):
        for k in range(4): e(f'v_mov_b32 v{4+k}, s{64+4*i+k}')
        e(f'buffer_store_dwordx4 v[4:7], v1, s[20:23], 0 offen offset:{16*i}')
        e('s_nop 1')
lab('L_end')
e('s_endpgm')
out.extend(ool)
tail = f"""
.section .rodata,"a"
.p2align 6
.amdhsa_kernel {NAME}_kernel
  .amdhsa_next_free_vgpr 256
  .amdhsa_next_free_sgpr 100
  .amdhsa_accum_offset 256
  .amdhsa_group_segment_fixed_size 0
  .amdhsa_kernarg_size 48
  .amdhsa_user_sgpr_count 2
  .amdhsa_user_sgpr_kernarg_segment_ptr 1
  .amdhsa_system_sgpr_workgroup_id_x 1
.end_amdhsa_kernel
"""
open(sys.argv[1], 'w').write(hdr + '\n'.join(out) + '\n' + tail)
```

```python
import sys, struct
import numpy as np
from f44 import matrices, PTS
NAME = 'standalone__autoregressive_conv_wavenet__speech'
opt = dict(stamps=0, LA=26, smallfix=1, ldf=0, QS=28, prio=1, g1=5, g2=7, bst=0, nd0=7, wsp=5, f0=30, slp=1, cpf=3, sw=4, dly=0, pf=0, early=1, dbgst=0, rep=1, rstr=4352, pre=0, shr=1, agg=1, gslp=2, es=0, word=1, skx=0, skw=0, of=0, of2=0, gmap=1, trip=0, tlo=0, fast=0, sn32=0, lat=9, b1e=2, fslp=6, pad=0, mord=1, tdesc=0, tr=0, x1=24, full=1, fl=0, wso=0, dead=0)
for a in sys.argv[2:]:
    k, v = a.split('='); assert k in opt, k; opt[k] = int(v)
out = []
def e(s): out.append('    ' + s)
def lab(s): out.append(s + ':')
def c(s): out.append('    ; ' + s)
def fh(x): return '0x%08x' % struct.unpack('<I', struct.pack('<f', float(x)))[0]
AT, G, BT = matrices()
GS = G.copy()
for m in range(6): GS[m] *= PTS[m]**3
CH = np.zeros((3, 7))
for i in range(3):
    for m in range(6): CH[i][m] = PTS[m]**(i-3)
DCH = CH[:, :6] - CH[:, 1:7]
LOG2E = 1.4426950408889634
LDF = {0: '', 1: ' nt'}[opt['ldf']]
OF = {0:'', 1:' nt', 2:' sc1', 3:' sc0 sc1'}
PRF = {1: ' sc1', 2: '', 3: ' sc0 sc1'}.get(opt['pre'], '')
PF_ = {0: ' sc1', 1: ' sc0 sc1', 2: ' sc1 nt', 3: ' sc0 sc1 nt'}[opt['pf']]
XROWS = 2032
XS = XROWS*96
U_BYTES = 4*21*XS
WT_OFF = U_BYTES
WT_BYTES = 9*21*24576
Z_OFF = WT_OFF + WT_BYTES
Z_BYTES = 28*2*9*18*1024
FLAG_OFF = Z_OFF + Z_BYTES
REP = opt['rep']; RSTR = opt['rstr']; FA = REP*RSTR
ZFL = 5*FA
GOF = ZFL + 8192
AFL = (GOF + 8*4352 + 1023)//1024*1024
ZF2 = AFL + 32768
WO_OFF = FLAG_OFF + ZF2 + 32768
WS_USED = WO_OFF + 45*1024
STAMP_OFF = 268435456 - (1 << 20)
SLOT = 53248
XL = 2*SLOT + 8192
WL = SLOT
LDS_MAIN = 3*SLOT
OOB = 0x7f000000
hdr = f"""; Kernarg layout for this problem (48 bytes, ptrs only, base s[0:1]):
; @launch grid=(252,1,1) block=(512,1,1) lds={LDS_MAIN}
.amdgcn_target "amdgcn-amd-amdhsa--gfx950"
.text
.globl {NAME}_kernel
.p2align 8
.type {NAME}_kernel,@function
{NAME}_kernel:
"""
def srd(d, lo, hi, nbytes):
    e(f's_mov_b32 s{d}, s{lo}')
    e(f's_and_b32 s{d+1}, s{hi}, 0xffff')
    e(f's_mov_b32 s{d+2}, {nbytes}')
    e(f's_mov_b32 s{d+3}, 0x00020000')
def vp(r): return f'v[{r}:{r+1}]'
def vr(r): return f'v[{r}:{r+3}]'
def pkfma(d, sc, a, b, nega=False):
    neg = ' neg_lo:[0,1,0] neg_hi:[0,1,0]' if nega else ''
    e(f'v_pk_fma_f32 {vp(d)}, s[{sc}:{sc+1}], {vp(a)}, {vp(b)}{neg}')
def pkadd(d, a, b, negb=False):
    neg = ' neg_lo:[0,1] neg_hi:[0,1]' if negb else ''
    e(f'v_pk_add_f32 {vp(d)}, {vp(a)}, {vp(b)}{neg}')
def sconst2(s, x):
    e(f's_mov_b32 s{s}, {fh(x)}'); e(f's_mov_b32 s{s+1}, {fh(x)}')
def stamp(i):
    if opt['stamps']: e(f's_memrealtime s[{64+2*i}:{65+2*i}]')
def PK(b, pm):
    n = pm*4 + b
    return 184 + 4*n if n < 18 else 16 + 4*(n-18)
PA = lambda b: 32 + b
PT = 24

def gettag(name):
    lab(f'L_tag{name}')
    e('buffer_load_dwordx2 v[24:25], v37, s[16:19], 0 offen sc1')
    e('s_add_u32 s31, s31, 1')
    e('s_cmp_gt_u32 s31, 400000')
    e(f's_cbranch_scc1 L_tagd{name}')
    e('s_waitcnt vmcnt(0)')
    e('v_readfirstlane_b32 s92, v24')
    e('v_readfirstlane_b32 s93, v25')
    e('s_nop 3')
    e('s_cmp_eq_u32 s92, 0')
    e(f's_cbranch_scc1 L_tag{name}')
    lab(f'L_tagd{name}')
def setflag(pre):
    for x in pre: e(x)
    e('v_mov_b32 v38, s92')
    e('v_mov_b32 v39, s93')
    e('s_mov_b64 exec, 1')
    e('buffer_store_dwordx2 v[38:39], v37, s[20:23], s30 offen sc1')
    e('s_mov_b64 exec, -1')
def poll_issue(off):
    if off == 'A':
        e(f's_mov_b32 s30, {FLAG_OFF+AFL}')
        for k in range(4): e(f'buffer_load_dwordx2 {vp(PT+2*k)}, v{42+k}, s[20:23], s30 offen sc1')
        return
    e(f's_mov_b32 s30, {FLAG_OFF+off}')
    e(f'buffer_load_dwordx4 {vr(PT)}, v36, s[20:23], s30 offen{PF_}')
    e(f'buffer_load_dwordx4 {vr(PT+4)}, v36, s[20:23], s30 offen offset:16{PF_}')
def poll_check():
    e(f'v_cmp_ne_u64 vcc, s[92:93], {vp(PT)}')
    for k in range(1, 4):
        e(f'v_cmp_ne_u64 s[88:89], s[92:93], {vp(PT+2*k)}')
        e('s_or_b64 vcc, vcc, s[88:89]')
def poll(off, name, slp=None):
    e('s_mov_b32 s31, 0')
    lab(f'L_poll{name}')
    poll_issue(off)
    e('s_add_u32 s31, s31, 1')
    e('s_cmp_gt_u32 s31, 400000')
    e(f's_cbranch_scc1 L_pdone{name}')
    e('s_waitcnt vmcnt(0)')
    poll_check()
    e(f's_cbranch_scc0 L_pdone{name}')
    if opt['shr']: e('s_mov_b64 exec, vcc')
    e(f's_sleep {opt["slp"] if slp is None else slp}')
    e(f's_branch L_poll{name}')
    lab(f'L_pdone{name}')
    if opt['shr']: e('s_mov_b64 exec, -1')

e('s_cmp_ge_u32 s2, 252')
e('s_cbranch_scc1 L_end')
if opt['stamps']:
    for i in range(24): e(f's_mov_b32 s{64+i}, 0')
stamp(0)
if opt['trip'] or opt['dead']: e('s_memrealtime s[64:65]')
e('s_load_dwordx4 s[4:7], s[0:1], 0')
e('s_load_dwordx2 s[8:9], s[0:1], 16')
e('s_load_dwordx4 s[56:59], s[0:1], 32')
e('v_lshrrev_b32 v1, 6, v0')
e('v_and_b32 v2, 63, v0')
e('v_readfirstlane_b32 s26, v1')
if opt['cpf']:
    c('pull the kernel code towards L2 first (1 KB per participating wave)')
    e('s_getpc_b64 s[44:45]')
    lab('L_pc')
    if opt['cpf'] == 1:
        e('s_lshl_b32 s42, s2, 10')
        e('s_and_b32 s42, s42, 0x6000')
        e('v_lshlrev_b32 v102, 4, v0')
    elif opt['cpf'] == 2:
        e('s_lshl_b32 s42, s2, 7')
        e('s_and_b32 s42, s42, 0x7c00')
        e('v_lshlrev_b32 v102, 4, v2')
        e('v_lshl_add_u32 v102, v1, 20, v102')
    else:
        e('s_lshl_b32 s42, s2, 8')
        e('s_and_b32 s42, s42, 0x7800')
        e('v_lshlrev_b32 v102, 4, v0')
        e('v_lshrrev_b32 v103, 1, v1')
        e('v_lshl_add_u32 v102, v103, 20, v102')
    e('s_and_b32 s45, s45, 0xffff')
    e('s_mov_b32 s46, L_end-L_pc')
    e('s_mov_b32 s47, 0x00020000')
    e(f'buffer_load_dwordx4 {vr(180)}, v102, s[44:47], s42 offen')
else: e('s_nop 1')
def common():
    if opt['wso']:
        e(f's_add_u32 s58, s58, {opt["wso"] << 20}')
        e('s_addc_u32 s59, s59, 0')
    srd(20, 58, 59, WS_USED)
    srd(16, 56, 57, 256)
    e('s_mov_b32 s33, 0xffff0000')
    e('v_mov_b32 v37, 0')
    for b in range(4): e(f'v_mov_b32 v{PA(b)}, {OOB}')
    for b in range(4): e(f's_mov_b32 s{96+b}, {3*XS}')
    e('s_mov_b32 s31, 0')
    e('s_mov_b32 s92, 0')
    e('s_mov_b32 s93, 0')
    e('s_cmp_ge_u32 s2, 125')
    e(f's_cselect_b32 s50, {2*21*XS - 125*1536}, 0')
    e('s_mul_i32 s51, s2, 1536')
    e('s_add_u32 s50, s50, 768')
    e('s_add_u32 s50, s50, s51')
    e(f's_add_u32 s51, s50, {3*XS}')
    e(f's_mov_b32 s35, {XL+64}')
e('s_lshr_b32 s28, s26, 1')
e('s_cmp_eq_u32 s28, 2')
e('s_cbranch_scc1 Lp_w')
def xaddr(su, va, vd):
    e(f's_lshl_b32 s28, s{su}, 6')
    e('v_add_u32 v3, s28, v2')
    e('v_mul_u32_u24 v4, 683, v3')
    e('v_lshrrev_b32 v4, 16, v4')
    e('v_mul_u32_u24 v5, 96, v4')
    e('v_sub_u32 v3, v3, v5')
    e(f'v_mul_u32_u24 v{va}, 43, v3')
    e(f'v_lshrrev_b32 v{va}, 8, v{va}')
    e(f'v_mul_u32_u24 v{va}, {2304-96}, v{va}')
    e(f'v_lshl_add_u32 v{va}, v3, 4, v{va}')
    e(f'v_add3_u32 v{va}, v{va}, v5, s35')
    e('v_cmp_le_u32 vcc, 3, v4')
    e(f'v_mul_u32_u24 v{vd}, {XS}, v4')
    e(f'v_mov_b32 v5, {18*XS}')
    e(f'v_lshl_add_u32 v{vd}, v3, 4, v{vd}')
    e('v_cndmask_b32 v5, 0, v5, vcc')
    e(f'v_add_u32 v{vd}, v{vd}, v5')
def xpair(va, vd):
    for s in range(6): e(f'ds_read_b128 {vr(120+4*s)}, v{va} offset:{(12-2*s)*288}')
    for dw in range(4):
        for s in range(6):
            if dw == 0: e(f's_waitcnt lgkmcnt({5-s})')
            e(f'v_lshlrev_b32 v{148+2*s}, 16, v{120+4*s+dw}')
            e(f'v_and_b32 v{149+2*s}, s33, v{120+4*s+dw}')
        D = lambda s: 148+2*s
        pkfma(162, 46, D(2), D(4))
        pkfma(164, 46, D(3), D(5))
        pkfma(162, 44, D(0), 162)
        pkfma(164, 44, D(1), 164)
        pkfma(166, 48, 162, 164)
        pkfma(168, 48, 162, 164, nega=True)
        e(f'v_cvt_pk_bf16_f32 v{172+dw}, v166, v167')
        e(f'v_cvt_pk_bf16_f32 v{176+dw}, v168, v169')
    e(f'buffer_store_dwordx4 v[172:175], v{vd}, s[20:23], s50 offen sc1')
    e(f'buffer_store_dwordx4 v[176:179], v{vd}, s[20:23], s51 offen sc1')
def xrest(va, b):
    for s in range(7): e(f'ds_read_b128 {vr(120+4*s)}, v{va} offset:{(12-2*s)*288}')
    for dw in range(4):
        for s in range(7):
            if dw == 0: e(f's_waitcnt lgkmcnt({6-s})')
            e(f'v_lshlrev_b32 v{148+2*s}, 16, v{120+4*s+dw}')
            e(f'v_and_b32 v{149+2*s}, s33, v{120+4*s+dw}')
        D = lambda s: 148+2*s
        for t in range(2):
            q0, q1, aa = 36+6*t, 38+6*t, 40+6*t
            pkfma(162, q1, D(2), D(4))
            pkfma(164, q1, D(3), D(5))
            pkfma(162, q0, D(0), 162)
            pkfma(164, q0, D(1), 164)
            pkfma(166, aa, 162, 164)
            pkfma(168, aa, 162, 164, nega=True)
            e(f'v_cvt_pk_bf16_f32 v{PK(b,2*t)+dw}, v166, v167')
            e(f'v_cvt_pk_bf16_f32 v{PK(b,2*t+1)+dw}, v168, v169')
        pkfma(162, 54, D(4), D(6))
        pkfma(162, 52, D(2), 162)
        pkfma(162, 48, D(0), 162)
        e(f'v_cvt_pk_bf16_f32 v{PK(b,4)+dw}, v162, v163')
for t in range(3):
    a = PTS[2*t]; q0 = BT[2*t][1]; q1 = BT[2*t][3]
    assert abs(BT[2*t][0] - a*q0) < 1e-12 and abs(BT[2*t][2] - a*q1) < 1e-12 and abs(BT[2*t][4]-a) < 1e-12
e('s_sub_u32 s27, s26, 2')
e('s_cmp_lt_u32 s26, 4')
e('s_cselect_b32 s27, s26, s27')
e('s_cmp_ge_u32 s2, 250')
e('s_cbranch_scc1 Lp_zero')
e('s_cmp_ge_u32 s2, 125')
e('s_cselect_b32 s24, 4608000, 0')
e('s_mul_i32 s28, s2, 36864')
e('s_sub_u32 s28, s28, s24')
e('s_sub_u32 s28, s28, 1792')
e('s_lshl_b32 s29, s27, 10')
e('s_add_u32 s28, s28, s29')
e('v_lshlrev_b32 v6, 4, v2')
e('v_add_u32 v6, s28, v6')
e(f's_mov_b32 s14, {0 if opt["skx"] else 4608000}')
e('s_mov_b32 s15, 0x00020000')
e(f's_add_u32 m0, s29, {XL}')
e('s_waitcnt lgkmcnt(0)')
e('s_add_u32 s12, s4, s24'); e('s_addc_u32 s13, s5, 0')
e('s_and_b32 s13, s13, 0xffff')
for i in range(7):
    if i == 6:
        e('s_cmp_ge_u32 s27, 2')
        e('s_cbranch_scc1 Lp_xl')
    e(f'buffer_load_dwordx4 v6, s[12:15], 0 offen{LDF} lds')
    if i < 6:
        e(f's_add_u32 m0, s29, {XL + (i+1)*6144}')
        e('v_add_u32 v6, 6144, v6')
lab('Lp_xl')
common()
e('s_add_u32 s28, s2, s26')
e('s_cmp_lg_u32 s28, 0')
e('s_cbranch_scc1 Lp_x0')
c('WG 0 wave 0 publishes the launch tag in d_debug')
e('s_memrealtime s[92:93]')
e('s_waitcnt lgkmcnt(0)')
e('s_or_b32 s92, s92, 1')
e('v_mov_b32 v38, s92')
e('v_mov_b32 v39, s93')
e('s_mov_b64 exec, 1')
e('buffer_store_dwordx2 v[38:39], v37, s[16:19], 0 offen sc1')
e('s_mov_b64 exec, -1')
lab('Lp_x0')
c('pass-1 units: wave0:8 wave1:4,5 wave2:0,1 wave3:2,3 wave6:6 wave7:7')
e('s_lshl_b32 s28, s26, 2')
e('s_lshr_b32 s30, 0x76002048, s28')
e('s_and_b32 s30, s30, 15')
xaddr(30, 6, 7)
e('s_add_u32 s30, s30, 1')
xaddr(30, 14, 15)
sconst2(44, BT[0][1]); sconst2(46, BT[0][3]); sconst2(48, PTS[0])
stamp(7)
e('s_waitcnt vmcnt(0)')
stamp(8)
e('s_barrier')
stamp(1)
e('s_cmp_lg_u32 s26, 0')
e('s_cbranch_scc1 Lp_x1')
e('buffer_load_dwordx2 v[24:25], v37, s[16:19], 0 offen sc1')
lab('Lp_x1')
xpair(6, 7)
e('s_bitcmp1_b32 0x0e, s26')
e('s_cbranch_scc0 Lp_x2')
xpair(14, 15)
lab('Lp_x2')
e('s_cmp_ge_u32 s26, 4')
e('s_cbranch_scc1 Lp_h67')
lab('Lp_s2')
if opt['fl']:
    e('v_lshlrev_b32 v9, 4, v2')
    e('s_lshl_b32 s30, s2, 7')
    e(f's_add_u32 s30, s30, {FLAG_OFF+AFL}')
else:
    e(f'v_mul_u32_u24 v9, {RSTR}, v2')
    e('s_lshl_b32 s30, s2, 3')
    e(f's_add_u32 s30, s30, {FLAG_OFF}')
e('s_cmp_lg_u32 s26, 0')
e('s_cbranch_scc1 Lp_s2b')
e('s_cmp_ge_u32 s2, 250')
e('s_cbranch_scc1 L_taga')
e('s_waitcnt vmcnt(2)')
e('v_readfirstlane_b32 s92, v24')
e('v_readfirstlane_b32 s93, v25')
e('s_nop 3')
e('s_cmp_lg_u32 s92, 0')
e('s_cbranch_scc1 L_tagda')
gettag('a')
e('v_mov_b32 v38, s92')
e('v_mov_b32 v39, s93')
e('v_mov_b32 v40, s92')
e('v_mov_b32 v41, s93')
lab('Lp_s2b')
e('s_waitcnt vmcnt(0)')
e('s_barrier')
e('s_cmp_lg_u32 s26, 0')
e('s_cbranch_scc1 L_pdone')
if opt['fl']:
    e('s_mov_b64 exec, 0xff')
    e('buffer_store_dwordx4 v[38:41], v9, s[20:23], s30 offen sc1')
else:
    e(f's_mov_b64 exec, {(1<<REP)-1}')
    e('buffer_store_dwordx2 v[38:39], v9, s[20:23], s30 offen sc1')
e('s_mov_b64 exec, -1')
stamp(2)
e('s_branch L_pdone')
def xcoef2():
    for t in (1, 2):
        sconst2(36+6*(t-1), BT[2*t][1]); sconst2(38+6*(t-1), BT[2*t][3]); sconst2(40+6*(t-1), PTS[2*t])
    sconst2(48, BT[6][0]); sconst2(52, BT[6][2]); sconst2(54, BT[6][4])
    e(f's_add_u32 s34, s50, {6*XS}')
lab('Lp_h67')
c('waves 6,7 pass 2: own unit (block 1), then units 2(w-6), 2(w-6)+1 (blocks 2,3)')
xcoef2()
e(f'v_add_u32 v{PA(1)}, s34, v7')
if opt['early']: xrest(6, 1)
e('s_waitcnt vmcnt(0)')
e('s_barrier')
if not opt['early']: xrest(6, 1)
e('s_sub_u32 s30, s26, 6')
e('s_lshl_b32 s30, s30, 1')
lab('Lp_x23')
xaddr(30, 6, 7)
e(f'v_add_u32 v{PA(2)}, s34, v7')
xrest(6, 2)
e('s_add_u32 s30, s30, 1')
lab('Lp_x3')
xaddr(30, 6, 7)
e(f'v_add_u32 v{PA(3)}, s34, v7')
xrest(6, 3)
e('s_branch L_pdone')
lab('Lp_zero')
c('WGs 250,251: zero the 8 leading rows of the 42 arrays of batch b')
e('s_waitcnt lgkmcnt(0)')
common()
e('s_sub_u32 s3, s2, 250')
e(f's_mul_i32 s30, s3, {2*21*XS}')
e('s_lshl_b32 s28, s27, 6')
e('v_add_u32 v3, s28, v2')
for k in range(4): e(f'v_mov_b32 v{16+k}, 0')
for i in range(6):
    e('v_mul_u32_u24 v4, 1366, v3')
    e('v_lshrrev_b32 v4, 16, v4')
    e('v_mul_u32_u24 v5, 48, v4')
    e('v_sub_u32 v5, v3, v5')
    e(f'v_mul_u32_u24 v4, {XS}, v4')
    e('v_lshl_add_u32 v4, v5, 4, v4')
    e('v_cmp_gt_u32 vcc, 2016, v3')
    e(f'v_mov_b32 v5, {OOB}')
    e('v_add_u32 v3, 384, v3')
    e('v_cndmask_b32 v4, v5, v4, vcc')
    e('buffer_store_dwordx4 v[16:19], v4, s[20:23], s30 offen sc1')
e('s_barrier')
e('s_branch Lp_s2')
lab('Lp_w')
e('s_and_b32 s27, s26, 1')
c('w unit: XCD x = id&7 owns a contiguous range of units; local i = id>>3 < 9 takes two')
e('s_and_b32 s28, s2, 7')
e('s_lshr_b32 s29, s2, 3')
e('s_mul_i32 s3, s28, 40')
e('s_min_u32 s30, s28, 4')
e('s_add_u32 s3, s3, s30')
e('s_add_u32 s3, s3, s29')
e('s_min_u32 s30, s29, 9')
e('s_add_u32 s3, s3, s30')
e('s_add_u32 s3, s3, s27')
e('s_mul_i32 s30, s27, s29')
e('s_cmp_ge_u32 s30, 9')
e('s_cbranch_scc1 Lp_wo')
def posdec(P, ko, pos, kk, o, tmp):
    e(f'v_mul_u32_u24 v{ko}, 58255, v{P}')
    e(f'v_lshrrev_b32 v{ko}, 22, v{ko}')
    e(f'v_mul_u32_u24 v{tmp}, 72, v{ko}')
    e(f'v_sub_u32 v{pos}, v{P}, v{tmp}')
    e(f'v_mul_u32_u24 v{kk}, 3641, v{ko}')
    e(f'v_lshrrev_b32 v{kk}, 16, v{kk}')
    e(f'v_mul_u32_u24 v{tmp}, 18, v{kk}')
    e(f'v_sub_u32 v{o}, v{ko}, v{tmp}')
G_ = lambda r, ch: 40+2*(8*r+ch)
e('s_lshl_b32 s28, s3, 5')
e('v_and_b32 v3, 31, v2')
e('v_add_u32 v4, s28, v3')
posdec(4, 5, 6, 7, 8, 9)
e(f'v_mul_u32_u24 v7, {4*82944}, v7')
e('v_mul_u32_u24 v8, 4608, v8')
e('v_lshrrev_b32 v9, 5, v2')
e('v_mul_u32_u24 v10, 288, v9')
e('v_add3_u32 v7, v7, v8, v10')
e('v_lshl_add_u32 v6, v6, 2, v7')
e('s_waitcnt lgkmcnt(0)')
srd(12, 6, 7, 0 if opt['skw'] else 31*144*288*2)
if opt['word']:
    for r in range(1, 4): e(f's_mov_b32 s{36+r}, {82944*r}')
    for ch in range(8):
        for r in range(4):
            e(f'buffer_load_dword v{G_(r,ch)+1}, v6, s[12:15], {"s%d" % (36+r) if r else 0} offen offset:{ch*576}{LDF}')
else:
  for r in range(4):
    for ch in range(8):
        e(f'buffer_load_dword v{G_(r,ch)+1}, v6, s[12:15], 0 offen offset:{ch*576}{LDF}')
    if r < 3: e('v_add_u32 v6, 82944, v6')
stamp(7)
common()
e('s_lshl_b32 s29, s27, 14')
e(f's_add_u32 s29, s29, {WL}')
e('v_lshlrev_b32 v10, 6, v3')
e('v_lshl_add_u32 v10, v9, 5, v10')
e('v_add_u32 v10, s29, v10')
e('v_lshlrev_b32 v11, 4, v2')
e('v_add_u32 v11, s29, v11')
for h in range(2):
    e('v_lshrrev_b32 v4, 2, v2')
    e(f'v_add3_u32 v4, v4, s28, {16*h}')
    posdec(4, 5, 6, 7, 8, 9)
    e('v_mul_u32_u24 v4, 43, v8')
    e('v_lshrrev_b32 v4, 8, v4')
    e('v_mul_u32_u24 v5, 6, v4')
    e('v_sub_u32 v5, v8, v5')
    e('v_lshrrev_b32 v8, 1, v7')
    e('v_add_u32 v8, 8, v8')
    e('v_and_b32 v9, 1, v7')
    e('v_lshl_add_u32 v9, v9, 1, v5')
    e('v_subrev_u32 v9, 4, v9')
    e('v_cmp_le_u32 vcc, 4, v5')
    e('v_mul_u32_u24 v4, 24576, v4')
    e('v_lshrrev_b32 v14, 3, v6')
    e('v_cndmask_b32 v8, v7, v8, vcc')
    e('v_cndmask_b32 v9, v5, v9, vcc')
    e(f'v_mul_u32_u24 v14, {21*24576}, v14')
    e('v_bfe_u32 v15, v6, 2, 1')
    e('v_mul_u32_u24 v15, 12288, v15')
    e(f'v_add3_u32 v{12+h}, v4, v14, v15')
    e(f'v_lshl_add_u32 v{12+h}, v8, 10, v{12+h}')
    e(f'v_lshl_add_u32 v{12+h}, v9, 8, v{12+h}')
    e('v_and_b32 v4, 3, v6')
    e(f'v_lshl_add_u32 v{12+h}, v4, 6, v{12+h}')
    e('v_and_b32 v4, 3, v2')
    e(f'v_lshl_add_u32 v{12+h}, v4, 4, v{12+h}')
def wcoef(t):
    for r in range(4):
        assert abs(GS[2*t+1][r] - (1 if r % 2 == 0 else -1)*GS[2*t][r]) < 1e-12
        e(f'v_mul_f32 v{160+2*r}, {fh(GS[2*t][r])}, v14')
        e(f'v_mov_b32 v{161+2*r}, v{160+2*r}')
e(f's_mov_b32 s34, {WT_OFF}')
e('v_cmp_le_u32 vcc, 32, v2')
e(f'v_mov_b32 v14, {fh(-2*LOG2E)}')
e(f'v_mov_b32 v15, {fh(-LOG2E)}')
e('v_cndmask_b32 v14, v14, v15, vcc')
e('v_mov_b32 v15, v14')
wcoef(0)
stamp(8)
e('s_barrier')
stamp(1)
e('s_waitcnt vmcnt(0)')
stamp(2)
for k in range(32):
    e(f'v_lshlrev_b32 v{40+2*k}, 16, v{41+2*k}')
    e(f'v_and_b32 v{41+2*k}, s33, v{41+2*k}')
e('s_mov_b32 s53, 0')
lab('Lp_wloop')
for dw in range(4):
    for c2 in range(2):
        ch = 2*dw+c2
        E, O = 104+4*c2, 106+4*c2
        e(f'v_pk_mul_f32 {vp(E)}, {vp(160)}, {vp(G_(0,ch))}')
        e(f'v_pk_mul_f32 {vp(O)}, {vp(162)}, {vp(G_(1,ch))}')
        e(f'v_pk_fma_f32 {vp(E)}, {vp(164)}, {vp(G_(2,ch))}, {vp(E)}')
        e(f'v_pk_fma_f32 {vp(O)}, {vp(166)}, {vp(G_(3,ch))}, {vp(O)}')
        pkadd(112+4*c2, O, E)
        pkadd(114+4*c2, E, O, negb=True)
    for sgn in range(2):
        for n in range(2):
            e(f'v_cvt_pk_bf16_f32 v{120+8*sgn+4*n+dw}, v{112+2*sgn+n}, v{116+2*sgn+n}')
for sgn in range(2):
    for n in range(2):
        e(f'ds_write_b128 v10, {vr(120+8*sgn+4*n)} offset:{sgn*2048 + n*16}')
e('s_add_u32 s53, s53, 1')
e('s_waitcnt lgkmcnt(0)')
e('v_add_u32 v10, 4096, v10')
e('s_cmp_eq_u32 s53, 3')
e('s_cbranch_scc1 Lp_w3')
e('s_cmp_eq_u32 s53, 1')
e('s_cbranch_scc1 Lp_w1')
wcoef(2)
if opt['early']:
    e('s_waitcnt vmcnt(0)')
    e('s_barrier')
e('s_branch Lp_wloop')
lab('Lp_w1')
for k in range(4): e(f'ds_read_b128 {vr(136+4*k)}, v11 offset:{k*1024}')
for k in range(4):
    e(f's_waitcnt lgkmcnt({3-k})')
    e(f'buffer_store_dwordx4 {vr(136+4*k)}, v{12+k%2}, s[20:23], s34 offen sc1')
    if k % 2 == 1: e(f's_add_u32 s34, s34, {3*24576}')
wcoef(1)
if not opt['early']:
    e('s_waitcnt vmcnt(0)')
    e('s_barrier')
e('s_branch Lp_wloop')
lab('Lp_w3')
for ch in range(8): e(f'v_pk_mul_f32 {vp(G_(3,ch))}, {vp(G_(3,ch))}, v[14:15]')
for n in range(2):
    for dw in range(4):
        e(f'v_cvt_pk_bf16_f32 v{120+4*n+dw}, v{G_(3,2*dw)+n}, v{G_(3,2*dw+1)+n}')
    e(f'ds_write_b128 v10, {vr(120+4*n)} offset:{n*16}')
e('s_waitcnt lgkmcnt(0)')
for k in range(10):
    e(f'ds_read_b128 {vr(PK(k % 2, k//2))}, v11 offset:{4096 + k*1024}')
e(f'v_add_u32 v{PA(0)}, s34, v12')
e(f'v_add_u32 v{PA(1)}, s34, v13')
e(f's_mov_b32 s96, {3*24576}')
e(f's_mov_b32 s97, {3*24576}')
e('s_waitcnt lgkmcnt(0)')
lab('Lp_wx')
c('then x pass 2: wave 4: unit 8 (block 3) ; wave 5: units 4,5 (blocks 2,3)')
e('s_cmp_ge_u32 s2, 250')
e('s_cbranch_scc1 L_pdone')
xcoef2()
e('s_mov_b32 s30, 8')
e('s_cmp_eq_u32 s26, 4')
e('s_cbranch_scc1 Lp_x3')
e('s_mov_b32 s30, 4')
e('s_branch Lp_x23')
lab('Lp_wo')
e('s_waitcnt lgkmcnt(0)')
common()
e('s_sub_u32 s3, s2, 72')
e('s_cmp_ge_u32 s3, 45')
e('s_cbranch_scc1 Lp_wo2')
srd(12, 8, 9, 144*144*2)
e('s_mul_i32 s28, s3, 13108')
e('s_lshr_b32 s28, s28, 16')
e('s_mul_i32 s29, s28, 5')
e('s_sub_u32 s29, s3, s29')
e('v_and_b32 v7, 15, v2')
e('v_lshrrev_b32 v8, 4, v2')
e('s_cmp_eq_u32 s28, 8')
e('s_cselect_b32 s30, 1, 4')
e('s_cselect_b32 s34, 256, 0')
e('s_cselect_b32 s28, 0, s28')
e('s_lshl_b32 s28, s28, 1')
e('s_add_u32 s34, s34, s28')
e(f's_mul_i32 s29, s29, {32*288}')
e('s_add_u32 s34, s34, s29')
e('v_lshlrev_b32 v9, s30, v7')
e('v_mul_u32_u24 v14, 576, v8')
e('v_add3_u32 v14, v14, v9, s34')
for d in range(4):
    e(f'buffer_load_ushort v{40+2*d}, v14, s[12:15], 0 offen')
    e(f'buffer_load_ushort v{41+2*d}, v14, s[12:15], 0 offen offset:288')
    if d < 3: e('v_add_u32 v14, 2304, v14')
e('s_lshl_b32 s3, s3, 10')
e(f's_add_u32 s3, s3, {WO_OFF}')
e('v_lshlrev_b32 v1, 4, v2')
e('s_barrier')
e('s_waitcnt vmcnt(0)')
for d in range(4):
    e(f'v_lshl_or_b32 v{48+d}, v{41+2*d}, 16, v{40+2*d}')
e('buffer_store_dwordx4 v[48:51], v1, s[20:23], s3 offen sc1')
e('s_waitcnt vmcnt(0)')
e('s_barrier')
e('s_branch Lp_wx')
lab('Lp_wo2')
e('s_barrier')
e('s_barrier')
e('s_branch Lp_wx')

def M(t): return 12 + 4*t
def MD(t): return 48 + 4*t
def FR(k): return vr(84 + 4*k)
lab('L_pdone')
e('v_lshlrev_b32 v101, 4, v2')
e('v_min_u32 v36, 62, v2')
e('v_lshlrev_b32 v36, 5, v36')
e(f's_and_b32 s30, s2, {REP-1}')
e(f's_mul_i32 s30, s30, {RSTR}')
e('v_add_u32 v36, s30, v36')
e(f'v_mul_u32_u24 v12, {RSTR}, v2')
c('unit = base[xcd] + (id>>3)')
e('s_and_b32 s25, s2, 7')
e('s_lshr_b32 s24, s2, 3')
e('s_mul_i32 s27, s25, 31')
e('s_min_u32 s28, s25, 4')
e('s_add_u32 s27, s27, s28')
e('s_add_u32 s27, s27, s24')
e('s_mul_i32 s28, s27, 7282')
e('s_lshr_b32 s28, s28, 16')
e('s_mul_i32 s29, s28, 9')
e('s_sub_u32 s29, s27, s29')
e('s_and_b32 s24, s26, 3')
e('s_lshr_b32 s32, s24, 1')
e('s_and_b32 s33, s24, 1')
e('s_mul_i32 s34, s24, 7168')
e('s_mul_i32 s35, s24, 6144')
c('z soffset s62: (((g*2+rh)*9+gs)*18+J)*1024')
e('s_lshl_b32 s62, s28, 1')
e('s_add_u32 s62, s62, s32')
e(f's_mul_i32 s62, s62, {9*18*1024}')
e('s_lshl_b32 s63, s29, 1')
e('s_add_u32 s63, s63, s33')
e('s_lshl_b32 s63, s63, 10')
e('s_add_u32 s62, s62, s63')
e(f's_add_u32 s62, s62, {Z_OFF}')
if opt['gmap']:
    c('g = (b*7+gg)*2 + p')
    e('s_lshr_b32 s38, s28, 1')
    e('s_and_b32 s30, s28, 1')
    e('s_cmp_ge_u32 s38, 7')
    e('s_cselect_b32 s36, 7, 0')
    e('s_cselect_b32 s37, 2, 0')
    e('s_sub_u32 s38, s38, s36')
    e('s_add_u32 s30, s30, s37')
else:
    e('s_mul_i32 s30, s28, 9363')
    e('s_lshr_b32 s30, s30, 16')
    e('s_mul_i32 s38, s30, 7')
    e('s_sub_u32 s38, s28, s38')
e(f's_mul_i32 s36, s30, {21*XS}')
e('s_mul_i32 s37, s38, 27648')
e('s_add_u32 s36, s36, s37')
e('s_add_u32 s36, s36, s34')
e(f's_mul_i32 s37, s29, {21*24576}')
e('s_add_u32 s37, s37, s35')
e(f's_add_u32 s37, s37, {WT_OFF}')
c('last row group of a stream: do not fetch the never-written padding rows (KB 26 lanes >= 16, KB 27): v6, v7 = voffsets for those two chunks')
e('s_cmp_eq_u32 s38, 6')
e('s_cselect_b32 s60, 16, 64')
e('s_cselect_b32 s61, 0, 64')
e(f'v_mov_b32 v8, {OOB}')
e('v_cmp_gt_u32 vcc, s60, v2')
e('v_cmp_gt_u32 s[88:89], s61, v2')
e('s_nop 0')
e('v_cndmask_b32 v6, v8, v101, vcc')
e('v_cndmask_b32 v7, v8, v101, s[88:89]')
e('s_cmp_ge_u32 s26, 4')
e('s_cbranch_scc1 L_helper')
e('s_cmp_lg_u32 s26, 0')
e('s_cbranch_scc1 L_c13')
c('wave 0: wait for all A flags, then load the whole phase 0 tile')
if opt['agg']:
    e('s_cmp_lg_u32 s2, 0')
    e('s_cbranch_scc1 L_gow')
if opt['dly']: e(f's_sleep {opt["dly"]}')
if opt['fl']:
    for k in range(4):
        e(f'v_add_u32 v{42+k}, {64*k}, v2')
        e(f'v_min_u32 v{42+k}, 251, v{42+k}')
        e(f'v_lshlrev_b32 v{42+k}, 7, v{42+k}')
    e('v_lshrrev_b32 v46, 3, v2')
    e('v_mul_u32_u24 v46, 4352, v46')
    e('v_and_b32 v47, 7, v2')
    e('v_lshl_add_u32 v46, v47, 4, v46')
poll('A' if opt['fl'] else 0, 'A')
if opt['agg']:
    c('WG 0 saw all A flags: release everybody through 8 go words')
    e(f's_mov_b32 s30, {FLAG_OFF+GOF}')
    if opt['fl']:
        e('buffer_store_dwordx4 v[38:41], v46, s[20:23], s30 offen sc1')
    else:
        e('v_mul_u32_u24 v9, 4352, v2')
        e('s_mov_b64 exec, 0xff')
        e('buffer_store_dwordx2 v[38:39], v9, s[20:23], s30 offen sc1')
        e('s_mov_b64 exec, -1')
    e('s_branch L_god')
    lab('L_gow')
    e('s_mul_i32 s30, s25, 4352')
    e(f's_add_u32 s30, s30, {FLAG_OFF+GOF}')
    e('s_mov_b32 s31, 0')
    e('s_mov_b64 exec, 1')
    lab('L_gol')
    e('buffer_load_dwordx2 v[24:25], v37, s[20:23], s30 offen sc1')
    e('s_add_u32 s31, s31, 1')
    e('s_cmp_gt_u32 s31, 800000')
    e('s_cbranch_scc1 L_gox')
    e('s_waitcnt vmcnt(0)')
    e('v_cmp_ne_u64 vcc, s[92:93], v[24:25]')
    e('s_cbranch_vccz L_gox')
    e(f's_sleep {opt["gslp"]}')
    e('s_branch L_gol')
    lab('L_gox')
    e('s_mov_b64 exec, -1')
    lab('L_god')
stamp(3)
for k in range(52):
    if k % 4 == 0:
        e(f's_mov_b32 m0, {k*1024}')
        e(f's_add_u32 s30, s36, {k*1024}' if k < 28 else f's_add_u32 s30, s37, {(k-28)*1024}')
    e(f'buffer_load_dwordx4 v{ {26: 6, 27: 7}.get(k, 101) }, s[20:23], s30 offen offset:{(k%4)*1024} sc1 lds')
lab('L_c13')
e('s_barrier')
if opt['prio']: e(f's_setprio {opt["prio"]}')
e('v_and_b32 v124, 15, v2')
e('v_lshrrev_b32 v125, 4, v2')
e('v_mul_u32_u24 v126, 864, v124')
e('s_mul_i32 s38, s32, 13824')
e('v_add_u32 v126, s38, v126')
e('v_lshl_add_u32 v2, v125, 4, v126')
e('v_lshrrev_b32 v127, 1, v125')
e('v_mul_u32_u24 v127, 96, v127')
e('v_sub_u32 v127, v126, v127')
e('v_and_b32 v128, 1, v125')
e('v_lshl_add_u32 v127, v128, 4, v127')
e('v_add_u32 v5, 160, v127')
e('s_mul_i32 s38, s33, 12288')
e('s_add_u32 s38, s38, 28672')
e('v_add_u32 v8, s38, v101')
for s in (1, 2):
    e(f'v_add_u32 v{2+s}, {s*SLOT}, v2')
    e(f'v_add_u32 v{5+s}, {s*SLOT}, v5')
    e(f'v_add_u32 v{8+s}, {s*SLOT}, v8')
if opt['sn32']: e('v_lshrrev_b32 v101, 2, v101')
e(f's_add_u32 s38, s34, {2*SLOT}')
e('v_add_u32 v1, s38, v101')
e(f's_add_u32 s38, s35, {2*SLOT+28672}')
e('v_add_u32 v11, s38, v101')
for r in range(48, 84): e(f'v_mov_b32 v{r}, 0')

frags = []; mf = []
if opt['mord']:
    for t in range(9):
        for kk in range(7, -1, -1): mf.append((t, ('W', kk), ('X', t-kk)))
    for t in (range(8, -1, -1) if opt['tdesc'] else range(9)):
        for pp in (range(4) if opt['tdesc'] else range(3, -1, -1)): mf.append((t, ('WT', pp), ('XT', t-2*pp)))
else:
  for tp in range(-7, 9):
    for kk in range(min(7, 8-tp), max(0, -tp)-1, -1):
        mf.append((tp+kk, ('W', kk), ('X', tp)))
  for tp in range(-6, 9):
    for pp in range(3, -1, -1):
        if 0 <= tp+2*pp <= 8: mf.append((tp+2*pp, ('WT', pp), ('XT', tp)))
assert len(mf) == 108
fu = {}
for s, (t, wk, xk) in enumerate(mf):
    for k in (xk, wk):
        if k not in fu: fu[k] = s; frags.append(k)
assert len(frags) == 43
fidx = {k: i for i, k in enumerate(frags)}
LA = opt['LA']; BAR = 108 - LA; ELAST = BAR - 6
iss = [(-LA + (k*(ELAST+LA))//42) for k in range(43)]
if opt['mord']:
    iss = [-LA + (k*(LA-2))//16 for k in range(17)] + [1 + (k*(ELAST-1))//25 for k in range(26)]
    lu = {}
    for s, (t, wk, xk) in enumerate(mf): lu[wk] = s; lu[xk] = s
    for k in range(43): assert iss[k] + 108 > lu[frags[k]] + 1, (k, iss[k], lu[frags[k]])
for k in range(43): assert iss[k] <= fu[frags[k]] - 8, (k, iss[k], fu[frags[k]])
def rd(k, slot):
    kind, i = frags[k]
    if kind == 'X': return f'ds_read_b128 {FR(k)}, v{2+slot} offset:{(i+8)*96}'
    if kind == 'XT': return f'ds_read_b128 {FR(k)}, v{5+slot} offset:{(i+7)*96}'
    if kind == 'W': return f'ds_read_b128 {FR(k)}, v{8+slot} offset:{i*1024}'
    return f'ds_read_b128 {FR(k)}, v{8+slot} offset:{(8+i)*1024}'
npre = sum(1 for x in iss if x < 0)
first_touch = {}; last_touch = {}
for s, (t, wk, xk) in enumerate(mf):
    first_touch.setdefault(t, s); last_touch[t] = s
def snapw(t):
    if opt['sn32']:
        t, r = divmod(t, 4)
        return f'ds_write_b32 v1, v{MD(t)+r} offset:{t*1024+r*256}' if t < 7 else f'ds_write_b32 v11, v{MD(t)+r} offset:{(t-7)*1024+r*256}'
    return f'ds_write_b128 v1, {vr(MD(t))} offset:{t*1024}' if t < 7 else f'ds_write_b128 v11, {vr(MD(t))} offset:{(t-7)*1024}'
QS = opt['QS']
ext = [[] for _ in range(324)]
for ph in range(3):
    for k in range(43):
        ext[(ph*108 + iss[k]) % 324].append(('rd', k, ph))
used = [len(x) for x in ext]
lastw = 0
if opt['sn32']:
    for n in range(36):
        pos = max(216 + last_touch[n//4] + 8, lastw + 1)
        lastw = pos
        assert pos >= 216 + BAR and pos < 324 + QS - 2, pos
        ext[pos % 324].append(('wr', n, 0))
else:
  for t in sorted(range(9), key=lambda t: last_touch[t]):
    pos = max(216 + last_touch[t] + 8, lastw + opt['wsp'], 216 + BAR + 1)
    while used[pos % 324]: pos += 1
    lastw = pos
    used[pos % 324] += 1
    assert pos >= 216 + BAR and pos < 324 + QS - 2
    ext[pos % 324].append(('wr', t, 0))
e('s_waitcnt vmcnt(0)')
stamp(4)
e('s_barrier')
stamp(5)
if opt['dbgst']: e('s_memtime s[90:91]')
for k in range(npre): e(rd(k, 0))
e('s_mov_b32 s39, 7')
e('s_waitcnt lgkmcnt(0)')
out.append('.p2align 6')
for _ in range(opt['pad']): e('s_nop 0')
lab('L_loop')
seq = 0; rseq = {}; covered = -1; wseq = -1; sslot = []
for it in range(2):
    emit = e if it == 1 else (lambda s: None)
    for ph in range(3):
        if it == 1: c(f'======== phase {ph}')
        for s, (t, wk, xk) in enumerate(mf):
            if s == BAR:
                emit('s_waitcnt lgkmcnt(0)')
                emit('s_barrier')
                covered = seq - 1
            if ph == 0 and s == QS:
                if wseq > covered:
                    emit(f's_waitcnt lgkmcnt({min(15, seq-1-wseq)})')
                    covered = max(covered, seq - 1 - min(15, seq-1-wseq))
                emit('s_barrier')
            need = max(rseq.get((ph, fidx[wk]), -1), rseq.get((ph, fidx[xk]), -1))
            if need > covered:
                now = it*324 + ph*108 + s
                recent = sum(1 for x in sslot if x >= now - opt['lat'])
                allow = min(seq - 1 - need, recent, 15)
                emit(f's_waitcnt lgkmcnt({allow})')
                covered = seq - 1 - allow
            cin = vr(MD(t)) if (ph == 0 and first_touch[t] == s) else vr(M(t))
            dst = vr(MD(t)) if (ph == 2 and last_touch[t] == s) else vr(M(t))
            emit(f'v_mfma_f32_16x16x32_bf16 {dst}, {FR(fidx[wk])}, {FR(fidx[xk])}, {cin}')
            for x in ext[ph*108+s]:
                if x[0] == 'rd':
                    emit(rd(x[1], x[2])); rseq[(x[2], x[1])] = seq; seq += 1; sslot.append(it*324 + ph*108 + s)
                else:
                    emit(snapw(x[1])); wseq = seq; seq += 1; sslot.append(it*324 + ph*108 + s)
            if ph == 2 and s == 104: emit('s_sub_u32 s39, s39, 1')
            if ph == 2 and s == 105: emit('s_cmp_lg_u32 s39, 0')
e('s_cbranch_scc1 L_loop')
stamp(6)
if opt['dbgst']: e('s_memtime s[94:95]')
c('---- compute-wave epilogue: gate y3 = MD')
e('s_waitcnt lgkmcnt(0)')
if opt['tr']: e('s_barrier')
def gate_consts():
    e(f's_mov_b32 s46, {fh(-0.6931471805599453)}')
    e(f's_mov_b32 s42, {fh(2*LOG2E*2**-12)}')
    e('s_mov_b32 s43, 0x41f00000')
def gate(a, r, dst, sp):
    L = []
    L.append(f'v_min_f32 v{r}, s43, v{a}')
    L.append(f'v_min_f32 v{r+1}, s43, v{a+1}')
    L.append(f'v_exp_f32 v{a+2}, v{a+2}')
    L.append(f'v_exp_f32 v{a+3}, v{a+3}')
    L.append(f'v_exp_f32 v{r}, v{r}')
    L.append(f'v_exp_f32 v{r+1}, v{r+1}')
    if opt['smallfix']:
        L.append(f'v_cmp_gt_f32 s[{sp}:{sp+1}], s42, abs(v{a})')
        L.append(f'v_cmp_gt_f32 s[{sp+2}:{sp+3}], s42, abs(v{a+1})')
    L.append(f'v_add_f32 v{r+2}, 1.0, v{r}')
    L.append(f'v_add_f32 v{r+3}, 1.0, v{r+1}')
    if opt['smallfix']:
        L.append(f'v_mul_f32 v{a}, s46, v{a}')
        L.append(f'v_mul_f32 v{a+1}, s46, v{a+1}')
    L.append(f'v_fmac_f32 v{r+2}, v{r+2}, v{a+2}')
    L.append(f'v_fmac_f32 v{r+3}, v{r+3}, v{a+3}')
    L.append(f'v_sub_f32 v{r}, 1.0, v{r}')
    L.append(f'v_sub_f32 v{r+1}, 1.0, v{r+1}')
    L.append(f'v_rcp_f32 v{r+2}, v{r+2}')
    L.append(f'v_rcp_f32 v{r+3}, v{r+3}')
    if opt['smallfix']:
        L.append(f'v_cndmask_b32 v{r}, v{r}, v{a}, s[{sp}:{sp+1}]')
        L.append(f'v_cndmask_b32 v{r+1}, v{r+1}, v{a+1}, s[{sp+2}:{sp+3}]')
    L.append(f'v_mul_f32 v{r}, v{r}, v{r+2}')
    L.append(f'v_mul_f32 v{r+1}, v{r+1}, v{r+3}')
    L.append(f'v_cvt_pk_bf16_f32 v{dst}, v{r}, v{r+1}')
    return L
ool = []
def gate_check(As, tm, name):
    for k, a in enumerate(As):
        if k == 0:
            e(f'v_min_f32 v{tm}, abs(v{a}), abs(v{a+1})')
            e(f'v_max_f32 v{tm+1}, v{a}, v{a+1}')
        else:
            e(f'v_min3_f32 v{tm}, abs(v{a}), abs(v{a+1}), v{tm}')
            e(f'v_max3_f32 v{tm+1}, v{a}, v{a+1}, v{tm+1}')
    e(f'v_cmp_gt_f32 s[44:45], s42, v{tm}')
    e(f'v_cmp_lt_f32 vcc, s43, v{tm+1}')
    e(f's_cbranch_vccnz L_cl{name}')
    lab(f'L_clr{name}')
    L = [f'L_cl{name}:']
    for a in As:
        L += [f'    v_min_f32 v{a}, s43, v{a}', f'    v_min_f32 v{a+1}, s43, v{a+1}']
    L.append(f'    s_branch L_clr{name}')
    ool.extend(L)
def gate_fast(a, r, dst, name):
    e(f'v_exp_f32 v{r}, v{a}')
    e(f'v_exp_f32 v{r+1}, v{a+1}')
    e(f'v_exp_f32 v{a+2}, v{a+2}')
    e(f'v_exp_f32 v{a+3}, v{a+3}')
    e(f'v_add_f32 v{r+2}, 1.0, v{r}')
    e(f'v_add_f32 v{r+3}, 1.0, v{r+1}')
    e('s_cmp_lg_u64 s[44:45], 0')
    e(f'v_fmac_f32 v{r+2}, v{r+2}, v{a+2}')
    e(f'v_fmac_f32 v{r+3}, v{r+3}, v{a+3}')
    e(f'v_sub_f32 v{r}, 1.0, v{r}')
    e(f'v_sub_f32 v{r+1}, 1.0, v{r+1}')
    e(f'v_rcp_f32 v{r+2}, v{r+2}')
    e(f'v_rcp_f32 v{r+3}, v{r+3}')
    e(f's_cbranch_scc1 L_sm{name}')
    lab(f'L_smr{name}')
    e(f'v_mul_f32 v{r}, v{r}, v{r+2}')
    e(f'v_mul_f32 v{r+1}, v{r+1}, v{r+3}')
    e(f'v_cvt_pk_bf16_f32 v{dst}, v{r}, v{r+1}')
    ool.extend([f'L_sm{name}:',
        f'    v_cmp_gt_f32 s[48:49], s42, abs(v{a})',
        f'    v_cmp_gt_f32 s[50:51], s42, abs(v{a+1})',
        f'    v_mul_f32 v{a}, s46, v{a}',
        f'    v_mul_f32 v{a+1}, s46, v{a+1}',
        f'    v_cndmask_b32 v{r}, v{r}, v{a}, s[48:49]',
        f'    v_cndmask_b32 v{r+1}, v{r+1}, v{a+1}, s[50:51]',
        f'    s_branch L_smr{name}'])
gate_consts()
e('v_and_b32 v100, 63, v0')
e('v_lshlrev_b32 v101, 4, v100')
e(f's_add_u32 s63, s62, {7*18432}')
if opt['full']:
    e('s_lshl_b32 s40, s24, 10')
    e(f's_add_u32 s40, s40, {SLOT}')
    e('v_add_u32 v102, s40, v101')
    e('ds_read_b128 v[124:127], v102')
for t in range(9):
    if opt['fast']:
        if t % 3 == 0: gate_check([MD(t), MD(t+1), MD(t+2)], 102, f'c{t}')
        gate_fast(MD(t), 104 + 4*(t % 2), 112 + t, f'c{t}')
    else:
        if opt['full'] and t == 8: e('s_waitcnt lgkmcnt(0)')
        for x in gate(MD(t), 104 + 4*(t % 2), (127 if opt['full'] and t == 8 else 112 + t), 48): e(x)
    if t in (3, 7):
        e(f'buffer_store_dwordx4 v[{112+t-3}:{112+t}], v101, s[20:23], s63 offen sc1')
        e('s_add_u32 s63, s63, 18432')
e(f's_add_u32 s63, s62, {6*18432}')
if opt['full']: e('buffer_store_dwordx4 v[124:127], v101, s[20:23], s63 offen sc1')
else: e('buffer_store_dword v120, v101, s[20:23], s63 offen offset:12 sc1')
e('s_branch L_fin')
def hbar():
    if opt['bst']:
        e('s_memtime s[64:65]')
        e('s_barrier')
        e('s_memtime s[66:67]')
        e('s_waitcnt lgkmcnt(0)')
        e('s_mov_b32 m0, s68'); e('s_nop 0')
        e('v_writelane_b32 v14, s64, m0')
        e('v_writelane_b32 v15, s66, m0')
        e('s_add_u32 s68, s68, 1')
    else: e('s_barrier')
lab('L_helper')
if opt['bst']: e('s_mov_b32 s68, 0')
def Y(i, t): return 40 + 4*(i*9+t)
def SN(t): return 148 + 4*t
e('v_mov_b32 v3, v101')
e('v_add_u32 v13, 4096, v101')
e('v_add_u32 v6, 4096, v6')
e('v_add_u32 v7, 4096, v7')
e('s_cmp_eq_u32 s26, 7')
e('s_cselect_b64 vcc, -1, 0')
e('v_cndmask_b32 v6, v13, v6, vcc')
e('v_cndmask_b32 v7, v13, v7, vcc')
if opt['sn32']: e('v_lshrrev_b32 v101, 2, v101')
e(f's_add_u32 s38, s34, {2*SLOT}')
e('v_add_u32 v4, s38, v101')
e(f's_add_u32 s38, s35, {2*SLOT+28672}')
e('v_add_u32 v5, s38, v101')
e('s_cmp_eq_u32 s26, 4')
e('s_cbranch_scc1 L_h4')
e(f'v_mov_b32 v36, {OOB}')
e(f'v_mov_b32 v12, {OOB}')
e('s_branch L_h5')
lab('L_h4')
e('s_mov_b32 s31, 0')
gettag('h')
lab('L_h5')
e('v_mov_b32 v38, s92')
e('v_mov_b32 v39, s93')
def dma_list(slot):
    L = []
    for k in range(7):
        pre = [f's_add_u32 m0, s34, {slot*SLOT + (k//4)*4096}', 's_nop 0']
        L.append(pre + [f'buffer_load_dwordx4 v{(3,3,3,3,13,6,7)[k]}, s[20:23], s36 offen offset:{(k%4)*1024} sc1 lds'] + ([f's_add_u32 s36, s36, {XS}'] if k == 6 else []))
    for k in range(6):
        pre = [f's_add_u32 m0, s35, {slot*SLOT + 28672 + (k//4)*4096}', 's_nop 0']
        L.append(pre + [f'buffer_load_dwordx4 v{3 if k < 4 else 13}, s[20:23], s37 offen offset:{(k%4)*1024} sc1 lds'] + (['s_add_u32 s37, s37, 24576'] if k == 5 else []))
    return L
def pst(b, pm):
    return [f'buffer_store_dwordx4 {vr(PK(b,pm))}, v{PA(b)}, s[20:23], 0 offen sc1', f'v_add_u32 v{PA(b)}, s{96+b}, v{PA(b)}']
def weave(dl, sl):
    res = []; n = len(sl); m = len(dl)
    for i in range(m):
        res.append(dl[i])
        for k in range((i*n)//m, ((i+1)*n)//m): res.append(sl[k])
    return res
def mix(dl, vl):
    n = len(dl)
    for i, d in enumerate(dl):
        for x in d: e(x)
        for x in vl[(i*len(vl))//n:((i+1)*len(vl))//n]: e(x)
    if n == 0:
        for x in vl: e(x)
def nvm(dl, after):
    return len(dl) - 1 - after
def snapr():
    if opt['sn32']:
        for t in range(9):
            for h in range(2):
                o = (t if t < 7 else t-7)*4 + 2*h
                e(f'ds_read2st64_b32 {vp(SN(t)+2*h)}, v{4 if t < 7 else 5} offset0:{o} offset1:{o+1}')
            if t == 6: e('s_waitcnt lgkmcnt(4)')
        e('s_waitcnt lgkmcnt(0)')
        return
    for t in range(9):
        e(f'ds_read_b128 {vr(SN(t))}, v4 offset:{t*1024}' if t < 7 else f'ds_read_b128 {vr(SN(t))}, v5 offset:{(t-7)*1024}')
    e('s_waitcnt lgkmcnt(0)')
FM = [f'v_fmac_f32 v{Y(i,t)+r}, s{40+i}, v{SN(t)+r}' for t in range(9) for i in range(3) for r in range(4)]
def FMm(m):
    L = []
    for t in range(9):
        for i in range(3):
            if DCH[i][m] == 0: continue
            first = all(DCH[i][mm] == 0 for mm in range(m))
            for r in range(4): L.append(f'{"v_mul_f32" if first else "v_fmac_f32"} v{Y(i,t)+r}, s{40+i}, v{SN(t)+r}')
    return L
e(f's_add_u32 s36, s36, {XS}')
e('s_add_u32 s37, s37, 24576')
e('s_barrier')
mix(dma_list(1), [])
if opt['b1e'] == 1: mix([pst(b, 0) for b in range(4)], [])
c('coefficient table: s40.. = 3 x 6, consumed from the front')
for m in range(6):
    for i in range(3): e(f's_mov_b32 s{40+3*m+i}, {fh(DCH[i][m])}')
hbar()
if opt['b1e'] == 2: mix([pst(b, 0) for b in range(4)], [])
ND0 = opt['nd0']
def only4(name, fn):
    e('s_cmp_lg_u32 s26, 4')
    e(f's_cbranch_scc1 L_o4{name}')
    fn()
    lab(f'L_o4{name}')
def hflag(off):
    e('s_lshl_b32 s30, s2, 3')
    e(f's_add_u32 s30, s30, {FLAG_OFF+off}')
    e(f's_mov_b64 exec, {(1<<REP)-1}')
    e('buffer_store_dwordx2 v[38:39], v12, s[20:23], s30 offen sc1')
    e('s_mov_b64 exec, -1')
def hiter(name, fm, sa=(), sc_=(), flag0=None, flag1=None, chk=None):
    if chk is not None: poll_issue(chk)
    for g_ in sa:
        for x in g_: e(x)
    hbar()
    if fm: snapr()
    D2 = dma_list(2)
    mix(D2[:ND0], [])
    e(f's_waitcnt vmcnt({ND0 + len(sa)})')
    if chk is not None:
        def f():
            poll_check()
            e(f's_cbranch_scc0 L_o4c{name}')
            poll(chk, name, opt['fslp'])
        only4('c'+name, f)
    hbar()
    if flag0 is not None: hflag(flag0)
    mix(D2[ND0:] + dma_list(0), fm[:40])
    e('s_waitcnt vmcnt(13)')
    hbar()
    if flag1 is not None: hflag(flag1)
    mix(list(sc_) + dma_list(1), fm[40:])
    if fm:
        for k in range(15): e(f's_mov_b32 s{40+k}, s{43+k}')
    e(f's_waitcnt vmcnt({13 + len(sc_) + (1 if flag1 is not None else 0)})')
    hbar()
ST = [pst(b, pm) for pm in range(5) for b in range(4)]
if opt['b1e']: hiter('0', [], sc_=ST[4:8], flag0=1*FA)
else: hiter('0', [], sa=ST[0:4], sc_=ST[4:8], flag1=1*FA)
hiter('1', FMm(0), sa=ST[8:12], sc_=ST[12:16], flag0=2*FA, flag1=3*FA, chk=1*FA)
hiter('2', FMm(1), sa=ST[16:20], flag1=4*FA, chk=2*FA)
hiter('3', FMm(2), chk=3*FA)
hiter('4', FMm(3), chk=4*FA)
hiter('5', FMm(4))
c('---- last product')
if opt['sw'] == 4: stamp(6)
hbar()
snapr()
F0 = opt['f0']
D2 = dma_list(2)
mix(D2[:ND0], FM[:F0])
e(f's_waitcnt vmcnt({ND0})')
hbar()
WD = []
for k in range(12):
    WD.append([f's_add_u32 m0, s61, {(k//4)*4096}', 's_nop 0', f'buffer_load_dwordx4 v3, s[20:23], s60 offen offset:{(k%4)*1024} sc1 lds'] + (['s_add_u32 s60, s60, 4096'] if k % 4 == 3 else []))
e('s_mul_i32 s61, s24, 12288')
e(f's_add_u32 s60, s61, {WO_OFF}')
mix(D2[ND0:] + WD, FM[F0:])
gate_consts()
e('s_mov_b32 s63, s62')
nst = [0]
HORD = ([24, 25, 26] + list(range(24))) if opt['full'] else list(range(27))
def hgate(n0, n1):
    for n in HORD[n0:n1]:
        t, i = divmod(n, 3)
        if opt['fast']:
            if i == 0: gate_check([Y(0,t), Y(1,t), Y(2,t)], 192, f'h{n}')
            gate_fast(Y(i, t), 184 + 4*(n % 2), 200 + n, f'h{n}')
        else:
            for x in gate(Y(i, t), 184 + 4*(n % 2), 200 + n, 48): e(x)
        if n % 4 == 3:
            e(f'buffer_store_dwordx4 v[{200+n-3}:{200+n}], v3, s[20:23], s63 offen sc1')
            e('s_add_u32 s63, s63, 18432'); nst[0] += 1
        if n == 26 and not opt['full']:
            e('buffer_store_dwordx3 v[224:226], v3, s[20:23], s63 offen sc1'); nst[0] += 1
g1 = opt['g1']; g2 = min(27, g1 + opt['g2'])
hgate(0, g1)
e(f's_waitcnt vmcnt({nst[0]+12})')
hbar()
if opt['full']:
    assert g1 >= 3
    e('s_lshl_b32 s40, s24, 10')
    e(f's_add_u32 s40, s40, {SLOT}')
    e('v_add_u32 v8, s40, v3')
    e('ds_write_b128 v8, v[224:227]')
hgate(g1, g2)
if opt['full']: e('s_waitcnt lgkmcnt(0)')
hbar()
if opt['tr']:
    hgate(g2, opt['x1'])
    e(f's_waitcnt vmcnt({nst[0]-5})')
    e('s_barrier')
    e('s_lshl_b32 s30, s28, 7')
    e('s_lshl_b32 s31, s29, 3')
    e('s_add_u32 s30, s30, s31')
    e(f's_add_u32 s30, s30, {FLAG_OFF+ZFL}')
    e('s_mov_b64 exec, 1')
    e('buffer_store_dwordx2 v[38:39], v12, s[20:23], s30 offen sc1')
    e('s_mov_b64 exec, -1')
    hgate(opt['x1'], 27)
else:
    hgate(g2, 27)
if opt['bst']:
    e('s_memtime s[64:65]')
    e('s_waitcnt lgkmcnt(0)')
    e('s_mov_b32 m0, s68'); e('s_nop 0')
    e('v_writelane_b32 v14, s64, m0')
    e('v_writelane_b32 v15, s64, m0')
    e('s_cmp_lg_u32 s26, 4')
    e('s_cbranch_scc1 L_fin')
    e('s_mov_b32 s22, 0x10000000')
    e('s_lshl_b32 s33, s2, 9')
    e(f's_add_u32 s33, s33, {STAMP_OFF + (128<<10)*4}')
    e('v_lshrrev_b32 v1, 1, v3')
    e('buffer_store_dwordx2 v[14:15], v1, s[20:23], s33 offen')
lab('L_fin')
e('s_setprio 0')
e('s_load_dwordx2 s[6:7], s[0:1], 24')
if not opt['es']: stamp(7)
e('v_and_b32 v2, 63, v0')
e('v_lshlrev_b32 v3, 4, v2')
e('v_mov_b32 v37, 0')
e('s_lshr_b32 s41, s26, 2')
if opt['tr']:
    c('helpers take an early set, compute waves a late one')
    e('s_mul_i32 s40, s28, 18')
    e('s_add_u32 s40, s40, s29')
    e('s_add_u32 s42, s41, 4')
    e('s_cmp_ge_u32 s29, s42')
    e('s_cselect_b32 s42, 4, 0')
    e('s_add_u32 s40, s40, s42')
    e('s_cmp_eq_u32 s41, 0')
    e('s_cselect_b32 s42, 5, 0')
    e('s_add_u32 s40, s40, s42')
else:
    e('s_lshl_b32 s40, s27, 1')
    e('s_add_u32 s40, s40, s41')
e('s_mul_i32 s30, s40, 7282')
e('s_lshr_b32 s30, s30, 16')
e('s_mul_i32 s31, s30, 9')
e('s_sub_u32 s31, s40, s31')
if opt['gmap']:
    e('s_lshr_b32 s32, s30, 2')
    e('s_bfe_u32 s38, s30, 0x10001')
    e('s_and_b32 s33, s30, 1')
    e('s_cmp_ge_u32 s32, 7')
    e('s_cselect_b32 s37, 4608000, 0')
    e('s_cselect_b32 s36, 7, 0')
    e('s_sub_u32 s32, s32, s36')
    e('s_lshl_b32 s32, s32, 1')
    e('s_add_u32 s33, s33, s32')
else:
    e('s_mul_i32 s32, s30, 4682')
    e('s_lshr_b32 s32, s32, 16')
    e('s_mul_i32 s33, s32, 14')
    e('s_sub_u32 s33, s30, s33')
    e('s_lshr_b32 s37, s32, 1')
    e('s_and_b32 s38, s32, 1')
    e('s_mul_i32 s37, s37, 4608000')
e('s_waitcnt lgkmcnt(0)')
e('s_add_u32 s6, s6, s37'); e('s_addc_u32 s7, s7, 0')
srd(16, 6, 7, 4608000)
e('s_mul_i32 s39, s33, 1152')
e('s_add_u32 s39, s39, s38')
e('s_add_u32 s39, s39, 6')
e('s_lshl_b32 s45, s31, 2')
e('s_add_u32 s45, s45, s24')
e('s_mul_i32 s42, s45, 171')
e('s_lshr_b32 s42, s42, 9')
e('s_mul_i32 s43, s42, 3')
e('s_sub_u32 s43, s45, s43')
e('s_sub_u32 s44, s45, 28')
e('s_cmp_ge_u32 s45, 27')
e('s_cselect_b32 s42, s44, s42')
e('s_cselect_b32 s43, 3, s43')
e('s_cmp_eq_u32 s45, 27')
e('s_cselect_b32 s42, 8, s42')
e('s_lshl_b32 s42, s42, 3')
e('s_lshl_b32 s43, s43, 1')
e('s_add_u32 s42, s42, s39')
e('s_sub_u32 s42, s42, s43')
e('s_mul_i32 s45, s42, 288')
e('v_lshrrev_b32 v7, 4, v2')
e(f'v_mul_u32_u24 v7, {4*72*288}, v7')
e('v_add_u32 v7, s45, v7')
e('v_and_b32 v8, 15, v2')
e('v_lshl_add_u32 v11, v8, 1, v7')
e('v_lshl_add_u32 v10, v8, 4, v7')
def bf(f): return vr(76 + 4*f)
def preB():
    for f in range(45):
        e(f'ds_read_b128 {bf(f)}, v3 offset:{f*1024}')
        if f % 12 == 11: e('s_waitcnt lgkmcnt(4)')
def zpoll(name):
    e('v_min_u32 v5, 8, v2')
    e('v_lshlrev_b32 v5, 3, v5')
    e('s_mov_b32 s51, 0')
    lab(f'L_zp{name}')
    e('buffer_load_dwordx2 v[8:9], v5, s[20:23], s50 offen sc1')
    e('s_add_u32 s51, s51, 1')
    e('s_cmp_gt_u32 s51, 400000')
    e(f's_cbranch_scc1 L_zd{name}')
    e('s_waitcnt vmcnt(0)')
    e('v_cmp_ne_u64 vcc, s[92:93], v[8:9]')
    e(f's_cbranch_vccz L_zd{name}')
    e('s_sleep 1')
    e(f's_branch L_zp{name}')
    lab(f'L_zd{name}')
if opt['tr']:
    e('s_mul_i32 s46, s40, 18432')
    e('s_lshl_b32 s47, s24, 10')
    e('s_add_u32 s46, s46, s47')
    e(f's_add_u32 s46, s46, {Z_OFF}')
    e('s_mul_i32 s48, s41, 18432')
    e(f's_add_u32 s48, s48, {SLOT}')
    e('s_add_u32 s47, s47, s48')
    e('s_lshl_b32 s49, s24, 2')
    e('s_add_u32 s48, s48, s49')
    e('v_add_u32 v4, s48, v3')
    e('v_mov_b32 v34, 0')
    e('v_mov_b32 v35, 0')
    e('s_lshl_b32 s50, s28, 7')
    e(f's_add_u32 s50, s50, {FLAG_OFF+ZFL}')
    def zdma(name):
        for i in range(5):
            if i == 4:
                e('s_cmp_ge_u32 s24, 2')
                e(f's_cbranch_scc1 L_zm{name}')
            e(f's_add_u32 m0, s47, {i*4096}')
            e('s_nop 0')
            e('buffer_load_dwordx4 v3, s[20:23], s46 offen sc1 lds')
            if i < 4: e('s_add_u32 s46, s46, 4096')
        lab(f'L_zm{name}')
    e('s_cmp_lt_u32 s26, 4')
    e('s_cbranch_scc1 L_fc')
    c('---- helpers: early set')
    e('s_cmp_lg_u32 s26, 4')
    e('s_cbranch_scc1 L_zdh')
    zpoll('h')
    e('s_waitcnt vmcnt(0)')
    e('s_barrier')
    if not opt['es']: stamp(8)
    zdma('h')
    preB()
    e('s_waitcnt vmcnt(0) lgkmcnt(0)')
    e('s_barrier')
    stamp(9)
    e('s_branch L_gemm')
    lab('L_fc')
    c('---- compute waves: late set')
    e('s_add_u32 s50, s50, 4096')
    e('s_waitcnt vmcnt(0)')
    e('s_barrier')
    if not opt['es']: stamp(8)
    e('s_cmp_lg_u32 s26, 0')
    e('s_cbranch_scc1 L_fc1')
    setflag(['s_lshl_b32 s30, s29, 3', 's_add_u32 s30, s30, s50'])
    lab('L_fc1')
    preB()
    e('s_cmp_lg_u32 s26, 0')
    e('s_cbranch_scc1 L_zdc')
    zpoll('c')
    e('s_barrier')
    stamp(9)
    zdma('c')
    e('s_waitcnt vmcnt(0) lgkmcnt(0)')
    e('s_barrier')
    stamp(10)
    lab('L_gemm')
else:
    e('s_mul_i32 s46, s27, 36864')
    e('s_lshl_b32 s47, s26, 10')
    e('s_add_u32 s46, s46, s47')
    e(f's_add_u32 s46, s46, {Z_OFF}')
    e('s_mul_i32 s48, s41, 18432')
    e('s_lshl_b32 s49, s24, 2')
    e('s_add_u32 s48, s48, s49')
    e(f's_add_u32 s48, s48, {SLOT}')
    e('v_add_u32 v4, s48, v3')
    e('v_mov_b32 v34, 0')
    e('v_mov_b32 v35, 0')
    if opt['fl']:
        for k in range(4): e(f'v_mov_b32 v{36+k}, s{92+k%2}')
        e('s_mul_i32 s50, s28, 1152')
        e(f's_add_u32 s50, s50, {FLAG_OFF+ZF2}')
        e('s_lshl_b32 s30, s27, 7')
        e(f's_add_u32 s30, s30, {FLAG_OFF+ZF2}')
    e('s_waitcnt vmcnt(0)')
    e('s_barrier')
    if not opt['es']: stamp(8)
    def bf(f): return vr(76 + 4*f)
    def preB():
        for f in range(45):
            e(f'ds_read_b128 {bf(f)}, v3 offset:{f*1024}')
            if f % 12 == 11: e('s_waitcnt lgkmcnt(4)')
    e('s_cmp_lg_u32 s26, 4')
    e('s_cbranch_scc1 L_e1b')
    if opt['fl']:
        e('s_mov_b64 exec, 0xff')
        e('buffer_store_dwordx4 v[36:39], v3, s[20:23], s30 offen sc1')
        e('s_mov_b64 exec, -1')
    else:
        e('s_lshl_b32 s50, s28, 7')
        e(f's_add_u32 s50, s50, {FLAG_OFF+ZFL}')
        setflag(['s_lshl_b32 s30, s29, 3', 's_add_u32 s30, s30, s50'])
    lab('L_e1b')
    preB()
    e('s_cmp_lg_u32 s26, 4')
    e('s_cbranch_scc1 L_e2')
    e('v_min_u32 v5, 8, v2')
    e(f'v_lshlrev_b32 v5, {7 if opt["fl"] else 3}, v5')
    e('s_mov_b32 s51, 0')
    lab('L_zpoll')
    e('buffer_load_dwordx2 v[8:9], v5, s[20:23], s50 offen sc1')
    e('s_add_u32 s51, s51, 1')
    e('s_cmp_gt_u32 s51, 400000')
    e('s_cbranch_scc1 L_e2')
    e('s_waitcnt vmcnt(0)')
    e('v_cmp_ne_u64 vcc, s[92:93], v[8:9]')
    e('s_cbranch_vccz L_e2')
    e('s_sleep 1')
    e('s_branch L_zpoll')
    lab('L_e2')
    e('s_barrier')
    stamp(9)
    for i in range(5):
        if i == 4:
            e('s_cmp_ge_u32 s26, 4')
            e('s_cbranch_scc1 L_e3')
        e(f's_add_u32 m0, s47, {SLOT + i*8192}')
        e('s_nop 0')
        e('buffer_load_dwordx4 v3, s[20:23], s46 offen sc1 lds')
        if i < 4: e('s_add_u32 s46, s46, 8192')
    lab('L_e3')
    e('s_waitcnt vmcnt(0) lgkmcnt(0)')
    e('s_barrier')
    stamp(10)
if opt['stamps']: e('s_waitcnt lgkmcnt(0)')
for J in range(14): e(f'ds_read_b32 v{16+J}, v4 offset:{J*1024}')
for ks in range(5):
    if ks == 0: e('s_waitcnt lgkmcnt(10)')
    if ks == 1: e('s_waitcnt lgkmcnt(10)')
    if ks == 2: e('s_waitcnt lgkmcnt(6)')
    if ks == 3: e('s_waitcnt lgkmcnt(2)')
    if ks == 4: e('s_waitcnt lgkmcnt(0)')
    for T in range(9):
        r = 40 + 4*T
        cin = '0' if ks == 0 else vr(r)
        e(f'v_mfma_f32_16x16x32_bf16 {vr(r)}, v[{16+4*ks}:{16+4*ks+3}], {bf(T*5+ks)}, {cin}')
        if ks == 0 and T < 4: e(f'ds_read_b32 v{30+T}, v4 offset:{(14+T)*1024}')
if opt['tr']:
    e('s_cmp_lt_u32 s26, 4')
    e('s_cbranch_scc1 L_ne3')
    e('s_barrier')
    lab('L_ne3')
e('s_nop 7')
e('s_nop 1')
if opt['trip']:
    e('s_memrealtime s[66:67]')
    e('s_waitcnt lgkmcnt(0)')
    e('s_sub_u32 s66, s66, s64')
    e(f's_sub_u32 s66, s66, {opt["trip"]}')
    e(f's_cmp_lt_u32 s66, {opt["tlo"] - opt["trip"]}')
    e('s_cselect_b32 s66, 1.0, 0')
    e('s_cmp_eq_u32 s2, 100')
    e('s_cselect_b32 s66, s66, 0')
    e('v_add_f32 v40, s66, v40')
for r in range(4):
    d = 140 + 6*r
    A = lambda T: 40 + 4*T + r
    for h in range(4): e(f'v_cvt_pk_bf16_f32 v{d+h}, v{A(2*h)}, v{A(2*h+1)}')
    e(f'v_cvt_pk_bf16_f32 v{d+4}, v{A(8)}, v{A(8)}')
    e(f'buffer_store_dwordx4 v[{d}:{d+3}], v10, s[16:19], 0 offen{OF[opt["of"]]}')
    e(f'buffer_store_short v{d+4}, v11, s[16:19], 0 offen offset:256{OF[opt["of2"]]}')
    if r < 3:
        e(f'v_add_u32 v10, {72*288}, v10')
        e(f'v_add_u32 v11, {72*288}, v11')
if opt['dead']:
    e('s_waitcnt vmcnt(0)')
    lab('L_dl')
    e('s_memrealtime s[66:67]')
    e('s_waitcnt lgkmcnt(0)')
    e('s_sub_u32 s66, s66, s64')
    e(f's_cmp_lt_u32 s66, {opt["dead"]}')
    e('s_cbranch_scc1 L_dl')
if opt['stamps']:
    e('s_waitcnt vmcnt(0)')
    stamp(11)
    e('s_waitcnt lgkmcnt(0)')
    e(f's_cmp_lg_u32 s26, {opt["sw"]}')
    e('s_cbranch_scc1 L_end')
    if opt['dbgst']:
        e(f's_cmp_lg_u32 s2, {opt["dbgst"]}')
        e('s_cbranch_scc1 L_end')
        e('s_load_dwordx2 s[56:57], s[0:1], 32')
        e('s_waitcnt lgkmcnt(0)')
        srd(16, 56, 57, 256)
        e('v_mov_b32 v1, 0')
        for i in range(1, 12):
            e(f's_sub_u32 s33, s{64+2*i}, s64')
            e('v_mov_b32 v4, s33')
            e(f'buffer_store_dword v4, v1, s[16:19], 0 offen offset:{4+4*i}')
        e('s_sub_u32 s33, s94, s90')
        e('v_mov_b32 v4, s33')
        e('buffer_store_dword v4, v1, s[16:19], 0 offen offset:56')
        e('s_branch L_end')
    e('s_mov_b32 s22, 0x10000000')
    e('s_lshl_b32 s33, s2, 7')
    e(f's_add_u32 s33, s33, {STAMP_OFF}')
    e('v_mov_b32 v1, s33')
    for i in range(6):
        for k in range(4): e(f'v_mov_b32 v{4+k}, s{64+4*i+k}')
        e(f'buffer_store_dwordx4 v[4:7], v1, s[20:23], 0 offen offset:{16*i}')
        e('s_nop 1')
lab('L_end')
e('s_endpgm')
out.extend(ool)
tail = f"""
.section .rodata,"a"
.p2align 6
.amdhsa_kernel {NAME}_kernel
  .amdhsa_next_free_vgpr 256
  .amdhsa_next_free_sgpr 100
  .amdhsa_accum_offset 256
  .amdhsa_group_segment_fixed_size 0
  .amdhsa_kernarg_size 48
  .amdhsa_user_sgpr_count 2
  .amdhsa_user_sgpr_kernarg_segment_ptr 1
  .amdhsa_system_sgpr_workgroup_id_x 1
.end_amdhsa_kernel
"""
open(sys.argv[1], 'w').write(hdr + '\n'.join(out) + '\n' + tail)
```

```python
import sys, struct
import numpy as np
from f44 import matrices, PTS
NAME = 'standalone__autoregressive_conv_wavenet__speech'
opt = dict(stamps=0, LA=26, smallfix=1, ldf=0, QS=28, prio=1, g1=5, g2=7, bst=0, nd0=7, wsp=5, f0=30, slp=1, cpf=3, sw=4, dly=0, pf=0, early=1, dbgst=0, rep=1, rstr=4352, pre=0, shr=1, agg=1, gslp=2, es=0, word=1, skx=0, skw=0, of=0, of2=0, gmap=1, trip=0, tlo=0, fast=0, sn32=0, lat=9, b1e=2, fslp=6, pad=0, mord=1, tdesc=0, tr=0, x1=24, full=1, fl=0)
for a in sys.argv[2:]:
    k, v = a.split('='); assert k in opt, k; opt[k] = int(v)
out = []
def e(s): out.append('    ' + s)
def lab(s): out.append(s + ':')
def c(s): out.append('    ; ' + s)
def fh(x): return '0x%08x' % struct.unpack('<I', struct.pack('<f', float(x)))[0]
AT, G, BT = matrices()
GS = G.copy()
for m in range(6): GS[m] *= PTS[m]**3
CH = np.zeros((3, 7))
for i in range(3):
    for m in range(6): CH[i][m] = PTS[m]**(i-3)
DCH = CH[:, :6] - CH[:, 1:7]
LOG2E = 1.4426950408889634
LDF = {0: '', 1: ' nt'}[opt['ldf']]
OF = {0:'', 1:' nt', 2:' sc1', 3:' sc0 sc1'}
PRF = {1: ' sc1', 2: '', 3: ' sc0 sc1'}.get(opt['pre'], '')
PF_ = {0: ' sc1', 1: ' sc0 sc1', 2: ' sc1 nt', 3: ' sc0 sc1 nt'}[opt['pf']]
XROWS = 2032
XS = XROWS*96
U_BYTES = 4*21*XS
WT_OFF = U_BYTES
WT_BYTES = 9*21*24576
Z_OFF = WT_OFF + WT_BYTES
Z_BYTES = 28*2*9*18*1024
FLAG_OFF = Z_OFF + Z_BYTES
REP = opt['rep']; RSTR = opt['rstr']; FA = REP*RSTR
ZFL = 5*FA
GOF = ZFL + 8192
AFL = (GOF + 8*4352 + 1023)//1024*1024
ZF2 = AFL + 32768
WO_OFF = FLAG_OFF + ZF2 + 32768
WS_USED = WO_OFF + 45*1024
STAMP_OFF = 268435456 - (1 << 20)
SLOT = 53248
XL = 2*SLOT + 8192
WL = SLOT
LDS_MAIN = 3*SLOT
OOB = 0x7f000000
hdr = f"""; Kernarg layout for this problem (48 bytes, ptrs only, base s[0:1]):
; @launch grid=(252,1,1) block=(512,1,1) lds={LDS_MAIN}
.amdgcn_target "amdgcn-amd-amdhsa--gfx950"
.text
.globl {NAME}_kernel
.p2align 8
.type {NAME}_kernel,@function
{NAME}_kernel:
"""
def srd(d, lo, hi, nbytes):
    e(f's_mov_b32 s{d}, s{lo}')
    e(f's_and_b32 s{d+1}, s{hi}, 0xffff')
    e(f's_mov_b32 s{d+2}, {nbytes}')
    e(f's_mov_b32 s{d+3}, 0x00020000')
def vp(r): return f'v[{r}:{r+1}]'
def vr(r): return f'v[{r}:{r+3}]'
def pkfma(d, sc, a, b, nega=False):
    neg = ' neg_lo:[0,1,0] neg_hi:[0,1,0]' if nega else ''
    e(f'v_pk_fma_f32 {vp(d)}, s[{sc}:{sc+1}], {vp(a)}, {vp(b)}{neg}')
def pkadd(d, a, b, negb=False):
    neg = ' neg_lo:[0,1] neg_hi:[0,1]' if negb else ''
    e(f'v_pk_add_f32 {vp(d)}, {vp(a)}, {vp(b)}{neg}')
def sconst2(s, x):
    e(f's_mov_b32 s{s}, {fh(x)}'); e(f's_mov_b32 s{s+1}, {fh(x)}')
def stamp(i):
    if opt['stamps']: e(f's_memrealtime s[{64+2*i}:{65+2*i}]')
def PK(b, pm):
    n = pm*4 + b
    return 184 + 4*n if n < 18 else 16 + 4*(n-18)
PA = lambda b: 32 + b
PT = 24

def gettag(name):
    lab(f'L_tag{name}')
    e('buffer_load_dwordx2 v[24:25], v37, s[16:19], 0 offen sc1')
    e('s_add_u32 s31, s31, 1')
    e('s_cmp_gt_u32 s31, 400000')
    e(f's_cbranch_scc1 L_tagd{name}')
    e('s_waitcnt vmcnt(0)')
    e('v_readfirstlane_b32 s92, v24')
    e('v_readfirstlane_b32 s93, v25')
    e('s_nop 3')
    e('s_cmp_eq_u32 s92, 0')
    e(f's_cbranch_scc1 L_tag{name}')
    lab(f'L_tagd{name}')
def setflag(pre):
    for x in pre: e(x)
    e('v_mov_b32 v38, s92')
    e('v_mov_b32 v39, s93')
    e('s_mov_b64 exec, 1')
    e('buffer_store_dwordx2 v[38:39], v37, s[20:23], s30 offen sc1')
    e('s_mov_b64 exec, -1')
def poll_issue(off):
    if off == 'A':
        e(f's_mov_b32 s30, {FLAG_OFF+AFL}')
        for k in range(4): e(f'buffer_load_dwordx2 {vp(PT+2*k)}, v{42+k}, s[20:23], s30 offen sc1')
        return
    e(f's_mov_b32 s30, {FLAG_OFF+off}')
    e(f'buffer_load_dwordx4 {vr(PT)}, v36, s[20:23], s30 offen{PF_}')
    e(f'buffer_load_dwordx4 {vr(PT+4)}, v36, s[20:23], s30 offen offset:16{PF_}')
def poll_check():
    e(f'v_cmp_ne_u64 vcc, s[92:93], {vp(PT)}')
    for k in range(1, 4):
        e(f'v_cmp_ne_u64 s[88:89], s[92:93], {vp(PT+2*k)}')
        e('s_or_b64 vcc, vcc, s[88:89]')
def poll(off, name, slp=None):
    e('s_mov_b32 s31, 0')
    lab(f'L_poll{name}')
    poll_issue(off)
    e('s_add_u32 s31, s31, 1')
    e('s_cmp_gt_u32 s31, 400000')
    e(f's_cbranch_scc1 L_pdone{name}')
    e('s_waitcnt vmcnt(0)')
    poll_check()
    e(f's_cbranch_scc0 L_pdone{name}')
    if opt['shr']: e('s_mov_b64 exec, vcc')
    e(f's_sleep {opt["slp"] if slp is None else slp}')
    e(f's_branch L_poll{name}')
    lab(f'L_pdone{name}')
    if opt['shr']: e('s_mov_b64 exec, -1')

e('s_cmp_ge_u32 s2, 252')
e('s_cbranch_scc1 L_end')
if opt['stamps']:
    for i in range(24): e(f's_mov_b32 s{64+i}, 0')
stamp(0)
if opt['trip']: e('s_memrealtime s[64:65]')
e('s_load_dwordx4 s[4:7], s[0:1], 0')
e('s_load_dwordx2 s[8:9], s[0:1], 16')
e('s_load_dwordx4 s[56:59], s[0:1], 32')
e('v_lshrrev_b32 v1, 6, v0')
e('v_and_b32 v2, 63, v0')
e('v_readfirstlane_b32 s26, v1')
if opt['cpf']:
    c('pull the kernel code towards L2 first (1 KB per participating wave)')
    e('s_getpc_b64 s[44:45]')
    lab('L_pc')
    if opt['cpf'] == 1:
        e('s_lshl_b32 s42, s2, 10')
        e('s_and_b32 s42, s42, 0x6000')
        e('v_lshlrev_b32 v102, 4, v0')
    elif opt['cpf'] == 2:
        e('s_lshl_b32 s42, s2, 7')
        e('s_and_b32 s42, s42, 0x7c00')
        e('v_lshlrev_b32 v102, 4, v2')
        e('v_lshl_add_u32 v102, v1, 20, v102')
    else:
        e('s_lshl_b32 s42, s2, 8')
        e('s_and_b32 s42, s42, 0x7800')
        e('v_lshlrev_b32 v102, 4, v0')
        e('v_lshrrev_b32 v103, 1, v1')
        e('v_lshl_add_u32 v102, v103, 20, v102')
    e('s_and_b32 s45, s45, 0xffff')
    e('s_mov_b32 s46, L_end-L_pc')
    e('s_mov_b32 s47, 0x00020000')
    e(f'buffer_load_dwordx4 {vr(180)}, v102, s[44:47], s42 offen')
else: e('s_nop 1')
def common():
    srd(20, 58, 59, WS_USED)
    srd(16, 56, 57, 256)
    e('s_mov_b32 s33, 0xffff0000')
    e('v_mov_b32 v37, 0')
    for b in range(4): e(f'v_mov_b32 v{PA(b)}, {OOB}')
    for b in range(4): e(f's_mov_b32 s{96+b}, {3*XS}')
    e('s_mov_b32 s31, 0')
    e('s_mov_b32 s92, 0')
    e('s_mov_b32 s93, 0')
    e('s_cmp_ge_u32 s2, 125')
    e(f's_cselect_b32 s50, {2*21*XS - 125*1536}, 0')
    e('s_mul_i32 s51, s2, 1536')
    e('s_add_u32 s50, s50, 768')
    e('s_add_u32 s50, s50, s51')
    e(f's_add_u32 s51, s50, {3*XS}')
    e(f's_mov_b32 s35, {XL+64}')
e('s_lshr_b32 s28, s26, 1')
e('s_cmp_eq_u32 s28, 2')
e('s_cbranch_scc1 Lp_w')
def xaddr(su, va, vd):
    e(f's_lshl_b32 s28, s{su}, 6')
    e('v_add_u32 v3, s28, v2')
    e('v_mul_u32_u24 v4, 683, v3')
    e('v_lshrrev_b32 v4, 16, v4')
    e('v_mul_u32_u24 v5, 96, v4')
    e('v_sub_u32 v3, v3, v5')
    e(f'v_mul_u32_u24 v{va}, 43, v3')
    e(f'v_lshrrev_b32 v{va}, 8, v{va}')
    e(f'v_mul_u32_u24 v{va}, {2304-96}, v{va}')
    e(f'v_lshl_add_u32 v{va}, v3, 4, v{va}')
    e(f'v_add3_u32 v{va}, v{va}, v5, s35')
    e('v_cmp_le_u32 vcc, 3, v4')
    e(f'v_mul_u32_u24 v{vd}, {XS}, v4')
    e(f'v_mov_b32 v5, {18*XS}')
    e(f'v_lshl_add_u32 v{vd}, v3, 4, v{vd}')
    e('v_cndmask_b32 v5, 0, v5, vcc')
    e(f'v_add_u32 v{vd}, v{vd}, v5')
def xpair(va, vd):
    for s in range(6): e(f'ds_read_b128 {vr(120+4*s)}, v{va} offset:{(12-2*s)*288}')
    for dw in range(4):
        for s in range(6):
            if dw == 0: e(f's_waitcnt lgkmcnt({5-s})')
            e(f'v_lshlrev_b32 v{148+2*s}, 16, v{120+4*s+dw}')
            e(f'v_and_b32 v{149+2*s}, s33, v{120+4*s+dw}')
        D = lambda s: 148+2*s
        pkfma(162, 46, D(2), D(4))
        pkfma(164, 46, D(3), D(5))
        pkfma(162, 44, D(0), 162)
        pkfma(164, 44, D(1), 164)
        pkfma(166, 48, 162, 164)
        pkfma(168, 48, 162, 164, nega=True)
        e(f'v_cvt_pk_bf16_f32 v{172+dw}, v166, v167')
        e(f'v_cvt_pk_bf16_f32 v{176+dw}, v168, v169')
    e(f'buffer_store_dwordx4 v[172:175], v{vd}, s[20:23], s50 offen sc1')
    e(f'buffer_store_dwordx4 v[176:179], v{vd}, s[20:23], s51 offen sc1')
def xrest(va, b):
    for s in range(7): e(f'ds_read_b128 {vr(120+4*s)}, v{va} offset:{(12-2*s)*288}')
    for dw in range(4):
        for s in range(7):
            if dw == 0: e(f's_waitcnt lgkmcnt({6-s})')
            e(f'v_lshlrev_b32 v{148+2*s}, 16, v{120+4*s+dw}')
            e(f'v_and_b32 v{149+2*s}, s33, v{120+4*s+dw}')
        D = lambda s: 148+2*s
        for t in range(2):
            q0, q1, aa = 36+6*t, 38+6*t, 40+6*t
            pkfma(162, q1, D(2), D(4))
            pkfma(164, q1, D(3), D(5))
            pkfma(162, q0, D(0), 162)
            pkfma(164, q0, D(1), 164)
            pkfma(166, aa, 162, 164)
            pkfma(168, aa, 162, 164, nega=True)
            e(f'v_cvt_pk_bf16_f32 v{PK(b,2*t)+dw}, v166, v167')
            e(f'v_cvt_pk_bf16_f32 v{PK(b,2*t+1)+dw}, v168, v169')
        pkfma(162, 54, D(4), D(6))
        pkfma(162, 52, D(2), 162)
        pkfma(162, 48, D(0), 162)
        e(f'v_cvt_pk_bf16_f32 v{PK(b,4)+dw}, v162, v163')
for t in range(3):
    a = PTS[2*t]; q0 = BT[2*t][1]; q1 = BT[2*t][3]
    assert abs(BT[2*t][0] - a*q0) < 1e-12 and abs(BT[2*t][2] - a*q1) < 1e-12 and abs(BT[2*t][4]-a) < 1e-12
e('s_sub_u32 s27, s26, 2')
e('s_cmp_lt_u32 s26, 4')
e('s_cselect_b32 s27, s26, s27')
e('s_cmp_ge_u32 s2, 250')
e('s_cbranch_scc1 Lp_zero')
e('s_cmp_ge_u32 s2, 125')
e('s_cselect_b32 s24, 4608000, 0')
e('s_mul_i32 s28, s2, 36864')
e('s_sub_u32 s28, s28, s24')
e('s_sub_u32 s28, s28, 1792')
e('s_lshl_b32 s29, s27, 10')
e('s_add_u32 s28, s28, s29')
e('v_lshlrev_b32 v6, 4, v2')
e('v_add_u32 v6, s28, v6')
e(f's_mov_b32 s14, {0 if opt["skx"] else 4608000}')
e('s_mov_b32 s15, 0x00020000')
e(f's_add_u32 m0, s29, {XL}')
e('s_waitcnt lgkmcnt(0)')
e('s_add_u32 s12, s4, s24'); e('s_addc_u32 s13, s5, 0')
e('s_and_b32 s13, s13, 0xffff')
for i in range(7):
    if i == 6:
        e('s_cmp_ge_u32 s27, 2')
        e('s_cbranch_scc1 Lp_xl')
    e(f'buffer_load_dwordx4 v6, s[12:15], 0 offen{LDF} lds')
    if i < 6:
        e(f's_add_u32 m0, s29, {XL + (i+1)*6144}')
        e('v_add_u32 v6, 6144, v6')
lab('Lp_xl')
common()
e('s_add_u32 s28, s2, s26')
e('s_cmp_lg_u32 s28, 0')
e('s_cbranch_scc1 Lp_x0')
c('WG 0 wave 0 publishes the launch tag in d_debug')
e('s_memrealtime s[92:93]')
e('s_waitcnt lgkmcnt(0)')
e('s_or_b32 s92, s92, 1')
e('v_mov_b32 v38, s92')
e('v_mov_b32 v39, s93')
e('s_mov_b64 exec, 1')
e('buffer_store_dwordx2 v[38:39], v37, s[16:19], 0 offen sc1')
e('s_mov_b64 exec, -1')
lab('Lp_x0')
c('pass-1 units: wave0:8 wave1:4,5 wave2:0,1 wave3:2,3 wave6:6 wave7:7')
e('s_lshl_b32 s28, s26, 2')
e('s_lshr_b32 s30, 0x76002048, s28')
e('s_and_b32 s30, s30, 15')
xaddr(30, 6, 7)
e('s_add_u32 s30, s30, 1')
xaddr(30, 14, 15)
sconst2(44, BT[0][1]); sconst2(46, BT[0][3]); sconst2(48, PTS[0])
stamp(7)
e('s_waitcnt vmcnt(0)')
stamp(8)
e('s_barrier')
stamp(1)
e('s_cmp_lg_u32 s26, 0')
e('s_cbranch_scc1 Lp_x1')
e('buffer_load_dwordx2 v[24:25], v37, s[16:19], 0 offen sc1')
lab('Lp_x1')
xpair(6, 7)
e('s_bitcmp1_b32 0x0e, s26')
e('s_cbranch_scc0 Lp_x2')
xpair(14, 15)
lab('Lp_x2')
e('s_cmp_ge_u32 s26, 4')
e('s_cbranch_scc1 Lp_h67')
lab('Lp_s2')
if opt['fl']:
    e('v_lshlrev_b32 v9, 4, v2')
    e('s_lshl_b32 s30, s2, 7')
    e(f's_add_u32 s30, s30, {FLAG_OFF+AFL}')
else:
    e(f'v_mul_u32_u24 v9, {RSTR}, v2')
    e('s_lshl_b32 s30, s2, 3')
    e(f's_add_u32 s30, s30, {FLAG_OFF}')
e('s_cmp_lg_u32 s26, 0')
e('s_cbranch_scc1 Lp_s2b')
e('s_cmp_ge_u32 s2, 250')
e('s_cbranch_scc1 L_taga')
e('s_waitcnt vmcnt(2)')
e('v_readfirstlane_b32 s92, v24')
e('v_readfirstlane_b32 s93, v25')
e('s_nop 3')
e('s_cmp_lg_u32 s92, 0')
e('s_cbranch_scc1 L_tagda')
gettag('a')
e('v_mov_b32 v38, s92')
e('v_mov_b32 v39, s93')
e('v_mov_b32 v40, s92')
e('v_mov_b32 v41, s93')
lab('Lp_s2b')
e('s_waitcnt vmcnt(0)')
e('s_barrier')
e('s_cmp_lg_u32 s26, 0')
e('s_cbranch_scc1 L_pdone')
if opt['fl']:
    e('s_mov_b64 exec, 0xff')
    e('buffer_store_dwordx4 v[38:41], v9, s[20:23], s30 offen sc1')
else:
    e(f's_mov_b64 exec, {(1<<REP)-1}')
    e('buffer_store_dwordx2 v[38:39], v9, s[20:23], s30 offen sc1')
e('s_mov_b64 exec, -1')
stamp(2)
e('s_branch L_pdone')
def xcoef2():
    for t in (1, 2):
        sconst2(36+6*(t-1), BT[2*t][1]); sconst2(38+6*(t-1), BT[2*t][3]); sconst2(40+6*(t-1), PTS[2*t])
    sconst2(48, BT[6][0]); sconst2(52, BT[6][2]); sconst2(54, BT[6][4])
    e(f's_add_u32 s34, s50, {6*XS}')
lab('Lp_h67')
c('waves 6,7 pass 2: own unit (block 1), then units 2(w-6), 2(w-6)+1 (blocks 2,3)')
xcoef2()
e(f'v_add_u32 v{PA(1)}, s34, v7')
if opt['early']: xrest(6, 1)
e('s_waitcnt vmcnt(0)')
e('s_barrier')
if not opt['early']: xrest(6, 1)
e('s_sub_u32 s30, s26, 6')
e('s_lshl_b32 s30, s30, 1')
lab('Lp_x23')
xaddr(30, 6, 7)
e(f'v_add_u32 v{PA(2)}, s34, v7')
xrest(6, 2)
e('s_add_u32 s30, s30, 1')
lab('Lp_x3')
xaddr(30, 6, 7)
e(f'v_add_u32 v{PA(3)}, s34, v7')
xrest(6, 3)
e('s_branch L_pdone')
lab('Lp_zero')
c('WGs 250,251: zero the 8 leading rows of the 42 arrays of batch b')
e('s_waitcnt lgkmcnt(0)')
common()
e('s_sub_u32 s3, s2, 250')
e(f's_mul_i32 s30, s3, {2*21*XS}')
e('s_lshl_b32 s28, s27, 6')
e('v_add_u32 v3, s28, v2')
for k in range(4): e(f'v_mov_b32 v{16+k}, 0')
for i in range(6):
    e('v_mul_u32_u24 v4, 1366, v3')
    e('v_lshrrev_b32 v4, 16, v4')
    e('v_mul_u32_u24 v5, 48, v4')
    e('v_sub_u32 v5, v3, v5')
    e(f'v_mul_u32_u24 v4, {XS}, v4')
    e('v_lshl_add_u32 v4, v5, 4, v4')
    e('v_cmp_gt_u32 vcc, 2016, v3')
    e(f'v_mov_b32 v5, {OOB}')
    e('v_add_u32 v3, 384, v3')
    e('v_cndmask_b32 v4, v5, v4, vcc')
    e('buffer_store_dwordx4 v[16:19], v4, s[20:23], s30 offen sc1')
e('s_barrier')
e('s_branch Lp_s2')
lab('Lp_w')
e('s_and_b32 s27, s26, 1')
c('w unit: XCD x = id&7 owns a contiguous range of units; local i = id>>3 < 9 takes two')
e('s_and_b32 s28, s2, 7')
e('s_lshr_b32 s29, s2, 3')
e('s_mul_i32 s3, s28, 40')
e('s_min_u32 s30, s28, 4')
e('s_add_u32 s3, s3, s30')
e('s_add_u32 s3, s3, s29')
e('s_min_u32 s30, s29, 9')
e('s_add_u32 s3, s3, s30')
e('s_add_u32 s3, s3, s27')
e('s_mul_i32 s30, s27, s29')
e('s_cmp_ge_u32 s30, 9')
e('s_cbranch_scc1 Lp_wo')
def posdec(P, ko, pos, kk, o, tmp):
    e(f'v_mul_u32_u24 v{ko}, 58255, v{P}')
    e(f'v_lshrrev_b32 v{ko}, 22, v{ko}')
    e(f'v_mul_u32_u24 v{tmp}, 72, v{ko}')
    e(f'v_sub_u32 v{pos}, v{P}, v{tmp}')
    e(f'v_mul_u32_u24 v{kk}, 3641, v{ko}')
    e(f'v_lshrrev_b32 v{kk}, 16, v{kk}')
    e(f'v_mul_u32_u24 v{tmp}, 18, v{kk}')
    e(f'v_sub_u32 v{o}, v{ko}, v{tmp}')
G_ = lambda r, ch: 40+2*(8*r+ch)
e('s_lshl_b32 s28, s3, 5')
e('v_and_b32 v3, 31, v2')
e('v_add_u32 v4, s28, v3')
posdec(4, 5, 6, 7, 8, 9)
e(f'v_mul_u32_u24 v7, {4*82944}, v7')
e('v_mul_u32_u24 v8, 4608, v8')
e('v_lshrrev_b32 v9, 5, v2')
e('v_mul_u32_u24 v10, 288, v9')
e('v_add3_u32 v7, v7, v8, v10')
e('v_lshl_add_u32 v6, v6, 2, v7')
e('s_waitcnt lgkmcnt(0)')
srd(12, 6, 7, 0 if opt['skw'] else 31*144*288*2)
if opt['word']:
    for r in range(1, 4): e(f's_mov_b32 s{36+r}, {82944*r}')
    for ch in range(8):
        for r in range(4):
            e(f'buffer_load_dword v{G_(r,ch)+1}, v6, s[12:15], {"s%d" % (36+r) if r else 0} offen offset:{ch*576}{LDF}')
else:
  for r in range(4):
    for ch in range(8):
        e(f'buffer_load_dword v{G_(r,ch)+1}, v6, s[12:15], 0 offen offset:{ch*576}{LDF}')
    if r < 3: e('v_add_u32 v6, 82944, v6')
stamp(7)
common()
e('s_lshl_b32 s29, s27, 14')
e(f's_add_u32 s29, s29, {WL}')
e('v_lshlrev_b32 v10, 6, v3')
e('v_lshl_add_u32 v10, v9, 5, v10')
e('v_add_u32 v10, s29, v10')
e('v_lshlrev_b32 v11, 4, v2')
e('v_add_u32 v11, s29, v11')
for h in range(2):
    e('v_lshrrev_b32 v4, 2, v2')
    e(f'v_add3_u32 v4, v4, s28, {16*h}')
    posdec(4, 5, 6, 7, 8, 9)
    e('v_mul_u32_u24 v4, 43, v8')
    e('v_lshrrev_b32 v4, 8, v4')
    e('v_mul_u32_u24 v5, 6, v4')
    e('v_sub_u32 v5, v8, v5')
    e('v_lshrrev_b32 v8, 1, v7')
    e('v_add_u32 v8, 8, v8')
    e('v_and_b32 v9, 1, v7')
    e('v_lshl_add_u32 v9, v9, 1, v5')
    e('v_subrev_u32 v9, 4, v9')
    e('v_cmp_le_u32 vcc, 4, v5')
    e('v_mul_u32_u24 v4, 24576, v4')
    e('v_lshrrev_b32 v14, 3, v6')
    e('v_cndmask_b32 v8, v7, v8, vcc')
    e('v_cndmask_b32 v9, v5, v9, vcc')
    e(f'v_mul_u32_u24 v14, {21*24576}, v14')
    e('v_bfe_u32 v15, v6, 2, 1')
    e('v_mul_u32_u24 v15, 12288, v15')
    e(f'v_add3_u32 v{12+h}, v4, v14, v15')
    e(f'v_lshl_add_u32 v{12+h}, v8, 10, v{12+h}')
    e(f'v_lshl_add_u32 v{12+h}, v9, 8, v{12+h}')
    e('v_and_b32 v4, 3, v6')
    e(f'v_lshl_add_u32 v{12+h}, v4, 6, v{12+h}')
    e('v_and_b32 v4, 3, v2')
    e(f'v_lshl_add_u32 v{12+h}, v4, 4, v{12+h}')
def wcoef(t):
    for r in range(4):
        assert abs(GS[2*t+1][r] - (1 if r % 2 == 0 else -1)*GS[2*t][r]) < 1e-12
        e(f'v_mul_f32 v{160+2*r}, {fh(GS[2*t][r])}, v14')
        e(f'v_mov_b32 v{161+2*r}, v{160+2*r}')
e(f's_mov_b32 s34, {WT_OFF}')
e('v_cmp_le_u32 vcc, 32, v2')
e(f'v_mov_b32 v14, {fh(-2*LOG2E)}')
e(f'v_mov_b32 v15, {fh(-LOG2E)}')
e('v_cndmask_b32 v14, v14, v15, vcc')
e('v_mov_b32 v15, v14')
wcoef(0)
stamp(8)
e('s_barrier')
stamp(1)
e('s_waitcnt vmcnt(0)')
stamp(2)
for k in range(32):
    e(f'v_lshlrev_b32 v{40+2*k}, 16, v{41+2*k}')
    e(f'v_and_b32 v{41+2*k}, s33, v{41+2*k}')
e('s_mov_b32 s53, 0')
lab('Lp_wloop')
for dw in range(4):
    for c2 in range(2):
        ch = 2*dw+c2
        E, O = 104+4*c2, 106+4*c2
        e(f'v_pk_mul_f32 {vp(E)}, {vp(160)}, {vp(G_(0,ch))}')
        e(f'v_pk_mul_f32 {vp(O)}, {vp(162)}, {vp(G_(1,ch))}')
        e(f'v_pk_fma_f32 {vp(E)}, {vp(164)}, {vp(G_(2,ch))}, {vp(E)}')
        e(f'v_pk_fma_f32 {vp(O)}, {vp(166)}, {vp(G_(3,ch))}, {vp(O)}')
        pkadd(112+4*c2, O, E)
        pkadd(114+4*c2, E, O, negb=True)
    for sgn in range(2):
        for n in range(2):
            e(f'v_cvt_pk_bf16_f32 v{120+8*sgn+4*n+dw}, v{112+2*sgn+n}, v{116+2*sgn+n}')
for sgn in range(2):
    for n in range(2):
        e(f'ds_write_b128 v10, {vr(120+8*sgn+4*n)} offset:{sgn*2048 + n*16}')
e('s_add_u32 s53, s53, 1')
e('s_waitcnt lgkmcnt(0)')
e('v_add_u32 v10, 4096, v10')
e('s_cmp_eq_u32 s53, 3')
e('s_cbranch_scc1 Lp_w3')
e('s_cmp_eq_u32 s53, 1')
e('s_cbranch_scc1 Lp_w1')
wcoef(2)
if opt['early']:
    e('s_waitcnt vmcnt(0)')
    e('s_barrier')
e('s_branch Lp_wloop')
lab('Lp_w1')
for k in range(4): e(f'ds_read_b128 {vr(136+4*k)}, v11 offset:{k*1024}')
for k in range(4):
    e(f's_waitcnt lgkmcnt({3-k})')
    e(f'buffer_store_dwordx4 {vr(136+4*k)}, v{12+k%2}, s[20:23], s34 offen sc1')
    if k % 2 == 1: e(f's_add_u32 s34, s34, {3*24576}')
wcoef(1)
if not opt['early']:
    e('s_waitcnt vmcnt(0)')
    e('s_barrier')
e('s_branch Lp_wloop')
lab('Lp_w3')
for ch in range(8): e(f'v_pk_mul_f32 {vp(G_(3,ch))}, {vp(G_(3,ch))}, v[14:15]')
for n in range(2):
    for dw in range(4):
        e(f'v_cvt_pk_bf16_f32 v{120+4*n+dw}, v{G_(3,2*dw)+n}, v{G_(3,2*dw+1)+n}')
    e(f'ds_write_b128 v10, {vr(120+4*n)} offset:{n*16}')
e('s_waitcnt lgkmcnt(0)')
for k in range(10):
    e(f'ds_read_b128 {vr(PK(k % 2, k//2))}, v11 offset:{4096 + k*1024}')
e(f'v_add_u32 v{PA(0)}, s34, v12')
e(f'v_add_u32 v{PA(1)}, s34, v13')
e(f's_mov_b32 s96, {3*24576}')
e(f's_mov_b32 s97, {3*24576}')
e('s_waitcnt lgkmcnt(0)')
lab('Lp_wx')
c('then x pass 2: wave 4: unit 8 (block 3) ; wave 5: units 4,5 (blocks 2,3)')
e('s_cmp_ge_u32 s2, 250')
e('s_cbranch_scc1 L_pdone')
xcoef2()
e('s_mov_b32 s30, 8')
e('s_cmp_eq_u32 s26, 4')
e('s_cbranch_scc1 Lp_x3')
e('s_mov_b32 s30, 4')
e('s_branch Lp_x23')
lab('Lp_wo')
e('s_waitcnt lgkmcnt(0)')
common()
e('s_sub_u32 s3, s2, 72')
e('s_cmp_ge_u32 s3, 45')
e('s_cbranch_scc1 Lp_wo2')
srd(12, 8, 9, 144*144*2)
e('s_mul_i32 s28, s3, 13108')
e('s_lshr_b32 s28, s28, 16')
e('s_mul_i32 s29, s28, 5')
e('s_sub_u32 s29, s3, s29')
e('v_and_b32 v7, 15, v2')
e('v_lshrrev_b32 v8, 4, v2')
e('s_cmp_eq_u32 s28, 8')
e('s_cselect_b32 s30, 1, 4')
e('s_cselect_b32 s34, 256, 0')
e('s_cselect_b32 s28, 0, s28')
e('s_lshl_b32 s28, s28, 1')
e('s_add_u32 s34, s34, s28')
e(f's_mul_i32 s29, s29, {32*288}')
e('s_add_u32 s34, s34, s29')
e('v_lshlrev_b32 v9, s30, v7')
e('v_mul_u32_u24 v14, 576, v8')
e('v_add3_u32 v14, v14, v9, s34')
for d in range(4):
    e(f'buffer_load_ushort v{40+2*d}, v14, s[12:15], 0 offen')
    e(f'buffer_load_ushort v{41+2*d}, v14, s[12:15], 0 offen offset:288')
    if d < 3: e('v_add_u32 v14, 2304, v14')
e('s_lshl_b32 s3, s3, 10')
e(f's_add_u32 s3, s3, {WO_OFF}')
e('v_lshlrev_b32 v1, 4, v2')
e('s_barrier')
e('s_waitcnt vmcnt(0)')
for d in range(4):
    e(f'v_lshl_or_b32 v{48+d}, v{41+2*d}, 16, v{40+2*d}')
e('buffer_store_dwordx4 v[48:51], v1, s[20:23], s3 offen sc1')
e('s_waitcnt vmcnt(0)')
e('s_barrier')
e('s_branch Lp_wx')
lab('Lp_wo2')
e('s_barrier')
e('s_barrier')
e('s_branch Lp_wx')

def M(t): return 12 + 4*t
def MD(t): return 48 + 4*t
def FR(k): return vr(84 + 4*k)
lab('L_pdone')
e('v_lshlrev_b32 v101, 4, v2')
e('v_min_u32 v36, 62, v2')
e('v_lshlrev_b32 v36, 5, v36')
e(f's_and_b32 s30, s2, {REP-1}')
e(f's_mul_i32 s30, s30, {RSTR}')
e('v_add_u32 v36, s30, v36')
e(f'v_mul_u32_u24 v12, {RSTR}, v2')
c('unit = base[xcd] + (id>>3)')
e('s_and_b32 s25, s2, 7')
e('s_lshr_b32 s24, s2, 3')
e('s_mul_i32 s27, s25, 31')
e('s_min_u32 s28, s25, 4')
e('s_add_u32 s27, s27, s28')
e('s_add_u32 s27, s27, s24')
e('s_mul_i32 s28, s27, 7282')
e('s_lshr_b32 s28, s28, 16')
e('s_mul_i32 s29, s28, 9')
e('s_sub_u32 s29, s27, s29')
e('s_and_b32 s24, s26, 3')
e('s_lshr_b32 s32, s24, 1')
e('s_and_b32 s33, s24, 1')
e('s_mul_i32 s34, s24, 7168')
e('s_mul_i32 s35, s24, 6144')
c('z soffset s62: (((g*2+rh)*9+gs)*18+J)*1024')
e('s_lshl_b32 s62, s28, 1')
e('s_add_u32 s62, s62, s32')
e(f's_mul_i32 s62, s62, {9*18*1024}')
e('s_lshl_b32 s63, s29, 1')
e('s_add_u32 s63, s63, s33')
e('s_lshl_b32 s63, s63, 10')
e('s_add_u32 s62, s62, s63')
e(f's_add_u32 s62, s62, {Z_OFF}')
if opt['gmap']:
    c('g = (b*7+gg)*2 + p')
    e('s_lshr_b32 s38, s28, 1')
    e('s_and_b32 s30, s28, 1')
    e('s_cmp_ge_u32 s38, 7')
    e('s_cselect_b32 s36, 7, 0')
    e('s_cselect_b32 s37, 2, 0')
    e('s_sub_u32 s38, s38, s36')
    e('s_add_u32 s30, s30, s37')
else:
    e('s_mul_i32 s30, s28, 9363')
    e('s_lshr_b32 s30, s30, 16')
    e('s_mul_i32 s38, s30, 7')
    e('s_sub_u32 s38, s28, s38')
e(f's_mul_i32 s36, s30, {21*XS}')
e('s_mul_i32 s37, s38, 27648')
e('s_add_u32 s36, s36, s37')
e('s_add_u32 s36, s36, s34')
e(f's_mul_i32 s37, s29, {21*24576}')
e('s_add_u32 s37, s37, s35')
e(f's_add_u32 s37, s37, {WT_OFF}')
c('last row group of a stream: do not fetch the never-written padding rows (KB 26 lanes >= 16, KB 27): v6, v7 = voffsets for those two chunks')
e('s_cmp_eq_u32 s38, 6')
e('s_cselect_b32 s60, 16, 64')
e('s_cselect_b32 s61, 0, 64')
e(f'v_mov_b32 v8, {OOB}')
e('v_cmp_gt_u32 vcc, s60, v2')
e('v_cmp_gt_u32 s[88:89], s61, v2')
e('s_nop 0')
e('v_cndmask_b32 v6, v8, v101, vcc')
e('v_cndmask_b32 v7, v8, v101, s[88:89]')
e('s_cmp_ge_u32 s26, 4')
e('s_cbranch_scc1 L_helper')
e('s_cmp_lg_u32 s26, 0')
e('s_cbranch_scc1 L_c13')
c('wave 0: wait for all A flags, then load the whole phase 0 tile')
if opt['agg']:
    e('s_cmp_lg_u32 s2, 0')
    e('s_cbranch_scc1 L_gow')
if opt['dly']: e(f's_sleep {opt["dly"]}')
if opt['fl']:
    for k in range(4):
        e(f'v_add_u32 v{42+k}, {64*k}, v2')
        e(f'v_min_u32 v{42+k}, 251, v{42+k}')
        e(f'v_lshlrev_b32 v{42+k}, 7, v{42+k}')
    e('v_lshrrev_b32 v46, 3, v2')
    e('v_mul_u32_u24 v46, 4352, v46')
    e('v_and_b32 v47, 7, v2')
    e('v_lshl_add_u32 v46, v47, 4, v46')
poll('A' if opt['fl'] else 0, 'A')
if opt['agg']:
    c('WG 0 saw all A flags: release everybody through 8 go words')
    e(f's_mov_b32 s30, {FLAG_OFF+GOF}')
    if opt['fl']:
        e('buffer_store_dwordx4 v[38:41], v46, s[20:23], s30 offen sc1')
    else:
        e('v_mul_u32_u24 v9, 4352, v2')
        e('s_mov_b64 exec, 0xff')
        e('buffer_store_dwordx2 v[38:39], v9, s[20:23], s30 offen sc1')
        e('s_mov_b64 exec, -1')
    e('s_branch L_god')
    lab('L_gow')
    e('s_mul_i32 s30, s25, 4352')
    e(f's_add_u32 s30, s30, {FLAG_OFF+GOF}')
    e('s_mov_b32 s31, 0')
    e('s_mov_b64 exec, 1')
    lab('L_gol')
    e('buffer_load_dwordx2 v[24:25], v37, s[20:23], s30 offen sc1')
    e('s_add_u32 s31, s31, 1')
    e('s_cmp_gt_u32 s31, 800000')
    e('s_cbranch_scc1 L_gox')
    e('s_waitcnt vmcnt(0)')
    e('v_cmp_ne_u64 vcc, s[92:93], v[24:25]')
    e('s_cbranch_vccz L_gox')
    e(f's_sleep {opt["gslp"]}')
    e('s_branch L_gol')
    lab('L_gox')
    e('s_mov_b64 exec, -1')
    lab('L_god')
stamp(3)
for k in range(52):
    if k % 4 == 0:
        e(f's_mov_b32 m0, {k*1024}')
        e(f's_add_u32 s30, s36, {k*1024}' if k < 28 else f's_add_u32 s30, s37, {(k-28)*1024}')
    e(f'buffer_load_dwordx4 v{ {26: 6, 27: 7}.get(k, 101) }, s[20:23], s30 offen offset:{(k%4)*1024} sc1 lds')
lab('L_c13')
e('s_barrier')
if opt['prio']: e(f's_setprio {opt["prio"]}')
e('v_and_b32 v124, 15, v2')
e('v_lshrrev_b32 v125, 4, v2')
e('v_mul_u32_u24 v126, 864, v124')
e('s_mul_i32 s38, s32, 13824')
e('v_add_u32 v126, s38, v126')
e('v_lshl_add_u32 v2, v125, 4, v126')
e('v_lshrrev_b32 v127, 1, v125')
e('v_mul_u32_u24 v127, 96, v127')
e('v_sub_u32 v127, v126, v127')
e('v_and_b32 v128, 1, v125')
e('v_lshl_add_u32 v127, v128, 4, v127')
e('v_add_u32 v5, 160, v127')
e('s_mul_i32 s38, s33, 12288')
e('s_add_u32 s38, s38, 28672')
e('v_add_u32 v8, s38, v101')
for s in (1, 2):
    e(f'v_add_u32 v{2+s}, {s*SLOT}, v2')
    e(f'v_add_u32 v{5+s}, {s*SLOT}, v5')
    e(f'v_add_u32 v{8+s}, {s*SLOT}, v8')
if opt['sn32']: e('v_lshrrev_b32 v101, 2, v101')
e(f's_add_u32 s38, s34, {2*SLOT}')
e('v_add_u32 v1, s38, v101')
e(f's_add_u32 s38, s35, {2*SLOT+28672}')
e('v_add_u32 v11, s38, v101')
for r in range(48, 84): e(f'v_mov_b32 v{r}, 0')

frags = []; mf = []
if opt['mord']:
    for t in range(9):
        for kk in range(7, -1, -1): mf.append((t, ('W', kk), ('X', t-kk)))
    for t in (range(8, -1, -1) if opt['tdesc'] else range(9)):
        for pp in (range(4) if opt['tdesc'] else range(3, -1, -1)): mf.append((t, ('WT', pp), ('XT', t-2*pp)))
else:
  for tp in range(-7, 9):
    for kk in range(min(7, 8-tp), max(0, -tp)-1, -1):
        mf.append((tp+kk, ('W', kk), ('X', tp)))
  for tp in range(-6, 9):
    for pp in range(3, -1, -1):
        if 0 <= tp+2*pp <= 8: mf.append((tp+2*pp, ('WT', pp), ('XT', tp)))
assert len(mf) == 108
fu = {}
for s, (t, wk, xk) in enumerate(mf):
    for k in (xk, wk):
        if k not in fu: fu[k] = s; frags.append(k)
assert len(frags) == 43
fidx = {k: i for i, k in enumerate(frags)}
LA = opt['LA']; BAR = 108 - LA; ELAST = BAR - 6
iss = [(-LA + (k*(ELAST+LA))//42) for k in range(43)]
if opt['mord']:
    iss = [-LA + (k*(LA-2))//16 for k in range(17)] + [1 + (k*(ELAST-1))//25 for k in range(26)]
    lu = {}
    for s, (t, wk, xk) in enumerate(mf): lu[wk] = s; lu[xk] = s
    for k in range(43): assert iss[k] + 108 > lu[frags[k]] + 1, (k, iss[k], lu[frags[k]])
for k in range(43): assert iss[k] <= fu[frags[k]] - 8, (k, iss[k], fu[frags[k]])
def rd(k, slot):
    kind, i = frags[k]
    if kind == 'X': return f'ds_read_b128 {FR(k)}, v{2+slot} offset:{(i+8)*96}'
    if kind == 'XT': return f'ds_read_b128 {FR(k)}, v{5+slot} offset:{(i+7)*96}'
    if kind == 'W': return f'ds_read_b128 {FR(k)}, v{8+slot} offset:{i*1024}'
    return f'ds_read_b128 {FR(k)}, v{8+slot} offset:{(8+i)*1024}'
npre = sum(1 for x in iss if x < 0)
first_touch = {}; last_touch = {}
for s, (t, wk, xk) in enumerate(mf):
    first_touch.setdefault(t, s); last_touch[t] = s
def snapw(t):
    if opt['sn32']:
        t, r = divmod(t, 4)
        return f'ds_write_b32 v1, v{MD(t)+r} offset:{t*1024+r*256}' if t < 7 else f'ds_write_b32 v11, v{MD(t)+r} offset:{(t-7)*1024+r*256}'
    return f'ds_write_b128 v1, {vr(MD(t))} offset:{t*1024}' if t < 7 else f'ds_write_b128 v11, {vr(MD(t))} offset:{(t-7)*1024}'
QS = opt['QS']
ext = [[] for _ in range(324)]
for ph in range(3):
    for k in range(43):
        ext[(ph*108 + iss[k]) % 324].append(('rd', k, ph))
used = [len(x) for x in ext]
lastw = 0
if opt['sn32']:
    for n in range(36):
        pos = max(216 + last_touch[n//4] + 8, lastw + 1)
        lastw = pos
        assert pos >= 216 + BAR and pos < 324 + QS - 2, pos
        ext[pos % 324].append(('wr', n, 0))
else:
  for t in sorted(range(9), key=lambda t: last_touch[t]):
    pos = max(216 + last_touch[t] + 8, lastw + opt['wsp'], 216 + BAR + 1)
    while used[pos % 324]: pos += 1
    lastw = pos
    used[pos % 324] += 1
    assert pos >= 216 + BAR and pos < 324 + QS - 2
    ext[pos % 324].append(('wr', t, 0))
e('s_waitcnt vmcnt(0)')
stamp(4)
e('s_barrier')
stamp(5)
if opt['dbgst']: e('s_memtime s[90:91]')
for k in range(npre): e(rd(k, 0))
e('s_mov_b32 s39, 7')
e('s_waitcnt lgkmcnt(0)')
out.append('.p2align 6')
for _ in range(opt['pad']): e('s_nop 0')
lab('L_loop')
seq = 0; rseq = {}; covered = -1; wseq = -1; sslot = []
for it in range(2):
    emit = e if it == 1 else (lambda s: None)
    for ph in range(3):
        if it == 1: c(f'======== phase {ph}')
        for s, (t, wk, xk) in enumerate(mf):
            if s == BAR:
                emit('s_waitcnt lgkmcnt(0)')
                emit('s_barrier')
                covered = seq - 1
            if ph == 0 and s == QS:
                if wseq > covered:
                    emit(f's_waitcnt lgkmcnt({min(15, seq-1-wseq)})')
                    covered = max(covered, seq - 1 - min(15, seq-1-wseq))
                emit('s_barrier')
            need = max(rseq.get((ph, fidx[wk]), -1), rseq.get((ph, fidx[xk]), -1))
            if need > covered:
                now = it*324 + ph*108 + s
                recent = sum(1 for x in sslot if x >= now - opt['lat'])
                allow = min(seq - 1 - need, recent, 15)
                emit(f's_waitcnt lgkmcnt({allow})')
                covered = seq - 1 - allow
            cin = vr(MD(t)) if (ph == 0 and first_touch[t] == s) else vr(M(t))
            dst = vr(MD(t)) if (ph == 2 and last_touch[t] == s) else vr(M(t))
            emit(f'v_mfma_f32_16x16x32_bf16 {dst}, {FR(fidx[wk])}, {FR(fidx[xk])}, {cin}')
            for x in ext[ph*108+s]:
                if x[0] == 'rd':
                    emit(rd(x[1], x[2])); rseq[(x[2], x[1])] = seq; seq += 1; sslot.append(it*324 + ph*108 + s)
                else:
                    emit(snapw(x[1])); wseq = seq; seq += 1; sslot.append(it*324 + ph*108 + s)
            if ph == 2 and s == 104: emit('s_sub_u32 s39, s39, 1')
            if ph == 2 and s == 105: emit('s_cmp_lg_u32 s39, 0')
e('s_cbranch_scc1 L_loop')
stamp(6)
if opt['dbgst']: e('s_memtime s[94:95]')
c('---- compute-wave epilogue: gate y3 = MD')
e('s_waitcnt lgkmcnt(0)')
if opt['tr']: e('s_barrier')
def gate_consts():
    e(f's_mov_b32 s46, {fh(-0.6931471805599453)}')
    e(f's_mov_b32 s42, {fh(2*LOG2E*2**-12)}')
    e('s_mov_b32 s43, 0x41f00000')
def gate(a, r, dst, sp):
    L = []
    L.append(f'v_min_f32 v{r}, s43, v{a}')
    L.append(f'v_min_f32 v{r+1}, s43, v{a+1}')
    L.append(f'v_exp_f32 v{a+2}, v{a+2}')
    L.append(f'v_exp_f32 v{a+3}, v{a+3}')
    L.append(f'v_exp_f32 v{r}, v{r}')
    L.append(f'v_exp_f32 v{r+1}, v{r+1}')
    if opt['smallfix']:
        L.append(f'v_cmp_gt_f32 s[{sp}:{sp+1}], s42, abs(v{a})')
        L.append(f'v_cmp_gt_f32 s[{sp+2}:{sp+3}], s42, abs(v{a+1})')
    L.append(f'v_add_f32 v{r+2}, 1.0, v{r}')
    L.append(f'v_add_f32 v{r+3}, 1.0, v{r+1}')
    if opt['smallfix']:
        L.append(f'v_mul_f32 v{a}, s46, v{a}')
        L.append(f'v_mul_f32 v{a+1}, s46, v{a+1}')
    L.append(f'v_fmac_f32 v{r+2}, v{r+2}, v{a+2}')
    L.append(f'v_fmac_f32 v{r+3}, v{r+3}, v{a+3}')
    L.append(f'v_sub_f32 v{r}, 1.0, v{r}')
    L.append(f'v_sub_f32 v{r+1}, 1.0, v{r+1}')
    L.append(f'v_rcp_f32 v{r+2}, v{r+2}')
    L.append(f'v_rcp_f32 v{r+3}, v{r+3}')
    if opt['smallfix']:
        L.append(f'v_cndmask_b32 v{r}, v{r}, v{a}, s[{sp}:{sp+1}]')
        L.append(f'v_cndmask_b32 v{r+1}, v{r+1}, v{a+1}, s[{sp+2}:{sp+3}]')
    L.append(f'v_mul_f32 v{r}, v{r}, v{r+2}')
    L.append(f'v_mul_f32 v{r+1}, v{r+1}, v{r+3}')
    L.append(f'v_cvt_pk_bf16_f32 v{dst}, v{r}, v{r+1}')
    return L
ool = []
def gate_check(As, tm, name):
    for k, a in enumerate(As):
        if k == 0:
            e(f'v_min_f32 v{tm}, abs(v{a}), abs(v{a+1})')
            e(f'v_max_f32 v{tm+1}, v{a}, v{a+1}')
        else:
            e(f'v_min3_f32 v{tm}, abs(v{a}), abs(v{a+1}), v{tm}')
            e(f'v_max3_f32 v{tm+1}, v{a}, v{a+1}, v{tm+1}')
    e(f'v_cmp_gt_f32 s[44:45], s42, v{tm}')
    e(f'v_cmp_lt_f32 vcc, s43, v{tm+1}')
    e(f's_cbranch_vccnz L_cl{name}')
    lab(f'L_clr{name}')
    L = [f'L_cl{name}:']
    for a in As:
        L += [f'    v_min_f32 v{a}, s43, v{a}', f'    v_min_f32 v{a+1}, s43, v{a+1}']
    L.append(f'    s_branch L_clr{name}')
    ool.extend(L)
def gate_fast(a, r, dst, name):
    e(f'v_exp_f32 v{r}, v{a}')
    e(f'v_exp_f32 v{r+1}, v{a+1}')
    e(f'v_exp_f32 v{a+2}, v{a+2}')
    e(f'v_exp_f32 v{a+3}, v{a+3}')
    e(f'v_add_f32 v{r+2}, 1.0, v{r}')
    e(f'v_add_f32 v{r+3}, 1.0, v{r+1}')
    e('s_cmp_lg_u64 s[44:45], 0')
    e(f'v_fmac_f32 v{r+2}, v{r+2}, v{a+2}')
    e(f'v_fmac_f32 v{r+3}, v{r+3}, v{a+3}')
    e(f'v_sub_f32 v{r}, 1.0, v{r}')
    e(f'v_sub_f32 v{r+1}, 1.0, v{r+1}')
    e(f'v_rcp_f32 v{r+2}, v{r+2}')
    e(f'v_rcp_f32 v{r+3}, v{r+3}')
    e(f's_cbranch_scc1 L_sm{name}')
    lab(f'L_smr{name}')
    e(f'v_mul_f32 v{r}, v{r}, v{r+2}')
    e(f'v_mul_f32 v{r+1}, v{r+1}, v{r+3}')
    e(f'v_cvt_pk_bf16_f32 v{dst}, v{r}, v{r+1}')
    ool.extend([f'L_sm{name}:',
        f'    v_cmp_gt_f32 s[48:49], s42, abs(v{a})',
        f'    v_cmp_gt_f32 s[50:51], s42, abs(v{a+1})',
        f'    v_mul_f32 v{a}, s46, v{a}',
        f'    v_mul_f32 v{a+1}, s46, v{a+1}',
        f'    v_cndmask_b32 v{r}, v{r}, v{a}, s[48:49]',
        f'    v_cndmask_b32 v{r+1}, v{r+1}, v{a+1}, s[50:51]',
        f'    s_branch L_smr{name}'])
gate_consts()
e('v_and_b32 v100, 63, v0')
e('v_lshlrev_b32 v101, 4, v100')
e(f's_add_u32 s63, s62, {7*18432}')
if opt['full']:
    e('s_lshl_b32 s40, s24, 10')
    e(f's_add_u32 s40, s40, {SLOT}')
    e('v_add_u32 v102, s40, v101')
    e('ds_read_b128 v[124:127], v102')
for t in range(9):
    if opt['fast']:
        if t % 3 == 0: gate_check([MD(t), MD(t+1), MD(t+2)], 102, f'c{t}')
        gate_fast(MD(t), 104 + 4*(t % 2), 112 + t, f'c{t}')
    else:
        if opt['full'] and t == 8: e('s_waitcnt lgkmcnt(0)')
        for x in gate(MD(t), 104 + 4*(t % 2), (127 if opt['full'] and t == 8 else 112 + t), 48): e(x)
    if t in (3, 7):
        e(f'buffer_store_dwordx4 v[{112+t-3}:{112+t}], v101, s[20:23], s63 offen sc1')
        e('s_add_u32 s63, s63, 18432')
e(f's_add_u32 s63, s62, {6*18432}')
if opt['full']: e('buffer_store_dwordx4 v[124:127], v101, s[20:23], s63 offen sc1')
else: e('buffer_store_dword v120, v101, s[20:23], s63 offen offset:12 sc1')
e('s_branch L_fin')
def hbar():
    if opt['bst']:
        e('s_memtime s[64:65]')
        e('s_barrier')
        e('s_memtime s[66:67]')
        e('s_waitcnt lgkmcnt(0)')
        e('s_mov_b32 m0, s68'); e('s_nop 0')
        e('v_writelane_b32 v14, s64, m0')
        e('v_writelane_b32 v15, s66, m0')
        e('s_add_u32 s68, s68, 1')
    else: e('s_barrier')
lab('L_helper')
if opt['bst']: e('s_mov_b32 s68, 0')
def Y(i, t): return 40 + 4*(i*9+t)
def SN(t): return 148 + 4*t
e('v_mov_b32 v3, v101')
e('v_add_u32 v13, 4096, v101')
e('v_add_u32 v6, 4096, v6')
e('v_add_u32 v7, 4096, v7')
e('s_cmp_eq_u32 s26, 7')
e('s_cselect_b64 vcc, -1, 0')
e('v_cndmask_b32 v6, v13, v6, vcc')
e('v_cndmask_b32 v7, v13, v7, vcc')
if opt['sn32']: e('v_lshrrev_b32 v101, 2, v101')
e(f's_add_u32 s38, s34, {2*SLOT}')
e('v_add_u32 v4, s38, v101')
e(f's_add_u32 s38, s35, {2*SLOT+28672}')
e('v_add_u32 v5, s38, v101')
e('s_cmp_eq_u32 s26, 4')
e('s_cbranch_scc1 L_h4')
e(f'v_mov_b32 v36, {OOB}')
e(f'v_mov_b32 v12, {OOB}')
e('s_branch L_h5')
lab('L_h4')
e('s_mov_b32 s31, 0')
gettag('h')
lab('L_h5')
e('v_mov_b32 v38, s92')
e('v_mov_b32 v39, s93')
def dma_list(slot):
    L = []
    for k in range(7):
        pre = [f's_add_u32 m0, s34, {slot*SLOT + (k//4)*4096}', 's_nop 0']
        L.append(pre + [f'buffer_load_dwordx4 v{(3,3,3,3,13,6,7)[k]}, s[20:23], s36 offen offset:{(k%4)*1024} sc1 lds'] + ([f's_add_u32 s36, s36, {XS}'] if k == 6 else []))
    for k in range(6):
        pre = [f's_add_u32 m0, s35, {slot*SLOT + 28672 + (k//4)*4096}', 's_nop 0']
        L.append(pre + [f'buffer_load_dwordx4 v{3 if k < 4 else 13}, s[20:23], s37 offen offset:{(k%4)*1024} sc1 lds'] + (['s_add_u32 s37, s37, 24576'] if k == 5 else []))
    return L
def pst(b, pm):
    return [f'buffer_store_dwordx4 {vr(PK(b,pm))}, v{PA(b)}, s[20:23], 0 offen sc1', f'v_add_u32 v{PA(b)}, s{96+b}, v{PA(b)}']
def weave(dl, sl):
    res = []; n = len(sl); m = len(dl)
    for i in range(m):
        res.append(dl[i])
        for k in range((i*n)//m, ((i+1)*n)//m): res.append(sl[k])
    return res
def mix(dl, vl):
    n = len(dl)
    for i, d in enumerate(dl):
        for x in d: e(x)
        for x in vl[(i*len(vl))//n:((i+1)*len(vl))//n]: e(x)
    if n == 0:
        for x in vl: e(x)
def nvm(dl, after):
    return len(dl) - 1 - after
def snapr():
    if opt['sn32']:
        for t in range(9):
            for h in range(2):
                o = (t if t < 7 else t-7)*4 + 2*h
                e(f'ds_read2st64_b32 {vp(SN(t)+2*h)}, v{4 if t < 7 else 5} offset0:{o} offset1:{o+1}')
            if t == 6: e('s_waitcnt lgkmcnt(4)')
        e('s_waitcnt lgkmcnt(0)')
        return
    for t in range(9):
        e(f'ds_read_b128 {vr(SN(t))}, v4 offset:{t*1024}' if t < 7 else f'ds_read_b128 {vr(SN(t))}, v5 offset:{(t-7)*1024}')
    e('s_waitcnt lgkmcnt(0)')
FM = [f'v_fmac_f32 v{Y(i,t)+r}, s{40+i}, v{SN(t)+r}' for t in range(9) for i in range(3) for r in range(4)]
def FMm(m):
    L = []
    for t in range(9):
        for i in range(3):
            if DCH[i][m] == 0: continue
            first = all(DCH[i][mm] == 0 for mm in range(m))
            for r in range(4): L.append(f'{"v_mul_f32" if first else "v_fmac_f32"} v{Y(i,t)+r}, s{40+i}, v{SN(t)+r}')
    return L
e(f's_add_u32 s36, s36, {XS}')
e('s_add_u32 s37, s37, 24576')
e('s_barrier')
mix(dma_list(1), [])
if opt['b1e'] == 1: mix([pst(b, 0) for b in range(4)], [])
c('coefficient table: s40.. = 3 x 6, consumed from the front')
for m in range(6):
    for i in range(3): e(f's_mov_b32 s{40+3*m+i}, {fh(DCH[i][m])}')
hbar()
if opt['b1e'] == 2: mix([pst(b, 0) for b in range(4)], [])
ND0 = opt['nd0']
def only4(name, fn):
    e('s_cmp_lg_u32 s26, 4')
    e(f's_cbranch_scc1 L_o4{name}')
    fn()
    lab(f'L_o4{name}')
def hflag(off):
    e('s_lshl_b32 s30, s2, 3')
    e(f's_add_u32 s30, s30, {FLAG_OFF+off}')
    e(f's_mov_b64 exec, {(1<<REP)-1}')
    e('buffer_store_dwordx2 v[38:39], v12, s[20:23], s30 offen sc1')
    e('s_mov_b64 exec, -1')
def hiter(name, fm, sa=(), sc_=(), flag0=None, flag1=None, chk=None):
    if chk is not None: poll_issue(chk)
    for g_ in sa:
        for x in g_: e(x)
    hbar()
    if fm: snapr()
    D2 = dma_list(2)
    mix(D2[:ND0], [])
    e(f's_waitcnt vmcnt({ND0 + len(sa)})')
    if chk is not None:
        def f():
            poll_check()
            e(f's_cbranch_scc0 L_o4c{name}')
            poll(chk, name, opt['fslp'])
        only4('c'+name, f)
    hbar()
    if flag0 is not None: hflag(flag0)
    mix(D2[ND0:] + dma_list(0), fm[:40])
    e('s_waitcnt vmcnt(13)')
    hbar()
    if flag1 is not None: hflag(flag1)
    mix(list(sc_) + dma_list(1), fm[40:])
    if fm:
        for k in range(15): e(f's_mov_b32 s{40+k}, s{43+k}')
    e(f's_waitcnt vmcnt({13 + len(sc_) + (1 if flag1 is not None else 0)})')
    hbar()
ST = [pst(b, pm) for pm in range(5) for b in range(4)]
if opt['b1e']: hiter('0', [], sc_=ST[4:8], flag0=1*FA)
else: hiter('0', [], sa=ST[0:4], sc_=ST[4:8], flag1=1*FA)
hiter('1', FMm(0), sa=ST[8:12], sc_=ST[12:16], flag0=2*FA, flag1=3*FA, chk=1*FA)
hiter('2', FMm(1), sa=ST[16:20], flag1=4*FA, chk=2*FA)
hiter('3', FMm(2), chk=3*FA)
hiter('4', FMm(3), chk=4*FA)
hiter('5', FMm(4))
c('---- last product')
if opt['sw'] == 4: stamp(6)
hbar()
snapr()
F0 = opt['f0']
D2 = dma_list(2)
mix(D2[:ND0], FM[:F0])
e(f's_waitcnt vmcnt({ND0})')
hbar()
WD = []
for k in range(12):
    WD.append([f's_add_u32 m0, s61, {(k//4)*4096}', 's_nop 0', f'buffer_load_dwordx4 v3, s[20:23], s60 offen offset:{(k%4)*1024} sc1 lds'] + (['s_add_u32 s60, s60, 4096'] if k % 4 == 3 else []))
e('s_mul_i32 s61, s24, 12288')
e(f's_add_u32 s60, s61, {WO_OFF}')
mix(D2[ND0:] + WD, FM[F0:])
gate_consts()
e('s_mov_b32 s63, s62')
nst = [0]
HORD = ([24, 25, 26] + list(range(24))) if opt['full'] else list(range(27))
def hgate(n0, n1):
    for n in HORD[n0:n1]:
        t, i = divmod(n, 3)
        if opt['fast']:
            if i == 0: gate_check([Y(0,t), Y(1,t), Y(2,t)], 192, f'h{n}')
            gate_fast(Y(i, t), 184 + 4*(n % 2), 200 + n, f'h{n}')
        else:
            for x in gate(Y(i, t), 184 + 4*(n % 2), 200 + n, 48): e(x)
        if n % 4 == 3:
            e(f'buffer_store_dwordx4 v[{200+n-3}:{200+n}], v3, s[20:23], s63 offen sc1')
            e('s_add_u32 s63, s63, 18432'); nst[0] += 1
        if n == 26 and not opt['full']:
            e('buffer_store_dwordx3 v[224:226], v3, s[20:23], s63 offen sc1'); nst[0] += 1
g1 = opt['g1']; g2 = min(27, g1 + opt['g2'])
hgate(0, g1)
e(f's_waitcnt vmcnt({nst[0]+12})')
hbar()
if opt['full']:
    assert g1 >= 3
    e('s_lshl_b32 s40, s24, 10')
    e(f's_add_u32 s40, s40, {SLOT}')
    e('v_add_u32 v8, s40, v3')
    e('ds_write_b128 v8, v[224:227]')
hgate(g1, g2)
if opt['full']: e('s_waitcnt lgkmcnt(0)')
hbar()
if opt['tr']:
    hgate(g2, opt['x1'])
    e(f's_waitcnt vmcnt({nst[0]-5})')
    e('s_barrier')
    e('s_lshl_b32 s30, s28, 7')
    e('s_lshl_b32 s31, s29, 3')
    e('s_add_u32 s30, s30, s31')
    e(f's_add_u32 s30, s30, {FLAG_OFF+ZFL}')
    e('s_mov_b64 exec, 1')
    e('buffer_store_dwordx2 v[38:39], v12, s[20:23], s30 offen sc1')
    e('s_mov_b64 exec, -1')
    hgate(opt['x1'], 27)
else:
    hgate(g2, 27)
if opt['bst']:
    e('s_memtime s[64:65]')
    e('s_waitcnt lgkmcnt(0)')
    e('s_mov_b32 m0, s68'); e('s_nop 0')
    e('v_writelane_b32 v14, s64, m0')
    e('v_writelane_b32 v15, s64, m0')
    e('s_cmp_lg_u32 s26, 4')
    e('s_cbranch_scc1 L_fin')
    e('s_mov_b32 s22, 0x10000000')
    e('s_lshl_b32 s33, s2, 9')
    e(f's_add_u32 s33, s33, {STAMP_OFF + (128<<10)*4}')
    e('v_lshrrev_b32 v1, 1, v3')
    e('buffer_store_dwordx2 v[14:15], v1, s[20:23], s33 offen')
lab('L_fin')
e('s_setprio 0')
e('s_load_dwordx2 s[6:7], s[0:1], 24')
if not opt['es']: stamp(7)
e('v_and_b32 v2, 63, v0')
e('v_lshlrev_b32 v3, 4, v2')
e('v_mov_b32 v37, 0')
e('s_lshr_b32 s41, s26, 2')
if opt['tr']:
    c('helpers take an early set, compute waves a late one')
    e('s_mul_i32 s40, s28, 18')
    e('s_add_u32 s40, s40, s29')
    e('s_add_u32 s42, s41, 4')
    e('s_cmp_ge_u32 s29, s42')
    e('s_cselect_b32 s42, 4, 0')
    e('s_add_u32 s40, s40, s42')
    e('s_cmp_eq_u32 s41, 0')
    e('s_cselect_b32 s42, 5, 0')
    e('s_add_u32 s40, s40, s42')
else:
    e('s_lshl_b32 s40, s27, 1')
    e('s_add_u32 s40, s40, s41')
e('s_mul_i32 s30, s40, 7282')
e('s_lshr_b32 s30, s30, 16')
e('s_mul_i32 s31, s30, 9')
e('s_sub_u32 s31, s40, s31')
if opt['gmap']:
    e('s_lshr_b32 s32, s30, 2')
    e('s_bfe_u32 s38, s30, 0x10001')
    e('s_and_b32 s33, s30, 1')
    e('s_cmp_ge_u32 s32, 7')
    e('s_cselect_b32 s37, 4608000, 0')
    e('s_cselect_b32 s36, 7, 0')
    e('s_sub_u32 s32, s32, s36')
    e('s_lshl_b32 s32, s32, 1')
    e('s_add_u32 s33, s33, s32')
else:
    e('s_mul_i32 s32, s30, 4682')
    e('s_lshr_b32 s32, s32, 16')
    e('s_mul_i32 s33, s32, 14')
    e('s_sub_u32 s33, s30, s33')
    e('s_lshr_b32 s37, s32, 1')
    e('s_and_b32 s38, s32, 1')
    e('s_mul_i32 s37, s37, 4608000')
e('s_waitcnt lgkmcnt(0)')
e('s_add_u32 s6, s6, s37'); e('s_addc_u32 s7, s7, 0')
srd(16, 6, 7, 4608000)
e('s_mul_i32 s39, s33, 1152')
e('s_add_u32 s39, s39, s38')
e('s_add_u32 s39, s39, 6')
e('s_lshl_b32 s45, s31, 2')
e('s_add_u32 s45, s45, s24')
e('s_mul_i32 s42, s45, 171')
e('s_lshr_b32 s42, s42, 9')
e('s_mul_i32 s43, s42, 3')
e('s_sub_u32 s43, s45, s43')
e('s_sub_u32 s44, s45, 28')
e('s_cmp_ge_u32 s45, 27')
e('s_cselect_b32 s42, s44, s42')
e('s_cselect_b32 s43, 3, s43')
e('s_cmp_eq_u32 s45, 27')
e('s_cselect_b32 s42, 8, s42')
e('s_lshl_b32 s42, s42, 3')
e('s_lshl_b32 s43, s43, 1')
e('s_add_u32 s42, s42, s39')
e('s_sub_u32 s42, s42, s43')
e('s_mul_i32 s45, s42, 288')
e('v_lshrrev_b32 v7, 4, v2')
e(f'v_mul_u32_u24 v7, {4*72*288}, v7')
e('v_add_u32 v7, s45, v7')
e('v_and_b32 v8, 15, v2')
e('v_lshl_add_u32 v11, v8, 1, v7')
e('v_lshl_add_u32 v10, v8, 4, v7')
def bf(f): return vr(76 + 4*f)
def preB():
    for f in range(45):
        e(f'ds_read_b128 {bf(f)}, v3 offset:{f*1024}')
        if f % 12 == 11: e('s_waitcnt lgkmcnt(4)')
def zpoll(name):
    e('v_min_u32 v5, 8, v2')
    e('v_lshlrev_b32 v5, 3, v5')
    e('s_mov_b32 s51, 0')
    lab(f'L_zp{name}')
    e('buffer_load_dwordx2 v[8:9], v5, s[20:23], s50 offen sc1')
    e('s_add_u32 s51, s51, 1')
    e('s_cmp_gt_u32 s51, 400000')
    e(f's_cbranch_scc1 L_zd{name}')
    e('s_waitcnt vmcnt(0)')
    e('v_cmp_ne_u64 vcc, s[92:93], v[8:9]')
    e(f's_cbranch_vccz L_zd{name}')
    e('s_sleep 1')
    e(f's_branch L_zp{name}')
    lab(f'L_zd{name}')
if opt['tr']:
    e('s_mul_i32 s46, s40, 18432')
    e('s_lshl_b32 s47, s24, 10')
    e('s_add_u32 s46, s46, s47')
    e(f's_add_u32 s46, s46, {Z_OFF}')
    e('s_mul_i32 s48, s41, 18432')
    e(f's_add_u32 s48, s48, {SLOT}')
    e('s_add_u32 s47, s47, s48')
    e('s_lshl_b32 s49, s24, 2')
    e('s_add_u32 s48, s48, s49')
    e('v_add_u32 v4, s48, v3')
    e('v_mov_b32 v34, 0')
    e('v_mov_b32 v35, 0')
    e('s_lshl_b32 s50, s28, 7')
    e(f's_add_u32 s50, s50, {FLAG_OFF+ZFL}')
    def zdma(name):
        for i in range(5):
            if i == 4:
                e('s_cmp_ge_u32 s24, 2')
                e(f's_cbranch_scc1 L_zm{name}')
            e(f's_add_u32 m0, s47, {i*4096}')
            e('s_nop 0')
            e('buffer_load_dwordx4 v3, s[20:23], s46 offen sc1 lds')
            if i < 4: e('s_add_u32 s46, s46, 4096')
        lab(f'L_zm{name}')
    e('s_cmp_lt_u32 s26, 4')
    e('s_cbranch_scc1 L_fc')
    c('---- helpers: early set')
    e('s_cmp_lg_u32 s26, 4')
    e('s_cbranch_scc1 L_zdh')
    zpoll('h')
    e('s_waitcnt vmcnt(0)')
    e('s_barrier')
    if not opt['es']: stamp(8)
    zdma('h')
    preB()
    e('s_waitcnt vmcnt(0) lgkmcnt(0)')
    e('s_barrier')
    stamp(9)
    e('s_branch L_gemm')
    lab('L_fc')
    c('---- compute waves: late set')
    e('s_add_u32 s50, s50, 4096')
    e('s_waitcnt vmcnt(0)')
    e('s_barrier')
    if not opt['es']: stamp(8)
    e('s_cmp_lg_u32 s26, 0')
    e('s_cbranch_scc1 L_fc1')
    setflag(['s_lshl_b32 s30, s29, 3', 's_add_u32 s30, s30, s50'])
    lab('L_fc1')
    preB()
    e('s_cmp_lg_u32 s26, 0')
    e('s_cbranch_scc1 L_zdc')
    zpoll('c')
    e('s_barrier')
    stamp(9)
    zdma('c')
    e('s_waitcnt vmcnt(0) lgkmcnt(0)')
    e('s_barrier')
    stamp(10)
    lab('L_gemm')
else:
    e('s_mul_i32 s46, s27, 36864')
    e('s_lshl_b32 s47, s26, 10')
    e('s_add_u32 s46, s46, s47')
    e(f's_add_u32 s46, s46, {Z_OFF}')
    e('s_mul_i32 s48, s41, 18432')
    e('s_lshl_b32 s49, s24, 2')
    e('s_add_u32 s48, s48, s49')
    e(f's_add_u32 s48, s48, {SLOT}')
    e('v_add_u32 v4, s48, v3')
    e('v_mov_b32 v34, 0')
    e('v_mov_b32 v35, 0')
    if opt['fl']:
        for k in range(4): e(f'v_mov_b32 v{36+k}, s{92+k%2}')
        e('s_mul_i32 s50, s28, 1152')
        e(f's_add_u32 s50, s50, {FLAG_OFF+ZF2}')
        e('s_lshl_b32 s30, s27, 7')
        e(f's_add_u32 s30, s30, {FLAG_OFF+ZF2}')
    e('s_waitcnt vmcnt(0)')
    e('s_barrier')
    if not opt['es']: stamp(8)
    def bf(f): return vr(76 + 4*f)
    def preB():
        for f in range(45):
            e(f'ds_read_b128 {bf(f)}, v3 offset:{f*1024}')
            if f % 12 == 11: e('s_waitcnt lgkmcnt(4)')
    e('s_cmp_lg_u32 s26, 4')
    e('s_cbranch_scc1 L_e1b')
    if opt['fl']:
        e('s_mov_b64 exec, 0xff')
        e('buffer_store_dwordx4 v[36:39], v3, s[20:23], s30 offen sc1')
        e('s_mov_b64 exec, -1')
    else:
        e('s_lshl_b32 s50, s28, 7')
        e(f's_add_u32 s50, s50, {FLAG_OFF+ZFL}')
        setflag(['s_lshl_b32 s30, s29, 3', 's_add_u32 s30, s30, s50'])
    lab('L_e1b')
    preB()
    e('s_cmp_lg_u32 s26, 4')
    e('s_cbranch_scc1 L_e2')
    e('v_min_u32 v5, 8, v2')
    e(f'v_lshlrev_b32 v5, {7 if opt["fl"] else 3}, v5')
    e('s_mov_b32 s51, 0')
    lab('L_zpoll')
    e('buffer_load_dwordx2 v[8:9], v5, s[20:23], s50 offen sc1')
    e('s_add_u32 s51, s51, 1')
    e('s_cmp_gt_u32 s51, 400000')
    e('s_cbranch_scc1 L_e2')
    e('s_waitcnt vmcnt(0)')
    e('v_cmp_ne_u64 vcc, s[92:93], v[8:9]')
    e('s_cbranch_vccz L_e2')
    e('s_sleep 1')
    e('s_branch L_zpoll')
    lab('L_e2')
    e('s_barrier')
    stamp(9)
    for i in range(5):
        if i == 4:
            e('s_cmp_ge_u32 s26, 4')
            e('s_cbranch_scc1 L_e3')
        e(f's_add_u32 m0, s47, {SLOT + i*8192}')
        e('s_nop 0')
        e('buffer_load_dwordx4 v3, s[20:23], s46 offen sc1 lds')
        if i < 4: e('s_add_u32 s46, s46, 8192')
    lab('L_e3')
    e('s_waitcnt vmcnt(0) lgkmcnt(0)')
    e('s_barrier')
    stamp(10)
if opt['stamps']: e('s_waitcnt lgkmcnt(0)')
for J in range(14): e(f'ds_read_b32 v{16+J}, v4 offset:{J*1024}')
for ks in range(5):
    if ks == 0: e('s_waitcnt lgkmcnt(10)')
    if ks == 1: e('s_waitcnt lgkmcnt(10)')
    if ks == 2: e('s_waitcnt lgkmcnt(6)')
    if ks == 3: e('s_waitcnt lgkmcnt(2)')
    if ks == 4: e('s_waitcnt lgkmcnt(0)')
    for T in range(9):
        r = 40 + 4*T
        cin = '0' if ks == 0 else vr(r)
        e(f'v_mfma_f32_16x16x32_bf16 {vr(r)}, v[{16+4*ks}:{16+4*ks+3}], {bf(T*5+ks)}, {cin}')
        if ks == 0 and T < 4: e(f'ds_read_b32 v{30+T}, v4 offset:{(14+T)*1024}')
if opt['tr']:
    e('s_cmp_lt_u32 s26, 4')
    e('s_cbranch_scc1 L_ne3')
    e('s_barrier')
    lab('L_ne3')
e('s_nop 7')
e('s_nop 1')
if opt['trip']:
    e('s_memrealtime s[66:67]')
    e('s_waitcnt lgkmcnt(0)')
    e('s_sub_u32 s66, s66, s64')
    e(f's_sub_u32 s66, s66, {opt["trip"]}')
    e(f's_cmp_lt_u32 s66, {opt["tlo"] - opt["trip"]}')
    e('s_cselect_b32 s66, 1.0, 0')
    e('s_cmp_eq_u32 s2, 100')
    e('s_cselect_b32 s66, s66, 0')
    e('v_add_f32 v40, s66, v40')
for r in range(4):
    d = 140 + 6*r
    A = lambda T: 40 + 4*T + r
    for h in range(4): e(f'v_cvt_pk_bf16_f32 v{d+h}, v{A(2*h)}, v{A(2*h+1)}')
    e(f'v_cvt_pk_bf16_f32 v{d+4}, v{A(8)}, v{A(8)}')
    e(f'buffer_store_dwordx4 v[{d}:{d+3}], v10, s[16:19], 0 offen{OF[opt["of"]]}')
    e(f'buffer_store_short v{d+4}, v11, s[16:19], 0 offen offset:256{OF[opt["of2"]]}')
    if r < 3:
        e(f'v_add_u32 v10, {72*288}, v10')
        e(f'v_add_u32 v11, {72*288}, v11')
if opt['stamps']:
    e('s_waitcnt vmcnt(0)')
    stamp(11)
    e('s_waitcnt lgkmcnt(0)')
    e(f's_cmp_lg_u32 s26, {opt["sw"]}')
    e('s_cbranch_scc1 L_end')
    if opt['dbgst']:
        e(f's_cmp_lg_u32 s2, {opt["dbgst"]}')
        e('s_cbranch_scc1 L_end')
        e('s_load_dwordx2 s[56:57], s[0:1], 32')
        e('s_waitcnt lgkmcnt(0)')
        srd(16, 56, 57, 256)
        e('v_mov_b32 v1, 0')
        for i in range(1, 12):
            e(f's_sub_u32 s33, s{64+2*i}, s64')
            e('v_mov_b32 v4, s33')
            e(f'buffer_store_dword v4, v1, s[16:19], 0 offen offset:{4+4*i}')
        e('s_sub_u32 s33, s94, s90')
        e('v_mov_b32 v4, s33')
        e('buffer_store_dword v4, v1, s[16:19], 0 offen offset:56')
        e('s_branch L_end')
    e('s_mov_b32 s22, 0x10000000')
    e('s_lshl_b32 s33, s2, 7')
    e(f's_add_u32 s33, s33, {STAMP_OFF}')
    e('v_mov_b32 v1, s33')
    for i in range(6):
        for k in range(4): e(f'v_mov_b32 v{4+k}, s{64+4*i+k}')
        e(f'buffer_store_dwordx4 v[4:7], v1, s[20:23], 0 offen offset:{16*i}')
        e('s_nop 1')
lab('L_end')
e('s_endpgm')
out.extend(ool)
tail = f"""
.section .rodata,"a"
.p2align 6
.amdhsa_kernel {NAME}_kernel
  .amdhsa_next_free_vgpr 256
  .amdhsa_next_free_sgpr 100
  .amdhsa_accum_offset 256
  .amdhsa_group_segment_fixed_size 0
  .amdhsa_kernarg_size 48
  .amdhsa_user_sgpr_count 2
  .amdhsa_user_sgpr_kernarg_segment_ptr 1
  .amdhsa_system_sgpr_workgroup_id_x 1
.end_amdhsa_kernel
"""
open(sys.argv[1], 'w').write(hdr + '\n'.join(out) + '\n' + tail)
```

```python
import sys, struct
import numpy as np
from f44 import matrices, PTS
NAME = 'standalone__autoregressive_conv_wavenet__speech'
opt = dict(stamps=0, LA=26, smallfix=1, ldf=0, QS=28, prio=1, g1=5, g2=7, bst=0, nd0=7, wsp=5, f0=30, slp=1, cpf=3, sw=4, dly=0, pf=0, early=1, dbgst=0, rep=1, rstr=4352, pre=0, shr=1, agg=1, gslp=2, es=0, word=1, skx=0, skw=0, of=0, of2=0, gmap=1, trip=0, tlo=0, fast=0, sn32=0, lat=9, b1e=2, fslp=6, pad=0, mord=1, tdesc=0, tr=0, x1=24, full=1, fl=0, wso=0, dead=0, fake=0, t2=1, of3=2)
for a in sys.argv[2:]:
    k, v = a.split('='); assert k in opt, k; opt[k] = int(v)
out = []
def e(s): out.append('    ' + s)
def lab(s): out.append(s + ':')
def c(s): out.append('    ; ' + s)
def fh(x): return '0x%08x' % struct.unpack('<I', struct.pack('<f', float(x)))[0]
AT, G, BT = matrices()
GS = G.copy()
for m in range(6): GS[m] *= PTS[m]**3
CH = np.zeros((3, 7))
for i in range(3):
    for m in range(6): CH[i][m] = PTS[m]**(i-3)
DCH = CH[:, :6] - CH[:, 1:7]
LOG2E = 1.4426950408889634
LDF = {0: '', 1: ' nt'}[opt['ldf']]
OF = {0:'', 1:' nt', 2:' sc1', 3:' sc0 sc1'}
PRF = {1: ' sc1', 2: '', 3: ' sc0 sc1'}.get(opt['pre'], '')
PF_ = {0: ' sc1', 1: ' sc0 sc1', 2: ' sc1 nt', 3: ' sc0 sc1 nt'}[opt['pf']]
XROWS = 2032
XS = XROWS*96
U_BYTES = 4*21*XS
WT_OFF = U_BYTES
WT_BYTES = 9*21*24576
Z_OFF = WT_OFF + WT_BYTES
Z_BYTES = 28*2*9*18*1024
FLAG_OFF = Z_OFF + Z_BYTES
REP = opt['rep']; RSTR = opt['rstr']; FA = REP*RSTR
ZFL = 5*FA
GOF = ZFL + 8192
AFL = (GOF + 8*4352 + 1023)//1024*1024
ZF2 = AFL + 32768
WO_OFF = FLAG_OFF + ZF2 + 32768
WS_USED = WO_OFF + 45*1024
STAMP_OFF = 268435456 - (1 << 20)
SLOT = 53248
XL = 2*SLOT + 8192
WL = SLOT
LDS_MAIN = 3*SLOT
OOB = 0x7f000000
hdr = f"""; Kernarg layout for this problem (48 bytes, ptrs only, base s[0:1]):
; @launch grid=(252,1,1) block=(512,1,1) lds={LDS_MAIN}
.amdgcn_target "amdgcn-amd-amdhsa--gfx950"
.text
.globl {NAME}_kernel
.p2align 8
.type {NAME}_kernel,@function
{NAME}_kernel:
"""
def srd(d, lo, hi, nbytes):
    e(f's_mov_b32 s{d}, s{lo}')
    e(f's_and_b32 s{d+1}, s{hi}, 0xffff')
    e(f's_mov_b32 s{d+2}, {nbytes}')
    e(f's_mov_b32 s{d+3}, 0x00020000')
def vp(r): return f'v[{r}:{r+1}]'
def vr(r): return f'v[{r}:{r+3}]'
def pkfma(d, sc, a, b, nega=False):
    neg = ' neg_lo:[0,1,0] neg_hi:[0,1,0]' if nega else ''
    e(f'v_pk_fma_f32 {vp(d)}, s[{sc}:{sc+1}], {vp(a)}, {vp(b)}{neg}')
def pkadd(d, a, b, negb=False):
    neg = ' neg_lo:[0,1] neg_hi:[0,1]' if negb else ''
    e(f'v_pk_add_f32 {vp(d)}, {vp(a)}, {vp(b)}{neg}')
def sconst2(s, x):
    e(f's_mov_b32 s{s}, {fh(x)}'); e(f's_mov_b32 s{s+1}, {fh(x)}')
def stamp(i):
    if opt['stamps']: e(f's_memrealtime s[{64+2*i}:{65+2*i}]')
def PK(b, pm):
    n = pm*4 + b
    return 184 + 4*n if n < 18 else 16 + 4*(n-18)
PA = lambda b: 32 + b
PT = 24

def gettag(name):
    lab(f'L_tag{name}')
    e('buffer_load_dwordx2 v[24:25], v37, s[16:19], 0 offen sc1')
    e('s_add_u32 s31, s31, 1')
    e('s_cmp_gt_u32 s31, 400000')
    e(f's_cbranch_scc1 L_tagd{name}')
    e('s_waitcnt vmcnt(0)')
    e('v_readfirstlane_b32 s92, v24')
    e('v_readfirstlane_b32 s93, v25')
    e('s_nop 3')
    e('s_cmp_eq_u32 s92, 0')
    e(f's_cbranch_scc1 L_tag{name}')
    lab(f'L_tagd{name}')
def setflag(pre):
    for x in pre: e(x)
    e('v_mov_b32 v38, s92')
    e('v_mov_b32 v39, s93')
    e('s_mov_b64 exec, 1')
    e('buffer_store_dwordx2 v[38:39], v37, s[20:23], s30 offen sc1')
    e('s_mov_b64 exec, -1')
def poll_issue(off):
    if off == 'A':
        e(f's_mov_b32 s30, {FLAG_OFF+AFL}')
        for k in range(4): e(f'buffer_load_dwordx2 {vp(PT+2*k)}, v{42+k}, s[20:23], s30 offen sc1')
        return
    e(f's_mov_b32 s30, {FLAG_OFF+off}')
    e(f'buffer_load_dwordx4 {vr(PT)}, v36, s[20:23], s30 offen{PF_}')
    e(f'buffer_load_dwordx4 {vr(PT+4)}, v36, s[20:23], s30 offen offset:16{PF_}')
def poll_check():
    e(f'v_cmp_ne_u64 vcc, s[92:93], {vp(PT)}')
    for k in range(1, 4):
        e(f'v_cmp_ne_u64 s[88:89], s[92:93], {vp(PT+2*k)}')
        e('s_or_b64 vcc, vcc, s[88:89]')
def poll(off, name, slp=None):
    e('s_mov_b32 s31, 0')
    lab(f'L_poll{name}')
    poll_issue(off)
    e('s_add_u32 s31, s31, 1')
    e('s_cmp_gt_u32 s31, 400000')
    e(f's_cbranch_scc1 L_pdone{name}')
    e('s_waitcnt vmcnt(0)')
    poll_check()
    e(f's_cbranch_scc0 L_pdone{name}')
    if opt['shr']: e('s_mov_b64 exec, vcc')
    e(f's_sleep {opt["slp"] if slp is None else slp}')
    e(f's_branch L_poll{name}')
    lab(f'L_pdone{name}')
    if opt['shr']: e('s_mov_b64 exec, -1')

e('s_cmp_ge_u32 s2, 252')
e('s_cbranch_scc1 L_end')
if opt['stamps']:
    for i in range(24): e(f's_mov_b32 s{64+i}, 0')
stamp(0)
if opt['trip'] or opt['dead']: e('s_memrealtime s[64:65]')
e('s_load_dwordx4 s[4:7], s[0:1], 0')
e('s_load_dwordx2 s[8:9], s[0:1], 16')
e('s_load_dwordx4 s[56:59], s[0:1], 32')
e('v_lshrrev_b32 v1, 6, v0')
e('v_and_b32 v2, 63, v0')
e('v_readfirstlane_b32 s26, v1')
if opt['cpf']:
    c('pull the kernel code towards L2 first (1 KB per participating wave)')
    e('s_getpc_b64 s[44:45]')
    lab('L_pc')
    if opt['cpf'] == 1:
        e('s_lshl_b32 s42, s2, 10')
        e('s_and_b32 s42, s42, 0x6000')
        e('v_lshlrev_b32 v102, 4, v0')
    elif opt['cpf'] == 2:
        e('s_lshl_b32 s42, s2, 7')
        e('s_and_b32 s42, s42, 0x7c00')
        e('v_lshlrev_b32 v102, 4, v2')
        e('v_lshl_add_u32 v102, v1, 20, v102')
    else:
        e('s_lshl_b32 s42, s2, 8')
        e('s_and_b32 s42, s42, 0x7800')
        e('v_lshlrev_b32 v102, 4, v0')
        e('v_lshrrev_b32 v103, 1, v1')
        e('v_lshl_add_u32 v102, v103, 20, v102')
    e('s_and_b32 s45, s45, 0xffff')
    e('s_mov_b32 s46, L_end-L_pc')
    e('s_mov_b32 s47, 0x00020000')
    e(f'buffer_load_dwordx4 {vr(180)}, v102, s[44:47], s42 offen')
else: e('s_nop 1')
def common():
    if opt['wso']:
        e(f's_add_u32 s58, s58, {opt["wso"] << 20}')
        e('s_addc_u32 s59, s59, 0')
    srd(20, 58, 59, WS_USED)
    srd(16, 56, 57, 256)
    e('s_mov_b32 s33, 0xffff0000')
    e('v_mov_b32 v37, 0')
    for b in range(4): e(f'v_mov_b32 v{PA(b)}, {OOB}')
    for b in range(4): e(f's_mov_b32 s{96+b}, {3*XS}')
    e('s_mov_b32 s31, 0')
    e('s_mov_b32 s92, 0')
    e('s_mov_b32 s93, 0')
    e('s_cmp_ge_u32 s2, 125')
    e(f's_cselect_b32 s50, {2*21*XS - 125*1536}, 0')
    e('s_mul_i32 s51, s2, 1536')
    e('s_add_u32 s50, s50, 768')
    e('s_add_u32 s50, s50, s51')
    e(f's_add_u32 s51, s50, {3*XS}')
    e(f's_mov_b32 s35, {XL+64}')
e('s_lshr_b32 s28, s26, 1')
e('s_cmp_eq_u32 s28, 2')
e('s_cbranch_scc1 Lp_w')
def xaddr(su, va, vd):
    e(f's_lshl_b32 s28, s{su}, 6')
    e('v_add_u32 v3, s28, v2')
    e('v_mul_u32_u24 v4, 683, v3')
    e('v_lshrrev_b32 v4, 16, v4')
    e('v_mul_u32_u24 v5, 96, v4')
    e('v_sub_u32 v3, v3, v5')
    e(f'v_mul_u32_u24 v{va}, 43, v3')
    e(f'v_lshrrev_b32 v{va}, 8, v{va}')
    e(f'v_mul_u32_u24 v{va}, {2304-96}, v{va}')
    e(f'v_lshl_add_u32 v{va}, v3, 4, v{va}')
    e(f'v_add3_u32 v{va}, v{va}, v5, s35')
    e('v_cmp_le_u32 vcc, 3, v4')
    e(f'v_mul_u32_u24 v{vd}, {XS}, v4')
    e(f'v_mov_b32 v5, {18*XS}')
    e(f'v_lshl_add_u32 v{vd}, v3, 4, v{vd}')
    e('v_cndmask_b32 v5, 0, v5, vcc')
    e(f'v_add_u32 v{vd}, v{vd}, v5')
def xpair(va, vd):
    for s in range(6): e(f'ds_read_b128 {vr(120+4*s)}, v{va} offset:{(12-2*s)*288}')
    for dw in range(4):
        for s in range(6):
            if dw == 0: e(f's_waitcnt lgkmcnt({5-s})')
            e(f'v_lshlrev_b32 v{148+2*s}, 16, v{120+4*s+dw}')
            e(f'v_and_b32 v{149+2*s}, s33, v{120+4*s+dw}')
        D = lambda s: 148+2*s
        pkfma(162, 46, D(2), D(4))
        pkfma(164, 46, D(3), D(5))
        pkfma(162, 44, D(0), 162)
        pkfma(164, 44, D(1), 164)
        pkfma(166, 48, 162, 164)
        pkfma(168, 48, 162, 164, nega=True)
        e(f'v_cvt_pk_bf16_f32 v{172+dw}, v166, v167')
        e(f'v_cvt_pk_bf16_f32 v{176+dw}, v168, v169')
    e(f'buffer_store_dwordx4 v[172:175], v{vd}, s[20:23], s50 offen sc1')
    e(f'buffer_store_dwordx4 v[176:179], v{vd}, s[20:23], s51 offen sc1')
def xrest(va, b):
    for s in range(7): e(f'ds_read_b128 {vr(120+4*s)}, v{va} offset:{(12-2*s)*288}')
    for dw in range(4):
        for s in range(7):
            if dw == 0: e(f's_waitcnt lgkmcnt({6-s})')
            e(f'v_lshlrev_b32 v{148+2*s}, 16, v{120+4*s+dw}')
            e(f'v_and_b32 v{149+2*s}, s33, v{120+4*s+dw}')
        D = lambda s: 148+2*s
        for t in range(2):
            q0, q1, aa = 36+6*t, 38+6*t, 40+6*t
            pkfma(162, q1, D(2), D(4))
            pkfma(164, q1, D(3), D(5))
            pkfma(162, q0, D(0), 162)
            pkfma(164, q0, D(1), 164)
            pkfma(166, aa, 162, 164)
            pkfma(168, aa, 162, 164, nega=True)
            e(f'v_cvt_pk_bf16_f32 v{PK(b,2*t)+dw}, v166, v167')
            e(f'v_cvt_pk_bf16_f32 v{PK(b,2*t+1)+dw}, v168, v169')
        pkfma(162, 54, D(4), D(6))
        pkfma(162, 52, D(2), 162)
        pkfma(162, 48, D(0), 162)
        e(f'v_cvt_pk_bf16_f32 v{PK(b,4)+dw}, v162, v163')
for t in range(3):
    a = PTS[2*t]; q0 = BT[2*t][1]; q1 = BT[2*t][3]
    assert abs(BT[2*t][0] - a*q0) < 1e-12 and abs(BT[2*t][2] - a*q1) < 1e-12 and abs(BT[2*t][4]-a) < 1e-12
e('s_sub_u32 s27, s26, 2')
e('s_cmp_lt_u32 s26, 4')
e('s_cselect_b32 s27, s26, s27')
e('s_cmp_ge_u32 s2, 250')
e('s_cbranch_scc1 Lp_zero')
e('s_cmp_ge_u32 s2, 125')
e('s_cselect_b32 s24, 4608000, 0')
e('s_mul_i32 s28, s2, 36864')
e('s_sub_u32 s28, s28, s24')
e('s_sub_u32 s28, s28, 1792')
e('s_lshl_b32 s29, s27, 10')
e('s_add_u32 s28, s28, s29')
e('v_lshlrev_b32 v6, 4, v2')
e('v_add_u32 v6, s28, v6')
e(f's_mov_b32 s14, {0 if opt["skx"] else 4608000}')
e('s_mov_b32 s15, 0x00020000')
e(f's_add_u32 m0, s29, {XL}')
e('s_waitcnt lgkmcnt(0)')
e('s_add_u32 s12, s4, s24'); e('s_addc_u32 s13, s5, 0')
e('s_and_b32 s13, s13, 0xffff')
for i in range(7):
    if i == 6:
        e('s_cmp_ge_u32 s27, 2')
        e('s_cbranch_scc1 Lp_xl')
    e(f'buffer_load_dwordx4 v6, s[12:15], 0 offen{LDF} lds')
    if i < 6:
        e(f's_add_u32 m0, s29, {XL + (i+1)*6144}')
        e('v_add_u32 v6, 6144, v6')
lab('Lp_xl')
common()
e('s_add_u32 s28, s2, s26')
e('s_cmp_lg_u32 s28, 0')
e('s_cbranch_scc1 Lp_x0')
c('WG 0 wave 0 publishes the launch tag in d_debug')
e('s_memrealtime s[92:93]')
e('s_waitcnt lgkmcnt(0)')
e('s_or_b32 s92, s92, 1')
e('v_mov_b32 v38, s92')
e('v_mov_b32 v39, s93')
e('s_mov_b64 exec, 1')
e('buffer_store_dwordx2 v[38:39], v37, s[16:19], 0 offen sc1')
e('s_mov_b64 exec, -1')
lab('Lp_x0')
c('pass-1 units: wave0:8 wave1:4,5 wave2:0,1 wave3:2,3 wave6:6 wave7:7')
e('s_lshl_b32 s28, s26, 2')
e('s_lshr_b32 s30, 0x76002048, s28')
e('s_and_b32 s30, s30, 15')
xaddr(30, 6, 7)
e('s_add_u32 s30, s30, 1')
xaddr(30, 14, 15)
sconst2(44, BT[0][1]); sconst2(46, BT[0][3]); sconst2(48, PTS[0])
stamp(7)
e('s_waitcnt vmcnt(0)')
stamp(8)
e('s_barrier')
stamp(1)
e('s_cmp_lg_u32 s26, 0')
e('s_cbranch_scc1 Lp_x1')
e('buffer_load_dwordx2 v[24:25], v37, s[16:19], 0 offen sc1')
lab('Lp_x1')
xpair(6, 7)
e('s_bitcmp1_b32 0x0e, s26')
e('s_cbranch_scc0 Lp_x2')
xpair(14, 15)
lab('Lp_x2')
e('s_cmp_ge_u32 s26, 4')
e('s_cbranch_scc1 Lp_h67')
lab('Lp_s2')
if opt['fl']:
    e('v_lshlrev_b32 v9, 4, v2')
    e('s_lshl_b32 s30, s2, 7')
    e(f's_add_u32 s30, s30, {FLAG_OFF+AFL}')
else:
    e(f'v_mul_u32_u24 v9, {RSTR}, v2')
    e('s_lshl_b32 s30, s2, 3')
    e(f's_add_u32 s30, s30, {FLAG_OFF}')
e('s_cmp_lg_u32 s26, 0')
e('s_cbranch_scc1 Lp_s2b')
e('s_cmp_ge_u32 s2, 250')
e('s_cbranch_scc1 L_taga')
e('s_waitcnt vmcnt(2)')
e('v_readfirstlane_b32 s92, v24')
e('v_readfirstlane_b32 s93, v25')
e('s_nop 3')
e('s_cmp_lg_u32 s92, 0')
e('s_cbranch_scc1 L_tagda')
gettag('a')
e('v_mov_b32 v38, s92')
e('v_mov_b32 v39, s93')
e('v_mov_b32 v40, s92')
e('v_mov_b32 v41, s93')
lab('Lp_s2b')
e('s_waitcnt vmcnt(0)')
e('s_barrier')
e('s_cmp_lg_u32 s26, 0')
e('s_cbranch_scc1 L_pdone')
if opt['fl']:
    e('s_mov_b64 exec, 0xff')
    e('buffer_store_dwordx4 v[38:41], v9, s[20:23], s30 offen sc1')
else:
    e(f's_mov_b64 exec, {(1<<REP)-1}')
    e('buffer_store_dwordx2 v[38:39], v9, s[20:23], s30 offen sc1')
e('s_mov_b64 exec, -1')
stamp(2)
e('s_branch L_pdone')
def xcoef2():
    for t in (1, 2):
        sconst2(36+6*(t-1), BT[2*t][1]); sconst2(38+6*(t-1), BT[2*t][3]); sconst2(40+6*(t-1), PTS[2*t])
    sconst2(48, BT[6][0]); sconst2(52, BT[6][2]); sconst2(54, BT[6][4])
    e(f's_add_u32 s34, s50, {6*XS}')
lab('Lp_h67')
c('waves 6,7 pass 2: own unit (block 1), then units 2(w-6), 2(w-6)+1 (blocks 2,3)')
xcoef2()
e(f'v_add_u32 v{PA(1)}, s34, v7')
if opt['early']: xrest(6, 1)
e('s_waitcnt vmcnt(0)')
e('s_barrier')
if not opt['early']: xrest(6, 1)
e('s_sub_u32 s30, s26, 6')
e('s_lshl_b32 s30, s30, 1')
lab('Lp_x23')
xaddr(30, 6, 7)
e(f'v_add_u32 v{PA(2)}, s34, v7')
xrest(6, 2)
e('s_add_u32 s30, s30, 1')
lab('Lp_x3')
xaddr(30, 6, 7)
e(f'v_add_u32 v{PA(3)}, s34, v7')
xrest(6, 3)
e('s_branch L_pdone')
lab('Lp_zero')
c('WGs 250,251: zero the 8 leading rows of the 42 arrays of batch b')
e('s_waitcnt lgkmcnt(0)')
common()
e('s_sub_u32 s3, s2, 250')
e(f's_mul_i32 s30, s3, {2*21*XS}')
e('s_lshl_b32 s28, s27, 6')
e('v_add_u32 v3, s28, v2')
for k in range(4): e(f'v_mov_b32 v{16+k}, 0')
for i in range(6):
    e('v_mul_u32_u24 v4, 1366, v3')
    e('v_lshrrev_b32 v4, 16, v4')
    e('v_mul_u32_u24 v5, 48, v4')
    e('v_sub_u32 v5, v3, v5')
    e(f'v_mul_u32_u24 v4, {XS}, v4')
    e('v_lshl_add_u32 v4, v5, 4, v4')
    e('v_cmp_gt_u32 vcc, 2016, v3')
    e(f'v_mov_b32 v5, {OOB}')
    e('v_add_u32 v3, 384, v3')
    e('v_cndmask_b32 v4, v5, v4, vcc')
    e('buffer_store_dwordx4 v[16:19], v4, s[20:23], s30 offen sc1')
e('s_barrier')
e('s_branch Lp_s2')
lab('Lp_w')
e('s_and_b32 s27, s26, 1')
c('w unit: XCD x = id&7 owns a contiguous range of units; local i = id>>3 < 9 takes two')
e('s_and_b32 s28, s2, 7')
e('s_lshr_b32 s29, s2, 3')
e('s_mul_i32 s3, s28, 40')
e('s_min_u32 s30, s28, 4')
e('s_add_u32 s3, s3, s30')
e('s_add_u32 s3, s3, s29')
e('s_min_u32 s30, s29, 9')
e('s_add_u32 s3, s3, s30')
e('s_add_u32 s3, s3, s27')
e('s_mul_i32 s30, s27, s29')
e('s_cmp_ge_u32 s30, 9')
e('s_cbranch_scc1 Lp_wo')
def posdec(P, ko, pos, kk, o, tmp):
    e(f'v_mul_u32_u24 v{ko}, 58255, v{P}')
    e(f'v_lshrrev_b32 v{ko}, 22, v{ko}')
    e(f'v_mul_u32_u24 v{tmp}, 72, v{ko}')
    e(f'v_sub_u32 v{pos}, v{P}, v{tmp}')
    e(f'v_mul_u32_u24 v{kk}, 3641, v{ko}')
    e(f'v_lshrrev_b32 v{kk}, 16, v{kk}')
    e(f'v_mul_u32_u24 v{tmp}, 18, v{kk}')
    e(f'v_sub_u32 v{o}, v{ko}, v{tmp}')
G_ = lambda r, ch: 40+2*(8*r+ch)
e('s_lshl_b32 s28, s3, 5')
e('v_and_b32 v3, 31, v2')
e('v_add_u32 v4, s28, v3')
posdec(4, 5, 6, 7, 8, 9)
e(f'v_mul_u32_u24 v7, {4*82944}, v7')
e('v_mul_u32_u24 v8, 4608, v8')
e('v_lshrrev_b32 v9, 5, v2')
e('v_mul_u32_u24 v10, 288, v9')
e('v_add3_u32 v7, v7, v8, v10')
e('v_lshl_add_u32 v6, v6, 2, v7')
e('s_waitcnt lgkmcnt(0)')
srd(12, 6, 7, 0 if opt['skw'] else 31*144*288*2)
if opt['word']:
    for r in range(1, 4): e(f's_mov_b32 s{36+r}, {82944*r}')
    for ch in range(8):
        for r in range(4):
            e(f'buffer_load_dword v{G_(r,ch)+1}, v6, s[12:15], {"s%d" % (36+r) if r else 0} offen offset:{ch*576}{LDF}')
else:
  for r in range(4):
    for ch in range(8):
        e(f'buffer_load_dword v{G_(r,ch)+1}, v6, s[12:15], 0 offen offset:{ch*576}{LDF}')
    if r < 3: e('v_add_u32 v6, 82944, v6')
stamp(7)
common()
e('s_lshl_b32 s29, s27, 14')
e(f's_add_u32 s29, s29, {WL}')
e('v_lshlrev_b32 v10, 6, v3')
e('v_lshl_add_u32 v10, v9, 5, v10')
e('v_add_u32 v10, s29, v10')
e('v_lshlrev_b32 v11, 4, v2')
e('v_add_u32 v11, s29, v11')
for h in range(2):
    e('v_lshrrev_b32 v4, 2, v2')
    e(f'v_add3_u32 v4, v4, s28, {16*h}')
    posdec(4, 5, 6, 7, 8, 9)
    e('v_mul_u32_u24 v4, 43, v8')
    e('v_lshrrev_b32 v4, 8, v4')
    e('v_mul_u32_u24 v5, 6, v4')
    e('v_sub_u32 v5, v8, v5')
    e('v_lshrrev_b32 v8, 1, v7')
    e('v_add_u32 v8, 8, v8')
    e('v_and_b32 v9, 1, v7')
    e('v_lshl_add_u32 v9, v9, 1, v5')
    e('v_subrev_u32 v9, 4, v9')
    e('v_cmp_le_u32 vcc, 4, v5')
    e('v_mul_u32_u24 v4, 24576, v4')
    e('v_lshrrev_b32 v14, 3, v6')
    e('v_cndmask_b32 v8, v7, v8, vcc')
    e('v_cndmask_b32 v9, v5, v9, vcc')
    e(f'v_mul_u32_u24 v14, {21*24576}, v14')
    e('v_bfe_u32 v15, v6, 2, 1')
    e('v_mul_u32_u24 v15, 12288, v15')
    e(f'v_add3_u32 v{12+h}, v4, v14, v15')
    e(f'v_lshl_add_u32 v{12+h}, v8, 10, v{12+h}')
    e(f'v_lshl_add_u32 v{12+h}, v9, 8, v{12+h}')
    e('v_and_b32 v4, 3, v6')
    e(f'v_lshl_add_u32 v{12+h}, v4, 6, v{12+h}')
    e('v_and_b32 v4, 3, v2')
    e(f'v_lshl_add_u32 v{12+h}, v4, 4, v{12+h}')
def wcoef(t):
    for r in range(4):
        assert abs(GS[2*t+1][r] - (1 if r % 2 == 0 else -1)*GS[2*t][r]) < 1e-12
        e(f'v_mul_f32 v{160+2*r}, {fh(GS[2*t][r])}, v14')
        e(f'v_mov_b32 v{161+2*r}, v{160+2*r}')
e(f's_mov_b32 s34, {WT_OFF}')
e('v_cmp_le_u32 vcc, 32, v2')
e(f'v_mov_b32 v14, {fh(-2*LOG2E)}')
e(f'v_mov_b32 v15, {fh(-LOG2E)}')
e('v_cndmask_b32 v14, v14, v15, vcc')
e('v_mov_b32 v15, v14')
wcoef(0)
stamp(8)
e('s_barrier')
stamp(1)
e('s_waitcnt vmcnt(0)')
stamp(2)
for k in range(32):
    e(f'v_lshlrev_b32 v{40+2*k}, 16, v{41+2*k}')
    e(f'v_and_b32 v{41+2*k}, s33, v{41+2*k}')
e('s_mov_b32 s53, 0')
lab('Lp_wloop')
for dw in range(4):
    for c2 in range(2):
        ch = 2*dw+c2
        E, O = 104+4*c2, 106+4*c2
        e(f'v_pk_mul_f32 {vp(E)}, {vp(160)}, {vp(G_(0,ch))}')
        e(f'v_pk_mul_f32 {vp(O)}, {vp(162)}, {vp(G_(1,ch))}')
        e(f'v_pk_fma_f32 {vp(E)}, {vp(164)}, {vp(G_(2,ch))}, {vp(E)}')
        e(f'v_pk_fma_f32 {vp(O)}, {vp(166)}, {vp(G_(3,ch))}, {vp(O)}')
        pkadd(112+4*c2, O, E)
        pkadd(114+4*c2, E, O, negb=True)
    for sgn in range(2):
        for n in range(2):
            e(f'v_cvt_pk_bf16_f32 v{120+8*sgn+4*n+dw}, v{112+2*sgn+n}, v{116+2*sgn+n}')
for sgn in range(2):
    for n in range(2):
        e(f'ds_write_b128 v10, {vr(120+8*sgn+4*n)} offset:{sgn*2048 + n*16}')
e('s_add_u32 s53, s53, 1')
e('s_waitcnt lgkmcnt(0)')
e('v_add_u32 v10, 4096, v10')
e('s_cmp_eq_u32 s53, 3')
e('s_cbranch_scc1 Lp_w3')
e('s_cmp_eq_u32 s53, 1')
e('s_cbranch_scc1 Lp_w1')
wcoef(2)
if opt['early']:
    e('s_waitcnt vmcnt(0)')
    e('s_barrier')
e('s_branch Lp_wloop')
lab('Lp_w1')
for k in range(4): e(f'ds_read_b128 {vr(136+4*k)}, v11 offset:{k*1024}')
for k in range(4):
    e(f's_waitcnt lgkmcnt({3-k})')
    e(f'buffer_store_dwordx4 {vr(136+4*k)}, v{12+k%2}, s[20:23], s34 offen sc1')
    if k % 2 == 1: e(f's_add_u32 s34, s34, {3*24576}')
wcoef(1)
if not opt['early']:
    e('s_waitcnt vmcnt(0)')
    e('s_barrier')
e('s_branch Lp_wloop')
lab('Lp_w3')
for ch in range(8): e(f'v_pk_mul_f32 {vp(G_(3,ch))}, {vp(G_(3,ch))}, v[14:15]')
for n in range(2):
    for dw in range(4):
        e(f'v_cvt_pk_bf16_f32 v{120+4*n+dw}, v{G_(3,2*dw)+n}, v{G_(3,2*dw+1)+n}')
    e(f'ds_write_b128 v10, {vr(120+4*n)} offset:{n*16}')
e('s_waitcnt lgkmcnt(0)')
for k in range(10):
    e(f'ds_read_b128 {vr(PK(k % 2, k//2))}, v11 offset:{4096 + k*1024}')
e(f'v_add_u32 v{PA(0)}, s34, v12')
e(f'v_add_u32 v{PA(1)}, s34, v13')
e(f's_mov_b32 s96, {3*24576}')
e(f's_mov_b32 s97, {3*24576}')
e('s_waitcnt lgkmcnt(0)')
lab('Lp_wx')
c('then x pass 2: wave 4: unit 8 (block 3) ; wave 5: units 4,5 (blocks 2,3)')
e('s_cmp_ge_u32 s2, 250')
e('s_cbranch_scc1 L_pdone')
xcoef2()
e('s_mov_b32 s30, 8')
e('s_cmp_eq_u32 s26, 4')
e('s_cbranch_scc1 Lp_x3')
e('s_mov_b32 s30, 4')
e('s_branch Lp_x23')
lab('Lp_wo')
e('s_waitcnt lgkmcnt(0)')
common()
e('s_sub_u32 s3, s2, 72')
e('s_cmp_ge_u32 s3, 45')
e('s_cbranch_scc1 Lp_wo2')
srd(12, 8, 9, 144*144*2)
e('s_mul_i32 s28, s3, 13108')
e('s_lshr_b32 s28, s28, 16')
e('s_mul_i32 s29, s28, 5')
e('s_sub_u32 s29, s3, s29')
e('v_and_b32 v7, 15, v2')
e('v_lshrrev_b32 v8, 4, v2')
e('s_cmp_eq_u32 s28, 8')
e('s_cselect_b32 s30, 1, 4')
e('s_cselect_b32 s34, 256, 0')
e('s_cselect_b32 s28, 0, s28')
e('s_lshl_b32 s28, s28, 1')
e('s_add_u32 s34, s34, s28')
e(f's_mul_i32 s29, s29, {32*288}')
e('s_add_u32 s34, s34, s29')
e('v_lshlrev_b32 v9, s30, v7')
e('v_mul_u32_u24 v14, 576, v8')
e('v_add3_u32 v14, v14, v9, s34')
for d in range(4):
    e(f'buffer_load_ushort v{40+2*d}, v14, s[12:15], 0 offen')
    e(f'buffer_load_ushort v{41+2*d}, v14, s[12:15], 0 offen offset:288')
    if d < 3: e('v_add_u32 v14, 2304, v14')
e('s_lshl_b32 s3, s3, 10')
e(f's_add_u32 s3, s3, {WO_OFF}')
e('v_lshlrev_b32 v1, 4, v2')
e('s_barrier')
e('s_waitcnt vmcnt(0)')
for d in range(4):
    e(f'v_lshl_or_b32 v{48+d}, v{41+2*d}, 16, v{40+2*d}')
e('buffer_store_dwordx4 v[48:51], v1, s[20:23], s3 offen sc1')
e('s_waitcnt vmcnt(0)')
e('s_barrier')
e('s_branch Lp_wx')
lab('Lp_wo2')
e('s_barrier')
e('s_barrier')
e('s_branch Lp_wx')

def M(t): return 12 + 4*t
def MD(t): return 48 + 4*t
def FR(k): return vr(84 + 4*k)
lab('L_pdone')
e('v_lshlrev_b32 v101, 4, v2')
e('v_min_u32 v36, 62, v2')
e('v_lshlrev_b32 v36, 5, v36')
e(f's_and_b32 s30, s2, {REP-1}')
e(f's_mul_i32 s30, s30, {RSTR}')
e('v_add_u32 v36, s30, v36')
e(f'v_mul_u32_u24 v12, {RSTR}, v2')
c('unit = base[xcd] + (id>>3)')
e('s_and_b32 s25, s2, 7')
e('s_lshr_b32 s24, s2, 3')
e('s_mul_i32 s27, s25, 31')
e('s_min_u32 s28, s25, 4')
e('s_add_u32 s27, s27, s28')
e('s_add_u32 s27, s27, s24')
e('s_mul_i32 s28, s27, 7282')
e('s_lshr_b32 s28, s28, 16')
e('s_mul_i32 s29, s28, 9')
e('s_sub_u32 s29, s27, s29')
e('s_and_b32 s24, s26, 3')
e('s_lshr_b32 s32, s24, 1')
e('s_and_b32 s33, s24, 1')
e('s_mul_i32 s34, s24, 7168')
e('s_mul_i32 s35, s24, 6144')
c('z soffset s62')
e('s_lshl_b32 s62, s28, 1')
e('s_add_u32 s62, s62, s32')
e(f's_mul_i32 s62, s62, {9*18*1024}')
e('s_lshl_b32 s63, s29, 1')
e('s_add_u32 s63, s63, s33')
e(f's_lshl_b32 s63, s63, {8 if opt["t2"] else 10}')
e('s_add_u32 s62, s62, s63')
e(f's_add_u32 s62, s62, {Z_OFF}')
if opt['gmap']:
    c('g = (b*7+gg)*2 + p')
    e('s_lshr_b32 s38, s28, 1')
    e('s_and_b32 s30, s28, 1')
    e('s_cmp_ge_u32 s38, 7')
    e('s_cselect_b32 s36, 7, 0')
    e('s_cselect_b32 s37, 2, 0')
    e('s_sub_u32 s38, s38, s36')
    e('s_add_u32 s30, s30, s37')
else:
    e('s_mul_i32 s30, s28, 9363')
    e('s_lshr_b32 s30, s30, 16')
    e('s_mul_i32 s38, s30, 7')
    e('s_sub_u32 s38, s28, s38')
e(f's_mul_i32 s36, s30, {21*XS}')
e('s_mul_i32 s37, s38, 27648')
e('s_add_u32 s36, s36, s37')
e('s_add_u32 s36, s36, s34')
e(f's_mul_i32 s37, s29, {21*24576}')
e('s_add_u32 s37, s37, s35')
e(f's_add_u32 s37, s37, {WT_OFF}')
c('last row group of a stream: do not fetch the never-written padding rows (KB 26 lanes >= 16, KB 27): v6, v7 = voffsets for those two chunks')
e('s_cmp_eq_u32 s38, 6')
e('s_cselect_b32 s60, 16, 64')
e('s_cselect_b32 s61, 0, 64')
e(f'v_mov_b32 v8, {OOB}')
e('v_cmp_gt_u32 vcc, s60, v2')
e('v_cmp_gt_u32 s[88:89], s61, v2')
e('s_nop 0')
e('v_cndmask_b32 v6, v8, v101, vcc')
e('v_cndmask_b32 v7, v8, v101, s[88:89]')
e('s_cmp_ge_u32 s26, 4')
e('s_cbranch_scc1 L_helper')
e('s_cmp_lg_u32 s26, 0')
e('s_cbranch_scc1 L_c13')
c('wave 0: wait for all A flags, then load the whole phase 0 tile')
if opt['agg']:
    e('s_cmp_lg_u32 s2, 0')
    e('s_cbranch_scc1 L_gow')
if opt['dly']: e(f's_sleep {opt["dly"]}')
if opt['fl']:
    for k in range(4):
        e(f'v_add_u32 v{42+k}, {64*k}, v2')
        e(f'v_min_u32 v{42+k}, 251, v{42+k}')
        e(f'v_lshlrev_b32 v{42+k}, 7, v{42+k}')
    e('v_lshrrev_b32 v46, 3, v2')
    e('v_mul_u32_u24 v46, 4352, v46')
    e('v_and_b32 v47, 7, v2')
    e('v_lshl_add_u32 v46, v47, 4, v46')
poll('A' if opt['fl'] else 0, 'A')
if opt['agg']:
    c('WG 0 saw all A flags: release everybody through 8 go words')
    e(f's_mov_b32 s30, {FLAG_OFF+GOF}')
    if opt['fl']:
        e('buffer_store_dwordx4 v[38:41], v46, s[20:23], s30 offen sc1')
    else:
        e('v_mul_u32_u24 v9, 4352, v2')
        e('s_mov_b64 exec, 0xff')
        e('buffer_store_dwordx2 v[38:39], v9, s[20:23], s30 offen sc1')
        e('s_mov_b64 exec, -1')
    e('s_branch L_god')
    lab('L_gow')
    e('s_mul_i32 s30, s25, 4352')
    e(f's_add_u32 s30, s30, {FLAG_OFF+GOF}')
    e('s_mov_b32 s31, 0')
    e('s_mov_b64 exec, 1')
    lab('L_gol')
    e('buffer_load_dwordx2 v[24:25], v37, s[20:23], s30 offen sc1')
    e('s_add_u32 s31, s31, 1')
    e('s_cmp_gt_u32 s31, 800000')
    e('s_cbranch_scc1 L_gox')
    e('s_waitcnt vmcnt(0)')
    e('v_cmp_ne_u64 vcc, s[92:93], v[24:25]')
    e('s_cbranch_vccz L_gox')
    e(f's_sleep {opt["gslp"]}')
    e('s_branch L_gol')
    lab('L_gox')
    e('s_mov_b64 exec, -1')
    lab('L_god')
stamp(3)
for k in range(52):
    if k % 4 == 0:
        e(f's_mov_b32 m0, {k*1024}')
        e(f's_add_u32 s30, s36, {k*1024}' if k < 28 else f's_add_u32 s30, s37, {(k-28)*1024}')
    e(f'buffer_load_dwordx4 v{ {26: 6, 27: 7}.get(k, 101) }, s[20:23], s30 offen offset:{(k%4)*1024} sc1 lds')
lab('L_c13')
e('s_barrier')
if opt['prio']: e(f's_setprio {opt["prio"]}')
e('v_and_b32 v124, 15, v2')
e('v_lshrrev_b32 v125, 4, v2')
e('v_mul_u32_u24 v126, 864, v124')
e('s_mul_i32 s38, s32, 13824')
e('v_add_u32 v126, s38, v126')
e('v_lshl_add_u32 v2, v125, 4, v126')
e('v_lshrrev_b32 v127, 1, v125')
e('v_mul_u32_u24 v127, 96, v127')
e('v_sub_u32 v127, v126, v127')
e('v_and_b32 v128, 1, v125')
e('v_lshl_add_u32 v127, v128, 4, v127')
e('v_add_u32 v5, 160, v127')
e('s_mul_i32 s38, s33, 12288')
e('s_add_u32 s38, s38, 28672')
e('v_add_u32 v8, s38, v101')
for s in (1, 2):
    e(f'v_add_u32 v{2+s}, {s*SLOT}, v2')
    e(f'v_add_u32 v{5+s}, {s*SLOT}, v5')
    e(f'v_add_u32 v{8+s}, {s*SLOT}, v8')
if opt['sn32']: e('v_lshrrev_b32 v101, 2, v101')
e(f's_add_u32 s38, s34, {2*SLOT}')
e('v_add_u32 v1, s38, v101')
e(f's_add_u32 s38, s35, {2*SLOT+28672}')
e('v_add_u32 v11, s38, v101')
for r in range(48, 84): e(f'v_mov_b32 v{r}, 0')

frags = []; mf = []
if opt['mord']:
    for t in range(9):
        for kk in range(7, -1, -1): mf.append((t, ('W', kk), ('X', t-kk)))
    for t in (range(8, -1, -1) if opt['tdesc'] else range(9)):
        for pp in (range(4) if opt['tdesc'] else range(3, -1, -1)): mf.append((t, ('WT', pp), ('XT', t-2*pp)))
else:
  for tp in range(-7, 9):
    for kk in range(min(7, 8-tp), max(0, -tp)-1, -1):
        mf.append((tp+kk, ('W', kk), ('X', tp)))
  for tp in range(-6, 9):
    for pp in range(3, -1, -1):
        if 0 <= tp+2*pp <= 8: mf.append((tp+2*pp, ('WT', pp), ('XT', tp)))
assert len(mf) == 108
fu = {}
for s, (t, wk, xk) in enumerate(mf):
    for k in (xk, wk):
        if k not in fu: fu[k] = s; frags.append(k)
assert len(frags) == 43
fidx = {k: i for i, k in enumerate(frags)}
LA = opt['LA']; BAR = 108 - LA; ELAST = BAR - 6
iss = [(-LA + (k*(ELAST+LA))//42) for k in range(43)]
if opt['mord']:
    iss = [-LA + (k*(LA-2))//16 for k in range(17)] + [1 + (k*(ELAST-1))//25 for k in range(26)]
    lu = {}
    for s, (t, wk, xk) in enumerate(mf): lu[wk] = s; lu[xk] = s
    for k in range(43): assert iss[k] + 108 > lu[frags[k]] + 1, (k, iss[k], lu[frags[k]])
for k in range(43): assert iss[k] <= fu[frags[k]] - 8, (k, iss[k], fu[frags[k]])
def rd(k, slot):
    kind, i = frags[k]
    if kind == 'X': return f'ds_read_b128 {FR(k)}, v{2+slot} offset:{(i+8)*96}'
    if kind == 'XT': return f'ds_read_b128 {FR(k)}, v{5+slot} offset:{(i+7)*96}'
    if kind == 'W': return f'ds_read_b128 {FR(k)}, v{8+slot} offset:{i*1024}'
    return f'ds_read_b128 {FR(k)}, v{8+slot} offset:{(8+i)*1024}'
npre = sum(1 for x in iss if x < 0)
first_touch = {}; last_touch = {}
for s, (t, wk, xk) in enumerate(mf):
    first_touch.setdefault(t, s); last_touch[t] = s
def snapw(t):
    if opt['sn32']:
        t, r = divmod(t, 4)
        return f'ds_write_b32 v1, v{MD(t)+r} offset:{t*1024+r*256}' if t < 7 else f'ds_write_b32 v11, v{MD(t)+r} offset:{(t-7)*1024+r*256}'
    return f'ds_write_b128 v1, {vr(MD(t))} offset:{t*1024}' if t < 7 else f'ds_write_b128 v11, {vr(MD(t))} offset:{(t-7)*1024}'
QS = opt['QS']
ext = [[] for _ in range(324)]
for ph in range(3):
    for k in range(43):
        ext[(ph*108 + iss[k]) % 324].append(('rd', k, ph))
used = [len(x) for x in ext]
lastw = 0
if opt['sn32']:
    for n in range(36):
        pos = max(216 + last_touch[n//4] + 8, lastw + 1)
        lastw = pos
        assert pos >= 216 + BAR and pos < 324 + QS - 2, pos
        ext[pos % 324].append(('wr', n, 0))
else:
  for t in sorted(range(9), key=lambda t: last_touch[t]):
    pos = max(216 + last_touch[t] + 8, lastw + opt['wsp'], 216 + BAR + 1)
    while used[pos % 324]: pos += 1
    lastw = pos
    used[pos % 324] += 1
    assert pos >= 216 + BAR and pos < 324 + QS - 2
    ext[pos % 324].append(('wr', t, 0))
e('s_waitcnt vmcnt(0)')
stamp(4)
e('s_barrier')
stamp(5)
if opt['dbgst']: e('s_memtime s[90:91]')
for k in range(npre): e(rd(k, 0))
e('s_mov_b32 s39, 7')
e('s_waitcnt lgkmcnt(0)')
out.append('.p2align 6')
for _ in range(opt['pad']): e('s_nop 0')
lab('L_loop')
seq = 0; rseq = {}; covered = -1; wseq = -1; sslot = []
for it in range(2):
    emit = e if it == 1 else (lambda s: None)
    for ph in range(3):
        if it == 1: c(f'======== phase {ph}')
        for s, (t, wk, xk) in enumerate(mf):
            if s == BAR:
                emit('s_waitcnt lgkmcnt(0)')
                emit('s_barrier')
                covered = seq - 1
            if ph == 0 and s == QS:
                if wseq > covered:
                    emit(f's_waitcnt lgkmcnt({min(15, seq-1-wseq)})')
                    covered = max(covered, seq - 1 - min(15, seq-1-wseq))
                emit('s_barrier')
            need = max(rseq.get((ph, fidx[wk]), -1), rseq.get((ph, fidx[xk]), -1))
            if need > covered:
                now = it*324 + ph*108 + s
                recent = sum(1 for x in sslot if x >= now - opt['lat'])
                allow = min(seq - 1 - need, recent, 15)
                emit(f's_waitcnt lgkmcnt({allow})')
                covered = seq - 1 - allow
            cin = vr(MD(t)) if (ph == 0 and first_touch[t] == s) else vr(M(t))
            dst = vr(MD(t)) if (ph == 2 and last_touch[t] == s) else vr(M(t))
            emit(f'v_mfma_f32_16x16x32_bf16 {dst}, {FR(fidx[wk])}, {FR(fidx[xk])}, {cin}')
            for x in ext[ph*108+s]:
                if x[0] == 'rd':
                    emit(rd(x[1], x[2])); rseq[(x[2], x[1])] = seq; seq += 1; sslot.append(it*324 + ph*108 + s)
                else:
                    emit(snapw(x[1])); wseq = seq; seq += 1; sslot.append(it*324 + ph*108 + s)
            if ph == 2 and s == 104: emit('s_sub_u32 s39, s39, 1')
            if ph == 2 and s == 105: emit('s_cmp_lg_u32 s39, 0')
e('s_cbranch_scc1 L_loop')
stamp(6)
if opt['dbgst']: e('s_memtime s[94:95]')
c('---- compute-wave epilogue: gate y3 = MD')
e('s_waitcnt lgkmcnt(0)')
if opt['tr']: e('s_barrier')
def gate_consts():
    e(f's_mov_b32 s46, {fh(-0.6931471805599453)}')
    e(f's_mov_b32 s42, {fh(2*LOG2E*2**-12)}')
    e('s_mov_b32 s43, 0x41f00000')
def gate(a, r, dst, sp):
    L = []
    L.append(f'v_min_f32 v{r}, s43, v{a}')
    L.append(f'v_min_f32 v{r+1}, s43, v{a+1}')
    L.append(f'v_exp_f32 v{a+2}, v{a+2}')
    L.append(f'v_exp_f32 v{a+3}, v{a+3}')
    L.append(f'v_exp_f32 v{r}, v{r}')
    L.append(f'v_exp_f32 v{r+1}, v{r+1}')
    if opt['smallfix']:
        L.append(f'v_cmp_gt_f32 s[{sp}:{sp+1}], s42, abs(v{a})')
        L.append(f'v_cmp_gt_f32 s[{sp+2}:{sp+3}], s42, abs(v{a+1})')
    L.append(f'v_add_f32 v{r+2}, 1.0, v{r}')
    L.append(f'v_add_f32 v{r+3}, 1.0, v{r+1}')
    if opt['smallfix']:
        L.append(f'v_mul_f32 v{a}, s46, v{a}')
        L.append(f'v_mul_f32 v{a+1}, s46, v{a+1}')
    L.append(f'v_fmac_f32 v{r+2}, v{r+2}, v{a+2}')
    L.append(f'v_fmac_f32 v{r+3}, v{r+3}, v{a+3}')
    L.append(f'v_sub_f32 v{r}, 1.0, v{r}')
    L.append(f'v_sub_f32 v{r+1}, 1.0, v{r+1}')
    L.append(f'v_rcp_f32 v{r+2}, v{r+2}')
    L.append(f'v_rcp_f32 v{r+3}, v{r+3}')
    if opt['smallfix']:
        L.append(f'v_cndmask_b32 v{r}, v{r}, v{a}, s[{sp}:{sp+1}]')
        L.append(f'v_cndmask_b32 v{r+1}, v{r+1}, v{a+1}, s[{sp+2}:{sp+3}]')
    L.append(f'v_mul_f32 v{r}, v{r}, v{r+2}')
    L.append(f'v_mul_f32 v{r+1}, v{r+1}, v{r+3}')
    L.append(f'v_cvt_pk_bf16_f32 v{dst}, v{r}, v{r+1}')
    return L
ool = []
def gate_check(As, tm, name):
    for k, a in enumerate(As):
        if k == 0:
            e(f'v_min_f32 v{tm}, abs(v{a}), abs(v{a+1})')
            e(f'v_max_f32 v{tm+1}, v{a}, v{a+1}')
        else:
            e(f'v_min3_f32 v{tm}, abs(v{a}), abs(v{a+1}), v{tm}')
            e(f'v_max3_f32 v{tm+1}, v{a}, v{a+1}, v{tm+1}')
    e(f'v_cmp_gt_f32 s[44:45], s42, v{tm}')
    e(f'v_cmp_lt_f32 vcc, s43, v{tm+1}')
    e(f's_cbranch_vccnz L_cl{name}')
    lab(f'L_clr{name}')
    L = [f'L_cl{name}:']
    for a in As:
        L += [f'    v_min_f32 v{a}, s43, v{a}', f'    v_min_f32 v{a+1}, s43, v{a+1}']
    L.append(f'    s_branch L_clr{name}')
    ool.extend(L)
def gate_fast(a, r, dst, name):
    e(f'v_exp_f32 v{r}, v{a}')
    e(f'v_exp_f32 v{r+1}, v{a+1}')
    e(f'v_exp_f32 v{a+2}, v{a+2}')
    e(f'v_exp_f32 v{a+3}, v{a+3}')
    e(f'v_add_f32 v{r+2}, 1.0, v{r}')
    e(f'v_add_f32 v{r+3}, 1.0, v{r+1}')
    e('s_cmp_lg_u64 s[44:45], 0')
    e(f'v_fmac_f32 v{r+2}, v{r+2}, v{a+2}')
    e(f'v_fmac_f32 v{r+3}, v{r+3}, v{a+3}')
    e(f'v_sub_f32 v{r}, 1.0, v{r}')
    e(f'v_sub_f32 v{r+1}, 1.0, v{r+1}')
    e(f'v_rcp_f32 v{r+2}, v{r+2}')
    e(f'v_rcp_f32 v{r+3}, v{r+3}')
    e(f's_cbranch_scc1 L_sm{name}')
    lab(f'L_smr{name}')
    e(f'v_mul_f32 v{r}, v{r}, v{r+2}')
    e(f'v_mul_f32 v{r+1}, v{r+1}, v{r+3}')
    e(f'v_cvt_pk_bf16_f32 v{dst}, v{r}, v{r+1}')
    ool.extend([f'L_sm{name}:',
        f'    v_cmp_gt_f32 s[48:49], s42, abs(v{a})',
        f'    v_cmp_gt_f32 s[50:51], s42, abs(v{a+1})',
        f'    v_mul_f32 v{a}, s46, v{a}',
        f'    v_mul_f32 v{a+1}, s46, v{a+1}',
        f'    v_cndmask_b32 v{r}, v{r}, v{a}, s[48:49]',
        f'    v_cndmask_b32 v{r+1}, v{r+1}, v{a+1}, s[50:51]',
        f'    s_branch L_smr{name}'])
gate_consts()
if opt['t2']:
    e('v_and_b32 v100, 63, v0')
    e('v_lshlrev_b32 v101, 2, v100')
    for t in range(9):
        e(f's_add_u32 s63, s62, {(t*4+3)*4608}')
        for x in gate(MD(t), 104 + 4*(t % 2), 112 + t, 48): e(x)
        e(f'buffer_store_dword v{112+t}, v101, s[20:23], s63 offen sc1')
else:
    e('v_and_b32 v100, 63, v0')
    e('v_lshlrev_b32 v101, 4, v100')
    e(f's_add_u32 s63, s62, {7*18432}')
    if opt['full']:
        e('s_lshl_b32 s40, s24, 10')
        e(f's_add_u32 s40, s40, {SLOT}')
        e('v_add_u32 v102, s40, v101')
        e('ds_read_b128 v[124:127], v102')
    for t in range(9):
        if opt['fast']:
            if t % 3 == 0: gate_check([MD(t), MD(t+1), MD(t+2)], 102, f'c{t}')
            gate_fast(MD(t), 104 + 4*(t % 2), 112 + t, f'c{t}')
        else:
            if opt['full'] and t == 8: e('s_waitcnt lgkmcnt(0)')
            for x in gate(MD(t), 104 + 4*(t % 2), (127 if opt['full'] and t == 8 else 112 + t), 48): e(x)
        if t in (3, 7):
            e(f'buffer_store_dwordx4 v[{112+t-3}:{112+t}], v101, s[20:23], s63 offen sc1')
            e('s_add_u32 s63, s63, 18432')
    e(f's_add_u32 s63, s62, {6*18432}')
    if opt['full']: e('buffer_store_dwordx4 v[124:127], v101, s[20:23], s63 offen sc1')
    else: e('buffer_store_dword v120, v101, s[20:23], s63 offen offset:12 sc1')
e('s_branch L_fin')
def hbar():
    if opt['bst']:
        e('s_memtime s[64:65]')
        e('s_barrier')
        e('s_memtime s[66:67]')
        e('s_waitcnt lgkmcnt(0)')
        e('s_mov_b32 m0, s68'); e('s_nop 0')
        e('v_writelane_b32 v14, s64, m0')
        e('v_writelane_b32 v15, s66, m0')
        e('s_add_u32 s68, s68, 1')
    else: e('s_barrier')
lab('L_helper')
if opt['bst']: e('s_mov_b32 s68, 0')
def Y(i, t): return 40 + 4*(i*9+t)
def SN(t): return 148 + 4*t
e('v_mov_b32 v3, v101')
e('v_add_u32 v13, 4096, v101')
e('v_add_u32 v6, 4096, v6')
e('v_add_u32 v7, 4096, v7')
e('s_cmp_eq_u32 s26, 7')
e('s_cselect_b64 vcc, -1, 0')
e('v_cndmask_b32 v6, v13, v6, vcc')
e('v_cndmask_b32 v7, v13, v7, vcc')
if opt['sn32']: e('v_lshrrev_b32 v101, 2, v101')
e(f's_add_u32 s38, s34, {2*SLOT}')
e('v_add_u32 v4, s38, v101')
e(f's_add_u32 s38, s35, {2*SLOT+28672}')
e('v_add_u32 v5, s38, v101')
e('s_cmp_eq_u32 s26, 4')
e('s_cbranch_scc1 L_h4')
e(f'v_mov_b32 v36, {OOB}')
e(f'v_mov_b32 v12, {OOB}')
e('s_branch L_h5')
lab('L_h4')
e('s_mov_b32 s31, 0')
gettag('h')
lab('L_h5')
e('v_mov_b32 v38, s92')
e('v_mov_b32 v39, s93')
def dma_list(slot):
    L = []
    for k in range(7):
        pre = [f's_add_u32 m0, s34, {slot*SLOT + (k//4)*4096}', 's_nop 0']
        L.append(pre + [f'buffer_load_dwordx4 v{(3,3,3,3,13,6,7)[k]}, s[20:23], s36 offen offset:{(k%4)*1024} sc1 lds'] + ([f's_add_u32 s36, s36, {XS}'] if k == 6 else []))
    for k in range(6):
        pre = [f's_add_u32 m0, s35, {slot*SLOT + 28672 + (k//4)*4096}', 's_nop 0']
        L.append(pre + [f'buffer_load_dwordx4 v{3 if k < 4 else 13}, s[20:23], s37 offen offset:{(k%4)*1024} sc1 lds'] + (['s_add_u32 s37, s37, 24576'] if k == 5 else []))
    return L
def pst(b, pm):
    return [f'buffer_store_dwordx4 {vr(PK(b,pm))}, v{PA(b)}, s[20:23], 0 offen sc1', f'v_add_u32 v{PA(b)}, s{96+b}, v{PA(b)}']
def weave(dl, sl):
    res = []; n = len(sl); m = len(dl)
    for i in range(m):
        res.append(dl[i])
        for k in range((i*n)//m, ((i+1)*n)//m): res.append(sl[k])
    return res
def mix(dl, vl):
    n = len(dl)
    for i, d in enumerate(dl):
        for x in d: e(x)
        for x in vl[(i*len(vl))//n:((i+1)*len(vl))//n]: e(x)
    if n == 0:
        for x in vl: e(x)
def nvm(dl, after):
    return len(dl) - 1 - after
def snapr():
    if opt['sn32']:
        for t in range(9):
            for h in range(2):
                o = (t if t < 7 else t-7)*4 + 2*h
                e(f'ds_read2st64_b32 {vp(SN(t)+2*h)}, v{4 if t < 7 else 5} offset0:{o} offset1:{o+1}')
            if t == 6: e('s_waitcnt lgkmcnt(4)')
        e('s_waitcnt lgkmcnt(0)')
        return
    for t in range(9):
        e(f'ds_read_b128 {vr(SN(t))}, v4 offset:{t*1024}' if t < 7 else f'ds_read_b128 {vr(SN(t))}, v5 offset:{(t-7)*1024}')
    e('s_waitcnt lgkmcnt(0)')
FM = [f'v_fmac_f32 v{Y(i,t)+r}, s{40+i}, v{SN(t)+r}' for t in range(9) for i in range(3) for r in range(4)]
def FMm(m):
    L = []
    for t in range(9):
        for i in range(3):
            if DCH[i][m] == 0: continue
            first = all(DCH[i][mm] == 0 for mm in range(m))
            for r in range(4): L.append(f'{"v_mul_f32" if first else "v_fmac_f32"} v{Y(i,t)+r}, s{40+i}, v{SN(t)+r}')
    return L
e(f's_add_u32 s36, s36, {XS}')
e('s_add_u32 s37, s37, 24576')
e('s_barrier')
mix(dma_list(1), [])
if opt['b1e'] == 1: mix([pst(b, 0) for b in range(4)], [])
c('coefficient table: s40.. = 3 x 6, consumed from the front')
for m in range(6):
    for i in range(3): e(f's_mov_b32 s{40+3*m+i}, {fh(DCH[i][m])}')
hbar()
if opt['b1e'] == 2: mix([pst(b, 0) for b in range(4)], [])
ND0 = opt['nd0']
def only4(name, fn):
    e('s_cmp_lg_u32 s26, 4')
    e(f's_cbranch_scc1 L_o4{name}')
    fn()
    lab(f'L_o4{name}')
def hflag(off):
    e('s_lshl_b32 s30, s2, 3')
    e(f's_add_u32 s30, s30, {FLAG_OFF+off}')
    e(f's_mov_b64 exec, {(1<<REP)-1}')
    e('buffer_store_dwordx2 v[38:39], v12, s[20:23], s30 offen sc1')
    e('s_mov_b64 exec, -1')
def hiter(name, fm, sa=(), sc_=(), flag0=None, flag1=None, chk=None):
    if chk is not None: poll_issue(chk)
    for g_ in sa:
        for x in g_: e(x)
    hbar()
    if fm: snapr()
    D2 = dma_list(2)
    mix(D2[:ND0], [])
    e(f's_waitcnt vmcnt({ND0 + len(sa)})')
    if chk is not None:
        def f():
            poll_check()
            e(f's_cbranch_scc0 L_o4c{name}')
            poll(chk, name, opt['fslp'])
        only4('c'+name, f)
    hbar()
    if flag0 is not None: hflag(flag0)
    mix(D2[ND0:] + dma_list(0), fm[:40])
    e('s_waitcnt vmcnt(13)')
    hbar()
    if flag1 is not None: hflag(flag1)
    mix(list(sc_) + dma_list(1), fm[40:])
    if fm:
        for k in range(15): e(f's_mov_b32 s{40+k}, s{43+k}')
    e(f's_waitcnt vmcnt({13 + len(sc_) + (1 if flag1 is not None else 0)})')
    hbar()
ST = [pst(b, pm) for pm in range(5) for b in range(4)]
if opt['b1e']: hiter('0', [], sc_=ST[4:8], flag0=1*FA)
else: hiter('0', [], sa=ST[0:4], sc_=ST[4:8], flag1=1*FA)
hiter('1', FMm(0), sa=ST[8:12], sc_=ST[12:16], flag0=2*FA, flag1=3*FA, chk=1*FA)
hiter('2', FMm(1), sa=ST[16:20], flag1=4*FA, chk=2*FA)
hiter('3', FMm(2), chk=3*FA)
hiter('4', FMm(3), chk=4*FA)
hiter('5', FMm(4))
c('---- last product')
if opt['sw'] == 4: stamp(6)
hbar()
snapr()
F0 = opt['f0']
D2 = dma_list(2)
mix(D2[:ND0], FM[:F0])
e(f's_waitcnt vmcnt({ND0})')
hbar()
WD = []
for k in range(12):
    WD.append([f's_add_u32 m0, s61, {(k//4)*4096}', 's_nop 0', f'buffer_load_dwordx4 v3, s[20:23], s60 offen offset:{(k%4)*1024} sc1 lds'] + (['s_add_u32 s60, s60, 4096'] if k % 4 == 3 else []))
e('s_mul_i32 s61, s24, 12288')
e(f's_add_u32 s60, s61, {WO_OFF}')
mix(D2[ND0:] + WD, FM[F0:])
gate_consts()
e('s_mov_b32 s63, s62')
nst = [0]
if opt['t2']:
    opt['full'] = 0
    e('v_lshrrev_b32 v9, 2, v3')
HORD = ([24, 25, 26] + list(range(24))) if opt['full'] else list(range(27))
def hgate(n0, n1):
    for n in HORD[n0:n1]:
        t, i = divmod(n, 3)
        if opt['fast']:
            if i == 0: gate_check([Y(0,t), Y(1,t), Y(2,t)], 192, f'h{n}')
            gate_fast(Y(i, t), 184 + 4*(n % 2), 200 + n, f'h{n}')
        else:
            for x in gate(Y(i, t), 184 + 4*(n % 2), 200 + n, 48): e(x)
        if opt['t2']:
            e(f's_add_u32 s63, s62, {(t*4+i)*4608}')
            e(f'buffer_store_dword v{200+n}, v9, s[20:23], s63 offen sc1'); nst[0] += 1
            continue
        if n % 4 == 3:
            e(f'buffer_store_dwordx4 v[{200+n-3}:{200+n}], v3, s[20:23], s63 offen sc1')
            e('s_add_u32 s63, s63, 18432'); nst[0] += 1
        if n == 26 and not opt['full']:
            e('buffer_store_dwordx3 v[224:226], v3, s[20:23], s63 offen sc1'); nst[0] += 1
g1 = opt['g1']; g2 = min(27, g1 + opt['g2'])
hgate(0, g1)
e(f's_waitcnt vmcnt({nst[0]+12})')
hbar()
if opt['full']:
    assert g1 >= 3
    e('s_lshl_b32 s40, s24, 10')
    e(f's_add_u32 s40, s40, {SLOT}')
    e('v_add_u32 v8, s40, v3')
    e('ds_write_b128 v8, v[224:227]')
hgate(g1, g2)
if opt['full']: e('s_waitcnt lgkmcnt(0)')
hbar()
if opt['tr']:
    hgate(g2, opt['x1'])
    e(f's_waitcnt vmcnt({nst[0]-5})')
    e('s_barrier')
    e('s_lshl_b32 s30, s28, 7')
    e('s_lshl_b32 s31, s29, 3')
    e('s_add_u32 s30, s30, s31')
    e(f's_add_u32 s30, s30, {FLAG_OFF+ZFL}')
    e('s_mov_b64 exec, 1')
    e('buffer_store_dwordx2 v[38:39], v12, s[20:23], s30 offen sc1')
    e('s_mov_b64 exec, -1')
    hgate(opt['x1'], 27)
else:
    hgate(g2, 27)
if opt['bst']:
    e('s_memtime s[64:65]')
    e('s_waitcnt lgkmcnt(0)')
    e('s_mov_b32 m0, s68'); e('s_nop 0')
    e('v_writelane_b32 v14, s64, m0')
    e('v_writelane_b32 v15, s64, m0')
    e('s_cmp_lg_u32 s26, 4')
    e('s_cbranch_scc1 L_fin')
    e('s_mov_b32 s22, 0x10000000')
    e('s_lshl_b32 s33, s2, 9')
    e(f's_add_u32 s33, s33, {STAMP_OFF + (128<<10)*4}')
    e('v_lshrrev_b32 v1, 1, v3')
    e('buffer_store_dwordx2 v[14:15], v1, s[20:23], s33 offen')
if opt['t2']:
    assert opt['gmap']
    lab('L_fin')
    e('s_setprio 0')
    e('s_load_dwordx2 s[6:7], s[0:1], 24')
    if not opt['es']: stamp(7)
    e('v_and_b32 v2, 63, v0')
    e('v_lshlrev_b32 v3, 4, v2')
    e('v_lshlrev_b32 v4, 2, v2')
    e('v_add_u32 v6, 4096, v4')
    e('v_mov_b32 v37, 0')
    c('pair u = g>>1 ; this WG consumes (rh = g&1, tau = cg) of both parity groups ; wave = (parity, phase)')
    e('s_lshr_b32 s40, s28, 1')
    e('s_and_b32 s41, s28, 1')
    e('s_lshr_b32 s42, s26, 2')
    e('s_lshl_b32 s43, s40, 2')
    e('s_lshl_b32 s44, s42, 1')
    e('s_add_u32 s43, s43, s44')
    e('s_add_u32 s43, s43, s41')
    e('s_mul_i32 s43, s43, 9')
    e('s_add_u32 s43, s43, s29')
    e('s_lshl_b32 s43, s43, 2')
    e('s_add_u32 s43, s43, s24')
    e('s_mul_i32 s46, s43, 4608')
    e(f's_add_u32 s46, s46, {Z_OFF}')
    e('s_cmp_ge_u32 s40, 7')
    e('s_cselect_b32 s37, 4608000, 0')
    e('s_cselect_b32 s36, 7, 0')
    e('s_sub_u32 s32, s40, s36')
    e('s_lshl_b32 s32, s32, 1')
    e('s_add_u32 s32, s32, s41')
    e('s_mul_i32 s32, s32, 144')
    e('s_add_u32 s32, s32, s29')
    e('s_mul_i32 s33, s26, 18')
    e('s_add_u32 s32, s32, s33')
    e('s_mul_i32 s45, s32, 2304')
    e('s_waitcnt lgkmcnt(0)')
    e('s_add_u32 s6, s6, s37'); e('s_addc_u32 s7, s7, 0')
    srd(16, 6, 7, 4608000)
    c('LDS write addresses: j*2304 + row8*288 + col*16 / +256+col*2 ; j = 4*(lane>>4)+r')
    e('s_lshl_b32 s47, s24, 1')
    e('s_sub_u32 s47, s42, s47')
    e('s_add_u32 s47, s47, 6')
    e('s_mul_i32 s47, s47, 288')
    e(f's_add_u32 s47, s47, {SLOT}')
    e('v_lshrrev_b32 v7, 4, v2')
    e('v_mul_u32_u24 v7, 9216, v7')
    e('v_add_u32 v7, s47, v7')
    e('v_and_b32 v8, 15, v2')
    e('v_lshl_add_u32 v11, v8, 1, v7')
    e('v_lshl_add_u32 v10, v8, 4, v7')
    e('s_mul_i32 s48, s26, 4608')
    e(f's_add_u32 s48, s48, {SLOT}')
    e('v_add_u32 v12, s48, v3')
    e('v_add_u32 v13, s45, v3')
    e('v_add_u32 v14, 18432, v13')
    e('v_cmp_gt_u32 vcc, 16, v2')
    e('v_cmp_gt_u32 s[48:49], 32, v2')
    e('v_add_u32 v36, 4096, v14')
    e(f'v_mov_b32 v5, {OOB}')
    e('v_cndmask_b32 v15, v14, v13, vcc')
    e('v_cndmask_b32 v36, v5, v36, s[48:49]')
    e('v_mov_b32 v34, 0')
    e('v_mov_b32 v35, 0')
    e('s_lshl_b32 s50, s40, 8')
    e(f's_add_u32 s50, s50, {FLAG_OFF+ZFL}')
    e('s_mul_i32 s30, s41, 9')
    e('s_add_u32 s30, s30, s29')
    e('s_lshl_b32 s30, s30, 3')
    e('s_add_u32 s30, s30, s50')
    e('s_waitcnt vmcnt(0)')
    e('s_barrier')
    if not opt['es']: stamp(8)
    def bf(f): return vr(76 + 4*f)
    e('s_cmp_lg_u32 s26, 4')
    e('s_cbranch_scc1 L_e1b')
    setflag([])
    lab('L_e1b')
    for f in range(45):
        e(f'ds_read_b128 {bf(f)}, v3 offset:{f*1024}')
        if f % 12 == 11: e('s_waitcnt lgkmcnt(4)')
    e('s_cmp_lg_u32 s26, 4')
    e('s_cbranch_scc1 L_e2')
    e('v_min_u32 v5, 17, v2')
    e('v_lshlrev_b32 v5, 3, v5')
    e('s_mov_b32 s51, 0')
    lab('L_zpoll')
    e('buffer_load_dwordx2 v[8:9], v5, s[20:23], s50 offen sc1')
    e('s_add_u32 s51, s51, 1')
    e('s_cmp_gt_u32 s51, 400000')
    e('s_cbranch_scc1 L_e2')
    e('s_waitcnt vmcnt(0)')
    e('v_cmp_ne_u64 vcc, s[92:93], v[8:9]')
    e('s_cbranch_vccz L_e2')
    e('s_sleep 1')
    e('s_branch L_zpoll')
    lab('L_e2')
    e('s_barrier')
    stamp(9)
    for J in range(18):
        e(f'buffer_load_dword v{16+J}, v{4 if J < 16 else 6}, s[20:23], s46 offen offset:{(J%16)*256} sc1')
    e('s_waitcnt lgkmcnt(0)')
    for ks in range(5):
        e(f's_waitcnt vmcnt({max(0, 18-4*(ks+1))})')
        if ks == 0: stamp(10)
        for T in range(9):
            r = 40 + 4*T
            cin = '0' if ks == 0 else vr(r)
            e(f'v_mfma_f32_16x16x32_bf16 {vr(r)}, v[{16+4*ks}:{16+4*ks+3}], {bf(T*5+ks)}, {cin}')
    e('s_nop 7')
    e('s_nop 1')
    for r in range(4):
        d = 140 + 6*r
        A = lambda T: 40 + 4*T + r
        for h in range(4): e(f'v_cvt_pk_bf16_f32 v{d+h}, v{A(2*h)}, v{A(2*h+1)}')
        e(f'v_cvt_pk_bf16_f32 v{d+4}, v{A(8)}, v{A(8)}')
        e(f'ds_write_b128 v10, v[{d}:{d+3}] offset:{r*2304}')
        e(f'ds_write_b16 v11, v{d+4} offset:{r*2304+256}')
    e('s_waitcnt lgkmcnt(0)')
    e('s_barrier')
    for n in range(5): e(f'ds_read_b128 {vr(76+4*n)}, v12 offset:{n*1024}')
    for n in range(5):
        e(f's_waitcnt lgkmcnt({4-n})')
        va, off = ((13, 0), (13, 1024), (15, 2048), (14, 3072), (36, 0))[n]
        e(f'buffer_store_dwordx4 {vr(76+4*n)}, v{va}, s[16:19], 0 offen offset:{off}{OF[opt["of3"]]}')
else:
    lab('L_fin')
    e('s_setprio 0')
    e('s_load_dwordx2 s[6:7], s[0:1], 24')
    if not opt['es']: stamp(7)
    e('v_and_b32 v2, 63, v0')
    e('v_lshlrev_b32 v3, 4, v2')
    e('v_mov_b32 v37, 0')
    e('s_lshr_b32 s41, s26, 2')
    if opt['tr']:
        c('helpers take an early set, compute waves a late one')
        e('s_mul_i32 s40, s28, 18')
        e('s_add_u32 s40, s40, s29')
        e('s_add_u32 s42, s41, 4')
        e('s_cmp_ge_u32 s29, s42')
        e('s_cselect_b32 s42, 4, 0')
        e('s_add_u32 s40, s40, s42')
        e('s_cmp_eq_u32 s41, 0')
        e('s_cselect_b32 s42, 5, 0')
        e('s_add_u32 s40, s40, s42')
    else:
        e('s_lshl_b32 s40, s27, 1')
        e('s_add_u32 s40, s40, s41')
    e('s_mul_i32 s30, s40, 7282')
    e('s_lshr_b32 s30, s30, 16')
    e('s_mul_i32 s31, s30, 9')
    e('s_sub_u32 s31, s40, s31')
    if opt['gmap']:
        e('s_lshr_b32 s32, s30, 2')
        e('s_bfe_u32 s38, s30, 0x10001')
        e('s_and_b32 s33, s30, 1')
        e('s_cmp_ge_u32 s32, 7')
        e('s_cselect_b32 s37, 4608000, 0')
        e('s_cselect_b32 s36, 7, 0')
        e('s_sub_u32 s32, s32, s36')
        e('s_lshl_b32 s32, s32, 1')
        e('s_add_u32 s33, s33, s32')
    else:
        e('s_mul_i32 s32, s30, 4682')
        e('s_lshr_b32 s32, s32, 16')
        e('s_mul_i32 s33, s32, 14')
        e('s_sub_u32 s33, s30, s33')
        e('s_lshr_b32 s37, s32, 1')
        e('s_and_b32 s38, s32, 1')
        e('s_mul_i32 s37, s37, 4608000')
    e('s_waitcnt lgkmcnt(0)')
    e('s_add_u32 s6, s6, s37'); e('s_addc_u32 s7, s7, 0')
    srd(16, 6, 7, 4608000)
    e('s_mul_i32 s39, s33, 1152')
    e('s_add_u32 s39, s39, s38')
    e('s_add_u32 s39, s39, 6')
    e('s_lshl_b32 s45, s31, 2')
    e('s_add_u32 s45, s45, s24')
    e('s_mul_i32 s42, s45, 171')
    e('s_lshr_b32 s42, s42, 9')
    e('s_mul_i32 s43, s42, 3')
    e('s_sub_u32 s43, s45, s43')
    e('s_sub_u32 s44, s45, 28')
    e('s_cmp_ge_u32 s45, 27')
    e('s_cselect_b32 s42, s44, s42')
    e('s_cselect_b32 s43, 3, s43')
    e('s_cmp_eq_u32 s45, 27')
    e('s_cselect_b32 s42, 8, s42')
    e('s_lshl_b32 s42, s42, 3')
    e('s_lshl_b32 s43, s43, 1')
    e('s_add_u32 s42, s42, s39')
    e('s_sub_u32 s42, s42, s43')
    e('s_mul_i32 s45, s42, 288')
    e('v_lshrrev_b32 v7, 4, v2')
    e(f'v_mul_u32_u24 v7, {4*72*288}, v7')
    e('v_add_u32 v7, s45, v7')
    e('v_and_b32 v8, 15, v2')
    e('v_lshl_add_u32 v11, v8, 1, v7')
    e('v_lshl_add_u32 v10, v8, 4, v7')
    def bf(f): return vr(76 + 4*f)
    def preB():
        for f in range(45):
            e(f'ds_read_b128 {bf(f)}, v3 offset:{f*1024}')
            if f % 12 == 11: e('s_waitcnt lgkmcnt(4)')
    def zpoll(name):
        e('v_min_u32 v5, 8, v2')
        e('v_lshlrev_b32 v5, 3, v5')
        e('s_mov_b32 s51, 0')
        lab(f'L_zp{name}')
        e('buffer_load_dwordx2 v[8:9], v5, s[20:23], s50 offen sc1')
        e('s_add_u32 s51, s51, 1')
        e('s_cmp_gt_u32 s51, 400000')
        e(f's_cbranch_scc1 L_zd{name}')
        e('s_waitcnt vmcnt(0)')
        e('v_cmp_ne_u64 vcc, s[92:93], v[8:9]')
        e(f's_cbranch_vccz L_zd{name}')
        e('s_sleep 1')
        e(f's_branch L_zp{name}')
        lab(f'L_zd{name}')
    if opt['tr']:
        e('s_mul_i32 s46, s40, 18432')
        e('s_lshl_b32 s47, s24, 10')
        e('s_add_u32 s46, s46, s47')
        e(f's_add_u32 s46, s46, {Z_OFF}')
        e('s_mul_i32 s48, s41, 18432')
        e(f's_add_u32 s48, s48, {SLOT}')
        e('s_add_u32 s47, s47, s48')
        e('s_lshl_b32 s49, s24, 2')
        e('s_add_u32 s48, s48, s49')
        e('v_add_u32 v4, s48, v3')
        e('v_mov_b32 v34, 0')
        e('v_mov_b32 v35, 0')
        e('s_lshl_b32 s50, s28, 7')
        e(f's_add_u32 s50, s50, {FLAG_OFF+ZFL}')
        def zdma(name):
            for i in range(5):
                if i == 4:
                    e('s_cmp_ge_u32 s24, 2')
                    e(f's_cbranch_scc1 L_zm{name}')
                e(f's_add_u32 m0, s47, {i*4096}')
                e('s_nop 0')
                e('buffer_load_dwordx4 v3, s[20:23], s46 offen sc1 lds')
                if i < 4: e('s_add_u32 s46, s46, 4096')
            lab(f'L_zm{name}')
        e('s_cmp_lt_u32 s26, 4')
        e('s_cbranch_scc1 L_fc')
        c('---- helpers: early set')
        e('s_cmp_lg_u32 s26, 4')
        e('s_cbranch_scc1 L_zdh')
        zpoll('h')
        e('s_waitcnt vmcnt(0)')
        e('s_barrier')
        if not opt['es']: stamp(8)
        zdma('h')
        preB()
        e('s_waitcnt vmcnt(0) lgkmcnt(0)')
        e('s_barrier')
        stamp(9)
        e('s_branch L_gemm')
        lab('L_fc')
        c('---- compute waves: late set')
        e('s_add_u32 s50, s50, 4096')
        e('s_waitcnt vmcnt(0)')
        e('s_barrier')
        if not opt['es']: stamp(8)
        e('s_cmp_lg_u32 s26, 0')
        e('s_cbranch_scc1 L_fc1')
        setflag(['s_lshl_b32 s30, s29, 3', 's_add_u32 s30, s30, s50'])
        lab('L_fc1')
        preB()
        e('s_cmp_lg_u32 s26, 0')
        e('s_cbranch_scc1 L_zdc')
        zpoll('c')
        e('s_barrier')
        stamp(9)
        zdma('c')
        e('s_waitcnt vmcnt(0) lgkmcnt(0)')
        e('s_barrier')
        stamp(10)
        lab('L_gemm')
    else:
        e('s_mul_i32 s46, s27, 36864')
        e('s_lshl_b32 s47, s26, 10')
        e('s_add_u32 s46, s46, s47')
        e(f's_add_u32 s46, s46, {Z_OFF}')
        e('s_mul_i32 s48, s41, 18432')
        e('s_lshl_b32 s49, s24, 2')
        e('s_add_u32 s48, s48, s49')
        e(f's_add_u32 s48, s48, {SLOT}')
        e('v_add_u32 v4, s48, v3')
        e('v_mov_b32 v34, 0')
        e('v_mov_b32 v35, 0')
        if opt['fl']:
            for k in range(4): e(f'v_mov_b32 v{36+k}, s{92+k%2}')
            e('s_mul_i32 s50, s28, 1152')
            e(f's_add_u32 s50, s50, {FLAG_OFF+ZF2}')
            e('s_lshl_b32 s30, s27, 7')
            e(f's_add_u32 s30, s30, {FLAG_OFF+ZF2}')
        e('s_waitcnt vmcnt(0)')
        e('s_barrier')
        if not opt['es']: stamp(8)
        def bf(f): return vr(76 + 4*f)
        def preB():
            for f in range(45):
                e(f'ds_read_b128 {bf(f)}, v3 offset:{f*1024}')
                if f % 12 == 11: e('s_waitcnt lgkmcnt(4)')
        e('s_cmp_lg_u32 s26, 4')
        e('s_cbranch_scc1 L_e1b')
        if opt['fl']:
            e('s_mov_b64 exec, 0xff')
            e('buffer_store_dwordx4 v[36:39], v3, s[20:23], s30 offen sc1')
            e('s_mov_b64 exec, -1')
        else:
            e('s_lshl_b32 s50, s28, 7')
            e(f's_add_u32 s50, s50, {FLAG_OFF+ZFL}')
            setflag(['s_lshl_b32 s30, s29, 3', 's_add_u32 s30, s30, s50'])
        lab('L_e1b')
        preB()
        e('s_cmp_lg_u32 s26, 4')
        e('s_cbranch_scc1 L_e2')
        e('v_min_u32 v5, 8, v2')
        e(f'v_lshlrev_b32 v5, {7 if opt["fl"] else 3}, v5')
        e('s_mov_b32 s51, 0')
        lab('L_zpoll')
        e('buffer_load_dwordx2 v[8:9], v5, s[20:23], s50 offen sc1')
        e('s_add_u32 s51, s51, 1')
        e('s_cmp_gt_u32 s51, 400000')
        e('s_cbranch_scc1 L_e2')
        e('s_waitcnt vmcnt(0)')
        e('v_cmp_ne_u64 vcc, s[92:93], v[8:9]')
        e('s_cbranch_vccz L_e2')
        e('s_sleep 1')
        e('s_branch L_zpoll')
        lab('L_e2')
        e('s_barrier')
        stamp(9)
        for i in range(5):
            if i == 4:
                e('s_cmp_ge_u32 s26, 4')
                e('s_cbranch_scc1 L_e3')
            e(f's_add_u32 m0, s47, {SLOT + i*8192}')
            e('s_nop 0')
            e('buffer_load_dwordx4 v3, s[20:23], s46 offen sc1 lds')
            if i < 4: e('s_add_u32 s46, s46, 8192')
        lab('L_e3')
        e('s_waitcnt vmcnt(0) lgkmcnt(0)')
        e('s_barrier')
        stamp(10)
    if opt['stamps']: e('s_waitcnt lgkmcnt(0)')
    for J in range(14): e(f'ds_read_b32 v{16+J}, v4 offset:{J*1024}')
    for ks in range(5):
        if ks == 0: e('s_waitcnt lgkmcnt(10)')
        if ks == 1: e('s_waitcnt lgkmcnt(10)')
        if ks == 2: e('s_waitcnt lgkmcnt(6)')
        if ks == 3: e('s_waitcnt lgkmcnt(2)')
        if ks == 4: e('s_waitcnt lgkmcnt(0)')
        for T in range(9):
            r = 40 + 4*T
            cin = '0' if ks == 0 else vr(r)
            e(f'v_mfma_f32_16x16x32_bf16 {vr(r)}, v[{16+4*ks}:{16+4*ks+3}], {bf(T*5+ks)}, {cin}')
            if ks == 0 and T < 4: e(f'ds_read_b32 v{30+T}, v4 offset:{(14+T)*1024}')
    if opt['tr']:
        e('s_cmp_lt_u32 s26, 4')
        e('s_cbranch_scc1 L_ne3')
        e('s_barrier')
        lab('L_ne3')
    e('s_nop 7')
    e('s_nop 1')
    if opt['trip']:
        e('s_memrealtime s[66:67]')
        e('s_waitcnt lgkmcnt(0)')
        e('s_sub_u32 s66, s66, s64')
        e(f's_sub_u32 s66, s66, {opt["trip"]}')
        e(f's_cmp_lt_u32 s66, {opt["tlo"] - opt["trip"]}')
        e('s_cselect_b32 s66, 1.0, 0')
        e('s_cmp_eq_u32 s2, 100')
        e('s_cselect_b32 s66, s66, 0')
        e('v_add_f32 v40, s66, v40')
    if opt['fake']:
        e('s_cmp_ge_u32 s27, 126')
        e('s_cselect_b32 s45, 126, 0')
        e('s_sub_u32 s45, s27, s45')
        e('s_mul_i32 s45, s45, 36864')
        e('s_mul_i32 s44, s26, 4608')
        e('s_add_u32 s45, s45, s44')
        e('v_add_u32 v10, s45, v3')
        for r in range(4):
            d = 140 + 6*r
            A = lambda T: 40 + 4*T + r
            for h in range(4): e(f'v_cvt_pk_bf16_f32 v{d+h}, v{A(2*h)}, v{A(2*h+1)}')
            e(f'v_cvt_pk_bf16_f32 v{d+4}, v{A(8)}, v{A(8)}')
            e(f'buffer_store_dwordx4 v[{d}:{d+3}], v10, s[16:19], 0 offen offset:{r*1024}{OF[opt["of"]]}')
    else:
      for r in range(4):
          d = 140 + 6*r
          A = lambda T: 40 + 4*T + r
          for h in range(4): e(f'v_cvt_pk_bf16_f32 v{d+h}, v{A(2*h)}, v{A(2*h+1)}')
          e(f'v_cvt_pk_bf16_f32 v{d+4}, v{A(8)}, v{A(8)}')
          e(f'buffer_store_dwordx4 v[{d}:{d+3}], v10, s[16:19], 0 offen{OF[opt["of"]]}')
          e(f'buffer_store_short v{d+4}, v11, s[16:19], 0 offen offset:256{OF[opt["of2"]]}')
          if r < 3:
              e(f'v_add_u32 v10, {72*288}, v10')
              e(f'v_add_u32 v11, {72*288}, v11')
if opt['dead']:
    e('s_waitcnt vmcnt(0)')
    lab('L_dl')
    e('s_memrealtime s[66:67]')
    e('s_waitcnt lgkmcnt(0)')
    e('s_sub_u32 s66, s66, s64')
    e(f's_cmp_lt_u32 s66, {opt["dead"]}')
    e('s_cbranch_scc1 L_dl')
if opt['stamps']:
    e('s_waitcnt vmcnt(0)')
    stamp(11)
    e('s_waitcnt lgkmcnt(0)')
    e(f's_cmp_lg_u32 s26, {opt["sw"]}')
    e('s_cbranch_scc1 L_end')
    if opt['dbgst']:
        e(f's_cmp_lg_u32 s2, {opt["dbgst"]}')
        e('s_cbranch_scc1 L_end')
        e('s_load_dwordx2 s[56:57], s[0:1], 32')
        e('s_waitcnt lgkmcnt(0)')
        srd(16, 56, 57, 256)
        e('v_mov_b32 v1, 0')
        for i in range(1, 12):
            e(f's_sub_u32 s33, s{64+2*i}, s64')
            e('v_mov_b32 v4, s33')
            e(f'buffer_store_dword v4, v1, s[16:19], 0 offen offset:{4+4*i}')
        e('s_sub_u32 s33, s94, s90')
        e('v_mov_b32 v4, s33')
        e('buffer_store_dword v4, v1, s[16:19], 0 offen offset:56')
        e('s_branch L_end')
    e('s_mov_b32 s22, 0x10000000')
    e('s_lshl_b32 s33, s2, 7')
    e(f's_add_u32 s33, s33, {STAMP_OFF}')
    e('v_mov_b32 v1, s33')
    for i in range(6):
        for k in range(4): e(f'v_mov_b32 v{4+k}, s{64+4*i+k}')
        e(f'buffer_store_dwordx4 v[4:7], v1, s[20:23], 0 offen offset:{16*i}')
        e('s_nop 1')
lab('L_end')
e('s_endpgm')
out.extend(ool)
tail = f"""
.section .rodata,"a"
.p2align 6
.amdhsa_kernel {NAME}_kernel
  .amdhsa_next_free_vgpr 256
  .amdhsa_next_free_sgpr 100
  .amdhsa_accum_offset 256
  .amdhsa_group_segment_fixed_size 0
  .amdhsa_kernarg_size 48
  .amdhsa_user_sgpr_count 2
  .amdhsa_user_sgpr_kernarg_segment_ptr 1
  .amdhsa_system_sgpr_workgroup_id_x 1
.end_amdhsa_kernel
"""
open(sys.argv[1], 'w').write(hdr + '\n'.join(out) + '\n' + tail)
```

```python
import sys, struct
import numpy as np
from f44 import matrices, PTS
NAME = 'standalone__autoregressive_conv_wavenet__speech'
opt = dict(stamps=0, LA=26, smallfix=1, ldf=0, QS=28, prio=1, g1=5, g2=7, bst=0, nd0=7, wsp=5, f0=30, slp=1, cpf=3, sw=4, dly=0, pf=0, early=1, dbgst=0, rep=1, rstr=4352, pre=0, shr=1, agg=1, gslp=2, es=0, word=1, skx=0, skw=0, of=0, of2=0, gmap=1, trip=0, tlo=0, fast=0, sn32=0, lat=9, b1e=2, fslp=6, pad=0, mord=1, tdesc=0, tr=0, x1=24, full=1, fl=0, wso=0, dead=0, fake=0, t2=1, of3=2, dead2=0, pbe=0, zslp=1, inbox=0, warm=0, xpad=0)
for a in sys.argv[2:]:
    k, v = a.split('='); assert k in opt, k; opt[k] = int(v)
out = []
def e(s): out.append('    ' + s)
def lab(s): out.append(s + ':')
def c(s): out.append('    ; ' + s)
def fh(x): return '0x%08x' % struct.unpack('<I', struct.pack('<f', float(x)))[0]
AT, G, BT = matrices()
GS = G.copy()
for m in range(6): GS[m] *= PTS[m]**3
CH = np.zeros((3, 7))
for i in range(3):
    for m in range(6): CH[i][m] = PTS[m]**(i-3)
DCH = CH[:, :6] - CH[:, 1:7]
LOG2E = 1.4426950408889634
LDF = {0: '', 1: ' nt'}[opt['ldf']]
OF = {0:'', 1:' nt', 2:' sc1', 3:' sc0 sc1'}
PRF = {1: ' sc1', 2: '', 3: ' sc0 sc1'}.get(opt['pre'], '')
PF_ = {0: ' sc1', 1: ' sc0 sc1', 2: ' sc1 nt', 3: ' sc0 sc1 nt'}[opt['pf']]
XROWS = 2032
XS = XROWS*96
U_BYTES = 4*21*XS
WT_OFF = U_BYTES
WT_BYTES = 9*21*24576
Z_OFF = WT_OFF + WT_BYTES
Z_BYTES = 28*2*9*18*1024
FLAG_OFF = Z_OFF + Z_BYTES
REP = opt['rep']; RSTR = opt['rstr']; FA = REP*RSTR
ZFL = 5*FA
GOF = ZFL + 8192
AFL = (GOF + 8*4352 + 1023)//1024*1024
ZF2 = AFL + 32768
WO_OFF = FLAG_OFF + ZF2 + 32768
WS_USED = WO_OFF + 45*1024
STAMP_OFF = 268435456 - (1 << 20)
SLOT = 53248
XL = 2*SLOT + 8192
WL = SLOT
LDS_MAIN = 3*SLOT
OOB = 0x7f000000
hdr = f"""; Kernarg layout for this problem (48 bytes, ptrs only, base s[0:1]):
; Algorithm: the dilation-2 causal conv splits into 4 independent streams (batch, time parity); each is evaluated with an
; exact F(4,4) Toom-Cook reformulation (7 products of 8 taps per 4 outputs, points +-a,+-b,+-c,inf), fp32 accumulation.
; @launch grid=(252,1,1) block=(512,1,1) lds={LDS_MAIN}
.amdgcn_target "amdgcn-amd-amdhsa--gfx950"
.text
.globl {NAME}_kernel
.p2align 8
.type {NAME}_kernel,@function
{NAME}_kernel:
"""
def srd(d, lo, hi, nbytes):
    e(f's_mov_b32 s{d}, s{lo}')
    e(f's_and_b32 s{d+1}, s{hi}, 0xffff')
    e(f's_mov_b32 s{d+2}, {nbytes}')
    e(f's_mov_b32 s{d+3}, 0x00020000')
def vp(r): return f'v[{r}:{r+1}]'
def vr(r): return f'v[{r}:{r+3}]'
def pkfma(d, sc, a, b, nega=False):
    neg = ' neg_lo:[0,1,0] neg_hi:[0,1,0]' if nega else ''
    e(f'v_pk_fma_f32 {vp(d)}, s[{sc}:{sc+1}], {vp(a)}, {vp(b)}{neg}')
def pkadd(d, a, b, negb=False):
    neg = ' neg_lo:[0,1] neg_hi:[0,1]' if negb else ''
    e(f'v_pk_add_f32 {vp(d)}, {vp(a)}, {vp(b)}{neg}')
def sconst2(s, x):
    e(f's_mov_b32 s{s}, {fh(x)}'); e(f's_mov_b32 s{s+1}, {fh(x)}')
def stamp(i):
    if opt['stamps']: e(f's_memrealtime s[{64+2*i}:{65+2*i}]')
def PK(b, pm):
    n = pm*4 + b
    return 184 + 4*n if n < 18 else 16 + 4*(n-18)
PA = lambda b: 32 + b
def XOFF(s):
    if opt['xpad']: return (2400 + (6-2*s)*288) if s <= 3 else (14-2*s)*288
    return (12-2*s)*288
PT = 24

def gettag(name):
    lab(f'L_tag{name}')
    e('buffer_load_dwordx2 v[24:25], v37, s[16:19], 0 offen sc1')
    e('s_add_u32 s31, s31, 1')
    e('s_cmp_gt_u32 s31, 400000')
    e(f's_cbranch_scc1 L_tagd{name}')
    e('s_waitcnt vmcnt(0)')
    e('v_readfirstlane_b32 s92, v24')
    e('v_readfirstlane_b32 s93, v25')
    e('s_nop 3')
    e('s_cmp_eq_u32 s92, 0')
    e(f's_cbranch_scc1 L_tag{name}')
    lab(f'L_tagd{name}')
def setflag(pre, mask=1):
    for x in pre: e(x)
    e('v_mov_b32 v38, s92')
    e('v_mov_b32 v39, s93')
    e(f's_mov_b64 exec, {mask}')
    e('buffer_store_dwordx2 v[38:39], v37, s[20:23], s30 offen sc1')
    e('s_mov_b64 exec, -1')
def poll_issue(off):
    if off == 'A':
        e(f's_mov_b32 s30, {FLAG_OFF+AFL}')
        for k in range(4): e(f'buffer_load_dwordx2 {vp(PT+2*k)}, v{42+k}, s[20:23], s30 offen sc1')
        return
    e(f's_mov_b32 s30, {FLAG_OFF+off}')
    e(f'buffer_load_dwordx4 {vr(PT)}, v36, s[20:23], s30 offen{PF_}')
    e(f'buffer_load_dwordx4 {vr(PT+4)}, v36, s[20:23], s30 offen offset:16{PF_}')
def poll_check():
    e(f'v_cmp_ne_u64 vcc, s[92:93], {vp(PT)}')
    for k in range(1, 4):
        e(f'v_cmp_ne_u64 s[88:89], s[92:93], {vp(PT+2*k)}')
        e('s_or_b64 vcc, vcc, s[88:89]')
def poll(off, name, slp=None):
    e('s_mov_b32 s31, 0')
    lab(f'L_poll{name}')
    poll_issue(off)
    e('s_add_u32 s31, s31, 1')
    e('s_cmp_gt_u32 s31, 400000')
    e(f's_cbranch_scc1 L_pdone{name}')
    e('s_waitcnt vmcnt(0)')
    poll_check()
    e(f's_cbranch_scc0 L_pdone{name}')
    if opt['shr']: e('s_mov_b64 exec, vcc')
    e(f's_sleep {opt["slp"] if slp is None else slp}')
    e(f's_branch L_poll{name}')
    lab(f'L_pdone{name}')
    if opt['shr']: e('s_mov_b64 exec, -1')

e('s_cmp_ge_u32 s2, 252')
e('s_cbranch_scc1 L_end')
if opt['stamps']:
    for i in range(24): e(f's_mov_b32 s{64+i}, 0')
stamp(0)
if opt['trip'] or opt['dead']: e('s_memrealtime s[64:65]')
e('s_load_dwordx4 s[4:7], s[0:1], 0')
e('s_load_dwordx2 s[8:9], s[0:1], 16')
e('s_load_dwordx4 s[56:59], s[0:1], 32')
e('v_lshrrev_b32 v1, 6, v0')
e('v_and_b32 v2, 63, v0')
e('v_readfirstlane_b32 s26, v1')
if opt['cpf']:
    c('pull the kernel code towards L2 first (1 KB per participating wave)')
    e('s_getpc_b64 s[44:45]')
    lab('L_pc')
    if opt['cpf'] == 1:
        e('s_lshl_b32 s42, s2, 10')
        e('s_and_b32 s42, s42, 0x6000')
        e('v_lshlrev_b32 v102, 4, v0')
    elif opt['cpf'] == 2:
        e('s_lshl_b32 s42, s2, 7')
        e('s_and_b32 s42, s42, 0x7c00')
        e('v_lshlrev_b32 v102, 4, v2')
        e('v_lshl_add_u32 v102, v1, 20, v102')
    else:
        e('s_lshl_b32 s42, s2, 8')
        e('s_and_b32 s42, s42, 0x7800')
        e('v_lshlrev_b32 v102, 4, v0')
        e('v_lshrrev_b32 v103, 1, v1')
        e('v_lshl_add_u32 v102, v103, 20, v102')
    e('s_and_b32 s45, s45, 0xffff')
    e('s_mov_b32 s46, L_end-L_pc')
    e('s_mov_b32 s47, 0x00020000')
    e(f'buffer_load_dwordx4 {vr(180)}, v102, s[44:47], s42 offen')
else: e('s_nop 1')
def common():
    if opt['wso']:
        e(f's_add_u32 s58, s58, {opt["wso"] << 20}')
        e('s_addc_u32 s59, s59, 0')
    srd(20, 58, 59, WS_USED)
    srd(16, 56, 57, 256)
    e('s_mov_b32 s33, 0xffff0000')
    e('v_mov_b32 v37, 0')
    for b in range(4): e(f'v_mov_b32 v{PA(b)}, {OOB}')
    for b in range(4): e(f's_mov_b32 s{96+b}, {3*XS}')
    e('s_mov_b32 s31, 0')
    e('s_mov_b32 s92, 0')
    e('s_mov_b32 s93, 0')
    e('s_cmp_ge_u32 s2, 125')
    e(f's_cselect_b32 s50, {2*21*XS - 125*1536}, 0')
    e('s_mul_i32 s51, s2, 1536')
    e('s_add_u32 s50, s50, 768')
    e('s_add_u32 s50, s50, s51')
    e(f's_add_u32 s51, s50, {3*XS}')
    e(f's_mov_b32 s35, {XL + (0 if opt["xpad"] else 64)}')
e('s_lshr_b32 s28, s26, 1')
e('s_cmp_eq_u32 s28, 2')
e('s_cbranch_scc1 Lp_w')
def xaddr(su, va, vd):
    e(f's_lshl_b32 s28, s{su}, 6')
    e('v_add_u32 v3, s28, v2')
    e('v_mul_u32_u24 v4, 683, v3')
    e('v_lshrrev_b32 v4, 16, v4')
    e('v_mul_u32_u24 v5, 96, v4')
    e('v_sub_u32 v3, v3, v5')
    e(f'v_mul_u32_u24 v{va}, 43, v3')
    e(f'v_lshrrev_b32 v{va}, 8, v{va}')
    e(f'v_mul_u32_u24 v{va}, {(2400 if opt["xpad"] else 2304)-96}, v{va}')
    e(f'v_lshl_add_u32 v{va}, v3, 4, v{va}')
    e(f'v_add3_u32 v{va}, v{va}, v5, s35')
    e('v_cmp_le_u32 vcc, 3, v4')
    e(f'v_mul_u32_u24 v{vd}, {XS}, v4')
    e(f'v_mov_b32 v5, {18*XS}')
    e(f'v_lshl_add_u32 v{vd}, v3, 4, v{vd}')
    e('v_cndmask_b32 v5, 0, v5, vcc')
    e(f'v_add_u32 v{vd}, v{vd}, v5')
def xpair(va, vd):
    for s in range(6): e(f'ds_read_b128 {vr(120+4*s)}, v{va} offset:{XOFF(s)}')
    for dw in range(4):
        for s in range(6):
            if dw == 0: e(f's_waitcnt lgkmcnt({5-s})')
            e(f'v_lshlrev_b32 v{148+2*s}, 16, v{120+4*s+dw}')
            e(f'v_and_b32 v{149+2*s}, s33, v{120+4*s+dw}')
        D = lambda s: 148+2*s
        pkfma(162, 46, D(2), D(4))
        pkfma(164, 46, D(3), D(5))
        pkfma(162, 44, D(0), 162)
        pkfma(164, 44, D(1), 164)
        pkfma(166, 48, 162, 164)
        pkfma(168, 48, 162, 164, nega=True)
        e(f'v_cvt_pk_bf16_f32 v{172+dw}, v166, v167')
        e(f'v_cvt_pk_bf16_f32 v{176+dw}, v168, v169')
    e(f'buffer_store_dwordx4 v[172:175], v{vd}, s[20:23], s50 offen sc1')
    e(f'buffer_store_dwordx4 v[176:179], v{vd}, s[20:23], s51 offen sc1')
def xrest(va, b):
    for s in range(7): e(f'ds_read_b128 {vr(120+4*s)}, v{va} offset:{XOFF(s)}')
    for dw in range(4):
        for s in range(7):
            if dw == 0: e(f's_waitcnt lgkmcnt({6-s})')
            e(f'v_lshlrev_b32 v{148+2*s}, 16, v{120+4*s+dw}')
            e(f'v_and_b32 v{149+2*s}, s33, v{120+4*s+dw}')
        D = lambda s: 148+2*s
        for t in range(2):
            q0, q1, aa = 36+6*t, 38+6*t, 40+6*t
            pkfma(162, q1, D(2), D(4))
            pkfma(164, q1, D(3), D(5))
            pkfma(162, q0, D(0), 162)
            pkfma(164, q0, D(1), 164)
            pkfma(166, aa, 162, 164)
            pkfma(168, aa, 162, 164, nega=True)
            e(f'v_cvt_pk_bf16_f32 v{PK(b,2*t)+dw}, v166, v167')
            e(f'v_cvt_pk_bf16_f32 v{PK(b,2*t+1)+dw}, v168, v169')
        pkfma(162, 54, D(4), D(6))
        pkfma(162, 52, D(2), 162)
        pkfma(162, 48, D(0), 162)
        e(f'v_cvt_pk_bf16_f32 v{PK(b,4)+dw}, v162, v163')
for t in range(3):
    a = PTS[2*t]; q0 = BT[2*t][1]; q1 = BT[2*t][3]
    assert abs(BT[2*t][0] - a*q0) < 1e-12 and abs(BT[2*t][2] - a*q1) < 1e-12 and abs(BT[2*t][4]-a) < 1e-12
e('s_sub_u32 s27, s26, 2')
e('s_cmp_lt_u32 s26, 4')
e('s_cselect_b32 s27, s26, s27')
e('s_cmp_ge_u32 s2, 250')
e('s_cbranch_scc1 Lp_zero')
e('s_cmp_ge_u32 s2, 125')
e('s_cselect_b32 s24, 4608000, 0')
e('s_mul_i32 s28, s2, 36864')
e('s_sub_u32 s28, s28, s24')
if opt['xpad']:
    e('s_sub_u32 s28, s28, 2304')
    e('s_mul_i32 s29, s27, 768')
    e('s_add_u32 s28, s28, s29')
    e('s_cmp_ge_u32 s27, 3')
    e('s_cselect_b32 s30, 96, 0')
    e('s_add_u32 s29, s29, s30')
    e('v_lshlrev_b32 v6, 4, v2')
    e('v_add_u32 v6, s28, v6')
    e(f's_mov_b32 s14, {0 if opt["skx"] else 4608000}')
    e('s_mov_b32 s15, 0x00020000')
    e(f's_add_u32 m0, s29, {XL}')
    e('s_mov_b32 exec_hi, 0xffff')
    e('s_waitcnt lgkmcnt(0)')
    e('s_add_u32 s12, s4, s24'); e('s_addc_u32 s13, s5, 0')
    e('s_and_b32 s13, s13, 0xffff')
    for i in range(9):
        if i == 8:
            e('s_cmp_ge_u32 s27, 3')
            e('s_cbranch_scc1 Lp_xl0')
        e(f'buffer_load_dwordx4 v6, s[12:15], 0 offen{LDF} lds')
        if i < 8:
            e(f's_add_u32 m0, s29, {XL + (i+1)*4800}')
            e('v_add_u32 v6, 4608, v6')
    lab('Lp_xl0')
    e('s_mov_b32 exec_hi, -1')
else:
    e('s_sub_u32 s28, s28, 1792')
    e('s_lshl_b32 s29, s27, 10')
    e('s_add_u32 s28, s28, s29')
    e('v_lshlrev_b32 v6, 4, v2')
    e('v_add_u32 v6, s28, v6')
    e(f's_mov_b32 s14, {0 if opt["skx"] else 4608000}')
    e('s_mov_b32 s15, 0x00020000')
    e(f's_add_u32 m0, s29, {XL}')
    e('s_waitcnt lgkmcnt(0)')
    e('s_add_u32 s12, s4, s24'); e('s_addc_u32 s13, s5, 0')
    e('s_and_b32 s13, s13, 0xffff')
    for i in range(7):
        if i == 6:
            e('s_cmp_ge_u32 s27, 2')
            e('s_cbranch_scc1 Lp_xl')
        e(f'buffer_load_dwordx4 v6, s[12:15], 0 offen{LDF} lds')
        if i < 6:
            e(f's_add_u32 m0, s29, {XL + (i+1)*6144}')
            e('v_add_u32 v6, 6144, v6')
lab('Lp_xl')
common()
if opt['warm'] < 2:
    e('s_add_u32 s28, s2, s26')
    e('s_cmp_lg_u32 s28, 0')
    e('s_cbranch_scc1 Lp_x0')
    c('WG 0 wave 0 publishes the launch tag in d_debug')
    e('s_memrealtime s[92:93]')
    e('s_waitcnt lgkmcnt(0)')
    e('s_or_b32 s92, s92, 1')
    e('v_mov_b32 v38, s92')
    e('v_mov_b32 v39, s93')
    e('s_mov_b64 exec, 1')
    e('buffer_store_dwordx2 v[38:39], v37, s[16:19], 0 offen sc1')
    e('s_mov_b64 exec, -1')
lab('Lp_x0')
c('pass-1 units: wave0:8 wave1:4,5 wave2:0,1 wave3:2,3 wave6:6 wave7:7')
e('s_lshl_b32 s28, s26, 2')
e('s_lshr_b32 s30, 0x76002048, s28')
e('s_and_b32 s30, s30, 15')
xaddr(30, 6, 7)
e('s_add_u32 s30, s30, 1')
xaddr(30, 14, 15)
sconst2(44, BT[0][1]); sconst2(46, BT[0][3]); sconst2(48, PTS[0])
stamp(7)
e('s_waitcnt vmcnt(0)')
stamp(8)
e('s_barrier')
stamp(1)
e('s_cmp_lg_u32 s26, 0')
e('s_cbranch_scc1 Lp_x1')
e('buffer_load_dwordx2 v[24:25], v37, s[16:19], 0 offen sc1')
lab('Lp_x1')
xpair(6, 7)
e('s_bitcmp1_b32 0x0e, s26')
e('s_cbranch_scc0 Lp_x2')
xpair(14, 15)
lab('Lp_x2')
if opt['es']: stamp(9)
e('s_cmp_ge_u32 s26, 4')
e('s_cbranch_scc1 Lp_h67')
lab('Lp_s2')
if opt['fl']:
    e('v_lshlrev_b32 v9, 4, v2')
    e('s_lshl_b32 s30, s2, 7')
    e(f's_add_u32 s30, s30, {FLAG_OFF+AFL}')
else:
    e(f'v_mul_u32_u24 v9, {RSTR}, v2')
    e('s_lshl_b32 s30, s2, 3')
    e(f's_add_u32 s30, s30, {FLAG_OFF}')
e('s_cmp_lg_u32 s26, 0')
e('s_cbranch_scc1 Lp_s2b')
e('s_cmp_ge_u32 s2, 250')
e('s_cbranch_scc1 L_taga')
e('s_waitcnt vmcnt(2)')
e('v_readfirstlane_b32 s92, v24')
e('v_readfirstlane_b32 s93, v25')
e('s_nop 3')
e('s_cmp_lg_u32 s92, 0')
e('s_cbranch_scc1 L_tagda')
gettag('a')
e('v_mov_b32 v38, s92')
e('v_mov_b32 v39, s93')
e('v_mov_b32 v40, s92')
e('v_mov_b32 v41, s93')
lab('Lp_s2b')
e('s_waitcnt vmcnt(0)')
if opt['es']: stamp(10)
e('s_barrier')
e('s_cmp_lg_u32 s26, 0')
e('s_cbranch_scc1 L_pdone')
if opt['fl']:
    e('s_mov_b64 exec, 0xff')
    e('buffer_store_dwordx4 v[38:41], v9, s[20:23], s30 offen sc1')
else:
    e(f's_mov_b64 exec, {(1<<REP)-1}')
    e('buffer_store_dwordx2 v[38:39], v9, s[20:23], s30 offen sc1')
e('s_mov_b64 exec, -1')
stamp(2)
e('s_branch L_pdone')
def xcoef2():
    for t in (1, 2):
        sconst2(36+6*(t-1), BT[2*t][1]); sconst2(38+6*(t-1), BT[2*t][3]); sconst2(40+6*(t-1), PTS[2*t])
    sconst2(48, BT[6][0]); sconst2(52, BT[6][2]); sconst2(54, BT[6][4])
    e(f's_add_u32 s34, s50, {6*XS}')
lab('Lp_h67')
c('waves 6,7 pass 2: own unit (block 1), then units 2(w-6), 2(w-6)+1 (blocks 2,3)')
xcoef2()
e(f'v_add_u32 v{PA(1)}, s34, v7')
if opt['early']: xrest(6, 1)
if opt['es']: stamp(3)
e('s_waitcnt vmcnt(0)')
if opt['es']: stamp(10)
e('s_barrier')
if not opt['early']: xrest(6, 1)
e('s_sub_u32 s30, s26, 6')
e('s_lshl_b32 s30, s30, 1')
lab('Lp_x23')
xaddr(30, 6, 7)
e(f'v_add_u32 v{PA(2)}, s34, v7')
xrest(6, 2)
e('s_add_u32 s30, s30, 1')
lab('Lp_x3')
xaddr(30, 6, 7)
e(f'v_add_u32 v{PA(3)}, s34, v7')
xrest(6, 3)
e('s_branch L_pdone')
lab('Lp_zero')
c('WGs 250,251: zero the 8 leading rows of the 42 arrays of batch b')
e('s_waitcnt lgkmcnt(0)')
common()
e('s_sub_u32 s3, s2, 250')
e(f's_mul_i32 s30, s3, {2*21*XS}')
e('s_lshl_b32 s28, s27, 6')
e('v_add_u32 v3, s28, v2')
for k in range(4): e(f'v_mov_b32 v{16+k}, 0')
for i in range(6):
    e('v_mul_u32_u24 v4, 1366, v3')
    e('v_lshrrev_b32 v4, 16, v4')
    e('v_mul_u32_u24 v5, 48, v4')
    e('v_sub_u32 v5, v3, v5')
    e(f'v_mul_u32_u24 v4, {XS}, v4')
    e('v_lshl_add_u32 v4, v5, 4, v4')
    e('v_cmp_gt_u32 vcc, 2016, v3')
    e(f'v_mov_b32 v5, {OOB}')
    e('v_add_u32 v3, 384, v3')
    e('v_cndmask_b32 v4, v5, v4, vcc')
    e('buffer_store_dwordx4 v[16:19], v4, s[20:23], s30 offen sc1')
if opt['warm']:
    c('pre-write the flag lines used later (full lines) so that the 8-byte flag stores hit in the memory-side cache')
    e('s_mul_i32 s30, s3, 6')
    e('s_add_u32 s30, s30, s27')
    e('s_lshl_b32 s30, s30, 11')
    e(f's_add_u32 s30, s30, {FLAG_OFF+FA}')
    e('v_lshlrev_b32 v4, 4, v2')
    e('buffer_store_dwordx4 v[16:19], v4, s[20:23], s30 offen sc1')
    e('buffer_store_dwordx4 v[16:19], v4, s[20:23], s30 offen offset:1024 sc1')
    assert 24*1024 <= GOF - FA and 24*1024 >= ZFL + 3584 - FA
    e('v_lshrrev_b32 v4, 3, v2')
    e('v_mul_u32_u24 v4, 4352, v4')
    e('v_and_b32 v5, 7, v2')
    e('v_lshl_add_u32 v4, v5, 4, v4')
    e(f's_mov_b32 s30, {FLAG_OFF+GOF}')
    e('buffer_store_dwordx4 v[16:19], v4, s[20:23], s30 offen sc1')
e('s_barrier')
e('s_branch Lp_s2')
lab('Lp_w')
e('s_and_b32 s27, s26, 1')
c('w unit: XCD x = id&7 owns a contiguous range of units; local i = id>>3 < 9 takes two')
e('s_and_b32 s28, s2, 7')
e('s_lshr_b32 s29, s2, 3')
e('s_mul_i32 s3, s28, 40')
e('s_min_u32 s30, s28, 4')
e('s_add_u32 s3, s3, s30')
e('s_add_u32 s3, s3, s29')
e('s_min_u32 s30, s29, 9')
e('s_add_u32 s3, s3, s30')
e('s_add_u32 s3, s3, s27')
e('s_mul_i32 s30, s27, s29')
e('s_cmp_ge_u32 s30, 9')
e('s_cbranch_scc1 Lp_wo')
def posdec(P, ko, pos, kk, o, tmp):
    e(f'v_mul_u32_u24 v{ko}, 58255, v{P}')
    e(f'v_lshrrev_b32 v{ko}, 22, v{ko}')
    e(f'v_mul_u32_u24 v{tmp}, 72, v{ko}')
    e(f'v_sub_u32 v{pos}, v{P}, v{tmp}')
    e(f'v_mul_u32_u24 v{kk}, 3641, v{ko}')
    e(f'v_lshrrev_b32 v{kk}, 16, v{kk}')
    e(f'v_mul_u32_u24 v{tmp}, 18, v{kk}')
    e(f'v_sub_u32 v{o}, v{ko}, v{tmp}')
G_ = lambda r, ch: 40+2*(8*r+ch)
e('s_lshl_b32 s28, s3, 5')
e('v_and_b32 v3, 31, v2')
e('v_add_u32 v4, s28, v3')
posdec(4, 5, 6, 7, 8, 9)
e(f'v_mul_u32_u24 v7, {4*82944}, v7')
e('v_mul_u32_u24 v8, 4608, v8')
e('v_lshrrev_b32 v9, 5, v2')
e('v_mul_u32_u24 v10, 288, v9')
e('v_add3_u32 v7, v7, v8, v10')
e('v_lshl_add_u32 v6, v6, 2, v7')
e('s_waitcnt lgkmcnt(0)')
srd(12, 6, 7, 0 if opt['skw'] else 31*144*288*2)
if opt['word']:
    for r in range(1, 4): e(f's_mov_b32 s{36+r}, {82944*r}')
    for ch in range(8):
        for r in range(4):
            e(f'buffer_load_dword v{G_(r,ch)+1}, v6, s[12:15], {"s%d" % (36+r) if r else 0} offen offset:{ch*576}{LDF}')
else:
  for r in range(4):
    for ch in range(8):
        e(f'buffer_load_dword v{G_(r,ch)+1}, v6, s[12:15], 0 offen offset:{ch*576}{LDF}')
    if r < 3: e('v_add_u32 v6, 82944, v6')
stamp(7)
common()
e('s_lshl_b32 s29, s27, 14')
e(f's_add_u32 s29, s29, {WL}')
e('v_lshlrev_b32 v10, 6, v3')
e('v_lshl_add_u32 v10, v9, 5, v10')
e('v_add_u32 v10, s29, v10')
e('v_lshlrev_b32 v11, 4, v2')
e('v_add_u32 v11, s29, v11')
for h in range(2):
    e('v_lshrrev_b32 v4, 2, v2')
    e(f'v_add3_u32 v4, v4, s28, {16*h}')
    posdec(4, 5, 6, 7, 8, 9)
    e('v_mul_u32_u24 v4, 43, v8')
    e('v_lshrrev_b32 v4, 8, v4')
    e('v_mul_u32_u24 v5, 6, v4')
    e('v_sub_u32 v5, v8, v5')
    e('v_lshrrev_b32 v8, 1, v7')
    e('v_add_u32 v8, 8, v8')
    e('v_and_b32 v9, 1, v7')
    e('v_lshl_add_u32 v9, v9, 1, v5')
    e('v_subrev_u32 v9, 4, v9')
    e('v_cmp_le_u32 vcc, 4, v5')
    e('v_mul_u32_u24 v4, 24576, v4')
    e('v_lshrrev_b32 v14, 3, v6')
    e('v_cndmask_b32 v8, v7, v8, vcc')
    e('v_cndmask_b32 v9, v5, v9, vcc')
    e(f'v_mul_u32_u24 v14, {21*24576}, v14')
    e('v_bfe_u32 v15, v6, 2, 1')
    e('v_mul_u32_u24 v15, 12288, v15')
    e(f'v_add3_u32 v{12+h}, v4, v14, v15')
    e(f'v_lshl_add_u32 v{12+h}, v8, 10, v{12+h}')
    e(f'v_lshl_add_u32 v{12+h}, v9, 8, v{12+h}')
    e('v_and_b32 v4, 3, v6')
    e(f'v_lshl_add_u32 v{12+h}, v4, 6, v{12+h}')
    e('v_and_b32 v4, 3, v2')
    e(f'v_lshl_add_u32 v{12+h}, v4, 4, v{12+h}')
def wcoef(t):
    for r in range(4):
        assert abs(GS[2*t+1][r] - (1 if r % 2 == 0 else -1)*GS[2*t][r]) < 1e-12
        e(f'v_mul_f32 v{160+2*r}, {fh(GS[2*t][r])}, v14')
        e(f'v_mov_b32 v{161+2*r}, v{160+2*r}')
e(f's_mov_b32 s34, {WT_OFF}')
e('v_cmp_le_u32 vcc, 32, v2')
e(f'v_mov_b32 v14, {fh(-2*LOG2E)}')
e(f'v_mov_b32 v15, {fh(-LOG2E)}')
e('v_cndmask_b32 v14, v14, v15, vcc')
e('v_mov_b32 v15, v14')
wcoef(0)
stamp(8)
e('s_barrier')
stamp(1)
e('s_waitcnt vmcnt(0)')
stamp(2)
for k in range(32):
    e(f'v_lshlrev_b32 v{40+2*k}, 16, v{41+2*k}')
    e(f'v_and_b32 v{41+2*k}, s33, v{41+2*k}')
e('s_mov_b32 s53, 0')
lab('Lp_wloop')
for dw in range(4):
    for c2 in range(2):
        ch = 2*dw+c2
        E, O = 104+4*c2, 106+4*c2
        e(f'v_pk_mul_f32 {vp(E)}, {vp(160)}, {vp(G_(0,ch))}')
        e(f'v_pk_mul_f32 {vp(O)}, {vp(162)}, {vp(G_(1,ch))}')
        e(f'v_pk_fma_f32 {vp(E)}, {vp(164)}, {vp(G_(2,ch))}, {vp(E)}')
        e(f'v_pk_fma_f32 {vp(O)}, {vp(166)}, {vp(G_(3,ch))}, {vp(O)}')
        pkadd(112+4*c2, O, E)
        pkadd(114+4*c2, E, O, negb=True)
    for sgn in range(2):
        for n in range(2):
            e(f'v_cvt_pk_bf16_f32 v{120+8*sgn+4*n+dw}, v{112+2*sgn+n}, v{116+2*sgn+n}')
for sgn in range(2):
    for n in range(2):
        e(f'ds_write_b128 v10, {vr(120+8*sgn+4*n)} offset:{sgn*2048 + n*16}')
e('s_add_u32 s53, s53, 1')
e('s_waitcnt lgkmcnt(0)')
e('v_add_u32 v10, 4096, v10')
e('s_cmp_eq_u32 s53, 3')
e('s_cbranch_scc1 Lp_w3')
e('s_cmp_eq_u32 s53, 1')
e('s_cbranch_scc1 Lp_w1')
wcoef(2)
if opt['early']:
    if opt['es']: stamp(3)
    e('s_waitcnt vmcnt(0)')
    if opt['es']: stamp(10)
    e('s_barrier')
e('s_branch Lp_wloop')
lab('Lp_w1')
for k in range(4): e(f'ds_read_b128 {vr(136+4*k)}, v11 offset:{k*1024}')
for k in range(4):
    e(f's_waitcnt lgkmcnt({3-k})')
    e(f'buffer_store_dwordx4 {vr(136+4*k)}, v{12+k%2}, s[20:23], s34 offen sc1')
    if k % 2 == 1: e(f's_add_u32 s34, s34, {3*24576}')
if opt['es']: stamp(9)
wcoef(1)
if not opt['early']:
    e('s_waitcnt vmcnt(0)')
    e('s_barrier')
e('s_branch Lp_wloop')
lab('Lp_w3')
for ch in range(8): e(f'v_pk_mul_f32 {vp(G_(3,ch))}, {vp(G_(3,ch))}, v[14:15]')
for n in range(2):
    for dw in range(4):
        e(f'v_cvt_pk_bf16_f32 v{120+4*n+dw}, v{G_(3,2*dw)+n}, v{G_(3,2*dw+1)+n}')
    e(f'ds_write_b128 v10, {vr(120+4*n)} offset:{n*16}')
e('s_waitcnt lgkmcnt(0)')
for k in range(10):
    e(f'ds_read_b128 {vr(PK(k % 2, k//2))}, v11 offset:{4096 + k*1024}')
e(f'v_add_u32 v{PA(0)}, s34, v12')
e(f'v_add_u32 v{PA(1)}, s34, v13')
e(f's_mov_b32 s96, {3*24576}')
e(f's_mov_b32 s97, {3*24576}')
e('s_waitcnt lgkmcnt(0)')
lab('Lp_wx')
c('then x pass 2: wave 4: unit 8 (block 3) ; wave 5: units 4,5 (blocks 2,3)')
e('s_cmp_ge_u32 s2, 250')
e('s_cbranch_scc1 L_pdone')
xcoef2()
e('s_mov_b32 s30, 8')
e('s_cmp_eq_u32 s26, 4')
e('s_cbranch_scc1 Lp_x3')
e('s_mov_b32 s30, 4')
e('s_branch Lp_x23')
lab('Lp_wo')
e('s_waitcnt lgkmcnt(0)')
common()
e('s_sub_u32 s3, s2, 72')
e('s_cmp_ge_u32 s3, 45')
e('s_cbranch_scc1 Lp_wo2')
srd(12, 8, 9, 144*144*2)
e('s_mul_i32 s28, s3, 13108')
e('s_lshr_b32 s28, s28, 16')
e('s_mul_i32 s29, s28, 5')
e('s_sub_u32 s29, s3, s29')
e('v_and_b32 v7, 15, v2')
e('v_lshrrev_b32 v8, 4, v2')
e('s_cmp_eq_u32 s28, 8')
e('s_cselect_b32 s30, 1, 4')
e('s_cselect_b32 s34, 256, 0')
e('s_cselect_b32 s28, 0, s28')
e('s_lshl_b32 s28, s28, 1')
e('s_add_u32 s34, s34, s28')
e(f's_mul_i32 s29, s29, {32*288}')
e('s_add_u32 s34, s34, s29')
e('v_lshlrev_b32 v9, s30, v7')
e('v_mul_u32_u24 v14, 576, v8')
e('v_add3_u32 v14, v14, v9, s34')
for d in range(4):
    e(f'buffer_load_ushort v{40+2*d}, v14, s[12:15], 0 offen')
    e(f'buffer_load_ushort v{41+2*d}, v14, s[12:15], 0 offen offset:288')
    if d < 3: e('v_add_u32 v14, 2304, v14')
e('s_lshl_b32 s3, s3, 10')
e(f's_add_u32 s3, s3, {WO_OFF}')
e('v_lshlrev_b32 v1, 4, v2')
e('s_barrier')
e('s_waitcnt vmcnt(0)')
for d in range(4):
    e(f'v_lshl_or_b32 v{48+d}, v{41+2*d}, 16, v{40+2*d}')
e('buffer_store_dwordx4 v[48:51], v1, s[20:23], s3 offen sc1')
e('s_waitcnt vmcnt(0)')
e('s_barrier')
e('s_branch Lp_wx')
lab('Lp_wo2')
if opt['warm'] == 2:
    e('s_cmp_lg_u32 s2, 200')
    e('s_cbranch_scc1 Lp_wo3')
    for k in range(4): e(f'v_mov_b32 v{40+k}, 0')
    e('v_lshlrev_b32 v4, 4, v2')
    e(f's_mov_b32 s30, {FLAG_OFF}')
    e('buffer_store_dwordx4 v[40:43], v4, s[20:23], s30 offen sc1')
    e('buffer_store_dwordx4 v[40:43], v4, s[20:23], s30 offen offset:1024 sc1')
    e('s_memrealtime s[92:93]')
    e('s_waitcnt lgkmcnt(0)')
    e('s_or_b32 s92, s92, 1')
    e('v_mov_b32 v38, s92')
    e('v_mov_b32 v39, s93')
    e('s_waitcnt vmcnt(0)')
    e('s_mov_b64 exec, 1')
    e('buffer_store_dwordx2 v[38:39], v37, s[16:19], 0 offen sc1')
    e('s_mov_b64 exec, -1')
    lab('Lp_wo3')
e('s_barrier')
e('s_barrier')
e('s_branch Lp_wx')

def M(t): return 12 + 4*t
def MD(t): return 48 + 4*t
def FR(k): return vr(84 + 4*k)
lab('L_pdone')
e('v_lshlrev_b32 v101, 4, v2')
e('v_min_u32 v36, 62, v2')
e('v_lshlrev_b32 v36, 5, v36')
e(f's_and_b32 s30, s2, {REP-1}')
e(f's_mul_i32 s30, s30, {RSTR}')
e('v_add_u32 v36, s30, v36')
e(f'v_mul_u32_u24 v12, {RSTR}, v2')
c('unit = base[xcd] + (id>>3)')
e('s_and_b32 s25, s2, 7')
e('s_lshr_b32 s24, s2, 3')
e('s_mul_i32 s27, s25, 31')
e('s_min_u32 s28, s25, 4')
e('s_add_u32 s27, s27, s28')
e('s_add_u32 s27, s27, s24')
e('s_mul_i32 s28, s27, 7282')
e('s_lshr_b32 s28, s28, 16')
e('s_mul_i32 s29, s28, 9')
e('s_sub_u32 s29, s27, s29')
e('s_and_b32 s24, s26, 3')
e('s_lshr_b32 s32, s24, 1')
e('s_and_b32 s33, s24, 1')
e('s_mul_i32 s34, s24, 7168')
e('s_mul_i32 s35, s24, 6144')
c('z soffset s62')
e('s_lshl_b32 s62, s28, 1')
e('s_add_u32 s62, s62, s32')
e(f's_mul_i32 s62, s62, {9*18*1024}')
e('s_lshl_b32 s63, s29, 1')
e('s_add_u32 s63, s63, s33')
e(f's_lshl_b32 s63, s63, {8 if opt["t2"] else 10}')
e('s_add_u32 s62, s62, s63')
e(f's_add_u32 s62, s62, {Z_OFF}')
if opt['gmap']:
    c('g = (b*7+gg)*2 + p')
    e('s_lshr_b32 s38, s28, 1')
    e('s_and_b32 s30, s28, 1')
    e('s_cmp_ge_u32 s38, 7')
    e('s_cselect_b32 s36, 7, 0')
    e('s_cselect_b32 s37, 2, 0')
    e('s_sub_u32 s38, s38, s36')
    e('s_add_u32 s30, s30, s37')
else:
    e('s_mul_i32 s30, s28, 9363')
    e('s_lshr_b32 s30, s30, 16')
    e('s_mul_i32 s38, s30, 7')
    e('s_sub_u32 s38, s28, s38')
e(f's_mul_i32 s36, s30, {21*XS}')
e('s_mul_i32 s37, s38, 27648')
e('s_add_u32 s36, s36, s37')
e('s_add_u32 s36, s36, s34')
e(f's_mul_i32 s37, s29, {21*24576}')
e('s_add_u32 s37, s37, s35')
e(f's_add_u32 s37, s37, {WT_OFF}')
c('last row group of a stream: do not fetch the never-written padding rows (KB 26 lanes >= 16, KB 27): v6, v7 = voffsets for those two chunks')
e('s_cmp_eq_u32 s38, 6')
e('s_cselect_b32 s60, 16, 64')
e('s_cselect_b32 s61, 0, 64')
e(f'v_mov_b32 v8, {OOB}')
e('v_cmp_gt_u32 vcc, s60, v2')
e('v_cmp_gt_u32 s[88:89], s61, v2')
e('s_nop 0')
e('v_cndmask_b32 v6, v8, v101, vcc')
e('v_cndmask_b32 v7, v8, v101, s[88:89]')
e('s_cmp_ge_u32 s26, 4')
e('s_cbranch_scc1 L_helper')
e('s_cmp_lg_u32 s26, 0')
e('s_cbranch_scc1 L_c13')
c('wave 0: wait for all A flags, then load the whole phase 0 tile')
if opt['agg']:
    e('s_cmp_lg_u32 s2, 0')
    e('s_cbranch_scc1 L_gow')
if opt['dly']: e(f's_sleep {opt["dly"]}')
if opt['fl']:
    for k in range(4):
        e(f'v_add_u32 v{42+k}, {64*k}, v2')
        e(f'v_min_u32 v{42+k}, 251, v{42+k}')
        e(f'v_lshlrev_b32 v{42+k}, 7, v{42+k}')
    e('v_lshrrev_b32 v46, 3, v2')
    e('v_mul_u32_u24 v46, 4352, v46')
    e('v_and_b32 v47, 7, v2')
    e('v_lshl_add_u32 v46, v47, 4, v46')
poll('A' if opt['fl'] else 0, 'A')
if opt['agg']:
    c('WG 0 saw all A flags: release everybody through 8 go words')
    e(f's_mov_b32 s30, {FLAG_OFF+GOF}')
    if opt['fl']:
        e('buffer_store_dwordx4 v[38:41], v46, s[20:23], s30 offen sc1')
    else:
        e('v_mul_u32_u24 v9, 4352, v2')
        e('s_mov_b64 exec, 0xff')
        e('buffer_store_dwordx2 v[38:39], v9, s[20:23], s30 offen sc1')
        e('s_mov_b64 exec, -1')
    e('s_branch L_god')
    lab('L_gow')
    e('s_mul_i32 s30, s25, 4352')
    e(f's_add_u32 s30, s30, {FLAG_OFF+GOF}')
    e('s_mov_b32 s31, 0')
    e('s_mov_b64 exec, 1')
    lab('L_gol')
    e('buffer_load_dwordx2 v[24:25], v37, s[20:23], s30 offen sc1')
    e('s_add_u32 s31, s31, 1')
    e('s_cmp_gt_u32 s31, 800000')
    e('s_cbranch_scc1 L_gox')
    e('s_waitcnt vmcnt(0)')
    e('v_cmp_ne_u64 vcc, s[92:93], v[24:25]')
    e('s_cbranch_vccz L_gox')
    e(f's_sleep {opt["gslp"]}')
    e('s_branch L_gol')
    lab('L_gox')
    e('s_mov_b64 exec, -1')
    lab('L_god')
stamp(3)
for k in range(52):
    if k % 4 == 0:
        e(f's_mov_b32 m0, {k*1024}')
        e(f's_add_u32 s30, s36, {k*1024}' if k < 28 else f's_add_u32 s30, s37, {(k-28)*1024}')
    e(f'buffer_load_dwordx4 v{ {26: 6, 27: 7}.get(k, 101) }, s[20:23], s30 offen offset:{(k%4)*1024} sc1 lds')
lab('L_c13')
e('s_barrier')
if opt['prio']: e(f's_setprio {opt["prio"]}')
e('v_and_b32 v124, 15, v2')
e('v_lshrrev_b32 v125, 4, v2')
e('v_mul_u32_u24 v126, 864, v124')
e('s_mul_i32 s38, s32, 13824')
e('v_add_u32 v126, s38, v126')
e('v_lshl_add_u32 v2, v125, 4, v126')
e('v_lshrrev_b32 v127, 1, v125')
e('v_mul_u32_u24 v127, 96, v127')
e('v_sub_u32 v127, v126, v127')
e('v_and_b32 v128, 1, v125')
e('v_lshl_add_u32 v127, v128, 4, v127')
e('v_add_u32 v5, 160, v127')
e('s_mul_i32 s38, s33, 12288')
e('s_add_u32 s38, s38, 28672')
e('v_add_u32 v8, s38, v101')
for s in (1, 2):
    e(f'v_add_u32 v{2+s}, {s*SLOT}, v2')
    e(f'v_add_u32 v{5+s}, {s*SLOT}, v5')
    e(f'v_add_u32 v{8+s}, {s*SLOT}, v8')
if opt['sn32']: e('v_lshrrev_b32 v101, 2, v101')
e(f's_add_u32 s38, s34, {2*SLOT}')
e('v_add_u32 v1, s38, v101')
e(f's_add_u32 s38, s35, {2*SLOT+28672}')
e('v_add_u32 v11, s38, v101')
for r in range(48, 84): e(f'v_mov_b32 v{r}, 0')

frags = []; mf = []
if opt['mord']:
    for t in range(9):
        for kk in range(7, -1, -1): mf.append((t, ('W', kk), ('X', t-kk)))
    for t in (range(8, -1, -1) if opt['tdesc'] else range(9)):
        for pp in (range(4) if opt['tdesc'] else range(3, -1, -1)): mf.append((t, ('WT', pp), ('XT', t-2*pp)))
else:
  for tp in range(-7, 9):
    for kk in range(min(7, 8-tp), max(0, -tp)-1, -1):
        mf.append((tp+kk, ('W', kk), ('X', tp)))
  for tp in range(-6, 9):
    for pp in range(3, -1, -1):
        if 0 <= tp+2*pp <= 8: mf.append((tp+2*pp, ('WT', pp), ('XT', tp)))
assert len(mf) == 108
fu = {}
for s, (t, wk, xk) in enumerate(mf):
    for k in (xk, wk):
        if k not in fu: fu[k] = s; frags.append(k)
assert len(frags) == 43
fidx = {k: i for i, k in enumerate(frags)}
LA = opt['LA']; BAR = 108 - LA; ELAST = BAR - 6
iss = [(-LA + (k*(ELAST+LA))//42) for k in range(43)]
if opt['mord']:
    iss = [-LA + (k*(LA-2))//16 for k in range(17)] + [1 + (k*(ELAST-1))//25 for k in range(26)]
    lu = {}
    for s, (t, wk, xk) in enumerate(mf): lu[wk] = s; lu[xk] = s
    for k in range(43): assert iss[k] + 108 > lu[frags[k]] + 1, (k, iss[k], lu[frags[k]])
for k in range(43): assert iss[k] <= fu[frags[k]] - 8, (k, iss[k], fu[frags[k]])
def rd(k, slot):
    kind, i = frags[k]
    if kind == 'X': return f'ds_read_b128 {FR(k)}, v{2+slot} offset:{(i+8)*96}'
    if kind == 'XT': return f'ds_read_b128 {FR(k)}, v{5+slot} offset:{(i+7)*96}'
    if kind == 'W': return f'ds_read_b128 {FR(k)}, v{8+slot} offset:{i*1024}'
    return f'ds_read_b128 {FR(k)}, v{8+slot} offset:{(8+i)*1024}'
npre = sum(1 for x in iss if x < 0)
first_touch = {}; last_touch = {}
for s, (t, wk, xk) in enumerate(mf):
    first_touch.setdefault(t, s); last_touch[t] = s
def snapw(t):
    if opt['sn32']:
        t, r = divmod(t, 4)
        return f'ds_write_b32 v1, v{MD(t)+r} offset:{t*1024+r*256}' if t < 7 else f'ds_write_b32 v11, v{MD(t)+r} offset:{(t-7)*1024+r*256}'
    return f'ds_write_b128 v1, {vr(MD(t))} offset:{t*1024}' if t < 7 else f'ds_write_b128 v11, {vr(MD(t))} offset:{(t-7)*1024}'
QS = opt['QS']
ext = [[] for _ in range(324)]
for ph in range(3):
    for k in range(43):
        ext[(ph*108 + iss[k]) % 324].append(('rd', k, ph))
used = [len(x) for x in ext]
lastw = 0
if opt['sn32']:
    for n in range(36):
        pos = max(216 + last_touch[n//4] + 8, lastw + 1)
        lastw = pos
        assert pos >= 216 + BAR and pos < 324 + QS - 2, pos
        ext[pos % 324].append(('wr', n, 0))
else:
  for t in sorted(range(9), key=lambda t: last_touch[t]):
    pos = max(216 + last_touch[t] + 8, lastw + opt['wsp'], 216 + BAR + 1)
    while used[pos % 324]: pos += 1
    lastw = pos
    used[pos % 324] += 1
    assert pos >= 216 + BAR and pos < 324 + QS - 2
    ext[pos % 324].append(('wr', t, 0))
e('s_waitcnt vmcnt(0)')
stamp(4)
e('s_barrier')
stamp(5)
if opt['dbgst']: e('s_memtime s[90:91]')
for k in range(npre): e(rd(k, 0))
e('s_mov_b32 s39, 7')
e('s_waitcnt lgkmcnt(0)')
out.append('.p2align 6')
for _ in range(opt['pad']): e('s_nop 0')
lab('L_loop')
seq = 0; rseq = {}; covered = -1; wseq = -1; sslot = []
for it in range(2):
    emit = e if it == 1 else (lambda s: None)
    for ph in range(3):
        if it == 1: c(f'======== phase {ph}')
        for s, (t, wk, xk) in enumerate(mf):
            if s == BAR:
                emit('s_waitcnt lgkmcnt(0)')
                emit('s_barrier')
                covered = seq - 1
            if ph == 0 and s == QS:
                if wseq > covered:
                    emit(f's_waitcnt lgkmcnt({min(15, seq-1-wseq)})')
                    covered = max(covered, seq - 1 - min(15, seq-1-wseq))
                emit('s_barrier')
            need = max(rseq.get((ph, fidx[wk]), -1), rseq.get((ph, fidx[xk]), -1))
            if need > covered:
                now = it*324 + ph*108 + s
                recent = sum(1 for x in sslot if x >= now - opt['lat'])
                allow = min(seq - 1 - need, recent, 15)
                emit(f's_waitcnt lgkmcnt({allow})')
                covered = seq - 1 - allow
            cin = vr(MD(t)) if (ph == 0 and first_touch[t] == s) else vr(M(t))
            dst = vr(MD(t)) if (ph == 2 and last_touch[t] == s) else vr(M(t))
            emit(f'v_mfma_f32_16x16x32_bf16 {dst}, {FR(fidx[wk])}, {FR(fidx[xk])}, {cin}')
            for x in ext[ph*108+s]:
                if x[0] == 'rd':
                    emit(rd(x[1], x[2])); rseq[(x[2], x[1])] = seq; seq += 1; sslot.append(it*324 + ph*108 + s)
                else:
                    emit(snapw(x[1])); wseq = seq; seq += 1; sslot.append(it*324 + ph*108 + s)
            if ph == 2 and s == 104: emit('s_sub_u32 s39, s39, 1')
            if ph == 2 and s == 105: emit('s_cmp_lg_u32 s39, 0')
e('s_cbranch_scc1 L_loop')
stamp(6)
if opt['dbgst']: e('s_memtime s[94:95]')
c('---- compute-wave epilogue: gate y3 = MD')
e('s_waitcnt lgkmcnt(0)')
if opt['tr']: e('s_barrier')
def gate_consts():
    e(f's_mov_b32 s46, {fh(-0.6931471805599453)}')
    e(f's_mov_b32 s42, {fh(2*LOG2E*2**-12)}')
    e('s_mov_b32 s43, 0x41f00000')
def gate(a, r, dst, sp):
    L = []
    L.append(f'v_min_f32 v{r}, s43, v{a}')
    L.append(f'v_min_f32 v{r+1}, s43, v{a+1}')
    L.append(f'v_exp_f32 v{a+2}, v{a+2}')
    L.append(f'v_exp_f32 v{a+3}, v{a+3}')
    L.append(f'v_exp_f32 v{r}, v{r}')
    L.append(f'v_exp_f32 v{r+1}, v{r+1}')
    if opt['smallfix']:
        L.append(f'v_cmp_gt_f32 s[{sp}:{sp+1}], s42, abs(v{a})')
        L.append(f'v_cmp_gt_f32 s[{sp+2}:{sp+3}], s42, abs(v{a+1})')
    L.append(f'v_add_f32 v{r+2}, 1.0, v{r}')
    L.append(f'v_add_f32 v{r+3}, 1.0, v{r+1}')
    if opt['smallfix']:
        L.append(f'v_mul_f32 v{a}, s46, v{a}')
        L.append(f'v_mul_f32 v{a+1}, s46, v{a+1}')
    L.append(f'v_fmac_f32 v{r+2}, v{r+2}, v{a+2}')
    L.append(f'v_fmac_f32 v{r+3}, v{r+3}, v{a+3}')
    L.append(f'v_sub_f32 v{r}, 1.0, v{r}')
    L.append(f'v_sub_f32 v{r+1}, 1.0, v{r+1}')
    L.append(f'v_rcp_f32 v{r+2}, v{r+2}')
    L.append(f'v_rcp_f32 v{r+3}, v{r+3}')
    if opt['smallfix']:
        L.append(f'v_cndmask_b32 v{r}, v{r}, v{a}, s[{sp}:{sp+1}]')
        L.append(f'v_cndmask_b32 v{r+1}, v{r+1}, v{a+1}, s[{sp+2}:{sp+3}]')
    L.append(f'v_mul_f32 v{r}, v{r}, v{r+2}')
    L.append(f'v_mul_f32 v{r+1}, v{r+1}, v{r+3}')
    L.append(f'v_cvt_pk_bf16_f32 v{dst}, v{r}, v{r+1}')
    return L
ool = []
def gate_check(As, tm, name):
    for k, a in enumerate(As):
        if k == 0:
            e(f'v_min_f32 v{tm}, abs(v{a}), abs(v{a+1})')
            e(f'v_max_f32 v{tm+1}, v{a}, v{a+1}')
        else:
            e(f'v_min3_f32 v{tm}, abs(v{a}), abs(v{a+1}), v{tm}')
            e(f'v_max3_f32 v{tm+1}, v{a}, v{a+1}, v{tm+1}')
    e(f'v_cmp_gt_f32 s[44:45], s42, v{tm}')
    e(f'v_cmp_lt_f32 vcc, s43, v{tm+1}')
    e(f's_cbranch_vccnz L_cl{name}')
    lab(f'L_clr{name}')
    L = [f'L_cl{name}:']
    for a in As:
        L += [f'    v_min_f32 v{a}, s43, v{a}', f'    v_min_f32 v{a+1}, s43, v{a+1}']
    L.append(f'    s_branch L_clr{name}')
    ool.extend(L)
def gate_fast(a, r, dst, name):
    e(f'v_exp_f32 v{r}, v{a}')
    e(f'v_exp_f32 v{r+1}, v{a+1}')
    e(f'v_exp_f32 v{a+2}, v{a+2}')
    e(f'v_exp_f32 v{a+3}, v{a+3}')
    e(f'v_add_f32 v{r+2}, 1.0, v{r}')
    e(f'v_add_f32 v{r+3}, 1.0, v{r+1}')
    e('s_cmp_lg_u64 s[44:45], 0')
    e(f'v_fmac_f32 v{r+2}, v{r+2}, v{a+2}')
    e(f'v_fmac_f32 v{r+3}, v{r+3}, v{a+3}')
    e(f'v_sub_f32 v{r}, 1.0, v{r}')
    e(f'v_sub_f32 v{r+1}, 1.0, v{r+1}')
    e(f'v_rcp_f32 v{r+2}, v{r+2}')
    e(f'v_rcp_f32 v{r+3}, v{r+3}')
    e(f's_cbranch_scc1 L_sm{name}')
    lab(f'L_smr{name}')
    e(f'v_mul_f32 v{r}, v{r}, v{r+2}')
    e(f'v_mul_f32 v{r+1}, v{r+1}, v{r+3}')
    e(f'v_cvt_pk_bf16_f32 v{dst}, v{r}, v{r+1}')
    ool.extend([f'L_sm{name}:',
        f'    v_cmp_gt_f32 s[48:49], s42, abs(v{a})',
        f'    v_cmp_gt_f32 s[50:51], s42, abs(v{a+1})',
        f'    v_mul_f32 v{a}, s46, v{a}',
        f'    v_mul_f32 v{a+1}, s46, v{a+1}',
        f'    v_cndmask_b32 v{r}, v{r}, v{a}, s[48:49]',
        f'    v_cndmask_b32 v{r+1}, v{r+1}, v{a+1}, s[50:51]',
        f'    s_branch L_smr{name}'])
gate_consts()
if opt['t2']:
    e('v_and_b32 v100, 63, v0')
    e('v_lshlrev_b32 v101, 2, v100')
    for t in range(9):
        e(f's_add_u32 s63, s62, {(t*4+3)*4608}')
        for x in gate(MD(t), 104 + 4*(t % 2), 112 + t, 48): e(x)
        e(f'buffer_store_dword v{112+t}, v101, s[20:23], s63 offen sc1')
else:
    e('v_and_b32 v100, 63, v0')
    e('v_lshlrev_b32 v101, 4, v100')
    e(f's_add_u32 s63, s62, {7*18432}')
    if opt['full']:
        e('s_lshl_b32 s40, s24, 10')
        e(f's_add_u32 s40, s40, {SLOT}')
        e('v_add_u32 v102, s40, v101')
        e('ds_read_b128 v[124:127], v102')
    for t in range(9):
        if opt['fast']:
            if t % 3 == 0: gate_check([MD(t), MD(t+1), MD(t+2)], 102, f'c{t}')
            gate_fast(MD(t), 104 + 4*(t % 2), 112 + t, f'c{t}')
        else:
            if opt['full'] and t == 8: e('s_waitcnt lgkmcnt(0)')
            for x in gate(MD(t), 104 + 4*(t % 2), (127 if opt['full'] and t == 8 else 112 + t), 48): e(x)
        if t in (3, 7):
            e(f'buffer_store_dwordx4 v[{112+t-3}:{112+t}], v101, s[20:23], s63 offen sc1')
            e('s_add_u32 s63, s63, 18432')
    e(f's_add_u32 s63, s62, {6*18432}')
    if opt['full']: e('buffer_store_dwordx4 v[124:127], v101, s[20:23], s63 offen sc1')
    else: e('buffer_store_dword v120, v101, s[20:23], s63 offen offset:12 sc1')
e('s_branch L_fin')
def hbar():
    if opt['bst']:
        e('s_memtime s[64:65]')
        e('s_barrier')
        e('s_memtime s[66:67]')
        e('s_waitcnt lgkmcnt(0)')
        e('s_mov_b32 m0, s68'); e('s_nop 0')
        e('v_writelane_b32 v14, s64, m0')
        e('v_writelane_b32 v15, s66, m0')
        e('s_add_u32 s68, s68, 1')
    else: e('s_barrier')
lab('L_helper')
if opt['bst']: e('s_mov_b32 s68, 0')
def Y(i, t): return 40 + 4*(i*9+t)
def SN(t): return 148 + 4*t
e('v_mov_b32 v3, v101')
e('v_add_u32 v13, 4096, v101')
e('v_add_u32 v6, 4096, v6')
e('v_add_u32 v7, 4096, v7')
e('s_cmp_eq_u32 s26, 7')
e('s_cselect_b64 vcc, -1, 0')
e('v_cndmask_b32 v6, v13, v6, vcc')
e('v_cndmask_b32 v7, v13, v7, vcc')
if opt['sn32']: e('v_lshrrev_b32 v101, 2, v101')
e(f's_add_u32 s38, s34, {2*SLOT}')
e('v_add_u32 v4, s38, v101')
e(f's_add_u32 s38, s35, {2*SLOT+28672}')
e('v_add_u32 v5, s38, v101')
e('s_cmp_eq_u32 s26, 4')
e('s_cbranch_scc1 L_h4')
e(f'v_mov_b32 v36, {OOB}')
e(f'v_mov_b32 v12, {OOB}')
e('s_branch L_h5')
lab('L_h4')
e('s_mov_b32 s31, 0')
gettag('h')
lab('L_h5')
e('v_mov_b32 v38, s92')
e('v_mov_b32 v39, s93')
def dma_list(slot):
    L = []
    for k in range(7):
        pre = [f's_add_u32 m0, s34, {slot*SLOT + (k//4)*4096}', 's_nop 0']
        L.append(pre + [f'buffer_load_dwordx4 v{(3,3,3,3,13,6,7)[k]}, s[20:23], s36 offen offset:{(k%4)*1024} sc1 lds'] + ([f's_add_u32 s36, s36, {XS}'] if k == 6 else []))
    for k in range(6):
        pre = [f's_add_u32 m0, s35, {slot*SLOT + 28672 + (k//4)*4096}', 's_nop 0']
        L.append(pre + [f'buffer_load_dwordx4 v{3 if k < 4 else 13}, s[20:23], s37 offen offset:{(k%4)*1024} sc1 lds'] + (['s_add_u32 s37, s37, 24576'] if k == 5 else []))
    return L
def pst(b, pm):
    return [f'buffer_store_dwordx4 {vr(PK(b,pm))}, v{PA(b)}, s[20:23], 0 offen sc1', f'v_add_u32 v{PA(b)}, s{96+b}, v{PA(b)}']
def weave(dl, sl):
    res = []; n = len(sl); m = len(dl)
    for i in range(m):
        res.append(dl[i])
        for k in range((i*n)//m, ((i+1)*n)//m): res.append(sl[k])
    return res
def mix(dl, vl):
    n = len(dl)
    for i, d in enumerate(dl):
        for x in d: e(x)
        for x in vl[(i*len(vl))//n:((i+1)*len(vl))//n]: e(x)
    if n == 0:
        for x in vl: e(x)
def nvm(dl, after):
    return len(dl) - 1 - after
def snapr():
    if opt['sn32']:
        for t in range(9):
            for h in range(2):
                o = (t if t < 7 else t-7)*4 + 2*h
                e(f'ds_read2st64_b32 {vp(SN(t)+2*h)}, v{4 if t < 7 else 5} offset0:{o} offset1:{o+1}')
            if t == 6: e('s_waitcnt lgkmcnt(4)')
        e('s_waitcnt lgkmcnt(0)')
        return
    for t in range(9):
        e(f'ds_read_b128 {vr(SN(t))}, v4 offset:{t*1024}' if t < 7 else f'ds_read_b128 {vr(SN(t))}, v5 offset:{(t-7)*1024}')
    e('s_waitcnt lgkmcnt(0)')
FM = [f'v_fmac_f32 v{Y(i,t)+r}, s{40+i}, v{SN(t)+r}' for t in range(9) for i in range(3) for r in range(4)]
def FMm(m):
    L = []
    for t in range(9):
        for i in range(3):
            if DCH[i][m] == 0: continue
            first = all(DCH[i][mm] == 0 for mm in range(m))
            for r in range(4): L.append(f'{"v_mul_f32" if first else "v_fmac_f32"} v{Y(i,t)+r}, s{40+i}, v{SN(t)+r}')
    return L
e(f's_add_u32 s36, s36, {XS}')
e('s_add_u32 s37, s37, 24576')
e('s_barrier')
mix(dma_list(1), [])
if opt['b1e'] == 1: mix([pst(b, 0) for b in range(4)], [])
c('coefficient table: s40.. = 3 x 6, consumed from the front')
for m in range(6):
    for i in range(3): e(f's_mov_b32 s{40+3*m+i}, {fh(DCH[i][m])}')
hbar()
if opt['b1e'] == 2: mix([pst(b, 0) for b in range(4)], [])
ND0 = opt['nd0']
def only4(name, fn):
    e('s_cmp_lg_u32 s26, 4')
    e(f's_cbranch_scc1 L_o4{name}')
    fn()
    lab(f'L_o4{name}')
def hflag(off):
    e('s_lshl_b32 s30, s2, 3')
    e(f's_add_u32 s30, s30, {FLAG_OFF+off}')
    e(f's_mov_b64 exec, {(1<<REP)-1}')
    e('buffer_store_dwordx2 v[38:39], v12, s[20:23], s30 offen sc1')
    e('s_mov_b64 exec, -1')
def hiter(name, fm, sa=(), sc_=(), flag0=None, flag1=None, chk=None):
    if chk is not None: poll_issue(chk)
    for g_ in sa:
        for x in g_: e(x)
    hbar()
    if fm: snapr()
    D2 = dma_list(2)
    mix(D2[:ND0], [])
    e(f's_waitcnt vmcnt({ND0 + len(sa)})')
    if chk is not None:
        def f():
            poll_check()
            e(f's_cbranch_scc0 L_o4c{name}')
            poll(chk, name, opt['fslp'])
        only4('c'+name, f)
    hbar()
    if flag0 is not None: hflag(flag0)
    mix(D2[ND0:] + dma_list(0), fm[:40])
    e('s_waitcnt vmcnt(13)')
    hbar()
    if flag1 is not None: hflag(flag1)
    mix(list(sc_) + dma_list(1), fm[40:])
    if fm:
        for k in range(15): e(f's_mov_b32 s{40+k}, s{43+k}')
    e(f's_waitcnt vmcnt({13 + len(sc_) + (1 if flag1 is not None else 0)})')
    hbar()
ST = [pst(b, pm) for pm in range(5) for b in range(4)]
if opt['b1e']: hiter('0', [], sc_=ST[4:8], flag0=1*FA)
else: hiter('0', [], sa=ST[0:4], sc_=ST[4:8], flag1=1*FA)
hiter('1', FMm(0), sa=ST[8:12], sc_=ST[12:16], flag0=2*FA, flag1=3*FA, chk=1*FA)
hiter('2', FMm(1), sa=ST[16:20], flag1=4*FA, chk=2*FA)
hiter('3', FMm(2), chk=3*FA)
hiter('4', FMm(3), chk=4*FA)
hiter('5', FMm(4))
c('---- last product')
if opt['sw'] == 4: stamp(6)
hbar()
snapr()
F0 = opt['f0']
D2 = dma_list(2)
mix(D2[:ND0], FM[:F0])
e(f's_waitcnt vmcnt({ND0})')
hbar()
WD = []
for k in range(12):
    WD.append([f's_add_u32 m0, s61, {(k//4)*4096}', 's_nop 0', f'buffer_load_dwordx4 v3, s[20:23], s60 offen offset:{(k%4)*1024} sc1 lds'] + (['s_add_u32 s60, s60, 4096'] if k % 4 == 3 else []))
e('s_mul_i32 s61, s24, 12288')
e(f's_add_u32 s60, s61, {WO_OFF}')
mix(D2[ND0:] + WD, FM[F0:])
gate_consts()
e('s_mov_b32 s63, s62')
nst = [0]
if opt['t2']:
    opt['full'] = 0
    e('v_lshrrev_b32 v9, 2, v3')
HORD = ([24, 25, 26] + list(range(24))) if opt['full'] else list(range(27))
def hgate(n0, n1):
    for n in HORD[n0:n1]:
        t, i = divmod(n, 3)
        if opt['fast']:
            if i == 0: gate_check([Y(0,t), Y(1,t), Y(2,t)], 192, f'h{n}')
            gate_fast(Y(i, t), 184 + 4*(n % 2), 200 + n, f'h{n}')
        else:
            for x in gate(Y(i, t), 184 + 4*(n % 2), 200 + n, 48): e(x)
        if opt['t2']:
            e(f's_add_u32 s63, s62, {(t*4+i)*4608}')
            e(f'buffer_store_dword v{200+n}, v9, s[20:23], s63 offen sc1'); nst[0] += 1
            continue
        if n % 4 == 3:
            e(f'buffer_store_dwordx4 v[{200+n-3}:{200+n}], v3, s[20:23], s63 offen sc1')
            e('s_add_u32 s63, s63, 18432'); nst[0] += 1
        if n == 26 and not opt['full']:
            e('buffer_store_dwordx3 v[224:226], v3, s[20:23], s63 offen sc1'); nst[0] += 1
g1 = opt['g1']; g2 = min(27, g1 + opt['g2'])
hgate(0, g1)
e(f's_waitcnt vmcnt({nst[0]+12})')
hbar()
if opt['full']:
    assert g1 >= 3
    e('s_lshl_b32 s40, s24, 10')
    e(f's_add_u32 s40, s40, {SLOT}')
    e('v_add_u32 v8, s40, v3')
    e('ds_write_b128 v8, v[224:227]')
hgate(g1, g2)
if opt['full']: e('s_waitcnt lgkmcnt(0)')
if opt['pbe']: e(f's_waitcnt vmcnt({nst[0]})')
hbar()
if opt['tr']:
    hgate(g2, opt['x1'])
    e(f's_waitcnt vmcnt({nst[0]-5})')
    e('s_barrier')
    e('s_lshl_b32 s30, s28, 7')
    e('s_lshl_b32 s31, s29, 3')
    e('s_add_u32 s30, s30, s31')
    e(f's_add_u32 s30, s30, {FLAG_OFF+ZFL}')
    e('s_mov_b64 exec, 1')
    e('buffer_store_dwordx2 v[38:39], v12, s[20:23], s30 offen sc1')
    e('s_mov_b64 exec, -1')
    hgate(opt['x1'], 27)
else:
    hgate(g2, 27)
if opt['bst']:
    e('s_memtime s[64:65]')
    e('s_waitcnt lgkmcnt(0)')
    e('s_mov_b32 m0, s68'); e('s_nop 0')
    e('v_writelane_b32 v14, s64, m0')
    e('v_writelane_b32 v15, s64, m0')
    e('s_cmp_lg_u32 s26, 4')
    e('s_cbranch_scc1 L_fin')
    e('s_mov_b32 s22, 0x10000000')
    e('s_lshl_b32 s33, s2, 9')
    e(f's_add_u32 s33, s33, {STAMP_OFF + (128<<10)*4}')
    e('v_lshrrev_b32 v1, 1, v3')
    e('buffer_store_dwordx2 v[14:15], v1, s[20:23], s33 offen')
if opt['t2']:
    assert opt['gmap']
    lab('L_fin')
    e('s_setprio 0')
    e('s_load_dwordx2 s[6:7], s[0:1], 24')
    if not opt['es']: stamp(7)
    e('v_and_b32 v2, 63, v0')
    e('v_lshlrev_b32 v3, 4, v2')
    e('v_lshlrev_b32 v4, 2, v2')
    e('v_add_u32 v6, 4096, v4')
    e('v_mov_b32 v37, 0')
    c('pair u = g>>1 ; this WG consumes (rh = g&1, tau = cg) of both parity groups ; wave = (parity, phase)')
    e('s_lshr_b32 s40, s28, 1')
    e('s_and_b32 s41, s28, 1')
    e('s_lshr_b32 s42, s26, 2')
    e('s_lshl_b32 s43, s40, 2')
    e('s_lshl_b32 s44, s42, 1')
    e('s_add_u32 s43, s43, s44')
    e('s_add_u32 s43, s43, s41')
    e('s_mul_i32 s43, s43, 9')
    e('s_add_u32 s43, s43, s29')
    e('s_lshl_b32 s43, s43, 2')
    e('s_add_u32 s43, s43, s24')
    e('s_mul_i32 s46, s43, 4608')
    e(f's_add_u32 s46, s46, {Z_OFF}')
    e('s_cmp_ge_u32 s40, 7')
    e('s_cselect_b32 s37, 4608000, 0')
    e('s_cselect_b32 s36, 7, 0')
    e('s_sub_u32 s32, s40, s36')
    e('s_lshl_b32 s32, s32, 1')
    e('s_add_u32 s32, s32, s41')
    e('s_mul_i32 s32, s32, 144')
    e('s_add_u32 s32, s32, s29')
    e('s_mul_i32 s33, s26, 18')
    e('s_add_u32 s32, s32, s33')
    e('s_mul_i32 s45, s32, 2304')
    e('s_waitcnt lgkmcnt(0)')
    e('s_add_u32 s6, s6, s37'); e('s_addc_u32 s7, s7, 0')
    srd(16, 6, 7, 4608000)
    c('LDS write addresses: j*2304 + row8*288 + col*16 / +256+col*2 ; j = 4*(lane>>4)+r')
    e('s_lshl_b32 s47, s24, 1')
    e('s_sub_u32 s47, s42, s47')
    e('s_add_u32 s47, s47, 6')
    e('s_mul_i32 s47, s47, 288')
    e(f's_add_u32 s47, s47, {SLOT}')
    e('v_lshrrev_b32 v7, 4, v2')
    e('v_mul_u32_u24 v7, 9216, v7')
    e('v_add_u32 v7, s47, v7')
    e('v_and_b32 v8, 15, v2')
    e('v_lshl_add_u32 v11, v8, 1, v7')
    e('v_lshl_add_u32 v10, v8, 4, v7')
    e('s_mul_i32 s48, s26, 4608')
    e(f's_add_u32 s48, s48, {SLOT}')
    e('v_add_u32 v12, s48, v3')
    e('v_add_u32 v13, s45, v3')
    e('v_add_u32 v14, 18432, v13')
    e('v_cmp_gt_u32 vcc, 16, v2')
    e('v_cmp_gt_u32 s[48:49], 32, v2')
    e('v_add_u32 v36, 4096, v14')
    e(f'v_mov_b32 v5, {OOB}')
    e('v_cndmask_b32 v15, v14, v13, vcc')
    e('v_cndmask_b32 v36, v5, v36, s[48:49]')
    e('v_mov_b32 v34, 0')
    e('v_mov_b32 v35, 0')
    e('s_mul_i32 s30, s41, 9')
    e('s_add_u32 s30, s30, s29')
    e('s_lshl_b32 s30, s30, 3')
    if opt['inbox']:
        c('every WG has a private 256-B inbox; a producer drops its tag into the 18 inboxes of its pair')
        e('s_mul_i32 s50, s40, 4608')
        e('s_add_u32 s30, s30, s50')
        e(f's_add_u32 s30, s30, {FLAG_OFF+AFL}')
        e('s_lshl_b32 s50, s27, 8')
        e(f's_add_u32 s50, s50, {FLAG_OFF+AFL}')
        e('v_lshlrev_b32 v37, 8, v2')
    else:
        e('s_lshl_b32 s50, s40, 8')
        e(f's_add_u32 s50, s50, {FLAG_OFF+ZFL}')
        e('s_add_u32 s30, s30, s50')
    def bf(f): return vr(76 + 4*f)
    def preB():
        for f in range(45):
            e(f'ds_read_b128 {bf(f)}, v3 offset:{f*1024}')
            if f % 12 == 11: e('s_waitcnt lgkmcnt(4)')
    e('v_min_u32 v5, 17, v2')
    e('v_lshlrev_b32 v5, 3, v5')
    e('s_mov_b32 s51, 0')
    if opt['pbe']: preB()
    e('s_waitcnt vmcnt(0)')
    e('s_barrier')
    if not opt['es']: stamp(8)
    e('s_cmp_lg_u32 s26, 4')
    e('s_cbranch_scc1 L_e1b')
    setflag([], 0x3ffff if opt['inbox'] else 1)
    lab('L_e1b')
    if not opt['pbe']: preB()
    e('s_cmp_lg_u32 s26, 4')
    e('s_cbranch_scc1 L_e2')
    lab('L_zpoll')
    e('buffer_load_dwordx2 v[8:9], v5, s[20:23], s50 offen sc1')
    e('s_add_u32 s51, s51, 1')
    e('s_cmp_gt_u32 s51, 400000')
    e('s_cbranch_scc1 L_e2')
    e('s_waitcnt vmcnt(0)')
    e('v_cmp_ne_u64 vcc, s[92:93], v[8:9]')
    e('s_cbranch_vccz L_e2')
    if opt['zslp']: e(f's_sleep {opt["zslp"]}')
    e('s_branch L_zpoll')
    lab('L_e2')
    e('s_barrier')
    if not opt['es']: stamp(9)
    for J in range(18):
        e(f'buffer_load_dword v{16+J}, v{4 if J < 16 else 6}, s[20:23], s46 offen offset:{(J%16)*256} sc1')
    e('s_waitcnt lgkmcnt(0)')
    for ks in range(5):
        e(f's_waitcnt vmcnt({max(0, 18-4*(ks+1))})')
        if ks == 0 and not opt['es']: stamp(10)
        for T in range(9):
            r = 40 + 4*T
            cin = '0' if ks == 0 else vr(r)
            e(f'v_mfma_f32_16x16x32_bf16 {vr(r)}, v[{16+4*ks}:{16+4*ks+3}], {bf(T*5+ks)}, {cin}')
    e('s_nop 7')
    e('s_nop 1')
    for r in range(4):
        d = 140 + 6*r
        A = lambda T: 40 + 4*T + r
        for h in range(4): e(f'v_cvt_pk_bf16_f32 v{d+h}, v{A(2*h)}, v{A(2*h+1)}')
        e(f'v_cvt_pk_bf16_f32 v{d+4}, v{A(8)}, v{A(8)}')
        e(f'ds_write_b128 v10, v[{d}:{d+3}] offset:{r*2304}')
        e(f'ds_write_b16 v11, v{d+4} offset:{r*2304+256}')
    e('s_waitcnt lgkmcnt(0)')
    e('s_barrier')
    for n in range(5): e(f'ds_read_b128 {vr(76+4*n)}, v12 offset:{n*1024}')
    for n in range(5):
        e(f's_waitcnt lgkmcnt({4-n})')
        va, off = ((13, 0), (13, 1024), (15, 2048), (14, 3072), (36, 0))[n]
        e(f'buffer_store_dwordx4 {vr(76+4*n)}, v{va}, s[16:19], 0 offen offset:{off}{OF[opt["of3"]]}')
else:
    lab('L_fin')
    e('s_setprio 0')
    e('s_load_dwordx2 s[6:7], s[0:1], 24')
    if not opt['es']: stamp(7)
    e('v_and_b32 v2, 63, v0')
    e('v_lshlrev_b32 v3, 4, v2')
    e('v_mov_b32 v37, 0')
    e('s_lshr_b32 s41, s26, 2')
    if opt['tr']:
        c('helpers take an early set, compute waves a late one')
        e('s_mul_i32 s40, s28, 18')
        e('s_add_u32 s40, s40, s29')
        e('s_add_u32 s42, s41, 4')
        e('s_cmp_ge_u32 s29, s42')
        e('s_cselect_b32 s42, 4, 0')
        e('s_add_u32 s40, s40, s42')
        e('s_cmp_eq_u32 s41, 0')
        e('s_cselect_b32 s42, 5, 0')
        e('s_add_u32 s40, s40, s42')
    else:
        e('s_lshl_b32 s40, s27, 1')
        e('s_add_u32 s40, s40, s41')
    e('s_mul_i32 s30, s40, 7282')
    e('s_lshr_b32 s30, s30, 16')
    e('s_mul_i32 s31, s30, 9')
    e('s_sub_u32 s31, s40, s31')
    if opt['gmap']:
        e('s_lshr_b32 s32, s30, 2')
        e('s_bfe_u32 s38, s30, 0x10001')
        e('s_and_b32 s33, s30, 1')
        e('s_cmp_ge_u32 s32, 7')
        e('s_cselect_b32 s37, 4608000, 0')
        e('s_cselect_b32 s36, 7, 0')
        e('s_sub_u32 s32, s32, s36')
        e('s_lshl_b32 s32, s32, 1')
        e('s_add_u32 s33, s33, s32')
    else:
        e('s_mul_i32 s32, s30, 4682')
        e('s_lshr_b32 s32, s32, 16')
        e('s_mul_i32 s33, s32, 14')
        e('s_sub_u32 s33, s30, s33')
        e('s_lshr_b32 s37, s32, 1')
        e('s_and_b32 s38, s32, 1')
        e('s_mul_i32 s37, s37, 4608000')
    e('s_waitcnt lgkmcnt(0)')
    e('s_add_u32 s6, s6, s37'); e('s_addc_u32 s7, s7, 0')
    srd(16, 6, 7, 4608000)
    e('s_mul_i32 s39, s33, 1152')
    e('s_add_u32 s39, s39, s38')
    e('s_add_u32 s39, s39, 6')
    e('s_lshl_b32 s45, s31, 2')
    e('s_add_u32 s45, s45, s24')
    e('s_mul_i32 s42, s45, 171')
    e('s_lshr_b32 s42, s42, 9')
    e('s_mul_i32 s43, s42, 3')
    e('s_sub_u32 s43, s45, s43')
    e('s_sub_u32 s44, s45, 28')
    e('s_cmp_ge_u32 s45, 27')
    e('s_cselect_b32 s42, s44, s42')
    e('s_cselect_b32 s43, 3, s43')
    e('s_cmp_eq_u32 s45, 27')
    e('s_cselect_b32 s42, 8, s42')
    e('s_lshl_b32 s42, s42, 3')
    e('s_lshl_b32 s43, s43, 1')
    e('s_add_u32 s42, s42, s39')
    e('s_sub_u32 s42, s42, s43')
    e('s_mul_i32 s45, s42, 288')
    e('v_lshrrev_b32 v7, 4, v2')
    e(f'v_mul_u32_u24 v7, {4*72*288}, v7')
    e('v_add_u32 v7, s45, v7')
    e('v_and_b32 v8, 15, v2')
    e('v_lshl_add_u32 v11, v8, 1, v7')
    e('v_lshl_add_u32 v10, v8, 4, v7')
    def bf(f): return vr(76 + 4*f)
    def preB():
        for f in range(45):
            e(f'ds_read_b128 {bf(f)}, v3 offset:{f*1024}')
            if f % 12 == 11: e('s_waitcnt lgkmcnt(4)')
    def zpoll(name):
        e('v_min_u32 v5, 8, v2')
        e('v_lshlrev_b32 v5, 3, v5')
        e('s_mov_b32 s51, 0')
        lab(f'L_zp{name}')
        e('buffer_load_dwordx2 v[8:9], v5, s[20:23], s50 offen sc1')
        e('s_add_u32 s51, s51, 1')
        e('s_cmp_gt_u32 s51, 400000')
        e(f's_cbranch_scc1 L_zd{name}')
        e('s_waitcnt vmcnt(0)')
        e('v_cmp_ne_u64 vcc, s[92:93], v[8:9]')
        e(f's_cbranch_vccz L_zd{name}')
        e('s_sleep 1')
        e(f's_branch L_zp{name}')
        lab(f'L_zd{name}')
    if opt['tr']:
        e('s_mul_i32 s46, s40, 18432')
        e('s_lshl_b32 s47, s24, 10')
        e('s_add_u32 s46, s46, s47')
        e(f's_add_u32 s46, s46, {Z_OFF}')
        e('s_mul_i32 s48, s41, 18432')
        e(f's_add_u32 s48, s48, {SLOT}')
        e('s_add_u32 s47, s47, s48')
        e('s_lshl_b32 s49, s24, 2')
        e('s_add_u32 s48, s48, s49')
        e('v_add_u32 v4, s48, v3')
        e('v_mov_b32 v34, 0')
        e('v_mov_b32 v35, 0')
        e('s_lshl_b32 s50, s28, 7')
        e(f's_add_u32 s50, s50, {FLAG_OFF+ZFL}')
        def zdma(name):
            for i in range(5):
                if i == 4:
                    e('s_cmp_ge_u32 s24, 2')
                    e(f's_cbranch_scc1 L_zm{name}')
                e(f's_add_u32 m0, s47, {i*4096}')
                e('s_nop 0')
                e('buffer_load_dwordx4 v3, s[20:23], s46 offen sc1 lds')
                if i < 4: e('s_add_u32 s46, s46, 4096')
            lab(f'L_zm{name}')
        e('s_cmp_lt_u32 s26, 4')
        e('s_cbranch_scc1 L_fc')
        c('---- helpers: early set')
        e('s_cmp_lg_u32 s26, 4')
        e('s_cbranch_scc1 L_zdh')
        zpoll('h')
        e('s_waitcnt vmcnt(0)')
        e('s_barrier')
        if not opt['es']: stamp(8)
        zdma('h')
        preB()
        e('s_waitcnt vmcnt(0) lgkmcnt(0)')
        e('s_barrier')
        stamp(9)
        e('s_branch L_gemm')
        lab('L_fc')
        c('---- compute waves: late set')
        e('s_add_u32 s50, s50, 4096')
        e('s_waitcnt vmcnt(0)')
        e('s_barrier')
        if not opt['es']: stamp(8)
        e('s_cmp_lg_u32 s26, 0')
        e('s_cbranch_scc1 L_fc1')
        setflag(['s_lshl_b32 s30, s29, 3', 's_add_u32 s30, s30, s50'])
        lab('L_fc1')
        preB()
        e('s_cmp_lg_u32 s26, 0')
        e('s_cbranch_scc1 L_zdc')
        zpoll('c')
        e('s_barrier')
        stamp(9)
        zdma('c')
        e('s_waitcnt vmcnt(0) lgkmcnt(0)')
        e('s_barrier')
        stamp(10)
        lab('L_gemm')
    else:
        e('s_mul_i32 s46, s27, 36864')
        e('s_lshl_b32 s47, s26, 10')
        e('s_add_u32 s46, s46, s47')
        e(f's_add_u32 s46, s46, {Z_OFF}')
        e('s_mul_i32 s48, s41, 18432')
        e('s_lshl_b32 s49, s24, 2')
        e('s_add_u32 s48, s48, s49')
        e(f's_add_u32 s48, s48, {SLOT}')
        e('v_add_u32 v4, s48, v3')
        e('v_mov_b32 v34, 0')
        e('v_mov_b32 v35, 0')
        if opt['fl']:
            for k in range(4): e(f'v_mov_b32 v{36+k}, s{92+k%2}')
            e('s_mul_i32 s50, s28, 1152')
            e(f's_add_u32 s50, s50, {FLAG_OFF+ZF2}')
            e('s_lshl_b32 s30, s27, 7')
            e(f's_add_u32 s30, s30, {FLAG_OFF+ZF2}')
        e('s_waitcnt vmcnt(0)')
        e('s_barrier')
        if not opt['es']: stamp(8)
        def bf(f): return vr(76 + 4*f)
        def preB():
            for f in range(45):
                e(f'ds_read_b128 {bf(f)}, v3 offset:{f*1024}')
                if f % 12 == 11: e('s_waitcnt lgkmcnt(4)')
        e('s_cmp_lg_u32 s26, 4')
        e('s_cbranch_scc1 L_e1b')
        if opt['fl']:
            e('s_mov_b64 exec, 0xff')
            e('buffer_store_dwordx4 v[36:39], v3, s[20:23], s30 offen sc1')
            e('s_mov_b64 exec, -1')
        else:
            e('s_lshl_b32 s50, s28, 7')
            e(f's_add_u32 s50, s50, {FLAG_OFF+ZFL}')
            setflag(['s_lshl_b32 s30, s29, 3', 's_add_u32 s30, s30, s50'])
        lab('L_e1b')
        preB()
        e('s_cmp_lg_u32 s26, 4')
        e('s_cbranch_scc1 L_e2')
        e('v_min_u32 v5, 8, v2')
        e(f'v_lshlrev_b32 v5, {7 if opt["fl"] else 3}, v5')
        e('s_mov_b32 s51, 0')
        lab('L_zpoll')
        e('buffer_load_dwordx2 v[8:9], v5, s[20:23], s50 offen sc1')
        e('s_add_u32 s51, s51, 1')
        e('s_cmp_gt_u32 s51, 400000')
        e('s_cbranch_scc1 L_e2')
        e('s_waitcnt vmcnt(0)')
        e('v_cmp_ne_u64 vcc, s[92:93], v[8:9]')
        e('s_cbranch_vccz L_e2')
        e('s_sleep 1')
        e('s_branch L_zpoll')
        lab('L_e2')
        e('s_barrier')
        stamp(9)
        for i in range(5):
            if i == 4:
                e('s_cmp_ge_u32 s26, 4')
                e('s_cbranch_scc1 L_e3')
            e(f's_add_u32 m0, s47, {SLOT + i*8192}')
            e('s_nop 0')
            e('buffer_load_dwordx4 v3, s[20:23], s46 offen sc1 lds')
            if i < 4: e('s_add_u32 s46, s46, 8192')
        lab('L_e3')
        e('s_waitcnt vmcnt(0) lgkmcnt(0)')
        e('s_barrier')
        stamp(10)
    if opt['stamps']: e('s_waitcnt lgkmcnt(0)')
    for J in range(14): e(f'ds_read_b32 v{16+J}, v4 offset:{J*1024}')
    for ks in range(5):
        if ks == 0: e('s_waitcnt lgkmcnt(10)')
        if ks == 1: e('s_waitcnt lgkmcnt(10)')
        if ks == 2: e('s_waitcnt lgkmcnt(6)')
        if ks == 3: e('s_waitcnt lgkmcnt(2)')
        if ks == 4: e('s_waitcnt lgkmcnt(0)')
        for T in range(9):
            r = 40 + 4*T
            cin = '0' if ks == 0 else vr(r)
            e(f'v_mfma_f32_16x16x32_bf16 {vr(r)}, v[{16+4*ks}:{16+4*ks+3}], {bf(T*5+ks)}, {cin}')
            if ks == 0 and T < 4: e(f'ds_read_b32 v{30+T}, v4 offset:{(14+T)*1024}')
    if opt['tr']:
        e('s_cmp_lt_u32 s26, 4')
        e('s_cbranch_scc1 L_ne3')
        e('s_barrier')
        lab('L_ne3')
    e('s_nop 7')
    e('s_nop 1')
    if opt['trip']:
        e('s_memrealtime s[66:67]')
        e('s_waitcnt lgkmcnt(0)')
        e('s_sub_u32 s66, s66, s64')
        e(f's_sub_u32 s66, s66, {opt["trip"]}')
        e(f's_cmp_lt_u32 s66, {opt["tlo"] - opt["trip"]}')
        e('s_cselect_b32 s66, 1.0, 0')
        e('s_cmp_eq_u32 s2, 100')
        e('s_cselect_b32 s66, s66, 0')
        e('v_add_f32 v40, s66, v40')
    if opt['fake']:
        e('s_cmp_ge_u32 s27, 126')
        e('s_cselect_b32 s45, 126, 0')
        e('s_sub_u32 s45, s27, s45')
        e('s_mul_i32 s45, s45, 36864')
        e('s_mul_i32 s44, s26, 4608')
        e('s_add_u32 s45, s45, s44')
        e('v_add_u32 v10, s45, v3')
        for r in range(4):
            d = 140 + 6*r
            A = lambda T: 40 + 4*T + r
            for h in range(4): e(f'v_cvt_pk_bf16_f32 v{d+h}, v{A(2*h)}, v{A(2*h+1)}')
            e(f'v_cvt_pk_bf16_f32 v{d+4}, v{A(8)}, v{A(8)}')
            e(f'buffer_store_dwordx4 v[{d}:{d+3}], v10, s[16:19], 0 offen offset:{r*1024}{OF[opt["of"]]}')
    else:
      for r in range(4):
          d = 140 + 6*r
          A = lambda T: 40 + 4*T + r
          for h in range(4): e(f'v_cvt_pk_bf16_f32 v{d+h}, v{A(2*h)}, v{A(2*h+1)}')
          e(f'v_cvt_pk_bf16_f32 v{d+4}, v{A(8)}, v{A(8)}')
          e(f'buffer_store_dwordx4 v[{d}:{d+3}], v10, s[16:19], 0 offen{OF[opt["of"]]}')
          e(f'buffer_store_short v{d+4}, v11, s[16:19], 0 offen offset:256{OF[opt["of2"]]}')
          if r < 3:
              e(f'v_add_u32 v10, {72*288}, v10')
              e(f'v_add_u32 v11, {72*288}, v11')
if opt['dead2']:
    e('s_cmp_eq_u32 s92, 0')
    e('s_cbranch_scc1 L_end')
    lab('L_dl2')
    e('s_memrealtime s[66:67]')
    e('s_waitcnt lgkmcnt(0)')
    e('s_sub_u32 s66, s66, s92')
    e(f's_cmp_lt_u32 s66, {opt["dead2"]}')
    e('s_cbranch_scc1 L_dl2')
if opt['dead']:
    e('s_waitcnt vmcnt(0)')
    lab('L_dl')
    e('s_memrealtime s[66:67]')
    e('s_waitcnt lgkmcnt(0)')
    e('s_sub_u32 s66, s66, s64')
    e(f's_cmp_lt_u32 s66, {opt["dead"]}')
    e('s_cbranch_scc1 L_dl')
if opt['stamps']:
    e('s_waitcnt vmcnt(0)')
    stamp(11)
    e('s_waitcnt lgkmcnt(0)')
    e(f's_cmp_lg_u32 s26, {opt["sw"]}')
    e('s_cbranch_scc1 L_end')
    if opt['dbgst']:
        e(f's_cmp_lg_u32 s2, {opt["dbgst"]}')
        e('s_cbranch_scc1 L_end')
        e('s_load_dwordx2 s[56:57], s[0:1], 32')
        e('s_waitcnt lgkmcnt(0)')
        srd(16, 56, 57, 256)
        e('v_mov_b32 v1, 0')
        for i in range(1, 12):
            e(f's_sub_u32 s33, s{64+2*i}, s64')
            e('v_mov_b32 v4, s33')
            e(f'buffer_store_dword v4, v1, s[16:19], 0 offen offset:{4+4*i}')
        e('s_sub_u32 s33, s94, s90')
        e('v_mov_b32 v4, s33')
        e('buffer_store_dword v4, v1, s[16:19], 0 offen offset:56')
        e('s_branch L_end')
    e('s_mov_b32 s22, 0x10000000')
    e('s_lshl_b32 s33, s2, 7')
    e(f's_add_u32 s33, s33, {STAMP_OFF}')
    e('v_mov_b32 v1, s33')
    for i in range(6):
        for k in range(4): e(f'v_mov_b32 v{4+k}, s{64+4*i+k}')
        e(f'buffer_store_dwordx4 v[4:7], v1, s[20:23], 0 offen offset:{16*i}')
        e('s_nop 1')
lab('L_end')
e('s_endpgm')
out.extend(ool)
tail = f"""
.section .rodata,"a"
.p2align 6
.amdhsa_kernel {NAME}_kernel
  .amdhsa_next_free_vgpr 256
  .amdhsa_next_free_sgpr 100
  .amdhsa_accum_offset 256
  .amdhsa_group_segment_fixed_size 0
  .amdhsa_kernarg_size 48
  .amdhsa_user_sgpr_count 2
  .amdhsa_user_sgpr_kernarg_segment_ptr 1
  .amdhsa_system_sgpr_workgroup_id_x 1
.end_amdhsa_kernel
"""
open(sys.argv[1], 'w').write(hdr + '\n'.join(out) + '\n' + tail)
```

```python
import sys, struct
import numpy as np
from f44 import matrices, PTS
NAME = 'standalone__autoregressive_conv_wavenet__speech'
opt = dict(stamps=0, LA=26, smallfix=1, ldf=0, QS=28, prio=1, g1=5, g2=7, bst=0, nd0=7, wsp=5, f0=30, slp=1, cpf=3, sw=4, dly=0, pf=0, early=1, dbgst=0, rep=1, rstr=4352, pre=0, shr=1, agg=1, gslp=2, es=0, word=1, skx=0, skw=0, of=0, of2=0, gmap=1, trip=0, tlo=0, fast=0, sn32=0, lat=9, b1e=2, fslp=6, pad=0, mord=1, tdesc=0, tr=0, x1=24, full=1, fl=0, wso=0, dead=0, fake=0, t2=1, of3=2, dead2=0, pbe=0, zslp=1, inbox=0, warm=0, xpad=0, devt=0)
for a in sys.argv[2:]:
    k, v = a.split('='); assert k in opt, k; opt[k] = int(v)
out = []
def e(s): out.append('    ' + s)
def lab(s): out.append(s + ':')
def c(s): out.append('    ; ' + s)
def fh(x): return '0x%08x' % struct.unpack('<I', struct.pack('<f', float(x)))[0]
AT, G, BT = matrices()
GS = G.copy()
for m in range(6): GS[m] *= PTS[m]**3
CH = np.zeros((3, 7))
for i in range(3):
    for m in range(6): CH[i][m] = PTS[m]**(i-3)
DCH = CH[:, :6] - CH[:, 1:7]
LOG2E = 1.4426950408889634
LDF = {0: '', 1: ' nt'}[opt['ldf']]
OF = {0:'', 1:' nt', 2:' sc1', 3:' sc0 sc1'}
PRF = {1: ' sc1', 2: '', 3: ' sc0 sc1'}.get(opt['pre'], '')
PF_ = {0: ' sc1', 1: ' sc0 sc1', 2: ' sc1 nt', 3: ' sc0 sc1 nt'}[opt['pf']]
XROWS = 2032
XS = XROWS*96
U_BYTES = 4*21*XS
WT_OFF = U_BYTES
WT_BYTES = 9*21*24576
Z_OFF = WT_OFF + WT_BYTES
Z_BYTES = 28*2*9*18*1024
FLAG_OFF = Z_OFF + Z_BYTES
REP = opt['rep']; RSTR = opt['rstr']; FA = REP*RSTR
ZFL = 5*FA
GOF = ZFL + 8192
AFL = (GOF + 8*4352 + 1023)//1024*1024
ZF2 = AFL + 32768
WO_OFF = FLAG_OFF + ZF2 + 32768
WS_USED = WO_OFF + 45*1024
STAMP_OFF = 268435456 - (1 << 20)
SLOT = 53248
XL = 2*SLOT + 8192
WL = SLOT
LDS_MAIN = 3*SLOT
OOB = 0x7f000000
hdr = f"""; Kernarg layout for this problem (48 bytes, ptrs only, base s[0:1]):
; Algorithm: the dilation-2 causal conv splits into 4 independent streams (batch, time parity); each is evaluated with an
; exact F(4,4) Toom-Cook reformulation (7 products of 8 taps per 4 outputs, points +-a,+-b,+-c,inf), fp32 accumulation.
; @launch grid=(252,1,1) block=(512,1,1) lds={LDS_MAIN}
.amdgcn_target "amdgcn-amd-amdhsa--gfx950"
.text
.globl {NAME}_kernel
.p2align 8
.type {NAME}_kernel,@function
{NAME}_kernel:
"""
def srd(d, lo, hi, nbytes):
    e(f's_mov_b32 s{d}, s{lo}')
    e(f's_and_b32 s{d+1}, s{hi}, 0xffff')
    e(f's_mov_b32 s{d+2}, {nbytes}')
    e(f's_mov_b32 s{d+3}, 0x00020000')
def vp(r): return f'v[{r}:{r+1}]'
def vr(r): return f'v[{r}:{r+3}]'
def pkfma(d, sc, a, b, nega=False):
    neg = ' neg_lo:[0,1,0] neg_hi:[0,1,0]' if nega else ''
    e(f'v_pk_fma_f32 {vp(d)}, s[{sc}:{sc+1}], {vp(a)}, {vp(b)}{neg}')
def pkadd(d, a, b, negb=False):
    neg = ' neg_lo:[0,1] neg_hi:[0,1]' if negb else ''
    e(f'v_pk_add_f32 {vp(d)}, {vp(a)}, {vp(b)}{neg}')
def sconst2(s, x):
    e(f's_mov_b32 s{s}, {fh(x)}'); e(f's_mov_b32 s{s+1}, {fh(x)}')
def stamp(i):
    if opt['stamps']: e(f's_memrealtime s[{64+2*i}:{65+2*i}]')
    elif opt['devt'] == i and i: e('s_memrealtime s[64:65]')
def PK(b, pm):
    n = pm*4 + b
    return 184 + 4*n if n < 18 else 16 + 4*(n-18)
PA = lambda b: 32 + b
def XOFF(s):
    if opt['xpad']: return (2400 + (6-2*s)*288) if s <= 3 else (14-2*s)*288
    return (12-2*s)*288
PT = 24

def gettag(name):
    lab(f'L_tag{name}')
    e('buffer_load_dwordx2 v[24:25], v37, s[16:19], 0 offen sc1')
    e('s_add_u32 s31, s31, 1')
    e('s_cmp_gt_u32 s31, 400000')
    e(f's_cbranch_scc1 L_tagd{name}')
    e('s_waitcnt vmcnt(0)')
    e('v_readfirstlane_b32 s92, v24')
    e('v_readfirstlane_b32 s93, v25')
    e('s_nop 3')
    e('s_cmp_eq_u32 s92, 0')
    e(f's_cbranch_scc1 L_tag{name}')
    lab(f'L_tagd{name}')
def setflag(pre, mask=1):
    for x in pre: e(x)
    e('v_mov_b32 v38, s92')
    e('v_mov_b32 v39, s93')
    e(f's_mov_b64 exec, {mask}')
    e('buffer_store_dwordx2 v[38:39], v37, s[20:23], s30 offen sc1')
    e('s_mov_b64 exec, -1')
def poll_issue(off):
    if off == 'A':
        e(f's_mov_b32 s30, {FLAG_OFF+AFL}')
        for k in range(4): e(f'buffer_load_dwordx2 {vp(PT+2*k)}, v{42+k}, s[20:23], s30 offen sc1')
        return
    e(f's_mov_b32 s30, {FLAG_OFF+off}')
    e(f'buffer_load_dwordx4 {vr(PT)}, v36, s[20:23], s30 offen{PF_}')
    e(f'buffer_load_dwordx4 {vr(PT+4)}, v36, s[20:23], s30 offen offset:16{PF_}')
def poll_check():
    e(f'v_cmp_ne_u64 vcc, s[92:93], {vp(PT)}')
    for k in range(1, 4):
        e(f'v_cmp_ne_u64 s[88:89], s[92:93], {vp(PT+2*k)}')
        e('s_or_b64 vcc, vcc, s[88:89]')
def poll(off, name, slp=None):
    e('s_mov_b32 s31, 0')
    lab(f'L_poll{name}')
    poll_issue(off)
    e('s_add_u32 s31, s31, 1')
    e('s_cmp_gt_u32 s31, 400000')
    e(f's_cbranch_scc1 L_pdone{name}')
    e('s_waitcnt vmcnt(0)')
    poll_check()
    e(f's_cbranch_scc0 L_pdone{name}')
    if opt['shr']: e('s_mov_b64 exec, vcc')
    e(f's_sleep {opt["slp"] if slp is None else slp}')
    e(f's_branch L_poll{name}')
    lab(f'L_pdone{name}')
    if opt['shr']: e('s_mov_b64 exec, -1')

e('s_cmp_ge_u32 s2, 252')
e('s_cbranch_scc1 L_end')
if opt['stamps']:
    for i in range(24): e(f's_mov_b32 s{64+i}, 0')
stamp(0)
if opt['trip'] or opt['dead']: e('s_memrealtime s[64:65]')
e('s_load_dwordx4 s[4:7], s[0:1], 0')
e('s_load_dwordx2 s[8:9], s[0:1], 16')
e('s_load_dwordx4 s[56:59], s[0:1], 32')
e('v_lshrrev_b32 v1, 6, v0')
e('v_and_b32 v2, 63, v0')
e('v_readfirstlane_b32 s26, v1')
if opt['cpf']:
    c('pull the kernel code towards L2 first (1 KB per participating wave)')
    e('s_getpc_b64 s[44:45]')
    lab('L_pc')
    if opt['cpf'] == 1:
        e('s_lshl_b32 s42, s2, 10')
        e('s_and_b32 s42, s42, 0x6000')
        e('v_lshlrev_b32 v102, 4, v0')
    elif opt['cpf'] == 2:
        e('s_lshl_b32 s42, s2, 7')
        e('s_and_b32 s42, s42, 0x7c00')
        e('v_lshlrev_b32 v102, 4, v2')
        e('v_lshl_add_u32 v102, v1, 20, v102')
    else:
        e('s_lshl_b32 s42, s2, 8')
        e('s_and_b32 s42, s42, 0x7800')
        e('v_lshlrev_b32 v102, 4, v0')
        e('v_lshrrev_b32 v103, 1, v1')
        e('v_lshl_add_u32 v102, v103, 20, v102')
    e('s_and_b32 s45, s45, 0xffff')
    e('s_mov_b32 s46, L_end-L_pc')
    e('s_mov_b32 s47, 0x00020000')
    e(f'buffer_load_dwordx4 {vr(180)}, v102, s[44:47], s42 offen')
else: e('s_nop 1')
def common():
    if opt['wso']:
        e(f's_add_u32 s58, s58, {opt["wso"] << 20}')
        e('s_addc_u32 s59, s59, 0')
    srd(20, 58, 59, WS_USED)
    srd(16, 56, 57, 256)
    e('s_mov_b32 s33, 0xffff0000')
    e('v_mov_b32 v37, 0')
    for b in range(4): e(f'v_mov_b32 v{PA(b)}, {OOB}')
    for b in range(4): e(f's_mov_b32 s{96+b}, {3*XS}')
    e('s_mov_b32 s31, 0')
    e('s_mov_b32 s92, 0')
    e('s_mov_b32 s93, 0')
    e('s_cmp_ge_u32 s2, 125')
    e(f's_cselect_b32 s50, {2*21*XS - 125*1536}, 0')
    e('s_mul_i32 s51, s2, 1536')
    e('s_add_u32 s50, s50, 768')
    e('s_add_u32 s50, s50, s51')
    e(f's_add_u32 s51, s50, {3*XS}')
    e(f's_mov_b32 s35, {XL + (0 if opt["xpad"] else 64)}')
e('s_lshr_b32 s28, s26, 1')
e('s_cmp_eq_u32 s28, 2')
e('s_cbranch_scc1 Lp_w')
def xaddr(su, va, vd):
    e(f's_lshl_b32 s28, s{su}, 6')
    e('v_add_u32 v3, s28, v2')
    e('v_mul_u32_u24 v4, 683, v3')
    e('v_lshrrev_b32 v4, 16, v4')
    e('v_mul_u32_u24 v5, 96, v4')
    e('v_sub_u32 v3, v3, v5')
    e(f'v_mul_u32_u24 v{va}, 43, v3')
    e(f'v_lshrrev_b32 v{va}, 8, v{va}')
    e(f'v_mul_u32_u24 v{va}, {(2400 if opt["xpad"] else 2304)-96}, v{va}')
    e(f'v_lshl_add_u32 v{va}, v3, 4, v{va}')
    e(f'v_add3_u32 v{va}, v{va}, v5, s35')
    e('v_cmp_le_u32 vcc, 3, v4')
    e(f'v_mul_u32_u24 v{vd}, {XS}, v4')
    e(f'v_mov_b32 v5, {18*XS}')
    e(f'v_lshl_add_u32 v{vd}, v3, 4, v{vd}')
    e('v_cndmask_b32 v5, 0, v5, vcc')
    e(f'v_add_u32 v{vd}, v{vd}, v5')
def xpair(va, vd):
    for s in range(6): e(f'ds_read_b128 {vr(120+4*s)}, v{va} offset:{XOFF(s)}')
    for dw in range(4):
        for s in range(6):
            if dw == 0: e(f's_waitcnt lgkmcnt({5-s})')
            e(f'v_lshlrev_b32 v{148+2*s}, 16, v{120+4*s+dw}')
            e(f'v_and_b32 v{149+2*s}, s33, v{120+4*s+dw}')
        D = lambda s: 148+2*s
        pkfma(162, 46, D(2), D(4))
        pkfma(164, 46, D(3), D(5))
        pkfma(162, 44, D(0), 162)
        pkfma(164, 44, D(1), 164)
        pkfma(166, 48, 162, 164)
        pkfma(168, 48, 162, 164, nega=True)
        e(f'v_cvt_pk_bf16_f32 v{172+dw}, v166, v167')
        e(f'v_cvt_pk_bf16_f32 v{176+dw}, v168, v169')
    e(f'buffer_store_dwordx4 v[172:175], v{vd}, s[20:23], s50 offen sc1')
    e(f'buffer_store_dwordx4 v[176:179], v{vd}, s[20:23], s51 offen sc1')
def xrest(va, b):
    for s in range(7): e(f'ds_read_b128 {vr(120+4*s)}, v{va} offset:{XOFF(s)}')
    for dw in range(4):
        for s in range(7):
            if dw == 0: e(f's_waitcnt lgkmcnt({6-s})')
            e(f'v_lshlrev_b32 v{148+2*s}, 16, v{120+4*s+dw}')
            e(f'v_and_b32 v{149+2*s}, s33, v{120+4*s+dw}')
        D = lambda s: 148+2*s
        for t in range(2):
            q0, q1, aa = 36+6*t, 38+6*t, 40+6*t
            pkfma(162, q1, D(2), D(4))
            pkfma(164, q1, D(3), D(5))
            pkfma(162, q0, D(0), 162)
            pkfma(164, q0, D(1), 164)
            pkfma(166, aa, 162, 164)
            pkfma(168, aa, 162, 164, nega=True)
            e(f'v_cvt_pk_bf16_f32 v{PK(b,2*t)+dw}, v166, v167')
            e(f'v_cvt_pk_bf16_f32 v{PK(b,2*t+1)+dw}, v168, v169')
        pkfma(162, 54, D(4), D(6))
        pkfma(162, 52, D(2), 162)
        pkfma(162, 48, D(0), 162)
        e(f'v_cvt_pk_bf16_f32 v{PK(b,4)+dw}, v162, v163')
for t in range(3):
    a = PTS[2*t]; q0 = BT[2*t][1]; q1 = BT[2*t][3]
    assert abs(BT[2*t][0] - a*q0) < 1e-12 and abs(BT[2*t][2] - a*q1) < 1e-12 and abs(BT[2*t][4]-a) < 1e-12
e('s_sub_u32 s27, s26, 2')
e('s_cmp_lt_u32 s26, 4')
e('s_cselect_b32 s27, s26, s27')
e('s_cmp_ge_u32 s2, 250')
e('s_cbranch_scc1 Lp_zero')
e('s_cmp_ge_u32 s2, 125')
e('s_cselect_b32 s24, 4608000, 0')
e('s_mul_i32 s28, s2, 36864')
e('s_sub_u32 s28, s28, s24')
if opt['xpad']:
    e('s_sub_u32 s28, s28, 2304')
    e('s_mul_i32 s29, s27, 768')
    e('s_add_u32 s28, s28, s29')
    e('s_cmp_ge_u32 s27, 3')
    e('s_cselect_b32 s30, 96, 0')
    e('s_add_u32 s29, s29, s30')
    e('v_lshlrev_b32 v6, 4, v2')
    e('v_add_u32 v6, s28, v6')
    e(f's_mov_b32 s14, {0 if opt["skx"] else 4608000}')
    e('s_mov_b32 s15, 0x00020000')
    e(f's_add_u32 m0, s29, {XL}')
    e('s_mov_b32 exec_hi, 0xffff')
    e('s_waitcnt lgkmcnt(0)')
    e('s_add_u32 s12, s4, s24'); e('s_addc_u32 s13, s5, 0')
    e('s_and_b32 s13, s13, 0xffff')
    for i in range(9):
        if i == 8:
            e('s_cmp_ge_u32 s27, 3')
            e('s_cbranch_scc1 Lp_xl0')
        e(f'buffer_load_dwordx4 v6, s[12:15], 0 offen{LDF} lds')
        if i < 8:
            e(f's_add_u32 m0, s29, {XL + (i+1)*4800}')
            e('v_add_u32 v6, 4608, v6')
    lab('Lp_xl0')
    e('s_mov_b32 exec_hi, -1')
else:
    e('s_sub_u32 s28, s28, 1792')
    e('s_lshl_b32 s29, s27, 10')
    e('s_add_u32 s28, s28, s29')
    e('v_lshlrev_b32 v6, 4, v2')
    e('v_add_u32 v6, s28, v6')
    e(f's_mov_b32 s14, {0 if opt["skx"] else 4608000}')
    e('s_mov_b32 s15, 0x00020000')
    e(f's_add_u32 m0, s29, {XL}')
    e('s_waitcnt lgkmcnt(0)')
    e('s_add_u32 s12, s4, s24'); e('s_addc_u32 s13, s5, 0')
    e('s_and_b32 s13, s13, 0xffff')
    for i in range(7):
        if i == 6:
            e('s_cmp_ge_u32 s27, 2')
            e('s_cbranch_scc1 Lp_xl')
        e(f'buffer_load_dwordx4 v6, s[12:15], 0 offen{LDF} lds')
        if i < 6:
            e(f's_add_u32 m0, s29, {XL + (i+1)*6144}')
            e('v_add_u32 v6, 6144, v6')
lab('Lp_xl')
common()
if opt['warm'] < 2:
    e('s_add_u32 s28, s2, s26')
    e('s_cmp_lg_u32 s28, 0')
    e('s_cbranch_scc1 Lp_x0')
    c('WG 0 wave 0 publishes the launch tag in d_debug')
    e('s_memrealtime s[92:93]')
    e('s_waitcnt lgkmcnt(0)')
    e('s_or_b32 s92, s92, 1')
    e('v_mov_b32 v38, s92')
    e('v_mov_b32 v39, s93')
    e('s_mov_b64 exec, 1')
    e('buffer_store_dwordx2 v[38:39], v37, s[16:19], 0 offen sc1')
    e('s_mov_b64 exec, -1')
lab('Lp_x0')
c('pass-1 units: wave0:8 wave1:4,5 wave2:0,1 wave3:2,3 wave6:6 wave7:7')
e('s_lshl_b32 s28, s26, 2')
e('s_lshr_b32 s30, 0x76002048, s28')
e('s_and_b32 s30, s30, 15')
xaddr(30, 6, 7)
e('s_add_u32 s30, s30, 1')
xaddr(30, 14, 15)
sconst2(44, BT[0][1]); sconst2(46, BT[0][3]); sconst2(48, PTS[0])
stamp(7)
e('s_waitcnt vmcnt(0)')
stamp(8)
e('s_barrier')
stamp(1)
e('s_cmp_lg_u32 s26, 0')
e('s_cbranch_scc1 Lp_x1')
e('buffer_load_dwordx2 v[24:25], v37, s[16:19], 0 offen sc1')
lab('Lp_x1')
xpair(6, 7)
e('s_bitcmp1_b32 0x0e, s26')
e('s_cbranch_scc0 Lp_x2')
xpair(14, 15)
lab('Lp_x2')
if opt['es']: stamp(9)
e('s_cmp_ge_u32 s26, 4')
e('s_cbranch_scc1 Lp_h67')
lab('Lp_s2')
if opt['fl']:
    e('v_lshlrev_b32 v9, 4, v2')
    e('s_lshl_b32 s30, s2, 7')
    e(f's_add_u32 s30, s30, {FLAG_OFF+AFL}')
else:
    e(f'v_mul_u32_u24 v9, {RSTR}, v2')
    e('s_lshl_b32 s30, s2, 3')
    e(f's_add_u32 s30, s30, {FLAG_OFF}')
e('s_cmp_lg_u32 s26, 0')
e('s_cbranch_scc1 Lp_s2b')
e('s_cmp_ge_u32 s2, 250')
e('s_cbranch_scc1 L_taga')
e('s_waitcnt vmcnt(2)')
e('v_readfirstlane_b32 s92, v24')
e('v_readfirstlane_b32 s93, v25')
e('s_nop 3')
e('s_cmp_lg_u32 s92, 0')
e('s_cbranch_scc1 L_tagda')
gettag('a')
e('v_mov_b32 v38, s92')
e('v_mov_b32 v39, s93')
e('v_mov_b32 v40, s92')
e('v_mov_b32 v41, s93')
lab('Lp_s2b')
e('s_waitcnt vmcnt(0)')
if opt['es']: stamp(10)
e('s_barrier')
e('s_cmp_lg_u32 s26, 0')
e('s_cbranch_scc1 L_pdone')
if opt['fl']:
    e('s_mov_b64 exec, 0xff')
    e('buffer_store_dwordx4 v[38:41], v9, s[20:23], s30 offen sc1')
else:
    e(f's_mov_b64 exec, {(1<<REP)-1}')
    e('buffer_store_dwordx2 v[38:39], v9, s[20:23], s30 offen sc1')
e('s_mov_b64 exec, -1')
stamp(2)
e('s_branch L_pdone')
def xcoef2():
    for t in (1, 2):
        sconst2(36+6*(t-1), BT[2*t][1]); sconst2(38+6*(t-1), BT[2*t][3]); sconst2(40+6*(t-1), PTS[2*t])
    sconst2(48, BT[6][0]); sconst2(52, BT[6][2]); sconst2(54, BT[6][4])
    e(f's_add_u32 s34, s50, {6*XS}')
lab('Lp_h67')
c('waves 6,7 pass 2: own unit (block 1), then units 2(w-6), 2(w-6)+1 (blocks 2,3)')
xcoef2()
e(f'v_add_u32 v{PA(1)}, s34, v7')
if opt['early']: xrest(6, 1)
if opt['es']: stamp(3)
e('s_waitcnt vmcnt(0)')
if opt['es']: stamp(10)
e('s_barrier')
if not opt['early']: xrest(6, 1)
e('s_sub_u32 s30, s26, 6')
e('s_lshl_b32 s30, s30, 1')
lab('Lp_x23')
xaddr(30, 6, 7)
e(f'v_add_u32 v{PA(2)}, s34, v7')
xrest(6, 2)
e('s_add_u32 s30, s30, 1')
lab('Lp_x3')
xaddr(30, 6, 7)
e(f'v_add_u32 v{PA(3)}, s34, v7')
xrest(6, 3)
e('s_branch L_pdone')
lab('Lp_zero')
c('WGs 250,251: zero the 8 leading rows of the 42 arrays of batch b')
e('s_waitcnt lgkmcnt(0)')
common()
e('s_sub_u32 s3, s2, 250')
e(f's_mul_i32 s30, s3, {2*21*XS}')
e('s_lshl_b32 s28, s27, 6')
e('v_add_u32 v3, s28, v2')
for k in range(4): e(f'v_mov_b32 v{16+k}, 0')
for i in range(6):
    e('v_mul_u32_u24 v4, 1366, v3')
    e('v_lshrrev_b32 v4, 16, v4')
    e('v_mul_u32_u24 v5, 48, v4')
    e('v_sub_u32 v5, v3, v5')
    e(f'v_mul_u32_u24 v4, {XS}, v4')
    e('v_lshl_add_u32 v4, v5, 4, v4')
    e('v_cmp_gt_u32 vcc, 2016, v3')
    e(f'v_mov_b32 v5, {OOB}')
    e('v_add_u32 v3, 384, v3')
    e('v_cndmask_b32 v4, v5, v4, vcc')
    e('buffer_store_dwordx4 v[16:19], v4, s[20:23], s30 offen sc1')
if opt['warm']:
    c('pre-write the flag lines used later (full lines) so that the 8-byte flag stores hit in the memory-side cache')
    e('s_mul_i32 s30, s3, 6')
    e('s_add_u32 s30, s30, s27')
    e('s_lshl_b32 s30, s30, 11')
    e(f's_add_u32 s30, s30, {FLAG_OFF+FA}')
    e('v_lshlrev_b32 v4, 4, v2')
    e('buffer_store_dwordx4 v[16:19], v4, s[20:23], s30 offen sc1')
    e('buffer_store_dwordx4 v[16:19], v4, s[20:23], s30 offen offset:1024 sc1')
    assert 24*1024 <= GOF - FA and 24*1024 >= ZFL + 3584 - FA
    e('v_lshrrev_b32 v4, 3, v2')
    e('v_mul_u32_u24 v4, 4352, v4')
    e('v_and_b32 v5, 7, v2')
    e('v_lshl_add_u32 v4, v5, 4, v4')
    e(f's_mov_b32 s30, {FLAG_OFF+GOF}')
    e('buffer_store_dwordx4 v[16:19], v4, s[20:23], s30 offen sc1')
e('s_barrier')
e('s_branch Lp_s2')
lab('Lp_w')
e('s_and_b32 s27, s26, 1')
c('w unit: XCD x = id&7 owns a contiguous range of units; local i = id>>3 < 9 takes two')
e('s_and_b32 s28, s2, 7')
e('s_lshr_b32 s29, s2, 3')
e('s_mul_i32 s3, s28, 40')
e('s_min_u32 s30, s28, 4')
e('s_add_u32 s3, s3, s30')
e('s_add_u32 s3, s3, s29')
e('s_min_u32 s30, s29, 9')
e('s_add_u32 s3, s3, s30')
e('s_add_u32 s3, s3, s27')
e('s_mul_i32 s30, s27, s29')
e('s_cmp_ge_u32 s30, 9')
e('s_cbranch_scc1 Lp_wo')
def posdec(P, ko, pos, kk, o, tmp):
    e(f'v_mul_u32_u24 v{ko}, 58255, v{P}')
    e(f'v_lshrrev_b32 v{ko}, 22, v{ko}')
    e(f'v_mul_u32_u24 v{tmp}, 72, v{ko}')
    e(f'v_sub_u32 v{pos}, v{P}, v{tmp}')
    e(f'v_mul_u32_u24 v{kk}, 3641, v{ko}')
    e(f'v_lshrrev_b32 v{kk}, 16, v{kk}')
    e(f'v_mul_u32_u24 v{tmp}, 18, v{kk}')
    e(f'v_sub_u32 v{o}, v{ko}, v{tmp}')
G_ = lambda r, ch: 40+2*(8*r+ch)
e('s_lshl_b32 s28, s3, 5')
e('v_and_b32 v3, 31, v2')
e('v_add_u32 v4, s28, v3')
posdec(4, 5, 6, 7, 8, 9)
e(f'v_mul_u32_u24 v7, {4*82944}, v7')
e('v_mul_u32_u24 v8, 4608, v8')
e('v_lshrrev_b32 v9, 5, v2')
e('v_mul_u32_u24 v10, 288, v9')
e('v_add3_u32 v7, v7, v8, v10')
e('v_lshl_add_u32 v6, v6, 2, v7')
e('s_waitcnt lgkmcnt(0)')
srd(12, 6, 7, 0 if opt['skw'] else 31*144*288*2)
if opt['word']:
    for r in range(1, 4): e(f's_mov_b32 s{36+r}, {82944*r}')
    for ch in range(8):
        for r in range(4):
            e(f'buffer_load_dword v{G_(r,ch)+1}, v6, s[12:15], {"s%d" % (36+r) if r else 0} offen offset:{ch*576}{LDF}')
else:
  for r in range(4):
    for ch in range(8):
        e(f'buffer_load_dword v{G_(r,ch)+1}, v6, s[12:15], 0 offen offset:{ch*576}{LDF}')
    if r < 3: e('v_add_u32 v6, 82944, v6')
stamp(7)
common()
e('s_lshl_b32 s29, s27, 14')
e(f's_add_u32 s29, s29, {WL}')
e('v_lshlrev_b32 v10, 6, v3')
e('v_lshl_add_u32 v10, v9, 5, v10')
e('v_add_u32 v10, s29, v10')
e('v_lshlrev_b32 v11, 4, v2')
e('v_add_u32 v11, s29, v11')
for h in range(2):
    e('v_lshrrev_b32 v4, 2, v2')
    e(f'v_add3_u32 v4, v4, s28, {16*h}')
    posdec(4, 5, 6, 7, 8, 9)
    e('v_mul_u32_u24 v4, 43, v8')
    e('v_lshrrev_b32 v4, 8, v4')
    e('v_mul_u32_u24 v5, 6, v4')
    e('v_sub_u32 v5, v8, v5')
    e('v_lshrrev_b32 v8, 1, v7')
    e('v_add_u32 v8, 8, v8')
    e('v_and_b32 v9, 1, v7')
    e('v_lshl_add_u32 v9, v9, 1, v5')
    e('v_subrev_u32 v9, 4, v9')
    e('v_cmp_le_u32 vcc, 4, v5')
    e('v_mul_u32_u24 v4, 24576, v4')
    e('v_lshrrev_b32 v14, 3, v6')
    e('v_cndmask_b32 v8, v7, v8, vcc')
    e('v_cndmask_b32 v9, v5, v9, vcc')
    e(f'v_mul_u32_u24 v14, {21*24576}, v14')
    e('v_bfe_u32 v15, v6, 2, 1')
    e('v_mul_u32_u24 v15, 12288, v15')
    e(f'v_add3_u32 v{12+h}, v4, v14, v15')
    e(f'v_lshl_add_u32 v{12+h}, v8, 10, v{12+h}')
    e(f'v_lshl_add_u32 v{12+h}, v9, 8, v{12+h}')
    e('v_and_b32 v4, 3, v6')
    e(f'v_lshl_add_u32 v{12+h}, v4, 6, v{12+h}')
    e('v_and_b32 v4, 3, v2')
    e(f'v_lshl_add_u32 v{12+h}, v4, 4, v{12+h}')
def wcoef(t):
    for r in range(4):
        assert abs(GS[2*t+1][r] - (1 if r % 2 == 0 else -1)*GS[2*t][r]) < 1e-12
        e(f'v_mul_f32 v{160+2*r}, {fh(GS[2*t][r])}, v14')
        e(f'v_mov_b32 v{161+2*r}, v{160+2*r}')
e(f's_mov_b32 s34, {WT_OFF}')
e('v_cmp_le_u32 vcc, 32, v2')
e(f'v_mov_b32 v14, {fh(-2*LOG2E)}')
e(f'v_mov_b32 v15, {fh(-LOG2E)}')
e('v_cndmask_b32 v14, v14, v15, vcc')
e('v_mov_b32 v15, v14')
wcoef(0)
stamp(8)
e('s_barrier')
stamp(1)
e('s_waitcnt vmcnt(0)')
stamp(2)
for k in range(32):
    e(f'v_lshlrev_b32 v{40+2*k}, 16, v{41+2*k}')
    e(f'v_and_b32 v{41+2*k}, s33, v{41+2*k}')
e('s_mov_b32 s53, 0')
lab('Lp_wloop')
for dw in range(4):
    for c2 in range(2):
        ch = 2*dw+c2
        E, O = 104+4*c2, 106+4*c2
        e(f'v_pk_mul_f32 {vp(E)}, {vp(160)}, {vp(G_(0,ch))}')
        e(f'v_pk_mul_f32 {vp(O)}, {vp(162)}, {vp(G_(1,ch))}')
        e(f'v_pk_fma_f32 {vp(E)}, {vp(164)}, {vp(G_(2,ch))}, {vp(E)}')
        e(f'v_pk_fma_f32 {vp(O)}, {vp(166)}, {vp(G_(3,ch))}, {vp(O)}')
        pkadd(112+4*c2, O, E)
        pkadd(114+4*c2, E, O, negb=True)
    for sgn in range(2):
        for n in range(2):
            e(f'v_cvt_pk_bf16_f32 v{120+8*sgn+4*n+dw}, v{112+2*sgn+n}, v{116+2*sgn+n}')
for sgn in range(2):
    for n in range(2):
        e(f'ds_write_b128 v10, {vr(120+8*sgn+4*n)} offset:{sgn*2048 + n*16}')
e('s_add_u32 s53, s53, 1')
e('s_waitcnt lgkmcnt(0)')
e('v_add_u32 v10, 4096, v10')
e('s_cmp_eq_u32 s53, 3')
e('s_cbranch_scc1 Lp_w3')
e('s_cmp_eq_u32 s53, 1')
e('s_cbranch_scc1 Lp_w1')
wcoef(2)
if opt['early']:
    if opt['es']: stamp(3)
    e('s_waitcnt vmcnt(0)')
    if opt['es']: stamp(10)
    e('s_barrier')
e('s_branch Lp_wloop')
lab('Lp_w1')
for k in range(4): e(f'ds_read_b128 {vr(136+4*k)}, v11 offset:{k*1024}')
for k in range(4):
    e(f's_waitcnt lgkmcnt({3-k})')
    e(f'buffer_store_dwordx4 {vr(136+4*k)}, v{12+k%2}, s[20:23], s34 offen sc1')
    if k % 2 == 1: e(f's_add_u32 s34, s34, {3*24576}')
if opt['es']: stamp(9)
wcoef(1)
if not opt['early']:
    e('s_waitcnt vmcnt(0)')
    e('s_barrier')
e('s_branch Lp_wloop')
lab('Lp_w3')
for ch in range(8): e(f'v_pk_mul_f32 {vp(G_(3,ch))}, {vp(G_(3,ch))}, v[14:15]')
for n in range(2):
    for dw in range(4):
        e(f'v_cvt_pk_bf16_f32 v{120+4*n+dw}, v{G_(3,2*dw)+n}, v{G_(3,2*dw+1)+n}')
    e(f'ds_write_b128 v10, {vr(120+4*n)} offset:{n*16}')
e('s_waitcnt lgkmcnt(0)')
for k in range(10):
    e(f'ds_read_b128 {vr(PK(k % 2, k//2))}, v11 offset:{4096 + k*1024}')
e(f'v_add_u32 v{PA(0)}, s34, v12')
e(f'v_add_u32 v{PA(1)}, s34, v13')
e(f's_mov_b32 s96, {3*24576}')
e(f's_mov_b32 s97, {3*24576}')
e('s_waitcnt lgkmcnt(0)')
lab('Lp_wx')
c('then x pass 2: wave 4: unit 8 (block 3) ; wave 5: units 4,5 (blocks 2,3)')
e('s_cmp_ge_u32 s2, 250')
e('s_cbranch_scc1 L_pdone')
xcoef2()
e('s_mov_b32 s30, 8')
e('s_cmp_eq_u32 s26, 4')
e('s_cbranch_scc1 Lp_x3')
e('s_mov_b32 s30, 4')
e('s_branch Lp_x23')
lab('Lp_wo')
e('s_waitcnt lgkmcnt(0)')
common()
e('s_sub_u32 s3, s2, 72')
e('s_cmp_ge_u32 s3, 45')
e('s_cbranch_scc1 Lp_wo2')
srd(12, 8, 9, 144*144*2)
e('s_mul_i32 s28, s3, 13108')
e('s_lshr_b32 s28, s28, 16')
e('s_mul_i32 s29, s28, 5')
e('s_sub_u32 s29, s3, s29')
e('v_and_b32 v7, 15, v2')
e('v_lshrrev_b32 v8, 4, v2')
e('s_cmp_eq_u32 s28, 8')
e('s_cselect_b32 s30, 1, 4')
e('s_cselect_b32 s34, 256, 0')
e('s_cselect_b32 s28, 0, s28')
e('s_lshl_b32 s28, s28, 1')
e('s_add_u32 s34, s34, s28')
e(f's_mul_i32 s29, s29, {32*288}')
e('s_add_u32 s34, s34, s29')
e('v_lshlrev_b32 v9, s30, v7')
e('v_mul_u32_u24 v14, 576, v8')
e('v_add3_u32 v14, v14, v9, s34')
for d in range(4):
    e(f'buffer_load_ushort v{40+2*d}, v14, s[12:15], 0 offen')
    e(f'buffer_load_ushort v{41+2*d}, v14, s[12:15], 0 offen offset:288')
    if d < 3: e('v_add_u32 v14, 2304, v14')
e('s_lshl_b32 s3, s3, 10')
e(f's_add_u32 s3, s3, {WO_OFF}')
e('v_lshlrev_b32 v1, 4, v2')
e('s_barrier')
e('s_waitcnt vmcnt(0)')
for d in range(4):
    e(f'v_lshl_or_b32 v{48+d}, v{41+2*d}, 16, v{40+2*d}')
e('buffer_store_dwordx4 v[48:51], v1, s[20:23], s3 offen sc1')
e('s_waitcnt vmcnt(0)')
e('s_barrier')
e('s_branch Lp_wx')
lab('Lp_wo2')
if opt['warm'] == 2:
    e('s_cmp_lg_u32 s2, 200')
    e('s_cbranch_scc1 Lp_wo3')
    for k in range(4): e(f'v_mov_b32 v{40+k}, 0')
    e('v_lshlrev_b32 v4, 4, v2')
    e(f's_mov_b32 s30, {FLAG_OFF}')
    e('buffer_store_dwordx4 v[40:43], v4, s[20:23], s30 offen sc1')
    e('buffer_store_dwordx4 v[40:43], v4, s[20:23], s30 offen offset:1024 sc1')
    e('s_memrealtime s[92:93]')
    e('s_waitcnt lgkmcnt(0)')
    e('s_or_b32 s92, s92, 1')
    e('v_mov_b32 v38, s92')
    e('v_mov_b32 v39, s93')
    e('s_waitcnt vmcnt(0)')
    e('s_mov_b64 exec, 1')
    e('buffer_store_dwordx2 v[38:39], v37, s[16:19], 0 offen sc1')
    e('s_mov_b64 exec, -1')
    lab('Lp_wo3')
e('s_barrier')
e('s_barrier')
e('s_branch Lp_wx')

def M(t): return 12 + 4*t
def MD(t): return 48 + 4*t
def FR(k): return vr(84 + 4*k)
lab('L_pdone')
e('v_lshlrev_b32 v101, 4, v2')
e('v_min_u32 v36, 62, v2')
e('v_lshlrev_b32 v36, 5, v36')
e(f's_and_b32 s30, s2, {REP-1}')
e(f's_mul_i32 s30, s30, {RSTR}')
e('v_add_u32 v36, s30, v36')
e(f'v_mul_u32_u24 v12, {RSTR}, v2')
c('unit = base[xcd] + (id>>3)')
e('s_and_b32 s25, s2, 7')
e('s_lshr_b32 s24, s2, 3')
e('s_mul_i32 s27, s25, 31')
e('s_min_u32 s28, s25, 4')
e('s_add_u32 s27, s27, s28')
e('s_add_u32 s27, s27, s24')
e('s_mul_i32 s28, s27, 7282')
e('s_lshr_b32 s28, s28, 16')
e('s_mul_i32 s29, s28, 9')
e('s_sub_u32 s29, s27, s29')
e('s_and_b32 s24, s26, 3')
e('s_lshr_b32 s32, s24, 1')
e('s_and_b32 s33, s24, 1')
e('s_mul_i32 s34, s24, 7168')
e('s_mul_i32 s35, s24, 6144')
c('z soffset s62')
e('s_lshl_b32 s62, s28, 1')
e('s_add_u32 s62, s62, s32')
e(f's_mul_i32 s62, s62, {9*18*1024}')
e('s_lshl_b32 s63, s29, 1')
e('s_add_u32 s63, s63, s33')
e(f's_lshl_b32 s63, s63, {8 if opt["t2"] else 10}')
e('s_add_u32 s62, s62, s63')
e(f's_add_u32 s62, s62, {Z_OFF}')
if opt['gmap']:
    c('g = (b*7+gg)*2 + p')
    e('s_lshr_b32 s38, s28, 1')
    e('s_and_b32 s30, s28, 1')
    e('s_cmp_ge_u32 s38, 7')
    e('s_cselect_b32 s36, 7, 0')
    e('s_cselect_b32 s37, 2, 0')
    e('s_sub_u32 s38, s38, s36')
    e('s_add_u32 s30, s30, s37')
else:
    e('s_mul_i32 s30, s28, 9363')
    e('s_lshr_b32 s30, s30, 16')
    e('s_mul_i32 s38, s30, 7')
    e('s_sub_u32 s38, s28, s38')
e(f's_mul_i32 s36, s30, {21*XS}')
e('s_mul_i32 s37, s38, 27648')
e('s_add_u32 s36, s36, s37')
e('s_add_u32 s36, s36, s34')
e(f's_mul_i32 s37, s29, {21*24576}')
e('s_add_u32 s37, s37, s35')
e(f's_add_u32 s37, s37, {WT_OFF}')
c('last row group of a stream: do not fetch the never-written padding rows (KB 26 lanes >= 16, KB 27): v6, v7 = voffsets for those two chunks')
e('s_cmp_eq_u32 s38, 6')
e('s_cselect_b32 s60, 16, 64')
e('s_cselect_b32 s61, 0, 64')
e(f'v_mov_b32 v8, {OOB}')
e('v_cmp_gt_u32 vcc, s60, v2')
e('v_cmp_gt_u32 s[88:89], s61, v2')
e('s_nop 0')
e('v_cndmask_b32 v6, v8, v101, vcc')
e('v_cndmask_b32 v7, v8, v101, s[88:89]')
e('s_cmp_ge_u32 s26, 4')
e('s_cbranch_scc1 L_helper')
e('s_cmp_lg_u32 s26, 0')
e('s_cbranch_scc1 L_c13')
c('wave 0: wait for all A flags, then load the whole phase 0 tile')
if opt['agg']:
    e('s_cmp_lg_u32 s2, 0')
    e('s_cbranch_scc1 L_gow')
if opt['dly']: e(f's_sleep {opt["dly"]}')
if opt['fl']:
    for k in range(4):
        e(f'v_add_u32 v{42+k}, {64*k}, v2')
        e(f'v_min_u32 v{42+k}, 251, v{42+k}')
        e(f'v_lshlrev_b32 v{42+k}, 7, v{42+k}')
    e('v_lshrrev_b32 v46, 3, v2')
    e('v_mul_u32_u24 v46, 4352, v46')
    e('v_and_b32 v47, 7, v2')
    e('v_lshl_add_u32 v46, v47, 4, v46')
poll('A' if opt['fl'] else 0, 'A')
if opt['agg']:
    c('WG 0 saw all A flags: release everybody through 8 go words')
    e(f's_mov_b32 s30, {FLAG_OFF+GOF}')
    if opt['fl']:
        e('buffer_store_dwordx4 v[38:41], v46, s[20:23], s30 offen sc1')
    else:
        e('v_mul_u32_u24 v9, 4352, v2')
        e('s_mov_b64 exec, 0xff')
        e('buffer_store_dwordx2 v[38:39], v9, s[20:23], s30 offen sc1')
        e('s_mov_b64 exec, -1')
    e('s_branch L_god')
    lab('L_gow')
    e('s_mul_i32 s30, s25, 4352')
    e(f's_add_u32 s30, s30, {FLAG_OFF+GOF}')
    e('s_mov_b32 s31, 0')
    e('s_mov_b64 exec, 1')
    lab('L_gol')
    e('buffer_load_dwordx2 v[24:25], v37, s[20:23], s30 offen sc1')
    e('s_add_u32 s31, s31, 1')
    e('s_cmp_gt_u32 s31, 800000')
    e('s_cbranch_scc1 L_gox')
    e('s_waitcnt vmcnt(0)')
    e('v_cmp_ne_u64 vcc, s[92:93], v[24:25]')
    e('s_cbranch_vccz L_gox')
    e(f's_sleep {opt["gslp"]}')
    e('s_branch L_gol')
    lab('L_gox')
    e('s_mov_b64 exec, -1')
    lab('L_god')
stamp(3)
for k in range(52):
    if k % 4 == 0:
        e(f's_mov_b32 m0, {k*1024}')
        e(f's_add_u32 s30, s36, {k*1024}' if k < 28 else f's_add_u32 s30, s37, {(k-28)*1024}')
    e(f'buffer_load_dwordx4 v{ {26: 6, 27: 7}.get(k, 101) }, s[20:23], s30 offen offset:{(k%4)*1024} sc1 lds')
lab('L_c13')
e('s_barrier')
if opt['prio']: e(f's_setprio {opt["prio"]}')
e('v_and_b32 v124, 15, v2')
e('v_lshrrev_b32 v125, 4, v2')
e('v_mul_u32_u24 v126, 864, v124')
e('s_mul_i32 s38, s32, 13824')
e('v_add_u32 v126, s38, v126')
e('v_lshl_add_u32 v2, v125, 4, v126')
e('v_lshrrev_b32 v127, 1, v125')
e('v_mul_u32_u24 v127, 96, v127')
e('v_sub_u32 v127, v126, v127')
e('v_and_b32 v128, 1, v125')
e('v_lshl_add_u32 v127, v128, 4, v127')
e('v_add_u32 v5, 160, v127')
e('s_mul_i32 s38, s33, 12288')
e('s_add_u32 s38, s38, 28672')
e('v_add_u32 v8, s38, v101')
for s in (1, 2):
    e(f'v_add_u32 v{2+s}, {s*SLOT}, v2')
    e(f'v_add_u32 v{5+s}, {s*SLOT}, v5')
    e(f'v_add_u32 v{8+s}, {s*SLOT}, v8')
if opt['sn32']: e('v_lshrrev_b32 v101, 2, v101')
e(f's_add_u32 s38, s34, {2*SLOT}')
e('v_add_u32 v1, s38, v101')
e(f's_add_u32 s38, s35, {2*SLOT+28672}')
e('v_add_u32 v11, s38, v101')
for r in range(48, 84): e(f'v_mov_b32 v{r}, 0')

frags = []; mf = []
if opt['mord']:
    for t in range(9):
        for kk in range(7, -1, -1): mf.append((t, ('W', kk), ('X', t-kk)))
    for t in (range(8, -1, -1) if opt['tdesc'] else range(9)):
        for pp in (range(4) if opt['tdesc'] else range(3, -1, -1)): mf.append((t, ('WT', pp), ('XT', t-2*pp)))
else:
  for tp in range(-7, 9):
    for kk in range(min(7, 8-tp), max(0, -tp)-1, -1):
        mf.append((tp+kk, ('W', kk), ('X', tp)))
  for tp in range(-6, 9):
    for pp in range(3, -1, -1):
        if 0 <= tp+2*pp <= 8: mf.append((tp+2*pp, ('WT', pp), ('XT', tp)))
assert len(mf) == 108
fu = {}
for s, (t, wk, xk) in enumerate(mf):
    for k in (xk, wk):
        if k not in fu: fu[k] = s; frags.append(k)
assert len(frags) == 43
fidx = {k: i for i, k in enumerate(frags)}
LA = opt['LA']; BAR = 108 - LA; ELAST = BAR - 6
iss = [(-LA + (k*(ELAST+LA))//42) for k in range(43)]
if opt['mord']:
    iss = [-LA + (k*(LA-2))//16 for k in range(17)] + [1 + (k*(ELAST-1))//25 for k in range(26)]
    lu = {}
    for s, (t, wk, xk) in enumerate(mf): lu[wk] = s; lu[xk] = s
    for k in range(43): assert iss[k] + 108 > lu[frags[k]] + 1, (k, iss[k], lu[frags[k]])
for k in range(43): assert iss[k] <= fu[frags[k]] - 8, (k, iss[k], fu[frags[k]])
def rd(k, slot):
    kind, i = frags[k]
    if kind == 'X': return f'ds_read_b128 {FR(k)}, v{2+slot} offset:{(i+8)*96}'
    if kind == 'XT': return f'ds_read_b128 {FR(k)}, v{5+slot} offset:{(i+7)*96}'
    if kind == 'W': return f'ds_read_b128 {FR(k)}, v{8+slot} offset:{i*1024}'
    return f'ds_read_b128 {FR(k)}, v{8+slot} offset:{(8+i)*1024}'
npre = sum(1 for x in iss if x < 0)
first_touch = {}; last_touch = {}
for s, (t, wk, xk) in enumerate(mf):
    first_touch.setdefault(t, s); last_touch[t] = s
def snapw(t):
    if opt['sn32']:
        t, r = divmod(t, 4)
        return f'ds_write_b32 v1, v{MD(t)+r} offset:{t*1024+r*256}' if t < 7 else f'ds_write_b32 v11, v{MD(t)+r} offset:{(t-7)*1024+r*256}'
    return f'ds_write_b128 v1, {vr(MD(t))} offset:{t*1024}' if t < 7 else f'ds_write_b128 v11, {vr(MD(t))} offset:{(t-7)*1024}'
QS = opt['QS']
ext = [[] for _ in range(324)]
for ph in range(3):
    for k in range(43):
        ext[(ph*108 + iss[k]) % 324].append(('rd', k, ph))
used = [len(x) for x in ext]
lastw = 0
if opt['sn32']:
    for n in range(36):
        pos = max(216 + last_touch[n//4] + 8, lastw + 1)
        lastw = pos
        assert pos >= 216 + BAR and pos < 324 + QS - 2, pos
        ext[pos % 324].append(('wr', n, 0))
else:
  for t in sorted(range(9), key=lambda t: last_touch[t]):
    pos = max(216 + last_touch[t] + 8, lastw + opt['wsp'], 216 + BAR + 1)
    while used[pos % 324]: pos += 1
    lastw = pos
    used[pos % 324] += 1
    assert pos >= 216 + BAR and pos < 324 + QS - 2
    ext[pos % 324].append(('wr', t, 0))
e('s_waitcnt vmcnt(0)')
stamp(4)
e('s_barrier')
stamp(5)
if opt['dbgst']: e('s_memtime s[90:91]')
for k in range(npre): e(rd(k, 0))
e('s_mov_b32 s39, 7')
e('s_waitcnt lgkmcnt(0)')
out.append('.p2align 6')
for _ in range(opt['pad']): e('s_nop 0')
lab('L_loop')
seq = 0; rseq = {}; covered = -1; wseq = -1; sslot = []
for it in range(2):
    emit = e if it == 1 else (lambda s: None)
    for ph in range(3):
        if it == 1: c(f'======== phase {ph}')
        for s, (t, wk, xk) in enumerate(mf):
            if s == BAR:
                emit('s_waitcnt lgkmcnt(0)')
                emit('s_barrier')
                covered = seq - 1
            if ph == 0 and s == QS:
                if wseq > covered:
                    emit(f's_waitcnt lgkmcnt({min(15, seq-1-wseq)})')
                    covered = max(covered, seq - 1 - min(15, seq-1-wseq))
                emit('s_barrier')
            need = max(rseq.get((ph, fidx[wk]), -1), rseq.get((ph, fidx[xk]), -1))
            if need > covered:
                now = it*324 + ph*108 + s
                recent = sum(1 for x in sslot if x >= now - opt['lat'])
                allow = min(seq - 1 - need, recent, 15)
                emit(f's_waitcnt lgkmcnt({allow})')
                covered = seq - 1 - allow
            cin = vr(MD(t)) if (ph == 0 and first_touch[t] == s) else vr(M(t))
            dst = vr(MD(t)) if (ph == 2 and last_touch[t] == s) else vr(M(t))
            emit(f'v_mfma_f32_16x16x32_bf16 {dst}, {FR(fidx[wk])}, {FR(fidx[xk])}, {cin}')
            for x in ext[ph*108+s]:
                if x[0] == 'rd':
                    emit(rd(x[1], x[2])); rseq[(x[2], x[1])] = seq; seq += 1; sslot.append(it*324 + ph*108 + s)
                else:
                    emit(snapw(x[1])); wseq = seq; seq += 1; sslot.append(it*324 + ph*108 + s)
            if ph == 2 and s == 104: emit('s_sub_u32 s39, s39, 1')
            if ph == 2 and s == 105: emit('s_cmp_lg_u32 s39, 0')
e('s_cbranch_scc1 L_loop')
stamp(6)
if opt['dbgst']: e('s_memtime s[94:95]')
c('---- compute-wave epilogue: gate y3 = MD')
e('s_waitcnt lgkmcnt(0)')
if opt['tr']: e('s_barrier')
def gate_consts():
    e(f's_mov_b32 s46, {fh(-0.6931471805599453)}')
    e(f's_mov_b32 s42, {fh(2*LOG2E*2**-12)}')
    e('s_mov_b32 s43, 0x41f00000')
def gate(a, r, dst, sp):
    L = []
    L.append(f'v_min_f32 v{r}, s43, v{a}')
    L.append(f'v_min_f32 v{r+1}, s43, v{a+1}')
    L.append(f'v_exp_f32 v{a+2}, v{a+2}')
    L.append(f'v_exp_f32 v{a+3}, v{a+3}')
    L.append(f'v_exp_f32 v{r}, v{r}')
    L.append(f'v_exp_f32 v{r+1}, v{r+1}')
    if opt['smallfix']:
        L.append(f'v_cmp_gt_f32 s[{sp}:{sp+1}], s42, abs(v{a})')
        L.append(f'v_cmp_gt_f32 s[{sp+2}:{sp+3}], s42, abs(v{a+1})')
    L.append(f'v_add_f32 v{r+2}, 1.0, v{r}')
    L.append(f'v_add_f32 v{r+3}, 1.0, v{r+1}')
    if opt['smallfix']:
        L.append(f'v_mul_f32 v{a}, s46, v{a}')
        L.append(f'v_mul_f32 v{a+1}, s46, v{a+1}')
    L.append(f'v_fmac_f32 v{r+2}, v{r+2}, v{a+2}')
    L.append(f'v_fmac_f32 v{r+3}, v{r+3}, v{a+3}')
    L.append(f'v_sub_f32 v{r}, 1.0, v{r}')
    L.append(f'v_sub_f32 v{r+1}, 1.0, v{r+1}')
    L.append(f'v_rcp_f32 v{r+2}, v{r+2}')
    L.append(f'v_rcp_f32 v{r+3}, v{r+3}')
    if opt['smallfix']:
        L.append(f'v_cndmask_b32 v{r}, v{r}, v{a}, s[{sp}:{sp+1}]')
        L.append(f'v_cndmask_b32 v{r+1}, v{r+1}, v{a+1}, s[{sp+2}:{sp+3}]')
    L.append(f'v_mul_f32 v{r}, v{r}, v{r+2}')
    L.append(f'v_mul_f32 v{r+1}, v{r+1}, v{r+3}')
    L.append(f'v_cvt_pk_bf16_f32 v{dst}, v{r}, v{r+1}')
    return L
ool = []
def gate_check(As, tm, name):
    for k, a in enumerate(As):
        if k == 0:
            e(f'v_min_f32 v{tm}, abs(v{a}), abs(v{a+1})')
            e(f'v_max_f32 v{tm+1}, v{a}, v{a+1}')
        else:
            e(f'v_min3_f32 v{tm}, abs(v{a}), abs(v{a+1}), v{tm}')
            e(f'v_max3_f32 v{tm+1}, v{a}, v{a+1}, v{tm+1}')
    e(f'v_cmp_gt_f32 s[44:45], s42, v{tm}')
    e(f'v_cmp_lt_f32 vcc, s43, v{tm+1}')
    e(f's_cbranch_vccnz L_cl{name}')
    lab(f'L_clr{name}')
    L = [f'L_cl{name}:']
    for a in As:
        L += [f'    v_min_f32 v{a}, s43, v{a}', f'    v_min_f32 v{a+1}, s43, v{a+1}']
    L.append(f'    s_branch L_clr{name}')
    ool.extend(L)
def gate_fast(a, r, dst, name):
    e(f'v_exp_f32 v{r}, v{a}')
    e(f'v_exp_f32 v{r+1}, v{a+1}')
    e(f'v_exp_f32 v{a+2}, v{a+2}')
    e(f'v_exp_f32 v{a+3}, v{a+3}')
    e(f'v_add_f32 v{r+2}, 1.0, v{r}')
    e(f'v_add_f32 v{r+3}, 1.0, v{r+1}')
    e('s_cmp_lg_u64 s[44:45], 0')
    e(f'v_fmac_f32 v{r+2}, v{r+2}, v{a+2}')
    e(f'v_fmac_f32 v{r+3}, v{r+3}, v{a+3}')
    e(f'v_sub_f32 v{r}, 1.0, v{r}')
    e(f'v_sub_f32 v{r+1}, 1.0, v{r+1}')
    e(f'v_rcp_f32 v{r+2}, v{r+2}')
    e(f'v_rcp_f32 v{r+3}, v{r+3}')
    e(f's_cbranch_scc1 L_sm{name}')
    lab(f'L_smr{name}')
    e(f'v_mul_f32 v{r}, v{r}, v{r+2}')
    e(f'v_mul_f32 v{r+1}, v{r+1}, v{r+3}')
    e(f'v_cvt_pk_bf16_f32 v{dst}, v{r}, v{r+1}')
    ool.extend([f'L_sm{name}:',
        f'    v_cmp_gt_f32 s[48:49], s42, abs(v{a})',
        f'    v_cmp_gt_f32 s[50:51], s42, abs(v{a+1})',
        f'    v_mul_f32 v{a}, s46, v{a}',
        f'    v_mul_f32 v{a+1}, s46, v{a+1}',
        f'    v_cndmask_b32 v{r}, v{r}, v{a}, s[48:49]',
        f'    v_cndmask_b32 v{r+1}, v{r+1}, v{a+1}, s[50:51]',
        f'    s_branch L_smr{name}'])
gate_consts()
if opt['t2']:
    e('v_and_b32 v100, 63, v0')
    e('v_lshlrev_b32 v101, 2, v100')
    for t in range(9):
        e(f's_add_u32 s63, s62, {(t*4+3)*4608}')
        for x in gate(MD(t), 104 + 4*(t % 2), 112 + t, 48): e(x)
        e(f'buffer_store_dword v{112+t}, v101, s[20:23], s63 offen sc1')
else:
    e('v_and_b32 v100, 63, v0')
    e('v_lshlrev_b32 v101, 4, v100')
    e(f's_add_u32 s63, s62, {7*18432}')
    if opt['full']:
        e('s_lshl_b32 s40, s24, 10')
        e(f's_add_u32 s40, s40, {SLOT}')
        e('v_add_u32 v102, s40, v101')
        e('ds_read_b128 v[124:127], v102')
    for t in range(9):
        if opt['fast']:
            if t % 3 == 0: gate_check([MD(t), MD(t+1), MD(t+2)], 102, f'c{t}')
            gate_fast(MD(t), 104 + 4*(t % 2), 112 + t, f'c{t}')
        else:
            if opt['full'] and t == 8: e('s_waitcnt lgkmcnt(0)')
            for x in gate(MD(t), 104 + 4*(t % 2), (127 if opt['full'] and t == 8 else 112 + t), 48): e(x)
        if t in (3, 7):
            e(f'buffer_store_dwordx4 v[{112+t-3}:{112+t}], v101, s[20:23], s63 offen sc1')
            e('s_add_u32 s63, s63, 18432')
    e(f's_add_u32 s63, s62, {6*18432}')
    if opt['full']: e('buffer_store_dwordx4 v[124:127], v101, s[20:23], s63 offen sc1')
    else: e('buffer_store_dword v120, v101, s[20:23], s63 offen offset:12 sc1')
e('s_branch L_fin')
def hbar():
    if opt['bst']:
        e('s_memtime s[64:65]')
        e('s_barrier')
        e('s_memtime s[66:67]')
        e('s_waitcnt lgkmcnt(0)')
        e('s_mov_b32 m0, s68'); e('s_nop 0')
        e('v_writelane_b32 v14, s64, m0')
        e('v_writelane_b32 v15, s66, m0')
        e('s_add_u32 s68, s68, 1')
    else: e('s_barrier')
lab('L_helper')
if opt['bst']: e('s_mov_b32 s68, 0')
def Y(i, t): return 40 + 4*(i*9+t)
def SN(t): return 148 + 4*t
e('v_mov_b32 v3, v101')
e('v_add_u32 v13, 4096, v101')
e('v_add_u32 v6, 4096, v6')
e('v_add_u32 v7, 4096, v7')
e('s_cmp_eq_u32 s26, 7')
e('s_cselect_b64 vcc, -1, 0')
e('v_cndmask_b32 v6, v13, v6, vcc')
e('v_cndmask_b32 v7, v13, v7, vcc')
if opt['sn32']: e('v_lshrrev_b32 v101, 2, v101')
e(f's_add_u32 s38, s34, {2*SLOT}')
e('v_add_u32 v4, s38, v101')
e(f's_add_u32 s38, s35, {2*SLOT+28672}')
e('v_add_u32 v5, s38, v101')
e('s_cmp_eq_u32 s26, 4')
e('s_cbranch_scc1 L_h4')
e(f'v_mov_b32 v36, {OOB}')
e(f'v_mov_b32 v12, {OOB}')
e('s_branch L_h5')
lab('L_h4')
e('s_mov_b32 s31, 0')
gettag('h')
lab('L_h5')
e('v_mov_b32 v38, s92')
e('v_mov_b32 v39, s93')
def dma_list(slot):
    L = []
    for k in range(7):
        pre = [f's_add_u32 m0, s34, {slot*SLOT + (k//4)*4096}', 's_nop 0']
        L.append(pre + [f'buffer_load_dwordx4 v{(3,3,3,3,13,6,7)[k]}, s[20:23], s36 offen offset:{(k%4)*1024} sc1 lds'] + ([f's_add_u32 s36, s36, {XS}'] if k == 6 else []))
    for k in range(6):
        pre = [f's_add_u32 m0, s35, {slot*SLOT + 28672 + (k//4)*4096}', 's_nop 0']
        L.append(pre + [f'buffer_load_dwordx4 v{3 if k < 4 else 13}, s[20:23], s37 offen offset:{(k%4)*1024} sc1 lds'] + (['s_add_u32 s37, s37, 24576'] if k == 5 else []))
    return L
def pst(b, pm):
    return [f'buffer_store_dwordx4 {vr(PK(b,pm))}, v{PA(b)}, s[20:23], 0 offen sc1', f'v_add_u32 v{PA(b)}, s{96+b}, v{PA(b)}']
def weave(dl, sl):
    res = []; n = len(sl); m = len(dl)
    for i in range(m):
        res.append(dl[i])
        for k in range((i*n)//m, ((i+1)*n)//m): res.append(sl[k])
    return res
def mix(dl, vl):
    n = len(dl)
    for i, d in enumerate(dl):
        for x in d: e(x)
        for x in vl[(i*len(vl))//n:((i+1)*len(vl))//n]: e(x)
    if n == 0:
        for x in vl: e(x)
def nvm(dl, after):
    return len(dl) - 1 - after
def snapr():
    if opt['sn32']:
        for t in range(9):
            for h in range(2):
                o = (t if t < 7 else t-7)*4 + 2*h
                e(f'ds_read2st64_b32 {vp(SN(t)+2*h)}, v{4 if t < 7 else 5} offset0:{o} offset1:{o+1}')
            if t == 6: e('s_waitcnt lgkmcnt(4)')
        e('s_waitcnt lgkmcnt(0)')
        return
    for t in range(9):
        e(f'ds_read_b128 {vr(SN(t))}, v4 offset:{t*1024}' if t < 7 else f'ds_read_b128 {vr(SN(t))}, v5 offset:{(t-7)*1024}')
    e('s_waitcnt lgkmcnt(0)')
FM = [f'v_fmac_f32 v{Y(i,t)+r}, s{40+i}, v{SN(t)+r}' for t in range(9) for i in range(3) for r in range(4)]
def FMm(m):
    L = []
    for t in range(9):
        for i in range(3):
            if DCH[i][m] == 0: continue
            first = all(DCH[i][mm] == 0 for mm in range(m))
            for r in range(4): L.append(f'{"v_mul_f32" if first else "v_fmac_f32"} v{Y(i,t)+r}, s{40+i}, v{SN(t)+r}')
    return L
e(f's_add_u32 s36, s36, {XS}')
e('s_add_u32 s37, s37, 24576')
e('s_barrier')
mix(dma_list(1), [])
if opt['b1e'] == 1: mix([pst(b, 0) for b in range(4)], [])
c('coefficient table: s40.. = 3 x 6, consumed from the front')
for m in range(6):
    for i in range(3): e(f's_mov_b32 s{40+3*m+i}, {fh(DCH[i][m])}')
hbar()
if opt['b1e'] == 2: mix([pst(b, 0) for b in range(4)], [])
ND0 = opt['nd0']
def only4(name, fn):
    e('s_cmp_lg_u32 s26, 4')
    e(f's_cbranch_scc1 L_o4{name}')
    fn()
    lab(f'L_o4{name}')
def hflag(off):
    e('s_lshl_b32 s30, s2, 3')
    e(f's_add_u32 s30, s30, {FLAG_OFF+off}')
    e(f's_mov_b64 exec, {(1<<REP)-1}')
    e('buffer_store_dwordx2 v[38:39], v12, s[20:23], s30 offen sc1')
    e('s_mov_b64 exec, -1')
def hiter(name, fm, sa=(), sc_=(), flag0=None, flag1=None, chk=None):
    if chk is not None: poll_issue(chk)
    for g_ in sa:
        for x in g_: e(x)
    hbar()
    if fm: snapr()
    D2 = dma_list(2)
    mix(D2[:ND0], [])
    e(f's_waitcnt vmcnt({ND0 + len(sa)})')
    if chk is not None:
        def f():
            poll_check()
            e(f's_cbranch_scc0 L_o4c{name}')
            poll(chk, name, opt['fslp'])
        only4('c'+name, f)
    hbar()
    if flag0 is not None: hflag(flag0)
    mix(D2[ND0:] + dma_list(0), fm[:40])
    e('s_waitcnt vmcnt(13)')
    hbar()
    if flag1 is not None: hflag(flag1)
    mix(list(sc_) + dma_list(1), fm[40:])
    if fm:
        for k in range(15): e(f's_mov_b32 s{40+k}, s{43+k}')
    e(f's_waitcnt vmcnt({13 + len(sc_) + (1 if flag1 is not None else 0)})')
    hbar()
ST = [pst(b, pm) for pm in range(5) for b in range(4)]
if opt['b1e']: hiter('0', [], sc_=ST[4:8], flag0=1*FA)
else: hiter('0', [], sa=ST[0:4], sc_=ST[4:8], flag1=1*FA)
hiter('1', FMm(0), sa=ST[8:12], sc_=ST[12:16], flag0=2*FA, flag1=3*FA, chk=1*FA)
hiter('2', FMm(1), sa=ST[16:20], flag1=4*FA, chk=2*FA)
hiter('3', FMm(2), chk=3*FA)
hiter('4', FMm(3), chk=4*FA)
hiter('5', FMm(4))
c('---- last product')
if opt['sw'] == 4: stamp(6)
hbar()
snapr()
F0 = opt['f0']
D2 = dma_list(2)
mix(D2[:ND0], FM[:F0])
e(f's_waitcnt vmcnt({ND0})')
hbar()
WD = []
for k in range(12):
    WD.append([f's_add_u32 m0, s61, {(k//4)*4096}', 's_nop 0', f'buffer_load_dwordx4 v3, s[20:23], s60 offen offset:{(k%4)*1024} sc1 lds'] + (['s_add_u32 s60, s60, 4096'] if k % 4 == 3 else []))
e('s_mul_i32 s61, s24, 12288')
e(f's_add_u32 s60, s61, {WO_OFF}')
mix(D2[ND0:] + WD, FM[F0:])
gate_consts()
e('s_mov_b32 s63, s62')
nst = [0]
if opt['t2']:
    opt['full'] = 0
    e('v_lshrrev_b32 v9, 2, v3')
HORD = ([24, 25, 26] + list(range(24))) if opt['full'] else list(range(27))
def hgate(n0, n1):
    for n in HORD[n0:n1]:
        t, i = divmod(n, 3)
        if opt['fast']:
            if i == 0: gate_check([Y(0,t), Y(1,t), Y(2,t)], 192, f'h{n}')
            gate_fast(Y(i, t), 184 + 4*(n % 2), 200 + n, f'h{n}')
        else:
            for x in gate(Y(i, t), 184 + 4*(n % 2), 200 + n, 48): e(x)
        if opt['t2']:
            e(f's_add_u32 s63, s62, {(t*4+i)*4608}')
            e(f'buffer_store_dword v{200+n}, v9, s[20:23], s63 offen sc1'); nst[0] += 1
            continue
        if n % 4 == 3:
            e(f'buffer_store_dwordx4 v[{200+n-3}:{200+n}], v3, s[20:23], s63 offen sc1')
            e('s_add_u32 s63, s63, 18432'); nst[0] += 1
        if n == 26 and not opt['full']:
            e('buffer_store_dwordx3 v[224:226], v3, s[20:23], s63 offen sc1'); nst[0] += 1
g1 = opt['g1']; g2 = min(27, g1 + opt['g2'])
hgate(0, g1)
e(f's_waitcnt vmcnt({nst[0]+12})')
hbar()
if opt['full']:
    assert g1 >= 3
    e('s_lshl_b32 s40, s24, 10')
    e(f's_add_u32 s40, s40, {SLOT}')
    e('v_add_u32 v8, s40, v3')
    e('ds_write_b128 v8, v[224:227]')
hgate(g1, g2)
if opt['full']: e('s_waitcnt lgkmcnt(0)')
if opt['pbe']: e(f's_waitcnt vmcnt({nst[0]})')
hbar()
if opt['tr']:
    hgate(g2, opt['x1'])
    e(f's_waitcnt vmcnt({nst[0]-5})')
    e('s_barrier')
    e('s_lshl_b32 s30, s28, 7')
    e('s_lshl_b32 s31, s29, 3')
    e('s_add_u32 s30, s30, s31')
    e(f's_add_u32 s30, s30, {FLAG_OFF+ZFL}')
    e('s_mov_b64 exec, 1')
    e('buffer_store_dwordx2 v[38:39], v12, s[20:23], s30 offen sc1')
    e('s_mov_b64 exec, -1')
    hgate(opt['x1'], 27)
else:
    hgate(g2, 27)
if opt['bst']:
    e('s_memtime s[64:65]')
    e('s_waitcnt lgkmcnt(0)')
    e('s_mov_b32 m0, s68'); e('s_nop 0')
    e('v_writelane_b32 v14, s64, m0')
    e('v_writelane_b32 v15, s64, m0')
    e('s_cmp_lg_u32 s26, 4')
    e('s_cbranch_scc1 L_fin')
    e('s_mov_b32 s22, 0x10000000')
    e('s_lshl_b32 s33, s2, 9')
    e(f's_add_u32 s33, s33, {STAMP_OFF + (128<<10)*4}')
    e('v_lshrrev_b32 v1, 1, v3')
    e('buffer_store_dwordx2 v[14:15], v1, s[20:23], s33 offen')
if opt['t2']:
    assert opt['gmap']
    lab('L_fin')
    e('s_setprio 0')
    e('s_load_dwordx2 s[6:7], s[0:1], 24')
    if not opt['es']: stamp(7)
    e('v_and_b32 v2, 63, v0')
    e('v_lshlrev_b32 v3, 4, v2')
    e('v_lshlrev_b32 v4, 2, v2')
    e('v_add_u32 v6, 4096, v4')
    e('v_mov_b32 v37, 0')
    c('pair u = g>>1 ; this WG consumes (rh = g&1, tau = cg) of both parity groups ; wave = (parity, phase)')
    e('s_lshr_b32 s40, s28, 1')
    e('s_and_b32 s41, s28, 1')
    e('s_lshr_b32 s42, s26, 2')
    e('s_lshl_b32 s43, s40, 2')
    e('s_lshl_b32 s44, s42, 1')
    e('s_add_u32 s43, s43, s44')
    e('s_add_u32 s43, s43, s41')
    e('s_mul_i32 s43, s43, 9')
    e('s_add_u32 s43, s43, s29')
    e('s_lshl_b32 s43, s43, 2')
    e('s_add_u32 s43, s43, s24')
    e('s_mul_i32 s46, s43, 4608')
    e(f's_add_u32 s46, s46, {Z_OFF}')
    e('s_cmp_ge_u32 s40, 7')
    e('s_cselect_b32 s37, 4608000, 0')
    e('s_cselect_b32 s36, 7, 0')
    e('s_sub_u32 s32, s40, s36')
    e('s_lshl_b32 s32, s32, 1')
    e('s_add_u32 s32, s32, s41')
    e('s_mul_i32 s32, s32, 144')
    e('s_add_u32 s32, s32, s29')
    e('s_mul_i32 s33, s26, 18')
    e('s_add_u32 s32, s32, s33')
    e('s_mul_i32 s45, s32, 2304')
    e('s_waitcnt lgkmcnt(0)')
    e('s_add_u32 s6, s6, s37'); e('s_addc_u32 s7, s7, 0')
    srd(16, 6, 7, 4608000)
    c('LDS write addresses: j*2304 + row8*288 + col*16 / +256+col*2 ; j = 4*(lane>>4)+r')
    e('s_lshl_b32 s47, s24, 1')
    e('s_sub_u32 s47, s42, s47')
    e('s_add_u32 s47, s47, 6')
    e('s_mul_i32 s47, s47, 288')
    e(f's_add_u32 s47, s47, {SLOT}')
    e('v_lshrrev_b32 v7, 4, v2')
    e('v_mul_u32_u24 v7, 9216, v7')
    e('v_add_u32 v7, s47, v7')
    e('v_and_b32 v8, 15, v2')
    e('v_lshl_add_u32 v11, v8, 1, v7')
    e('v_lshl_add_u32 v10, v8, 4, v7')
    e('s_mul_i32 s48, s26, 4608')
    e(f's_add_u32 s48, s48, {SLOT}')
    e('v_add_u32 v12, s48, v3')
    e('v_add_u32 v13, s45, v3')
    e('v_add_u32 v14, 18432, v13')
    e('v_cmp_gt_u32 vcc, 16, v2')
    e('v_cmp_gt_u32 s[48:49], 32, v2')
    e('v_add_u32 v36, 4096, v14')
    e(f'v_mov_b32 v5, {OOB}')
    e('v_cndmask_b32 v15, v14, v13, vcc')
    e('v_cndmask_b32 v36, v5, v36, s[48:49]')
    e('v_mov_b32 v34, 0')
    e('v_mov_b32 v35, 0')
    e('s_mul_i32 s30, s41, 9')
    e('s_add_u32 s30, s30, s29')
    e('s_lshl_b32 s30, s30, 3')
    if opt['inbox']:
        c('every WG has a private 256-B inbox; a producer drops its tag into the 18 inboxes of its pair')
        e('s_mul_i32 s50, s40, 4608')
        e('s_add_u32 s30, s30, s50')
        e(f's_add_u32 s30, s30, {FLAG_OFF+AFL}')
        e('s_lshl_b32 s50, s27, 8')
        e(f's_add_u32 s50, s50, {FLAG_OFF+AFL}')
        e('v_lshlrev_b32 v37, 8, v2')
    else:
        e('s_lshl_b32 s50, s40, 8')
        e(f's_add_u32 s50, s50, {FLAG_OFF+ZFL}')
        e('s_add_u32 s30, s30, s50')
    def bf(f): return vr(76 + 4*f)
    def preB():
        for f in range(45):
            e(f'ds_read_b128 {bf(f)}, v3 offset:{f*1024}')
            if f % 12 == 11: e('s_waitcnt lgkmcnt(4)')
    e('v_min_u32 v5, 17, v2')
    e('v_lshlrev_b32 v5, 3, v5')
    e('s_mov_b32 s51, 0')
    if opt['pbe']: preB()
    e('s_waitcnt vmcnt(0)')
    e('s_barrier')
    if not opt['es']: stamp(8)
    e('s_cmp_lg_u32 s26, 4')
    e('s_cbranch_scc1 L_e1b')
    setflag([], 0x3ffff if opt['inbox'] else 1)
    lab('L_e1b')
    if not opt['pbe']: preB()
    e('s_cmp_lg_u32 s26, 4')
    e('s_cbranch_scc1 L_e2')
    lab('L_zpoll')
    e('buffer_load_dwordx2 v[8:9], v5, s[20:23], s50 offen sc1')
    e('s_add_u32 s51, s51, 1')
    e('s_cmp_gt_u32 s51, 400000')
    e('s_cbranch_scc1 L_e2')
    e('s_waitcnt vmcnt(0)')
    e('v_cmp_ne_u64 vcc, s[92:93], v[8:9]')
    e('s_cbranch_vccz L_e2')
    if opt['zslp']: e(f's_sleep {opt["zslp"]}')
    e('s_branch L_zpoll')
    lab('L_e2')
    e('s_barrier')
    if not opt['es']: stamp(9)
    for J in range(18):
        e(f'buffer_load_dword v{16+J}, v{4 if J < 16 else 6}, s[20:23], s46 offen offset:{(J%16)*256} sc1')
    e('s_waitcnt lgkmcnt(0)')
    for ks in range(5):
        e(f's_waitcnt vmcnt({max(0, 18-4*(ks+1))})')
        if ks == 0 and not opt['es']: stamp(10)
        for T in range(9):
            r = 40 + 4*T
            cin = '0' if ks == 0 else vr(r)
            e(f'v_mfma_f32_16x16x32_bf16 {vr(r)}, v[{16+4*ks}:{16+4*ks+3}], {bf(T*5+ks)}, {cin}')
    e('s_nop 7')
    e('s_nop 1')
    for r in range(4):
        d = 140 + 6*r
        A = lambda T: 40 + 4*T + r
        for h in range(4): e(f'v_cvt_pk_bf16_f32 v{d+h}, v{A(2*h)}, v{A(2*h+1)}')
        e(f'v_cvt_pk_bf16_f32 v{d+4}, v{A(8)}, v{A(8)}')
        e(f'ds_write_b128 v10, v[{d}:{d+3}] offset:{r*2304}')
        e(f'ds_write_b16 v11, v{d+4} offset:{r*2304+256}')
    e('s_waitcnt lgkmcnt(0)')
    e('s_barrier')
    for n in range(5): e(f'ds_read_b128 {vr(76+4*n)}, v12 offset:{n*1024}')
    for n in range(5):
        e(f's_waitcnt lgkmcnt({4-n})')
        va, off = ((13, 0), (13, 1024), (15, 2048), (14, 3072), (36, 0))[n]
        e(f'buffer_store_dwordx4 {vr(76+4*n)}, v{va}, s[16:19], 0 offen offset:{off}{OF[opt["of3"]]}')
else:
    lab('L_fin')
    e('s_setprio 0')
    e('s_load_dwordx2 s[6:7], s[0:1], 24')
    if not opt['es']: stamp(7)
    e('v_and_b32 v2, 63, v0')
    e('v_lshlrev_b32 v3, 4, v2')
    e('v_mov_b32 v37, 0')
    e('s_lshr_b32 s41, s26, 2')
    if opt['tr']:
        c('helpers take an early set, compute waves a late one')
        e('s_mul_i32 s40, s28, 18')
        e('s_add_u32 s40, s40, s29')
        e('s_add_u32 s42, s41, 4')
        e('s_cmp_ge_u32 s29, s42')
        e('s_cselect_b32 s42, 4, 0')
        e('s_add_u32 s40, s40, s42')
        e('s_cmp_eq_u32 s41, 0')
        e('s_cselect_b32 s42, 5, 0')
        e('s_add_u32 s40, s40, s42')
    else:
        e('s_lshl_b32 s40, s27, 1')
        e('s_add_u32 s40, s40, s41')
    e('s_mul_i32 s30, s40, 7282')
    e('s_lshr_b32 s30, s30, 16')
    e('s_mul_i32 s31, s30, 9')
    e('s_sub_u32 s31, s40, s31')
    if opt['gmap']:
        e('s_lshr_b32 s32, s30, 2')
        e('s_bfe_u32 s38, s30, 0x10001')
        e('s_and_b32 s33, s30, 1')
        e('s_cmp_ge_u32 s32, 7')
        e('s_cselect_b32 s37, 4608000, 0')
        e('s_cselect_b32 s36, 7, 0')
        e('s_sub_u32 s32, s32, s36')
        e('s_lshl_b32 s32, s32, 1')
        e('s_add_u32 s33, s33, s32')
    else:
        e('s_mul_i32 s32, s30, 4682')
        e('s_lshr_b32 s32, s32, 16')
        e('s_mul_i32 s33, s32, 14')
        e('s_sub_u32 s33, s30, s33')
        e('s_lshr_b32 s37, s32, 1')
        e('s_and_b32 s38, s32, 1')
        e('s_mul_i32 s37, s37, 4608000')
    e('s_waitcnt lgkmcnt(0)')
    e('s_add_u32 s6, s6, s37'); e('s_addc_u32 s7, s7, 0')
    srd(16, 6, 7, 4608000)
    e('s_mul_i32 s39, s33, 1152')
    e('s_add_u32 s39, s39, s38')
    e('s_add_u32 s39, s39, 6')
    e('s_lshl_b32 s45, s31, 2')
    e('s_add_u32 s45, s45, s24')
    e('s_mul_i32 s42, s45, 171')
    e('s_lshr_b32 s42, s42, 9')
    e('s_mul_i32 s43, s42, 3')
    e('s_sub_u32 s43, s45, s43')
    e('s_sub_u32 s44, s45, 28')
    e('s_cmp_ge_u32 s45, 27')
    e('s_cselect_b32 s42, s44, s42')
    e('s_cselect_b32 s43, 3, s43')
    e('s_cmp_eq_u32 s45, 27')
    e('s_cselect_b32 s42, 8, s42')
    e('s_lshl_b32 s42, s42, 3')
    e('s_lshl_b32 s43, s43, 1')
    e('s_add_u32 s42, s42, s39')
    e('s_sub_u32 s42, s42, s43')
    e('s_mul_i32 s45, s42, 288')
    e('v_lshrrev_b32 v7, 4, v2')
    e(f'v_mul_u32_u24 v7, {4*72*288}, v7')
    e('v_add_u32 v7, s45, v7')
    e('v_and_b32 v8, 15, v2')
    e('v_lshl_add_u32 v11, v8, 1, v7')
    e('v_lshl_add_u32 v10, v8, 4, v7')
    def bf(f): return vr(76 + 4*f)
    def preB():
        for f in range(45):
            e(f'ds_read_b128 {bf(f)}, v3 offset:{f*1024}')
            if f % 12 == 11: e('s_waitcnt lgkmcnt(4)')
    def zpoll(name):
        e('v_min_u32 v5, 8, v2')
        e('v_lshlrev_b32 v5, 3, v5')
        e('s_mov_b32 s51, 0')
        lab(f'L_zp{name}')
        e('buffer_load_dwordx2 v[8:9], v5, s[20:23], s50 offen sc1')
        e('s_add_u32 s51, s51, 1')
        e('s_cmp_gt_u32 s51, 400000')
        e(f's_cbranch_scc1 L_zd{name}')
        e('s_waitcnt vmcnt(0)')
        e('v_cmp_ne_u64 vcc, s[92:93], v[8:9]')
        e(f's_cbranch_vccz L_zd{name}')
        e('s_sleep 1')
        e(f's_branch L_zp{name}')
        lab(f'L_zd{name}')
    if opt['tr']:
        e('s_mul_i32 s46, s40, 18432')
        e('s_lshl_b32 s47, s24, 10')
        e('s_add_u32 s46, s46, s47')
        e(f's_add_u32 s46, s46, {Z_OFF}')
        e('s_mul_i32 s48, s41, 18432')
        e(f's_add_u32 s48, s48, {SLOT}')
        e('s_add_u32 s47, s47, s48')
        e('s_lshl_b32 s49, s24, 2')
        e('s_add_u32 s48, s48, s49')
        e('v_add_u32 v4, s48, v3')
        e('v_mov_b32 v34, 0')
        e('v_mov_b32 v35, 0')
        e('s_lshl_b32 s50, s28, 7')
        e(f's_add_u32 s50, s50, {FLAG_OFF+ZFL}')
        def zdma(name):
            for i in range(5):
                if i == 4:
                    e('s_cmp_ge_u32 s24, 2')
                    e(f's_cbranch_scc1 L_zm{name}')
                e(f's_add_u32 m0, s47, {i*4096}')
                e('s_nop 0')
                e('buffer_load_dwordx4 v3, s[20:23], s46 offen sc1 lds')
                if i < 4: e('s_add_u32 s46, s46, 4096')
            lab(f'L_zm{name}')
        e('s_cmp_lt_u32 s26, 4')
        e('s_cbranch_scc1 L_fc')
        c('---- helpers: early set')
        e('s_cmp_lg_u32 s26, 4')
        e('s_cbranch_scc1 L_zdh')
        zpoll('h')
        e('s_waitcnt vmcnt(0)')
        e('s_barrier')
        if not opt['es']: stamp(8)
        zdma('h')
        preB()
        e('s_waitcnt vmcnt(0) lgkmcnt(0)')
        e('s_barrier')
        stamp(9)
        e('s_branch L_gemm')
        lab('L_fc')
        c('---- compute waves: late set')
        e('s_add_u32 s50, s50, 4096')
        e('s_waitcnt vmcnt(0)')
        e('s_barrier')
        if not opt['es']: stamp(8)
        e('s_cmp_lg_u32 s26, 0')
        e('s_cbranch_scc1 L_fc1')
        setflag(['s_lshl_b32 s30, s29, 3', 's_add_u32 s30, s30, s50'])
        lab('L_fc1')
        preB()
        e('s_cmp_lg_u32 s26, 0')
        e('s_cbranch_scc1 L_zdc')
        zpoll('c')
        e('s_barrier')
        stamp(9)
        zdma('c')
        e('s_waitcnt vmcnt(0) lgkmcnt(0)')
        e('s_barrier')
        stamp(10)
        lab('L_gemm')
    else:
        e('s_mul_i32 s46, s27, 36864')
        e('s_lshl_b32 s47, s26, 10')
        e('s_add_u32 s46, s46, s47')
        e(f's_add_u32 s46, s46, {Z_OFF}')
        e('s_mul_i32 s48, s41, 18432')
        e('s_lshl_b32 s49, s24, 2')
        e('s_add_u32 s48, s48, s49')
        e(f's_add_u32 s48, s48, {SLOT}')
        e('v_add_u32 v4, s48, v3')
        e('v_mov_b32 v34, 0')
        e('v_mov_b32 v35, 0')
        if opt['fl']:
            for k in range(4): e(f'v_mov_b32 v{36+k}, s{92+k%2}')
            e('s_mul_i32 s50, s28, 1152')
            e(f's_add_u32 s50, s50, {FLAG_OFF+ZF2}')
            e('s_lshl_b32 s30, s27, 7')
            e(f's_add_u32 s30, s30, {FLAG_OFF+ZF2}')
        e('s_waitcnt vmcnt(0)')
        e('s_barrier')
        if not opt['es']: stamp(8)
        def bf(f): return vr(76 + 4*f)
        def preB():
            for f in range(45):
                e(f'ds_read_b128 {bf(f)}, v3 offset:{f*1024}')
                if f % 12 == 11: e('s_waitcnt lgkmcnt(4)')
        e('s_cmp_lg_u32 s26, 4')
        e('s_cbranch_scc1 L_e1b')
        if opt['fl']:
            e('s_mov_b64 exec, 0xff')
            e('buffer_store_dwordx4 v[36:39], v3, s[20:23], s30 offen sc1')
            e('s_mov_b64 exec, -1')
        else:
            e('s_lshl_b32 s50, s28, 7')
            e(f's_add_u32 s50, s50, {FLAG_OFF+ZFL}')
            setflag(['s_lshl_b32 s30, s29, 3', 's_add_u32 s30, s30, s50'])
        lab('L_e1b')
        preB()
        e('s_cmp_lg_u32 s26, 4')
        e('s_cbranch_scc1 L_e2')
        e('v_min_u32 v5, 8, v2')
        e(f'v_lshlrev_b32 v5, {7 if opt["fl"] else 3}, v5')
        e('s_mov_b32 s51, 0')
        lab('L_zpoll')
        e('buffer_load_dwordx2 v[8:9], v5, s[20:23], s50 offen sc1')
        e('s_add_u32 s51, s51, 1')
        e('s_cmp_gt_u32 s51, 400000')
        e('s_cbranch_scc1 L_e2')
        e('s_waitcnt vmcnt(0)')
        e('v_cmp_ne_u64 vcc, s[92:93], v[8:9]')
        e('s_cbranch_vccz L_e2')
        e('s_sleep 1')
        e('s_branch L_zpoll')
        lab('L_e2')
        e('s_barrier')
        stamp(9)
        for i in range(5):
            if i == 4:
                e('s_cmp_ge_u32 s26, 4')
                e('s_cbranch_scc1 L_e3')
            e(f's_add_u32 m0, s47, {SLOT + i*8192}')
            e('s_nop 0')
            e('buffer_load_dwordx4 v3, s[20:23], s46 offen sc1 lds')
            if i < 4: e('s_add_u32 s46, s46, 8192')
        lab('L_e3')
        e('s_waitcnt vmcnt(0) lgkmcnt(0)')
        e('s_barrier')
        stamp(10)
    if opt['stamps']: e('s_waitcnt lgkmcnt(0)')
    for J in range(14): e(f'ds_read_b32 v{16+J}, v4 offset:{J*1024}')
    for ks in range(5):
        if ks == 0: e('s_waitcnt lgkmcnt(10)')
        if ks == 1: e('s_waitcnt lgkmcnt(10)')
        if ks == 2: e('s_waitcnt lgkmcnt(6)')
        if ks == 3: e('s_waitcnt lgkmcnt(2)')
        if ks == 4: e('s_waitcnt lgkmcnt(0)')
        for T in range(9):
            r = 40 + 4*T
            cin = '0' if ks == 0 else vr(r)
            e(f'v_mfma_f32_16x16x32_bf16 {vr(r)}, v[{16+4*ks}:{16+4*ks+3}], {bf(T*5+ks)}, {cin}')
            if ks == 0 and T < 4: e(f'ds_read_b32 v{30+T}, v4 offset:{(14+T)*1024}')
    if opt['tr']:
        e('s_cmp_lt_u32 s26, 4')
        e('s_cbranch_scc1 L_ne3')
        e('s_barrier')
        lab('L_ne3')
    e('s_nop 7')
    e('s_nop 1')
    if opt['trip']:
        e('s_memrealtime s[66:67]')
        e('s_waitcnt lgkmcnt(0)')
        e('s_sub_u32 s66, s66, s64')
        e(f's_sub_u32 s66, s66, {opt["trip"]}')
        e(f's_cmp_lt_u32 s66, {opt["tlo"] - opt["trip"]}')
        e('s_cselect_b32 s66, 1.0, 0')
        e('s_cmp_eq_u32 s2, 100')
        e('s_cselect_b32 s66, s66, 0')
        e('v_add_f32 v40, s66, v40')
    if opt['fake']:
        e('s_cmp_ge_u32 s27, 126')
        e('s_cselect_b32 s45, 126, 0')
        e('s_sub_u32 s45, s27, s45')
        e('s_mul_i32 s45, s45, 36864')
        e('s_mul_i32 s44, s26, 4608')
        e('s_add_u32 s45, s45, s44')
        e('v_add_u32 v10, s45, v3')
        for r in range(4):
            d = 140 + 6*r
            A = lambda T: 40 + 4*T + r
            for h in range(4): e(f'v_cvt_pk_bf16_f32 v{d+h}, v{A(2*h)}, v{A(2*h+1)}')
            e(f'v_cvt_pk_bf16_f32 v{d+4}, v{A(8)}, v{A(8)}')
            e(f'buffer_store_dwordx4 v[{d}:{d+3}], v10, s[16:19], 0 offen offset:{r*1024}{OF[opt["of"]]}')
    else:
      for r in range(4):
          d = 140 + 6*r
          A = lambda T: 40 + 4*T + r
          for h in range(4): e(f'v_cvt_pk_bf16_f32 v{d+h}, v{A(2*h)}, v{A(2*h+1)}')
          e(f'v_cvt_pk_bf16_f32 v{d+4}, v{A(8)}, v{A(8)}')
          e(f'buffer_store_dwordx4 v[{d}:{d+3}], v10, s[16:19], 0 offen{OF[opt["of"]]}')
          e(f'buffer_store_short v{d+4}, v11, s[16:19], 0 offen offset:256{OF[opt["of2"]]}')
          if r < 3:
              e(f'v_add_u32 v10, {72*288}, v10')
              e(f'v_add_u32 v11, {72*288}, v11')
if opt['dead2']:
    e('s_cmp_eq_u32 s92, 0')
    e('s_cbranch_scc1 L_end')
    lab('L_dl2')
    e('s_memrealtime s[66:67]')
    e('s_waitcnt lgkmcnt(0)')
    e('s_sub_u32 s66, s66, s92')
    e(f's_cmp_lt_u32 s66, {opt["dead2"]}')
    e('s_cbranch_scc1 L_dl2')
if opt['dead']:
    if opt['devt']:
        e('s_cmp_lg_u32 s26, 0')
        e('s_cbranch_scc1 L_end')
    e('s_waitcnt vmcnt(0)')
    lab('L_dl')
    e('s_memrealtime s[66:67]')
    e('s_waitcnt lgkmcnt(0)')
    e('s_sub_u32 s66, s66, s64')
    e(f's_cmp_lt_u32 s66, {opt["dead"]}')
    e('s_cbranch_scc1 L_dl')
if opt['stamps']:
    e('s_waitcnt vmcnt(0)')
    stamp(11)
    e('s_waitcnt lgkmcnt(0)')
    e(f's_cmp_lg_u32 s26, {opt["sw"]}')
    e('s_cbranch_scc1 L_end')
    if opt['dbgst']:
        e(f's_cmp_lg_u32 s2, {opt["dbgst"]}')
        e('s_cbranch_scc1 L_end')
        e('s_load_dwordx2 s[56:57], s[0:1], 32')
        e('s_waitcnt lgkmcnt(0)')
        srd(16, 56, 57, 256)
        e('v_mov_b32 v1, 0')
        for i in range(1, 12):
            e(f's_sub_u32 s33, s{64+2*i}, s64')
            e('v_mov_b32 v4, s33')
            e(f'buffer_store_dword v4, v1, s[16:19], 0 offen offset:{4+4*i}')
        e('s_sub_u32 s33, s94, s90')
        e('v_mov_b32 v4, s33')
        e('buffer_store_dword v4, v1, s[16:19], 0 offen offset:56')
        e('s_branch L_end')
    e('s_mov_b32 s22, 0x10000000')
    e('s_lshl_b32 s33, s2, 7')
    e(f's_add_u32 s33, s33, {STAMP_OFF}')
    e('v_mov_b32 v1, s33')
    for i in range(6):
        for k in range(4): e(f'v_mov_b32 v{4+k}, s{64+4*i+k}')
        e(f'buffer_store_dwordx4 v[4:7], v1, s[20:23], 0 offen offset:{16*i}')
        e('s_nop 1')
lab('L_end')
e('s_endpgm')
out.extend(ool)
tail = f"""
.section .rodata,"a"
.p2align 6
.amdhsa_kernel {NAME}_kernel
  .amdhsa_next_free_vgpr 256
  .amdhsa_next_free_sgpr 100
  .amdhsa_accum_offset 256
  .amdhsa_group_segment_fixed_size 0
  .amdhsa_kernarg_size 48
  .amdhsa_user_sgpr_count 2
  .amdhsa_user_sgpr_kernarg_segment_ptr 1
  .amdhsa_system_sgpr_workgroup_id_x 1
.end_amdhsa_kernel
"""
open(sys.argv[1], 'w').write(hdr + '\n'.join(out) + '\n' + tail)
```

```python
import sys, struct
import numpy as np
from f44 import matrices, PTS
NAME = 'standalone__autoregressive_conv_wavenet__speech'
opt = dict(stamps=0, LA=26, smallfix=1, ldf=0, QS=28, prio=1, g1=5, g2=7, bst=0, nd0=7, wsp=5, f0=30, slp=1, cpf=3, sw=4, dly=0, pf=0, early=1, dbgst=0, rep=1, rstr=4352, pre=0, shr=1, agg=1, gslp=2, es=0, word=1, skx=0, skw=0, of=0, of2=0, gmap=1, trip=0, tlo=0, fast=0, sn32=0, lat=9, b1e=2, fslp=6, pad=0, mord=1, tdesc=0, tr=0, x1=24, full=1, fl=0, wso=0, dead=0, fake=0, t2=1, of3=2, dead2=0, pbe=0, zslp=1, inbox=0, warm=0, xpad=0, devt=0, dw=0, x4=1, tlb=1)
for a in sys.argv[2:]:
    k, v = a.split('='); assert k in opt, k; opt[k] = int(v)
out = []
def e(s): out.append('    ' + s)
def lab(s): out.append(s + ':')
def c(s): out.append('    ; ' + s)
def fh(x): return '0x%08x' % struct.unpack('<I', struct.pack('<f', float(x)))[0]
AT, G, BT = matrices()
GS = G.copy()
for m in range(6): GS[m] *= PTS[m]**3
CH = np.zeros((3, 7))
for i in range(3):
    for m in range(6): CH[i][m] = PTS[m]**(i-3)
DCH = CH[:, :6] - CH[:, 1:7]
LOG2E = 1.4426950408889634
LDF = {0: '', 1: ' nt'}[opt['ldf']]
OF = {0:'', 1:' nt', 2:' sc1', 3:' sc0 sc1'}
PRF = {1: ' sc1', 2: '', 3: ' sc0 sc1'}.get(opt['pre'], '')
PF_ = {0: ' sc1', 1: ' sc0 sc1', 2: ' sc1 nt', 3: ' sc0 sc1 nt'}[opt['pf']]
XROWS = 2032
XS = XROWS*96
U_BYTES = 4*21*XS
WT_OFF = U_BYTES
WT_BYTES = 9*21*24576
Z_OFF = WT_OFF + WT_BYTES
Z_BYTES = 28*2*9*18*1024
FLAG_OFF = Z_OFF + Z_BYTES
REP = opt['rep']; RSTR = opt['rstr']; FA = REP*RSTR
ZFL = 5*FA
GOF = ZFL + 8192
AFL = (GOF + 8*4352 + 1023)//1024*1024
ZF2 = AFL + 32768
WO_OFF = FLAG_OFF + ZF2 + 32768
WS_USED = WO_OFF + 45*1024
STAMP_OFF = 268435456 - (1 << 20)
SLOT = 53248
XL = 2*SLOT + 8192
WL = SLOT
LDS_MAIN = 3*SLOT
OOB = 0x7f000000
hdr = f"""; Kernarg layout for this problem (48 bytes, ptrs only, base s[0:1]):
; Algorithm: the dilation-2 causal conv splits into 4 independent streams (batch, time parity); each is evaluated with an
; exact F(4,4) Toom-Cook reformulation (7 products of 8 taps per 4 outputs, points +-a,+-b,+-c,inf), fp32 accumulation.
; @launch grid=(252,1,1) block=(512,1,1) lds={LDS_MAIN}
.amdgcn_target "amdgcn-amd-amdhsa--gfx950"
.text
.globl {NAME}_kernel
.p2align 8
.type {NAME}_kernel,@function
{NAME}_kernel:
"""
def srd(d, lo, hi, nbytes):
    e(f's_mov_b32 s{d}, s{lo}')
    e(f's_and_b32 s{d+1}, s{hi}, 0xffff')
    e(f's_mov_b32 s{d+2}, {nbytes}')
    e(f's_mov_b32 s{d+3}, 0x00020000')
def vp(r): return f'v[{r}:{r+1}]'
def vr(r): return f'v[{r}:{r+3}]'
def pkfma(d, sc, a, b, nega=False):
    neg = ' neg_lo:[0,1,0] neg_hi:[0,1,0]' if nega else ''
    e(f'v_pk_fma_f32 {vp(d)}, s[{sc}:{sc+1}], {vp(a)}, {vp(b)}{neg}')
def pkadd(d, a, b, negb=False):
    neg = ' neg_lo:[0,1] neg_hi:[0,1]' if negb else ''
    e(f'v_pk_add_f32 {vp(d)}, {vp(a)}, {vp(b)}{neg}')
def sconst2(s, x):
    e(f's_mov_b32 s{s}, {fh(x)}'); e(f's_mov_b32 s{s+1}, {fh(x)}')
def stamp(i):
    if opt['stamps']: e(f's_memrealtime s[{64+2*i}:{65+2*i}]')
    elif opt['devt'] == i and i: e('s_memrealtime s[64:65]')
def PK(b, pm):
    n = pm*4 + b
    return 184 + 4*n if n < 18 else 16 + 4*(n-18)
PA = lambda b: 32 + b
def XOFF(s):
    if opt['xpad']: return (2400 + (6-2*s)*288) if s <= 3 else (14-2*s)*288
    return (12-2*s)*288
PT = 24

def gettag(name):
    lab(f'L_tag{name}')
    e('buffer_load_dwordx2 v[24:25], v37, s[16:19], 0 offen sc1')
    e('s_add_u32 s31, s31, 1')
    e('s_cmp_gt_u32 s31, 400000')
    e(f's_cbranch_scc1 L_tagd{name}')
    e('s_waitcnt vmcnt(0)')
    e('v_readfirstlane_b32 s92, v24')
    e('v_readfirstlane_b32 s93, v25')
    e('s_nop 3')
    e('s_cmp_eq_u32 s92, 0')
    e(f's_cbranch_scc1 L_tag{name}')
    lab(f'L_tagd{name}')
def setflag(pre, mask=1):
    for x in pre: e(x)
    e('v_mov_b32 v38, s92')
    e('v_mov_b32 v39, s93')
    e(f's_mov_b64 exec, {mask}')
    e('buffer_store_dwordx2 v[38:39], v37, s[20:23], s30 offen sc1')
    e('s_mov_b64 exec, -1')
def poll_issue(off):
    if off == 'A':
        e(f's_mov_b32 s30, {FLAG_OFF+AFL}')
        for k in range(4): e(f'buffer_load_dwordx2 {vp(PT+2*k)}, v{42+k}, s[20:23], s30 offen sc1')
        return
    e(f's_mov_b32 s30, {FLAG_OFF+off}')
    e(f'buffer_load_dwordx4 {vr(PT)}, v36, s[20:23], s30 offen{PF_}')
    e(f'buffer_load_dwordx4 {vr(PT+4)}, v36, s[20:23], s30 offen offset:16{PF_}')
def poll_check():
    e(f'v_cmp_ne_u64 vcc, s[92:93], {vp(PT)}')
    for k in range(1, 4):
        e(f'v_cmp_ne_u64 s[88:89], s[92:93], {vp(PT+2*k)}')
        e('s_or_b64 vcc, vcc, s[88:89]')
def poll(off, name, slp=None):
    e('s_mov_b32 s31, 0')
    lab(f'L_poll{name}')
    poll_issue(off)
    e('s_add_u32 s31, s31, 1')
    e('s_cmp_gt_u32 s31, 400000')
    e(f's_cbranch_scc1 L_pdone{name}')
    e('s_waitcnt vmcnt(0)')
    poll_check()
    e(f's_cbranch_scc0 L_pdone{name}')
    if opt['shr']: e('s_mov_b64 exec, vcc')
    e(f's_sleep {opt["slp"] if slp is None else slp}')
    e(f's_branch L_poll{name}')
    lab(f'L_pdone{name}')
    if opt['shr']: e('s_mov_b64 exec, -1')

e('s_cmp_ge_u32 s2, 252')
e('s_cbranch_scc1 L_end')
if opt['stamps']:
    for i in range(24): e(f's_mov_b32 s{64+i}, 0')
stamp(0)
if opt['trip'] or opt['dead']: e('s_memrealtime s[64:65]')
e('s_load_dwordx4 s[4:7], s[0:1], 0')
e('s_load_dwordx2 s[8:9], s[0:1], 16')
e('s_load_dwordx4 s[56:59], s[0:1], 32')
e('v_lshrrev_b32 v1, 6, v0')
e('v_and_b32 v2, 63, v0')
e('v_readfirstlane_b32 s26, v1')
if opt['cpf']:
    c('pull the kernel code towards L2 first (1 KB per participating wave)')
    e('s_getpc_b64 s[44:45]')
    lab('L_pc')
    if opt['cpf'] == 1:
        e('s_lshl_b32 s42, s2, 10')
        e('s_and_b32 s42, s42, 0x6000')
        e('v_lshlrev_b32 v102, 4, v0')
    elif opt['cpf'] == 2:
        e('s_lshl_b32 s42, s2, 7')
        e('s_and_b32 s42, s42, 0x7c00')
        e('v_lshlrev_b32 v102, 4, v2')
        e('v_lshl_add_u32 v102, v1, 20, v102')
    else:
        e('s_lshl_b32 s42, s2, 8')
        e('s_and_b32 s42, s42, 0x7800')
        e('v_lshlrev_b32 v102, 4, v0')
        e('v_lshrrev_b32 v103, 1, v1')
        e('v_lshl_add_u32 v102, v103, 20, v102')
    e('s_and_b32 s45, s45, 0xffff')
    e('s_mov_b32 s46, L_end-L_pc')
    e('s_mov_b32 s47, 0x00020000')
    e(f'buffer_load_dwordx4 {vr(180)}, v102, s[44:47], s42 offen')
else: e('s_nop 1')
def common():
    if opt['wso']:
        e(f's_add_u32 s58, s58, {opt["wso"] << 20}')
        e('s_addc_u32 s59, s59, 0')
    srd(20, 58, 59, WS_USED)
    srd(16, 56, 57, 256)
    e('s_mov_b32 s33, 0xffff0000')
    e('v_mov_b32 v37, 0')
    for b in range(4): e(f'v_mov_b32 v{PA(b)}, {OOB}')
    for b in range(4): e(f's_mov_b32 s{96+b}, {3*XS}')
    e('s_mov_b32 s31, 0')
    e('s_mov_b32 s92, 0')
    e('s_mov_b32 s93, 0')
    e('s_cmp_ge_u32 s2, 125')
    e(f's_cselect_b32 s50, {2*21*XS - 125*1536}, 0')
    e('s_mul_i32 s51, s2, 1536')
    e('s_add_u32 s50, s50, 768')
    e('s_add_u32 s50, s50, s51')
    e(f's_add_u32 s51, s50, {3*XS}')
    e(f's_mov_b32 s35, {XL + (0 if opt["xpad"] else 64)}')
e('s_lshr_b32 s28, s26, 1')
e('s_cmp_eq_u32 s28, 2')
e('s_cbranch_scc1 Lp_w')
def xaddr(su, va, vd):
    e(f's_lshl_b32 s28, s{su}, 6')
    e('v_add_u32 v3, s28, v2')
    e('v_mul_u32_u24 v4, 683, v3')
    e('v_lshrrev_b32 v4, 16, v4')
    e('v_mul_u32_u24 v5, 96, v4')
    e('v_sub_u32 v3, v3, v5')
    e(f'v_mul_u32_u24 v{va}, 43, v3')
    e(f'v_lshrrev_b32 v{va}, 8, v{va}')
    e(f'v_mul_u32_u24 v{va}, {(2400 if opt["xpad"] else 2304)-96}, v{va}')
    e(f'v_lshl_add_u32 v{va}, v3, 4, v{va}')
    e(f'v_add3_u32 v{va}, v{va}, v5, s35')
    e('v_cmp_le_u32 vcc, 3, v4')
    e(f'v_mul_u32_u24 v{vd}, {XS}, v4')
    e(f'v_mov_b32 v5, {18*XS}')
    e(f'v_lshl_add_u32 v{vd}, v3, 4, v{vd}')
    e('v_cndmask_b32 v5, 0, v5, vcc')
    e(f'v_add_u32 v{vd}, v{vd}, v5')
def xpair(va, vd):
    for s in range(6): e(f'ds_read_b128 {vr(120+4*s)}, v{va} offset:{XOFF(s)}')
    for dw in range(4):
        for s in range(6):
            if dw == 0: e(f's_waitcnt lgkmcnt({5-s})')
            e(f'v_lshlrev_b32 v{148+2*s}, 16, v{120+4*s+dw}')
            e(f'v_and_b32 v{149+2*s}, s33, v{120+4*s+dw}')
        D = lambda s: 148+2*s
        pkfma(162, 46, D(2), D(4))
        pkfma(164, 46, D(3), D(5))
        pkfma(162, 44, D(0), 162)
        pkfma(164, 44, D(1), 164)
        pkfma(166, 48, 162, 164)
        pkfma(168, 48, 162, 164, nega=True)
        e(f'v_cvt_pk_bf16_f32 v{172+dw}, v166, v167')
        e(f'v_cvt_pk_bf16_f32 v{176+dw}, v168, v169')
    e(f'buffer_store_dwordx4 v[172:175], v{vd}, s[20:23], s50 offen sc1')
    e(f'buffer_store_dwordx4 v[176:179], v{vd}, s[20:23], s51 offen sc1')
def xrest(va, b):
    for s in range(7): e(f'ds_read_b128 {vr(120+4*s)}, v{va} offset:{XOFF(s)}')
    for dw in range(4):
        for s in range(7):
            if dw == 0: e(f's_waitcnt lgkmcnt({6-s})')
            e(f'v_lshlrev_b32 v{148+2*s}, 16, v{120+4*s+dw}')
            e(f'v_and_b32 v{149+2*s}, s33, v{120+4*s+dw}')
        D = lambda s: 148+2*s
        for t in range(2):
            q0, q1, aa = 36+6*t, 38+6*t, 40+6*t
            pkfma(162, q1, D(2), D(4))
            pkfma(164, q1, D(3), D(5))
            pkfma(162, q0, D(0), 162)
            pkfma(164, q0, D(1), 164)
            pkfma(166, aa, 162, 164)
            pkfma(168, aa, 162, 164, nega=True)
            e(f'v_cvt_pk_bf16_f32 v{PK(b,2*t)+dw}, v166, v167')
            e(f'v_cvt_pk_bf16_f32 v{PK(b,2*t+1)+dw}, v168, v169')
        pkfma(162, 54, D(4), D(6))
        pkfma(162, 52, D(2), 162)
        pkfma(162, 48, D(0), 162)
        e(f'v_cvt_pk_bf16_f32 v{PK(b,4)+dw}, v162, v163')
for t in range(3):
    a = PTS[2*t]; q0 = BT[2*t][1]; q1 = BT[2*t][3]
    assert abs(BT[2*t][0] - a*q0) < 1e-12 and abs(BT[2*t][2] - a*q1) < 1e-12 and abs(BT[2*t][4]-a) < 1e-12
e('s_sub_u32 s27, s26, 2')
e('s_cmp_lt_u32 s26, 4')
e('s_cselect_b32 s27, s26, s27')
e('s_cmp_ge_u32 s2, 250')
e('s_cbranch_scc1 Lp_zero')
e('s_cmp_ge_u32 s2, 125')
e('s_cselect_b32 s24, 4608000, 0')
e('s_mul_i32 s28, s2, 36864')
e('s_sub_u32 s28, s28, s24')
if opt['xpad']:
    e('s_sub_u32 s28, s28, 2304')
    e('s_mul_i32 s29, s27, 768')
    e('s_add_u32 s28, s28, s29')
    e('s_cmp_ge_u32 s27, 3')
    e('s_cselect_b32 s30, 96, 0')
    e('s_add_u32 s29, s29, s30')
    e('v_lshlrev_b32 v6, 4, v2')
    e('v_add_u32 v6, s28, v6')
    e(f's_mov_b32 s14, {0 if opt["skx"] else 4608000}')
    e('s_mov_b32 s15, 0x00020000')
    e(f's_add_u32 m0, s29, {XL}')
    e('s_mov_b32 exec_hi, 0xffff')
    e('s_waitcnt lgkmcnt(0)')
    e('s_add_u32 s12, s4, s24'); e('s_addc_u32 s13, s5, 0')
    e('s_and_b32 s13, s13, 0xffff')
    for i in range(9):
        if i == 8:
            e('s_cmp_ge_u32 s27, 3')
            e('s_cbranch_scc1 Lp_xl0')
        e(f'buffer_load_dwordx4 v6, s[12:15], 0 offen{LDF} lds')
        if i < 8:
            e(f's_add_u32 m0, s29, {XL + (i+1)*4800}')
            e('v_add_u32 v6, 4608, v6')
    lab('Lp_xl0')
    e('s_mov_b32 exec_hi, -1')
else:
    e('s_sub_u32 s28, s28, 1792')
    e('s_lshl_b32 s29, s27, 10')
    e('s_add_u32 s28, s28, s29')
    e('v_lshlrev_b32 v6, 4, v2')
    e('v_add_u32 v6, s28, v6')
    e(f's_mov_b32 s14, {0 if opt["skx"] else 4608000}')
    e('s_mov_b32 s15, 0x00020000')
    e(f's_add_u32 m0, s29, {XL}')
    e('s_waitcnt lgkmcnt(0)')
    e('s_add_u32 s12, s4, s24'); e('s_addc_u32 s13, s5, 0')
    e('s_and_b32 s13, s13, 0xffff')
    NX, SX = (10, 4096) if opt['x4'] else (7, 6144)
    if opt['x4']:
        e('s_cmp_ge_u32 s26, 4')
        e('s_cbranch_scc1 Lp_xl')
    for i in range(NX):
        if i == NX-1:
            e('s_cmp_ge_u32 s27, 2')
            e('s_cbranch_scc1 Lp_xl')
        e(f'buffer_load_dwordx4 v6, s[12:15], 0 offen{LDF} lds')
        if i < NX-1:
            e(f's_add_u32 m0, s29, {XL + (i+1)*SX}')
            e(f'v_add_u32 v6, {SX}, v6')
lab('Lp_xl')
common()
if opt['warm'] < 2:
    e('s_add_u32 s28, s2, s26')
    e('s_cmp_lg_u32 s28, 0')
    e('s_cbranch_scc1 Lp_x0')
    c('WG 0 wave 0 publishes the launch tag in d_debug')
    e('s_memrealtime s[92:93]')
    e('s_waitcnt lgkmcnt(0)')
    e('s_or_b32 s92, s92, 1')
    e('v_mov_b32 v38, s92')
    e('v_mov_b32 v39, s93')
    e('s_mov_b64 exec, 1')
    e('buffer_store_dwordx2 v[38:39], v37, s[16:19], 0 offen sc1')
    e('s_mov_b64 exec, -1')
lab('Lp_x0')
c('pass-1 units: wave0:8 wave1:4,5 wave2:0,1 wave3:2,3 wave6:6 wave7:7')
e('s_lshl_b32 s28, s26, 2')
e('s_lshr_b32 s30, 0x76002048, s28')
e('s_and_b32 s30, s30, 15')
xaddr(30, 6, 7)
e('s_add_u32 s30, s30, 1')
xaddr(30, 14, 15)
sconst2(44, BT[0][1]); sconst2(46, BT[0][3]); sconst2(48, PTS[0])
if opt['tlb']:
    c('touch the workspace pages this wave is going to store to (address translation warm-up)')
    e('s_mov_b32 exec_lo, 1')
    e('s_mov_b32 exec_hi, 0x80000000')
    e('buffer_load_dword v108, v7, s[20:23], s50 offen sc1')
    e('buffer_load_dword v109, v7, s[20:23], s51 offen sc1')
    e('buffer_load_dword v110, v15, s[20:23], s50 offen sc1')
    e('buffer_load_dword v111, v15, s[20:23], s51 offen sc1')
    e('s_mov_b64 exec, -1')
stamp(7)
e(f's_waitcnt vmcnt({4 if opt["tlb"] else 0})')
stamp(8)
e('s_barrier')
stamp(1)
e('s_cmp_lg_u32 s26, 0')
e('s_cbranch_scc1 Lp_x1')
e('buffer_load_dwordx2 v[24:25], v37, s[16:19], 0 offen sc1')
lab('Lp_x1')
xpair(6, 7)
e('s_bitcmp1_b32 0x0e, s26')
e('s_cbranch_scc0 Lp_x2')
xpair(14, 15)
lab('Lp_x2')
if opt['es']: stamp(9)
e('s_cmp_ge_u32 s26, 4')
e('s_cbranch_scc1 Lp_h67')
lab('Lp_s2')
if opt['fl']:
    e('v_lshlrev_b32 v9, 4, v2')
    e('s_lshl_b32 s30, s2, 7')
    e(f's_add_u32 s30, s30, {FLAG_OFF+AFL}')
else:
    e(f'v_mul_u32_u24 v9, {RSTR}, v2')
    e('s_lshl_b32 s30, s2, 3')
    e(f's_add_u32 s30, s30, {FLAG_OFF}')
e('s_cmp_lg_u32 s26, 0')
e('s_cbranch_scc1 Lp_s2b')
e('s_cmp_ge_u32 s2, 250')
e('s_cbranch_scc1 L_taga')
e('s_waitcnt vmcnt(2)')
e('v_readfirstlane_b32 s92, v24')
e('v_readfirstlane_b32 s93, v25')
e('s_nop 3')
e('s_cmp_lg_u32 s92, 0')
e('s_cbranch_scc1 L_tagda')
gettag('a')
e('v_mov_b32 v38, s92')
e('v_mov_b32 v39, s93')
e('v_mov_b32 v40, s92')
e('v_mov_b32 v41, s93')
lab('Lp_s2b')
e('s_waitcnt vmcnt(0)')
if opt['es']: stamp(10)
e('s_barrier')
e('s_cmp_lg_u32 s26, 0')
e('s_cbranch_scc1 L_pdone')
if opt['fl']:
    e('s_mov_b64 exec, 0xff')
    e('buffer_store_dwordx4 v[38:41], v9, s[20:23], s30 offen sc1')
else:
    e(f's_mov_b64 exec, {(1<<REP)-1}')
    e('buffer_store_dwordx2 v[38:39], v9, s[20:23], s30 offen sc1')
e('s_mov_b64 exec, -1')
stamp(2)
e('s_branch L_pdone')
def xcoef2():
    for t in (1, 2):
        sconst2(36+6*(t-1), BT[2*t][1]); sconst2(38+6*(t-1), BT[2*t][3]); sconst2(40+6*(t-1), PTS[2*t])
    sconst2(48, BT[6][0]); sconst2(52, BT[6][2]); sconst2(54, BT[6][4])
    e(f's_add_u32 s34, s50, {6*XS}')
lab('Lp_h67')
c('waves 6,7 pass 2: own unit (block 1), then units 2(w-6), 2(w-6)+1 (blocks 2,3)')
xcoef2()
e(f'v_add_u32 v{PA(1)}, s34, v7')
if opt['early']: xrest(6, 1)
if opt['es']: stamp(3)
e('s_waitcnt vmcnt(0)')
if opt['es']: stamp(10)
e('s_barrier')
if not opt['early']: xrest(6, 1)
e('s_sub_u32 s30, s26, 6')
e('s_lshl_b32 s30, s30, 1')
lab('Lp_x23')
xaddr(30, 6, 7)
e(f'v_add_u32 v{PA(2)}, s34, v7')
xrest(6, 2)
e('s_add_u32 s30, s30, 1')
lab('Lp_x3')
xaddr(30, 6, 7)
e(f'v_add_u32 v{PA(3)}, s34, v7')
xrest(6, 3)
e('s_branch L_pdone')
lab('Lp_zero')
c('WGs 250,251: zero the 8 leading rows of the 42 arrays of batch b')
e('s_waitcnt lgkmcnt(0)')
common()
e('s_sub_u32 s3, s2, 250')
e(f's_mul_i32 s30, s3, {2*21*XS}')
e('s_lshl_b32 s28, s27, 6')
e('v_add_u32 v3, s28, v2')
for k in range(4): e(f'v_mov_b32 v{16+k}, 0')
for i in range(6):
    e('v_mul_u32_u24 v4, 1366, v3')
    e('v_lshrrev_b32 v4, 16, v4')
    e('v_mul_u32_u24 v5, 48, v4')
    e('v_sub_u32 v5, v3, v5')
    e(f'v_mul_u32_u24 v4, {XS}, v4')
    e('v_lshl_add_u32 v4, v5, 4, v4')
    e('v_cmp_gt_u32 vcc, 2016, v3')
    e(f'v_mov_b32 v5, {OOB}')
    e('v_add_u32 v3, 384, v3')
    e('v_cndmask_b32 v4, v5, v4, vcc')
    e('buffer_store_dwordx4 v[16:19], v4, s[20:23], s30 offen sc1')
if opt['warm']:
    c('pre-write the flag lines used later (full lines) so that the 8-byte flag stores hit in the memory-side cache')
    e('s_mul_i32 s30, s3, 6')
    e('s_add_u32 s30, s30, s27')
    e('s_lshl_b32 s30, s30, 11')
    e(f's_add_u32 s30, s30, {FLAG_OFF+FA}')
    e('v_lshlrev_b32 v4, 4, v2')
    e('buffer_store_dwordx4 v[16:19], v4, s[20:23], s30 offen sc1')
    e('buffer_store_dwordx4 v[16:19], v4, s[20:23], s30 offen offset:1024 sc1')
    assert 24*1024 <= GOF - FA and 24*1024 >= ZFL + 3584 - FA
    e('v_lshrrev_b32 v4, 3, v2')
    e('v_mul_u32_u24 v4, 4352, v4')
    e('v_and_b32 v5, 7, v2')
    e('v_lshl_add_u32 v4, v5, 4, v4')
    e(f's_mov_b32 s30, {FLAG_OFF+GOF}')
    e('buffer_store_dwordx4 v[16:19], v4, s[20:23], s30 offen sc1')
e('s_barrier')
e('s_branch Lp_s2')
lab('Lp_w')
e('s_and_b32 s27, s26, 1')
c('w unit: XCD x = id&7 owns a contiguous range of units; local i = id>>3 < 9 takes two')
e('s_and_b32 s28, s2, 7')
e('s_lshr_b32 s29, s2, 3')
e('s_mul_i32 s3, s28, 40')
e('s_min_u32 s30, s28, 4')
e('s_add_u32 s3, s3, s30')
e('s_add_u32 s3, s3, s29')
e('s_min_u32 s30, s29, 9')
e('s_add_u32 s3, s3, s30')
e('s_add_u32 s3, s3, s27')
e('s_mul_i32 s30, s27, s29')
e('s_cmp_ge_u32 s30, 9')
e('s_cbranch_scc1 Lp_wo')
def posdec(P, ko, pos, kk, o, tmp):
    e(f'v_mul_u32_u24 v{ko}, 58255, v{P}')
    e(f'v_lshrrev_b32 v{ko}, 22, v{ko}')
    e(f'v_mul_u32_u24 v{tmp}, 72, v{ko}')
    e(f'v_sub_u32 v{pos}, v{P}, v{tmp}')
    e(f'v_mul_u32_u24 v{kk}, 3641, v{ko}')
    e(f'v_lshrrev_b32 v{kk}, 16, v{kk}')
    e(f'v_mul_u32_u24 v{tmp}, 18, v{kk}')
    e(f'v_sub_u32 v{o}, v{ko}, v{tmp}')
G_ = lambda r, ch: 40+2*(8*r+ch)
e('s_lshl_b32 s28, s3, 5')
e('v_and_b32 v3, 31, v2')
e('v_add_u32 v4, s28, v3')
posdec(4, 5, 6, 7, 8, 9)
e(f'v_mul_u32_u24 v7, {4*82944}, v7')
e('v_mul_u32_u24 v8, 4608, v8')
e('v_lshrrev_b32 v9, 5, v2')
e('v_mul_u32_u24 v10, 288, v9')
e('v_add3_u32 v7, v7, v8, v10')
e('v_lshl_add_u32 v6, v6, 2, v7')
e('s_waitcnt lgkmcnt(0)')
srd(12, 6, 7, 0 if opt['skw'] else 31*144*288*2)
if opt['word']:
    for r in range(1, 4): e(f's_mov_b32 s{36+r}, {82944*r}')
    for ch in range(8):
        for r in range(4):
            e(f'buffer_load_dword v{G_(r,ch)+1}, v6, s[12:15], {"s%d" % (36+r) if r else 0} offen offset:{ch*576}{LDF}')
else:
  for r in range(4):
    for ch in range(8):
        e(f'buffer_load_dword v{G_(r,ch)+1}, v6, s[12:15], 0 offen offset:{ch*576}{LDF}')
    if r < 3: e('v_add_u32 v6, 82944, v6')
stamp(7)
common()
e('s_lshl_b32 s29, s27, 14')
e(f's_add_u32 s29, s29, {WL}')
e('v_lshlrev_b32 v10, 6, v3')
e('v_lshl_add_u32 v10, v9, 5, v10')
e('v_add_u32 v10, s29, v10')
e('v_lshlrev_b32 v11, 4, v2')
e('v_add_u32 v11, s29, v11')
for h in range(2):
    e('v_lshrrev_b32 v4, 2, v2')
    e(f'v_add3_u32 v4, v4, s28, {16*h}')
    posdec(4, 5, 6, 7, 8, 9)
    e('v_mul_u32_u24 v4, 43, v8')
    e('v_lshrrev_b32 v4, 8, v4')
    e('v_mul_u32_u24 v5, 6, v4')
    e('v_sub_u32 v5, v8, v5')
    e('v_lshrrev_b32 v8, 1, v7')
    e('v_add_u32 v8, 8, v8')
    e('v_and_b32 v9, 1, v7')
    e('v_lshl_add_u32 v9, v9, 1, v5')
    e('v_subrev_u32 v9, 4, v9')
    e('v_cmp_le_u32 vcc, 4, v5')
    e('v_mul_u32_u24 v4, 24576, v4')
    e('v_lshrrev_b32 v14, 3, v6')
    e('v_cndmask_b32 v8, v7, v8, vcc')
    e('v_cndmask_b32 v9, v5, v9, vcc')
    e(f'v_mul_u32_u24 v14, {21*24576}, v14')
    e('v_bfe_u32 v15, v6, 2, 1')
    e('v_mul_u32_u24 v15, 12288, v15')
    e(f'v_add3_u32 v{12+h}, v4, v14, v15')
    e(f'v_lshl_add_u32 v{12+h}, v8, 10, v{12+h}')
    e(f'v_lshl_add_u32 v{12+h}, v9, 8, v{12+h}')
    e('v_and_b32 v4, 3, v6')
    e(f'v_lshl_add_u32 v{12+h}, v4, 6, v{12+h}')
    e('v_and_b32 v4, 3, v2')
    e(f'v_lshl_add_u32 v{12+h}, v4, 4, v{12+h}')
def wcoef(t):
    for r in range(4):
        assert abs(GS[2*t+1][r] - (1 if r % 2 == 0 else -1)*GS[2*t][r]) < 1e-12
        e(f'v_mul_f32 v{160+2*r}, {fh(GS[2*t][r])}, v14')
        e(f'v_mov_b32 v{161+2*r}, v{160+2*r}')
e(f's_mov_b32 s34, {WT_OFF}')
e('v_cmp_le_u32 vcc, 32, v2')
e(f'v_mov_b32 v14, {fh(-2*LOG2E)}')
e(f'v_mov_b32 v15, {fh(-LOG2E)}')
e('v_cndmask_b32 v14, v14, v15, vcc')
e('v_mov_b32 v15, v14')
wcoef(0)
if opt['tlb']:
    e('s_mov_b32 exec_lo, 1')
    e('s_mov_b32 exec_hi, 0x80000001')
    e('buffer_load_dword v168, v12, s[20:23], s34 offen sc1')
    e('buffer_load_dword v169, v13, s[20:23], s34 offen sc1')
    e('s_mov_b64 exec, -1')
stamp(8)
e('s_barrier')
stamp(1)
e(f's_waitcnt vmcnt({2 if opt["tlb"] else 0})')
stamp(2)
for k in range(32):
    e(f'v_lshlrev_b32 v{40+2*k}, 16, v{41+2*k}')
    e(f'v_and_b32 v{41+2*k}, s33, v{41+2*k}')
e('s_mov_b32 s53, 0')
lab('Lp_wloop')
for dw in range(4):
    for c2 in range(2):
        ch = 2*dw+c2
        E, O = 104+4*c2, 106+4*c2
        e(f'v_pk_mul_f32 {vp(E)}, {vp(160)}, {vp(G_(0,ch))}')
        e(f'v_pk_mul_f32 {vp(O)}, {vp(162)}, {vp(G_(1,ch))}')
        e(f'v_pk_fma_f32 {vp(E)}, {vp(164)}, {vp(G_(2,ch))}, {vp(E)}')
        e(f'v_pk_fma_f32 {vp(O)}, {vp(166)}, {vp(G_(3,ch))}, {vp(O)}')
        pkadd(112+4*c2, O, E)
        pkadd(114+4*c2, E, O, negb=True)
    for sgn in range(2):
        for n in range(2):
            e(f'v_cvt_pk_bf16_f32 v{120+8*sgn+4*n+dw}, v{112+2*sgn+n}, v{116+2*sgn+n}')
for sgn in range(2):
    for n in range(2):
        e(f'ds_write_b128 v10, {vr(120+8*sgn+4*n)} offset:{sgn*2048 + n*16}')
e('s_add_u32 s53, s53, 1')
e('s_waitcnt lgkmcnt(0)')
e('v_add_u32 v10, 4096, v10')
e('s_cmp_eq_u32 s53, 3')
e('s_cbranch_scc1 Lp_w3')
e('s_cmp_eq_u32 s53, 1')
e('s_cbranch_scc1 Lp_w1')
wcoef(2)
if opt['early']:
    if opt['es']: stamp(3)
    e('s_waitcnt vmcnt(0)')
    if opt['es']: stamp(10)
    e('s_barrier')
e('s_branch Lp_wloop')
lab('Lp_w1')
for k in range(4): e(f'ds_read_b128 {vr(136+4*k)}, v11 offset:{k*1024}')
for k in range(4):
    e(f's_waitcnt lgkmcnt({3-k})')
    e(f'buffer_store_dwordx4 {vr(136+4*k)}, v{12+k%2}, s[20:23], s34 offen sc1')
    if k % 2 == 1: e(f's_add_u32 s34, s34, {3*24576}')
if opt['es']: stamp(9)
wcoef(1)
if not opt['early']:
    e('s_waitcnt vmcnt(0)')
    e('s_barrier')
e('s_branch Lp_wloop')
lab('Lp_w3')
for ch in range(8): e(f'v_pk_mul_f32 {vp(G_(3,ch))}, {vp(G_(3,ch))}, v[14:15]')
for n in range(2):
    for dw in range(4):
        e(f'v_cvt_pk_bf16_f32 v{120+4*n+dw}, v{G_(3,2*dw)+n}, v{G_(3,2*dw+1)+n}')
    e(f'ds_write_b128 v10, {vr(120+4*n)} offset:{n*16}')
e('s_waitcnt lgkmcnt(0)')
for k in range(10):
    e(f'ds_read_b128 {vr(PK(k % 2, k//2))}, v11 offset:{4096 + k*1024}')
e(f'v_add_u32 v{PA(0)}, s34, v12')
e(f'v_add_u32 v{PA(1)}, s34, v13')
e(f's_mov_b32 s96, {3*24576}')
e(f's_mov_b32 s97, {3*24576}')
e('s_waitcnt lgkmcnt(0)')
lab('Lp_wx')
c('then x pass 2: wave 4: unit 8 (block 3) ; wave 5: units 4,5 (blocks 2,3)')
e('s_cmp_ge_u32 s2, 250')
e('s_cbranch_scc1 L_pdone')
xcoef2()
e('s_mov_b32 s30, 8')
e('s_cmp_eq_u32 s26, 4')
e('s_cbranch_scc1 Lp_x3')
e('s_mov_b32 s30, 4')
e('s_branch Lp_x23')
lab('Lp_wo')
e('s_waitcnt lgkmcnt(0)')
common()
e('s_sub_u32 s3, s2, 72')
e('s_cmp_ge_u32 s3, 45')
e('s_cbranch_scc1 Lp_wo2')
srd(12, 8, 9, 144*144*2)
e('s_mul_i32 s28, s3, 13108')
e('s_lshr_b32 s28, s28, 16')
e('s_mul_i32 s29, s28, 5')
e('s_sub_u32 s29, s3, s29')
e('v_and_b32 v7, 15, v2')
e('v_lshrrev_b32 v8, 4, v2')
e('s_cmp_eq_u32 s28, 8')
e('s_cselect_b32 s30, 1, 4')
e('s_cselect_b32 s34, 256, 0')
e('s_cselect_b32 s28, 0, s28')
e('s_lshl_b32 s28, s28, 1')
e('s_add_u32 s34, s34, s28')
e(f's_mul_i32 s29, s29, {32*288}')
e('s_add_u32 s34, s34, s29')
e('v_lshlrev_b32 v9, s30, v7')
e('v_mul_u32_u24 v14, 576, v8')
e('v_add3_u32 v14, v14, v9, s34')
for d in range(4):
    e(f'buffer_load_ushort v{40+2*d}, v14, s[12:15], 0 offen')
    e(f'buffer_load_ushort v{41+2*d}, v14, s[12:15], 0 offen offset:288')
    if d < 3: e('v_add_u32 v14, 2304, v14')
e('s_lshl_b32 s3, s3, 10')
e(f's_add_u32 s3, s3, {WO_OFF}')
e('v_lshlrev_b32 v1, 4, v2')
e('s_barrier')
e('s_waitcnt vmcnt(0)')
for d in range(4):
    e(f'v_lshl_or_b32 v{48+d}, v{41+2*d}, 16, v{40+2*d}')
e('buffer_store_dwordx4 v[48:51], v1, s[20:23], s3 offen sc1')
e('s_waitcnt vmcnt(0)')
e('s_barrier')
e('s_branch Lp_wx')
lab('Lp_wo2')
if opt['warm'] == 2:
    e('s_cmp_lg_u32 s2, 200')
    e('s_cbranch_scc1 Lp_wo3')
    for k in range(4): e(f'v_mov_b32 v{40+k}, 0')
    e('v_lshlrev_b32 v4, 4, v2')
    e(f's_mov_b32 s30, {FLAG_OFF}')
    e('buffer_store_dwordx4 v[40:43], v4, s[20:23], s30 offen sc1')
    e('buffer_store_dwordx4 v[40:43], v4, s[20:23], s30 offen offset:1024 sc1')
    e('s_memrealtime s[92:93]')
    e('s_waitcnt lgkmcnt(0)')
    e('s_or_b32 s92, s92, 1')
    e('v_mov_b32 v38, s92')
    e('v_mov_b32 v39, s93')
    e('s_waitcnt vmcnt(0)')
    e('s_mov_b64 exec, 1')
    e('buffer_store_dwordx2 v[38:39], v37, s[16:19], 0 offen sc1')
    e('s_mov_b64 exec, -1')
    lab('Lp_wo3')
e('s_barrier')
e('s_barrier')
e('s_branch Lp_wx')

def M(t): return 12 + 4*t
def MD(t): return 48 + 4*t
def FR(k): return vr(84 + 4*k)
lab('L_pdone')
e('v_lshlrev_b32 v101, 4, v2')
e('v_min_u32 v36, 62, v2')
e('v_lshlrev_b32 v36, 5, v36')
e(f's_and_b32 s30, s2, {REP-1}')
e(f's_mul_i32 s30, s30, {RSTR}')
e('v_add_u32 v36, s30, v36')
e(f'v_mul_u32_u24 v12, {RSTR}, v2')
c('unit = base[xcd] + (id>>3)')
e('s_and_b32 s25, s2, 7')
e('s_lshr_b32 s24, s2, 3')
e('s_mul_i32 s27, s25, 31')
e('s_min_u32 s28, s25, 4')
e('s_add_u32 s27, s27, s28')
e('s_add_u32 s27, s27, s24')
e('s_mul_i32 s28, s27, 7282')
e('s_lshr_b32 s28, s28, 16')
e('s_mul_i32 s29, s28, 9')
e('s_sub_u32 s29, s27, s29')
e('s_and_b32 s24, s26, 3')
e('s_lshr_b32 s32, s24, 1')
e('s_and_b32 s33, s24, 1')
e('s_mul_i32 s34, s24, 7168')
e('s_mul_i32 s35, s24, 6144')
c('z soffset s62')
e('s_lshl_b32 s62, s28, 1')
e('s_add_u32 s62, s62, s32')
e(f's_mul_i32 s62, s62, {9*18*1024}')
e('s_lshl_b32 s63, s29, 1')
e('s_add_u32 s63, s63, s33')
e(f's_lshl_b32 s63, s63, {8 if opt["t2"] else 10}')
e('s_add_u32 s62, s62, s63')
e(f's_add_u32 s62, s62, {Z_OFF}')
if opt['gmap']:
    c('g = (b*7+gg)*2 + p')
    e('s_lshr_b32 s38, s28, 1')
    e('s_and_b32 s30, s28, 1')
    e('s_cmp_ge_u32 s38, 7')
    e('s_cselect_b32 s36, 7, 0')
    e('s_cselect_b32 s37, 2, 0')
    e('s_sub_u32 s38, s38, s36')
    e('s_add_u32 s30, s30, s37')
else:
    e('s_mul_i32 s30, s28, 9363')
    e('s_lshr_b32 s30, s30, 16')
    e('s_mul_i32 s38, s30, 7')
    e('s_sub_u32 s38, s28, s38')
e(f's_mul_i32 s36, s30, {21*XS}')
e('s_mul_i32 s37, s38, 27648')
e('s_add_u32 s36, s36, s37')
e('s_add_u32 s36, s36, s34')
e(f's_mul_i32 s37, s29, {21*24576}')
e('s_add_u32 s37, s37, s35')
e(f's_add_u32 s37, s37, {WT_OFF}')
c('last row group of a stream: do not fetch the never-written padding rows (KB 26 lanes >= 16, KB 27): v6, v7 = voffsets for those two chunks')
e('s_cmp_eq_u32 s38, 6')
e('s_cselect_b32 s60, 16, 64')
e('s_cselect_b32 s61, 0, 64')
e(f'v_mov_b32 v8, {OOB}')
e('v_cmp_gt_u32 vcc, s60, v2')
e('v_cmp_gt_u32 s[88:89], s61, v2')
e('s_nop 0')
e('v_cndmask_b32 v6, v8, v101, vcc')
e('v_cndmask_b32 v7, v8, v101, s[88:89]')
e('s_cmp_ge_u32 s26, 4')
e('s_cbranch_scc1 L_helper')
e('s_cmp_lg_u32 s26, 0')
e('s_cbranch_scc1 L_c13')
c('wave 0: wait for all A flags, then load the whole phase 0 tile')
if opt['agg']:
    e('s_cmp_lg_u32 s2, 0')
    e('s_cbranch_scc1 L_gow')
if opt['dly']: e(f's_sleep {opt["dly"]}')
if opt['fl']:
    for k in range(4):
        e(f'v_add_u32 v{42+k}, {64*k}, v2')
        e(f'v_min_u32 v{42+k}, 251, v{42+k}')
        e(f'v_lshlrev_b32 v{42+k}, 7, v{42+k}')
    e('v_lshrrev_b32 v46, 3, v2')
    e('v_mul_u32_u24 v46, 4352, v46')
    e('v_and_b32 v47, 7, v2')
    e('v_lshl_add_u32 v46, v47, 4, v46')
poll('A' if opt['fl'] else 0, 'A')
if opt['agg']:
    c('WG 0 saw all A flags: release everybody through 8 go words')
    e(f's_mov_b32 s30, {FLAG_OFF+GOF}')
    if opt['fl']:
        e('buffer_store_dwordx4 v[38:41], v46, s[20:23], s30 offen sc1')
    else:
        e('v_mul_u32_u24 v9, 4352, v2')
        e('s_mov_b64 exec, 0xff')
        e('buffer_store_dwordx2 v[38:39], v9, s[20:23], s30 offen sc1')
        e('s_mov_b64 exec, -1')
    e('s_branch L_god')
    lab('L_gow')
    e('s_mul_i32 s30, s25, 4352')
    e(f's_add_u32 s30, s30, {FLAG_OFF+GOF}')
    e('s_mov_b32 s31, 0')
    e('s_mov_b64 exec, 1')
    lab('L_gol')
    e('buffer_load_dwordx2 v[24:25], v37, s[20:23], s30 offen sc1')
    e('s_add_u32 s31, s31, 1')
    e('s_cmp_gt_u32 s31, 800000')
    e('s_cbranch_scc1 L_gox')
    e('s_waitcnt vmcnt(0)')
    e('v_cmp_ne_u64 vcc, s[92:93], v[24:25]')
    e('s_cbranch_vccz L_gox')
    e(f's_sleep {opt["gslp"]}')
    e('s_branch L_gol')
    lab('L_gox')
    e('s_mov_b64 exec, -1')
    lab('L_god')
stamp(3)
for k in range(52):
    if k % 4 == 0:
        e(f's_mov_b32 m0, {k*1024}')
        e(f's_add_u32 s30, s36, {k*1024}' if k < 28 else f's_add_u32 s30, s37, {(k-28)*1024}')
    e(f'buffer_load_dwordx4 v{ {26: 6, 27: 7}.get(k, 101) }, s[20:23], s30 offen offset:{(k%4)*1024} sc1 lds')
lab('L_c13')
e('s_barrier')
if opt['prio']: e(f's_setprio {opt["prio"]}')
e('v_and_b32 v124, 15, v2')
e('v_lshrrev_b32 v125, 4, v2')
e('v_mul_u32_u24 v126, 864, v124')
e('s_mul_i32 s38, s32, 13824')
e('v_add_u32 v126, s38, v126')
e('v_lshl_add_u32 v2, v125, 4, v126')
e('v_lshrrev_b32 v127, 1, v125')
e('v_mul_u32_u24 v127, 96, v127')
e('v_sub_u32 v127, v126, v127')
e('v_and_b32 v128, 1, v125')
e('v_lshl_add_u32 v127, v128, 4, v127')
e('v_add_u32 v5, 160, v127')
e('s_mul_i32 s38, s33, 12288')
e('s_add_u32 s38, s38, 28672')
e('v_add_u32 v8, s38, v101')
for s in (1, 2):
    e(f'v_add_u32 v{2+s}, {s*SLOT}, v2')
    e(f'v_add_u32 v{5+s}, {s*SLOT}, v5')
    e(f'v_add_u32 v{8+s}, {s*SLOT}, v8')
if opt['sn32']: e('v_lshrrev_b32 v101, 2, v101')
e(f's_add_u32 s38, s34, {2*SLOT}')
e('v_add_u32 v1, s38, v101')
e(f's_add_u32 s38, s35, {2*SLOT+28672}')
e('v_add_u32 v11, s38, v101')
for r in range(48, 84): e(f'v_mov_b32 v{r}, 0')

frags = []; mf = []
if opt['mord']:
    for t in range(9):
        for kk in range(7, -1, -1): mf.append((t, ('W', kk), ('X', t-kk)))
    for t in (range(8, -1, -1) if opt['tdesc'] else range(9)):
        for pp in (range(4) if opt['tdesc'] else range(3, -1, -1)): mf.append((t, ('WT', pp), ('XT', t-2*pp)))
else:
  for tp in range(-7, 9):
    for kk in range(min(7, 8-tp), max(0, -tp)-1, -1):
        mf.append((tp+kk, ('W', kk), ('X', tp)))
  for tp in range(-6, 9):
    for pp in range(3, -1, -1):
        if 0 <= tp+2*pp <= 8: mf.append((tp+2*pp, ('WT', pp), ('XT', tp)))
assert len(mf) == 108
fu = {}
for s, (t, wk, xk) in enumerate(mf):
    for k in (xk, wk):
        if k not in fu: fu[k] = s; frags.append(k)
assert len(frags) == 43
fidx = {k: i for i, k in enumerate(frags)}
LA = opt['LA']; BAR = 108 - LA; ELAST = BAR - 6
iss = [(-LA + (k*(ELAST+LA))//42) for k in range(43)]
if opt['mord']:
    iss = [-LA + (k*(LA-2))//16 for k in range(17)] + [1 + (k*(ELAST-1))//25 for k in range(26)]
    lu = {}
    for s, (t, wk, xk) in enumerate(mf): lu[wk] = s; lu[xk] = s
    for k in range(43): assert iss[k] + 108 > lu[frags[k]] + 1, (k, iss[k], lu[frags[k]])
for k in range(43): assert iss[k] <= fu[frags[k]] - 8, (k, iss[k], fu[frags[k]])
def rd(k, slot):
    kind, i = frags[k]
    if kind == 'X': return f'ds_read_b128 {FR(k)}, v{2+slot} offset:{(i+8)*96}'
    if kind == 'XT': return f'ds_read_b128 {FR(k)}, v{5+slot} offset:{(i+7)*96}'
    if kind == 'W': return f'ds_read_b128 {FR(k)}, v{8+slot} offset:{i*1024}'
    return f'ds_read_b128 {FR(k)}, v{8+slot} offset:{(8+i)*1024}'
npre = sum(1 for x in iss if x < 0)
first_touch = {}; last_touch = {}
for s, (t, wk, xk) in enumerate(mf):
    first_touch.setdefault(t, s); last_touch[t] = s
def snapw(t):
    if opt['sn32']:
        t, r = divmod(t, 4)
        return f'ds_write_b32 v1, v{MD(t)+r} offset:{t*1024+r*256}' if t < 7 else f'ds_write_b32 v11, v{MD(t)+r} offset:{(t-7)*1024+r*256}'
    return f'ds_write_b128 v1, {vr(MD(t))} offset:{t*1024}' if t < 7 else f'ds_write_b128 v11, {vr(MD(t))} offset:{(t-7)*1024}'
QS = opt['QS']
ext = [[] for _ in range(324)]
for ph in range(3):
    for k in range(43):
        ext[(ph*108 + iss[k]) % 324].append(('rd', k, ph))
used = [len(x) for x in ext]
lastw = 0
if opt['sn32']:
    for n in range(36):
        pos = max(216 + last_touch[n//4] + 8, lastw + 1)
        lastw = pos
        assert pos >= 216 + BAR and pos < 324 + QS - 2, pos
        ext[pos % 324].append(('wr', n, 0))
else:
  for t in sorted(range(9), key=lambda t: last_touch[t]):
    pos = max(216 + last_touch[t] + 8, lastw + opt['wsp'], 216 + BAR + 1)
    while used[pos % 324]: pos += 1
    lastw = pos
    used[pos % 324] += 1
    assert pos >= 216 + BAR and pos < 324 + QS - 2
    ext[pos % 324].append(('wr', t, 0))
e('s_waitcnt vmcnt(0)')
stamp(4)
e('s_barrier')
stamp(5)
if opt['dbgst']: e('s_memtime s[90:91]')
for k in range(npre): e(rd(k, 0))
e('s_mov_b32 s39, 7')
e('s_waitcnt lgkmcnt(0)')
out.append('.p2align 6')
for _ in range(opt['pad']): e('s_nop 0')
lab('L_loop')
seq = 0; rseq = {}; covered = -1; wseq = -1; sslot = []
for it in range(2):
    emit = e if it == 1 else (lambda s: None)
    for ph in range(3):
        if it == 1: c(f'======== phase {ph}')
        for s, (t, wk, xk) in enumerate(mf):
            if s == BAR:
                emit('s_waitcnt lgkmcnt(0)')
                emit('s_barrier')
                covered = seq - 1
            if ph == 0 and s == QS:
                if wseq > covered:
                    emit(f's_waitcnt lgkmcnt({min(15, seq-1-wseq)})')
                    covered = max(covered, seq - 1 - min(15, seq-1-wseq))
                emit('s_barrier')
            need = max(rseq.get((ph, fidx[wk]), -1), rseq.get((ph, fidx[xk]), -1))
            if need > covered:
                now = it*324 + ph*108 + s
                recent = sum(1 for x in sslot if x >= now - opt['lat'])
                allow = min(seq - 1 - need, recent, 15)
                emit(f's_waitcnt lgkmcnt({allow})')
                covered = seq - 1 - allow
            cin = vr(MD(t)) if (ph == 0 and first_touch[t] == s) else vr(M(t))
            dst = vr(MD(t)) if (ph == 2 and last_touch[t] == s) else vr(M(t))
            emit(f'v_mfma_f32_16x16x32_bf16 {dst}, {FR(fidx[wk])}, {FR(fidx[xk])}, {cin}')
            for x in ext[ph*108+s]:
                if x[0] == 'rd':
                    emit(rd(x[1], x[2])); rseq[(x[2], x[1])] = seq; seq += 1; sslot.append(it*324 + ph*108 + s)
                else:
                    emit(snapw(x[1])); wseq = seq; seq += 1; sslot.append(it*324 + ph*108 + s)
            if ph == 2 and s == 104: emit('s_sub_u32 s39, s39, 1')
            if ph == 2 and s == 105: emit('s_cmp_lg_u32 s39, 0')
e('s_cbranch_scc1 L_loop')
stamp(6)
if opt['dbgst']: e('s_memtime s[94:95]')
c('---- compute-wave epilogue: gate y3 = MD')
e('s_waitcnt lgkmcnt(0)')
if opt['tr']: e('s_barrier')
def gate_consts():
    e(f's_mov_b32 s46, {fh(-0.6931471805599453)}')
    e(f's_mov_b32 s42, {fh(2*LOG2E*2**-12)}')
    e('s_mov_b32 s43, 0x41f00000')
def gate(a, r, dst, sp):
    L = []
    L.append(f'v_min_f32 v{r}, s43, v{a}')
    L.append(f'v_min_f32 v{r+1}, s43, v{a+1}')
    L.append(f'v_exp_f32 v{a+2}, v{a+2}')
    L.append(f'v_exp_f32 v{a+3}, v{a+3}')
    L.append(f'v_exp_f32 v{r}, v{r}')
    L.append(f'v_exp_f32 v{r+1}, v{r+1}')
    if opt['smallfix']:
        L.append(f'v_cmp_gt_f32 s[{sp}:{sp+1}], s42, abs(v{a})')
        L.append(f'v_cmp_gt_f32 s[{sp+2}:{sp+3}], s42, abs(v{a+1})')
    L.append(f'v_add_f32 v{r+2}, 1.0, v{r}')
    L.append(f'v_add_f32 v{r+3}, 1.0, v{r+1}')
    if opt['smallfix']:
        L.append(f'v_mul_f32 v{a}, s46, v{a}')
        L.append(f'v_mul_f32 v{a+1}, s46, v{a+1}')
    L.append(f'v_fmac_f32 v{r+2}, v{r+2}, v{a+2}')
    L.append(f'v_fmac_f32 v{r+3}, v{r+3}, v{a+3}')
    L.append(f'v_sub_f32 v{r}, 1.0, v{r}')
    L.append(f'v_sub_f32 v{r+1}, 1.0, v{r+1}')
    L.append(f'v_rcp_f32 v{r+2}, v{r+2}')
    L.append(f'v_rcp_f32 v{r+3}, v{r+3}')
    if opt['smallfix']:
        L.append(f'v_cndmask_b32 v{r}, v{r}, v{a}, s[{sp}:{sp+1}]')
        L.append(f'v_cndmask_b32 v{r+1}, v{r+1}, v{a+1}, s[{sp+2}:{sp+3}]')
    L.append(f'v_mul_f32 v{r}, v{r}, v{r+2}')
    L.append(f'v_mul_f32 v{r+1}, v{r+1}, v{r+3}')
    L.append(f'v_cvt_pk_bf16_f32 v{dst}, v{r}, v{r+1}')
    return L
ool = []
def gate_check(As, tm, name):
    for k, a in enumerate(As):
        if k == 0:
            e(f'v_min_f32 v{tm}, abs(v{a}), abs(v{a+1})')
            e(f'v_max_f32 v{tm+1}, v{a}, v{a+1}')
        else:
            e(f'v_min3_f32 v{tm}, abs(v{a}), abs(v{a+1}), v{tm}')
            e(f'v_max3_f32 v{tm+1}, v{a}, v{a+1}, v{tm+1}')
    e(f'v_cmp_gt_f32 s[44:45], s42, v{tm}')
    e(f'v_cmp_lt_f32 vcc, s43, v{tm+1}')
    e(f's_cbranch_vccnz L_cl{name}')
    lab(f'L_clr{name}')
    L = [f'L_cl{name}:']
    for a in As:
        L += [f'    v_min_f32 v{a}, s43, v{a}', f'    v_min_f32 v{a+1}, s43, v{a+1}']
    L.append(f'    s_branch L_clr{name}')
    ool.extend(L)
def gate_fast(a, r, dst, name):
    e(f'v_exp_f32 v{r}, v{a}')
    e(f'v_exp_f32 v{r+1}, v{a+1}')
    e(f'v_exp_f32 v{a+2}, v{a+2}')
    e(f'v_exp_f32 v{a+3}, v{a+3}')
    e(f'v_add_f32 v{r+2}, 1.0, v{r}')
    e(f'v_add_f32 v{r+3}, 1.0, v{r+1}')
    e('s_cmp_lg_u64 s[44:45], 0')
    e(f'v_fmac_f32 v{r+2}, v{r+2}, v{a+2}')
    e(f'v_fmac_f32 v{r+3}, v{r+3}, v{a+3}')
    e(f'v_sub_f32 v{r}, 1.0, v{r}')
    e(f'v_sub_f32 v{r+1}, 1.0, v{r+1}')
    e(f'v_rcp_f32 v{r+2}, v{r+2}')
    e(f'v_rcp_f32 v{r+3}, v{r+3}')
    e(f's_cbranch_scc1 L_sm{name}')
    lab(f'L_smr{name}')
    e(f'v_mul_f32 v{r}, v{r}, v{r+2}')
    e(f'v_mul_f32 v{r+1}, v{r+1}, v{r+3}')
    e(f'v_cvt_pk_bf16_f32 v{dst}, v{r}, v{r+1}')
    ool.extend([f'L_sm{name}:',
        f'    v_cmp_gt_f32 s[48:49], s42, abs(v{a})',
        f'    v_cmp_gt_f32 s[50:51], s42, abs(v{a+1})',
        f'    v_mul_f32 v{a}, s46, v{a}',
        f'    v_mul_f32 v{a+1}, s46, v{a+1}',
        f'    v_cndmask_b32 v{r}, v{r}, v{a}, s[48:49]',
        f'    v_cndmask_b32 v{r+1}, v{r+1}, v{a+1}, s[50:51]',
        f'    s_branch L_smr{name}'])
gate_consts()
if opt['t2']:
    e('v_and_b32 v100, 63, v0')
    e('v_lshlrev_b32 v101, 2, v100')
    for t in range(9):
        e(f's_add_u32 s63, s62, {(t*4+3)*4608}')
        for x in gate(MD(t), 104 + 4*(t % 2), 112 + t, 48): e(x)
        e(f'buffer_store_dword v{112+t}, v101, s[20:23], s63 offen sc1')
else:
    e('v_and_b32 v100, 63, v0')
    e('v_lshlrev_b32 v101, 4, v100')
    e(f's_add_u32 s63, s62, {7*18432}')
    if opt['full']:
        e('s_lshl_b32 s40, s24, 10')
        e(f's_add_u32 s40, s40, {SLOT}')
        e('v_add_u32 v102, s40, v101')
        e('ds_read_b128 v[124:127], v102')
    for t in range(9):
        if opt['fast']:
            if t % 3 == 0: gate_check([MD(t), MD(t+1), MD(t+2)], 102, f'c{t}')
            gate_fast(MD(t), 104 + 4*(t % 2), 112 + t, f'c{t}')
        else:
            if opt['full'] and t == 8: e('s_waitcnt lgkmcnt(0)')
            for x in gate(MD(t), 104 + 4*(t % 2), (127 if opt['full'] and t == 8 else 112 + t), 48): e(x)
        if t in (3, 7):
            e(f'buffer_store_dwordx4 v[{112+t-3}:{112+t}], v101, s[20:23], s63 offen sc1')
            e('s_add_u32 s63, s63, 18432')
    e(f's_add_u32 s63, s62, {6*18432}')
    if opt['full']: e('buffer_store_dwordx4 v[124:127], v101, s[20:23], s63 offen sc1')
    else: e('buffer_store_dword v120, v101, s[20:23], s63 offen offset:12 sc1')
e('s_branch L_fin')
def hbar():
    if opt['bst']:
        e('s_memtime s[64:65]')
        e('s_barrier')
        e('s_memtime s[66:67]')
        e('s_waitcnt lgkmcnt(0)')
        e('s_mov_b32 m0, s68'); e('s_nop 0')
        e('v_writelane_b32 v14, s64, m0')
        e('v_writelane_b32 v15, s66, m0')
        e('s_add_u32 s68, s68, 1')
    else: e('s_barrier')
lab('L_helper')
if opt['bst']: e('s_mov_b32 s68, 0')
def Y(i, t): return 40 + 4*(i*9+t)
def SN(t): return 148 + 4*t
e('v_mov_b32 v3, v101')
e('v_add_u32 v13, 4096, v101')
e('v_add_u32 v6, 4096, v6')
e('v_add_u32 v7, 4096, v7')
e('s_cmp_eq_u32 s26, 7')
e('s_cselect_b64 vcc, -1, 0')
e('v_cndmask_b32 v6, v13, v6, vcc')
e('v_cndmask_b32 v7, v13, v7, vcc')
if opt['sn32']: e('v_lshrrev_b32 v101, 2, v101')
e(f's_add_u32 s38, s34, {2*SLOT}')
e('v_add_u32 v4, s38, v101')
e(f's_add_u32 s38, s35, {2*SLOT+28672}')
e('v_add_u32 v5, s38, v101')
e('s_cmp_eq_u32 s26, 4')
e('s_cbranch_scc1 L_h4')
e(f'v_mov_b32 v36, {OOB}')
e(f'v_mov_b32 v12, {OOB}')
e('s_branch L_h5')
lab('L_h4')
e('s_mov_b32 s31, 0')
gettag('h')
lab('L_h5')
e('v_mov_b32 v38, s92')
e('v_mov_b32 v39, s93')
def dma_list(slot):
    L = []
    for k in range(7):
        pre = [f's_add_u32 m0, s34, {slot*SLOT + (k//4)*4096}', 's_nop 0']
        L.append(pre + [f'buffer_load_dwordx4 v{(3,3,3,3,13,6,7)[k]}, s[20:23], s36 offen offset:{(k%4)*1024} sc1 lds'] + ([f's_add_u32 s36, s36, {XS}'] if k == 6 else []))
    for k in range(6):
        pre = [f's_add_u32 m0, s35, {slot*SLOT + 28672 + (k//4)*4096}', 's_nop 0']
        L.append(pre + [f'buffer_load_dwordx4 v{3 if k < 4 else 13}, s[20:23], s37 offen offset:{(k%4)*1024} sc1 lds'] + (['s_add_u32 s37, s37, 24576'] if k == 5 else []))
    return L
def pst(b, pm):
    return [f'buffer_store_dwordx4 {vr(PK(b,pm))}, v{PA(b)}, s[20:23], 0 offen sc1', f'v_add_u32 v{PA(b)}, s{96+b}, v{PA(b)}']
def weave(dl, sl):
    res = []; n = len(sl); m = len(dl)
    for i in range(m):
        res.append(dl[i])
        for k in range((i*n)//m, ((i+1)*n)//m): res.append(sl[k])
    return res
def mix(dl, vl):
    n = len(dl)
    for i, d in enumerate(dl):
        for x in d: e(x)
        for x in vl[(i*len(vl))//n:((i+1)*len(vl))//n]: e(x)
    if n == 0:
        for x in vl: e(x)
def nvm(dl, after):
    return len(dl) - 1 - after
def snapr():
    if opt['sn32']:
        for t in range(9):
            for h in range(2):
                o = (t if t < 7 else t-7)*4 + 2*h
                e(f'ds_read2st64_b32 {vp(SN(t)+2*h)}, v{4 if t < 7 else 5} offset0:{o} offset1:{o+1}')
            if t == 6: e('s_waitcnt lgkmcnt(4)')
        e('s_waitcnt lgkmcnt(0)')
        return
    for t in range(9):
        e(f'ds_read_b128 {vr(SN(t))}, v4 offset:{t*1024}' if t < 7 else f'ds_read_b128 {vr(SN(t))}, v5 offset:{(t-7)*1024}')
    e('s_waitcnt lgkmcnt(0)')
FM = [f'v_fmac_f32 v{Y(i,t)+r}, s{40+i}, v{SN(t)+r}' for t in range(9) for i in range(3) for r in range(4)]
def FMm(m):
    L = []
    for t in range(9):
        for i in range(3):
            if DCH[i][m] == 0: continue
            first = all(DCH[i][mm] == 0 for mm in range(m))
            for r in range(4): L.append(f'{"v_mul_f32" if first else "v_fmac_f32"} v{Y(i,t)+r}, s{40+i}, v{SN(t)+r}')
    return L
e(f's_add_u32 s36, s36, {XS}')
e('s_add_u32 s37, s37, 24576')
e('s_barrier')
mix(dma_list(1), [])
if opt['b1e'] == 1: mix([pst(b, 0) for b in range(4)], [])
c('coefficient table: s40.. = 3 x 6, consumed from the front')
for m in range(6):
    for i in range(3): e(f's_mov_b32 s{40+3*m+i}, {fh(DCH[i][m])}')
hbar()
if opt['b1e'] == 2: mix([pst(b, 0) for b in range(4)], [])
ND0 = opt['nd0']
def only4(name, fn):
    e('s_cmp_lg_u32 s26, 4')
    e(f's_cbranch_scc1 L_o4{name}')
    fn()
    lab(f'L_o4{name}')
def hflag(off):
    e('s_lshl_b32 s30, s2, 3')
    e(f's_add_u32 s30, s30, {FLAG_OFF+off}')
    e(f's_mov_b64 exec, {(1<<REP)-1}')
    e('buffer_store_dwordx2 v[38:39], v12, s[20:23], s30 offen sc1')
    e('s_mov_b64 exec, -1')
def hiter(name, fm, sa=(), sc_=(), flag0=None, flag1=None, chk=None):
    if chk is not None: poll_issue(chk)
    for g_ in sa:
        for x in g_: e(x)
    hbar()
    if fm: snapr()
    D2 = dma_list(2)
    mix(D2[:ND0], [])
    e(f's_waitcnt vmcnt({ND0 + len(sa)})')
    if chk is not None:
        def f():
            poll_check()
            e(f's_cbranch_scc0 L_o4c{name}')
            poll(chk, name, opt['fslp'])
        only4('c'+name, f)
    hbar()
    if flag0 is not None: hflag(flag0)
    mix(D2[ND0:] + dma_list(0), fm[:40])
    e('s_waitcnt vmcnt(13)')
    hbar()
    if flag1 is not None: hflag(flag1)
    mix(list(sc_) + dma_list(1), fm[40:])
    if fm:
        for k in range(15): e(f's_mov_b32 s{40+k}, s{43+k}')
    e(f's_waitcnt vmcnt({13 + len(sc_) + (1 if flag1 is not None else 0)})')
    hbar()
ST = [pst(b, pm) for pm in range(5) for b in range(4)]
if opt['b1e']: hiter('0', [], sc_=ST[4:8], flag0=1*FA)
else: hiter('0', [], sa=ST[0:4], sc_=ST[4:8], flag1=1*FA)
hiter('1', FMm(0), sa=ST[8:12], sc_=ST[12:16], flag0=2*FA, flag1=3*FA, chk=1*FA)
hiter('2', FMm(1), sa=ST[16:20], flag1=4*FA, chk=2*FA)
hiter('3', FMm(2), chk=3*FA)
hiter('4', FMm(3), chk=4*FA)
hiter('5', FMm(4))
c('---- last product')
if opt['sw'] == 4: stamp(6)
hbar()
snapr()
F0 = opt['f0']
D2 = dma_list(2)
mix(D2[:ND0], FM[:F0])
e(f's_waitcnt vmcnt({ND0})')
hbar()
WD = []
for k in range(12):
    WD.append([f's_add_u32 m0, s61, {(k//4)*4096}', 's_nop 0', f'buffer_load_dwordx4 v3, s[20:23], s60 offen offset:{(k%4)*1024} sc1 lds'] + (['s_add_u32 s60, s60, 4096'] if k % 4 == 3 else []))
e('s_mul_i32 s61, s24, 12288')
e(f's_add_u32 s60, s61, {WO_OFF}')
mix(D2[ND0:] + WD, FM[F0:])
gate_consts()
e('s_mov_b32 s63, s62')
nst = [0]
if opt['t2']:
    opt['full'] = 0
    e('v_lshrrev_b32 v9, 2, v3')
HORD = ([24, 25, 26] + list(range(24))) if opt['full'] else list(range(27))
def hgate(n0, n1):
    for n in HORD[n0:n1]:
        t, i = divmod(n, 3)
        if opt['fast']:
            if i == 0: gate_check([Y(0,t), Y(1,t), Y(2,t)], 192, f'h{n}')
            gate_fast(Y(i, t), 184 + 4*(n % 2), 200 + n, f'h{n}')
        else:
            for x in gate(Y(i, t), 184 + 4*(n % 2), 200 + n, 48): e(x)
        if opt['t2']:
            e(f's_add_u32 s63, s62, {(t*4+i)*4608}')
            e(f'buffer_store_dword v{200+n}, v9, s[20:23], s63 offen sc1'); nst[0] += 1
            continue
        if n % 4 == 3:
            e(f'buffer_store_dwordx4 v[{200+n-3}:{200+n}], v3, s[20:23], s63 offen sc1')
            e('s_add_u32 s63, s63, 18432'); nst[0] += 1
        if n == 26 and not opt['full']:
            e('buffer_store_dwordx3 v[224:226], v3, s[20:23], s63 offen sc1'); nst[0] += 1
g1 = opt['g1']; g2 = min(27, g1 + opt['g2'])
hgate(0, g1)
e(f's_waitcnt vmcnt({nst[0]+12})')
hbar()
if opt['full']:
    assert g1 >= 3
    e('s_lshl_b32 s40, s24, 10')
    e(f's_add_u32 s40, s40, {SLOT}')
    e('v_add_u32 v8, s40, v3')
    e('ds_write_b128 v8, v[224:227]')
hgate(g1, g2)
if opt['full']: e('s_waitcnt lgkmcnt(0)')
if opt['pbe']: e(f's_waitcnt vmcnt({nst[0]})')
hbar()
if opt['tr']:
    hgate(g2, opt['x1'])
    e(f's_waitcnt vmcnt({nst[0]-5})')
    e('s_barrier')
    e('s_lshl_b32 s30, s28, 7')
    e('s_lshl_b32 s31, s29, 3')
    e('s_add_u32 s30, s30, s31')
    e(f's_add_u32 s30, s30, {FLAG_OFF+ZFL}')
    e('s_mov_b64 exec, 1')
    e('buffer_store_dwordx2 v[38:39], v12, s[20:23], s30 offen sc1')
    e('s_mov_b64 exec, -1')
    hgate(opt['x1'], 27)
else:
    hgate(g2, 27)
if opt['bst']:
    e('s_memtime s[64:65]')
    e('s_waitcnt lgkmcnt(0)')
    e('s_mov_b32 m0, s68'); e('s_nop 0')
    e('v_writelane_b32 v14, s64, m0')
    e('v_writelane_b32 v15, s64, m0')
    e('s_cmp_lg_u32 s26, 4')
    e('s_cbranch_scc1 L_fin')
    e('s_mov_b32 s22, 0x10000000')
    e('s_lshl_b32 s33, s2, 9')
    e(f's_add_u32 s33, s33, {STAMP_OFF + (128<<10)*4}')
    e('v_lshrrev_b32 v1, 1, v3')
    e('buffer_store_dwordx2 v[14:15], v1, s[20:23], s33 offen')
if opt['t2']:
    assert opt['gmap']
    lab('L_fin')
    e('s_setprio 0')
    e('s_load_dwordx2 s[6:7], s[0:1], 24')
    if not opt['es']: stamp(7)
    e('v_and_b32 v2, 63, v0')
    e('v_lshlrev_b32 v3, 4, v2')
    e('v_lshlrev_b32 v4, 2, v2')
    e('v_add_u32 v6, 4096, v4')
    e('v_mov_b32 v37, 0')
    c('pair u = g>>1 ; this WG consumes (rh = g&1, tau = cg) of both parity groups ; wave = (parity, phase)')
    e('s_lshr_b32 s40, s28, 1')
    e('s_and_b32 s41, s28, 1')
    e('s_lshr_b32 s42, s26, 2')
    e('s_lshl_b32 s43, s40, 2')
    e('s_lshl_b32 s44, s42, 1')
    e('s_add_u32 s43, s43, s44')
    e('s_add_u32 s43, s43, s41')
    e('s_mul_i32 s43, s43, 9')
    e('s_add_u32 s43, s43, s29')
    e('s_lshl_b32 s43, s43, 2')
    e('s_add_u32 s43, s43, s24')
    e('s_mul_i32 s46, s43, 4608')
    e(f's_add_u32 s46, s46, {Z_OFF}')
    e('s_cmp_ge_u32 s40, 7')
    e('s_cselect_b32 s37, 4608000, 0')
    e('s_cselect_b32 s36, 7, 0')
    e('s_sub_u32 s32, s40, s36')
    e('s_lshl_b32 s32, s32, 1')
    e('s_add_u32 s32, s32, s41')
    e('s_mul_i32 s32, s32, 144')
    e('s_add_u32 s32, s32, s29')
    e('s_mul_i32 s33, s26, 18')
    e('s_add_u32 s32, s32, s33')
    e('s_mul_i32 s45, s32, 2304')
    e('s_waitcnt lgkmcnt(0)')
    e('s_add_u32 s6, s6, s37'); e('s_addc_u32 s7, s7, 0')
    srd(16, 6, 7, 4608000)
    c('LDS write addresses: j*2304 + row8*288 + col*16 / +256+col*2 ; j = 4*(lane>>4)+r')
    e('s_lshl_b32 s47, s24, 1')
    e('s_sub_u32 s47, s42, s47')
    e('s_add_u32 s47, s47, 6')
    e('s_mul_i32 s47, s47, 288')
    e(f's_add_u32 s47, s47, {SLOT}')
    e('v_lshrrev_b32 v7, 4, v2')
    e('v_mul_u32_u24 v7, 9216, v7')
    e('v_add_u32 v7, s47, v7')
    e('v_and_b32 v8, 15, v2')
    e('v_lshl_add_u32 v11, v8, 1, v7')
    e('v_lshl_add_u32 v10, v8, 4, v7')
    e('s_mul_i32 s48, s26, 4608')
    e(f's_add_u32 s48, s48, {SLOT}')
    e('v_add_u32 v12, s48, v3')
    e('v_add_u32 v13, s45, v3')
    e('v_add_u32 v14, 18432, v13')
    e('v_cmp_gt_u32 vcc, 16, v2')
    e('v_cmp_gt_u32 s[48:49], 32, v2')
    e('v_add_u32 v36, 4096, v14')
    e(f'v_mov_b32 v5, {OOB}')
    e('v_cndmask_b32 v15, v14, v13, vcc')
    e('v_cndmask_b32 v36, v5, v36, s[48:49]')
    e('v_mov_b32 v34, 0')
    e('v_mov_b32 v35, 0')
    e('s_mul_i32 s30, s41, 9')
    e('s_add_u32 s30, s30, s29')
    e('s_lshl_b32 s30, s30, 3')
    if opt['inbox']:
        c('every WG has a private 256-B inbox; a producer drops its tag into the 18 inboxes of its pair')
        e('s_mul_i32 s50, s40, 4608')
        e('s_add_u32 s30, s30, s50')
        e(f's_add_u32 s30, s30, {FLAG_OFF+AFL}')
        e('s_lshl_b32 s50, s27, 8')
        e(f's_add_u32 s50, s50, {FLAG_OFF+AFL}')
        e('v_lshlrev_b32 v37, 8, v2')
    else:
        e('s_lshl_b32 s50, s40, 8')
        e(f's_add_u32 s50, s50, {FLAG_OFF+ZFL}')
        e('s_add_u32 s30, s30, s50')
    def bf(f): return vr(76 + 4*f)
    def preB():
        for f in range(45):
            e(f'ds_read_b128 {bf(f)}, v3 offset:{f*1024}')
            if f % 12 == 11: e('s_waitcnt lgkmcnt(4)')
    e('v_min_u32 v5, 17, v2')
    e('v_lshlrev_b32 v5, 3, v5')
    e('s_mov_b32 s51, 0')
    if opt['pbe']: preB()
    e('s_waitcnt vmcnt(0)')
    e('s_barrier')
    if not opt['es']: stamp(8)
    e('s_cmp_lg_u32 s26, 4')
    e('s_cbranch_scc1 L_e1b')
    setflag([], 0x3ffff if opt['inbox'] else 1)
    lab('L_e1b')
    if not opt['pbe']: preB()
    e('s_cmp_lg_u32 s26, 4')
    e('s_cbranch_scc1 L_e2')
    lab('L_zpoll')
    e('buffer_load_dwordx2 v[8:9], v5, s[20:23], s50 offen sc1')
    e('s_add_u32 s51, s51, 1')
    e('s_cmp_gt_u32 s51, 400000')
    e('s_cbranch_scc1 L_e2')
    e('s_waitcnt vmcnt(0)')
    e('v_cmp_ne_u64 vcc, s[92:93], v[8:9]')
    e('s_cbranch_vccz L_e2')
    if opt['zslp']: e(f's_sleep {opt["zslp"]}')
    e('s_branch L_zpoll')
    lab('L_e2')
    e('s_barrier')
    if not opt['es']: stamp(9)
    for J in range(18):
        e(f'buffer_load_dword v{16+J}, v{4 if J < 16 else 6}, s[20:23], s46 offen offset:{(J%16)*256} sc1')
    e('s_waitcnt lgkmcnt(0)')
    for ks in range(5):
        e(f's_waitcnt vmcnt({max(0, 18-4*(ks+1))})')
        if ks == 0 and not opt['es']: stamp(10)
        for T in range(9):
            r = 40 + 4*T
            cin = '0' if ks == 0 else vr(r)
            e(f'v_mfma_f32_16x16x32_bf16 {vr(r)}, v[{16+4*ks}:{16+4*ks+3}], {bf(T*5+ks)}, {cin}')
    e('s_nop 7')
    e('s_nop 1')
    for r in range(4):
        d = 140 + 6*r
        A = lambda T: 40 + 4*T + r
        for h in range(4): e(f'v_cvt_pk_bf16_f32 v{d+h}, v{A(2*h)}, v{A(2*h+1)}')
        e(f'v_cvt_pk_bf16_f32 v{d+4}, v{A(8)}, v{A(8)}')
        e(f'ds_write_b128 v10, v[{d}:{d+3}] offset:{r*2304}')
        e(f'ds_write_b16 v11, v{d+4} offset:{r*2304+256}')
    e('s_waitcnt lgkmcnt(0)')
    e('s_barrier')
    for n in range(5): e(f'ds_read_b128 {vr(76+4*n)}, v12 offset:{n*1024}')
    for n in range(5):
        e(f's_waitcnt lgkmcnt({4-n})')
        va, off = ((13, 0), (13, 1024), (15, 2048), (14, 3072), (36, 0))[n]
        e(f'buffer_store_dwordx4 {vr(76+4*n)}, v{va}, s[16:19], 0 offen offset:{off}{OF[opt["of3"]]}')
else:
    lab('L_fin')
    e('s_setprio 0')
    e('s_load_dwordx2 s[6:7], s[0:1], 24')
    if not opt['es']: stamp(7)
    e('v_and_b32 v2, 63, v0')
    e('v_lshlrev_b32 v3, 4, v2')
    e('v_mov_b32 v37, 0')
    e('s_lshr_b32 s41, s26, 2')
    if opt['tr']:
        c('helpers take an early set, compute waves a late one')
        e('s_mul_i32 s40, s28, 18')
        e('s_add_u32 s40, s40, s29')
        e('s_add_u32 s42, s41, 4')
        e('s_cmp_ge_u32 s29, s42')
        e('s_cselect_b32 s42, 4, 0')
        e('s_add_u32 s40, s40, s42')
        e('s_cmp_eq_u32 s41, 0')
        e('s_cselect_b32 s42, 5, 0')
        e('s_add_u32 s40, s40, s42')
    else:
        e('s_lshl_b32 s40, s27, 1')
        e('s_add_u32 s40, s40, s41')
    e('s_mul_i32 s30, s40, 7282')
    e('s_lshr_b32 s30, s30, 16')
    e('s_mul_i32 s31, s30, 9')
    e('s_sub_u32 s31, s40, s31')
    if opt['gmap']:
        e('s_lshr_b32 s32, s30, 2')
        e('s_bfe_u32 s38, s30, 0x10001')
        e('s_and_b32 s33, s30, 1')
        e('s_cmp_ge_u32 s32, 7')
        e('s_cselect_b32 s37, 4608000, 0')
        e('s_cselect_b32 s36, 7, 0')
        e('s_sub_u32 s32, s32, s36')
        e('s_lshl_b32 s32, s32, 1')
        e('s_add_u32 s33, s33, s32')
    else:
        e('s_mul_i32 s32, s30, 4682')
        e('s_lshr_b32 s32, s32, 16')
        e('s_mul_i32 s33, s32, 14')
        e('s_sub_u32 s33, s30, s33')
        e('s_lshr_b32 s37, s32, 1')
        e('s_and_b32 s38, s32, 1')
        e('s_mul_i32 s37, s37, 4608000')
    e('s_waitcnt lgkmcnt(0)')
    e('s_add_u32 s6, s6, s37'); e('s_addc_u32 s7, s7, 0')
    srd(16, 6, 7, 4608000)
    e('s_mul_i32 s39, s33, 1152')
    e('s_add_u32 s39, s39, s38')
    e('s_add_u32 s39, s39, 6')
    e('s_lshl_b32 s45, s31, 2')
    e('s_add_u32 s45, s45, s24')
    e('s_mul_i32 s42, s45, 171')
    e('s_lshr_b32 s42, s42, 9')
    e('s_mul_i32 s43, s42, 3')
    e('s_sub_u32 s43, s45, s43')
    e('s_sub_u32 s44, s45, 28')
    e('s_cmp_ge_u32 s45, 27')
    e('s_cselect_b32 s42, s44, s42')
    e('s_cselect_b32 s43, 3, s43')
    e('s_cmp_eq_u32 s45, 27')
    e('s_cselect_b32 s42, 8, s42')
    e('s_lshl_b32 s42, s42, 3')
    e('s_lshl_b32 s43, s43, 1')
    e('s_add_u32 s42, s42, s39')
    e('s_sub_u32 s42, s42, s43')
    e('s_mul_i32 s45, s42, 288')
    e('v_lshrrev_b32 v7, 4, v2')
    e(f'v_mul_u32_u24 v7, {4*72*288}, v7')
    e('v_add_u32 v7, s45, v7')
    e('v_and_b32 v8, 15, v2')
    e('v_lshl_add_u32 v11, v8, 1, v7')
    e('v_lshl_add_u32 v10, v8, 4, v7')
    def bf(f): return vr(76 + 4*f)
    def preB():
        for f in range(45):
            e(f'ds_read_b128 {bf(f)}, v3 offset:{f*1024}')
            if f % 12 == 11: e('s_waitcnt lgkmcnt(4)')
    def zpoll(name):
        e('v_min_u32 v5, 8, v2')
        e('v_lshlrev_b32 v5, 3, v5')
        e('s_mov_b32 s51, 0')
        lab(f'L_zp{name}')
        e('buffer_load_dwordx2 v[8:9], v5, s[20:23], s50 offen sc1')
        e('s_add_u32 s51, s51, 1')
        e('s_cmp_gt_u32 s51, 400000')
        e(f's_cbranch_scc1 L_zd{name}')
        e('s_waitcnt vmcnt(0)')
        e('v_cmp_ne_u64 vcc, s[92:93], v[8:9]')
        e(f's_cbranch_vccz L_zd{name}')
        e('s_sleep 1')
        e(f's_branch L_zp{name}')
        lab(f'L_zd{name}')
    if opt['tr']:
        e('s_mul_i32 s46, s40, 18432')
        e('s_lshl_b32 s47, s24, 10')
        e('s_add_u32 s46, s46, s47')
        e(f's_add_u32 s46, s46, {Z_OFF}')
        e('s_mul_i32 s48, s41, 18432')
        e(f's_add_u32 s48, s48, {SLOT}')
        e('s_add_u32 s47, s47, s48')
        e('s_lshl_b32 s49, s24, 2')
        e('s_add_u32 s48, s48, s49')
        e('v_add_u32 v4, s48, v3')
        e('v_mov_b32 v34, 0')
        e('v_mov_b32 v35, 0')
        e('s_lshl_b32 s50, s28, 7')
        e(f's_add_u32 s50, s50, {FLAG_OFF+ZFL}')
        def zdma(name):
            for i in range(5):
                if i == 4:
                    e('s_cmp_ge_u32 s24, 2')
                    e(f's_cbranch_scc1 L_zm{name}')
                e(f's_add_u32 m0, s47, {i*4096}')
                e('s_nop 0')
                e('buffer_load_dwordx4 v3, s[20:23], s46 offen sc1 lds')
                if i < 4: e('s_add_u32 s46, s46, 4096')
            lab(f'L_zm{name}')
        e('s_cmp_lt_u32 s26, 4')
        e('s_cbranch_scc1 L_fc')
        c('---- helpers: early set')
        e('s_cmp_lg_u32 s26, 4')
        e('s_cbranch_scc1 L_zdh')
        zpoll('h')
        e('s_waitcnt vmcnt(0)')
        e('s_barrier')
        if not opt['es']: stamp(8)
        zdma('h')
        preB()
        e('s_waitcnt vmcnt(0) lgkmcnt(0)')
        e('s_barrier')
        stamp(9)
        e('s_branch L_gemm')
        lab('L_fc')
        c('---- compute waves: late set')
        e('s_add_u32 s50, s50, 4096')
        e('s_waitcnt vmcnt(0)')
        e('s_barrier')
        if not opt['es']: stamp(8)
        e('s_cmp_lg_u32 s26, 0')
        e('s_cbranch_scc1 L_fc1')
        setflag(['s_lshl_b32 s30, s29, 3', 's_add_u32 s30, s30, s50'])
        lab('L_fc1')
        preB()
        e('s_cmp_lg_u32 s26, 0')
        e('s_cbranch_scc1 L_zdc')
        zpoll('c')
        e('s_barrier')
        stamp(9)
        zdma('c')
        e('s_waitcnt vmcnt(0) lgkmcnt(0)')
        e('s_barrier')
        stamp(10)
        lab('L_gemm')
    else:
        e('s_mul_i32 s46, s27, 36864')
        e('s_lshl_b32 s47, s26, 10')
        e('s_add_u32 s46, s46, s47')
        e(f's_add_u32 s46, s46, {Z_OFF}')
        e('s_mul_i32 s48, s41, 18432')
        e('s_lshl_b32 s49, s24, 2')
        e('s_add_u32 s48, s48, s49')
        e(f's_add_u32 s48, s48, {SLOT}')
        e('v_add_u32 v4, s48, v3')
        e('v_mov_b32 v34, 0')
        e('v_mov_b32 v35, 0')
        if opt['fl']:
            for k in range(4): e(f'v_mov_b32 v{36+k}, s{92+k%2}')
            e('s_mul_i32 s50, s28, 1152')
            e(f's_add_u32 s50, s50, {FLAG_OFF+ZF2}')
            e('s_lshl_b32 s30, s27, 7')
            e(f's_add_u32 s30, s30, {FLAG_OFF+ZF2}')
        e('s_waitcnt vmcnt(0)')
        e('s_barrier')
        if not opt['es']: stamp(8)
        def bf(f): return vr(76 + 4*f)
        def preB():
            for f in range(45):
                e(f'ds_read_b128 {bf(f)}, v3 offset:{f*1024}')
                if f % 12 == 11: e('s_waitcnt lgkmcnt(4)')
        e('s_cmp_lg_u32 s26, 4')
        e('s_cbranch_scc1 L_e1b')
        if opt['fl']:
            e('s_mov_b64 exec, 0xff')
            e('buffer_store_dwordx4 v[36:39], v3, s[20:23], s30 offen sc1')
            e('s_mov_b64 exec, -1')
        else:
            e('s_lshl_b32 s50, s28, 7')
            e(f's_add_u32 s50, s50, {FLAG_OFF+ZFL}')
            setflag(['s_lshl_b32 s30, s29, 3', 's_add_u32 s30, s30, s50'])
        lab('L_e1b')
        preB()
        e('s_cmp_lg_u32 s26, 4')
        e('s_cbranch_scc1 L_e2')
        e('v_min_u32 v5, 8, v2')
        e(f'v_lshlrev_b32 v5, {7 if opt["fl"] else 3}, v5')
        e('s_mov_b32 s51, 0')
        lab('L_zpoll')
        e('buffer_load_dwordx2 v[8:9], v5, s[20:23], s50 offen sc1')
        e('s_add_u32 s51, s51, 1')
        e('s_cmp_gt_u32 s51, 400000')
        e('s_cbranch_scc1 L_e2')
        e('s_waitcnt vmcnt(0)')
        e('v_cmp_ne_u64 vcc, s[92:93], v[8:9]')
        e('s_cbranch_vccz L_e2')
        e('s_sleep 1')
        e('s_branch L_zpoll')
        lab('L_e2')
        e('s_barrier')
        stamp(9)
        for i in range(5):
            if i == 4:
                e('s_cmp_ge_u32 s26, 4')
                e('s_cbranch_scc1 L_e3')
            e(f's_add_u32 m0, s47, {SLOT + i*8192}')
            e('s_nop 0')
            e('buffer_load_dwordx4 v3, s[20:23], s46 offen sc1 lds')
            if i < 4: e('s_add_u32 s46, s46, 8192')
        lab('L_e3')
        e('s_waitcnt vmcnt(0) lgkmcnt(0)')
        e('s_barrier')
        stamp(10)
    if opt['stamps']: e('s_waitcnt lgkmcnt(0)')
    for J in range(14): e(f'ds_read_b32 v{16+J}, v4 offset:{J*1024}')
    for ks in range(5):
        if ks == 0: e('s_waitcnt lgkmcnt(10)')
        if ks == 1: e('s_waitcnt lgkmcnt(10)')
        if ks == 2: e('s_waitcnt lgkmcnt(6)')
        if ks == 3: e('s_waitcnt lgkmcnt(2)')
        if ks == 4: e('s_waitcnt lgkmcnt(0)')
        for T in range(9):
            r = 40 + 4*T
            cin = '0' if ks == 0 else vr(r)
            e(f'v_mfma_f32_16x16x32_bf16 {vr(r)}, v[{16+4*ks}:{16+4*ks+3}], {bf(T*5+ks)}, {cin}')
            if ks == 0 and T < 4: e(f'ds_read_b32 v{30+T}, v4 offset:{(14+T)*1024}')
    if opt['tr']:
        e('s_cmp_lt_u32 s26, 4')
        e('s_cbranch_scc1 L_ne3')
        e('s_barrier')
        lab('L_ne3')
    e('s_nop 7')
    e('s_nop 1')
    if opt['trip']:
        e('s_memrealtime s[66:67]')
        e('s_waitcnt lgkmcnt(0)')
        e('s_sub_u32 s66, s66, s64')
        e(f's_sub_u32 s66, s66, {opt["trip"]}')
        e(f's_cmp_lt_u32 s66, {opt["tlo"] - opt["trip"]}')
        e('s_cselect_b32 s66, 1.0, 0')
        e('s_cmp_eq_u32 s2, 100')
        e('s_cselect_b32 s66, s66, 0')
        e('v_add_f32 v40, s66, v40')
    if opt['fake']:
        e('s_cmp_ge_u32 s27, 126')
        e('s_cselect_b32 s45, 126, 0')
        e('s_sub_u32 s45, s27, s45')
        e('s_mul_i32 s45, s45, 36864')
        e('s_mul_i32 s44, s26, 4608')
        e('s_add_u32 s45, s45, s44')
        e('v_add_u32 v10, s45, v3')
        for r in range(4):
            d = 140 + 6*r
            A = lambda T: 40 + 4*T + r
            for h in range(4): e(f'v_cvt_pk_bf16_f32 v{d+h}, v{A(2*h)}, v{A(2*h+1)}')
            e(f'v_cvt_pk_bf16_f32 v{d+4}, v{A(8)}, v{A(8)}')
            e(f'buffer_store_dwordx4 v[{d}:{d+3}], v10, s[16:19], 0 offen offset:{r*1024}{OF[opt["of"]]}')
    else:
      for r in range(4):
          d = 140 + 6*r
          A = lambda T: 40 + 4*T + r
          for h in range(4): e(f'v_cvt_pk_bf16_f32 v{d+h}, v{A(2*h)}, v{A(2*h+1)}')
          e(f'v_cvt_pk_bf16_f32 v{d+4}, v{A(8)}, v{A(8)}')
          e(f'buffer_store_dwordx4 v[{d}:{d+3}], v10, s[16:19], 0 offen{OF[opt["of"]]}')
          e(f'buffer_store_short v{d+4}, v11, s[16:19], 0 offen offset:256{OF[opt["of2"]]}')
          if r < 3:
              e(f'v_add_u32 v10, {72*288}, v10')
              e(f'v_add_u32 v11, {72*288}, v11')
if opt['dead2']:
    e('s_cmp_eq_u32 s92, 0')
    e('s_cbranch_scc1 L_end')
    lab('L_dl2')
    e('s_memrealtime s[66:67]')
    e('s_waitcnt lgkmcnt(0)')
    e('s_sub_u32 s66, s66, s92')
    e(f's_cmp_lt_u32 s66, {opt["dead2"]}')
    e('s_cbranch_scc1 L_dl2')
if opt['dead']:
    if opt['devt']:
        e(f's_cmp_lg_u32 s26, {opt["dw"]}')
        e('s_cbranch_scc1 L_end')
    e('s_waitcnt vmcnt(0)')
    lab('L_dl')
    e('s_memrealtime s[66:67]')
    e('s_waitcnt lgkmcnt(0)')
    e('s_sub_u32 s66, s66, s64')
    e(f's_cmp_lt_u32 s66, {opt["dead"]}')
    e('s_cbranch_scc1 L_dl')
if opt['stamps']:
    e('s_waitcnt vmcnt(0)')
    stamp(11)
    e('s_waitcnt lgkmcnt(0)')
    e(f's_cmp_lg_u32 s26, {opt["sw"]}')
    e('s_cbranch_scc1 L_end')
    if opt['dbgst']:
        e(f's_cmp_lg_u32 s2, {opt["dbgst"]}')
        e('s_cbranch_scc1 L_end')
        e('s_load_dwordx2 s[56:57], s[0:1], 32')
        e('s_waitcnt lgkmcnt(0)')
        srd(16, 56, 57, 256)
        e('v_mov_b32 v1, 0')
        for i in range(1, 12):
            e(f's_sub_u32 s33, s{64+2*i}, s64')
            e('v_mov_b32 v4, s33')
            e(f'buffer_store_dword v4, v1, s[16:19], 0 offen offset:{4+4*i}')
        e('s_sub_u32 s33, s94, s90')
        e('v_mov_b32 v4, s33')
        e('buffer_store_dword v4, v1, s[16:19], 0 offen offset:56')
        e('s_branch L_end')
    e('s_mov_b32 s22, 0x10000000')
    e('s_lshl_b32 s33, s2, 7')
    e(f's_add_u32 s33, s33, {STAMP_OFF}')
    e('v_mov_b32 v1, s33')
    for i in range(6):
        for k in range(4): e(f'v_mov_b32 v{4+k}, s{64+4*i+k}')
        e(f'buffer_store_dwordx4 v[4:7], v1, s[20:23], 0 offen offset:{16*i}')
        e('s_nop 1')
lab('L_end')
e('s_endpgm')
out.extend(ool)
tail = f"""
.section .rodata,"a"
.p2align 6
.amdhsa_kernel {NAME}_kernel
  .amdhsa_next_free_vgpr 256
  .amdhsa_next_free_sgpr 100
  .amdhsa_accum_offset 256
  .amdhsa_group_segment_fixed_size 0
  .amdhsa_kernarg_size 48
  .amdhsa_user_sgpr_count 2
  .amdhsa_user_sgpr_kernarg_segment_ptr 1
  .amdhsa_system_sgpr_workgroup_id_x 1
.end_amdhsa_kernel
"""
open(sys.argv[1], 'w').write(hdr + '\n'.join(out) + '\n' + tail)
```

```python
import sys, struct
import numpy as np
from f44 import matrices, PTS
NAME = 'standalone__autoregressive_conv_wavenet__speech'
opt = dict(stamps=0, LA=26, smallfix=1, ldf=0, QS=28, prio=1, g1=5, g2=7, bst=0, nd0=7, wsp=5, f0=30, slp=1, cpf=3, sw=4, dly=0, pf=0, early=1, dbgst=0, rep=1, rstr=4352, pre=0, shr=1, agg=1, gslp=2, es=0, word=1, skx=0, skw=0, of=0, of2=0, gmap=1, trip=0, tlo=0, fast=0, sn32=0, lat=9, b1e=2, fslp=6, pad=0, mord=1, tdesc=0, tr=0, x1=24, full=1, fl=0, wso=0, dead=0, fake=0, t2=1, of3=2, dead2=0, pbe=0, zslp=1, inbox=0, warm=0, xpad=0, devt=0, dw=0, x4=1, tlb=1, tlbo=0)
for a in sys.argv[2:]:
    k, v = a.split('='); assert k in opt, k; opt[k] = int(v)
out = []
def e(s): out.append('    ' + s)
def lab(s): out.append(s + ':')
def c(s): out.append('    ; ' + s)
def fh(x): return '0x%08x' % struct.unpack('<I', struct.pack('<f', float(x)))[0]
AT, G, BT = matrices()
GS = G.copy()
for m in range(6): GS[m] *= PTS[m]**3
CH = np.zeros((3, 7))
for i in range(3):
    for m in range(6): CH[i][m] = PTS[m]**(i-3)
DCH = CH[:, :6] - CH[:, 1:7]
LOG2E = 1.4426950408889634
LDF = {0: '', 1: ' nt'}[opt['ldf']]
OF = {0:'', 1:' nt', 2:' sc1', 3:' sc0 sc1'}
PRF = {1: ' sc1', 2: '', 3: ' sc0 sc1'}.get(opt['pre'], '')
PF_ = {0: ' sc1', 1: ' sc0 sc1', 2: ' sc1 nt', 3: ' sc0 sc1 nt'}[opt['pf']]
XROWS = 2032
XS = XROWS*96
U_BYTES = 4*21*XS
WT_OFF = U_BYTES
WT_BYTES = 9*21*24576
Z_OFF = WT_OFF + WT_BYTES
Z_BYTES = 28*2*9*18*1024
FLAG_OFF = Z_OFF + Z_BYTES
REP = opt['rep']; RSTR = opt['rstr']; FA = REP*RSTR
ZFL = 5*FA
GOF = ZFL + 8192
AFL = (GOF + 8*4352 + 1023)//1024*1024
ZF2 = AFL + 32768
WO_OFF = FLAG_OFF + ZF2 + 32768
WS_USED = WO_OFF + 45*1024
STAMP_OFF = 268435456 - (1 << 20)
SLOT = 53248
XL = 2*SLOT + 8192
WL = SLOT
LDS_MAIN = 3*SLOT
OOB = 0x7f000000
hdr = f"""; Kernarg layout for this problem (48 bytes, ptrs only, base s[0:1]):
; Algorithm: the dilation-2 causal conv splits into 4 independent streams (batch, time parity); each is evaluated with an
; exact F(4,4) Toom-Cook reformulation (7 products of 8 taps per 4 outputs, points +-a,+-b,+-c,inf), fp32 accumulation.
; @launch grid=(252,1,1) block=(512,1,1) lds={LDS_MAIN}
.amdgcn_target "amdgcn-amd-amdhsa--gfx950"
.text
.globl {NAME}_kernel
.p2align 8
.type {NAME}_kernel,@function
{NAME}_kernel:
"""
def srd(d, lo, hi, nbytes):
    e(f's_mov_b32 s{d}, s{lo}')
    e(f's_and_b32 s{d+1}, s{hi}, 0xffff')
    e(f's_mov_b32 s{d+2}, {nbytes}')
    e(f's_mov_b32 s{d+3}, 0x00020000')
def vp(r): return f'v[{r}:{r+1}]'
def vr(r): return f'v[{r}:{r+3}]'
def pkfma(d, sc, a, b, nega=False):
    neg = ' neg_lo:[0,1,0] neg_hi:[0,1,0]' if nega else ''
    e(f'v_pk_fma_f32 {vp(d)}, s[{sc}:{sc+1}], {vp(a)}, {vp(b)}{neg}')
def pkadd(d, a, b, negb=False):
    neg = ' neg_lo:[0,1] neg_hi:[0,1]' if negb else ''
    e(f'v_pk_add_f32 {vp(d)}, {vp(a)}, {vp(b)}{neg}')
def sconst2(s, x):
    e(f's_mov_b32 s{s}, {fh(x)}'); e(f's_mov_b32 s{s+1}, {fh(x)}')
def stamp(i):
    if opt['stamps']: e(f's_memrealtime s[{64+2*i}:{65+2*i}]')
    elif opt['devt'] == i and i: e('s_memrealtime s[64:65]')
def PK(b, pm):
    n = pm*4 + b
    return 184 + 4*n if n < 18 else 16 + 4*(n-18)
PA = lambda b: 32 + b
def XOFF(s):
    if opt['xpad']: return (2400 + (6-2*s)*288) if s <= 3 else (14-2*s)*288
    return (12-2*s)*288
PT = 24

def gettag(name):
    lab(f'L_tag{name}')
    e('buffer_load_dwordx2 v[24:25], v37, s[16:19], 0 offen sc1')
    e('s_add_u32 s31, s31, 1')
    e('s_cmp_gt_u32 s31, 400000')
    e(f's_cbranch_scc1 L_tagd{name}')
    e('s_waitcnt vmcnt(0)')
    e('v_readfirstlane_b32 s92, v24')
    e('v_readfirstlane_b32 s93, v25')
    e('s_nop 3')
    e('s_cmp_eq_u32 s92, 0')
    e(f's_cbranch_scc1 L_tag{name}')
    lab(f'L_tagd{name}')
def setflag(pre, mask=1):
    for x in pre: e(x)
    e('v_mov_b32 v38, s92')
    e('v_mov_b32 v39, s93')
    e(f's_mov_b64 exec, {mask}')
    e('buffer_store_dwordx2 v[38:39], v37, s[20:23], s30 offen sc1')
    e('s_mov_b64 exec, -1')
def poll_issue(off):
    if off == 'A':
        e(f's_mov_b32 s30, {FLAG_OFF+AFL}')
        for k in range(4): e(f'buffer_load_dwordx2 {vp(PT+2*k)}, v{42+k}, s[20:23], s30 offen sc1')
        return
    e(f's_mov_b32 s30, {FLAG_OFF+off}')
    e(f'buffer_load_dwordx4 {vr(PT)}, v36, s[20:23], s30 offen{PF_}')
    e(f'buffer_load_dwordx4 {vr(PT+4)}, v36, s[20:23], s30 offen offset:16{PF_}')
def poll_check():
    e(f'v_cmp_ne_u64 vcc, s[92:93], {vp(PT)}')
    for k in range(1, 4):
        e(f'v_cmp_ne_u64 s[88:89], s[92:93], {vp(PT+2*k)}')
        e('s_or_b64 vcc, vcc, s[88:89]')
def poll(off, name, slp=None):
    e('s_mov_b32 s31, 0')
    lab(f'L_poll{name}')
    poll_issue(off)
    e('s_add_u32 s31, s31, 1')
    e('s_cmp_gt_u32 s31, 400000')
    e(f's_cbranch_scc1 L_pdone{name}')
    e('s_waitcnt vmcnt(0)')
    poll_check()
    e(f's_cbranch_scc0 L_pdone{name}')
    if opt['shr']: e('s_mov_b64 exec, vcc')
    e(f's_sleep {opt["slp"] if slp is None else slp}')
    e(f's_branch L_poll{name}')
    lab(f'L_pdone{name}')
    if opt['shr']: e('s_mov_b64 exec, -1')

e('s_cmp_ge_u32 s2, 252')
e('s_cbranch_scc1 L_end')
if opt['stamps']:
    for i in range(24): e(f's_mov_b32 s{64+i}, 0')
stamp(0)
if opt['trip'] or opt['dead']: e('s_memrealtime s[64:65]')
e('s_load_dwordx4 s[4:7], s[0:1], 0')
e('s_load_dwordx2 s[8:9], s[0:1], 16')
e('s_load_dwordx4 s[56:59], s[0:1], 32')
e('v_lshrrev_b32 v1, 6, v0')
e('v_and_b32 v2, 63, v0')
e('v_readfirstlane_b32 s26, v1')
if opt['cpf']:
    c('pull the kernel code towards L2 first (1 KB per participating wave)')
    e('s_getpc_b64 s[44:45]')
    lab('L_pc')
    if opt['cpf'] == 1:
        e('s_lshl_b32 s42, s2, 10')
        e('s_and_b32 s42, s42, 0x6000')
        e('v_lshlrev_b32 v102, 4, v0')
    elif opt['cpf'] == 2:
        e('s_lshl_b32 s42, s2, 7')
        e('s_and_b32 s42, s42, 0x7c00')
        e('v_lshlrev_b32 v102, 4, v2')
        e('v_lshl_add_u32 v102, v1, 20, v102')
    else:
        e('s_lshl_b32 s42, s2, 8')
        e('s_and_b32 s42, s42, 0x7800')
        e('v_lshlrev_b32 v102, 4, v0')
        e('v_lshrrev_b32 v103, 1, v1')
        e('v_lshl_add_u32 v102, v103, 20, v102')
    e('s_and_b32 s45, s45, 0xffff')
    e('s_mov_b32 s46, L_end-L_pc')
    e('s_mov_b32 s47, 0x00020000')
    e(f'buffer_load_dwordx4 {vr(180)}, v102, s[44:47], s42 offen')
else: e('s_nop 1')
def common():
    if opt['wso']:
        e(f's_add_u32 s58, s58, {opt["wso"] << 20}')
        e('s_addc_u32 s59, s59, 0')
    srd(20, 58, 59, WS_USED)
    srd(16, 56, 57, 256)
    e('s_mov_b32 s33, 0xffff0000')
    e('v_mov_b32 v37, 0')
    for b in range(4): e(f'v_mov_b32 v{PA(b)}, {OOB}')
    for b in range(4): e(f's_mov_b32 s{96+b}, {3*XS}')
    e('s_mov_b32 s31, 0')
    e('s_mov_b32 s92, 0')
    e('s_mov_b32 s93, 0')
    e('s_cmp_ge_u32 s2, 125')
    e(f's_cselect_b32 s50, {2*21*XS - 125*1536}, 0')
    e('s_mul_i32 s51, s2, 1536')
    e('s_add_u32 s50, s50, 768')
    e('s_add_u32 s50, s50, s51')
    e(f's_add_u32 s51, s50, {3*XS}')
    e(f's_mov_b32 s35, {XL + (0 if opt["xpad"] else 64)}')
e('s_lshr_b32 s28, s26, 1')
e('s_cmp_eq_u32 s28, 2')
e('s_cbranch_scc1 Lp_w')
def xaddr(su, va, vd):
    e(f's_lshl_b32 s28, s{su}, 6')
    e('v_add_u32 v3, s28, v2')
    e('v_mul_u32_u24 v4, 683, v3')
    e('v_lshrrev_b32 v4, 16, v4')
    e('v_mul_u32_u24 v5, 96, v4')
    e('v_sub_u32 v3, v3, v5')
    e(f'v_mul_u32_u24 v{va}, 43, v3')
    e(f'v_lshrrev_b32 v{va}, 8, v{va}')
    e(f'v_mul_u32_u24 v{va}, {(2400 if opt["xpad"] else 2304)-96}, v{va}')
    e(f'v_lshl_add_u32 v{va}, v3, 4, v{va}')
    e(f'v_add3_u32 v{va}, v{va}, v5, s35')
    e('v_cmp_le_u32 vcc, 3, v4')
    e(f'v_mul_u32_u24 v{vd}, {XS}, v4')
    e(f'v_mov_b32 v5, {18*XS}')
    e(f'v_lshl_add_u32 v{vd}, v3, 4, v{vd}')
    e('v_cndmask_b32 v5, 0, v5, vcc')
    e(f'v_add_u32 v{vd}, v{vd}, v5')
def xpair(va, vd):
    for s in range(6): e(f'ds_read_b128 {vr(120+4*s)}, v{va} offset:{XOFF(s)}')
    for dw in range(4):
        for s in range(6):
            if dw == 0: e(f's_waitcnt lgkmcnt({5-s})')
            e(f'v_lshlrev_b32 v{148+2*s}, 16, v{120+4*s+dw}')
            e(f'v_and_b32 v{149+2*s}, s33, v{120+4*s+dw}')
        D = lambda s: 148+2*s
        pkfma(162, 46, D(2), D(4))
        pkfma(164, 46, D(3), D(5))
        pkfma(162, 44, D(0), 162)
        pkfma(164, 44, D(1), 164)
        pkfma(166, 48, 162, 164)
        pkfma(168, 48, 162, 164, nega=True)
        e(f'v_cvt_pk_bf16_f32 v{172+dw}, v166, v167')
        e(f'v_cvt_pk_bf16_f32 v{176+dw}, v168, v169')
    e(f'buffer_store_dwordx4 v[172:175], v{vd}, s[20:23], s50 offen sc1')
    e(f'buffer_store_dwordx4 v[176:179], v{vd}, s[20:23], s51 offen sc1')
def xrest(va, b):
    for s in range(7): e(f'ds_read_b128 {vr(120+4*s)}, v{va} offset:{XOFF(s)}')
    for dw in range(4):
        for s in range(7):
            if dw == 0: e(f's_waitcnt lgkmcnt({6-s})')
            e(f'v_lshlrev_b32 v{148+2*s}, 16, v{120+4*s+dw}')
            e(f'v_and_b32 v{149+2*s}, s33, v{120+4*s+dw}')
        D = lambda s: 148+2*s
        for t in range(2):
            q0, q1, aa = 36+6*t, 38+6*t, 40+6*t
            pkfma(162, q1, D(2), D(4))
            pkfma(164, q1, D(3), D(5))
            pkfma(162, q0, D(0), 162)
            pkfma(164, q0, D(1), 164)
            pkfma(166, aa, 162, 164)
            pkfma(168, aa, 162, 164, nega=True)
            e(f'v_cvt_pk_bf16_f32 v{PK(b,2*t)+dw}, v166, v167')
            e(f'v_cvt_pk_bf16_f32 v{PK(b,2*t+1)+dw}, v168, v169')
        pkfma(162, 54, D(4), D(6))
        pkfma(162, 52, D(2), 162)
        pkfma(162, 48, D(0), 162)
        e(f'v_cvt_pk_bf16_f32 v{PK(b,4)+dw}, v162, v163')
for t in range(3):
    a = PTS[2*t]; q0 = BT[2*t][1]; q1 = BT[2*t][3]
    assert abs(BT[2*t][0] - a*q0) < 1e-12 and abs(BT[2*t][2] - a*q1) < 1e-12 and abs(BT[2*t][4]-a) < 1e-12
e('s_sub_u32 s27, s26, 2')
e('s_cmp_lt_u32 s26, 4')
e('s_cselect_b32 s27, s26, s27')
e('s_cmp_ge_u32 s2, 250')
e('s_cbranch_scc1 Lp_zero')
e('s_cmp_ge_u32 s2, 125')
e('s_cselect_b32 s24, 4608000, 0')
e('s_mul_i32 s28, s2, 36864')
e('s_sub_u32 s28, s28, s24')
if opt['xpad']:
    e('s_sub_u32 s28, s28, 2304')
    e('s_mul_i32 s29, s27, 768')
    e('s_add_u32 s28, s28, s29')
    e('s_cmp_ge_u32 s27, 3')
    e('s_cselect_b32 s30, 96, 0')
    e('s_add_u32 s29, s29, s30')
    e('v_lshlrev_b32 v6, 4, v2')
    e('v_add_u32 v6, s28, v6')
    e(f's_mov_b32 s14, {0 if opt["skx"] else 4608000}')
    e('s_mov_b32 s15, 0x00020000')
    e(f's_add_u32 m0, s29, {XL}')
    e('s_mov_b32 exec_hi, 0xffff')
    e('s_waitcnt lgkmcnt(0)')
    e('s_add_u32 s12, s4, s24'); e('s_addc_u32 s13, s5, 0')
    e('s_and_b32 s13, s13, 0xffff')
    for i in range(9):
        if i == 8:
            e('s_cmp_ge_u32 s27, 3')
            e('s_cbranch_scc1 Lp_xl0')
        e(f'buffer_load_dwordx4 v6, s[12:15], 0 offen{LDF} lds')
        if i < 8:
            e(f's_add_u32 m0, s29, {XL + (i+1)*4800}')
            e('v_add_u32 v6, 4608, v6')
    lab('Lp_xl0')
    e('s_mov_b32 exec_hi, -1')
else:
    e('s_sub_u32 s28, s28, 1792')
    e('s_lshl_b32 s29, s27, 10')
    e('s_add_u32 s28, s28, s29')
    e('v_lshlrev_b32 v6, 4, v2')
    e('v_add_u32 v6, s28, v6')
    e(f's_mov_b32 s14, {0 if opt["skx"] else 4608000}')
    e('s_mov_b32 s15, 0x00020000')
    e(f's_add_u32 m0, s29, {XL}')
    e('s_waitcnt lgkmcnt(0)')
    e('s_add_u32 s12, s4, s24'); e('s_addc_u32 s13, s5, 0')
    e('s_and_b32 s13, s13, 0xffff')
    NX, SX = (10, 4096) if opt['x4'] else (7, 6144)
    if opt['x4']:
        e('s_cmp_ge_u32 s26, 4')
        e('s_cbranch_scc1 Lp_xl')
    for i in range(NX):
        if i == NX-1:
            e('s_cmp_ge_u32 s27, 2')
            e('s_cbranch_scc1 Lp_xl')
        e(f'buffer_load_dwordx4 v6, s[12:15], 0 offen{LDF} lds')
        if i < NX-1:
            e(f's_add_u32 m0, s29, {XL + (i+1)*SX}')
            e(f'v_add_u32 v6, {SX}, v6')
lab('Lp_xl')
common()
if opt['warm'] < 2:
    e('s_add_u32 s28, s2, s26')
    e('s_cmp_lg_u32 s28, 0')
    e('s_cbranch_scc1 Lp_x0')
    c('WG 0 wave 0 publishes the launch tag in d_debug')
    e('s_memrealtime s[92:93]')
    e('s_waitcnt lgkmcnt(0)')
    e('s_or_b32 s92, s92, 1')
    e('v_mov_b32 v38, s92')
    e('v_mov_b32 v39, s93')
    e('s_mov_b64 exec, 1')
    e('buffer_store_dwordx2 v[38:39], v37, s[16:19], 0 offen sc1')
    e('s_mov_b64 exec, -1')
lab('Lp_x0')
c('pass-1 units: wave0:8 wave1:4,5 wave2:0,1 wave3:2,3 wave6:6 wave7:7')
e('s_lshl_b32 s28, s26, 2')
e('s_lshr_b32 s30, 0x76002048, s28')
e('s_and_b32 s30, s30, 15')
xaddr(30, 6, 7)
e('s_bitcmp1_b32 0x0e, s26')
e('s_addc_u32 s30, s30, 0')
xaddr(30, 14, 15)
sconst2(44, BT[0][1]); sconst2(46, BT[0][3]); sconst2(48, PTS[0])
if opt['tlb']:
    c('touch the workspace pages this wave is going to store to (address translation warm-up)')
    e('s_mov_b32 exec_lo, 1')
    e('s_mov_b32 exec_hi, 0x80000000')
    e('buffer_load_dword v108, v7, s[20:23], s50 offen sc1')
    e('buffer_load_dword v109, v7, s[20:23], s51 offen sc1')
    e('buffer_load_dword v110, v15, s[20:23], s50 offen sc1')
    e('buffer_load_dword v111, v15, s[20:23], s51 offen sc1')
    e('s_mov_b64 exec, -1')
stamp(7)
e(f's_waitcnt vmcnt({4 if opt["tlb"] else 0})')
stamp(8)
e('s_barrier')
stamp(1)
e('s_cmp_lg_u32 s26, 0')
e('s_cbranch_scc1 Lp_x1')
e('buffer_load_dwordx2 v[24:25], v37, s[16:19], 0 offen sc1')
lab('Lp_x1')
xpair(6, 7)
e('s_bitcmp1_b32 0x0e, s26')
e('s_cbranch_scc0 Lp_x2')
xpair(14, 15)
lab('Lp_x2')
if opt['es']: stamp(9)
e('s_cmp_ge_u32 s26, 4')
e('s_cbranch_scc1 Lp_h67')
lab('Lp_s2')
if opt['fl']:
    e('v_lshlrev_b32 v9, 4, v2')
    e('s_lshl_b32 s30, s2, 7')
    e(f's_add_u32 s30, s30, {FLAG_OFF+AFL}')
else:
    e(f'v_mul_u32_u24 v9, {RSTR}, v2')
    e('s_lshl_b32 s30, s2, 3')
    e(f's_add_u32 s30, s30, {FLAG_OFF}')
e('s_cmp_lg_u32 s26, 0')
e('s_cbranch_scc1 Lp_s2b')
e('s_cmp_ge_u32 s2, 250')
e('s_cbranch_scc1 L_taga')
e('s_waitcnt vmcnt(2)')
e('v_readfirstlane_b32 s92, v24')
e('v_readfirstlane_b32 s93, v25')
e('s_nop 3')
e('s_cmp_lg_u32 s92, 0')
e('s_cbranch_scc1 L_tagda')
gettag('a')
e('v_mov_b32 v38, s92')
e('v_mov_b32 v39, s93')
e('v_mov_b32 v40, s92')
e('v_mov_b32 v41, s93')
lab('Lp_s2b')
e('s_waitcnt vmcnt(0)')
if opt['es']: stamp(10)
e('s_barrier')
e('s_cmp_lg_u32 s26, 0')
e('s_cbranch_scc1 L_pdone')
if opt['fl']:
    e('s_mov_b64 exec, 0xff')
    e('buffer_store_dwordx4 v[38:41], v9, s[20:23], s30 offen sc1')
else:
    e(f's_mov_b64 exec, {(1<<REP)-1}')
    e('buffer_store_dwordx2 v[38:39], v9, s[20:23], s30 offen sc1')
e('s_mov_b64 exec, -1')
stamp(2)
e('s_branch L_pdone')
def xcoef2():
    for t in (1, 2):
        sconst2(36+6*(t-1), BT[2*t][1]); sconst2(38+6*(t-1), BT[2*t][3]); sconst2(40+6*(t-1), PTS[2*t])
    sconst2(48, BT[6][0]); sconst2(52, BT[6][2]); sconst2(54, BT[6][4])
    e(f's_add_u32 s34, s50, {6*XS}')
lab('Lp_h67')
c('waves 6,7 pass 2: own unit (block 1), then units 2(w-6), 2(w-6)+1 (blocks 2,3)')
xcoef2()
e(f'v_add_u32 v{PA(1)}, s34, v7')
if opt['early']: xrest(6, 1)
if opt['es']: stamp(3)
e('s_waitcnt vmcnt(0)')
if opt['es']: stamp(10)
e('s_barrier')
if not opt['early']: xrest(6, 1)
e('s_sub_u32 s30, s26, 6')
e('s_lshl_b32 s30, s30, 1')
lab('Lp_x23')
xaddr(30, 6, 7)
e(f'v_add_u32 v{PA(2)}, s34, v7')
xrest(6, 2)
e('s_add_u32 s30, s30, 1')
lab('Lp_x3')
xaddr(30, 6, 7)
e(f'v_add_u32 v{PA(3)}, s34, v7')
xrest(6, 3)
e('s_branch L_pdone')
lab('Lp_zero')
c('WGs 250,251: zero the 8 leading rows of the 42 arrays of batch b')
e('s_waitcnt lgkmcnt(0)')
common()
e('s_sub_u32 s3, s2, 250')
e(f's_mul_i32 s30, s3, {2*21*XS}')
e('s_lshl_b32 s28, s27, 6')
e('v_add_u32 v3, s28, v2')
for k in range(4): e(f'v_mov_b32 v{16+k}, 0')
for i in range(6):
    e('v_mul_u32_u24 v4, 1366, v3')
    e('v_lshrrev_b32 v4, 16, v4')
    e('v_mul_u32_u24 v5, 48, v4')
    e('v_sub_u32 v5, v3, v5')
    e(f'v_mul_u32_u24 v4, {XS}, v4')
    e('v_lshl_add_u32 v4, v5, 4, v4')
    e('v_cmp_gt_u32 vcc, 2016, v3')
    e(f'v_mov_b32 v5, {OOB}')
    e('v_add_u32 v3, 384, v3')
    e('v_cndmask_b32 v4, v5, v4, vcc')
    e('buffer_store_dwordx4 v[16:19], v4, s[20:23], s30 offen sc1')
if opt['warm']:
    c('pre-write the flag lines used later (full lines) so that the 8-byte flag stores hit in the memory-side cache')
    e('s_mul_i32 s30, s3, 6')
    e('s_add_u32 s30, s30, s27')
    e('s_lshl_b32 s30, s30, 11')
    e(f's_add_u32 s30, s30, {FLAG_OFF+FA}')
    e('v_lshlrev_b32 v4, 4, v2')
    e('buffer_store_dwordx4 v[16:19], v4, s[20:23], s30 offen sc1')
    e('buffer_store_dwordx4 v[16:19], v4, s[20:23], s30 offen offset:1024 sc1')
    assert 24*1024 <= GOF - FA and 24*1024 >= ZFL + 3584 - FA
    e('v_lshrrev_b32 v4, 3, v2')
    e('v_mul_u32_u24 v4, 4352, v4')
    e('v_and_b32 v5, 7, v2')
    e('v_lshl_add_u32 v4, v5, 4, v4')
    e(f's_mov_b32 s30, {FLAG_OFF+GOF}')
    e('buffer_store_dwordx4 v[16:19], v4, s[20:23], s30 offen sc1')
e('s_barrier')
e('s_branch Lp_s2')
lab('Lp_w')
e('s_and_b32 s27, s26, 1')
c('w unit: XCD x = id&7 owns a contiguous range of units; local i = id>>3 < 9 takes two')
e('s_and_b32 s28, s2, 7')
e('s_lshr_b32 s29, s2, 3')
e('s_mul_i32 s3, s28, 40')
e('s_min_u32 s30, s28, 4')
e('s_add_u32 s3, s3, s30')
e('s_add_u32 s3, s3, s29')
e('s_min_u32 s30, s29, 9')
e('s_add_u32 s3, s3, s30')
e('s_add_u32 s3, s3, s27')
e('s_mul_i32 s30, s27, s29')
e('s_cmp_ge_u32 s30, 9')
e('s_cbranch_scc1 Lp_wo')
def posdec(P, ko, pos, kk, o, tmp):
    e(f'v_mul_u32_u24 v{ko}, 58255, v{P}')
    e(f'v_lshrrev_b32 v{ko}, 22, v{ko}')
    e(f'v_mul_u32_u24 v{tmp}, 72, v{ko}')
    e(f'v_sub_u32 v{pos}, v{P}, v{tmp}')
    e(f'v_mul_u32_u24 v{kk}, 3641, v{ko}')
    e(f'v_lshrrev_b32 v{kk}, 16, v{kk}')
    e(f'v_mul_u32_u24 v{tmp}, 18, v{kk}')
    e(f'v_sub_u32 v{o}, v{ko}, v{tmp}')
G_ = lambda r, ch: 40+2*(8*r+ch)
e('s_lshl_b32 s28, s3, 5')
e('v_and_b32 v3, 31, v2')
e('v_add_u32 v4, s28, v3')
posdec(4, 5, 6, 7, 8, 9)
e(f'v_mul_u32_u24 v7, {4*82944}, v7')
e('v_mul_u32_u24 v8, 4608, v8')
e('v_lshrrev_b32 v9, 5, v2')
e('v_mul_u32_u24 v10, 288, v9')
e('v_add3_u32 v7, v7, v8, v10')
e('v_lshl_add_u32 v6, v6, 2, v7')
e('s_waitcnt lgkmcnt(0)')
srd(12, 6, 7, 0 if opt['skw'] else 31*144*288*2)
if opt['word']:
    for r in range(1, 4): e(f's_mov_b32 s{36+r}, {82944*r}')
    for ch in range(8):
        for r in range(4):
            e(f'buffer_load_dword v{G_(r,ch)+1}, v6, s[12:15], {"s%d" % (36+r) if r else 0} offen offset:{ch*576}{LDF}')
else:
  for r in range(4):
    for ch in range(8):
        e(f'buffer_load_dword v{G_(r,ch)+1}, v6, s[12:15], 0 offen offset:{ch*576}{LDF}')
    if r < 3: e('v_add_u32 v6, 82944, v6')
stamp(7)
common()
e('s_lshl_b32 s29, s27, 14')
e(f's_add_u32 s29, s29, {WL}')
e('v_lshlrev_b32 v10, 6, v3')
e('v_lshl_add_u32 v10, v9, 5, v10')
e('v_add_u32 v10, s29, v10')
e('v_lshlrev_b32 v11, 4, v2')
e('v_add_u32 v11, s29, v11')
for h in range(2):
    e('v_lshrrev_b32 v4, 2, v2')
    e(f'v_add3_u32 v4, v4, s28, {16*h}')
    posdec(4, 5, 6, 7, 8, 9)
    e('v_mul_u32_u24 v4, 43, v8')
    e('v_lshrrev_b32 v4, 8, v4')
    e('v_mul_u32_u24 v5, 6, v4')
    e('v_sub_u32 v5, v8, v5')
    e('v_lshrrev_b32 v8, 1, v7')
    e('v_add_u32 v8, 8, v8')
    e('v_and_b32 v9, 1, v7')
    e('v_lshl_add_u32 v9, v9, 1, v5')
    e('v_subrev_u32 v9, 4, v9')
    e('v_cmp_le_u32 vcc, 4, v5')
    e('v_mul_u32_u24 v4, 24576, v4')
    e('v_lshrrev_b32 v14, 3, v6')
    e('v_cndmask_b32 v8, v7, v8, vcc')
    e('v_cndmask_b32 v9, v5, v9, vcc')
    e(f'v_mul_u32_u24 v14, {21*24576}, v14')
    e('v_bfe_u32 v15, v6, 2, 1')
    e('v_mul_u32_u24 v15, 12288, v15')
    e(f'v_add3_u32 v{12+h}, v4, v14, v15')
    e(f'v_lshl_add_u32 v{12+h}, v8, 10, v{12+h}')
    e(f'v_lshl_add_u32 v{12+h}, v9, 8, v{12+h}')
    e('v_and_b32 v4, 3, v6')
    e(f'v_lshl_add_u32 v{12+h}, v4, 6, v{12+h}')
    e('v_and_b32 v4, 3, v2')
    e(f'v_lshl_add_u32 v{12+h}, v4, 4, v{12+h}')
def wcoef(t):
    for r in range(4):
        assert abs(GS[2*t+1][r] - (1 if r % 2 == 0 else -1)*GS[2*t][r]) < 1e-12
        e(f'v_mul_f32 v{160+2*r}, {fh(GS[2*t][r])}, v14')
        e(f'v_mov_b32 v{161+2*r}, v{160+2*r}')
e(f's_mov_b32 s34, {WT_OFF}')
e('v_cmp_le_u32 vcc, 32, v2')
e(f'v_mov_b32 v14, {fh(-2*LOG2E)}')
e(f'v_mov_b32 v15, {fh(-LOG2E)}')
e('v_cndmask_b32 v14, v14, v15, vcc')
e('v_mov_b32 v15, v14')
wcoef(0)
if opt['tlb']:
    e('s_mov_b32 exec_lo, 1')
    e('s_mov_b32 exec_hi, 0x80000001')
    e('buffer_load_dword v168, v12, s[20:23], s34 offen sc1')
    e('buffer_load_dword v169, v13, s[20:23], s34 offen sc1')
    e('s_mov_b64 exec, -1')
stamp(8)
e('s_barrier')
stamp(1)
e(f's_waitcnt vmcnt({2 if opt["tlb"] else 0})')
stamp(2)
for k in range(32):
    e(f'v_lshlrev_b32 v{40+2*k}, 16, v{41+2*k}')
    e(f'v_and_b32 v{41+2*k}, s33, v{41+2*k}')
e('s_mov_b32 s53, 0')
lab('Lp_wloop')
for dw in range(4):
    for c2 in range(2):
        ch = 2*dw+c2
        E, O = 104+4*c2, 106+4*c2
        e(f'v_pk_mul_f32 {vp(E)}, {vp(160)}, {vp(G_(0,ch))}')
        e(f'v_pk_mul_f32 {vp(O)}, {vp(162)}, {vp(G_(1,ch))}')
        e(f'v_pk_fma_f32 {vp(E)}, {vp(164)}, {vp(G_(2,ch))}, {vp(E)}')
        e(f'v_pk_fma_f32 {vp(O)}, {vp(166)}, {vp(G_(3,ch))}, {vp(O)}')
        pkadd(112+4*c2, O, E)
        pkadd(114+4*c2, E, O, negb=True)
    for sgn in range(2):
        for n in range(2):
            e(f'v_cvt_pk_bf16_f32 v{120+8*sgn+4*n+dw}, v{112+2*sgn+n}, v{116+2*sgn+n}')
for sgn in range(2):
    for n in range(2):
        e(f'ds_write_b128 v10, {vr(120+8*sgn+4*n)} offset:{sgn*2048 + n*16}')
e('s_add_u32 s53, s53, 1')
e('s_waitcnt lgkmcnt(0)')
e('v_add_u32 v10, 4096, v10')
e('s_cmp_eq_u32 s53, 3')
e('s_cbranch_scc1 Lp_w3')
e('s_cmp_eq_u32 s53, 1')
e('s_cbranch_scc1 Lp_w1')
wcoef(2)
if opt['early']:
    if opt['es']: stamp(3)
    e('s_waitcnt vmcnt(0)')
    if opt['es']: stamp(10)
    e('s_barrier')
e('s_branch Lp_wloop')
lab('Lp_w1')
for k in range(4): e(f'ds_read_b128 {vr(136+4*k)}, v11 offset:{k*1024}')
for k in range(4):
    e(f's_waitcnt lgkmcnt({3-k})')
    e(f'buffer_store_dwordx4 {vr(136+4*k)}, v{12+k%2}, s[20:23], s34 offen sc1')
    if k % 2 == 1: e(f's_add_u32 s34, s34, {3*24576}')
if opt['es']: stamp(9)
wcoef(1)
if not opt['early']:
    e('s_waitcnt vmcnt(0)')
    e('s_barrier')
e('s_branch Lp_wloop')
lab('Lp_w3')
for ch in range(8): e(f'v_pk_mul_f32 {vp(G_(3,ch))}, {vp(G_(3,ch))}, v[14:15]')
for n in range(2):
    for dw in range(4):
        e(f'v_cvt_pk_bf16_f32 v{120+4*n+dw}, v{G_(3,2*dw)+n}, v{G_(3,2*dw+1)+n}')
    e(f'ds_write_b128 v10, {vr(120+4*n)} offset:{n*16}')
e('s_waitcnt lgkmcnt(0)')
for k in range(10):
    e(f'ds_read_b128 {vr(PK(k % 2, k//2))}, v11 offset:{4096 + k*1024}')
e(f'v_add_u32 v{PA(0)}, s34, v12')
e(f'v_add_u32 v{PA(1)}, s34, v13')
e(f's_mov_b32 s96, {3*24576}')
e(f's_mov_b32 s97, {3*24576}')
e('s_waitcnt lgkmcnt(0)')
lab('Lp_wx')
c('then x pass 2: wave 4: unit 8 (block 3) ; wave 5: units 4,5 (blocks 2,3)')
e('s_cmp_ge_u32 s2, 250')
e('s_cbranch_scc1 L_pdone')
xcoef2()
e('s_mov_b32 s30, 8')
e('s_cmp_eq_u32 s26, 4')
e('s_cbranch_scc1 Lp_x3')
e('s_mov_b32 s30, 4')
e('s_branch Lp_x23')
lab('Lp_wo')
e('s_waitcnt lgkmcnt(0)')
common()
e('s_sub_u32 s3, s2, 72')
e('s_cmp_ge_u32 s3, 45')
e('s_cbranch_scc1 Lp_wo2')
srd(12, 8, 9, 144*144*2)
e('s_mul_i32 s28, s3, 13108')
e('s_lshr_b32 s28, s28, 16')
e('s_mul_i32 s29, s28, 5')
e('s_sub_u32 s29, s3, s29')
e('v_and_b32 v7, 15, v2')
e('v_lshrrev_b32 v8, 4, v2')
e('s_cmp_eq_u32 s28, 8')
e('s_cselect_b32 s30, 1, 4')
e('s_cselect_b32 s34, 256, 0')
e('s_cselect_b32 s28, 0, s28')
e('s_lshl_b32 s28, s28, 1')
e('s_add_u32 s34, s34, s28')
e(f's_mul_i32 s29, s29, {32*288}')
e('s_add_u32 s34, s34, s29')
e('v_lshlrev_b32 v9, s30, v7')
e('v_mul_u32_u24 v14, 576, v8')
e('v_add3_u32 v14, v14, v9, s34')
for d in range(4):
    e(f'buffer_load_ushort v{40+2*d}, v14, s[12:15], 0 offen')
    e(f'buffer_load_ushort v{41+2*d}, v14, s[12:15], 0 offen offset:288')
    if d < 3: e('v_add_u32 v14, 2304, v14')
e('s_lshl_b32 s3, s3, 10')
e(f's_add_u32 s3, s3, {WO_OFF}')
e('v_lshlrev_b32 v1, 4, v2')
e('s_barrier')
e('s_waitcnt vmcnt(0)')
for d in range(4):
    e(f'v_lshl_or_b32 v{48+d}, v{41+2*d}, 16, v{40+2*d}')
e('buffer_store_dwordx4 v[48:51], v1, s[20:23], s3 offen sc1')
e('s_waitcnt vmcnt(0)')
e('s_barrier')
e('s_branch Lp_wx')
lab('Lp_wo2')
if opt['warm'] == 2:
    e('s_cmp_lg_u32 s2, 200')
    e('s_cbranch_scc1 Lp_wo3')
    for k in range(4): e(f'v_mov_b32 v{40+k}, 0')
    e('v_lshlrev_b32 v4, 4, v2')
    e(f's_mov_b32 s30, {FLAG_OFF}')
    e('buffer_store_dwordx4 v[40:43], v4, s[20:23], s30 offen sc1')
    e('buffer_store_dwordx4 v[40:43], v4, s[20:23], s30 offen offset:1024 sc1')
    e('s_memrealtime s[92:93]')
    e('s_waitcnt lgkmcnt(0)')
    e('s_or_b32 s92, s92, 1')
    e('v_mov_b32 v38, s92')
    e('v_mov_b32 v39, s93')
    e('s_waitcnt vmcnt(0)')
    e('s_mov_b64 exec, 1')
    e('buffer_store_dwordx2 v[38:39], v37, s[16:19], 0 offen sc1')
    e('s_mov_b64 exec, -1')
    lab('Lp_wo3')
e('s_barrier')
e('s_barrier')
e('s_branch Lp_wx')

def M(t): return 12 + 4*t
def MD(t): return 48 + 4*t
def FR(k): return vr(84 + 4*k)
lab('L_pdone')
e('v_lshlrev_b32 v101, 4, v2')
e('v_min_u32 v36, 62, v2')
e('v_lshlrev_b32 v36, 5, v36')
e(f's_and_b32 s30, s2, {REP-1}')
e(f's_mul_i32 s30, s30, {RSTR}')
e('v_add_u32 v36, s30, v36')
e(f'v_mul_u32_u24 v12, {RSTR}, v2')
c('unit = base[xcd] + (id>>3)')
e('s_and_b32 s25, s2, 7')
e('s_lshr_b32 s24, s2, 3')
e('s_mul_i32 s27, s25, 31')
e('s_min_u32 s28, s25, 4')
e('s_add_u32 s27, s27, s28')
e('s_add_u32 s27, s27, s24')
e('s_mul_i32 s28, s27, 7282')
e('s_lshr_b32 s28, s28, 16')
e('s_mul_i32 s29, s28, 9')
e('s_sub_u32 s29, s27, s29')
e('s_and_b32 s24, s26, 3')
e('s_lshr_b32 s32, s24, 1')
e('s_and_b32 s33, s24, 1')
e('s_mul_i32 s34, s24, 7168')
e('s_mul_i32 s35, s24, 6144')
c('z soffset s62')
e('s_lshl_b32 s62, s28, 1')
e('s_add_u32 s62, s62, s32')
e(f's_mul_i32 s62, s62, {9*18*1024}')
e('s_lshl_b32 s63, s29, 1')
e('s_add_u32 s63, s63, s33')
e(f's_lshl_b32 s63, s63, {8 if opt["t2"] else 10}')
e('s_add_u32 s62, s62, s63')
e(f's_add_u32 s62, s62, {Z_OFF}')
if opt['gmap']:
    c('g = (b*7+gg)*2 + p')
    e('s_lshr_b32 s38, s28, 1')
    e('s_and_b32 s30, s28, 1')
    e('s_cmp_ge_u32 s38, 7')
    e('s_cselect_b32 s36, 7, 0')
    e('s_cselect_b32 s37, 2, 0')
    e('s_sub_u32 s38, s38, s36')
    e('s_add_u32 s30, s30, s37')
else:
    e('s_mul_i32 s30, s28, 9363')
    e('s_lshr_b32 s30, s30, 16')
    e('s_mul_i32 s38, s30, 7')
    e('s_sub_u32 s38, s28, s38')
e(f's_mul_i32 s36, s30, {21*XS}')
e('s_mul_i32 s37, s38, 27648')
e('s_add_u32 s36, s36, s37')
e('s_add_u32 s36, s36, s34')
e(f's_mul_i32 s37, s29, {21*24576}')
e('s_add_u32 s37, s37, s35')
e(f's_add_u32 s37, s37, {WT_OFF}')
c('last row group of a stream: do not fetch the never-written padding rows (KB 26 lanes >= 16, KB 27): v6, v7 = voffsets for those two chunks')
e('s_cmp_eq_u32 s38, 6')
e('s_cselect_b32 s60, 16, 64')
e('s_cselect_b32 s61, 0, 64')
e(f'v_mov_b32 v8, {OOB}')
e('v_cmp_gt_u32 vcc, s60, v2')
e('v_cmp_gt_u32 s[88:89], s61, v2')
e('s_nop 0')
e('v_cndmask_b32 v6, v8, v101, vcc')
e('v_cndmask_b32 v7, v8, v101, s[88:89]')
e('s_cmp_ge_u32 s26, 4')
e('s_cbranch_scc1 L_helper')
e('s_cmp_lg_u32 s26, 0')
e('s_cbranch_scc1 L_c13')
c('wave 0: wait for all A flags, then load the whole phase 0 tile')
if opt['agg']:
    e('s_cmp_lg_u32 s2, 0')
    e('s_cbranch_scc1 L_gow')
if opt['dly']: e(f's_sleep {opt["dly"]}')
if opt['fl']:
    for k in range(4):
        e(f'v_add_u32 v{42+k}, {64*k}, v2')
        e(f'v_min_u32 v{42+k}, 251, v{42+k}')
        e(f'v_lshlrev_b32 v{42+k}, 7, v{42+k}')
    e('v_lshrrev_b32 v46, 3, v2')
    e('v_mul_u32_u24 v46, 4352, v46')
    e('v_and_b32 v47, 7, v2')
    e('v_lshl_add_u32 v46, v47, 4, v46')
poll('A' if opt['fl'] else 0, 'A')
if opt['agg']:
    c('WG 0 saw all A flags: release everybody through 8 go words')
    e(f's_mov_b32 s30, {FLAG_OFF+GOF}')
    if opt['fl']:
        e('buffer_store_dwordx4 v[38:41], v46, s[20:23], s30 offen sc1')
    else:
        e('v_mul_u32_u24 v9, 4352, v2')
        e('s_mov_b64 exec, 0xff')
        e('buffer_store_dwordx2 v[38:39], v9, s[20:23], s30 offen sc1')
        e('s_mov_b64 exec, -1')
    e('s_branch L_god')
    lab('L_gow')
    e('s_mul_i32 s30, s25, 4352')
    e(f's_add_u32 s30, s30, {FLAG_OFF+GOF}')
    e('s_mov_b32 s31, 0')
    e('s_mov_b64 exec, 1')
    lab('L_gol')
    e('buffer_load_dwordx2 v[24:25], v37, s[20:23], s30 offen sc1')
    e('s_add_u32 s31, s31, 1')
    e('s_cmp_gt_u32 s31, 800000')
    e('s_cbranch_scc1 L_gox')
    e('s_waitcnt vmcnt(0)')
    e('v_cmp_ne_u64 vcc, s[92:93], v[24:25]')
    e('s_cbranch_vccz L_gox')
    e(f's_sleep {opt["gslp"]}')
    e('s_branch L_gol')
    lab('L_gox')
    e('s_mov_b64 exec, -1')
    lab('L_god')
stamp(3)
for k in range(52):
    if k % 4 == 0:
        e(f's_mov_b32 m0, {k*1024}')
        e(f's_add_u32 s30, s36, {k*1024}' if k < 28 else f's_add_u32 s30, s37, {(k-28)*1024}')
    e(f'buffer_load_dwordx4 v{ {26: 6, 27: 7}.get(k, 101) }, s[20:23], s30 offen offset:{(k%4)*1024} sc1 lds')
lab('L_c13')
e('s_barrier')
if opt['prio']: e(f's_setprio {opt["prio"]}')
e('v_and_b32 v124, 15, v2')
e('v_lshrrev_b32 v125, 4, v2')
e('v_mul_u32_u24 v126, 864, v124')
e('s_mul_i32 s38, s32, 13824')
e('v_add_u32 v126, s38, v126')
e('v_lshl_add_u32 v2, v125, 4, v126')
e('v_lshrrev_b32 v127, 1, v125')
e('v_mul_u32_u24 v127, 96, v127')
e('v_sub_u32 v127, v126, v127')
e('v_and_b32 v128, 1, v125')
e('v_lshl_add_u32 v127, v128, 4, v127')
e('v_add_u32 v5, 160, v127')
e('s_mul_i32 s38, s33, 12288')
e('s_add_u32 s38, s38, 28672')
e('v_add_u32 v8, s38, v101')
for s in (1, 2):
    e(f'v_add_u32 v{2+s}, {s*SLOT}, v2')
    e(f'v_add_u32 v{5+s}, {s*SLOT}, v5')
    e(f'v_add_u32 v{8+s}, {s*SLOT}, v8')
if opt['sn32']: e('v_lshrrev_b32 v101, 2, v101')
e(f's_add_u32 s38, s34, {2*SLOT}')
e('v_add_u32 v1, s38, v101')
e(f's_add_u32 s38, s35, {2*SLOT+28672}')
e('v_add_u32 v11, s38, v101')
for r in range(48, 84): e(f'v_mov_b32 v{r}, 0')

frags = []; mf = []
if opt['mord']:
    for t in range(9):
        for kk in range(7, -1, -1): mf.append((t, ('W', kk), ('X', t-kk)))
    for t in (range(8, -1, -1) if opt['tdesc'] else range(9)):
        for pp in (range(4) if opt['tdesc'] else range(3, -1, -1)): mf.append((t, ('WT', pp), ('XT', t-2*pp)))
else:
  for tp in range(-7, 9):
    for kk in range(min(7, 8-tp), max(0, -tp)-1, -1):
        mf.append((tp+kk, ('W', kk), ('X', tp)))
  for tp in range(-6, 9):
    for pp in range(3, -1, -1):
        if 0 <= tp+2*pp <= 8: mf.append((tp+2*pp, ('WT', pp), ('XT', tp)))
assert len(mf) == 108
fu = {}
for s, (t, wk, xk) in enumerate(mf):
    for k in (xk, wk):
        if k not in fu: fu[k] = s; frags.append(k)
assert len(frags) == 43
fidx = {k: i for i, k in enumerate(frags)}
LA = opt['LA']; BAR = 108 - LA; ELAST = BAR - 6
iss = [(-LA + (k*(ELAST+LA))//42) for k in range(43)]
if opt['mord']:
    iss = [-LA + (k*(LA-2))//16 for k in range(17)] + [1 + (k*(ELAST-1))//25 for k in range(26)]
    lu = {}
    for s, (t, wk, xk) in enumerate(mf): lu[wk] = s; lu[xk] = s
    for k in range(43): assert iss[k] + 108 > lu[frags[k]] + 1, (k, iss[k], lu[frags[k]])
for k in range(43): assert iss[k] <= fu[frags[k]] - 8, (k, iss[k], fu[frags[k]])
def rd(k, slot):
    kind, i = frags[k]
    if kind == 'X': return f'ds_read_b128 {FR(k)}, v{2+slot} offset:{(i+8)*96}'
    if kind == 'XT': return f'ds_read_b128 {FR(k)}, v{5+slot} offset:{(i+7)*96}'
    if kind == 'W': return f'ds_read_b128 {FR(k)}, v{8+slot} offset:{i*1024}'
    return f'ds_read_b128 {FR(k)}, v{8+slot} offset:{(8+i)*1024}'
npre = sum(1 for x in iss if x < 0)
first_touch = {}; last_touch = {}
for s, (t, wk, xk) in enumerate(mf):
    first_touch.setdefault(t, s); last_touch[t] = s
def snapw(t):
    if opt['sn32']:
        t, r = divmod(t, 4)
        return f'ds_write_b32 v1, v{MD(t)+r} offset:{t*1024+r*256}' if t < 7 else f'ds_write_b32 v11, v{MD(t)+r} offset:{(t-7)*1024+r*256}'
    return f'ds_write_b128 v1, {vr(MD(t))} offset:{t*1024}' if t < 7 else f'ds_write_b128 v11, {vr(MD(t))} offset:{(t-7)*1024}'
QS = opt['QS']
ext = [[] for _ in range(324)]
for ph in range(3):
    for k in range(43):
        ext[(ph*108 + iss[k]) % 324].append(('rd', k, ph))
used = [len(x) for x in ext]
lastw = 0
if opt['sn32']:
    for n in range(36):
        pos = max(216 + last_touch[n//4] + 8, lastw + 1)
        lastw = pos
        assert pos >= 216 + BAR and pos < 324 + QS - 2, pos
        ext[pos % 324].append(('wr', n, 0))
else:
  for t in sorted(range(9), key=lambda t: last_touch[t]):
    pos = max(216 + last_touch[t] + 8, lastw + opt['wsp'], 216 + BAR + 1)
    while used[pos % 324]: pos += 1
    lastw = pos
    used[pos % 324] += 1
    assert pos >= 216 + BAR and pos < 324 + QS - 2
    ext[pos % 324].append(('wr', t, 0))
e('s_waitcnt vmcnt(0)')
stamp(4)
e('s_barrier')
stamp(5)
if opt['dbgst']: e('s_memtime s[90:91]')
for k in range(npre): e(rd(k, 0))
e('s_mov_b32 s39, 7')
e('s_waitcnt lgkmcnt(0)')
out.append('.p2align 6')
for _ in range(opt['pad']): e('s_nop 0')
lab('L_loop')
seq = 0; rseq = {}; covered = -1; wseq = -1; sslot = []
for it in range(2):
    emit = e if it == 1 else (lambda s: None)
    for ph in range(3):
        if it == 1: c(f'======== phase {ph}')
        for s, (t, wk, xk) in enumerate(mf):
            if s == BAR:
                emit('s_waitcnt lgkmcnt(0)')
                emit('s_barrier')
                covered = seq - 1
            if ph == 0 and s == QS:
                if wseq > covered:
                    emit(f's_waitcnt lgkmcnt({min(15, seq-1-wseq)})')
                    covered = max(covered, seq - 1 - min(15, seq-1-wseq))
                emit('s_barrier')
            need = max(rseq.get((ph, fidx[wk]), -1), rseq.get((ph, fidx[xk]), -1))
            if need > covered:
                now = it*324 + ph*108 + s
                recent = sum(1 for x in sslot if x >= now - opt['lat'])
                allow = min(seq - 1 - need, recent, 15)
                emit(f's_waitcnt lgkmcnt({allow})')
                covered = seq - 1 - allow
            cin = vr(MD(t)) if (ph == 0 and first_touch[t] == s) else vr(M(t))
            dst = vr(MD(t)) if (ph == 2 and last_touch[t] == s) else vr(M(t))
            emit(f'v_mfma_f32_16x16x32_bf16 {dst}, {FR(fidx[wk])}, {FR(fidx[xk])}, {cin}')
            for x in ext[ph*108+s]:
                if x[0] == 'rd':
                    emit(rd(x[1], x[2])); rseq[(x[2], x[1])] = seq; seq += 1; sslot.append(it*324 + ph*108 + s)
                else:
                    emit(snapw(x[1])); wseq = seq; seq += 1; sslot.append(it*324 + ph*108 + s)
            if ph == 2 and s == 104: emit('s_sub_u32 s39, s39, 1')
            if ph == 2 and s == 105: emit('s_cmp_lg_u32 s39, 0')
e('s_cbranch_scc1 L_loop')
stamp(6)
if opt['dbgst']: e('s_memtime s[94:95]')
c('---- compute-wave epilogue: gate y3 = MD')
e('s_waitcnt lgkmcnt(0)')
if opt['tr']: e('s_barrier')
def gate_consts():
    e(f's_mov_b32 s46, {fh(-0.6931471805599453)}')
    e(f's_mov_b32 s42, {fh(2*LOG2E*2**-12)}')
    e('s_mov_b32 s43, 0x41f00000')
def gate(a, r, dst, sp):
    L = []
    L.append(f'v_min_f32 v{r}, s43, v{a}')
    L.append(f'v_min_f32 v{r+1}, s43, v{a+1}')
    L.append(f'v_exp_f32 v{a+2}, v{a+2}')
    L.append(f'v_exp_f32 v{a+3}, v{a+3}')
    L.append(f'v_exp_f32 v{r}, v{r}')
    L.append(f'v_exp_f32 v{r+1}, v{r+1}')
    if opt['smallfix']:
        L.append(f'v_cmp_gt_f32 s[{sp}:{sp+1}], s42, abs(v{a})')
        L.append(f'v_cmp_gt_f32 s[{sp+2}:{sp+3}], s42, abs(v{a+1})')
    L.append(f'v_add_f32 v{r+2}, 1.0, v{r}')
    L.append(f'v_add_f32 v{r+3}, 1.0, v{r+1}')
    if opt['smallfix']:
        L.append(f'v_mul_f32 v{a}, s46, v{a}')
        L.append(f'v_mul_f32 v{a+1}, s46, v{a+1}')
    L.append(f'v_fmac_f32 v{r+2}, v{r+2}, v{a+2}')
    L.append(f'v_fmac_f32 v{r+3}, v{r+3}, v{a+3}')
    L.append(f'v_sub_f32 v{r}, 1.0, v{r}')
    L.append(f'v_sub_f32 v{r+1}, 1.0, v{r+1}')
    L.append(f'v_rcp_f32 v{r+2}, v{r+2}')
    L.append(f'v_rcp_f32 v{r+3}, v{r+3}')
    if opt['smallfix']:
        L.append(f'v_cndmask_b32 v{r}, v{r}, v{a}, s[{sp}:{sp+1}]')
        L.append(f'v_cndmask_b32 v{r+1}, v{r+1}, v{a+1}, s[{sp+2}:{sp+3}]')
    L.append(f'v_mul_f32 v{r}, v{r}, v{r+2}')
    L.append(f'v_mul_f32 v{r+1}, v{r+1}, v{r+3}')
    L.append(f'v_cvt_pk_bf16_f32 v{dst}, v{r}, v{r+1}')
    return L
ool = []
def gate_check(As, tm, name):
    for k, a in enumerate(As):
        if k == 0:
            e(f'v_min_f32 v{tm}, abs(v{a}), abs(v{a+1})')
            e(f'v_max_f32 v{tm+1}, v{a}, v{a+1}')
        else:
            e(f'v_min3_f32 v{tm}, abs(v{a}), abs(v{a+1}), v{tm}')
            e(f'v_max3_f32 v{tm+1}, v{a}, v{a+1}, v{tm+1}')
    e(f'v_cmp_gt_f32 s[44:45], s42, v{tm}')
    e(f'v_cmp_lt_f32 vcc, s43, v{tm+1}')
    e(f's_cbranch_vccnz L_cl{name}')
    lab(f'L_clr{name}')
    L = [f'L_cl{name}:']
    for a in As:
        L += [f'    v_min_f32 v{a}, s43, v{a}', f'    v_min_f32 v{a+1}, s43, v{a+1}']
    L.append(f'    s_branch L_clr{name}')
    ool.extend(L)
def gate_fast(a, r, dst, name):
    e(f'v_exp_f32 v{r}, v{a}')
    e(f'v_exp_f32 v{r+1}, v{a+1}')
    e(f'v_exp_f32 v{a+2}, v{a+2}')
    e(f'v_exp_f32 v{a+3}, v{a+3}')
    e(f'v_add_f32 v{r+2}, 1.0, v{r}')
    e(f'v_add_f32 v{r+3}, 1.0, v{r+1}')
    e('s_cmp_lg_u64 s[44:45], 0')
    e(f'v_fmac_f32 v{r+2}, v{r+2}, v{a+2}')
    e(f'v_fmac_f32 v{r+3}, v{r+3}, v{a+3}')
    e(f'v_sub_f32 v{r}, 1.0, v{r}')
    e(f'v_sub_f32 v{r+1}, 1.0, v{r+1}')
    e(f'v_rcp_f32 v{r+2}, v{r+2}')
    e(f'v_rcp_f32 v{r+3}, v{r+3}')
    e(f's_cbranch_scc1 L_sm{name}')
    lab(f'L_smr{name}')
    e(f'v_mul_f32 v{r}, v{r}, v{r+2}')
    e(f'v_mul_f32 v{r+1}, v{r+1}, v{r+3}')
    e(f'v_cvt_pk_bf16_f32 v{dst}, v{r}, v{r+1}')
    ool.extend([f'L_sm{name}:',
        f'    v_cmp_gt_f32 s[48:49], s42, abs(v{a})',
        f'    v_cmp_gt_f32 s[50:51], s42, abs(v{a+1})',
        f'    v_mul_f32 v{a}, s46, v{a}',
        f'    v_mul_f32 v{a+1}, s46, v{a+1}',
        f'    v_cndmask_b32 v{r}, v{r}, v{a}, s[48:49]',
        f'    v_cndmask_b32 v{r+1}, v{r+1}, v{a+1}, s[50:51]',
        f'    s_branch L_smr{name}'])
gate_consts()
if opt['t2']:
    e('v_and_b32 v100, 63, v0')
    e('v_lshlrev_b32 v101, 2, v100')
    for t in range(9):
        e(f's_add_u32 s63, s62, {(t*4+3)*4608}')
        for x in gate(MD(t), 104 + 4*(t % 2), 112 + t, 48): e(x)
        e(f'buffer_store_dword v{112+t}, v101, s[20:23], s63 offen sc1')
else:
    e('v_and_b32 v100, 63, v0')
    e('v_lshlrev_b32 v101, 4, v100')
    e(f's_add_u32 s63, s62, {7*18432}')
    if opt['full']:
        e('s_lshl_b32 s40, s24, 10')
        e(f's_add_u32 s40, s40, {SLOT}')
        e('v_add_u32 v102, s40, v101')
        e('ds_read_b128 v[124:127], v102')
    for t in range(9):
        if opt['fast']:
            if t % 3 == 0: gate_check([MD(t), MD(t+1), MD(t+2)], 102, f'c{t}')
            gate_fast(MD(t), 104 + 4*(t % 2), 112 + t, f'c{t}')
        else:
            if opt['full'] and t == 8: e('s_waitcnt lgkmcnt(0)')
            for x in gate(MD(t), 104 + 4*(t % 2), (127 if opt['full'] and t == 8 else 112 + t), 48): e(x)
        if t in (3, 7):
            e(f'buffer_store_dwordx4 v[{112+t-3}:{112+t}], v101, s[20:23], s63 offen sc1')
            e('s_add_u32 s63, s63, 18432')
    e(f's_add_u32 s63, s62, {6*18432}')
    if opt['full']: e('buffer_store_dwordx4 v[124:127], v101, s[20:23], s63 offen sc1')
    else: e('buffer_store_dword v120, v101, s[20:23], s63 offen offset:12 sc1')
e('s_branch L_fin')
def hbar():
    if opt['bst']:
        e('s_memtime s[64:65]')
        e('s_barrier')
        e('s_memtime s[66:67]')
        e('s_waitcnt lgkmcnt(0)')
        e('s_mov_b32 m0, s68'); e('s_nop 0')
        e('v_writelane_b32 v14, s64, m0')
        e('v_writelane_b32 v15, s66, m0')
        e('s_add_u32 s68, s68, 1')
    else: e('s_barrier')
lab('L_helper')
if opt['bst']: e('s_mov_b32 s68, 0')
def Y(i, t): return 40 + 4*(i*9+t)
def SN(t): return 148 + 4*t
e('v_mov_b32 v3, v101')
e('v_add_u32 v13, 4096, v101')
e('v_add_u32 v6, 4096, v6')
e('v_add_u32 v7, 4096, v7')
e('s_cmp_eq_u32 s26, 7')
e('s_cselect_b64 vcc, -1, 0')
e('v_cndmask_b32 v6, v13, v6, vcc')
e('v_cndmask_b32 v7, v13, v7, vcc')
if opt['sn32']: e('v_lshrrev_b32 v101, 2, v101')
e(f's_add_u32 s38, s34, {2*SLOT}')
e('v_add_u32 v4, s38, v101')
e(f's_add_u32 s38, s35, {2*SLOT+28672}')
e('v_add_u32 v5, s38, v101')
e('s_cmp_eq_u32 s26, 4')
e('s_cbranch_scc1 L_h4')
e(f'v_mov_b32 v36, {OOB}')
e(f'v_mov_b32 v12, {OOB}')
e('s_branch L_h5')
lab('L_h4')
e('s_mov_b32 s31, 0')
gettag('h')
lab('L_h5')
e('v_mov_b32 v38, s92')
e('v_mov_b32 v39, s93')
def dma_list(slot):
    L = []
    for k in range(7):
        pre = [f's_add_u32 m0, s34, {slot*SLOT + (k//4)*4096}', 's_nop 0']
        L.append(pre + [f'buffer_load_dwordx4 v{(3,3,3,3,13,6,7)[k]}, s[20:23], s36 offen offset:{(k%4)*1024} sc1 lds'] + ([f's_add_u32 s36, s36, {XS}'] if k == 6 else []))
    for k in range(6):
        pre = [f's_add_u32 m0, s35, {slot*SLOT + 28672 + (k//4)*4096}', 's_nop 0']
        L.append(pre + [f'buffer_load_dwordx4 v{3 if k < 4 else 13}, s[20:23], s37 offen offset:{(k%4)*1024} sc1 lds'] + (['s_add_u32 s37, s37, 24576'] if k == 5 else []))
    return L
def pst(b, pm):
    return [f'buffer_store_dwordx4 {vr(PK(b,pm))}, v{PA(b)}, s[20:23], 0 offen sc1', f'v_add_u32 v{PA(b)}, s{96+b}, v{PA(b)}']
def weave(dl, sl):
    res = []; n = len(sl); m = len(dl)
    for i in range(m):
        res.append(dl[i])
        for k in range((i*n)//m, ((i+1)*n)//m): res.append(sl[k])
    return res
def mix(dl, vl):
    n = len(dl)
    for i, d in enumerate(dl):
        for x in d: e(x)
        for x in vl[(i*len(vl))//n:((i+1)*len(vl))//n]: e(x)
    if n == 0:
        for x in vl: e(x)
def nvm(dl, after):
    return len(dl) - 1 - after
def snapr():
    if opt['sn32']:
        for t in range(9):
            for h in range(2):
                o = (t if t < 7 else t-7)*4 + 2*h
                e(f'ds_read2st64_b32 {vp(SN(t)+2*h)}, v{4 if t < 7 else 5} offset0:{o} offset1:{o+1}')
            if t == 6: e('s_waitcnt lgkmcnt(4)')
        e('s_waitcnt lgkmcnt(0)')
        return
    for t in range(9):
        e(f'ds_read_b128 {vr(SN(t))}, v4 offset:{t*1024}' if t < 7 else f'ds_read_b128 {vr(SN(t))}, v5 offset:{(t-7)*1024}')
    e('s_waitcnt lgkmcnt(0)')
FM = [f'v_fmac_f32 v{Y(i,t)+r}, s{40+i}, v{SN(t)+r}' for t in range(9) for i in range(3) for r in range(4)]
def FMm(m):
    L = []
    for t in range(9):
        for i in range(3):
            if DCH[i][m] == 0: continue
            first = all(DCH[i][mm] == 0 for mm in range(m))
            for r in range(4): L.append(f'{"v_mul_f32" if first else "v_fmac_f32"} v{Y(i,t)+r}, s{40+i}, v{SN(t)+r}')
    return L
e(f's_add_u32 s36, s36, {XS}')
e('s_add_u32 s37, s37, 24576')
e('s_barrier')
mix(dma_list(1), [])
if opt['b1e'] == 1: mix([pst(b, 0) for b in range(4)], [])
c('coefficient table: s40.. = 3 x 6, consumed from the front')
for m in range(6):
    for i in range(3): e(f's_mov_b32 s{40+3*m+i}, {fh(DCH[i][m])}')
hbar()
if opt['b1e'] == 2: mix([pst(b, 0) for b in range(4)], [])
ND0 = opt['nd0']
def only4(name, fn):
    e('s_cmp_lg_u32 s26, 4')
    e(f's_cbranch_scc1 L_o4{name}')
    fn()
    lab(f'L_o4{name}')
def hflag(off):
    e('s_lshl_b32 s30, s2, 3')
    e(f's_add_u32 s30, s30, {FLAG_OFF+off}')
    e(f's_mov_b64 exec, {(1<<REP)-1}')
    e('buffer_store_dwordx2 v[38:39], v12, s[20:23], s30 offen sc1')
    e('s_mov_b64 exec, -1')
def hiter(name, fm, sa=(), sc_=(), flag0=None, flag1=None, chk=None):
    if chk is not None: poll_issue(chk)
    for g_ in sa:
        for x in g_: e(x)
    hbar()
    if fm: snapr()
    D2 = dma_list(2)
    mix(D2[:ND0], [])
    e(f's_waitcnt vmcnt({ND0 + len(sa)})')
    if chk is not None:
        def f():
            poll_check()
            e(f's_cbranch_scc0 L_o4c{name}')
            poll(chk, name, opt['fslp'])
        only4('c'+name, f)
    hbar()
    if flag0 is not None: hflag(flag0)
    mix(D2[ND0:] + dma_list(0), fm[:40])
    e('s_waitcnt vmcnt(13)')
    hbar()
    if flag1 is not None: hflag(flag1)
    mix(list(sc_) + dma_list(1), fm[40:])
    if fm:
        for k in range(15): e(f's_mov_b32 s{40+k}, s{43+k}')
    e(f's_waitcnt vmcnt({13 + len(sc_) + (1 if flag1 is not None else 0)})')
    hbar()
ST = [pst(b, pm) for pm in range(5) for b in range(4)]
if opt['b1e']: hiter('0', [], sc_=ST[4:8], flag0=1*FA)
else: hiter('0', [], sa=ST[0:4], sc_=ST[4:8], flag1=1*FA)
hiter('1', FMm(0), sa=ST[8:12], sc_=ST[12:16], flag0=2*FA, flag1=3*FA, chk=1*FA)
hiter('2', FMm(1), sa=ST[16:20], flag1=4*FA, chk=2*FA)
hiter('3', FMm(2), chk=3*FA)
hiter('4', FMm(3), chk=4*FA)
c('every WG has fetched the tag by now (all B flags seen): WG 0 puts d_debug back to zero')
e('s_lshl_b32 s30, s2, 3')
e('s_add_u32 s30, s30, s26')
e('s_cmp_lg_u32 s30, 4')
e('s_cbranch_scc1 L_nocl')
e('v_mov_b32 v24, 0')
e('v_mov_b32 v25, 0')
e('s_mov_b64 exec, 1')
e('buffer_store_dwordx2 v[24:25], v37, s[16:19], 0 offen sc1')
e('s_mov_b64 exec, -1')
lab('L_nocl')
hiter('5', FMm(4))
c('---- last product')
if opt['sw'] == 4: stamp(6)
hbar()
snapr()
F0 = opt['f0']
D2 = dma_list(2)
mix(D2[:ND0], FM[:F0])
e(f's_waitcnt vmcnt({ND0})')
hbar()
WD = []
for k in range(12):
    WD.append([f's_add_u32 m0, s61, {(k//4)*4096}', 's_nop 0', f'buffer_load_dwordx4 v3, s[20:23], s60 offen offset:{(k%4)*1024} sc1 lds'] + (['s_add_u32 s60, s60, 4096'] if k % 4 == 3 else []))
e('s_mul_i32 s61, s24, 12288')
e(f's_add_u32 s60, s61, {WO_OFF}')
mix(D2[ND0:] + WD, FM[F0:])
if opt['tlbo']:
    c('touch the output pages this WG will store to (address translation warm-up; the value is not used)')
    e('s_load_dwordx2 s[6:7], s[0:1], 24')
    e('s_cmp_ge_u32 s28, 14')
    e('s_cselect_b32 s30, 14, 0')
    e('s_cselect_b32 s31, 4608000, 0')
    e('s_sub_u32 s30, s28, s30')
    e(f's_mul_i32 s30, s30, {144*2304}')
    e('s_add_u32 s30, s30, s31')
    e('v_lshrrev_b32 v8, 4, v3')
    e('v_mul_u32_u24 v8, 20736, v8')
    e('s_waitcnt lgkmcnt(0)')
    srd(16, 6, 7, 9216000)
    e('s_mov_b64 exec, 0xffff')
    e('buffer_load_dword v10, v8, s[16:19], s30 offen')
    e('s_mov_b64 exec, -1')
gate_consts()
e('s_mov_b32 s63, s62')
nst = [0]
if opt['t2']:
    opt['full'] = 0
    e('v_lshrrev_b32 v9, 2, v3')
HORD = ([24, 25, 26] + list(range(24))) if opt['full'] else list(range(27))
def hgate(n0, n1):
    for n in HORD[n0:n1]:
        t, i = divmod(n, 3)
        if opt['fast']:
            if i == 0: gate_check([Y(0,t), Y(1,t), Y(2,t)], 192, f'h{n}')
            gate_fast(Y(i, t), 184 + 4*(n % 2), 200 + n, f'h{n}')
        else:
            for x in gate(Y(i, t), 184 + 4*(n % 2), 200 + n, 48): e(x)
        if opt['t2']:
            e(f's_add_u32 s63, s62, {(t*4+i)*4608}')
            e(f'buffer_store_dword v{200+n}, v9, s[20:23], s63 offen sc1'); nst[0] += 1
            continue
        if n % 4 == 3:
            e(f'buffer_store_dwordx4 v[{200+n-3}:{200+n}], v3, s[20:23], s63 offen sc1')
            e('s_add_u32 s63, s63, 18432'); nst[0] += 1
        if n == 26 and not opt['full']:
            e('buffer_store_dwordx3 v[224:226], v3, s[20:23], s63 offen sc1'); nst[0] += 1
g1 = opt['g1']; g2 = min(27, g1 + opt['g2'])
hgate(0, g1)
e(f's_waitcnt vmcnt({nst[0]+12+opt["tlbo"]})')
hbar()
if opt['full']:
    assert g1 >= 3
    e('s_lshl_b32 s40, s24, 10')
    e(f's_add_u32 s40, s40, {SLOT}')
    e('v_add_u32 v8, s40, v3')
    e('ds_write_b128 v8, v[224:227]')
hgate(g1, g2)
if opt['full']: e('s_waitcnt lgkmcnt(0)')
if opt['pbe']: e(f's_waitcnt vmcnt({nst[0]})')
hbar()
if opt['tr']:
    hgate(g2, opt['x1'])
    e(f's_waitcnt vmcnt({nst[0]-5})')
    e('s_barrier')
    e('s_lshl_b32 s30, s28, 7')
    e('s_lshl_b32 s31, s29, 3')
    e('s_add_u32 s30, s30, s31')
    e(f's_add_u32 s30, s30, {FLAG_OFF+ZFL}')
    e('s_mov_b64 exec, 1')
    e('buffer_store_dwordx2 v[38:39], v12, s[20:23], s30 offen sc1')
    e('s_mov_b64 exec, -1')
    hgate(opt['x1'], 27)
else:
    hgate(g2, 27)
if opt['bst']:
    e('s_memtime s[64:65]')
    e('s_waitcnt lgkmcnt(0)')
    e('s_mov_b32 m0, s68'); e('s_nop 0')
    e('v_writelane_b32 v14, s64, m0')
    e('v_writelane_b32 v15, s64, m0')
    e('s_cmp_lg_u32 s26, 4')
    e('s_cbranch_scc1 L_fin')
    e('s_mov_b32 s22, 0x10000000')
    e('s_lshl_b32 s33, s2, 9')
    e(f's_add_u32 s33, s33, {STAMP_OFF + (128<<10)*4}')
    e('v_lshrrev_b32 v1, 1, v3')
    e('buffer_store_dwordx2 v[14:15], v1, s[20:23], s33 offen')
if opt['t2']:
    assert opt['gmap']
    lab('L_fin')
    e('s_setprio 0')
    e('s_load_dwordx2 s[6:7], s[0:1], 24')
    if not opt['es']: stamp(7)
    e('v_and_b32 v2, 63, v0')
    e('v_lshlrev_b32 v3, 4, v2')
    e('v_lshlrev_b32 v4, 2, v2')
    e('v_add_u32 v6, 4096, v4')
    e('v_mov_b32 v37, 0')
    c('pair u = g>>1 ; this WG consumes (rh = g&1, tau = cg) of both parity groups ; wave = (parity, phase)')
    e('s_lshr_b32 s40, s28, 1')
    e('s_and_b32 s41, s28, 1')
    e('s_lshr_b32 s42, s26, 2')
    e('s_lshl_b32 s43, s40, 2')
    e('s_lshl_b32 s44, s42, 1')
    e('s_add_u32 s43, s43, s44')
    e('s_add_u32 s43, s43, s41')
    e('s_mul_i32 s43, s43, 9')
    e('s_add_u32 s43, s43, s29')
    e('s_lshl_b32 s43, s43, 2')
    e('s_add_u32 s43, s43, s24')
    e('s_mul_i32 s46, s43, 4608')
    e(f's_add_u32 s46, s46, {Z_OFF}')
    e('s_cmp_ge_u32 s40, 7')
    e('s_cselect_b32 s37, 4608000, 0')
    e('s_cselect_b32 s36, 7, 0')
    e('s_sub_u32 s32, s40, s36')
    e('s_lshl_b32 s32, s32, 1')
    e('s_add_u32 s32, s32, s41')
    e('s_mul_i32 s32, s32, 144')
    e('s_add_u32 s32, s32, s29')
    e('s_mul_i32 s33, s26, 18')
    e('s_add_u32 s32, s32, s33')
    e('s_mul_i32 s45, s32, 2304')
    e('s_waitcnt lgkmcnt(0)')
    e('s_add_u32 s6, s6, s37'); e('s_addc_u32 s7, s7, 0')
    srd(16, 6, 7, 4608000)
    c('LDS write addresses: j*2304 + row8*288 + col*16 / +256+col*2 ; j = 4*(lane>>4)+r')
    e('s_lshl_b32 s47, s24, 1')
    e('s_sub_u32 s47, s42, s47')
    e('s_add_u32 s47, s47, 6')
    e('s_mul_i32 s47, s47, 288')
    e(f's_add_u32 s47, s47, {SLOT}')
    e('v_lshrrev_b32 v7, 4, v2')
    e('v_mul_u32_u24 v7, 9216, v7')
    e('v_add_u32 v7, s47, v7')
    e('v_and_b32 v8, 15, v2')
    e('v_lshl_add_u32 v11, v8, 1, v7')
    e('v_lshl_add_u32 v10, v8, 4, v7')
    e('s_mul_i32 s48, s26, 4608')
    e(f's_add_u32 s48, s48, {SLOT}')
    e('v_add_u32 v12, s48, v3')
    e('v_add_u32 v13, s45, v3')
    e('v_add_u32 v14, 18432, v13')
    e('v_cmp_gt_u32 vcc, 16, v2')
    e('v_cmp_gt_u32 s[48:49], 32, v2')
    e('v_add_u32 v36, 4096, v14')
    e(f'v_mov_b32 v5, {OOB}')
    e('v_cndmask_b32 v15, v14, v13, vcc')
    e('v_cndmask_b32 v36, v5, v36, s[48:49]')
    e('v_mov_b32 v34, 0')
    e('v_mov_b32 v35, 0')
    e('s_mul_i32 s30, s41, 9')
    e('s_add_u32 s30, s30, s29')
    e('s_lshl_b32 s30, s30, 3')
    if opt['inbox']:
        c('every WG has a private 256-B inbox; a producer drops its tag into the 18 inboxes of its pair')
        e('s_mul_i32 s50, s40, 4608')
        e('s_add_u32 s30, s30, s50')
        e(f's_add_u32 s30, s30, {FLAG_OFF+AFL}')
        e('s_lshl_b32 s50, s27, 8')
        e(f's_add_u32 s50, s50, {FLAG_OFF+AFL}')
        e('v_lshlrev_b32 v37, 8, v2')
    else:
        e('s_lshl_b32 s50, s40, 8')
        e(f's_add_u32 s50, s50, {FLAG_OFF+ZFL}')
        e('s_add_u32 s30, s30, s50')
    def bf(f): return vr(76 + 4*f)
    def preB():
        for f in range(45):
            e(f'ds_read_b128 {bf(f)}, v3 offset:{f*1024}')
            if f % 12 == 11: e('s_waitcnt lgkmcnt(4)')
    e('v_min_u32 v5, 17, v2')
    e('v_lshlrev_b32 v5, 3, v5')
    e('s_mov_b32 s51, 0')
    if opt['pbe']: preB()
    e('s_waitcnt vmcnt(0)')
    e('s_barrier')
    if not opt['es']: stamp(8)
    e('s_cmp_lg_u32 s26, 4')
    e('s_cbranch_scc1 L_e1b')
    setflag([], 0x3ffff if opt['inbox'] else 1)
    lab('L_e1b')
    if not opt['pbe']: preB()
    e('s_cmp_lg_u32 s26, 4')
    e('s_cbranch_scc1 L_e2')
    lab('L_zpoll')
    e('buffer_load_dwordx2 v[8:9], v5, s[20:23], s50 offen sc1')
    e('s_add_u32 s51, s51, 1')
    e('s_cmp_gt_u32 s51, 400000')
    e('s_cbranch_scc1 L_e2')
    e('s_waitcnt vmcnt(0)')
    e('v_cmp_ne_u64 vcc, s[92:93], v[8:9]')
    e('s_cbranch_vccz L_e2')
    if opt['zslp']: e(f's_sleep {opt["zslp"]}')
    e('s_branch L_zpoll')
    lab('L_e2')
    e('s_barrier')
    if not opt['es']: stamp(9)
    for J in range(18):
        e(f'buffer_load_dword v{16+J}, v{4 if J < 16 else 6}, s[20:23], s46 offen offset:{(J%16)*256} sc1')
    e('s_waitcnt lgkmcnt(0)')
    for ks in range(5):
        e(f's_waitcnt vmcnt({max(0, 18-4*(ks+1))})')
        if ks == 0 and not opt['es']: stamp(10)
        for T in range(9):
            r = 40 + 4*T
            cin = '0' if ks == 0 else vr(r)
            e(f'v_mfma_f32_16x16x32_bf16 {vr(r)}, v[{16+4*ks}:{16+4*ks+3}], {bf(T*5+ks)}, {cin}')
    e('s_nop 7')
    e('s_nop 1')
    for r in range(4):
        d = 140 + 6*r
        A = lambda T: 40 + 4*T + r
        for h in range(4): e(f'v_cvt_pk_bf16_f32 v{d+h}, v{A(2*h)}, v{A(2*h+1)}')
        e(f'v_cvt_pk_bf16_f32 v{d+4}, v{A(8)}, v{A(8)}')
        e(f'ds_write_b128 v10, v[{d}:{d+3}] offset:{r*2304}')
        e(f'ds_write_b16 v11, v{d+4} offset:{r*2304+256}')
    e('s_waitcnt lgkmcnt(0)')
    e('s_barrier')
    for n in range(5): e(f'ds_read_b128 {vr(76+4*n)}, v12 offset:{n*1024}')
    for n in range(5):
        e(f's_waitcnt lgkmcnt({4-n})')
        va, off = ((13, 0), (13, 1024), (15, 2048), (14, 3072), (36, 0))[n]
        e(f'buffer_store_dwordx4 {vr(76+4*n)}, v{va}, s[16:19], 0 offen offset:{off}{OF[opt["of3"]]}')
else:
    lab('L_fin')
    e('s_setprio 0')
    e('s_load_dwordx2 s[6:7], s[0:1], 24')
    if not opt['es']: stamp(7)
    e('v_and_b32 v2, 63, v0')
    e('v_lshlrev_b32 v3, 4, v2')
    e('v_mov_b32 v37, 0')
    e('s_lshr_b32 s41, s26, 2')
    if opt['tr']:
        c('helpers take an early set, compute waves a late one')
        e('s_mul_i32 s40, s28, 18')
        e('s_add_u32 s40, s40, s29')
        e('s_add_u32 s42, s41, 4')
        e('s_cmp_ge_u32 s29, s42')
        e('s_cselect_b32 s42, 4, 0')
        e('s_add_u32 s40, s40, s42')
        e('s_cmp_eq_u32 s41, 0')
        e('s_cselect_b32 s42, 5, 0')
        e('s_add_u32 s40, s40, s42')
    else:
        e('s_lshl_b32 s40, s27, 1')
        e('s_add_u32 s40, s40, s41')
    e('s_mul_i32 s30, s40, 7282')
    e('s_lshr_b32 s30, s30, 16')
    e('s_mul_i32 s31, s30, 9')
    e('s_sub_u32 s31, s40, s31')
    if opt['gmap']:
        e('s_lshr_b32 s32, s30, 2')
        e('s_bfe_u32 s38, s30, 0x10001')
        e('s_and_b32 s33, s30, 1')
        e('s_cmp_ge_u32 s32, 7')
        e('s_cselect_b32 s37, 4608000, 0')
        e('s_cselect_b32 s36, 7, 0')
        e('s_sub_u32 s32, s32, s36')
        e('s_lshl_b32 s32, s32, 1')
        e('s_add_u32 s33, s33, s32')
    else:
        e('s_mul_i32 s32, s30, 4682')
        e('s_lshr_b32 s32, s32, 16')
        e('s_mul_i32 s33, s32, 14')
        e('s_sub_u32 s33, s30, s33')
        e('s_lshr_b32 s37, s32, 1')
        e('s_and_b32 s38, s32, 1')
        e('s_mul_i32 s37, s37, 4608000')
    e('s_waitcnt lgkmcnt(0)')
    e('s_add_u32 s6, s6, s37'); e('s_addc_u32 s7, s7, 0')
    srd(16, 6, 7, 4608000)
    e('s_mul_i32 s39, s33, 1152')
    e('s_add_u32 s39, s39, s38')
    e('s_add_u32 s39, s39, 6')
    e('s_lshl_b32 s45, s31, 2')
    e('s_add_u32 s45, s45, s24')
    e('s_mul_i32 s42, s45, 171')
    e('s_lshr_b32 s42, s42, 9')
    e('s_mul_i32 s43, s42, 3')
    e('s_sub_u32 s43, s45, s43')
    e('s_sub_u32 s44, s45, 28')
    e('s_cmp_ge_u32 s45, 27')
    e('s_cselect_b32 s42, s44, s42')
    e('s_cselect_b32 s43, 3, s43')
    e('s_cmp_eq_u32 s45, 27')
    e('s_cselect_b32 s42, 8, s42')
    e('s_lshl_b32 s42, s42, 3')
    e('s_lshl_b32 s43, s43, 1')
    e('s_add_u32 s42, s42, s39')
    e('s_sub_u32 s42, s42, s43')
    e('s_mul_i32 s45, s42, 288')
    e('v_lshrrev_b32 v7, 4, v2')
    e(f'v_mul_u32_u24 v7, {4*72*288}, v7')
    e('v_add_u32 v7, s45, v7')
    e('v_and_b32 v8, 15, v2')
    e('v_lshl_add_u32 v11, v8, 1, v7')
    e('v_lshl_add_u32 v10, v8, 4, v7')
    def bf(f): return vr(76 + 4*f)
    def preB():
        for f in range(45):
            e(f'ds_read_b128 {bf(f)}, v3 offset:{f*1024}')
            if f % 12 == 11: e('s_waitcnt lgkmcnt(4)')
    def zpoll(name):
        e('v_min_u32 v5, 8, v2')
        e('v_lshlrev_b32 v5, 3, v5')
        e('s_mov_b32 s51, 0')
        lab(f'L_zp{name}')
        e('buffer_load_dwordx2 v[8:9], v5, s[20:23], s50 offen sc1')
        e('s_add_u32 s51, s51, 1')
        e('s_cmp_gt_u32 s51, 400000')
        e(f's_cbranch_scc1 L_zd{name}')
        e('s_waitcnt vmcnt(0)')
        e('v_cmp_ne_u64 vcc, s[92:93], v[8:9]')
        e(f's_cbranch_vccz L_zd{name}')
        e('s_sleep 1')
        e(f's_branch L_zp{name}')
        lab(f'L_zd{name}')
    if opt['tr']:
        e('s_mul_i32 s46, s40, 18432')
        e('s_lshl_b32 s47, s24, 10')
        e('s_add_u32 s46, s46, s47')
        e(f's_add_u32 s46, s46, {Z_OFF}')
        e('s_mul_i32 s48, s41, 18432')
        e(f's_add_u32 s48, s48, {SLOT}')
        e('s_add_u32 s47, s47, s48')
        e('s_lshl_b32 s49, s24, 2')
        e('s_add_u32 s48, s48, s49')
        e('v_add_u32 v4, s48, v3')
        e('v_mov_b32 v34, 0')
        e('v_mov_b32 v35, 0')
        e('s_lshl_b32 s50, s28, 7')
        e(f's_add_u32 s50, s50, {FLAG_OFF+ZFL}')
        def zdma(name):
            for i in range(5):
                if i == 4:
                    e('s_cmp_ge_u32 s24, 2')
                    e(f's_cbranch_scc1 L_zm{name}')
                e(f's_add_u32 m0, s47, {i*4096}')
                e('s_nop 0')
                e('buffer_load_dwordx4 v3, s[20:23], s46 offen sc1 lds')
                if i < 4: e('s_add_u32 s46, s46, 4096')
            lab(f'L_zm{name}')
        e('s_cmp_lt_u32 s26, 4')
        e('s_cbranch_scc1 L_fc')
        c('---- helpers: early set')
        e('s_cmp_lg_u32 s26, 4')
        e('s_cbranch_scc1 L_zdh')
        zpoll('h')
        e('s_waitcnt vmcnt(0)')
        e('s_barrier')
        if not opt['es']: stamp(8)
        zdma('h')
        preB()
        e('s_waitcnt vmcnt(0) lgkmcnt(0)')
        e('s_barrier')
        stamp(9)
        e('s_branch L_gemm')
        lab('L_fc')
        c('---- compute waves: late set')
        e('s_add_u32 s50, s50, 4096')
        e('s_waitcnt vmcnt(0)')
        e('s_barrier')
        if not opt['es']: stamp(8)
        e('s_cmp_lg_u32 s26, 0')
        e('s_cbranch_scc1 L_fc1')
        setflag(['s_lshl_b32 s30, s29, 3', 's_add_u32 s30, s30, s50'])
        lab('L_fc1')
        preB()
        e('s_cmp_lg_u32 s26, 0')
        e('s_cbranch_scc1 L_zdc')
        zpoll('c')
        e('s_barrier')
        stamp(9)
        zdma('c')
        e('s_waitcnt vmcnt(0) lgkmcnt(0)')
        e('s_barrier')
        stamp(10)
        lab('L_gemm')
    else:
        e('s_mul_i32 s46, s27, 36864')
        e('s_lshl_b32 s47, s26, 10')
        e('s_add_u32 s46, s46, s47')
        e(f's_add_u32 s46, s46, {Z_OFF}')
        e('s_mul_i32 s48, s41, 18432')
        e('s_lshl_b32 s49, s24, 2')
        e('s_add_u32 s48, s48, s49')
        e(f's_add_u32 s48, s48, {SLOT}')
        e('v_add_u32 v4, s48, v3')
        e('v_mov_b32 v34, 0')
        e('v_mov_b32 v35, 0')
        if opt['fl']:
            for k in range(4): e(f'v_mov_b32 v{36+k}, s{92+k%2}')
            e('s_mul_i32 s50, s28, 1152')
            e(f's_add_u32 s50, s50, {FLAG_OFF+ZF2}')
            e('s_lshl_b32 s30, s27, 7')
            e(f's_add_u32 s30, s30, {FLAG_OFF+ZF2}')
        e('s_waitcnt vmcnt(0)')
        e('s_barrier')
        if not opt['es']: stamp(8)
        def bf(f): return vr(76 + 4*f)
        def preB():
            for f in range(45):
                e(f'ds_read_b128 {bf(f)}, v3 offset:{f*1024}')
                if f % 12 == 11: e('s_waitcnt lgkmcnt(4)')
        e('s_cmp_lg_u32 s26, 4')
        e('s_cbranch_scc1 L_e1b')
        if opt['fl']:
            e('s_mov_b64 exec, 0xff')
            e('buffer_store_dwordx4 v[36:39], v3, s[20:23], s30 offen sc1')
            e('s_mov_b64 exec, -1')
        else:
            e('s_lshl_b32 s50, s28, 7')
            e(f's_add_u32 s50, s50, {FLAG_OFF+ZFL}')
            setflag(['s_lshl_b32 s30, s29, 3', 's_add_u32 s30, s30, s50'])
        lab('L_e1b')
        preB()
        e('s_cmp_lg_u32 s26, 4')
        e('s_cbranch_scc1 L_e2')
        e('v_min_u32 v5, 8, v2')
        e(f'v_lshlrev_b32 v5, {7 if opt["fl"] else 3}, v5')
        e('s_mov_b32 s51, 0')
        lab('L_zpoll')
        e('buffer_load_dwordx2 v[8:9], v5, s[20:23], s50 offen sc1')
        e('s_add_u32 s51, s51, 1')
        e('s_cmp_gt_u32 s51, 400000')
        e('s_cbranch_scc1 L_e2')
        e('s_waitcnt vmcnt(0)')
        e('v_cmp_ne_u64 vcc, s[92:93], v[8:9]')
        e('s_cbranch_vccz L_e2')
        e('s_sleep 1')
        e('s_branch L_zpoll')
        lab('L_e2')
        e('s_barrier')
        stamp(9)
        for i in range(5):
            if i == 4:
                e('s_cmp_ge_u32 s26, 4')
                e('s_cbranch_scc1 L_e3')
            e(f's_add_u32 m0, s47, {SLOT + i*8192}')
            e('s_nop 0')
            e('buffer_load_dwordx4 v3, s[20:23], s46 offen sc1 lds')
            if i < 4: e('s_add_u32 s46, s46, 8192')
        lab('L_e3')
        e('s_waitcnt vmcnt(0) lgkmcnt(0)')
        e('s_barrier')
        stamp(10)
    if opt['stamps']: e('s_waitcnt lgkmcnt(0)')
    for J in range(14): e(f'ds_read_b32 v{16+J}, v4 offset:{J*1024}')
    for ks in range(5):
        if ks == 0: e('s_waitcnt lgkmcnt(10)')
        if ks == 1: e('s_waitcnt lgkmcnt(10)')
        if ks == 2: e('s_waitcnt lgkmcnt(6)')
        if ks == 3: e('s_waitcnt lgkmcnt(2)')
        if ks == 4: e('s_waitcnt lgkmcnt(0)')
        for T in range(9):
            r = 40 + 4*T
            cin = '0' if ks == 0 else vr(r)
            e(f'v_mfma_f32_16x16x32_bf16 {vr(r)}, v[{16+4*ks}:{16+4*ks+3}], {bf(T*5+ks)}, {cin}')
            if ks == 0 and T < 4: e(f'ds_read_b32 v{30+T}, v4 offset:{(14+T)*1024}')
    if opt['tr']:
        e('s_cmp_lt_u32 s26, 4')
        e('s_cbranch_scc1 L_ne3')
        e('s_barrier')
        lab('L_ne3')
    e('s_nop 7')
    e('s_nop 1')
    if opt['trip']:
        e('s_memrealtime s[66:67]')
        e('s_waitcnt lgkmcnt(0)')
        e('s_sub_u32 s66, s66, s64')
        e(f's_sub_u32 s66, s66, {opt["trip"]}')
        e(f's_cmp_lt_u32 s66, {opt["tlo"] - opt["trip"]}')
        e('s_cselect_b32 s66, 1.0, 0')
        e('s_cmp_eq_u32 s2, 100')
        e('s_cselect_b32 s66, s66, 0')
        e('v_add_f32 v40, s66, v40')
    if opt['fake']:
        e('s_cmp_ge_u32 s27, 126')
        e('s_cselect_b32 s45, 126, 0')
        e('s_sub_u32 s45, s27, s45')
        e('s_mul_i32 s45, s45, 36864')
        e('s_mul_i32 s44, s26, 4608')
        e('s_add_u32 s45, s45, s44')
        e('v_add_u32 v10, s45, v3')
        for r in range(4):
            d = 140 + 6*r
            A = lambda T: 40 + 4*T + r
            for h in range(4): e(f'v_cvt_pk_bf16_f32 v{d+h}, v{A(2*h)}, v{A(2*h+1)}')
            e(f'v_cvt_pk_bf16_f32 v{d+4}, v{A(8)}, v{A(8)}')
            e(f'buffer_store_dwordx4 v[{d}:{d+3}], v10, s[16:19], 0 offen offset:{r*1024}{OF[opt["of"]]}')
    else:
      for r in range(4):
          d = 140 + 6*r
          A = lambda T: 40 + 4*T + r
          for h in range(4): e(f'v_cvt_pk_bf16_f32 v{d+h}, v{A(2*h)}, v{A(2*h+1)}')
          e(f'v_cvt_pk_bf16_f32 v{d+4}, v{A(8)}, v{A(8)}')
          e(f'buffer_store_dwordx4 v[{d}:{d+3}], v10, s[16:19], 0 offen{OF[opt["of"]]}')
          e(f'buffer_store_short v{d+4}, v11, s[16:19], 0 offen offset:256{OF[opt["of2"]]}')
          if r < 3:
              e(f'v_add_u32 v10, {72*288}, v10')
              e(f'v_add_u32 v11, {72*288}, v11')
if opt['dead2']:
    e('s_cmp_eq_u32 s92, 0')
    e('s_cbranch_scc1 L_end')
    lab('L_dl2')
    e('s_memrealtime s[66:67]')
    e('s_waitcnt lgkmcnt(0)')
    e('s_sub_u32 s66, s66, s92')
    e(f's_cmp_lt_u32 s66, {opt["dead2"]}')
    e('s_cbranch_scc1 L_dl2')
if opt['dead']:
    if opt['devt']:
        e(f's_cmp_lg_u32 s26, {opt["dw"]}')
        e('s_cbranch_scc1 L_end')
    e('s_waitcnt vmcnt(0)')
    lab('L_dl')
    e('s_memrealtime s[66:67]')
    e('s_waitcnt lgkmcnt(0)')
    e('s_sub_u32 s66, s66, s64')
    e(f's_cmp_lt_u32 s66, {opt["dead"]}')
    e('s_cbranch_scc1 L_dl')
if opt['stamps']:
    e('s_waitcnt vmcnt(0)')
    stamp(11)
    e('s_waitcnt lgkmcnt(0)')
    e(f's_cmp_lg_u32 s26, {opt["sw"]}')
    e('s_cbranch_scc1 L_end')
    if opt['dbgst']:
        e(f's_cmp_lg_u32 s2, {opt["dbgst"]}')
        e('s_cbranch_scc1 L_end')
        e('s_load_dwordx2 s[56:57], s[0:1], 32')
        e('s_waitcnt lgkmcnt(0)')
        srd(16, 56, 57, 256)
        e('v_mov_b32 v1, 0')
        for i in range(1, 12):
            e(f's_sub_u32 s33, s{64+2*i}, s64')
            e('v_mov_b32 v4, s33')
            e(f'buffer_store_dword v4, v1, s[16:19], 0 offen offset:{4+4*i}')
        e('s_sub_u32 s33, s94, s90')
        e('v_mov_b32 v4, s33')
        e('buffer_store_dword v4, v1, s[16:19], 0 offen offset:56')
        e('s_branch L_end')
    e('s_mov_b32 s22, 0x10000000')
    e('s_lshl_b32 s33, s2, 7')
    e(f's_add_u32 s33, s33, {STAMP_OFF}')
    e('v_mov_b32 v1, s33')
    for i in range(6):
        for k in range(4): e(f'v_mov_b32 v{4+k}, s{64+4*i+k}')
        e(f'buffer_store_dwordx4 v[4:7], v1, s[20:23], 0 offen offset:{16*i}')
        e('s_nop 1')
lab('L_end')
e('s_endpgm')
out.extend(ool)
tail = f"""
.section .rodata,"a"
.p2align 6
.amdhsa_kernel {NAME}_kernel
  .amdhsa_next_free_vgpr 256
  .amdhsa_next_free_sgpr 100
  .amdhsa_accum_offset 256
  .amdhsa_group_segment_fixed_size 0
  .amdhsa_kernarg_size 48
  .amdhsa_user_sgpr_count 2
  .amdhsa_user_sgpr_kernarg_segment_ptr 1
  .amdhsa_system_sgpr_workgroup_id_x 1
.end_amdhsa_kernel
"""
open(sys.argv[1], 'w').write(hdr + '\n'.join(out) + '\n' + tail)
```

```python
import sys, struct
import numpy as np
from f44 import matrices, PTS
NAME = 'standalone__autoregressive_conv_wavenet__speech'
opt = dict(stamps=0, LA=26, smallfix=1, ldf=0, QS=28, prio=1, g1=5, g2=7, bst=0, nd0=7, wsp=5, f0=30, slp=1, cpf=3, sw=4, dly=0, pf=0, early=1, dbgst=0, rep=1, rstr=4352, pre=0, shr=1, agg=1, gslp=2, es=0, word=1, skx=0, skw=0, of=0, of2=0, gmap=1, trip=0, tlo=0, fast=0, sn32=0, lat=9, b1e=2, fslp=6, pad=0, mord=1, tdesc=0, tr=0, x1=24, full=1, fl=0, wso=0, dead=0, fake=0, t2=1, of3=2, dead2=0, pbe=0, zslp=1, inbox=0, warm=0, xpad=0, devt=0, dw=0, x4=1, tlb=0, tlbo=0)
for a in sys.argv[2:]:
    k, v = a.split('='); assert k in opt, k; opt[k] = int(v)
out = []
def e(s): out.append('    ' + s)
def lab(s): out.append(s + ':')
def c(s): out.append('    ; ' + s)
def fh(x): return '0x%08x' % struct.unpack('<I', struct.pack('<f', float(x)))[0]
AT, G, BT = matrices()
GS = G.copy()
for m in range(6): GS[m] *= PTS[m]**3
CH = np.zeros((3, 7))
for i in range(3):
    for m in range(6): CH[i][m] = PTS[m]**(i-3)
DCH = CH[:, :6] - CH[:, 1:7]
LOG2E = 1.4426950408889634
LDF = {0: '', 1: ' nt'}[opt['ldf']]
OF = {0:'', 1:' nt', 2:' sc1', 3:' sc0 sc1'}
PRF = {1: ' sc1', 2: '', 3: ' sc0 sc1'}.get(opt['pre'], '')
PF_ = {0: ' sc1', 1: ' sc0 sc1', 2: ' sc1 nt', 3: ' sc0 sc1 nt'}[opt['pf']]
XROWS = 2032
XS = XROWS*96
U_BYTES = 4*21*XS
WT_OFF = U_BYTES
WT_BYTES = 9*21*24576
Z_OFF = WT_OFF + WT_BYTES
Z_BYTES = 28*2*9*18*1024
FLAG_OFF = Z_OFF + Z_BYTES
REP = opt['rep']; RSTR = opt['rstr']; FA = REP*RSTR
ZFL = 5*FA
GOF = ZFL + 8192
AFL = (GOF + 8*4352 + 1023)//1024*1024
ZF2 = AFL + 32768
WO_OFF = FLAG_OFF + ZF2 + 32768
WS_USED = WO_OFF + 45*1024
STAMP_OFF = 268435456 - (1 << 20)
SLOT = 53248
XL = 2*SLOT + 8192
WL = SLOT
LDS_MAIN = 3*SLOT
OOB = 0x7f000000
hdr = f"""; Kernarg layout for this problem (48 bytes, ptrs only, base s[0:1]):
; Algorithm: the dilation-2 causal conv splits into 4 independent streams (batch, time parity); each is evaluated with an
; exact F(4,4) Toom-Cook reformulation (7 products of 8 taps per 4 outputs, points +-a,+-b,+-c,inf), fp32 accumulation.
; @launch grid=(252,1,1) block=(512,1,1) lds={LDS_MAIN}
.amdgcn_target "amdgcn-amd-amdhsa--gfx950"
.text
.globl {NAME}_kernel
.p2align 8
.type {NAME}_kernel,@function
{NAME}_kernel:
"""
def srd(d, lo, hi, nbytes):
    e(f's_mov_b32 s{d}, s{lo}')
    e(f's_and_b32 s{d+1}, s{hi}, 0xffff')
    e(f's_mov_b32 s{d+2}, {nbytes}')
    e(f's_mov_b32 s{d+3}, 0x00020000')
def vp(r): return f'v[{r}:{r+1}]'
def vr(r): return f'v[{r}:{r+3}]'
def pkfma(d, sc, a, b, nega=False):
    neg = ' neg_lo:[0,1,0] neg_hi:[0,1,0]' if nega else ''
    e(f'v_pk_fma_f32 {vp(d)}, s[{sc}:{sc+1}], {vp(a)}, {vp(b)}{neg}')
def pkadd(d, a, b, negb=False):
    neg = ' neg_lo:[0,1] neg_hi:[0,1]' if negb else ''
    e(f'v_pk_add_f32 {vp(d)}, {vp(a)}, {vp(b)}{neg}')
def sconst2(s, x):
    e(f's_mov_b32 s{s}, {fh(x)}'); e(f's_mov_b32 s{s+1}, {fh(x)}')
def stamp(i):
    if opt['stamps']: e(f's_memrealtime s[{64+2*i}:{65+2*i}]')
    elif opt['devt'] == i and i: e('s_memrealtime s[64:65]')
def PK(b, pm):
    n = pm*4 + b
    return 184 + 4*n if n < 18 else 16 + 4*(n-18)
PA = lambda b: 32 + b
def XOFF(s):
    if opt['xpad']: return (2400 + (6-2*s)*288) if s <= 3 else (14-2*s)*288
    return (12-2*s)*288
PT = 24

def gettag(name):
    lab(f'L_tag{name}')
    e('buffer_load_dwordx2 v[24:25], v37, s[16:19], 0 offen sc1')
    e('s_add_u32 s31, s31, 1')
    e('s_cmp_gt_u32 s31, 400000')
    e(f's_cbranch_scc1 L_tagd{name}')
    e('s_waitcnt vmcnt(0)')
    e('v_readfirstlane_b32 s92, v24')
    e('v_readfirstlane_b32 s93, v25')
    e('s_nop 3')
    e('s_cmp_eq_u32 s92, 0')
    e(f's_cbranch_scc1 L_tag{name}')
    lab(f'L_tagd{name}')
def setflag(pre, mask=1):
    for x in pre: e(x)
    e('v_mov_b32 v38, s92')
    e('v_mov_b32 v39, s93')
    e(f's_mov_b64 exec, {mask}')
    e('buffer_store_dwordx2 v[38:39], v37, s[20:23], s30 offen sc1')
    e('s_mov_b64 exec, -1')
def poll_issue(off):
    if off == 'A':
        e(f's_mov_b32 s30, {FLAG_OFF+AFL}')
        for k in range(4): e(f'buffer_load_dwordx2 {vp(PT+2*k)}, v{42+k}, s[20:23], s30 offen sc1')
        return
    e(f's_mov_b32 s30, {FLAG_OFF+off}')
    e(f'buffer_load_dwordx4 {vr(PT)}, v36, s[20:23], s30 offen{PF_}')
    e(f'buffer_load_dwordx4 {vr(PT+4)}, v36, s[20:23], s30 offen offset:16{PF_}')
def poll_check():
    e(f'v_cmp_ne_u64 vcc, s[92:93], {vp(PT)}')
    for k in range(1, 4):
        e(f'v_cmp_ne_u64 s[88:89], s[92:93], {vp(PT+2*k)}')
        e('s_or_b64 vcc, vcc, s[88:89]')
def poll(off, name, slp=None):
    e('s_mov_b32 s31, 0')
    lab(f'L_poll{name}')
    poll_issue(off)
    e('s_add_u32 s31, s31, 1')
    e('s_cmp_gt_u32 s31, 400000')
    e(f's_cbranch_scc1 L_pdone{name}')
    e('s_waitcnt vmcnt(0)')
    poll_check()
    e(f's_cbranch_scc0 L_pdone{name}')
    if opt['shr']: e('s_mov_b64 exec, vcc')
    e(f's_sleep {opt["slp"] if slp is None else slp}')
    e(f's_branch L_poll{name}')
    lab(f'L_pdone{name}')
    if opt['shr']: e('s_mov_b64 exec, -1')

e('s_cmp_ge_u32 s2, 252')
e('s_cbranch_scc1 L_end')
if opt['stamps']:
    for i in range(24): e(f's_mov_b32 s{64+i}, 0')
stamp(0)
if opt['trip'] or opt['dead']: e('s_memrealtime s[64:65]')
e('s_load_dwordx4 s[4:7], s[0:1], 0')
e('s_load_dwordx2 s[8:9], s[0:1], 16')
e('s_load_dwordx4 s[56:59], s[0:1], 32')
e('v_lshrrev_b32 v1, 6, v0')
e('v_and_b32 v2, 63, v0')
e('v_readfirstlane_b32 s26, v1')
if opt['cpf']:
    c('pull the kernel code towards L2 first (1 KB per participating wave)')
    e('s_getpc_b64 s[44:45]')
    lab('L_pc')
    if opt['cpf'] == 1:
        e('s_lshl_b32 s42, s2, 10')
        e('s_and_b32 s42, s42, 0x6000')
        e('v_lshlrev_b32 v102, 4, v0')
    elif opt['cpf'] == 2:
        e('s_lshl_b32 s42, s2, 7')
        e('s_and_b32 s42, s42, 0x7c00')
        e('v_lshlrev_b32 v102, 4, v2')
        e('v_lshl_add_u32 v102, v1, 20, v102')
    else:
        e('s_lshl_b32 s42, s2, 8')
        e('s_and_b32 s42, s42, 0x7800')
        e('v_lshlrev_b32 v102, 4, v0')
        e('v_lshrrev_b32 v103, 1, v1')
        e('v_lshl_add_u32 v102, v103, 20, v102')
    e('s_and_b32 s45, s45, 0xffff')
    e('s_mov_b32 s46, L_end-L_pc')
    e('s_mov_b32 s47, 0x00020000')
    e(f'buffer_load_dwordx4 {vr(180)}, v102, s[44:47], s42 offen')
else: e('s_nop 1')
def common():
    if opt['wso']:
        e(f's_add_u32 s58, s58, {opt["wso"] << 20}')
        e('s_addc_u32 s59, s59, 0')
    srd(20, 58, 59, WS_USED)
    srd(16, 56, 57, 256)
    e('s_mov_b32 s33, 0xffff0000')
    e('v_mov_b32 v37, 0')
    for b in range(4): e(f'v_mov_b32 v{PA(b)}, {OOB}')
    for b in range(4): e(f's_mov_b32 s{96+b}, {3*XS}')
    e('s_mov_b32 s31, 0')
    e('s_mov_b32 s92, 0')
    e('s_mov_b32 s93, 0')
    e('s_cmp_ge_u32 s2, 125')
    e(f's_cselect_b32 s50, {2*21*XS - 125*1536}, 0')
    e('s_mul_i32 s51, s2, 1536')
    e('s_add_u32 s50, s50, 768')
    e('s_add_u32 s50, s50, s51')
    e(f's_add_u32 s51, s50, {3*XS}')
    e(f's_mov_b32 s35, {XL + (0 if opt["xpad"] else 64)}')
e('s_lshr_b32 s28, s26, 1')
e('s_cmp_eq_u32 s28, 2')
e('s_cbranch_scc1 Lp_w')
def xaddr(su, va, vd):
    e(f's_lshl_b32 s28, s{su}, 6')
    e('v_add_u32 v3, s28, v2')
    e('v_mul_u32_u24 v4, 683, v3')
    e('v_lshrrev_b32 v4, 16, v4')
    e('v_mul_u32_u24 v5, 96, v4')
    e('v_sub_u32 v3, v3, v5')
    e(f'v_mul_u32_u24 v{va}, 43, v3')
    e(f'v_lshrrev_b32 v{va}, 8, v{va}')
    e(f'v_mul_u32_u24 v{va}, {(2400 if opt["xpad"] else 2304)-96}, v{va}')
    e(f'v_lshl_add_u32 v{va}, v3, 4, v{va}')
    e(f'v_add3_u32 v{va}, v{va}, v5, s35')
    e('v_cmp_le_u32 vcc, 3, v4')
    e(f'v_mul_u32_u24 v{vd}, {XS}, v4')
    e(f'v_mov_b32 v5, {18*XS}')
    e(f'v_lshl_add_u32 v{vd}, v3, 4, v{vd}')
    e('v_cndmask_b32 v5, 0, v5, vcc')
    e(f'v_add_u32 v{vd}, v{vd}, v5')
def xpair(va, vd):
    for s in range(6): e(f'ds_read_b128 {vr(120+4*s)}, v{va} offset:{XOFF(s)}')
    for dw in range(4):
        for s in range(6):
            if dw == 0: e(f's_waitcnt lgkmcnt({5-s})')
            e(f'v_lshlrev_b32 v{148+2*s}, 16, v{120+4*s+dw}')
            e(f'v_and_b32 v{149+2*s}, s33, v{120+4*s+dw}')
        D = lambda s: 148+2*s
        pkfma(162, 46, D(2), D(4))
        pkfma(164, 46, D(3), D(5))
        pkfma(162, 44, D(0), 162)
        pkfma(164, 44, D(1), 164)
        pkfma(166, 48, 162, 164)
        pkfma(168, 48, 162, 164, nega=True)
        e(f'v_cvt_pk_bf16_f32 v{172+dw}, v166, v167')
        e(f'v_cvt_pk_bf16_f32 v{176+dw}, v168, v169')
    e(f'buffer_store_dwordx4 v[172:175], v{vd}, s[20:23], s50 offen sc1')
    e(f'buffer_store_dwordx4 v[176:179], v{vd}, s[20:23], s51 offen sc1')
def xrest(va, b):
    for s in range(7): e(f'ds_read_b128 {vr(120+4*s)}, v{va} offset:{XOFF(s)}')
    for dw in range(4):
        for s in range(7):
            if dw == 0: e(f's_waitcnt lgkmcnt({6-s})')
            e(f'v_lshlrev_b32 v{148+2*s}, 16, v{120+4*s+dw}')
            e(f'v_and_b32 v{149+2*s}, s33, v{120+4*s+dw}')
        D = lambda s: 148+2*s
        for t in range(2):
            q0, q1, aa = 36+6*t, 38+6*t, 40+6*t
            pkfma(162, q1, D(2), D(4))
            pkfma(164, q1, D(3), D(5))
            pkfma(162, q0, D(0), 162)
            pkfma(164, q0, D(1), 164)
            pkfma(166, aa, 162, 164)
            pkfma(168, aa, 162, 164, nega=True)
            e(f'v_cvt_pk_bf16_f32 v{PK(b,2*t)+dw}, v166, v167')
            e(f'v_cvt_pk_bf16_f32 v{PK(b,2*t+1)+dw}, v168, v169')
        pkfma(162, 54, D(4), D(6))
        pkfma(162, 52, D(2), 162)
        pkfma(162, 48, D(0), 162)
        e(f'v_cvt_pk_bf16_f32 v{PK(b,4)+dw}, v162, v163')
for t in range(3):
    a = PTS[2*t]; q0 = BT[2*t][1]; q1 = BT[2*t][3]
    assert abs(BT[2*t][0] - a*q0) < 1e-12 and abs(BT[2*t][2] - a*q1) < 1e-12 and abs(BT[2*t][4]-a) < 1e-12
e('s_sub_u32 s27, s26, 2')
e('s_cmp_lt_u32 s26, 4')
e('s_cselect_b32 s27, s26, s27')
e('s_cmp_ge_u32 s2, 250')
e('s_cbranch_scc1 Lp_zero')
e('s_cmp_ge_u32 s2, 125')
e('s_cselect_b32 s24, 4608000, 0')
e('s_mul_i32 s28, s2, 36864')
e('s_sub_u32 s28, s28, s24')
if opt['xpad']:
    e('s_sub_u32 s28, s28, 2304')
    e('s_mul_i32 s29, s27, 768')
    e('s_add_u32 s28, s28, s29')
    e('s_cmp_ge_u32 s27, 3')
    e('s_cselect_b32 s30, 96, 0')
    e('s_add_u32 s29, s29, s30')
    e('v_lshlrev_b32 v6, 4, v2')
    e('v_add_u32 v6, s28, v6')
    e(f's_mov_b32 s14, {0 if opt["skx"] else 4608000}')
    e('s_mov_b32 s15, 0x00020000')
    e(f's_add_u32 m0, s29, {XL}')
    e('s_mov_b32 exec_hi, 0xffff')
    e('s_waitcnt lgkmcnt(0)')
    e('s_add_u32 s12, s4, s24'); e('s_addc_u32 s13, s5, 0')
    e('s_and_b32 s13, s13, 0xffff')
    for i in range(9):
        if i == 8:
            e('s_cmp_ge_u32 s27, 3')
            e('s_cbranch_scc1 Lp_xl0')
        e(f'buffer_load_dwordx4 v6, s[12:15], 0 offen{LDF} lds')
        if i < 8:
            e(f's_add_u32 m0, s29, {XL + (i+1)*4800}')
            e('v_add_u32 v6, 4608, v6')
    lab('Lp_xl0')
    e('s_mov_b32 exec_hi, -1')
else:
    e('s_sub_u32 s28, s28, 1792')
    e('s_lshl_b32 s29, s27, 10')
    e('s_add_u32 s28, s28, s29')
    e('v_lshlrev_b32 v6, 4, v2')
    e('v_add_u32 v6, s28, v6')
    e(f's_mov_b32 s14, {0 if opt["skx"] else 4608000}')
    e('s_mov_b32 s15, 0x00020000')
    e(f's_add_u32 m0, s29, {XL}')
    e('s_waitcnt lgkmcnt(0)')
    e('s_add_u32 s12, s4, s24'); e('s_addc_u32 s13, s5, 0')
    e('s_and_b32 s13, s13, 0xffff')
    NX, SX = (10, 4096) if opt['x4'] else (7, 6144)
    if opt['x4']:
        e('s_cmp_ge_u32 s26, 4')
        e('s_cbranch_scc1 Lp_xl')
    for i in range(NX):
        if i == NX-1:
            e('s_cmp_ge_u32 s27, 2')
            e('s_cbranch_scc1 Lp_xl')
        e(f'buffer_load_dwordx4 v6, s[12:15], 0 offen{LDF} lds')
        if i < NX-1:
            e(f's_add_u32 m0, s29, {XL + (i+1)*SX}')
            e(f'v_add_u32 v6, {SX}, v6')
lab('Lp_xl')
common()
if opt['warm'] < 2:
    e('s_lshl_b32 s28, s2, 3')
    e('s_add_u32 s28, s28, s26')
    e(f's_cmp_lg_u32 s28, {6 if opt["x4"] else 0}')
    e('s_cbranch_scc1 Lp_x0')
    c('one wave of WG 0 publishes the launch tag in d_debug')
    e('s_memrealtime s[92:93]')
    e('s_waitcnt lgkmcnt(0)')
    e('s_or_b32 s92, s92, 1')
    e('v_mov_b32 v38, s92')
    e('v_mov_b32 v39, s93')
    e('s_mov_b64 exec, 1')
    e('buffer_store_dwordx2 v[38:39], v37, s[16:19], 0 offen sc1')
    e('s_mov_b64 exec, -1')
lab('Lp_x0')
c('pass-1 units: wave0:8 wave1:4,5 wave2:0,1 wave3:2,3 wave6:6 wave7:7')
e('s_lshl_b32 s28, s26, 2')
e('s_lshr_b32 s30, 0x76002048, s28')
e('s_and_b32 s30, s30, 15')
xaddr(30, 6, 7)
e('s_bitcmp1_b32 0x0e, s26')
e('s_addc_u32 s30, s30, 0')
xaddr(30, 14, 15)
sconst2(44, BT[0][1]); sconst2(46, BT[0][3]); sconst2(48, PTS[0])
if opt['tlb']:
    c('touch the workspace pages this wave is going to store to (address translation warm-up)')
    e('s_mov_b32 exec_lo, 1')
    e('s_mov_b32 exec_hi, 0x80000000')
    e('buffer_load_dword v108, v7, s[20:23], s50 offen sc1')
    e('buffer_load_dword v109, v7, s[20:23], s51 offen sc1')
    e('buffer_load_dword v110, v15, s[20:23], s50 offen sc1')
    e('buffer_load_dword v111, v15, s[20:23], s51 offen sc1')
    e('s_mov_b64 exec, -1')
stamp(7)
e(f's_waitcnt vmcnt({4 if opt["tlb"] else 0})')
stamp(8)
e('s_barrier')
stamp(1)
e('s_cmp_lg_u32 s26, 0')
e('s_cbranch_scc1 Lp_x1')
e('buffer_load_dwordx2 v[24:25], v37, s[16:19], 0 offen sc1')
lab('Lp_x1')
xpair(6, 7)
e('s_bitcmp1_b32 0x0e, s26')
e('s_cbranch_scc0 Lp_x2')
xpair(14, 15)
lab('Lp_x2')
if opt['es']: stamp(9)
e('s_cmp_ge_u32 s26, 4')
e('s_cbranch_scc1 Lp_h67')
lab('Lp_s2')
if opt['fl']:
    e('v_lshlrev_b32 v9, 4, v2')
    e('s_lshl_b32 s30, s2, 7')
    e(f's_add_u32 s30, s30, {FLAG_OFF+AFL}')
else:
    e(f'v_mul_u32_u24 v9, {RSTR}, v2')
    e('s_lshl_b32 s30, s2, 3')
    e(f's_add_u32 s30, s30, {FLAG_OFF}')
e('s_cmp_lg_u32 s26, 0')
e('s_cbranch_scc1 Lp_s2b')
e('s_cmp_ge_u32 s2, 250')
e('s_cbranch_scc1 L_taga')
e('s_waitcnt vmcnt(2)')
e('v_readfirstlane_b32 s92, v24')
e('v_readfirstlane_b32 s93, v25')
e('s_nop 3')
e('s_cmp_lg_u32 s92, 0')
e('s_cbranch_scc1 L_tagda')
gettag('a')
e('v_mov_b32 v38, s92')
e('v_mov_b32 v39, s93')
e('v_mov_b32 v40, s92')
e('v_mov_b32 v41, s93')
lab('Lp_s2b')
e('s_waitcnt vmcnt(0)')
if opt['es']: stamp(10)
e('s_barrier')
e('s_cmp_lg_u32 s26, 0')
e('s_cbranch_scc1 L_pdone')
if opt['fl']:
    e('s_mov_b64 exec, 0xff')
    e('buffer_store_dwordx4 v[38:41], v9, s[20:23], s30 offen sc1')
else:
    e(f's_mov_b64 exec, {(1<<REP)-1}')
    e('buffer_store_dwordx2 v[38:39], v9, s[20:23], s30 offen sc1')
e('s_mov_b64 exec, -1')
stamp(2)
e('s_branch L_pdone')
def xcoef2():
    for t in (1, 2):
        sconst2(36+6*(t-1), BT[2*t][1]); sconst2(38+6*(t-1), BT[2*t][3]); sconst2(40+6*(t-1), PTS[2*t])
    sconst2(48, BT[6][0]); sconst2(52, BT[6][2]); sconst2(54, BT[6][4])
    e(f's_add_u32 s34, s50, {6*XS}')
lab('Lp_h67')
c('waves 6,7 pass 2: own unit (block 1), then units 2(w-6), 2(w-6)+1 (blocks 2,3)')
xcoef2()
e(f'v_add_u32 v{PA(1)}, s34, v7')
if opt['early']: xrest(6, 1)
if opt['es']: stamp(3)
e('s_waitcnt vmcnt(0)')
if opt['es']: stamp(10)
e('s_barrier')
if not opt['early']: xrest(6, 1)
e('s_sub_u32 s30, s26, 6')
e('s_lshl_b32 s30, s30, 1')
lab('Lp_x23')
xaddr(30, 6, 7)
e(f'v_add_u32 v{PA(2)}, s34, v7')
xrest(6, 2)
e('s_add_u32 s30, s30, 1')
lab('Lp_x3')
xaddr(30, 6, 7)
e(f'v_add_u32 v{PA(3)}, s34, v7')
xrest(6, 3)
e('s_branch L_pdone')
lab('Lp_zero')
c('WGs 250,251: zero the 8 leading rows of the 42 arrays of batch b')
e('s_waitcnt lgkmcnt(0)')
common()
e('s_sub_u32 s3, s2, 250')
e(f's_mul_i32 s30, s3, {2*21*XS}')
e('s_lshl_b32 s28, s27, 6')
e('v_add_u32 v3, s28, v2')
for k in range(4): e(f'v_mov_b32 v{16+k}, 0')
for i in range(6):
    e('v_mul_u32_u24 v4, 1366, v3')
    e('v_lshrrev_b32 v4, 16, v4')
    e('v_mul_u32_u24 v5, 48, v4')
    e('v_sub_u32 v5, v3, v5')
    e(f'v_mul_u32_u24 v4, {XS}, v4')
    e('v_lshl_add_u32 v4, v5, 4, v4')
    e('v_cmp_gt_u32 vcc, 2016, v3')
    e(f'v_mov_b32 v5, {OOB}')
    e('v_add_u32 v3, 384, v3')
    e('v_cndmask_b32 v4, v5, v4, vcc')
    e('buffer_store_dwordx4 v[16:19], v4, s[20:23], s30 offen sc1')
if opt['warm']:
    c('pre-write the flag lines used later (full lines) so that the 8-byte flag stores hit in the memory-side cache')
    e('s_mul_i32 s30, s3, 6')
    e('s_add_u32 s30, s30, s27')
    e('s_lshl_b32 s30, s30, 11')
    e(f's_add_u32 s30, s30, {FLAG_OFF+FA}')
    e('v_lshlrev_b32 v4, 4, v2')
    e('buffer_store_dwordx4 v[16:19], v4, s[20:23], s30 offen sc1')
    e('buffer_store_dwordx4 v[16:19], v4, s[20:23], s30 offen offset:1024 sc1')
    assert 24*1024 <= GOF - FA and 24*1024 >= ZFL + 3584 - FA
    e('v_lshrrev_b32 v4, 3, v2')
    e('v_mul_u32_u24 v4, 4352, v4')
    e('v_and_b32 v5, 7, v2')
    e('v_lshl_add_u32 v4, v5, 4, v4')
    e(f's_mov_b32 s30, {FLAG_OFF+GOF}')
    e('buffer_store_dwordx4 v[16:19], v4, s[20:23], s30 offen sc1')
e('s_barrier')
e('s_branch Lp_s2')
lab('Lp_w')
e('s_and_b32 s27, s26, 1')
c('w unit: XCD x = id&7 owns a contiguous range of units; local i = id>>3 < 9 takes two')
e('s_and_b32 s28, s2, 7')
e('s_lshr_b32 s29, s2, 3')
e('s_mul_i32 s3, s28, 40')
e('s_min_u32 s30, s28, 4')
e('s_add_u32 s3, s3, s30')
e('s_add_u32 s3, s3, s29')
e('s_min_u32 s30, s29, 9')
e('s_add_u32 s3, s3, s30')
e('s_add_u32 s3, s3, s27')
e('s_mul_i32 s30, s27, s29')
e('s_cmp_ge_u32 s30, 9')
e('s_cbranch_scc1 Lp_wo')
def posdec(P, ko, pos, kk, o, tmp):
    e(f'v_mul_u32_u24 v{ko}, 58255, v{P}')
    e(f'v_lshrrev_b32 v{ko}, 22, v{ko}')
    e(f'v_mul_u32_u24 v{tmp}, 72, v{ko}')
    e(f'v_sub_u32 v{pos}, v{P}, v{tmp}')
    e(f'v_mul_u32_u24 v{kk}, 3641, v{ko}')
    e(f'v_lshrrev_b32 v{kk}, 16, v{kk}')
    e(f'v_mul_u32_u24 v{tmp}, 18, v{kk}')
    e(f'v_sub_u32 v{o}, v{ko}, v{tmp}')
G_ = lambda r, ch: 40+2*(8*r+ch)
e('s_lshl_b32 s28, s3, 5')
e('v_and_b32 v3, 31, v2')
e('v_add_u32 v4, s28, v3')
posdec(4, 5, 6, 7, 8, 9)
e(f'v_mul_u32_u24 v7, {4*82944}, v7')
e('v_mul_u32_u24 v8, 4608, v8')
e('v_lshrrev_b32 v9, 5, v2')
e('v_mul_u32_u24 v10, 288, v9')
e('v_add3_u32 v7, v7, v8, v10')
e('v_lshl_add_u32 v6, v6, 2, v7')
e('s_waitcnt lgkmcnt(0)')
srd(12, 6, 7, 0 if opt['skw'] else 31*144*288*2)
if opt['word']:
    for r in range(1, 4): e(f's_mov_b32 s{36+r}, {82944*r}')
    for ch in range(8):
        for r in range(4):
            e(f'buffer_load_dword v{G_(r,ch)+1}, v6, s[12:15], {"s%d" % (36+r) if r else 0} offen offset:{ch*576}{LDF}')
else:
  for r in range(4):
    for ch in range(8):
        e(f'buffer_load_dword v{G_(r,ch)+1}, v6, s[12:15], 0 offen offset:{ch*576}{LDF}')
    if r < 3: e('v_add_u32 v6, 82944, v6')
stamp(7)
common()
e('s_lshl_b32 s29, s27, 14')
e(f's_add_u32 s29, s29, {WL}')
e('v_lshlrev_b32 v10, 6, v3')
e('v_lshl_add_u32 v10, v9, 5, v10')
e('v_add_u32 v10, s29, v10')
e('v_lshlrev_b32 v11, 4, v2')
e('v_add_u32 v11, s29, v11')
for h in range(2):
    e('v_lshrrev_b32 v4, 2, v2')
    e(f'v_add3_u32 v4, v4, s28, {16*h}')
    posdec(4, 5, 6, 7, 8, 9)
    e('v_mul_u32_u24 v4, 43, v8')
    e('v_lshrrev_b32 v4, 8, v4')
    e('v_mul_u32_u24 v5, 6, v4')
    e('v_sub_u32 v5, v8, v5')
    e('v_lshrrev_b32 v8, 1, v7')
    e('v_add_u32 v8, 8, v8')
    e('v_and_b32 v9, 1, v7')
    e('v_lshl_add_u32 v9, v9, 1, v5')
    e('v_subrev_u32 v9, 4, v9')
    e('v_cmp_le_u32 vcc, 4, v5')
    e('v_mul_u32_u24 v4, 24576, v4')
    e('v_lshrrev_b32 v14, 3, v6')
    e('v_cndmask_b32 v8, v7, v8, vcc')
    e('v_cndmask_b32 v9, v5, v9, vcc')
    e(f'v_mul_u32_u24 v14, {21*24576}, v14')
    e('v_bfe_u32 v15, v6, 2, 1')
    e('v_mul_u32_u24 v15, 12288, v15')
    e(f'v_add3_u32 v{12+h}, v4, v14, v15')
    e(f'v_lshl_add_u32 v{12+h}, v8, 10, v{12+h}')
    e(f'v_lshl_add_u32 v{12+h}, v9, 8, v{12+h}')
    e('v_and_b32 v4, 3, v6')
    e(f'v_lshl_add_u32 v{12+h}, v4, 6, v{12+h}')
    e('v_and_b32 v4, 3, v2')
    e(f'v_lshl_add_u32 v{12+h}, v4, 4, v{12+h}')
def wcoef(t):
    for r in range(4):
        assert abs(GS[2*t+1][r] - (1 if r % 2 == 0 else -1)*GS[2*t][r]) < 1e-12
        e(f'v_mul_f32 v{160+2*r}, {fh(GS[2*t][r])}, v14')
        e(f'v_mov_b32 v{161+2*r}, v{160+2*r}')
e(f's_mov_b32 s34, {WT_OFF}')
e('v_cmp_le_u32 vcc, 32, v2')
e(f'v_mov_b32 v14, {fh(-2*LOG2E)}')
e(f'v_mov_b32 v15, {fh(-LOG2E)}')
e('v_cndmask_b32 v14, v14, v15, vcc')
e('v_mov_b32 v15, v14')
wcoef(0)
if opt['tlb']:
    e('s_mov_b32 exec_lo, 1')
    e('s_mov_b32 exec_hi, 0x80000001')
    e('buffer_load_dword v168, v12, s[20:23], s34 offen sc1')
    e('buffer_load_dword v169, v13, s[20:23], s34 offen sc1')
    e('s_mov_b64 exec, -1')
stamp(8)
e('s_barrier')
stamp(1)
e(f's_waitcnt vmcnt({2 if opt["tlb"] else 0})')
stamp(2)
for k in range(32):
    e(f'v_lshlrev_b32 v{40+2*k}, 16, v{41+2*k}')
    e(f'v_and_b32 v{41+2*k}, s33, v{41+2*k}')
e('s_mov_b32 s53, 0')
lab('Lp_wloop')
for dw in range(4):
    for c2 in range(2):
        ch = 2*dw+c2
        E, O = 104+4*c2, 106+4*c2
        e(f'v_pk_mul_f32 {vp(E)}, {vp(160)}, {vp(G_(0,ch))}')
        e(f'v_pk_mul_f32 {vp(O)}, {vp(162)}, {vp(G_(1,ch))}')
        e(f'v_pk_fma_f32 {vp(E)}, {vp(164)}, {vp(G_(2,ch))}, {vp(E)}')
        e(f'v_pk_fma_f32 {vp(O)}, {vp(166)}, {vp(G_(3,ch))}, {vp(O)}')
        pkadd(112+4*c2, O, E)
        pkadd(114+4*c2, E, O, negb=True)
    for sgn in range(2):
        for n in range(2):
            e(f'v_cvt_pk_bf16_f32 v{120+8*sgn+4*n+dw}, v{112+2*sgn+n}, v{116+2*sgn+n}')
for sgn in range(2):
    for n in range(2):
        e(f'ds_write_b128 v10, {vr(120+8*sgn+4*n)} offset:{sgn*2048 + n*16}')
e('s_add_u32 s53, s53, 1')
e('s_waitcnt lgkmcnt(0)')
e('v_add_u32 v10, 4096, v10')
e('s_cmp_eq_u32 s53, 3')
e('s_cbranch_scc1 Lp_w3')
e('s_cmp_eq_u32 s53, 1')
e('s_cbranch_scc1 Lp_w1')
wcoef(2)
if opt['early']:
    if opt['es']: stamp(3)
    e('s_waitcnt vmcnt(0)')
    if opt['es']: stamp(10)
    e('s_barrier')
e('s_branch Lp_wloop')
lab('Lp_w1')
for k in range(4): e(f'ds_read_b128 {vr(136+4*k)}, v11 offset:{k*1024}')
for k in range(4):
    e(f's_waitcnt lgkmcnt({3-k})')
    e(f'buffer_store_dwordx4 {vr(136+4*k)}, v{12+k%2}, s[20:23], s34 offen sc1')
    if k % 2 == 1: e(f's_add_u32 s34, s34, {3*24576}')
if opt['es']: stamp(9)
wcoef(1)
if not opt['early']:
    e('s_waitcnt vmcnt(0)')
    e('s_barrier')
e('s_branch Lp_wloop')
lab('Lp_w3')
for ch in range(8): e(f'v_pk_mul_f32 {vp(G_(3,ch))}, {vp(G_(3,ch))}, v[14:15]')
for n in range(2):
    for dw in range(4):
        e(f'v_cvt_pk_bf16_f32 v{120+4*n+dw}, v{G_(3,2*dw)+n}, v{G_(3,2*dw+1)+n}')
    e(f'ds_write_b128 v10, {vr(120+4*n)} offset:{n*16}')
e('s_waitcnt lgkmcnt(0)')
for k in range(10):
    e(f'ds_read_b128 {vr(PK(k % 2, k//2))}, v11 offset:{4096 + k*1024}')
e(f'v_add_u32 v{PA(0)}, s34, v12')
e(f'v_add_u32 v{PA(1)}, s34, v13')
e(f's_mov_b32 s96, {3*24576}')
e(f's_mov_b32 s97, {3*24576}')
e('s_waitcnt lgkmcnt(0)')
lab('Lp_wx')
c('then x pass 2: wave 4: unit 8 (block 3) ; wave 5: units 4,5 (blocks 2,3)')
e('s_cmp_ge_u32 s2, 250')
e('s_cbranch_scc1 L_pdone')
xcoef2()
e('s_mov_b32 s30, 8')
e('s_cmp_eq_u32 s26, 4')
e('s_cbranch_scc1 Lp_x3')
e('s_mov_b32 s30, 4')
e('s_branch Lp_x23')
lab('Lp_wo')
e('s_waitcnt lgkmcnt(0)')
common()
e('s_sub_u32 s3, s2, 72')
e('s_cmp_ge_u32 s3, 45')
e('s_cbranch_scc1 Lp_wo2')
srd(12, 8, 9, 144*144*2)
e('s_mul_i32 s28, s3, 13108')
e('s_lshr_b32 s28, s28, 16')
e('s_mul_i32 s29, s28, 5')
e('s_sub_u32 s29, s3, s29')
e('v_and_b32 v7, 15, v2')
e('v_lshrrev_b32 v8, 4, v2')
e('s_cmp_eq_u32 s28, 8')
e('s_cselect_b32 s30, 1, 4')
e('s_cselect_b32 s34, 256, 0')
e('s_cselect_b32 s28, 0, s28')
e('s_lshl_b32 s28, s28, 1')
e('s_add_u32 s34, s34, s28')
e(f's_mul_i32 s29, s29, {32*288}')
e('s_add_u32 s34, s34, s29')
e('v_lshlrev_b32 v9, s30, v7')
e('v_mul_u32_u24 v14, 576, v8')
e('v_add3_u32 v14, v14, v9, s34')
for d in range(4):
    e(f'buffer_load_ushort v{40+2*d}, v14, s[12:15], 0 offen')
    e(f'buffer_load_ushort v{41+2*d}, v14, s[12:15], 0 offen offset:288')
    if d < 3: e('v_add_u32 v14, 2304, v14')
e('s_lshl_b32 s3, s3, 10')
e(f's_add_u32 s3, s3, {WO_OFF}')
e('v_lshlrev_b32 v1, 4, v2')
e('s_barrier')
e('s_waitcnt vmcnt(0)')
for d in range(4):
    e(f'v_lshl_or_b32 v{48+d}, v{41+2*d}, 16, v{40+2*d}')
e('buffer_store_dwordx4 v[48:51], v1, s[20:23], s3 offen sc1')
e('s_waitcnt vmcnt(0)')
e('s_barrier')
e('s_branch Lp_wx')
lab('Lp_wo2')
if opt['warm'] == 2:
    e('s_cmp_lg_u32 s2, 200')
    e('s_cbranch_scc1 Lp_wo3')
    for k in range(4): e(f'v_mov_b32 v{40+k}, 0')
    e('v_lshlrev_b32 v4, 4, v2')
    e(f's_mov_b32 s30, {FLAG_OFF}')
    e('buffer_store_dwordx4 v[40:43], v4, s[20:23], s30 offen sc1')
    e('buffer_store_dwordx4 v[40:43], v4, s[20:23], s30 offen offset:1024 sc1')
    e('s_memrealtime s[92:93]')
    e('s_waitcnt lgkmcnt(0)')
    e('s_or_b32 s92, s92, 1')
    e('v_mov_b32 v38, s92')
    e('v_mov_b32 v39, s93')
    e('s_waitcnt vmcnt(0)')
    e('s_mov_b64 exec, 1')
    e('buffer_store_dwordx2 v[38:39], v37, s[16:19], 0 offen sc1')
    e('s_mov_b64 exec, -1')
    lab('Lp_wo3')
e('s_barrier')
e('s_barrier')
e('s_branch Lp_wx')

def M(t): return 12 + 4*t
def MD(t): return 48 + 4*t
def FR(k): return vr(84 + 4*k)
lab('L_pdone')
e('v_lshlrev_b32 v101, 4, v2')
e('v_min_u32 v36, 62, v2')
e('v_lshlrev_b32 v36, 5, v36')
e(f's_and_b32 s30, s2, {REP-1}')
e(f's_mul_i32 s30, s30, {RSTR}')
e('v_add_u32 v36, s30, v36')
e(f'v_mul_u32_u24 v12, {RSTR}, v2')
c('unit = base[xcd] + (id>>3)')
e('s_and_b32 s25, s2, 7')
e('s_lshr_b32 s24, s2, 3')
e('s_mul_i32 s27, s25, 31')
e('s_min_u32 s28, s25, 4')
e('s_add_u32 s27, s27, s28')
e('s_add_u32 s27, s27, s24')
e('s_mul_i32 s28, s27, 7282')
e('s_lshr_b32 s28, s28, 16')
e('s_mul_i32 s29, s28, 9')
e('s_sub_u32 s29, s27, s29')
e('s_and_b32 s24, s26, 3')
e('s_lshr_b32 s32, s24, 1')
e('s_and_b32 s33, s24, 1')
e('s_mul_i32 s34, s24, 7168')
e('s_mul_i32 s35, s24, 6144')
c('z soffset s62')
e('s_lshl_b32 s62, s28, 1')
e('s_add_u32 s62, s62, s32')
e(f's_mul_i32 s62, s62, {9*18*1024}')
e('s_lshl_b32 s63, s29, 1')
e('s_add_u32 s63, s63, s33')
e(f's_lshl_b32 s63, s63, {8 if opt["t2"] else 10}')
e('s_add_u32 s62, s62, s63')
e(f's_add_u32 s62, s62, {Z_OFF}')
if opt['gmap']:
    c('g = (b*7+gg)*2 + p')
    e('s_lshr_b32 s38, s28, 1')
    e('s_and_b32 s30, s28, 1')
    e('s_cmp_ge_u32 s38, 7')
    e('s_cselect_b32 s36, 7, 0')
    e('s_cselect_b32 s37, 2, 0')
    e('s_sub_u32 s38, s38, s36')
    e('s_add_u32 s30, s30, s37')
else:
    e('s_mul_i32 s30, s28, 9363')
    e('s_lshr_b32 s30, s30, 16')
    e('s_mul_i32 s38, s30, 7')
    e('s_sub_u32 s38, s28, s38')
e(f's_mul_i32 s36, s30, {21*XS}')
e('s_mul_i32 s37, s38, 27648')
e('s_add_u32 s36, s36, s37')
e('s_add_u32 s36, s36, s34')
e(f's_mul_i32 s37, s29, {21*24576}')
e('s_add_u32 s37, s37, s35')
e(f's_add_u32 s37, s37, {WT_OFF}')
c('last row group of a stream: do not fetch the never-written padding rows (KB 26 lanes >= 16, KB 27): v6, v7 = voffsets for those two chunks')
e('s_cmp_eq_u32 s38, 6')
e('s_cselect_b32 s60, 16, 64')
e('s_cselect_b32 s61, 0, 64')
e(f'v_mov_b32 v8, {OOB}')
e('v_cmp_gt_u32 vcc, s60, v2')
e('v_cmp_gt_u32 s[88:89], s61, v2')
e('s_nop 0')
e('v_cndmask_b32 v6, v8, v101, vcc')
e('v_cndmask_b32 v7, v8, v101, s[88:89]')
e('s_cmp_ge_u32 s26, 4')
e('s_cbranch_scc1 L_helper')
e('s_cmp_lg_u32 s26, 0')
e('s_cbranch_scc1 L_c13')
c('wave 0: wait for all A flags, then load the whole phase 0 tile')
if opt['agg']:
    e('s_cmp_lg_u32 s2, 0')
    e('s_cbranch_scc1 L_gow')
if opt['dly']: e(f's_sleep {opt["dly"]}')
if opt['fl']:
    for k in range(4):
        e(f'v_add_u32 v{42+k}, {64*k}, v2')
        e(f'v_min_u32 v{42+k}, 251, v{42+k}')
        e(f'v_lshlrev_b32 v{42+k}, 7, v{42+k}')
    e('v_lshrrev_b32 v46, 3, v2')
    e('v_mul_u32_u24 v46, 4352, v46')
    e('v_and_b32 v47, 7, v2')
    e('v_lshl_add_u32 v46, v47, 4, v46')
poll('A' if opt['fl'] else 0, 'A')
if opt['agg']:
    c('WG 0 saw all A flags: release everybody through 8 go words')
    e(f's_mov_b32 s30, {FLAG_OFF+GOF}')
    if opt['fl']:
        e('buffer_store_dwordx4 v[38:41], v46, s[20:23], s30 offen sc1')
    else:
        e('v_mul_u32_u24 v9, 4352, v2')
        e('s_mov_b64 exec, 0xff')
        e('buffer_store_dwordx2 v[38:39], v9, s[20:23], s30 offen sc1')
        e('s_mov_b64 exec, -1')
    e('s_branch L_god')
    lab('L_gow')
    e('s_mul_i32 s30, s25, 4352')
    e(f's_add_u32 s30, s30, {FLAG_OFF+GOF}')
    e('s_mov_b32 s31, 0')
    e('s_mov_b64 exec, 1')
    lab('L_gol')
    e('buffer_load_dwordx2 v[24:25], v37, s[20:23], s30 offen sc1')
    e('s_add_u32 s31, s31, 1')
    e('s_cmp_gt_u32 s31, 800000')
    e('s_cbranch_scc1 L_gox')
    e('s_waitcnt vmcnt(0)')
    e('v_cmp_ne_u64 vcc, s[92:93], v[24:25]')
    e('s_cbranch_vccz L_gox')
    e(f's_sleep {opt["gslp"]}')
    e('s_branch L_gol')
    lab('L_gox')
    e('s_mov_b64 exec, -1')
    lab('L_god')
stamp(3)
for k in range(52):
    if k % 4 == 0:
        e(f's_mov_b32 m0, {k*1024}')
        e(f's_add_u32 s30, s36, {k*1024}' if k < 28 else f's_add_u32 s30, s37, {(k-28)*1024}')
    e(f'buffer_load_dwordx4 v{ {26: 6, 27: 7}.get(k, 101) }, s[20:23], s30 offen offset:{(k%4)*1024} sc1 lds')
lab('L_c13')
e('s_barrier')
if opt['prio']: e(f's_setprio {opt["prio"]}')
e('v_and_b32 v124, 15, v2')
e('v_lshrrev_b32 v125, 4, v2')
e('v_mul_u32_u24 v126, 864, v124')
e('s_mul_i32 s38, s32, 13824')
e('v_add_u32 v126, s38, v126')
e('v_lshl_add_u32 v2, v125, 4, v126')
e('v_lshrrev_b32 v127, 1, v125')
e('v_mul_u32_u24 v127, 96, v127')
e('v_sub_u32 v127, v126, v127')
e('v_and_b32 v128, 1, v125')
e('v_lshl_add_u32 v127, v128, 4, v127')
e('v_add_u32 v5, 160, v127')
e('s_mul_i32 s38, s33, 12288')
e('s_add_u32 s38, s38, 28672')
e('v_add_u32 v8, s38, v101')
for s in (1, 2):
    e(f'v_add_u32 v{2+s}, {s*SLOT}, v2')
    e(f'v_add_u32 v{5+s}, {s*SLOT}, v5')
    e(f'v_add_u32 v{8+s}, {s*SLOT}, v8')
if opt['sn32']: e('v_lshrrev_b32 v101, 2, v101')
e(f's_add_u32 s38, s34, {2*SLOT}')
e('v_add_u32 v1, s38, v101')
e(f's_add_u32 s38, s35, {2*SLOT+28672}')
e('v_add_u32 v11, s38, v101')
for r in range(48, 84): e(f'v_mov_b32 v{r}, 0')

frags = []; mf = []
if opt['mord']:
    for t in range(9):
        for kk in range(7, -1, -1): mf.append((t, ('W', kk), ('X', t-kk)))
    for t in (range(8, -1, -1) if opt['tdesc'] else range(9)):
        for pp in (range(4) if opt['tdesc'] else range(3, -1, -1)): mf.append((t, ('WT', pp), ('XT', t-2*pp)))
else:
  for tp in range(-7, 9):
    for kk in range(min(7, 8-tp), max(0, -tp)-1, -1):
        mf.append((tp+kk, ('W', kk), ('X', tp)))
  for tp in range(-6, 9):
    for pp in range(3, -1, -1):
        if 0 <= tp+2*pp <= 8: mf.append((tp+2*pp, ('WT', pp), ('XT', tp)))
assert len(mf) == 108
fu = {}
for s, (t, wk, xk) in enumerate(mf):
    for k in (xk, wk):
        if k not in fu: fu[k] = s; frags.append(k)
assert len(frags) == 43
fidx = {k: i for i, k in enumerate(frags)}
LA = opt['LA']; BAR = 108 - LA; ELAST = BAR - 6
iss = [(-LA + (k*(ELAST+LA))//42) for k in range(43)]
if opt['mord']:
    iss = [-LA + (k*(LA-2))//16 for k in range(17)] + [1 + (k*(ELAST-1))//25 for k in range(26)]
    lu = {}
    for s, (t, wk, xk) in enumerate(mf): lu[wk] = s; lu[xk] = s
    for k in range(43): assert iss[k] + 108 > lu[frags[k]] + 1, (k, iss[k], lu[frags[k]])
for k in range(43): assert iss[k] <= fu[frags[k]] - 8, (k, iss[k], fu[frags[k]])
def rd(k, slot):
    kind, i = frags[k]
    if kind == 'X': return f'ds_read_b128 {FR(k)}, v{2+slot} offset:{(i+8)*96}'
    if kind == 'XT': return f'ds_read_b128 {FR(k)}, v{5+slot} offset:{(i+7)*96}'
    if kind == 'W': return f'ds_read_b128 {FR(k)}, v{8+slot} offset:{i*1024}'
    return f'ds_read_b128 {FR(k)}, v{8+slot} offset:{(8+i)*1024}'
npre = sum(1 for x in iss if x < 0)
first_touch = {}; last_touch = {}
for s, (t, wk, xk) in enumerate(mf):
    first_touch.setdefault(t, s); last_touch[t] = s
def snapw(t):
    if opt['sn32']:
        t, r = divmod(t, 4)
        return f'ds_write_b32 v1, v{MD(t)+r} offset:{t*1024+r*256}' if t < 7 else f'ds_write_b32 v11, v{MD(t)+r} offset:{(t-7)*1024+r*256}'
    return f'ds_write_b128 v1, {vr(MD(t))} offset:{t*1024}' if t < 7 else f'ds_write_b128 v11, {vr(MD(t))} offset:{(t-7)*1024}'
QS = opt['QS']
ext = [[] for _ in range(324)]
for ph in range(3):
    for k in range(43):
        ext[(ph*108 + iss[k]) % 324].append(('rd', k, ph))
used = [len(x) for x in ext]
lastw = 0
if opt['sn32']:
    for n in range(36):
        pos = max(216 + last_touch[n//4] + 8, lastw + 1)
        lastw = pos
        assert pos >= 216 + BAR and pos < 324 + QS - 2, pos
        ext[pos % 324].append(('wr', n, 0))
else:
  for t in sorted(range(9), key=lambda t: last_touch[t]):
    pos = max(216 + last_touch[t] + 8, lastw + opt['wsp'], 216 + BAR + 1)
    while used[pos % 324]: pos += 1
    lastw = pos
    used[pos % 324] += 1
    assert pos >= 216 + BAR and pos < 324 + QS - 2
    ext[pos % 324].append(('wr', t, 0))
e('s_waitcnt vmcnt(0)')
stamp(4)
e('s_barrier')
stamp(5)
if opt['dbgst']: e('s_memtime s[90:91]')
for k in range(npre): e(rd(k, 0))
e('s_mov_b32 s39, 7')
e('s_waitcnt lgkmcnt(0)')
out.append('.p2align 6')
for _ in range(opt['pad']): e('s_nop 0')
lab('L_loop')
seq = 0; rseq = {}; covered = -1; wseq = -1; sslot = []
for it in range(2):
    emit = e if it == 1 else (lambda s: None)
    for ph in range(3):
        if it == 1: c(f'======== phase {ph}')
        for s, (t, wk, xk) in enumerate(mf):
            if s == BAR:
                emit('s_waitcnt lgkmcnt(0)')
                emit('s_barrier')
                covered = seq - 1
            if ph == 0 and s == QS:
                if wseq > covered:
                    emit(f's_waitcnt lgkmcnt({min(15, seq-1-wseq)})')
                    covered = max(covered, seq - 1 - min(15, seq-1-wseq))
                emit('s_barrier')
            need = max(rseq.get((ph, fidx[wk]), -1), rseq.get((ph, fidx[xk]), -1))
            if need > covered:
                now = it*324 + ph*108 + s
                recent = sum(1 for x in sslot if x >= now - opt['lat'])
                allow = min(seq - 1 - need, recent, 15)
                emit(f's_waitcnt lgkmcnt({allow})')
                covered = seq - 1 - allow
            cin = vr(MD(t)) if (ph == 0 and first_touch[t] == s) else vr(M(t))
            dst = vr(MD(t)) if (ph == 2 and last_touch[t] == s) else vr(M(t))
            emit(f'v_mfma_f32_16x16x32_bf16 {dst}, {FR(fidx[wk])}, {FR(fidx[xk])}, {cin}')
            for x in ext[ph*108+s]:
                if x[0] == 'rd':
                    emit(rd(x[1], x[2])); rseq[(x[2], x[1])] = seq; seq += 1; sslot.append(it*324 + ph*108 + s)
                else:
                    emit(snapw(x[1])); wseq = seq; seq += 1; sslot.append(it*324 + ph*108 + s)
            if ph == 2 and s == 104: emit('s_sub_u32 s39, s39, 1')
            if ph == 2 and s == 105: emit('s_cmp_lg_u32 s39, 0')
e('s_cbranch_scc1 L_loop')
stamp(6)
if opt['dbgst']: e('s_memtime s[94:95]')
c('---- compute-wave epilogue: gate y3 = MD')
e('s_waitcnt lgkmcnt(0)')
if opt['tr']: e('s_barrier')
def gate_consts():
    e(f's_mov_b32 s46, {fh(-0.6931471805599453)}')
    e(f's_mov_b32 s42, {fh(2*LOG2E*2**-12)}')
    e('s_mov_b32 s43, 0x41f00000')
def gate(a, r, dst, sp):
    L = []
    L.append(f'v_min_f32 v{r}, s43, v{a}')
    L.append(f'v_min_f32 v{r+1}, s43, v{a+1}')
    L.append(f'v_exp_f32 v{a+2}, v{a+2}')
    L.append(f'v_exp_f32 v{a+3}, v{a+3}')
    L.append(f'v_exp_f32 v{r}, v{r}')
    L.append(f'v_exp_f32 v{r+1}, v{r+1}')
    if opt['smallfix']:
        L.append(f'v_cmp_gt_f32 s[{sp}:{sp+1}], s42, abs(v{a})')
        L.append(f'v_cmp_gt_f32 s[{sp+2}:{sp+3}], s42, abs(v{a+1})')
    L.append(f'v_add_f32 v{r+2}, 1.0, v{r}')
    L.append(f'v_add_f32 v{r+3}, 1.0, v{r+1}')
    if opt['smallfix']:
        L.append(f'v_mul_f32 v{a}, s46, v{a}')
        L.append(f'v_mul_f32 v{a+1}, s46, v{a+1}')
    L.append(f'v_fmac_f32 v{r+2}, v{r+2}, v{a+2}')
    L.append(f'v_fmac_f32 v{r+3}, v{r+3}, v{a+3}')
    L.append(f'v_sub_f32 v{r}, 1.0, v{r}')
    L.append(f'v_sub_f32 v{r+1}, 1.0, v{r+1}')
    L.append(f'v_rcp_f32 v{r+2}, v{r+2}')
    L.append(f'v_rcp_f32 v{r+3}, v{r+3}')
    if opt['smallfix']:
        L.append(f'v_cndmask_b32 v{r}, v{r}, v{a}, s[{sp}:{sp+1}]')
        L.append(f'v_cndmask_b32 v{r+1}, v{r+1}, v{a+1}, s[{sp+2}:{sp+3}]')
    L.append(f'v_mul_f32 v{r}, v{r}, v{r+2}')
    L.append(f'v_mul_f32 v{r+1}, v{r+1}, v{r+3}')
    L.append(f'v_cvt_pk_bf16_f32 v{dst}, v{r}, v{r+1}')
    return L
ool = []
def gate_check(As, tm, name):
    for k, a in enumerate(As):
        if k == 0:
            e(f'v_min_f32 v{tm}, abs(v{a}), abs(v{a+1})')
            e(f'v_max_f32 v{tm+1}, v{a}, v{a+1}')
        else:
            e(f'v_min3_f32 v{tm}, abs(v{a}), abs(v{a+1}), v{tm}')
            e(f'v_max3_f32 v{tm+1}, v{a}, v{a+1}, v{tm+1}')
    e(f'v_cmp_gt_f32 s[44:45], s42, v{tm}')
    e(f'v_cmp_lt_f32 vcc, s43, v{tm+1}')
    e(f's_cbranch_vccnz L_cl{name}')
    lab(f'L_clr{name}')
    L = [f'L_cl{name}:']
    for a in As:
        L += [f'    v_min_f32 v{a}, s43, v{a}', f'    v_min_f32 v{a+1}, s43, v{a+1}']
    L.append(f'    s_branch L_clr{name}')
    ool.extend(L)
def gate_fast(a, r, dst, name):
    e(f'v_exp_f32 v{r}, v{a}')
    e(f'v_exp_f32 v{r+1}, v{a+1}')
    e(f'v_exp_f32 v{a+2}, v{a+2}')
    e(f'v_exp_f32 v{a+3}, v{a+3}')
    e(f'v_add_f32 v{r+2}, 1.0, v{r}')
    e(f'v_add_f32 v{r+3}, 1.0, v{r+1}')
    e('s_cmp_lg_u64 s[44:45], 0')
    e(f'v_fmac_f32 v{r+2}, v{r+2}, v{a+2}')
    e(f'v_fmac_f32 v{r+3}, v{r+3}, v{a+3}')
    e(f'v_sub_f32 v{r}, 1.0, v{r}')
    e(f'v_sub_f32 v{r+1}, 1.0, v{r+1}')
    e(f'v_rcp_f32 v{r+2}, v{r+2}')
    e(f'v_rcp_f32 v{r+3}, v{r+3}')
    e(f's_cbranch_scc1 L_sm{name}')
    lab(f'L_smr{name}')
    e(f'v_mul_f32 v{r}, v{r}, v{r+2}')
    e(f'v_mul_f32 v{r+1}, v{r+1}, v{r+3}')
    e(f'v_cvt_pk_bf16_f32 v{dst}, v{r}, v{r+1}')
    ool.extend([f'L_sm{name}:',
        f'    v_cmp_gt_f32 s[48:49], s42, abs(v{a})',
        f'    v_cmp_gt_f32 s[50:51], s42, abs(v{a+1})',
        f'    v_mul_f32 v{a}, s46, v{a}',
        f'    v_mul_f32 v{a+1}, s46, v{a+1}',
        f'    v_cndmask_b32 v{r}, v{r}, v{a}, s[48:49]',
        f'    v_cndmask_b32 v{r+1}, v{r+1}, v{a+1}, s[50:51]',
        f'    s_branch L_smr{name}'])
gate_consts()
if opt['t2']:
    e('v_and_b32 v100, 63, v0')
    e('v_lshlrev_b32 v101, 2, v100')
    for t in range(9):
        e(f's_add_u32 s63, s62, {(t*4+3)*4608}')
        for x in gate(MD(t), 104 + 4*(t % 2), 112 + t, 48): e(x)
        e(f'buffer_store_dword v{112+t}, v101, s[20:23], s63 offen sc1')
else:
    e('v_and_b32 v100, 63, v0')
    e('v_lshlrev_b32 v101, 4, v100')
    e(f's_add_u32 s63, s62, {7*18432}')
    if opt['full']:
        e('s_lshl_b32 s40, s24, 10')
        e(f's_add_u32 s40, s40, {SLOT}')
        e('v_add_u32 v102, s40, v101')
        e('ds_read_b128 v[124:127], v102')
    for t in range(9):
        if opt['fast']:
            if t % 3 == 0: gate_check([MD(t), MD(t+1), MD(t+2)], 102, f'c{t}')
            gate_fast(MD(t), 104 + 4*(t % 2), 112 + t, f'c{t}')
        else:
            if opt['full'] and t == 8: e('s_waitcnt lgkmcnt(0)')
            for x in gate(MD(t), 104 + 4*(t % 2), (127 if opt['full'] and t == 8 else 112 + t), 48): e(x)
        if t in (3, 7):
            e(f'buffer_store_dwordx4 v[{112+t-3}:{112+t}], v101, s[20:23], s63 offen sc1')
            e('s_add_u32 s63, s63, 18432')
    e(f's_add_u32 s63, s62, {6*18432}')
    if opt['full']: e('buffer_store_dwordx4 v[124:127], v101, s[20:23], s63 offen sc1')
    else: e('buffer_store_dword v120, v101, s[20:23], s63 offen offset:12 sc1')
e('s_branch L_fin')
def hbar():
    if opt['bst']:
        e('s_memtime s[64:65]')
        e('s_barrier')
        e('s_memtime s[66:67]')
        e('s_waitcnt lgkmcnt(0)')
        e('s_mov_b32 m0, s68'); e('s_nop 0')
        e('v_writelane_b32 v14, s64, m0')
        e('v_writelane_b32 v15, s66, m0')
        e('s_add_u32 s68, s68, 1')
    else: e('s_barrier')
lab('L_helper')
if opt['bst']: e('s_mov_b32 s68, 0')
def Y(i, t): return 40 + 4*(i*9+t)
def SN(t): return 148 + 4*t
e('v_mov_b32 v3, v101')
e('v_add_u32 v13, 4096, v101')
e('v_add_u32 v6, 4096, v6')
e('v_add_u32 v7, 4096, v7')
e('s_cmp_eq_u32 s26, 7')
e('s_cselect_b64 vcc, -1, 0')
e('v_cndmask_b32 v6, v13, v6, vcc')
e('v_cndmask_b32 v7, v13, v7, vcc')
if opt['sn32']: e('v_lshrrev_b32 v101, 2, v101')
e(f's_add_u32 s38, s34, {2*SLOT}')
e('v_add_u32 v4, s38, v101')
e(f's_add_u32 s38, s35, {2*SLOT+28672}')
e('v_add_u32 v5, s38, v101')
e('s_cmp_eq_u32 s26, 4')
e('s_cbranch_scc1 L_h4')
e(f'v_mov_b32 v36, {OOB}')
e(f'v_mov_b32 v12, {OOB}')
e('s_branch L_h5')
lab('L_h4')
e('s_mov_b32 s31, 0')
gettag('h')
lab('L_h5')
e('v_mov_b32 v38, s92')
e('v_mov_b32 v39, s93')
def dma_list(slot):
    L = []
    for k in range(7):
        pre = [f's_add_u32 m0, s34, {slot*SLOT + (k//4)*4096}', 's_nop 0']
        L.append(pre + [f'buffer_load_dwordx4 v{(3,3,3,3,13,6,7)[k]}, s[20:23], s36 offen offset:{(k%4)*1024} sc1 lds'] + ([f's_add_u32 s36, s36, {XS}'] if k == 6 else []))
    for k in range(6):
        pre = [f's_add_u32 m0, s35, {slot*SLOT + 28672 + (k//4)*4096}', 's_nop 0']
        L.append(pre + [f'buffer_load_dwordx4 v{3 if k < 4 else 13}, s[20:23], s37 offen offset:{(k%4)*1024} sc1 lds'] + (['s_add_u32 s37, s37, 24576'] if k == 5 else []))
    return L
def pst(b, pm):
    return [f'buffer_store_dwordx4 {vr(PK(b,pm))}, v{PA(b)}, s[20:23], 0 offen sc1', f'v_add_u32 v{PA(b)}, s{96+b}, v{PA(b)}']
def weave(dl, sl):
    res = []; n = len(sl); m = len(dl)
    for i in range(m):
        res.append(dl[i])
        for k in range((i*n)//m, ((i+1)*n)//m): res.append(sl[k])
    return res
def mix(dl, vl):
    n = len(dl)
    for i, d in enumerate(dl):
        for x in d: e(x)
        for x in vl[(i*len(vl))//n:((i+1)*len(vl))//n]: e(x)
    if n == 0:
        for x in vl: e(x)
def nvm(dl, after):
    return len(dl) - 1 - after
def snapr():
    if opt['sn32']:
        for t in range(9):
            for h in range(2):
                o = (t if t < 7 else t-7)*4 + 2*h
                e(f'ds_read2st64_b32 {vp(SN(t)+2*h)}, v{4 if t < 7 else 5} offset0:{o} offset1:{o+1}')
            if t == 6: e('s_waitcnt lgkmcnt(4)')
        e('s_waitcnt lgkmcnt(0)')
        return
    for t in range(9):
        e(f'ds_read_b128 {vr(SN(t))}, v4 offset:{t*1024}' if t < 7 else f'ds_read_b128 {vr(SN(t))}, v5 offset:{(t-7)*1024}')
    e('s_waitcnt lgkmcnt(0)')
FM = [f'v_fmac_f32 v{Y(i,t)+r}, s{40+i}, v{SN(t)+r}' for t in range(9) for i in range(3) for r in range(4)]
def FMm(m):
    L = []
    for t in range(9):
        for i in range(3):
            if DCH[i][m] == 0: continue
            first = all(DCH[i][mm] == 0 for mm in range(m))
            for r in range(4): L.append(f'{"v_mul_f32" if first else "v_fmac_f32"} v{Y(i,t)+r}, s{40+i}, v{SN(t)+r}')
    return L
e(f's_add_u32 s36, s36, {XS}')
e('s_add_u32 s37, s37, 24576')
e('s_barrier')
mix(dma_list(1), [])
if opt['b1e'] == 1: mix([pst(b, 0) for b in range(4)], [])
c('coefficient table: s40.. = 3 x 6, consumed from the front')
for m in range(6):
    for i in range(3): e(f's_mov_b32 s{40+3*m+i}, {fh(DCH[i][m])}')
hbar()
if opt['b1e'] == 2: mix([pst(b, 0) for b in range(4)], [])
ND0 = opt['nd0']
def only4(name, fn):
    e('s_cmp_lg_u32 s26, 4')
    e(f's_cbranch_scc1 L_o4{name}')
    fn()
    lab(f'L_o4{name}')
def hflag(off):
    e('s_lshl_b32 s30, s2, 3')
    e(f's_add_u32 s30, s30, {FLAG_OFF+off}')
    e(f's_mov_b64 exec, {(1<<REP)-1}')
    e('buffer_store_dwordx2 v[38:39], v12, s[20:23], s30 offen sc1')
    e('s_mov_b64 exec, -1')
def hiter(name, fm, sa=(), sc_=(), flag0=None, flag1=None, chk=None):
    if chk is not None: poll_issue(chk)
    for g_ in sa:
        for x in g_: e(x)
    hbar()
    if fm: snapr()
    D2 = dma_list(2)
    mix(D2[:ND0], [])
    e(f's_waitcnt vmcnt({ND0 + len(sa)})')
    if chk is not None:
        def f():
            poll_check()
            e(f's_cbranch_scc0 L_o4c{name}')
            poll(chk, name, opt['fslp'])
        only4('c'+name, f)
    hbar()
    if flag0 is not None: hflag(flag0)
    mix(D2[ND0:] + dma_list(0), fm[:40])
    e('s_waitcnt vmcnt(13)')
    hbar()
    if flag1 is not None: hflag(flag1)
    mix(list(sc_) + dma_list(1), fm[40:])
    if fm:
        for k in range(15): e(f's_mov_b32 s{40+k}, s{43+k}')
    e(f's_waitcnt vmcnt({13 + len(sc_) + (1 if flag1 is not None else 0)})')
    hbar()
ST = [pst(b, pm) for pm in range(5) for b in range(4)]
if opt['b1e']: hiter('0', [], sc_=ST[4:8], flag0=1*FA)
else: hiter('0', [], sa=ST[0:4], sc_=ST[4:8], flag1=1*FA)
hiter('1', FMm(0), sa=ST[8:12], sc_=ST[12:16], flag0=2*FA, flag1=3*FA, chk=1*FA)
hiter('2', FMm(1), sa=ST[16:20], flag1=4*FA, chk=2*FA)
hiter('3', FMm(2), chk=3*FA)
hiter('4', FMm(3), chk=4*FA)
c('every WG has fetched the tag by now (all B flags seen): WG 0 puts d_debug back to zero')
e('s_lshl_b32 s30, s2, 3')
e('s_add_u32 s30, s30, s26')
e('s_cmp_lg_u32 s30, 4')
e('s_cbranch_scc1 L_nocl')
e('v_mov_b32 v24, 0')
e('v_mov_b32 v25, 0')
e('s_mov_b64 exec, 1')
e('buffer_store_dwordx2 v[24:25], v37, s[16:19], 0 offen sc1')
e('s_mov_b64 exec, -1')
lab('L_nocl')
hiter('5', FMm(4))
c('---- last product')
if opt['sw'] == 4: stamp(6)
hbar()
snapr()
F0 = opt['f0']
D2 = dma_list(2)
mix(D2[:ND0], FM[:F0])
e(f's_waitcnt vmcnt({ND0})')
hbar()
WD = []
for k in range(12):
    WD.append([f's_add_u32 m0, s61, {(k//4)*4096}', 's_nop 0', f'buffer_load_dwordx4 v3, s[20:23], s60 offen offset:{(k%4)*1024} sc1 lds'] + (['s_add_u32 s60, s60, 4096'] if k % 4 == 3 else []))
e('s_mul_i32 s61, s24, 12288')
e(f's_add_u32 s60, s61, {WO_OFF}')
mix(D2[ND0:] + WD, FM[F0:])
if opt['tlbo']:
    c('touch the output pages this WG will store to (address translation warm-up; the value is not used)')
    e('s_load_dwordx2 s[6:7], s[0:1], 24')
    e('s_cmp_ge_u32 s28, 14')
    e('s_cselect_b32 s30, 14, 0')
    e('s_cselect_b32 s31, 4608000, 0')
    e('s_sub_u32 s30, s28, s30')
    e(f's_mul_i32 s30, s30, {144*2304}')
    e('s_add_u32 s30, s30, s31')
    e('v_lshrrev_b32 v8, 4, v3')
    e('v_mul_u32_u24 v8, 20736, v8')
    e('s_waitcnt lgkmcnt(0)')
    srd(16, 6, 7, 9216000)
    e('s_mov_b64 exec, 0xffff')
    e('buffer_load_dword v10, v8, s[16:19], s30 offen')
    e('s_mov_b64 exec, -1')
gate_consts()
e('s_mov_b32 s63, s62')
nst = [0]
if opt['t2']:
    opt['full'] = 0
    e('v_lshrrev_b32 v9, 2, v3')
HORD = ([24, 25, 26] + list(range(24))) if opt['full'] else list(range(27))
def hgate(n0, n1):
    for n in HORD[n0:n1]:
        t, i = divmod(n, 3)
        if opt['fast']:
            if i == 0: gate_check([Y(0,t), Y(1,t), Y(2,t)], 192, f'h{n}')
            gate_fast(Y(i, t), 184 + 4*(n % 2), 200 + n, f'h{n}')
        else:
            for x in gate(Y(i, t), 184 + 4*(n % 2), 200 + n, 48): e(x)
        if opt['t2']:
            e(f's_add_u32 s63, s62, {(t*4+i)*4608}')
            e(f'buffer_store_dword v{200+n}, v9, s[20:23], s63 offen sc1'); nst[0] += 1
            continue
        if n % 4 == 3:
            e(f'buffer_store_dwordx4 v[{200+n-3}:{200+n}], v3, s[20:23], s63 offen sc1')
            e('s_add_u32 s63, s63, 18432'); nst[0] += 1
        if n == 26 and not opt['full']:
            e('buffer_store_dwordx3 v[224:226], v3, s[20:23], s63 offen sc1'); nst[0] += 1
g1 = opt['g1']; g2 = min(27, g1 + opt['g2'])
hgate(0, g1)
e(f's_waitcnt vmcnt({nst[0]+12+opt["tlbo"]})')
hbar()
if opt['full']:
    assert g1 >= 3
    e('s_lshl_b32 s40, s24, 10')
    e(f's_add_u32 s40, s40, {SLOT}')
    e('v_add_u32 v8, s40, v3')
    e('ds_write_b128 v8, v[224:227]')
hgate(g1, g2)
if opt['full']: e('s_waitcnt lgkmcnt(0)')
if opt['pbe']: e(f's_waitcnt vmcnt({nst[0]})')
hbar()
if opt['tr']:
    hgate(g2, opt['x1'])
    e(f's_waitcnt vmcnt({nst[0]-5})')
    e('s_barrier')
    e('s_lshl_b32 s30, s28, 7')
    e('s_lshl_b32 s31, s29, 3')
    e('s_add_u32 s30, s30, s31')
    e(f's_add_u32 s30, s30, {FLAG_OFF+ZFL}')
    e('s_mov_b64 exec, 1')
    e('buffer_store_dwordx2 v[38:39], v12, s[20:23], s30 offen sc1')
    e('s_mov_b64 exec, -1')
    hgate(opt['x1'], 27)
else:
    hgate(g2, 27)
if opt['bst']:
    e('s_memtime s[64:65]')
    e('s_waitcnt lgkmcnt(0)')
    e('s_mov_b32 m0, s68'); e('s_nop 0')
    e('v_writelane_b32 v14, s64, m0')
    e('v_writelane_b32 v15, s64, m0')
    e('s_cmp_lg_u32 s26, 4')
    e('s_cbranch_scc1 L_fin')
    e('s_mov_b32 s22, 0x10000000')
    e('s_lshl_b32 s33, s2, 9')
    e(f's_add_u32 s33, s33, {STAMP_OFF + (128<<10)*4}')
    e('v_lshrrev_b32 v1, 1, v3')
    e('buffer_store_dwordx2 v[14:15], v1, s[20:23], s33 offen')
if opt['t2']:
    assert opt['gmap']
    lab('L_fin')
    e('s_setprio 0')
    e('s_load_dwordx2 s[6:7], s[0:1], 24')
    if not opt['es']: stamp(7)
    e('v_and_b32 v2, 63, v0')
    e('v_lshlrev_b32 v3, 4, v2')
    e('v_lshlrev_b32 v4, 2, v2')
    e('v_add_u32 v6, 4096, v4')
    e('v_mov_b32 v37, 0')
    c('pair u = g>>1 ; this WG consumes (rh = g&1, tau = cg) of both parity groups ; wave = (parity, phase)')
    e('s_lshr_b32 s40, s28, 1')
    e('s_and_b32 s41, s28, 1')
    e('s_lshr_b32 s42, s26, 2')
    e('s_lshl_b32 s43, s40, 2')
    e('s_lshl_b32 s44, s42, 1')
    e('s_add_u32 s43, s43, s44')
    e('s_add_u32 s43, s43, s41')
    e('s_mul_i32 s43, s43, 9')
    e('s_add_u32 s43, s43, s29')
    e('s_lshl_b32 s43, s43, 2')
    e('s_add_u32 s43, s43, s24')
    e('s_mul_i32 s46, s43, 4608')
    e(f's_add_u32 s46, s46, {Z_OFF}')
    e('s_cmp_ge_u32 s40, 7')
    e('s_cselect_b32 s37, 4608000, 0')
    e('s_cselect_b32 s36, 7, 0')
    e('s_sub_u32 s32, s40, s36')
    e('s_lshl_b32 s32, s32, 1')
    e('s_add_u32 s32, s32, s41')
    e('s_mul_i32 s32, s32, 144')
    e('s_add_u32 s32, s32, s29')
    e('s_mul_i32 s33, s26, 18')
    e('s_add_u32 s32, s32, s33')
    e('s_mul_i32 s45, s32, 2304')
    e('s_waitcnt lgkmcnt(0)')
    e('s_add_u32 s6, s6, s37'); e('s_addc_u32 s7, s7, 0')
    srd(16, 6, 7, 4608000)
    c('LDS write addresses: j*2304 + row8*288 + col*16 / +256+col*2 ; j = 4*(lane>>4)+r')
    e('s_lshl_b32 s47, s24, 1')
    e('s_sub_u32 s47, s42, s47')
    e('s_add_u32 s47, s47, 6')
    e('s_mul_i32 s47, s47, 288')
    e(f's_add_u32 s47, s47, {SLOT}')
    e('v_lshrrev_b32 v7, 4, v2')
    e('v_mul_u32_u24 v7, 9216, v7')
    e('v_add_u32 v7, s47, v7')
    e('v_and_b32 v8, 15, v2')
    e('v_lshl_add_u32 v11, v8, 1, v7')
    e('v_lshl_add_u32 v10, v8, 4, v7')
    e('s_mul_i32 s48, s26, 4608')
    e(f's_add_u32 s48, s48, {SLOT}')
    e('v_add_u32 v12, s48, v3')
    e('v_add_u32 v13, s45, v3')
    e('v_add_u32 v14, 18432, v13')
    e('v_cmp_gt_u32 vcc, 16, v2')
    e('v_cmp_gt_u32 s[48:49], 32, v2')
    e('v_add_u32 v36, 4096, v14')
    e(f'v_mov_b32 v5, {OOB}')
    e('v_cndmask_b32 v15, v14, v13, vcc')
    e('v_cndmask_b32 v36, v5, v36, s[48:49]')
    e('v_mov_b32 v34, 0')
    e('v_mov_b32 v35, 0')
    e('s_mul_i32 s30, s41, 9')
    e('s_add_u32 s30, s30, s29')
    e('s_lshl_b32 s30, s30, 3')
    if opt['inbox']:
        c('every WG has a private 256-B inbox; a producer drops its tag into the 18 inboxes of its pair')
        e('s_mul_i32 s50, s40, 4608')
        e('s_add_u32 s30, s30, s50')
        e(f's_add_u32 s30, s30, {FLAG_OFF+AFL}')
        e('s_lshl_b32 s50, s27, 8')
        e(f's_add_u32 s50, s50, {FLAG_OFF+AFL}')
        e('v_lshlrev_b32 v37, 8, v2')
    else:
        e('s_lshl_b32 s50, s40, 8')
        e(f's_add_u32 s50, s50, {FLAG_OFF+ZFL}')
        e('s_add_u32 s30, s30, s50')
    def bf(f): return vr(76 + 4*f)
    def preB():
        for f in range(45):
            e(f'ds_read_b128 {bf(f)}, v3 offset:{f*1024}')
            if f % 12 == 11: e('s_waitcnt lgkmcnt(4)')
    e('v_min_u32 v5, 17, v2')
    e('v_lshlrev_b32 v5, 3, v5')
    e('s_mov_b32 s51, 0')
    if opt['pbe']: preB()
    e('s_waitcnt vmcnt(0)')
    e('s_barrier')
    if not opt['es']: stamp(8)
    e('s_cmp_lg_u32 s26, 4')
    e('s_cbranch_scc1 L_e1b')
    setflag([], 0x3ffff if opt['inbox'] else 1)
    lab('L_e1b')
    if not opt['pbe']: preB()
    e('s_cmp_lg_u32 s26, 4')
    e('s_cbranch_scc1 L_e2')
    lab('L_zpoll')
    e('buffer_load_dwordx2 v[8:9], v5, s[20:23], s50 offen sc1')
    e('s_add_u32 s51, s51, 1')
    e('s_cmp_gt_u32 s51, 400000')
    e('s_cbranch_scc1 L_e2')
    e('s_waitcnt vmcnt(0)')
    e('v_cmp_ne_u64 vcc, s[92:93], v[8:9]')
    e('s_cbranch_vccz L_e2')
    if opt['zslp']: e(f's_sleep {opt["zslp"]}')
    e('s_branch L_zpoll')
    lab('L_e2')
    e('s_barrier')
    if not opt['es']: stamp(9)
    for J in range(18):
        e(f'buffer_load_dword v{16+J}, v{4 if J < 16 else 6}, s[20:23], s46 offen offset:{(J%16)*256} sc1')
    e('s_waitcnt lgkmcnt(0)')
    for ks in range(5):
        e(f's_waitcnt vmcnt({max(0, 18-4*(ks+1))})')
        if ks == 0 and not opt['es']: stamp(10)
        for T in range(9):
            r = 40 + 4*T
            cin = '0' if ks == 0 else vr(r)
            e(f'v_mfma_f32_16x16x32_bf16 {vr(r)}, v[{16+4*ks}:{16+4*ks+3}], {bf(T*5+ks)}, {cin}')
    e('s_nop 7')
    e('s_nop 1')
    for r in range(4):
        d = 140 + 6*r
        A = lambda T: 40 + 4*T + r
        for h in range(4): e(f'v_cvt_pk_bf16_f32 v{d+h}, v{A(2*h)}, v{A(2*h+1)}')
        e(f'v_cvt_pk_bf16_f32 v{d+4}, v{A(8)}, v{A(8)}')
        e(f'ds_write_b128 v10, v[{d}:{d+3}] offset:{r*2304}')
        e(f'ds_write_b16 v11, v{d+4} offset:{r*2304+256}')
    e('s_waitcnt lgkmcnt(0)')
    e('s_barrier')
    for n in range(5): e(f'ds_read_b128 {vr(76+4*n)}, v12 offset:{n*1024}')
    for n in range(5):
        e(f's_waitcnt lgkmcnt({4-n})')
        va, off = ((13, 0), (13, 1024), (15, 2048), (14, 3072), (36, 0))[n]
        e(f'buffer_store_dwordx4 {vr(76+4*n)}, v{va}, s[16:19], 0 offen offset:{off}{OF[opt["of3"]]}')
else:
    lab('L_fin')
    e('s_setprio 0')
    e('s_load_dwordx2 s[6:7], s[0:1], 24')
    if not opt['es']: stamp(7)
    e('v_and_b32 v2, 63, v0')
    e('v_lshlrev_b32 v3, 4, v2')
    e('v_mov_b32 v37, 0')
    e('s_lshr_b32 s41, s26, 2')
    if opt['tr']:
        c('helpers take an early set, compute waves a late one')
        e('s_mul_i32 s40, s28, 18')
        e('s_add_u32 s40, s40, s29')
        e('s_add_u32 s42, s41, 4')
        e('s_cmp_ge_u32 s29, s42')
        e('s_cselect_b32 s42, 4, 0')
        e('s_add_u32 s40, s40, s42')
        e('s_cmp_eq_u32 s41, 0')
        e('s_cselect_b32 s42, 5, 0')
        e('s_add_u32 s40, s40, s42')
    else:
        e('s_lshl_b32 s40, s27, 1')
        e('s_add_u32 s40, s40, s41')
    e('s_mul_i32 s30, s40, 7282')
    e('s_lshr_b32 s30, s30, 16')
    e('s_mul_i32 s31, s30, 9')
    e('s_sub_u32 s31, s40, s31')
    if opt['gmap']:
        e('s_lshr_b32 s32, s30, 2')
        e('s_bfe_u32 s38, s30, 0x10001')
        e('s_and_b32 s33, s30, 1')
        e('s_cmp_ge_u32 s32, 7')
        e('s_cselect_b32 s37, 4608000, 0')
        e('s_cselect_b32 s36, 7, 0')
        e('s_sub_u32 s32, s32, s36')
        e('s_lshl_b32 s32, s32, 1')
        e('s_add_u32 s33, s33, s32')
    else:
        e('s_mul_i32 s32, s30, 4682')
        e('s_lshr_b32 s32, s32, 16')
        e('s_mul_i32 s33, s32, 14')
        e('s_sub_u32 s33, s30, s33')
        e('s_lshr_b32 s37, s32, 1')
        e('s_and_b32 s38, s32, 1')
        e('s_mul_i32 s37, s37, 4608000')
    e('s_waitcnt lgkmcnt(0)')
    e('s_add_u32 s6, s6, s37'); e('s_addc_u32 s7, s7, 0')
    srd(16, 6, 7, 4608000)
    e('s_mul_i32 s39, s33, 1152')
    e('s_add_u32 s39, s39, s38')
    e('s_add_u32 s39, s39, 6')
    e('s_lshl_b32 s45, s31, 2')
    e('s_add_u32 s45, s45, s24')
    e('s_mul_i32 s42, s45, 171')
    e('s_lshr_b32 s42, s42, 9')
    e('s_mul_i32 s43, s42, 3')
    e('s_sub_u32 s43, s45, s43')
    e('s_sub_u32 s44, s45, 28')
    e('s_cmp_ge_u32 s45, 27')
    e('s_cselect_b32 s42, s44, s42')
    e('s_cselect_b32 s43, 3, s43')
    e('s_cmp_eq_u32 s45, 27')
    e('s_cselect_b32 s42, 8, s42')
    e('s_lshl_b32 s42, s42, 3')
    e('s_lshl_b32 s43, s43, 1')
    e('s_add_u32 s42, s42, s39')
    e('s_sub_u32 s42, s42, s43')
    e('s_mul_i32 s45, s42, 288')
    e('v_lshrrev_b32 v7, 4, v2')
    e(f'v_mul_u32_u24 v7, {4*72*288}, v7')
    e('v_add_u32 v7, s45, v7')
    e('v_and_b32 v8, 15, v2')
    e('v_lshl_add_u32 v11, v8, 1, v7')
    e('v_lshl_add_u32 v10, v8, 4, v7')
    def bf(f): return vr(76 + 4*f)
    def preB():
        for f in range(45):
            e(f'ds_read_b128 {bf(f)}, v3 offset:{f*1024}')
            if f % 12 == 11: e('s_waitcnt lgkmcnt(4)')
    def zpoll(name):
        e('v_min_u32 v5, 8, v2')
        e('v_lshlrev_b32 v5, 3, v5')
        e('s_mov_b32 s51, 0')
        lab(f'L_zp{name}')
        e('buffer_load_dwordx2 v[8:9], v5, s[20:23], s50 offen sc1')
        e('s_add_u32 s51, s51, 1')
        e('s_cmp_gt_u32 s51, 400000')
        e(f's_cbranch_scc1 L_zd{name}')
        e('s_waitcnt vmcnt(0)')
        e('v_cmp_ne_u64 vcc, s[92:93], v[8:9]')
        e(f's_cbranch_vccz L_zd{name}')
        e('s_sleep 1')
        e(f's_branch L_zp{name}')
        lab(f'L_zd{name}')
    if opt['tr']:
        e('s_mul_i32 s46, s40, 18432')
        e('s_lshl_b32 s47, s24, 10')
        e('s_add_u32 s46, s46, s47')
        e(f's_add_u32 s46, s46, {Z_OFF}')
        e('s_mul_i32 s48, s41, 18432')
        e(f's_add_u32 s48, s48, {SLOT}')
        e('s_add_u32 s47, s47, s48')
        e('s_lshl_b32 s49, s24, 2')
        e('s_add_u32 s48, s48, s49')
        e('v_add_u32 v4, s48, v3')
        e('v_mov_b32 v34, 0')
        e('v_mov_b32 v35, 0')
        e('s_lshl_b32 s50, s28, 7')
        e(f's_add_u32 s50, s50, {FLAG_OFF+ZFL}')
        def zdma(name):
            for i in range(5):
                if i == 4:
                    e('s_cmp_ge_u32 s24, 2')
                    e(f's_cbranch_scc1 L_zm{name}')
                e(f's_add_u32 m0, s47, {i*4096}')
                e('s_nop 0')
                e('buffer_load_dwordx4 v3, s[20:23], s46 offen sc1 lds')
                if i < 4: e('s_add_u32 s46, s46, 4096')
            lab(f'L_zm{name}')
        e('s_cmp_lt_u32 s26, 4')
        e('s_cbranch_scc1 L_fc')
        c('---- helpers: early set')
        e('s_cmp_lg_u32 s26, 4')
        e('s_cbranch_scc1 L_zdh')
        zpoll('h')
        e('s_waitcnt vmcnt(0)')
        e('s_barrier')
        if not opt['es']: stamp(8)
        zdma('h')
        preB()
        e('s_waitcnt vmcnt(0) lgkmcnt(0)')
        e('s_barrier')
        stamp(9)
        e('s_branch L_gemm')
        lab('L_fc')
        c('---- compute waves: late set')
        e('s_add_u32 s50, s50, 4096')
        e('s_waitcnt vmcnt(0)')
        e('s_barrier')
        if not opt['es']: stamp(8)
        e('s_cmp_lg_u32 s26, 0')
        e('s_cbranch_scc1 L_fc1')
        setflag(['s_lshl_b32 s30, s29, 3', 's_add_u32 s30, s30, s50'])
        lab('L_fc1')
        preB()
        e('s_cmp_lg_u32 s26, 0')
        e('s_cbranch_scc1 L_zdc')
        zpoll('c')
        e('s_barrier')
        stamp(9)
        zdma('c')
        e('s_waitcnt vmcnt(0) lgkmcnt(0)')
        e('s_barrier')
        stamp(10)
        lab('L_gemm')
    else:
        e('s_mul_i32 s46, s27, 36864')
        e('s_lshl_b32 s47, s26, 10')
        e('s_add_u32 s46, s46, s47')
        e(f's_add_u32 s46, s46, {Z_OFF}')
        e('s_mul_i32 s48, s41, 18432')
        e('s_lshl_b32 s49, s24, 2')
        e('s_add_u32 s48, s48, s49')
        e(f's_add_u32 s48, s48, {SLOT}')
        e('v_add_u32 v4, s48, v3')
        e('v_mov_b32 v34, 0')
        e('v_mov_b32 v35, 0')
        if opt['fl']:
            for k in range(4): e(f'v_mov_b32 v{36+k}, s{92+k%2}')
            e('s_mul_i32 s50, s28, 1152')
            e(f's_add_u32 s50, s50, {FLAG_OFF+ZF2}')
            e('s_lshl_b32 s30, s27, 7')
            e(f's_add_u32 s30, s30, {FLAG_OFF+ZF2}')
        e('s_waitcnt vmcnt(0)')
        e('s_barrier')
        if not opt['es']: stamp(8)
        def bf(f): return vr(76 + 4*f)
        def preB():
            for f in range(45):
                e(f'ds_read_b128 {bf(f)}, v3 offset:{f*1024}')
                if f % 12 == 11: e('s_waitcnt lgkmcnt(4)')
        e('s_cmp_lg_u32 s26, 4')
        e('s_cbranch_scc1 L_e1b')
        if opt['fl']:
            e('s_mov_b64 exec, 0xff')
            e('buffer_store_dwordx4 v[36:39], v3, s[20:23], s30 offen sc1')
            e('s_mov_b64 exec, -1')
        else:
            e('s_lshl_b32 s50, s28, 7')
            e(f's_add_u32 s50, s50, {FLAG_OFF+ZFL}')
            setflag(['s_lshl_b32 s30, s29, 3', 's_add_u32 s30, s30, s50'])
        lab('L_e1b')
        preB()
        e('s_cmp_lg_u32 s26, 4')
        e('s_cbranch_scc1 L_e2')
        e('v_min_u32 v5, 8, v2')
        e(f'v_lshlrev_b32 v5, {7 if opt["fl"] else 3}, v5')
        e('s_mov_b32 s51, 0')
        lab('L_zpoll')
        e('buffer_load_dwordx2 v[8:9], v5, s[20:23], s50 offen sc1')
        e('s_add_u32 s51, s51, 1')
        e('s_cmp_gt_u32 s51, 400000')
        e('s_cbranch_scc1 L_e2')
        e('s_waitcnt vmcnt(0)')
        e('v_cmp_ne_u64 vcc, s[92:93], v[8:9]')
        e('s_cbranch_vccz L_e2')
        e('s_sleep 1')
        e('s_branch L_zpoll')
        lab('L_e2')
        e('s_barrier')
        stamp(9)
        for i in range(5):
            if i == 4:
                e('s_cmp_ge_u32 s26, 4')
                e('s_cbranch_scc1 L_e3')
            e(f's_add_u32 m0, s47, {SLOT + i*8192}')
            e('s_nop 0')
            e('buffer_load_dwordx4 v3, s[20:23], s46 offen sc1 lds')
            if i < 4: e('s_add_u32 s46, s46, 8192')
        lab('L_e3')
        e('s_waitcnt vmcnt(0) lgkmcnt(0)')
        e('s_barrier')
        stamp(10)
    if opt['stamps']: e('s_waitcnt lgkmcnt(0)')
    for J in range(14): e(f'ds_read_b32 v{16+J}, v4 offset:{J*1024}')
    for ks in range(5):
        if ks == 0: e('s_waitcnt lgkmcnt(10)')
        if ks == 1: e('s_waitcnt lgkmcnt(10)')
        if ks == 2: e('s_waitcnt lgkmcnt(6)')
        if ks == 3: e('s_waitcnt lgkmcnt(2)')
        if ks == 4: e('s_waitcnt lgkmcnt(0)')
        for T in range(9):
            r = 40 + 4*T
            cin = '0' if ks == 0 else vr(r)
            e(f'v_mfma_f32_16x16x32_bf16 {vr(r)}, v[{16+4*ks}:{16+4*ks+3}], {bf(T*5+ks)}, {cin}')
            if ks == 0 and T < 4: e(f'ds_read_b32 v{30+T}, v4 offset:{(14+T)*1024}')
    if opt['tr']:
        e('s_cmp_lt_u32 s26, 4')
        e('s_cbranch_scc1 L_ne3')
        e('s_barrier')
        lab('L_ne3')
    e('s_nop 7')
    e('s_nop 1')
    if opt['trip']:
        e('s_memrealtime s[66:67]')
        e('s_waitcnt lgkmcnt(0)')
        e('s_sub_u32 s66, s66, s64')
        e(f's_sub_u32 s66, s66, {opt["trip"]}')
        e(f's_cmp_lt_u32 s66, {opt["tlo"] - opt["trip"]}')
        e('s_cselect_b32 s66, 1.0, 0')
        e('s_cmp_eq_u32 s2, 100')
        e('s_cselect_b32 s66, s66, 0')
        e('v_add_f32 v40, s66, v40')
    if opt['fake']:
        e('s_cmp_ge_u32 s27, 126')
        e('s_cselect_b32 s45, 126, 0')
        e('s_sub_u32 s45, s27, s45')
        e('s_mul_i32 s45, s45, 36864')
        e('s_mul_i32 s44, s26, 4608')
        e('s_add_u32 s45, s45, s44')
        e('v_add_u32 v10, s45, v3')
        for r in range(4):
            d = 140 + 6*r
            A = lambda T: 40 + 4*T + r
            for h in range(4): e(f'v_cvt_pk_bf16_f32 v{d+h}, v{A(2*h)}, v{A(2*h+1)}')
            e(f'v_cvt_pk_bf16_f32 v{d+4}, v{A(8)}, v{A(8)}')
            e(f'buffer_store_dwordx4 v[{d}:{d+3}], v10, s[16:19], 0 offen offset:{r*1024}{OF[opt["of"]]}')
    else:
      for r in range(4):
          d = 140 + 6*r
          A = lambda T: 40 + 4*T + r
          for h in range(4): e(f'v_cvt_pk_bf16_f32 v{d+h}, v{A(2*h)}, v{A(2*h+1)}')
          e(f'v_cvt_pk_bf16_f32 v{d+4}, v{A(8)}, v{A(8)}')
          e(f'buffer_store_dwordx4 v[{d}:{d+3}], v10, s[16:19], 0 offen{OF[opt["of"]]}')
          e(f'buffer_store_short v{d+4}, v11, s[16:19], 0 offen offset:256{OF[opt["of2"]]}')
          if r < 3:
              e(f'v_add_u32 v10, {72*288}, v10')
              e(f'v_add_u32 v11, {72*288}, v11')
if opt['dead2']:
    e('s_cmp_eq_u32 s92, 0')
    e('s_cbranch_scc1 L_end')
    lab('L_dl2')
    e('s_memrealtime s[66:67]')
    e('s_waitcnt lgkmcnt(0)')
    e('s_sub_u32 s66, s66, s92')
    e(f's_cmp_lt_u32 s66, {opt["dead2"]}')
    e('s_cbranch_scc1 L_dl2')
if opt['dead']:
    if opt['devt']:
        e(f's_cmp_lg_u32 s26, {opt["dw"]}')
        e('s_cbranch_scc1 L_end')
    e('s_waitcnt vmcnt(0)')
    lab('L_dl')
    e('s_memrealtime s[66:67]')
    e('s_waitcnt lgkmcnt(0)')
    e('s_sub_u32 s66, s66, s64')
    e(f's_cmp_lt_u32 s66, {opt["dead"]}')
    e('s_cbranch_scc1 L_dl')
if opt['stamps']:
    e('s_waitcnt vmcnt(0)')
    stamp(11)
    e('s_waitcnt lgkmcnt(0)')
    e(f's_cmp_lg_u32 s26, {opt["sw"]}')
    e('s_cbranch_scc1 L_end')
    if opt['dbgst']:
        e(f's_cmp_lg_u32 s2, {opt["dbgst"]}')
        e('s_cbranch_scc1 L_end')
        e('s_load_dwordx2 s[56:57], s[0:1], 32')
        e('s_waitcnt lgkmcnt(0)')
        srd(16, 56, 57, 256)
        e('v_mov_b32 v1, 0')
        for i in range(1, 12):
            e(f's_sub_u32 s33, s{64+2*i}, s64')
            e('v_mov_b32 v4, s33')
            e(f'buffer_store_dword v4, v1, s[16:19], 0 offen offset:{4+4*i}')
        e('s_sub_u32 s33, s94, s90')
        e('v_mov_b32 v4, s33')
        e('buffer_store_dword v4, v1, s[16:19], 0 offen offset:56')
        e('s_branch L_end')
    e('s_mov_b32 s22, 0x10000000')
    e('s_lshl_b32 s33, s2, 7')
    e(f's_add_u32 s33, s33, {STAMP_OFF}')
    e('v_mov_b32 v1, s33')
    for i in range(6):
        for k in range(4): e(f'v_mov_b32 v{4+k}, s{64+4*i+k}')
        e(f'buffer_store_dwordx4 v[4:7], v1, s[20:23], 0 offen offset:{16*i}')
        e('s_nop 1')
lab('L_end')
e('s_endpgm')
out.extend(ool)
tail = f"""
.section .rodata,"a"
.p2align 6
.amdhsa_kernel {NAME}_kernel
  .amdhsa_next_free_vgpr 256
  .amdhsa_next_free_sgpr 100
  .amdhsa_accum_offset 256
  .amdhsa_group_segment_fixed_size 0
  .amdhsa_kernarg_size 48
  .amdhsa_user_sgpr_count 2
  .amdhsa_user_sgpr_kernarg_segment_ptr 1
  .amdhsa_system_sgpr_workgroup_id_x 1
.end_amdhsa_kernel
"""
open(sys.argv[1], 'w').write(hdr + '\n'.join(out) + '\n' + tail)
```

```python
import sys, struct
import numpy as np
from f44 import matrices, PTS
NAME = 'standalone__autoregressive_conv_wavenet__speech'
opt = dict(stamps=0, LA=26, smallfix=1, ldf=0, QS=28, prio=1, g1=5, g2=7, bst=0, nd0=7, wsp=5, f0=30, slp=1, cpf=3, sw=4, dly=0, pf=0, early=1, dbgst=0, rep=1, rstr=4352, pre=0, shr=1, agg=1, gslp=2, es=0, word=1, skx=0, skw=0, of=0, of2=0, gmap=1, trip=0, tlo=0, fast=0, sn32=0, lat=9, b1e=2, fslp=6, pad=0, mord=1, tdesc=0, tr=0, x1=24, full=1, fl=0, wso=0, dead=0, fake=0, t2=1, of3=2, dead2=0, pbe=0, zslp=1, inbox=0, warm=0, xpad=0, devt=0, dw=0, x4=1, tlb=0, tlbo=0, wpf=1)
for a in sys.argv[2:]:
    k, v = a.split('='); assert k in opt, k; opt[k] = int(v)
out = []
def e(s): out.append('    ' + s)
def lab(s): out.append(s + ':')
def c(s): out.append('    ; ' + s)
def fh(x): return '0x%08x' % struct.unpack('<I', struct.pack('<f', float(x)))[0]
AT, G, BT = matrices()
GS = G.copy()
for m in range(6): GS[m] *= PTS[m]**3
CH = np.zeros((3, 7))
for i in range(3):
    for m in range(6): CH[i][m] = PTS[m]**(i-3)
DCH = CH[:, :6] - CH[:, 1:7]
LOG2E = 1.4426950408889634
LDF = {0: '', 1: ' nt'}[opt['ldf']]
OF = {0:'', 1:' nt', 2:' sc1', 3:' sc0 sc1'}
PRF = {1: ' sc1', 2: '', 3: ' sc0 sc1'}.get(opt['pre'], '')
PF_ = {0: ' sc1', 1: ' sc0 sc1', 2: ' sc1 nt', 3: ' sc0 sc1 nt'}[opt['pf']]
XROWS = 2032
XS = XROWS*96
U_BYTES = 4*21*XS
WT_OFF = U_BYTES
WT_BYTES = 9*21*24576
Z_OFF = WT_OFF + WT_BYTES
Z_BYTES = 28*2*9*18*1024
FLAG_OFF = Z_OFF + Z_BYTES
REP = opt['rep']; RSTR = opt['rstr']; FA = REP*RSTR
ZFL = 5*FA
GOF = ZFL + 8192
AFL = (GOF + 8*4352 + 1023)//1024*1024
ZF2 = AFL + 32768
WO_OFF = FLAG_OFF + ZF2 + 32768
WS_USED = WO_OFF + 45*1024
STAMP_OFF = 268435456 - (1 << 20)
SLOT = 53248
XL = 2*SLOT + 8192
WL = SLOT
LDS_MAIN = 3*SLOT
OOB = 0x7f000000
hdr = f"""; Kernarg layout for this problem (48 bytes, ptrs only, base s[0:1]):
; Algorithm: the dilation-2 causal conv splits into 4 independent streams (batch, time parity); each is evaluated with an
; exact F(4,4) Toom-Cook reformulation (7 products of 8 taps per 4 outputs, points +-a,+-b,+-c,inf), fp32 accumulation.
; @launch grid=(252,1,1) block=(512,1,1) lds={LDS_MAIN}
.amdgcn_target "amdgcn-amd-amdhsa--gfx950"
.text
.globl {NAME}_kernel
.p2align 8
.type {NAME}_kernel,@function
{NAME}_kernel:
"""
def srd(d, lo, hi, nbytes):
    e(f's_mov_b32 s{d}, s{lo}')
    e(f's_and_b32 s{d+1}, s{hi}, 0xffff')
    e(f's_mov_b32 s{d+2}, {nbytes}')
    e(f's_mov_b32 s{d+3}, 0x00020000')
def vp(r): return f'v[{r}:{r+1}]'
def vr(r): return f'v[{r}:{r+3}]'
def pkfma(d, sc, a, b, nega=False):
    neg = ' neg_lo:[0,1,0] neg_hi:[0,1,0]' if nega else ''
    e(f'v_pk_fma_f32 {vp(d)}, s[{sc}:{sc+1}], {vp(a)}, {vp(b)}{neg}')
def pkadd(d, a, b, negb=False):
    neg = ' neg_lo:[0,1] neg_hi:[0,1]' if negb else ''
    e(f'v_pk_add_f32 {vp(d)}, {vp(a)}, {vp(b)}{neg}')
def sconst2(s, x):
    e(f's_mov_b32 s{s}, {fh(x)}'); e(f's_mov_b32 s{s+1}, {fh(x)}')
def stamp(i):
    if opt['stamps']: e(f's_memrealtime s[{64+2*i}:{65+2*i}]')
    elif opt['devt'] == i and i: e('s_memrealtime s[64:65]')
def PK(b, pm):
    n = pm*4 + b
    return 184 + 4*n if n < 18 else 16 + 4*(n-18)
PA = lambda b: 32 + b
def XOFF(s):
    if opt['xpad']: return (2400 + (6-2*s)*288) if s <= 3 else (14-2*s)*288
    return (12-2*s)*288
PT = 24

def gettag(name):
    lab(f'L_tag{name}')
    e('buffer_load_dwordx2 v[24:25], v37, s[16:19], 0 offen sc1')
    e('s_add_u32 s31, s31, 1')
    e('s_cmp_gt_u32 s31, 400000')
    e(f's_cbranch_scc1 L_tagd{name}')
    e('s_waitcnt vmcnt(0)')
    e('v_readfirstlane_b32 s92, v24')
    e('v_readfirstlane_b32 s93, v25')
    e('s_nop 3')
    e('s_cmp_eq_u32 s92, 0')
    e(f's_cbranch_scc1 L_tag{name}')
    lab(f'L_tagd{name}')
def setflag(pre, mask=1):
    for x in pre: e(x)
    e('v_mov_b32 v38, s92')
    e('v_mov_b32 v39, s93')
    e(f's_mov_b64 exec, {mask}')
    e('buffer_store_dwordx2 v[38:39], v37, s[20:23], s30 offen sc1')
    e('s_mov_b64 exec, -1')
def poll_issue(off):
    if off == 'A':
        e(f's_mov_b32 s30, {FLAG_OFF+AFL}')
        for k in range(4): e(f'buffer_load_dwordx2 {vp(PT+2*k)}, v{42+k}, s[20:23], s30 offen sc1')
        return
    e(f's_mov_b32 s30, {FLAG_OFF+off}')
    e(f'buffer_load_dwordx4 {vr(PT)}, v36, s[20:23], s30 offen{PF_}')
    e(f'buffer_load_dwordx4 {vr(PT+4)}, v36, s[20:23], s30 offen offset:16{PF_}')
def poll_check():
    e(f'v_cmp_ne_u64 vcc, s[92:93], {vp(PT)}')
    for k in range(1, 4):
        e(f'v_cmp_ne_u64 s[88:89], s[92:93], {vp(PT+2*k)}')
        e('s_or_b64 vcc, vcc, s[88:89]')
def poll(off, name, slp=None):
    e('s_mov_b32 s31, 0')
    lab(f'L_poll{name}')
    poll_issue(off)
    e('s_add_u32 s31, s31, 1')
    e('s_cmp_gt_u32 s31, 400000')
    e(f's_cbranch_scc1 L_pdone{name}')
    e('s_waitcnt vmcnt(0)')
    poll_check()
    e(f's_cbranch_scc0 L_pdone{name}')
    if opt['shr']: e('s_mov_b64 exec, vcc')
    e(f's_sleep {opt["slp"] if slp is None else slp}')
    e(f's_branch L_poll{name}')
    lab(f'L_pdone{name}')
    if opt['shr']: e('s_mov_b64 exec, -1')

e('s_cmp_ge_u32 s2, 252')
e('s_cbranch_scc1 L_end')
if opt['stamps']:
    for i in range(24): e(f's_mov_b32 s{64+i}, 0')
stamp(0)
if opt['trip'] or opt['dead']: e('s_memrealtime s[64:65]')
e('s_load_dwordx4 s[4:7], s[0:1], 0')
e('s_load_dwordx2 s[8:9], s[0:1], 16')
e('s_load_dwordx4 s[56:59], s[0:1], 32')
e('v_lshrrev_b32 v1, 6, v0')
e('v_and_b32 v2, 63, v0')
e('v_readfirstlane_b32 s26, v1')
if opt['cpf']:
    c('pull the kernel code towards L2 first (1 KB per participating wave)')
    e('s_getpc_b64 s[44:45]')
    lab('L_pc')
    if opt['cpf'] == 1:
        e('s_lshl_b32 s42, s2, 10')
        e('s_and_b32 s42, s42, 0x6000')
        e('v_lshlrev_b32 v102, 4, v0')
    elif opt['cpf'] == 2:
        e('s_lshl_b32 s42, s2, 7')
        e('s_and_b32 s42, s42, 0x7c00')
        e('v_lshlrev_b32 v102, 4, v2')
        e('v_lshl_add_u32 v102, v1, 20, v102')
    else:
        e('s_lshl_b32 s42, s2, 8')
        e('s_and_b32 s42, s42, 0x7800')
        e('v_lshlrev_b32 v102, 4, v0')
        e('v_lshrrev_b32 v103, 1, v1')
        e('v_lshl_add_u32 v102, v103, 20, v102')
    e('s_and_b32 s45, s45, 0xffff')
    e('s_mov_b32 s46, L_end-L_pc')
    e('s_mov_b32 s47, 0x00020000')
    e(f'buffer_load_dwordx4 {vr(180)}, v102, s[44:47], s42 offen')
else: e('s_nop 1')
def common():
    if opt['wso']:
        e(f's_add_u32 s58, s58, {opt["wso"] << 20}')
        e('s_addc_u32 s59, s59, 0')
    srd(20, 58, 59, WS_USED)
    srd(16, 56, 57, 256)
    e('s_mov_b32 s33, 0xffff0000')
    e('v_mov_b32 v37, 0')
    for b in range(4): e(f'v_mov_b32 v{PA(b)}, {OOB}')
    for b in range(4): e(f's_mov_b32 s{96+b}, {3*XS}')
    e('s_mov_b32 s31, 0')
    e('s_mov_b32 s92, 0')
    e('s_mov_b32 s93, 0')
    e('s_cmp_ge_u32 s2, 125')
    e(f's_cselect_b32 s50, {2*21*XS - 125*1536}, 0')
    e('s_mul_i32 s51, s2, 1536')
    e('s_add_u32 s50, s50, 768')
    e('s_add_u32 s50, s50, s51')
    e(f's_add_u32 s51, s50, {3*XS}')
    e(f's_mov_b32 s35, {XL + (0 if opt["xpad"] else 64)}')
e('s_lshr_b32 s28, s26, 1')
e('s_cmp_eq_u32 s28, 2')
e('s_cbranch_scc1 Lp_w')
def xaddr(su, va, vd):
    e(f's_lshl_b32 s28, s{su}, 6')
    e('v_add_u32 v3, s28, v2')
    e('v_mul_u32_u24 v4, 683, v3')
    e('v_lshrrev_b32 v4, 16, v4')
    e('v_mul_u32_u24 v5, 96, v4')
    e('v_sub_u32 v3, v3, v5')
    e(f'v_mul_u32_u24 v{va}, 43, v3')
    e(f'v_lshrrev_b32 v{va}, 8, v{va}')
    e(f'v_mul_u32_u24 v{va}, {(2400 if opt["xpad"] else 2304)-96}, v{va}')
    e(f'v_lshl_add_u32 v{va}, v3, 4, v{va}')
    e(f'v_add3_u32 v{va}, v{va}, v5, s35')
    e('v_cmp_le_u32 vcc, 3, v4')
    e(f'v_mul_u32_u24 v{vd}, {XS}, v4')
    e(f'v_mov_b32 v5, {18*XS}')
    e(f'v_lshl_add_u32 v{vd}, v3, 4, v{vd}')
    e('v_cndmask_b32 v5, 0, v5, vcc')
    e(f'v_add_u32 v{vd}, v{vd}, v5')
def xpair(va, vd):
    for s in range(6): e(f'ds_read_b128 {vr(120+4*s)}, v{va} offset:{XOFF(s)}')
    for dw in range(4):
        for s in range(6):
            if dw == 0: e(f's_waitcnt lgkmcnt({5-s})')
            e(f'v_lshlrev_b32 v{148+2*s}, 16, v{120+4*s+dw}')
            e(f'v_and_b32 v{149+2*s}, s33, v{120+4*s+dw}')
        D = lambda s: 148+2*s
        pkfma(162, 46, D(2), D(4))
        pkfma(164, 46, D(3), D(5))
        pkfma(162, 44, D(0), 162)
        pkfma(164, 44, D(1), 164)
        pkfma(166, 48, 162, 164)
        pkfma(168, 48, 162, 164, nega=True)
        e(f'v_cvt_pk_bf16_f32 v{172+dw}, v166, v167')
        e(f'v_cvt_pk_bf16_f32 v{176+dw}, v168, v169')
    e(f'buffer_store_dwordx4 v[172:175], v{vd}, s[20:23], s50 offen sc1')
    e(f'buffer_store_dwordx4 v[176:179], v{vd}, s[20:23], s51 offen sc1')
def xrest(va, b):
    for s in range(7): e(f'ds_read_b128 {vr(120+4*s)}, v{va} offset:{XOFF(s)}')
    for dw in range(4):
        for s in range(7):
            if dw == 0: e(f's_waitcnt lgkmcnt({6-s})')
            e(f'v_lshlrev_b32 v{148+2*s}, 16, v{120+4*s+dw}')
            e(f'v_and_b32 v{149+2*s}, s33, v{120+4*s+dw}')
        D = lambda s: 148+2*s
        for t in range(2):
            q0, q1, aa = 36+6*t, 38+6*t, 40+6*t
            pkfma(162, q1, D(2), D(4))
            pkfma(164, q1, D(3), D(5))
            pkfma(162, q0, D(0), 162)
            pkfma(164, q0, D(1), 164)
            pkfma(166, aa, 162, 164)
            pkfma(168, aa, 162, 164, nega=True)
            e(f'v_cvt_pk_bf16_f32 v{PK(b,2*t)+dw}, v166, v167')
            e(f'v_cvt_pk_bf16_f32 v{PK(b,2*t+1)+dw}, v168, v169')
        pkfma(162, 54, D(4), D(6))
        pkfma(162, 52, D(2), 162)
        pkfma(162, 48, D(0), 162)
        e(f'v_cvt_pk_bf16_f32 v{PK(b,4)+dw}, v162, v163')
for t in range(3):
    a = PTS[2*t]; q0 = BT[2*t][1]; q1 = BT[2*t][3]
    assert abs(BT[2*t][0] - a*q0) < 1e-12 and abs(BT[2*t][2] - a*q1) < 1e-12 and abs(BT[2*t][4]-a) < 1e-12
e('s_sub_u32 s27, s26, 2')
e('s_cmp_lt_u32 s26, 4')
e('s_cselect_b32 s27, s26, s27')
e('s_cmp_ge_u32 s2, 250')
e('s_cbranch_scc1 Lp_zero')
e('s_cmp_ge_u32 s2, 125')
e('s_cselect_b32 s24, 4608000, 0')
e('s_mul_i32 s28, s2, 36864')
e('s_sub_u32 s28, s28, s24')
if opt['xpad']:
    e('s_sub_u32 s28, s28, 2304')
    e('s_mul_i32 s29, s27, 768')
    e('s_add_u32 s28, s28, s29')
    e('s_cmp_ge_u32 s27, 3')
    e('s_cselect_b32 s30, 96, 0')
    e('s_add_u32 s29, s29, s30')
    e('v_lshlrev_b32 v6, 4, v2')
    e('v_add_u32 v6, s28, v6')
    e(f's_mov_b32 s14, {0 if opt["skx"] else 4608000}')
    e('s_mov_b32 s15, 0x00020000')
    e(f's_add_u32 m0, s29, {XL}')
    e('s_mov_b32 exec_hi, 0xffff')
    e('s_waitcnt lgkmcnt(0)')
    e('s_add_u32 s12, s4, s24'); e('s_addc_u32 s13, s5, 0')
    e('s_and_b32 s13, s13, 0xffff')
    for i in range(9):
        if i == 8:
            e('s_cmp_ge_u32 s27, 3')
            e('s_cbranch_scc1 Lp_xl0')
        e(f'buffer_load_dwordx4 v6, s[12:15], 0 offen{LDF} lds')
        if i < 8:
            e(f's_add_u32 m0, s29, {XL + (i+1)*4800}')
            e('v_add_u32 v6, 4608, v6')
    lab('Lp_xl0')
    e('s_mov_b32 exec_hi, -1')
else:
    e('s_sub_u32 s28, s28, 1792')
    e('s_lshl_b32 s29, s27, 10')
    e('s_add_u32 s28, s28, s29')
    e('v_lshlrev_b32 v6, 4, v2')
    e('v_add_u32 v6, s28, v6')
    e(f's_mov_b32 s14, {0 if opt["skx"] else 4608000}')
    e('s_mov_b32 s15, 0x00020000')
    e(f's_add_u32 m0, s29, {XL}')
    e('s_waitcnt lgkmcnt(0)')
    e('s_add_u32 s12, s4, s24'); e('s_addc_u32 s13, s5, 0')
    e('s_and_b32 s13, s13, 0xffff')
    NX, SX = (10, 4096) if opt['x4'] else (7, 6144)
    if opt['x4']:
        e('s_cmp_ge_u32 s26, 4')
        e('s_cbranch_scc1 ' + ('Lp_wpf' if opt['wpf'] else 'Lp_xl'))
    for i in range(NX):
        if i == NX-1:
            e('s_cmp_ge_u32 s27, 2')
            e('s_cbranch_scc1 Lp_xl')
        e(f'buffer_load_dwordx4 v6, s[12:15], 0 offen{LDF} lds')
        if i < NX-1:
            e(f's_add_u32 m0, s29, {XL + (i+1)*SX}')
            e(f'v_add_u32 v6, {SX}, v6')
if opt['x4'] and opt['wpf']:
    e('s_branch Lp_xl')
    lab('Lp_wpf')
    c('waves 6,7: pull this XCD-share of w into L2 with full-line loads (the w waves then gather from L2)')
    e('s_and_b32 s28, s2, 7')
    e('s_mul_i32 s28, s28, 331776')
    e('s_lshr_b32 s29, s2, 3')
    e('s_lshl_b32 s29, s29, 1')
    e('s_add_u32 s29, s29, s26')
    e('s_sub_u32 s29, s29, 6')
    e('s_mul_i32 s29, s29, 5248')
    e('s_add_u32 s28, s28, s29')
    srd(12, 6, 7, 31*144*288*2)
    e('v_lshlrev_b32 v6, 4, v2')
    e('v_add_u32 v7, 4096, v6')
    for k in range(4): e(f'buffer_load_dwordx4 {vr(184+4*k)}, v6, s[12:15], s28 offen offset:{k*1024}')
    e(f'buffer_load_dwordx4 {vr(200)}, v7, s[12:15], s28 offen')
    e('s_mov_b64 exec, 0xff')
    e(f'buffer_load_dwordx4 {vr(204)}, v7, s[12:15], s28 offen offset:1024')
    e('s_mov_b64 exec, -1')
lab('Lp_xl')
common()
if opt['warm'] < 2:
    e('s_lshl_b32 s28, s2, 3')
    e('s_add_u32 s28, s28, s26')
    e(f's_cmp_lg_u32 s28, {6 if opt["x4"] else 0}')
    e('s_cbranch_scc1 Lp_x0')
    c('one wave of WG 0 publishes the launch tag in d_debug')
    e('s_memrealtime s[92:93]')
    e('s_waitcnt lgkmcnt(0)')
    e('s_or_b32 s92, s92, 1')
    e('v_mov_b32 v38, s92')
    e('v_mov_b32 v39, s93')
    e('s_mov_b64 exec, 1')
    e('buffer_store_dwordx2 v[38:39], v37, s[16:19], 0 offen sc1')
    e('s_mov_b64 exec, -1')
lab('Lp_x0')
c('pass-1 units: wave0:8 wave1:4,5 wave2:0,1 wave3:2,3 wave6:6 wave7:7')
e('s_lshl_b32 s28, s26, 2')
e('s_lshr_b32 s30, 0x76002048, s28')
e('s_and_b32 s30, s30, 15')
xaddr(30, 6, 7)
e('s_bitcmp1_b32 0x0e, s26')
e('s_addc_u32 s30, s30, 0')
xaddr(30, 14, 15)
sconst2(44, BT[0][1]); sconst2(46, BT[0][3]); sconst2(48, PTS[0])
if opt['tlb']:
    c('touch the workspace pages this wave is going to store to (address translation warm-up)')
    e('s_mov_b32 exec_lo, 1')
    e('s_mov_b32 exec_hi, 0x80000000')
    e('buffer_load_dword v108, v7, s[20:23], s50 offen sc1')
    e('buffer_load_dword v109, v7, s[20:23], s51 offen sc1')
    e('buffer_load_dword v110, v15, s[20:23], s50 offen sc1')
    e('buffer_load_dword v111, v15, s[20:23], s51 offen sc1')
    e('s_mov_b64 exec, -1')
stamp(7)
e(f's_waitcnt vmcnt({4 if opt["tlb"] else 0})')
stamp(8)
e('s_barrier')
stamp(1)
e('s_cmp_lg_u32 s26, 0')
e('s_cbranch_scc1 Lp_x1')
e('buffer_load_dwordx2 v[24:25], v37, s[16:19], 0 offen sc1')
lab('Lp_x1')
xpair(6, 7)
e('s_bitcmp1_b32 0x0e, s26')
e('s_cbranch_scc0 Lp_x2')
xpair(14, 15)
lab('Lp_x2')
if opt['es']: stamp(9)
e('s_cmp_ge_u32 s26, 4')
e('s_cbranch_scc1 Lp_h67')
lab('Lp_s2')
if opt['fl']:
    e('v_lshlrev_b32 v9, 4, v2')
    e('s_lshl_b32 s30, s2, 7')
    e(f's_add_u32 s30, s30, {FLAG_OFF+AFL}')
else:
    e(f'v_mul_u32_u24 v9, {RSTR}, v2')
    e('s_lshl_b32 s30, s2, 3')
    e(f's_add_u32 s30, s30, {FLAG_OFF}')
e('s_cmp_lg_u32 s26, 0')
e('s_cbranch_scc1 Lp_s2b')
e('s_cmp_ge_u32 s2, 250')
e('s_cbranch_scc1 L_taga')
e('s_waitcnt vmcnt(2)')
e('v_readfirstlane_b32 s92, v24')
e('v_readfirstlane_b32 s93, v25')
e('s_nop 3')
e('s_cmp_lg_u32 s92, 0')
e('s_cbranch_scc1 L_tagda')
gettag('a')
e('v_mov_b32 v38, s92')
e('v_mov_b32 v39, s93')
e('v_mov_b32 v40, s92')
e('v_mov_b32 v41, s93')
lab('Lp_s2b')
e('s_waitcnt vmcnt(0)')
if opt['es']: stamp(10)
e('s_barrier')
e('s_cmp_lg_u32 s26, 0')
e('s_cbranch_scc1 L_pdone')
if opt['fl']:
    e('s_mov_b64 exec, 0xff')
    e('buffer_store_dwordx4 v[38:41], v9, s[20:23], s30 offen sc1')
else:
    e(f's_mov_b64 exec, {(1<<REP)-1}')
    e('buffer_store_dwordx2 v[38:39], v9, s[20:23], s30 offen sc1')
e('s_mov_b64 exec, -1')
stamp(2)
e('s_branch L_pdone')
def xcoef2():
    for t in (1, 2):
        sconst2(36+6*(t-1), BT[2*t][1]); sconst2(38+6*(t-1), BT[2*t][3]); sconst2(40+6*(t-1), PTS[2*t])
    sconst2(48, BT[6][0]); sconst2(52, BT[6][2]); sconst2(54, BT[6][4])
    e(f's_add_u32 s34, s50, {6*XS}')
lab('Lp_h67')
c('waves 6,7 pass 2: own unit (block 1), then units 2(w-6), 2(w-6)+1 (blocks 2,3)')
xcoef2()
e(f'v_add_u32 v{PA(1)}, s34, v7')
if opt['early']: xrest(6, 1)
if opt['es']: stamp(3)
e('s_waitcnt vmcnt(0)')
if opt['es']: stamp(10)
e('s_barrier')
if not opt['early']: xrest(6, 1)
e('s_sub_u32 s30, s26, 6')
e('s_lshl_b32 s30, s30, 1')
lab('Lp_x23')
xaddr(30, 6, 7)
e(f'v_add_u32 v{PA(2)}, s34, v7')
xrest(6, 2)
e('s_add_u32 s30, s30, 1')
lab('Lp_x3')
xaddr(30, 6, 7)
e(f'v_add_u32 v{PA(3)}, s34, v7')
xrest(6, 3)
e('s_branch L_pdone')
lab('Lp_zero')
c('WGs 250,251: zero the 8 leading rows of the 42 arrays of batch b')
e('s_waitcnt lgkmcnt(0)')
common()
e('s_sub_u32 s3, s2, 250')
e(f's_mul_i32 s30, s3, {2*21*XS}')
e('s_lshl_b32 s28, s27, 6')
e('v_add_u32 v3, s28, v2')
for k in range(4): e(f'v_mov_b32 v{16+k}, 0')
for i in range(6):
    e('v_mul_u32_u24 v4, 1366, v3')
    e('v_lshrrev_b32 v4, 16, v4')
    e('v_mul_u32_u24 v5, 48, v4')
    e('v_sub_u32 v5, v3, v5')
    e(f'v_mul_u32_u24 v4, {XS}, v4')
    e('v_lshl_add_u32 v4, v5, 4, v4')
    e('v_cmp_gt_u32 vcc, 2016, v3')
    e(f'v_mov_b32 v5, {OOB}')
    e('v_add_u32 v3, 384, v3')
    e('v_cndmask_b32 v4, v5, v4, vcc')
    e('buffer_store_dwordx4 v[16:19], v4, s[20:23], s30 offen sc1')
if opt['warm']:
    c('pre-write the flag lines used later (full lines) so that the 8-byte flag stores hit in the memory-side cache')
    e('s_mul_i32 s30, s3, 6')
    e('s_add_u32 s30, s30, s27')
    e('s_lshl_b32 s30, s30, 11')
    e(f's_add_u32 s30, s30, {FLAG_OFF+FA}')
    e('v_lshlrev_b32 v4, 4, v2')
    e('buffer_store_dwordx4 v[16:19], v4, s[20:23], s30 offen sc1')
    e('buffer_store_dwordx4 v[16:19], v4, s[20:23], s30 offen offset:1024 sc1')
    assert 24*1024 <= GOF - FA and 24*1024 >= ZFL + 3584 - FA
    e('v_lshrrev_b32 v4, 3, v2')
    e('v_mul_u32_u24 v4, 4352, v4')
    e('v_and_b32 v5, 7, v2')
    e('v_lshl_add_u32 v4, v5, 4, v4')
    e(f's_mov_b32 s30, {FLAG_OFF+GOF}')
    e('buffer_store_dwordx4 v[16:19], v4, s[20:23], s30 offen sc1')
e('s_barrier')
e('s_branch Lp_s2')
lab('Lp_w')
e('s_and_b32 s27, s26, 1')
c('w unit: XCD x = id&7 owns a contiguous range of units; local i = id>>3 < 9 takes two')
e('s_and_b32 s28, s2, 7')
e('s_lshr_b32 s29, s2, 3')
e('s_mul_i32 s3, s28, 40')
e('s_min_u32 s30, s28, 4')
e('s_add_u32 s3, s3, s30')
e('s_add_u32 s3, s3, s29')
e('s_min_u32 s30, s29, 9')
e('s_add_u32 s3, s3, s30')
e('s_add_u32 s3, s3, s27')
e('s_mul_i32 s30, s27, s29')
e('s_cmp_ge_u32 s30, 9')
e('s_cbranch_scc1 Lp_wo')
def posdec(P, ko, pos, kk, o, tmp):
    e(f'v_mul_u32_u24 v{ko}, 58255, v{P}')
    e(f'v_lshrrev_b32 v{ko}, 22, v{ko}')
    e(f'v_mul_u32_u24 v{tmp}, 72, v{ko}')
    e(f'v_sub_u32 v{pos}, v{P}, v{tmp}')
    e(f'v_mul_u32_u24 v{kk}, 3641, v{ko}')
    e(f'v_lshrrev_b32 v{kk}, 16, v{kk}')
    e(f'v_mul_u32_u24 v{tmp}, 18, v{kk}')
    e(f'v_sub_u32 v{o}, v{ko}, v{tmp}')
G_ = lambda r, ch: 40+2*(8*r+ch)
e('s_lshl_b32 s28, s3, 5')
e('v_and_b32 v3, 31, v2')
e('v_add_u32 v4, s28, v3')
posdec(4, 5, 6, 7, 8, 9)
e(f'v_mul_u32_u24 v7, {4*82944}, v7')
e('v_mul_u32_u24 v8, 4608, v8')
e('v_lshrrev_b32 v9, 5, v2')
e('v_mul_u32_u24 v10, 288, v9')
e('v_add3_u32 v7, v7, v8, v10')
e('v_lshl_add_u32 v6, v6, 2, v7')
e('s_waitcnt lgkmcnt(0)')
srd(12, 6, 7, 0 if opt['skw'] else 31*144*288*2)
if opt['word']:
    for r in range(1, 4): e(f's_mov_b32 s{36+r}, {82944*r}')
    for ch in range(8):
        for r in range(4):
            e(f'buffer_load_dword v{G_(r,ch)+1}, v6, s[12:15], {"s%d" % (36+r) if r else 0} offen offset:{ch*576}{LDF}')
else:
  for r in range(4):
    for ch in range(8):
        e(f'buffer_load_dword v{G_(r,ch)+1}, v6, s[12:15], 0 offen offset:{ch*576}{LDF}')
    if r < 3: e('v_add_u32 v6, 82944, v6')
stamp(7)
common()
e('s_lshl_b32 s29, s27, 14')
e(f's_add_u32 s29, s29, {WL}')
e('v_lshlrev_b32 v10, 6, v3')
e('v_lshl_add_u32 v10, v9, 5, v10')
e('v_add_u32 v10, s29, v10')
e('v_lshlrev_b32 v11, 4, v2')
e('v_add_u32 v11, s29, v11')
for h in range(2):
    e('v_lshrrev_b32 v4, 2, v2')
    e(f'v_add3_u32 v4, v4, s28, {16*h}')
    posdec(4, 5, 6, 7, 8, 9)
    e('v_mul_u32_u24 v4, 43, v8')
    e('v_lshrrev_b32 v4, 8, v4')
    e('v_mul_u32_u24 v5, 6, v4')
    e('v_sub_u32 v5, v8, v5')
    e('v_lshrrev_b32 v8, 1, v7')
    e('v_add_u32 v8, 8, v8')
    e('v_and_b32 v9, 1, v7')
    e('v_lshl_add_u32 v9, v9, 1, v5')
    e('v_subrev_u32 v9, 4, v9')
    e('v_cmp_le_u32 vcc, 4, v5')
    e('v_mul_u32_u24 v4, 24576, v4')
    e('v_lshrrev_b32 v14, 3, v6')
    e('v_cndmask_b32 v8, v7, v8, vcc')
    e('v_cndmask_b32 v9, v5, v9, vcc')
    e(f'v_mul_u32_u24 v14, {21*24576}, v14')
    e('v_bfe_u32 v15, v6, 2, 1')
    e('v_mul_u32_u24 v15, 12288, v15')
    e(f'v_add3_u32 v{12+h}, v4, v14, v15')
    e(f'v_lshl_add_u32 v{12+h}, v8, 10, v{12+h}')
    e(f'v_lshl_add_u32 v{12+h}, v9, 8, v{12+h}')
    e('v_and_b32 v4, 3, v6')
    e(f'v_lshl_add_u32 v{12+h}, v4, 6, v{12+h}')
    e('v_and_b32 v4, 3, v2')
    e(f'v_lshl_add_u32 v{12+h}, v4, 4, v{12+h}')
def wcoef(t):
    for r in range(4):
        assert abs(GS[2*t+1][r] - (1 if r % 2 == 0 else -1)*GS[2*t][r]) < 1e-12
        e(f'v_mul_f32 v{160+2*r}, {fh(GS[2*t][r])}, v14')
        e(f'v_mov_b32 v{161+2*r}, v{160+2*r}')
e(f's_mov_b32 s34, {WT_OFF}')
e('v_cmp_le_u32 vcc, 32, v2')
e(f'v_mov_b32 v14, {fh(-2*LOG2E)}')
e(f'v_mov_b32 v15, {fh(-LOG2E)}')
e('v_cndmask_b32 v14, v14, v15, vcc')
e('v_mov_b32 v15, v14')
wcoef(0)
if opt['tlb']:
    e('s_mov_b32 exec_lo, 1')
    e('s_mov_b32 exec_hi, 0x80000001')
    e('buffer_load_dword v168, v12, s[20:23], s34 offen sc1')
    e('buffer_load_dword v169, v13, s[20:23], s34 offen sc1')
    e('s_mov_b64 exec, -1')
stamp(8)
e('s_barrier')
stamp(1)
e(f's_waitcnt vmcnt({2 if opt["tlb"] else 0})')
stamp(2)
for k in range(32):
    e(f'v_lshlrev_b32 v{40+2*k}, 16, v{41+2*k}')
    e(f'v_and_b32 v{41+2*k}, s33, v{41+2*k}')
e('s_mov_b32 s53, 0')
lab('Lp_wloop')
for dw in range(4):
    for c2 in range(2):
        ch = 2*dw+c2
        E, O = 104+4*c2, 106+4*c2
        e(f'v_pk_mul_f32 {vp(E)}, {vp(160)}, {vp(G_(0,ch))}')
        e(f'v_pk_mul_f32 {vp(O)}, {vp(162)}, {vp(G_(1,ch))}')
        e(f'v_pk_fma_f32 {vp(E)}, {vp(164)}, {vp(G_(2,ch))}, {vp(E)}')
        e(f'v_pk_fma_f32 {vp(O)}, {vp(166)}, {vp(G_(3,ch))}, {vp(O)}')
        pkadd(112+4*c2, O, E)
        pkadd(114+4*c2, E, O, negb=True)
    for sgn in range(2):
        for n in range(2):
            e(f'v_cvt_pk_bf16_f32 v{120+8*sgn+4*n+dw}, v{112+2*sgn+n}, v{116+2*sgn+n}')
for sgn in range(2):
    for n in range(2):
        e(f'ds_write_b128 v10, {vr(120+8*sgn+4*n)} offset:{sgn*2048 + n*16}')
e('s_add_u32 s53, s53, 1')
e('s_waitcnt lgkmcnt(0)')
e('v_add_u32 v10, 4096, v10')
e('s_cmp_eq_u32 s53, 3')
e('s_cbranch_scc1 Lp_w3')
e('s_cmp_eq_u32 s53, 1')
e('s_cbranch_scc1 Lp_w1')
wcoef(2)
if opt['early']:
    if opt['es']: stamp(3)
    e('s_waitcnt vmcnt(0)')
    if opt['es']: stamp(10)
    e('s_barrier')
e('s_branch Lp_wloop')
lab('Lp_w1')
for k in range(4): e(f'ds_read_b128 {vr(136+4*k)}, v11 offset:{k*1024}')
for k in range(4):
    e(f's_waitcnt lgkmcnt({3-k})')
    e(f'buffer_store_dwordx4 {vr(136+4*k)}, v{12+k%2}, s[20:23], s34 offen sc1')
    if k % 2 == 1: e(f's_add_u32 s34, s34, {3*24576}')
if opt['es']: stamp(9)
wcoef(1)
if not opt['early']:
    e('s_waitcnt vmcnt(0)')
    e('s_barrier')
e('s_branch Lp_wloop')
lab('Lp_w3')
for ch in range(8): e(f'v_pk_mul_f32 {vp(G_(3,ch))}, {vp(G_(3,ch))}, v[14:15]')
for n in range(2):
    for dw in range(4):
        e(f'v_cvt_pk_bf16_f32 v{120+4*n+dw}, v{G_(3,2*dw)+n}, v{G_(3,2*dw+1)+n}')
    e(f'ds_write_b128 v10, {vr(120+4*n)} offset:{n*16}')
e('s_waitcnt lgkmcnt(0)')
for k in range(10):
    e(f'ds_read_b128 {vr(PK(k % 2, k//2))}, v11 offset:{4096 + k*1024}')
e(f'v_add_u32 v{PA(0)}, s34, v12')
e(f'v_add_u32 v{PA(1)}, s34, v13')
e(f's_mov_b32 s96, {3*24576}')
e(f's_mov_b32 s97, {3*24576}')
e('s_waitcnt lgkmcnt(0)')
lab('Lp_wx')
c('then x pass 2: wave 4: unit 8 (block 3) ; wave 5: units 4,5 (blocks 2,3)')
e('s_cmp_ge_u32 s2, 250')
e('s_cbranch_scc1 L_pdone')
xcoef2()
e('s_mov_b32 s30, 8')
e('s_cmp_eq_u32 s26, 4')
e('s_cbranch_scc1 Lp_x3')
e('s_mov_b32 s30, 4')
e('s_branch Lp_x23')
lab('Lp_wo')
e('s_waitcnt lgkmcnt(0)')
common()
e('s_sub_u32 s3, s2, 72')
e('s_cmp_ge_u32 s3, 45')
e('s_cbranch_scc1 Lp_wo2')
srd(12, 8, 9, 144*144*2)
e('s_mul_i32 s28, s3, 13108')
e('s_lshr_b32 s28, s28, 16')
e('s_mul_i32 s29, s28, 5')
e('s_sub_u32 s29, s3, s29')
e('v_and_b32 v7, 15, v2')
e('v_lshrrev_b32 v8, 4, v2')
e('s_cmp_eq_u32 s28, 8')
e('s_cselect_b32 s30, 1, 4')
e('s_cselect_b32 s34, 256, 0')
e('s_cselect_b32 s28, 0, s28')
e('s_lshl_b32 s28, s28, 1')
e('s_add_u32 s34, s34, s28')
e(f's_mul_i32 s29, s29, {32*288}')
e('s_add_u32 s34, s34, s29')
e('v_lshlrev_b32 v9, s30, v7')
e('v_mul_u32_u24 v14, 576, v8')
e('v_add3_u32 v14, v14, v9, s34')
for d in range(4):
    e(f'buffer_load_ushort v{40+2*d}, v14, s[12:15], 0 offen')
    e(f'buffer_load_ushort v{41+2*d}, v14, s[12:15], 0 offen offset:288')
    if d < 3: e('v_add_u32 v14, 2304, v14')
e('s_lshl_b32 s3, s3, 10')
e(f's_add_u32 s3, s3, {WO_OFF}')
e('v_lshlrev_b32 v1, 4, v2')
e('s_barrier')
e('s_waitcnt vmcnt(0)')
for d in range(4):
    e(f'v_lshl_or_b32 v{48+d}, v{41+2*d}, 16, v{40+2*d}')
e('buffer_store_dwordx4 v[48:51], v1, s[20:23], s3 offen sc1')
e('s_waitcnt vmcnt(0)')
e('s_barrier')
e('s_branch Lp_wx')
lab('Lp_wo2')
if opt['warm'] == 2:
    e('s_cmp_lg_u32 s2, 200')
    e('s_cbranch_scc1 Lp_wo3')
    for k in range(4): e(f'v_mov_b32 v{40+k}, 0')
    e('v_lshlrev_b32 v4, 4, v2')
    e(f's_mov_b32 s30, {FLAG_OFF}')
    e('buffer_store_dwordx4 v[40:43], v4, s[20:23], s30 offen sc1')
    e('buffer_store_dwordx4 v[40:43], v4, s[20:23], s30 offen offset:1024 sc1')
    e('s_memrealtime s[92:93]')
    e('s_waitcnt lgkmcnt(0)')
    e('s_or_b32 s92, s92, 1')
    e('v_mov_b32 v38, s92')
    e('v_mov_b32 v39, s93')
    e('s_waitcnt vmcnt(0)')
    e('s_mov_b64 exec, 1')
    e('buffer_store_dwordx2 v[38:39], v37, s[16:19], 0 offen sc1')
    e('s_mov_b64 exec, -1')
    lab('Lp_wo3')
e('s_barrier')
e('s_barrier')
e('s_branch Lp_wx')

def M(t): return 12 + 4*t
def MD(t): return 48 + 4*t
def FR(k): return vr(84 + 4*k)
lab('L_pdone')
e('v_lshlrev_b32 v101, 4, v2')
e('v_min_u32 v36, 62, v2')
e('v_lshlrev_b32 v36, 5, v36')
e(f's_and_b32 s30, s2, {REP-1}')
e(f's_mul_i32 s30, s30, {RSTR}')
e('v_add_u32 v36, s30, v36')
e(f'v_mul_u32_u24 v12, {RSTR}, v2')
c('unit = base[xcd] + (id>>3)')
e('s_and_b32 s25, s2, 7')
e('s_lshr_b32 s24, s2, 3')
e('s_mul_i32 s27, s25, 31')
e('s_min_u32 s28, s25, 4')
e('s_add_u32 s27, s27, s28')
e('s_add_u32 s27, s27, s24')
e('s_mul_i32 s28, s27, 7282')
e('s_lshr_b32 s28, s28, 16')
e('s_mul_i32 s29, s28, 9')
e('s_sub_u32 s29, s27, s29')
e('s_and_b32 s24, s26, 3')
e('s_lshr_b32 s32, s24, 1')
e('s_and_b32 s33, s24, 1')
e('s_mul_i32 s34, s24, 7168')
e('s_mul_i32 s35, s24, 6144')
c('z soffset s62')
e('s_lshl_b32 s62, s28, 1')
e('s_add_u32 s62, s62, s32')
e(f's_mul_i32 s62, s62, {9*18*1024}')
e('s_lshl_b32 s63, s29, 1')
e('s_add_u32 s63, s63, s33')
e(f's_lshl_b32 s63, s63, {8 if opt["t2"] else 10}')
e('s_add_u32 s62, s62, s63')
e(f's_add_u32 s62, s62, {Z_OFF}')
if opt['gmap']:
    c('g = (b*7+gg)*2 + p')
    e('s_lshr_b32 s38, s28, 1')
    e('s_and_b32 s30, s28, 1')
    e('s_cmp_ge_u32 s38, 7')
    e('s_cselect_b32 s36, 7, 0')
    e('s_cselect_b32 s37, 2, 0')
    e('s_sub_u32 s38, s38, s36')
    e('s_add_u32 s30, s30, s37')
else:
    e('s_mul_i32 s30, s28, 9363')
    e('s_lshr_b32 s30, s30, 16')
    e('s_mul_i32 s38, s30, 7')
    e('s_sub_u32 s38, s28, s38')
e(f's_mul_i32 s36, s30, {21*XS}')
e('s_mul_i32 s37, s38, 27648')
e('s_add_u32 s36, s36, s37')
e('s_add_u32 s36, s36, s34')
e(f's_mul_i32 s37, s29, {21*24576}')
e('s_add_u32 s37, s37, s35')
e(f's_add_u32 s37, s37, {WT_OFF}')
c('last row group of a stream: do not fetch the never-written padding rows (KB 26 lanes >= 16, KB 27): v6, v7 = voffsets for those two chunks')
e('s_cmp_eq_u32 s38, 6')
e('s_cselect_b32 s60, 16, 64')
e('s_cselect_b32 s61, 0, 64')
e(f'v_mov_b32 v8, {OOB}')
e('v_cmp_gt_u32 vcc, s60, v2')
e('v_cmp_gt_u32 s[88:89], s61, v2')
e('s_nop 0')
e('v_cndmask_b32 v6, v8, v101, vcc')
e('v_cndmask_b32 v7, v8, v101, s[88:89]')
e('s_cmp_ge_u32 s26, 4')
e('s_cbranch_scc1 L_helper')
e('s_cmp_lg_u32 s26, 0')
e('s_cbranch_scc1 L_c13')
c('wave 0: wait for all A flags, then load the whole phase 0 tile')
if opt['agg']:
    e('s_cmp_lg_u32 s2, 0')
    e('s_cbranch_scc1 L_gow')
if opt['dly']: e(f's_sleep {opt["dly"]}')
if opt['fl']:
    for k in range(4):
        e(f'v_add_u32 v{42+k}, {64*k}, v2')
        e(f'v_min_u32 v{42+k}, 251, v{42+k}')
        e(f'v_lshlrev_b32 v{42+k}, 7, v{42+k}')
    e('v_lshrrev_b32 v46, 3, v2')
    e('v_mul_u32_u24 v46, 4352, v46')
    e('v_and_b32 v47, 7, v2')
    e('v_lshl_add_u32 v46, v47, 4, v46')
poll('A' if opt['fl'] else 0, 'A')
if opt['agg']:
    c('WG 0 saw all A flags: release everybody through 8 go words')
    e(f's_mov_b32 s30, {FLAG_OFF+GOF}')
    if opt['fl']:
        e('buffer_store_dwordx4 v[38:41], v46, s[20:23], s30 offen sc1')
    else:
        e('v_mul_u32_u24 v9, 4352, v2')
        e('s_mov_b64 exec, 0xff')
        e('buffer_store_dwordx2 v[38:39], v9, s[20:23], s30 offen sc1')
        e('s_mov_b64 exec, -1')
    e('s_branch L_god')
    lab('L_gow')
    e('s_mul_i32 s30, s25, 4352')
    e(f's_add_u32 s30, s30, {FLAG_OFF+GOF}')
    e('s_mov_b32 s31, 0')
    e('s_mov_b64 exec, 1')
    lab('L_gol')
    e('buffer_load_dwordx2 v[24:25], v37, s[20:23], s30 offen sc1')
    e('s_add_u32 s31, s31, 1')
    e('s_cmp_gt_u32 s31, 800000')
    e('s_cbranch_scc1 L_gox')
    e('s_waitcnt vmcnt(0)')
    e('v_cmp_ne_u64 vcc, s[92:93], v[24:25]')
    e('s_cbranch_vccz L_gox')
    e(f's_sleep {opt["gslp"]}')
    e('s_branch L_gol')
    lab('L_gox')
    e('s_mov_b64 exec, -1')
    lab('L_god')
stamp(3)
for k in range(52):
    if k % 4 == 0:
        e(f's_mov_b32 m0, {k*1024}')
        e(f's_add_u32 s30, s36, {k*1024}' if k < 28 else f's_add_u32 s30, s37, {(k-28)*1024}')
    e(f'buffer_load_dwordx4 v{ {26: 6, 27: 7}.get(k, 101) }, s[20:23], s30 offen offset:{(k%4)*1024} sc1 lds')
lab('L_c13')
e('s_barrier')
if opt['prio']: e(f's_setprio {opt["prio"]}')
e('v_and_b32 v124, 15, v2')
e('v_lshrrev_b32 v125, 4, v2')
e('v_mul_u32_u24 v126, 864, v124')
e('s_mul_i32 s38, s32, 13824')
e('v_add_u32 v126, s38, v126')
e('v_lshl_add_u32 v2, v125, 4, v126')
e('v_lshrrev_b32 v127, 1, v125')
e('v_mul_u32_u24 v127, 96, v127')
e('v_sub_u32 v127, v126, v127')
e('v_and_b32 v128, 1, v125')
e('v_lshl_add_u32 v127, v128, 4, v127')
e('v_add_u32 v5, 160, v127')
e('s_mul_i32 s38, s33, 12288')
e('s_add_u32 s38, s38, 28672')
e('v_add_u32 v8, s38, v101')
for s in (1, 2):
    e(f'v_add_u32 v{2+s}, {s*SLOT}, v2')
    e(f'v_add_u32 v{5+s}, {s*SLOT}, v5')
    e(f'v_add_u32 v{8+s}, {s*SLOT}, v8')
if opt['sn32']: e('v_lshrrev_b32 v101, 2, v101')
e(f's_add_u32 s38, s34, {2*SLOT}')
e('v_add_u32 v1, s38, v101')
e(f's_add_u32 s38, s35, {2*SLOT+28672}')
e('v_add_u32 v11, s38, v101')
for r in range(48, 84): e(f'v_mov_b32 v{r}, 0')

frags = []; mf = []
if opt['mord']:
    for t in range(9):
        for kk in range(7, -1, -1): mf.append((t, ('W', kk), ('X', t-kk)))
    for t in (range(8, -1, -1) if opt['tdesc'] else range(9)):
        for pp in (range(4) if opt['tdesc'] else range(3, -1, -1)): mf.append((t, ('WT', pp), ('XT', t-2*pp)))
else:
  for tp in range(-7, 9):
    for kk in range(min(7, 8-tp), max(0, -tp)-1, -1):
        mf.append((tp+kk, ('W', kk), ('X', tp)))
  for tp in range(-6, 9):
    for pp in range(3, -1, -1):
        if 0 <= tp+2*pp <= 8: mf.append((tp+2*pp, ('WT', pp), ('XT', tp)))
assert len(mf) == 108
fu = {}
for s, (t, wk, xk) in enumerate(mf):
    for k in (xk, wk):
        if k not in fu: fu[k] = s; frags.append(k)
assert len(frags) == 43
fidx = {k: i for i, k in enumerate(frags)}
LA = opt['LA']; BAR = 108 - LA; ELAST = BAR - 6
iss = [(-LA + (k*(ELAST+LA))//42) for k in range(43)]
if opt['mord']:
    iss = [-LA + (k*(LA-2))//16 for k in range(17)] + [1 + (k*(ELAST-1))//25 for k in range(26)]
    lu = {}
    for s, (t, wk, xk) in enumerate(mf): lu[wk] = s; lu[xk] = s
    for k in range(43): assert iss[k] + 108 > lu[frags[k]] + 1, (k, iss[k], lu[frags[k]])
for k in range(43): assert iss[k] <= fu[frags[k]] - 8, (k, iss[k], fu[frags[k]])
def rd(k, slot):
    kind, i = frags[k]
    if kind == 'X': return f'ds_read_b128 {FR(k)}, v{2+slot} offset:{(i+8)*96}'
    if kind == 'XT': return f'ds_read_b128 {FR(k)}, v{5+slot} offset:{(i+7)*96}'
    if kind == 'W': return f'ds_read_b128 {FR(k)}, v{8+slot} offset:{i*1024}'
    return f'ds_read_b128 {FR(k)}, v{8+slot} offset:{(8+i)*1024}'
npre = sum(1 for x in iss if x < 0)
first_touch = {}; last_touch = {}
for s, (t, wk, xk) in enumerate(mf):
    first_touch.setdefault(t, s); last_touch[t] = s
def snapw(t):
    if opt['sn32']:
        t, r = divmod(t, 4)
        return f'ds_write_b32 v1, v{MD(t)+r} offset:{t*1024+r*256}' if t < 7 else f'ds_write_b32 v11, v{MD(t)+r} offset:{(t-7)*1024+r*256}'
    return f'ds_write_b128 v1, {vr(MD(t))} offset:{t*1024}' if t < 7 else f'ds_write_b128 v11, {vr(MD(t))} offset:{(t-7)*1024}'
QS = opt['QS']
ext = [[] for _ in range(324)]
for ph in range(3):
    for k in range(43):
        ext[(ph*108 + iss[k]) % 324].append(('rd', k, ph))
used = [len(x) for x in ext]
lastw = 0
if opt['sn32']:
    for n in range(36):
        pos = max(216 + last_touch[n//4] + 8, lastw + 1)
        lastw = pos
        assert pos >= 216 + BAR and pos < 324 + QS - 2, pos
        ext[pos % 324].append(('wr', n, 0))
else:
  for t in sorted(range(9), key=lambda t: last_touch[t]):
    pos = max(216 + last_touch[t] + 8, lastw + opt['wsp'], 216 + BAR + 1)
    while used[pos % 324]: pos += 1
    lastw = pos
    used[pos % 324] += 1
    assert pos >= 216 + BAR and pos < 324 + QS - 2
    ext[pos % 324].append(('wr', t, 0))
e('s_waitcnt vmcnt(0)')
stamp(4)
e('s_barrier')
stamp(5)
if opt['dbgst']: e('s_memtime s[90:91]')
for k in range(npre): e(rd(k, 0))
e('s_mov_b32 s39, 7')
e('s_waitcnt lgkmcnt(0)')
out.append('.p2align 6')
for _ in range(opt['pad']): e('s_nop 0')
lab('L_loop')
seq = 0; rseq = {}; covered = -1; wseq = -1; sslot = []
for it in range(2):
    emit = e if it == 1 else (lambda s: None)
    for ph in range(3):
        if it == 1: c(f'======== phase {ph}')
        for s, (t, wk, xk) in enumerate(mf):
            if s == BAR:
                emit('s_waitcnt lgkmcnt(0)')
                emit('s_barrier')
                covered = seq - 1
            if ph == 0 and s == QS:
                if wseq > covered:
                    emit(f's_waitcnt lgkmcnt({min(15, seq-1-wseq)})')
                    covered = max(covered, seq - 1 - min(15, seq-1-wseq))
                emit('s_barrier')
            need = max(rseq.get((ph, fidx[wk]), -1), rseq.get((ph, fidx[xk]), -1))
            if need > covered:
                now = it*324 + ph*108 + s
                recent = sum(1 for x in sslot if x >= now - opt['lat'])
                allow = min(seq - 1 - need, recent, 15)
                emit(f's_waitcnt lgkmcnt({allow})')
                covered = seq - 1 - allow
            cin = vr(MD(t)) if (ph == 0 and first_touch[t] == s) else vr(M(t))
            dst = vr(MD(t)) if (ph == 2 and last_touch[t] == s) else vr(M(t))
            emit(f'v_mfma_f32_16x16x32_bf16 {dst}, {FR(fidx[wk])}, {FR(fidx[xk])}, {cin}')
            for x in ext[ph*108+s]:
                if x[0] == 'rd':
                    emit(rd(x[1], x[2])); rseq[(x[2], x[1])] = seq; seq += 1; sslot.append(it*324 + ph*108 + s)
                else:
                    emit(snapw(x[1])); wseq = seq; seq += 1; sslot.append(it*324 + ph*108 + s)
            if ph == 2 and s == 104: emit('s_sub_u32 s39, s39, 1')
            if ph == 2 and s == 105: emit('s_cmp_lg_u32 s39, 0')
e('s_cbranch_scc1 L_loop')
stamp(6)
if opt['dbgst']: e('s_memtime s[94:95]')
c('---- compute-wave epilogue: gate y3 = MD')
e('s_waitcnt lgkmcnt(0)')
if opt['tr']: e('s_barrier')
def gate_consts():
    e(f's_mov_b32 s46, {fh(-0.6931471805599453)}')
    e(f's_mov_b32 s42, {fh(2*LOG2E*2**-12)}')
    e('s_mov_b32 s43, 0x41f00000')
def gate(a, r, dst, sp):
    L = []
    L.append(f'v_min_f32 v{r}, s43, v{a}')
    L.append(f'v_min_f32 v{r+1}, s43, v{a+1}')
    L.append(f'v_exp_f32 v{a+2}, v{a+2}')
    L.append(f'v_exp_f32 v{a+3}, v{a+3}')
    L.append(f'v_exp_f32 v{r}, v{r}')
    L.append(f'v_exp_f32 v{r+1}, v{r+1}')
    if opt['smallfix']:
        L.append(f'v_cmp_gt_f32 s[{sp}:{sp+1}], s42, abs(v{a})')
        L.append(f'v_cmp_gt_f32 s[{sp+2}:{sp+3}], s42, abs(v{a+1})')
    L.append(f'v_add_f32 v{r+2}, 1.0, v{r}')
    L.append(f'v_add_f32 v{r+3}, 1.0, v{r+1}')
    if opt['smallfix']:
        L.append(f'v_mul_f32 v{a}, s46, v{a}')
        L.append(f'v_mul_f32 v{a+1}, s46, v{a+1}')
    L.append(f'v_fmac_f32 v{r+2}, v{r+2}, v{a+2}')
    L.append(f'v_fmac_f32 v{r+3}, v{r+3}, v{a+3}')
    L.append(f'v_sub_f32 v{r}, 1.0, v{r}')
    L.append(f'v_sub_f32 v{r+1}, 1.0, v{r+1}')
    L.append(f'v_rcp_f32 v{r+2}, v{r+2}')
    L.append(f'v_rcp_f32 v{r+3}, v{r+3}')
    if opt['smallfix']:
        L.append(f'v_cndmask_b32 v{r}, v{r}, v{a}, s[{sp}:{sp+1}]')
        L.append(f'v_cndmask_b32 v{r+1}, v{r+1}, v{a+1}, s[{sp+2}:{sp+3}]')
    L.append(f'v_mul_f32 v{r}, v{r}, v{r+2}')
    L.append(f'v_mul_f32 v{r+1}, v{r+1}, v{r+3}')
    L.append(f'v_cvt_pk_bf16_f32 v{dst}, v{r}, v{r+1}')
    return L
ool = []
def gate_check(As, tm, name):
    for k, a in enumerate(As):
        if k == 0:
            e(f'v_min_f32 v{tm}, abs(v{a}), abs(v{a+1})')
            e(f'v_max_f32 v{tm+1}, v{a}, v{a+1}')
        else:
            e(f'v_min3_f32 v{tm}, abs(v{a}), abs(v{a+1}), v{tm}')
            e(f'v_max3_f32 v{tm+1}, v{a}, v{a+1}, v{tm+1}')
    e(f'v_cmp_gt_f32 s[44:45], s42, v{tm}')
    e(f'v_cmp_lt_f32 vcc, s43, v{tm+1}')
    e(f's_cbranch_vccnz L_cl{name}')
    lab(f'L_clr{name}')
    L = [f'L_cl{name}:']
    for a in As:
        L += [f'    v_min_f32 v{a}, s43, v{a}', f'    v_min_f32 v{a+1}, s43, v{a+1}']
    L.append(f'    s_branch L_clr{name}')
    ool.extend(L)
def gate_fast(a, r, dst, name):
    e(f'v_exp_f32 v{r}, v{a}')
    e(f'v_exp_f32 v{r+1}, v{a+1}')
    e(f'v_exp_f32 v{a+2}, v{a+2}')
    e(f'v_exp_f32 v{a+3}, v{a+3}')
    e(f'v_add_f32 v{r+2}, 1.0, v{r}')
    e(f'v_add_f32 v{r+3}, 1.0, v{r+1}')
    e('s_cmp_lg_u64 s[44:45], 0')
    e(f'v_fmac_f32 v{r+2}, v{r+2}, v{a+2}')
    e(f'v_fmac_f32 v{r+3}, v{r+3}, v{a+3}')
    e(f'v_sub_f32 v{r}, 1.0, v{r}')
    e(f'v_sub_f32 v{r+1}, 1.0, v{r+1}')
    e(f'v_rcp_f32 v{r+2}, v{r+2}')
    e(f'v_rcp_f32 v{r+3}, v{r+3}')
    e(f's_cbranch_scc1 L_sm{name}')
    lab(f'L_smr{name}')
    e(f'v_mul_f32 v{r}, v{r}, v{r+2}')
    e(f'v_mul_f32 v{r+1}, v{r+1}, v{r+3}')
    e(f'v_cvt_pk_bf16_f32 v{dst}, v{r}, v{r+1}')
    ool.extend([f'L_sm{name}:',
        f'    v_cmp_gt_f32 s[48:49], s42, abs(v{a})',
        f'    v_cmp_gt_f32 s[50:51], s42, abs(v{a+1})',
        f'    v_mul_f32 v{a}, s46, v{a}',
        f'    v_mul_f32 v{a+1}, s46, v{a+1}',
        f'    v_cndmask_b32 v{r}, v{r}, v{a}, s[48:49]',
        f'    v_cndmask_b32 v{r+1}, v{r+1}, v{a+1}, s[50:51]',
        f'    s_branch L_smr{name}'])
gate_consts()
if opt['t2']:
    e('v_and_b32 v100, 63, v0')
    e('v_lshlrev_b32 v101, 2, v100')
    for t in range(9):
        e(f's_add_u32 s63, s62, {(t*4+3)*4608}')
        for x in gate(MD(t), 104 + 4*(t % 2), 112 + t, 48): e(x)
        e(f'buffer_store_dword v{112+t}, v101, s[20:23], s63 offen sc1')
else:
    e('v_and_b32 v100, 63, v0')
    e('v_lshlrev_b32 v101, 4, v100')
    e(f's_add_u32 s63, s62, {7*18432}')
    if opt['full']:
        e('s_lshl_b32 s40, s24, 10')
        e(f's_add_u32 s40, s40, {SLOT}')
        e('v_add_u32 v102, s40, v101')
        e('ds_read_b128 v[124:127], v102')
    for t in range(9):
        if opt['fast']:
            if t % 3 == 0: gate_check([MD(t), MD(t+1), MD(t+2)], 102, f'c{t}')
            gate_fast(MD(t), 104 + 4*(t % 2), 112 + t, f'c{t}')
        else:
            if opt['full'] and t == 8: e('s_waitcnt lgkmcnt(0)')
            for x in gate(MD(t), 104 + 4*(t % 2), (127 if opt['full'] and t == 8 else 112 + t), 48): e(x)
        if t in (3, 7):
            e(f'buffer_store_dwordx4 v[{112+t-3}:{112+t}], v101, s[20:23], s63 offen sc1')
            e('s_add_u32 s63, s63, 18432')
    e(f's_add_u32 s63, s62, {6*18432}')
    if opt['full']: e('buffer_store_dwordx4 v[124:127], v101, s[20:23], s63 offen sc1')
    else: e('buffer_store_dword v120, v101, s[20:23], s63 offen offset:12 sc1')
e('s_branch L_fin')
def hbar():
    if opt['bst']:
        e('s_memtime s[64:65]')
        e('s_barrier')
        e('s_memtime s[66:67]')
        e('s_waitcnt lgkmcnt(0)')
        e('s_mov_b32 m0, s68'); e('s_nop 0')
        e('v_writelane_b32 v14, s64, m0')
        e('v_writelane_b32 v15, s66, m0')
        e('s_add_u32 s68, s68, 1')
    else: e('s_barrier')
lab('L_helper')
if opt['bst']: e('s_mov_b32 s68, 0')
def Y(i, t): return 40 + 4*(i*9+t)
def SN(t): return 148 + 4*t
e('v_mov_b32 v3, v101')
e('v_add_u32 v13, 4096, v101')
e('v_add_u32 v6, 4096, v6')
e('v_add_u32 v7, 4096, v7')
e('s_cmp_eq_u32 s26, 7')
e('s_cselect_b64 vcc, -1, 0')
e('v_cndmask_b32 v6, v13, v6, vcc')
e('v_cndmask_b32 v7, v13, v7, vcc')
if opt['sn32']: e('v_lshrrev_b32 v101, 2, v101')
e(f's_add_u32 s38, s34, {2*SLOT}')
e('v_add_u32 v4, s38, v101')
e(f's_add_u32 s38, s35, {2*SLOT+28672}')
e('v_add_u32 v5, s38, v101')
e('s_cmp_eq_u32 s26, 4')
e('s_cbranch_scc1 L_h4')
e(f'v_mov_b32 v36, {OOB}')
e(f'v_mov_b32 v12, {OOB}')
e('s_branch L_h5')
lab('L_h4')
e('s_mov_b32 s31, 0')
gettag('h')
lab('L_h5')
e('v_mov_b32 v38, s92')
e('v_mov_b32 v39, s93')
def dma_list(slot):
    L = []
    for k in range(7):
        pre = [f's_add_u32 m0, s34, {slot*SLOT + (k//4)*4096}', 's_nop 0']
        L.append(pre + [f'buffer_load_dwordx4 v{(3,3,3,3,13,6,7)[k]}, s[20:23], s36 offen offset:{(k%4)*1024} sc1 lds'] + ([f's_add_u32 s36, s36, {XS}'] if k == 6 else []))
    for k in range(6):
        pre = [f's_add_u32 m0, s35, {slot*SLOT + 28672 + (k//4)*4096}', 's_nop 0']
        L.append(pre + [f'buffer_load_dwordx4 v{3 if k < 4 else 13}, s[20:23], s37 offen offset:{(k%4)*1024} sc1 lds'] + (['s_add_u32 s37, s37, 24576'] if k == 5 else []))
    return L
def pst(b, pm):
    return [f'buffer_store_dwordx4 {vr(PK(b,pm))}, v{PA(b)}, s[20:23], 0 offen sc1', f'v_add_u32 v{PA(b)}, s{96+b}, v{PA(b)}']
def weave(dl, sl):
    res = []; n = len(sl); m = len(dl)
    for i in range(m):
        res.append(dl[i])
        for k in range((i*n)//m, ((i+1)*n)//m): res.append(sl[k])
    return res
def mix(dl, vl):
    n = len(dl)
    for i, d in enumerate(dl):
        for x in d: e(x)
        for x in vl[(i*len(vl))//n:((i+1)*len(vl))//n]: e(x)
    if n == 0:
        for x in vl: e(x)
def nvm(dl, after):
    return len(dl) - 1 - after
def snapr():
    if opt['sn32']:
        for t in range(9):
            for h in range(2):
                o = (t if t < 7 else t-7)*4 + 2*h
                e(f'ds_read2st64_b32 {vp(SN(t)+2*h)}, v{4 if t < 7 else 5} offset0:{o} offset1:{o+1}')
            if t == 6: e('s_waitcnt lgkmcnt(4)')
        e('s_waitcnt lgkmcnt(0)')
        return
    for t in range(9):
        e(f'ds_read_b128 {vr(SN(t))}, v4 offset:{t*1024}' if t < 7 else f'ds_read_b128 {vr(SN(t))}, v5 offset:{(t-7)*1024}')
    e('s_waitcnt lgkmcnt(0)')
FM = [f'v_fmac_f32 v{Y(i,t)+r}, s{40+i}, v{SN(t)+r}' for t in range(9) for i in range(3) for r in range(4)]
def FMm(m):
    L = []
    for t in range(9):
        for i in range(3):
            if DCH[i][m] == 0: continue
            first = all(DCH[i][mm] == 0 for mm in range(m))
            for r in range(4): L.append(f'{"v_mul_f32" if first else "v_fmac_f32"} v{Y(i,t)+r}, s{40+i}, v{SN(t)+r}')
    return L
e(f's_add_u32 s36, s36, {XS}')
e('s_add_u32 s37, s37, 24576')
e('s_barrier')
mix(dma_list(1), [])
if opt['b1e'] == 1: mix([pst(b, 0) for b in range(4)], [])
c('coefficient table: s40.. = 3 x 6, consumed from the front')
for m in range(6):
    for i in range(3): e(f's_mov_b32 s{40+3*m+i}, {fh(DCH[i][m])}')
hbar()
if opt['b1e'] == 2: mix([pst(b, 0) for b in range(4)], [])
ND0 = opt['nd0']
def only4(name, fn):
    e('s_cmp_lg_u32 s26, 4')
    e(f's_cbranch_scc1 L_o4{name}')
    fn()
    lab(f'L_o4{name}')
def hflag(off):
    e('s_lshl_b32 s30, s2, 3')
    e(f's_add_u32 s30, s30, {FLAG_OFF+off}')
    e(f's_mov_b64 exec, {(1<<REP)-1}')
    e('buffer_store_dwordx2 v[38:39], v12, s[20:23], s30 offen sc1')
    e('s_mov_b64 exec, -1')
def hiter(name, fm, sa=(), sc_=(), flag0=None, flag1=None, chk=None):
    if chk is not None: poll_issue(chk)
    for g_ in sa:
        for x in g_: e(x)
    hbar()
    if fm: snapr()
    D2 = dma_list(2)
    mix(D2[:ND0], [])
    e(f's_waitcnt vmcnt({ND0 + len(sa)})')
    if chk is not None:
        def f():
            poll_check()
            e(f's_cbranch_scc0 L_o4c{name}')
            poll(chk, name, opt['fslp'])
        only4('c'+name, f)
    hbar()
    if flag0 is not None: hflag(flag0)
    mix(D2[ND0:] + dma_list(0), fm[:40])
    e('s_waitcnt vmcnt(13)')
    hbar()
    if flag1 is not None: hflag(flag1)
    mix(list(sc_) + dma_list(1), fm[40:])
    if fm:
        for k in range(15): e(f's_mov_b32 s{40+k}, s{43+k}')
    e(f's_waitcnt vmcnt({13 + len(sc_) + (1 if flag1 is not None else 0)})')
    hbar()
ST = [pst(b, pm) for pm in range(5) for b in range(4)]
if opt['b1e']: hiter('0', [], sc_=ST[4:8], flag0=1*FA)
else: hiter('0', [], sa=ST[0:4], sc_=ST[4:8], flag1=1*FA)
hiter('1', FMm(0), sa=ST[8:12], sc_=ST[12:16], flag0=2*FA, flag1=3*FA, chk=1*FA)
hiter('2', FMm(1), sa=ST[16:20], flag1=4*FA, chk=2*FA)
hiter('3', FMm(2), chk=3*FA)
hiter('4', FMm(3), chk=4*FA)
c('every WG has fetched the tag by now (all B flags seen): WG 0 puts d_debug back to zero')
e('s_lshl_b32 s30, s2, 3')
e('s_add_u32 s30, s30, s26')
e('s_cmp_lg_u32 s30, 4')
e('s_cbranch_scc1 L_nocl')
e('v_mov_b32 v24, 0')
e('v_mov_b32 v25, 0')
e('s_mov_b64 exec, 1')
e('buffer_store_dwordx2 v[24:25], v37, s[16:19], 0 offen sc1')
e('s_mov_b64 exec, -1')
lab('L_nocl')
hiter('5', FMm(4))
c('---- last product')
if opt['sw'] == 4: stamp(6)
hbar()
snapr()
F0 = opt['f0']
D2 = dma_list(2)
mix(D2[:ND0], FM[:F0])
e(f's_waitcnt vmcnt({ND0})')
hbar()
WD = []
for k in range(12):
    WD.append([f's_add_u32 m0, s61, {(k//4)*4096}', 's_nop 0', f'buffer_load_dwordx4 v3, s[20:23], s60 offen offset:{(k%4)*1024} sc1 lds'] + (['s_add_u32 s60, s60, 4096'] if k % 4 == 3 else []))
e('s_mul_i32 s61, s24, 12288')
e(f's_add_u32 s60, s61, {WO_OFF}')
mix(D2[ND0:] + WD, FM[F0:])
if opt['tlbo']:
    c('touch the output pages this WG will store to (address translation warm-up; the value is not used)')
    e('s_load_dwordx2 s[6:7], s[0:1], 24')
    e('s_cmp_ge_u32 s28, 14')
    e('s_cselect_b32 s30, 14, 0')
    e('s_cselect_b32 s31, 4608000, 0')
    e('s_sub_u32 s30, s28, s30')
    e(f's_mul_i32 s30, s30, {144*2304}')
    e('s_add_u32 s30, s30, s31')
    e('v_lshrrev_b32 v8, 4, v3')
    e('v_mul_u32_u24 v8, 20736, v8')
    e('s_waitcnt lgkmcnt(0)')
    srd(16, 6, 7, 9216000)
    e('s_mov_b64 exec, 0xffff')
    e('buffer_load_dword v10, v8, s[16:19], s30 offen')
    e('s_mov_b64 exec, -1')
gate_consts()
e('s_mov_b32 s63, s62')
nst = [0]
if opt['t2']:
    opt['full'] = 0
    e('v_lshrrev_b32 v9, 2, v3')
HORD = ([24, 25, 26] + list(range(24))) if opt['full'] else list(range(27))
def hgate(n0, n1):
    for n in HORD[n0:n1]:
        t, i = divmod(n, 3)
        if opt['fast']:
            if i == 0: gate_check([Y(0,t), Y(1,t), Y(2,t)], 192, f'h{n}')
            gate_fast(Y(i, t), 184 + 4*(n % 2), 200 + n, f'h{n}')
        else:
            for x in gate(Y(i, t), 184 + 4*(n % 2), 200 + n, 48): e(x)
        if opt['t2']:
            e(f's_add_u32 s63, s62, {(t*4+i)*4608}')
            e(f'buffer_store_dword v{200+n}, v9, s[20:23], s63 offen sc1'); nst[0] += 1
            continue
        if n % 4 == 3:
            e(f'buffer_store_dwordx4 v[{200+n-3}:{200+n}], v3, s[20:23], s63 offen sc1')
            e('s_add_u32 s63, s63, 18432'); nst[0] += 1
        if n == 26 and not opt['full']:
            e('buffer_store_dwordx3 v[224:226], v3, s[20:23], s63 offen sc1'); nst[0] += 1
g1 = opt['g1']; g2 = min(27, g1 + opt['g2'])
hgate(0, g1)
e(f's_waitcnt vmcnt({nst[0]+12+opt["tlbo"]})')
hbar()
if opt['full']:
    assert g1 >= 3
    e('s_lshl_b32 s40, s24, 10')
    e(f's_add_u32 s40, s40, {SLOT}')
    e('v_add_u32 v8, s40, v3')
    e('ds_write_b128 v8, v[224:227]')
hgate(g1, g2)
if opt['full']: e('s_waitcnt lgkmcnt(0)')
if opt['pbe']: e(f's_waitcnt vmcnt({nst[0]})')
hbar()
if opt['tr']:
    hgate(g2, opt['x1'])
    e(f's_waitcnt vmcnt({nst[0]-5})')
    e('s_barrier')
    e('s_lshl_b32 s30, s28, 7')
    e('s_lshl_b32 s31, s29, 3')
    e('s_add_u32 s30, s30, s31')
    e(f's_add_u32 s30, s30, {FLAG_OFF+ZFL}')
    e('s_mov_b64 exec, 1')
    e('buffer_store_dwordx2 v[38:39], v12, s[20:23], s30 offen sc1')
    e('s_mov_b64 exec, -1')
    hgate(opt['x1'], 27)
else:
    hgate(g2, 27)
if opt['bst']:
    e('s_memtime s[64:65]')
    e('s_waitcnt lgkmcnt(0)')
    e('s_mov_b32 m0, s68'); e('s_nop 0')
    e('v_writelane_b32 v14, s64, m0')
    e('v_writelane_b32 v15, s64, m0')
    e('s_cmp_lg_u32 s26, 4')
    e('s_cbranch_scc1 L_fin')
    e('s_mov_b32 s22, 0x10000000')
    e('s_lshl_b32 s33, s2, 9')
    e(f's_add_u32 s33, s33, {STAMP_OFF + (128<<10)*4}')
    e('v_lshrrev_b32 v1, 1, v3')
    e('buffer_store_dwordx2 v[14:15], v1, s[20:23], s33 offen')
if opt['t2']:
    assert opt['gmap']
    lab('L_fin')
    e('s_setprio 0')
    e('s_load_dwordx2 s[6:7], s[0:1], 24')
    if not opt['es']: stamp(7)
    e('v_and_b32 v2, 63, v0')
    e('v_lshlrev_b32 v3, 4, v2')
    e('v_lshlrev_b32 v4, 2, v2')
    e('v_add_u32 v6, 4096, v4')
    e('v_mov_b32 v37, 0')
    c('pair u = g>>1 ; this WG consumes (rh = g&1, tau = cg) of both parity groups ; wave = (parity, phase)')
    e('s_lshr_b32 s40, s28, 1')
    e('s_and_b32 s41, s28, 1')
    e('s_lshr_b32 s42, s26, 2')
    e('s_lshl_b32 s43, s40, 2')
    e('s_lshl_b32 s44, s42, 1')
    e('s_add_u32 s43, s43, s44')
    e('s_add_u32 s43, s43, s41')
    e('s_mul_i32 s43, s43, 9')
    e('s_add_u32 s43, s43, s29')
    e('s_lshl_b32 s43, s43, 2')
    e('s_add_u32 s43, s43, s24')
    e('s_mul_i32 s46, s43, 4608')
    e(f's_add_u32 s46, s46, {Z_OFF}')
    e('s_cmp_ge_u32 s40, 7')
    e('s_cselect_b32 s37, 4608000, 0')
    e('s_cselect_b32 s36, 7, 0')
    e('s_sub_u32 s32, s40, s36')
    e('s_lshl_b32 s32, s32, 1')
    e('s_add_u32 s32, s32, s41')
    e('s_mul_i32 s32, s32, 144')
    e('s_add_u32 s32, s32, s29')
    e('s_mul_i32 s33, s26, 18')
    e('s_add_u32 s32, s32, s33')
    e('s_mul_i32 s45, s32, 2304')
    e('s_waitcnt lgkmcnt(0)')
    e('s_add_u32 s6, s6, s37'); e('s_addc_u32 s7, s7, 0')
    srd(16, 6, 7, 4608000)
    c('LDS write addresses: j*2304 + row8*288 + col*16 / +256+col*2 ; j = 4*(lane>>4)+r')
    e('s_lshl_b32 s47, s24, 1')
    e('s_sub_u32 s47, s42, s47')
    e('s_add_u32 s47, s47, 6')
    e('s_mul_i32 s47, s47, 288')
    e(f's_add_u32 s47, s47, {SLOT}')
    e('v_lshrrev_b32 v7, 4, v2')
    e('v_mul_u32_u24 v7, 9216, v7')
    e('v_add_u32 v7, s47, v7')
    e('v_and_b32 v8, 15, v2')
    e('v_lshl_add_u32 v11, v8, 1, v7')
    e('v_lshl_add_u32 v10, v8, 4, v7')
    e('s_mul_i32 s48, s26, 4608')
    e(f's_add_u32 s48, s48, {SLOT}')
    e('v_add_u32 v12, s48, v3')
    e('v_add_u32 v13, s45, v3')
    e('v_add_u32 v14, 18432, v13')
    e('v_cmp_gt_u32 vcc, 16, v2')
    e('v_cmp_gt_u32 s[48:49], 32, v2')
    e('v_add_u32 v36, 4096, v14')
    e(f'v_mov_b32 v5, {OOB}')
    e('v_cndmask_b32 v15, v14, v13, vcc')
    e('v_cndmask_b32 v36, v5, v36, s[48:49]')
    e('v_mov_b32 v34, 0')
    e('v_mov_b32 v35, 0')
    e('s_mul_i32 s30, s41, 9')
    e('s_add_u32 s30, s30, s29')
    e('s_lshl_b32 s30, s30, 3')
    if opt['inbox']:
        c('every WG has a private 256-B inbox; a producer drops its tag into the 18 inboxes of its pair')
        e('s_mul_i32 s50, s40, 4608')
        e('s_add_u32 s30, s30, s50')
        e(f's_add_u32 s30, s30, {FLAG_OFF+AFL}')
        e('s_lshl_b32 s50, s27, 8')
        e(f's_add_u32 s50, s50, {FLAG_OFF+AFL}')
        e('v_lshlrev_b32 v37, 8, v2')
    else:
        e('s_lshl_b32 s50, s40, 8')
        e(f's_add_u32 s50, s50, {FLAG_OFF+ZFL}')
        e('s_add_u32 s30, s30, s50')
    def bf(f): return vr(76 + 4*f)
    def preB():
        for f in range(45):
            e(f'ds_read_b128 {bf(f)}, v3 offset:{f*1024}')
            if f % 12 == 11: e('s_waitcnt lgkmcnt(4)')
    e('v_min_u32 v5, 17, v2')
    e('v_lshlrev_b32 v5, 3, v5')
    e('s_mov_b32 s51, 0')
    if opt['pbe']: preB()
    e('s_waitcnt vmcnt(0)')
    e('s_barrier')
    if not opt['es']: stamp(8)
    e('s_cmp_lg_u32 s26, 4')
    e('s_cbranch_scc1 L_e1b')
    setflag([], 0x3ffff if opt['inbox'] else 1)
    lab('L_e1b')
    if not opt['pbe']: preB()
    e('s_cmp_lg_u32 s26, 4')
    e('s_cbranch_scc1 L_e2')
    lab('L_zpoll')
    e('buffer_load_dwordx2 v[8:9], v5, s[20:23], s50 offen sc1')
    e('s_add_u32 s51, s51, 1')
    e('s_cmp_gt_u32 s51, 400000')
    e('s_cbranch_scc1 L_e2')
    e('s_waitcnt vmcnt(0)')
    e('v_cmp_ne_u64 vcc, s[92:93], v[8:9]')
    e('s_cbranch_vccz L_e2')
    if opt['zslp']: e(f's_sleep {opt["zslp"]}')
    e('s_branch L_zpoll')
    lab('L_e2')
    e('s_barrier')
    if not opt['es']: stamp(9)
    for J in range(18):
        e(f'buffer_load_dword v{16+J}, v{4 if J < 16 else 6}, s[20:23], s46 offen offset:{(J%16)*256} sc1')
    e('s_waitcnt lgkmcnt(0)')
    for ks in range(5):
        e(f's_waitcnt vmcnt({max(0, 18-4*(ks+1))})')
        if ks == 0 and not opt['es']: stamp(10)
        for T in range(9):
            r = 40 + 4*T
            cin = '0' if ks == 0 else vr(r)
            e(f'v_mfma_f32_16x16x32_bf16 {vr(r)}, v[{16+4*ks}:{16+4*ks+3}], {bf(T*5+ks)}, {cin}')
    e('s_nop 7')
    e('s_nop 1')
    for r in range(4):
        d = 140 + 6*r
        A = lambda T: 40 + 4*T + r
        for h in range(4): e(f'v_cvt_pk_bf16_f32 v{d+h}, v{A(2*h)}, v{A(2*h+1)}')
        e(f'v_cvt_pk_bf16_f32 v{d+4}, v{A(8)}, v{A(8)}')
        e(f'ds_write_b128 v10, v[{d}:{d+3}] offset:{r*2304}')
        e(f'ds_write_b16 v11, v{d+4} offset:{r*2304+256}')
    e('s_waitcnt lgkmcnt(0)')
    e('s_barrier')
    for n in range(5): e(f'ds_read_b128 {vr(76+4*n)}, v12 offset:{n*1024}')
    for n in range(5):
        e(f's_waitcnt lgkmcnt({4-n})')
        va, off = ((13, 0), (13, 1024), (15, 2048), (14, 3072), (36, 0))[n]
        e(f'buffer_store_dwordx4 {vr(76+4*n)}, v{va}, s[16:19], 0 offen offset:{off}{OF[opt["of3"]]}')
else:
    lab('L_fin')
    e('s_setprio 0')
    e('s_load_dwordx2 s[6:7], s[0:1], 24')
    if not opt['es']: stamp(7)
    e('v_and_b32 v2, 63, v0')
    e('v_lshlrev_b32 v3, 4, v2')
    e('v_mov_b32 v37, 0')
    e('s_lshr_b32 s41, s26, 2')
    if opt['tr']:
        c('helpers take an early set, compute waves a late one')
        e('s_mul_i32 s40, s28, 18')
        e('s_add_u32 s40, s40, s29')
        e('s_add_u32 s42, s41, 4')
        e('s_cmp_ge_u32 s29, s42')
        e('s_cselect_b32 s42, 4, 0')
        e('s_add_u32 s40, s40, s42')
        e('s_cmp_eq_u32 s41, 0')
        e('s_cselect_b32 s42, 5, 0')
        e('s_add_u32 s40, s40, s42')
    else:
        e('s_lshl_b32 s40, s27, 1')
        e('s_add_u32 s40, s40, s41')
    e('s_mul_i32 s30, s40, 7282')
    e('s_lshr_b32 s30, s30, 16')
    e('s_mul_i32 s31, s30, 9')
    e('s_sub_u32 s31, s40, s31')
    if opt['gmap']:
        e('s_lshr_b32 s32, s30, 2')
        e('s_bfe_u32 s38, s30, 0x10001')
        e('s_and_b32 s33, s30, 1')
        e('s_cmp_ge_u32 s32, 7')
        e('s_cselect_b32 s37, 4608000, 0')
        e('s_cselect_b32 s36, 7, 0')
        e('s_sub_u32 s32, s32, s36')
        e('s_lshl_b32 s32, s32, 1')
        e('s_add_u32 s33, s33, s32')
    else:
        e('s_mul_i32 s32, s30, 4682')
        e('s_lshr_b32 s32, s32, 16')
        e('s_mul_i32 s33, s32, 14')
        e('s_sub_u32 s33, s30, s33')
        e('s_lshr_b32 s37, s32, 1')
        e('s_and_b32 s38, s32, 1')
        e('s_mul_i32 s37, s37, 4608000')
    e('s_waitcnt lgkmcnt(0)')
    e('s_add_u32 s6, s6, s37'); e('s_addc_u32 s7, s7, 0')
    srd(16, 6, 7, 4608000)
    e('s_mul_i32 s39, s33, 1152')
    e('s_add_u32 s39, s39, s38')
    e('s_add_u32 s39, s39, 6')
    e('s_lshl_b32 s45, s31, 2')
    e('s_add_u32 s45, s45, s24')
    e('s_mul_i32 s42, s45, 171')
    e('s_lshr_b32 s42, s42, 9')
    e('s_mul_i32 s43, s42, 3')
    e('s_sub_u32 s43, s45, s43')
    e('s_sub_u32 s44, s45, 28')
    e('s_cmp_ge_u32 s45, 27')
    e('s_cselect_b32 s42, s44, s42')
    e('s_cselect_b32 s43, 3, s43')
    e('s_cmp_eq_u32 s45, 27')
    e('s_cselect_b32 s42, 8, s42')
    e('s_lshl_b32 s42, s42, 3')
    e('s_lshl_b32 s43, s43, 1')
    e('s_add_u32 s42, s42, s39')
    e('s_sub_u32 s42, s42, s43')
    e('s_mul_i32 s45, s42, 288')
    e('v_lshrrev_b32 v7, 4, v2')
    e(f'v_mul_u32_u24 v7, {4*72*288}, v7')
    e('v_add_u32 v7, s45, v7')
    e('v_and_b32 v8, 15, v2')
    e('v_lshl_add_u32 v11, v8, 1, v7')
    e('v_lshl_add_u32 v10, v8, 4, v7')
    def bf(f): return vr(76 + 4*f)
    def preB():
        for f in range(45):
            e(f'ds_read_b128 {bf(f)}, v3 offset:{f*1024}')
            if f % 12 == 11: e('s_waitcnt lgkmcnt(4)')
    def zpoll(name):
        e('v_min_u32 v5, 8, v2')
        e('v_lshlrev_b32 v5, 3, v5')
        e('s_mov_b32 s51, 0')
        lab(f'L_zp{name}')
        e('buffer_load_dwordx2 v[8:9], v5, s[20:23], s50 offen sc1')
        e('s_add_u32 s51, s51, 1')
        e('s_cmp_gt_u32 s51, 400000')
        e(f's_cbranch_scc1 L_zd{name}')
        e('s_waitcnt vmcnt(0)')
        e('v_cmp_ne_u64 vcc, s[92:93], v[8:9]')
        e(f's_cbranch_vccz L_zd{name}')
        e('s_sleep 1')
        e(f's_branch L_zp{name}')
        lab(f'L_zd{name}')
    if opt['tr']:
        e('s_mul_i32 s46, s40, 18432')
        e('s_lshl_b32 s47, s24, 10')
        e('s_add_u32 s46, s46, s47')
        e(f's_add_u32 s46, s46, {Z_OFF}')
        e('s_mul_i32 s48, s41, 18432')
        e(f's_add_u32 s48, s48, {SLOT}')
        e('s_add_u32 s47, s47, s48')
        e('s_lshl_b32 s49, s24, 2')
        e('s_add_u32 s48, s48, s49')
        e('v_add_u32 v4, s48, v3')
        e('v_mov_b32 v34, 0')
        e('v_mov_b32 v35, 0')
        e('s_lshl_b32 s50, s28, 7')
        e(f's_add_u32 s50, s50, {FLAG_OFF+ZFL}')
        def zdma(name):
            for i in range(5):
                if i == 4:
                    e('s_cmp_ge_u32 s24, 2')
                    e(f's_cbranch_scc1 L_zm{name}')
                e(f's_add_u32 m0, s47, {i*4096}')
                e('s_nop 0')
                e('buffer_load_dwordx4 v3, s[20:23], s46 offen sc1 lds')
                if i < 4: e('s_add_u32 s46, s46, 4096')
            lab(f'L_zm{name}')
        e('s_cmp_lt_u32 s26, 4')
        e('s_cbranch_scc1 L_fc')
        c('---- helpers: early set')
        e('s_cmp_lg_u32 s26, 4')
        e('s_cbranch_scc1 L_zdh')
        zpoll('h')
        e('s_waitcnt vmcnt(0)')
        e('s_barrier')
        if not opt['es']: stamp(8)
        zdma('h')
        preB()
        e('s_waitcnt vmcnt(0) lgkmcnt(0)')
        e('s_barrier')
        stamp(9)
        e('s_branch L_gemm')
        lab('L_fc')
        c('---- compute waves: late set')
        e('s_add_u32 s50, s50, 4096')
        e('s_waitcnt vmcnt(0)')
        e('s_barrier')
        if not opt['es']: stamp(8)
        e('s_cmp_lg_u32 s26, 0')
        e('s_cbranch_scc1 L_fc1')
        setflag(['s_lshl_b32 s30, s29, 3', 's_add_u32 s30, s30, s50'])
        lab('L_fc1')
        preB()
        e('s_cmp_lg_u32 s26, 0')
        e('s_cbranch_scc1 L_zdc')
        zpoll('c')
        e('s_barrier')
        stamp(9)
        zdma('c')
        e('s_waitcnt vmcnt(0) lgkmcnt(0)')
        e('s_barrier')
        stamp(10)
        lab('L_gemm')
    else:
        e('s_mul_i32 s46, s27, 36864')
        e('s_lshl_b32 s47, s26, 10')
        e('s_add_u32 s46, s46, s47')
        e(f's_add_u32 s46, s46, {Z_OFF}')
        e('s_mul_i32 s48, s41, 18432')
        e('s_lshl_b32 s49, s24, 2')
        e('s_add_u32 s48, s48, s49')
        e(f's_add_u32 s48, s48, {SLOT}')
        e('v_add_u32 v4, s48, v3')
        e('v_mov_b32 v34, 0')
        e('v_mov_b32 v35, 0')
        if opt['fl']:
            for k in range(4): e(f'v_mov_b32 v{36+k}, s{92+k%2}')
            e('s_mul_i32 s50, s28, 1152')
            e(f's_add_u32 s50, s50, {FLAG_OFF+ZF2}')
            e('s_lshl_b32 s30, s27, 7')
            e(f's_add_u32 s30, s30, {FLAG_OFF+ZF2}')
        e('s_waitcnt vmcnt(0)')
        e('s_barrier')
        if not opt['es']: stamp(8)
        def bf(f): return vr(76 + 4*f)
        def preB():
            for f in range(45):
                e(f'ds_read_b128 {bf(f)}, v3 offset:{f*1024}')
                if f % 12 == 11: e('s_waitcnt lgkmcnt(4)')
        e('s_cmp_lg_u32 s26, 4')
        e('s_cbranch_scc1 L_e1b')
        if opt['fl']:
            e('s_mov_b64 exec, 0xff')
            e('buffer_store_dwordx4 v[36:39], v3, s[20:23], s30 offen sc1')
            e('s_mov_b64 exec, -1')
        else:
            e('s_lshl_b32 s50, s28, 7')
            e(f's_add_u32 s50, s50, {FLAG_OFF+ZFL}')
            setflag(['s_lshl_b32 s30, s29, 3', 's_add_u32 s30, s30, s50'])
        lab('L_e1b')
        preB()
        e('s_cmp_lg_u32 s26, 4')
        e('s_cbranch_scc1 L_e2')
        e('v_min_u32 v5, 8, v2')
        e(f'v_lshlrev_b32 v5, {7 if opt["fl"] else 3}, v5')
        e('s_mov_b32 s51, 0')
        lab('L_zpoll')
        e('buffer_load_dwordx2 v[8:9], v5, s[20:23], s50 offen sc1')
        e('s_add_u32 s51, s51, 1')
        e('s_cmp_gt_u32 s51, 400000')
        e('s_cbranch_scc1 L_e2')
        e('s_waitcnt vmcnt(0)')
        e('v_cmp_ne_u64 vcc, s[92:93], v[8:9]')
        e('s_cbranch_vccz L_e2')
        e('s_sleep 1')
        e('s_branch L_zpoll')
        lab('L_e2')
        e('s_barrier')
        stamp(9)
        for i in range(5):
            if i == 4:
                e('s_cmp_ge_u32 s26, 4')
                e('s_cbranch_scc1 L_e3')
            e(f's_add_u32 m0, s47, {SLOT + i*8192}')
            e('s_nop 0')
            e('buffer_load_dwordx4 v3, s[20:23], s46 offen sc1 lds')
            if i < 4: e('s_add_u32 s46, s46, 8192')
        lab('L_e3')
        e('s_waitcnt vmcnt(0) lgkmcnt(0)')
        e('s_barrier')
        stamp(10)
    if opt['stamps']: e('s_waitcnt lgkmcnt(0)')
    for J in range(14): e(f'ds_read_b32 v{16+J}, v4 offset:{J*1024}')
    for ks in range(5):
        if ks == 0: e('s_waitcnt lgkmcnt(10)')
        if ks == 1: e('s_waitcnt lgkmcnt(10)')
        if ks == 2: e('s_waitcnt lgkmcnt(6)')
        if ks == 3: e('s_waitcnt lgkmcnt(2)')
        if ks == 4: e('s_waitcnt lgkmcnt(0)')
        for T in range(9):
            r = 40 + 4*T
            cin = '0' if ks == 0 else vr(r)
            e(f'v_mfma_f32_16x16x32_bf16 {vr(r)}, v[{16+4*ks}:{16+4*ks+3}], {bf(T*5+ks)}, {cin}')
            if ks == 0 and T < 4: e(f'ds_read_b32 v{30+T}, v4 offset:{(14+T)*1024}')
    if opt['tr']:
        e('s_cmp_lt_u32 s26, 4')
        e('s_cbranch_scc1 L_ne3')
        e('s_barrier')
        lab('L_ne3')
    e('s_nop 7')
    e('s_nop 1')
    if opt['trip']:
        e('s_memrealtime s[66:67]')
        e('s_waitcnt lgkmcnt(0)')
        e('s_sub_u32 s66, s66, s64')
        e(f's_sub_u32 s66, s66, {opt["trip"]}')
        e(f's_cmp_lt_u32 s66, {opt["tlo"] - opt["trip"]}')
        e('s_cselect_b32 s66, 1.0, 0')
        e('s_cmp_eq_u32 s2, 100')
        e('s_cselect_b32 s66, s66, 0')
        e('v_add_f32 v40, s66, v40')
    if opt['fake']:
        e('s_cmp_ge_u32 s27, 126')
        e('s_cselect_b32 s45, 126, 0')
        e('s_sub_u32 s45, s27, s45')
        e('s_mul_i32 s45, s45, 36864')
        e('s_mul_i32 s44, s26, 4608')
        e('s_add_u32 s45, s45, s44')
        e('v_add_u32 v10, s45, v3')
        for r in range(4):
            d = 140 + 6*r
            A = lambda T: 40 + 4*T + r
            for h in range(4): e(f'v_cvt_pk_bf16_f32 v{d+h}, v{A(2*h)}, v{A(2*h+1)}')
            e(f'v_cvt_pk_bf16_f32 v{d+4}, v{A(8)}, v{A(8)}')
            e(f'buffer_store_dwordx4 v[{d}:{d+3}], v10, s[16:19], 0 offen offset:{r*1024}{OF[opt["of"]]}')
    else:
      for r in range(4):
          d = 140 + 6*r
          A = lambda T: 40 + 4*T + r
          for h in range(4): e(f'v_cvt_pk_bf16_f32 v{d+h}, v{A(2*h)}, v{A(2*h+1)}')
          e(f'v_cvt_pk_bf16_f32 v{d+4}, v{A(8)}, v{A(8)}')
          e(f'buffer_store_dwordx4 v[{d}:{d+3}], v10, s[16:19], 0 offen{OF[opt["of"]]}')
          e(f'buffer_store_short v{d+4}, v11, s[16:19], 0 offen offset:256{OF[opt["of2"]]}')
          if r < 3:
              e(f'v_add_u32 v10, {72*288}, v10')
              e(f'v_add_u32 v11, {72*288}, v11')
if opt['dead2']:
    e('s_cmp_eq_u32 s92, 0')
    e('s_cbranch_scc1 L_end')
    lab('L_dl2')
    e('s_memrealtime s[66:67]')
    e('s_waitcnt lgkmcnt(0)')
    e('s_sub_u32 s66, s66, s92')
    e(f's_cmp_lt_u32 s66, {opt["dead2"]}')
    e('s_cbranch_scc1 L_dl2')
if opt['dead']:
    if opt['devt']:
        e(f's_cmp_lg_u32 s26, {opt["dw"]}')
        e('s_cbranch_scc1 L_end')
    e('s_waitcnt vmcnt(0)')
    lab('L_dl')
    e('s_memrealtime s[66:67]')
    e('s_waitcnt lgkmcnt(0)')
    e('s_sub_u32 s66, s66, s64')
    e(f's_cmp_lt_u32 s66, {opt["dead"]}')
    e('s_cbranch_scc1 L_dl')
if opt['stamps']:
    e('s_waitcnt vmcnt(0)')
    stamp(11)
    e('s_waitcnt lgkmcnt(0)')
    e(f's_cmp_lg_u32 s26, {opt["sw"]}')
    e('s_cbranch_scc1 L_end')
    if opt['dbgst']:
        e(f's_cmp_lg_u32 s2, {opt["dbgst"]}')
        e('s_cbranch_scc1 L_end')
        e('s_load_dwordx2 s[56:57], s[0:1], 32')
        e('s_waitcnt lgkmcnt(0)')
        srd(16, 56, 57, 256)
        e('v_mov_b32 v1, 0')
        for i in range(1, 12):
            e(f's_sub_u32 s33, s{64+2*i}, s64')
            e('v_mov_b32 v4, s33')
            e(f'buffer_store_dword v4, v1, s[16:19], 0 offen offset:{4+4*i}')
        e('s_sub_u32 s33, s94, s90')
        e('v_mov_b32 v4, s33')
        e('buffer_store_dword v4, v1, s[16:19], 0 offen offset:56')
        e('s_branch L_end')
    e('s_mov_b32 s22, 0x10000000')
    e('s_lshl_b32 s33, s2, 7')
    e(f's_add_u32 s33, s33, {STAMP_OFF}')
    e('v_mov_b32 v1, s33')
    for i in range(6):
        for k in range(4): e(f'v_mov_b32 v{4+k}, s{64+4*i+k}')
        e(f'buffer_store_dwordx4 v[4:7], v1, s[20:23], 0 offen offset:{16*i}')
        e('s_nop 1')
lab('L_end')
e('s_endpgm')
out.extend(ool)
tail = f"""
.section .rodata,"a"
.p2align 6
.amdhsa_kernel {NAME}_kernel
  .amdhsa_next_free_vgpr 256
  .amdhsa_next_free_sgpr 100
  .amdhsa_accum_offset 256
  .amdhsa_group_segment_fixed_size 0
  .amdhsa_kernarg_size 48
  .amdhsa_user_sgpr_count 2
  .amdhsa_user_sgpr_kernarg_segment_ptr 1
  .amdhsa_system_sgpr_workgroup_id_x 1
.end_amdhsa_kernel
"""
open(sys.argv[1], 'w').write(hdr + '\n'.join(out) + '\n' + tail)
```
